```python
import torch

def _softmax(x, axis=-1):
    return torch.softmax(x, dim=axis)

def _gelu(x):
    return torch.nn.functional.gelu(x, approximate='tanh')

def _silu(x):
    return torch.nn.functional.silu(x)

def _sigmoid(x):
    return torch.sigmoid(x)

def _layernorm(x, axis=-1, eps=1e-05):
    m = x.mean(dim=axis, keepdim=True)
    v = x.var(dim=axis, keepdim=True, unbiased=False)
    return (x - m) / torch.sqrt(v + eps)

def _scatter_add(tgt, idx, src, axis=0):
    return tgt.clone().index_add_(axis, idx, src)

def _segment_sum(src, seg, n):
    out = torch.zeros((n,) + src.shape[1:], dtype=src.dtype)
    return out.index_add_(0, seg, src)

def _pad(x, pw):
    flat = tuple((v for pair in reversed(pw) for v in pair))
    return torch.nn.functional.pad(x, flat)
kernel_name = 'adaLN_cond__ssm_conv_s4__geglu_ffn__prompt'

def setup_inputs():

    _w = lambda a: (lambda t: t.to(torch.bfloat16) if t.is_floating_point() else t)(torch.as_tensor(a))

    def _A_setup():
        B, L, D, N = (1, 2048, 512, 128)
        A_re = -(lambda _x: torch.exp(torch.as_tensor(_x)))((lambda *s: torch.randn(*s, dtype=torch.bfloat16) * 3.2)(D, N))
        A_im = torch.pi * (lambda *s: torch.randn(*s, dtype=torch.bfloat16) * 0.1)(D, N)
        B_re = (lambda *s: torch.randn(*s, dtype=torch.bfloat16) * 0.2)(D, N)
        B_im = (lambda *s: torch.randn(*s, dtype=torch.bfloat16) * 0.2)(D, N)
        C_re = (lambda *s: torch.randn(*s, dtype=torch.bfloat16) * 0.2)(D, N)
        C_im = (lambda *s: torch.randn(*s, dtype=torch.bfloat16) * 0.2)(D, N)
        log_dt = (lambda *s: torch.randn(*s, dtype=torch.bfloat16) * 0.1)(D) * 0.5 - 4.0
        Dskip = (lambda *s: torch.randn(*s, dtype=torch.bfloat16) * 0.1)(D)
        return {'u': _w((lambda *s: torch.randn(*s, dtype=torch.bfloat16) * 0.05)(B, L, D)), 'A_re': _w(A_re), 'A_im': _w(A_im), 'B_re': _w(B_re), 'B_im': _w(B_im), 'C_re': _w(C_re), 'C_im': _w(C_im), 'log_dt': _w(log_dt), 'Dskip': _w(Dskip)}
    _A_in = _A_setup()

    def _B_setup():
        B, S, D, F = (1, 2048, 512, 1792)
        return {'x': _w((lambda *s: torch.randn(*s, dtype=torch.bfloat16) * 0.05)(B, S, D)), 'w_gate': _w((lambda *s: torch.randn(*s, dtype=torch.bfloat16) * 0.05)(D, F)), 'w_up': _w((lambda *s: torch.randn(*s, dtype=torch.bfloat16) * 0.05)(D, F)), 'w_down': _w((lambda *s: torch.randn(*s, dtype=torch.bfloat16) * 0.05)(F, D))}
    _B_in = _B_setup()
    return {'A_u': _A_in['u'], 'A_A_re': _A_in['A_re'], 'A_A_im': _A_in['A_im'], 'A_B_re': _A_in['B_re'], 'A_B_im': _A_in['B_im'], 'A_C_re': _A_in['C_re'], 'A_C_im': _A_in['C_im'], 'A_log_dt': _A_in['log_dt'], 'A_Dskip': _A_in['Dskip'], 'B_x': _B_in['x'], 'B_w_gate': _B_in['w_gate'], 'B_w_up': _B_in['w_up'], 'B_w_down': _B_in['w_down'], 'c': _w((lambda *s: torch.randn(*s, dtype=torch.bfloat16) * 0.1)(1, 512) * 8.0), 'w_mod': _w((lambda *s: torch.randn(*s, dtype=torch.bfloat16) * 0.1)(512, 6 * 512) * 512 ** (-0.5) * 8.0)}

def reference(A_u, A_A_re, A_A_im, A_B_re, A_B_im, A_C_re, A_C_im, A_log_dt, A_Dskip, B_x, B_w_gate, B_w_up, B_w_down, c, w_mod):

    def _A_ref(u, A_re, A_im, B_re, B_im, C_re, C_im, log_dt, Dskip):
        Bsz, L, D = u.shape
        dt = torch.exp(log_dt)[:, None]
        A = A_re + 1j * A_im
        Bc = B_re + 1j * B_im
        Cc = C_re + 1j * C_im
        logdA = dt * A
        dB = dt * Bc
        l = (lambda x, dt: x.to(dt))(torch.arange(L), A_re.dtype)
        P = torch.exp(logdA[:, :, None] * l[None, None, :])
        K = torch.einsum('dn,dnl,dn->dl', Cc, P, dB).real
        L2 = 2 * L
        Kp = _pad(K, ((0, 0), (0, L)))
        up = (lambda x, *d: x.permute(*d))(u, 0, 2, 1)
        up = _pad(up, ((0, 0), (0, 0), (0, L)))
        Kf = (lambda x, axes=(-2, -1): torch.fft.rfft2(x.float(), dim=axes))(Kp[:, None, :], axes=(-2, -1))
        Uf = (lambda x, axes=(-2, -1): torch.fft.rfft2(x.float(), dim=axes))(up[:, :, None, :], axes=(-2, -1))
        Yf = Uf * Kf[None, :, :, :]
        y = (lambda x, s, axes=(-2, -1): torch.fft.irfft2(x, s=s, dim=axes).to(torch.bfloat16))(Yf, (1, L2), axes=(-2, -1))[:, :, 0, :L]
        y = (lambda x, *d: x.permute(*d))(y, 0, 2, 1) + u * Dskip[None, None, :]
        return y

    def _B_ref(x, w_gate, w_up, w_down):
        return _gelu(x @ w_gate) * (x @ w_up) @ w_down
    x = A_u
    mod = (_silu(c) @ w_mod).reshape(c.shape[0], 6, 1, -1)
    sa, ca, ga, sb, cb, gb = (mod[:, 0].clone(), mod[:, 1].clone(), mod[:, 2].clone(), mod[:, 3].clone(), mod[:, 4].clone(), mod[:, 5].clone())
    h = _layernorm(x, axis=-1) * (1 + ca) + sa
    x = x + ga * _A_ref(h, A_A_re, A_A_im, A_B_re, A_B_im, A_C_re, A_C_im, A_log_dt, A_Dskip)
    h = _layernorm(x, axis=-1) * (1 + cb) + sb
    x = x + gb * _B_ref(h, B_w_gate, B_w_up, B_w_down)
    return x
```

```python
NAME = 'adaLN_cond__ssm_conv_s4__geglu_ffn__prompt'
class Prog:
    def __init__(self):
        self.launch = []; self.text = []; self.kd = []; self.nlabel = 0
        self.header = []
    def label(self, base='L'):
        self.nlabel += 1
        return f'{base}_{self.nlabel}'
    def e(self, s):
        for line in s.split('\n'):
            line = line.strip()
            if line: self.text.append(line if line.endswith(':') else '  ' + line)
    def begin(self, name):
        self.text += [f'.globl {name}', '.p2align 8', f'.type {name},@function', f'{name}:']
    def end(self, name, vgpr=256, agpr=0, sgpr=102, extra=''):
        ao = (vgpr + 3)//4*4
        nfv = ao + agpr if agpr else vgpr
        self.kd.append(f'''.p2align 6
.amdhsa_kernel {name}
  .amdhsa_next_free_vgpr {nfv}
  .amdhsa_next_free_sgpr {sgpr}
  .amdhsa_accum_offset {ao}
  .amdhsa_group_segment_fixed_size 0
  .amdhsa_kernarg_size 144
  .amdhsa_user_sgpr_count 2
  .amdhsa_user_sgpr_kernarg_segment_ptr 1
  .amdhsa_system_sgpr_workgroup_id_x 1
{extra}.end_amdhsa_kernel''')
    def add_launch(self, name, grid, block, lds):
        self.launch.append((name, grid, block, lds))
    def dump(self, path, single=False):
        s = ''
        for h in self.header: s += '; ' + h + '\n'
        if single:
            n,g,b,l = self.launch[0]
            s += f'; @launch grid=({g},1,1) block=({b},1,1) lds={l}\n'
        else:
            for n,g,b,l in self.launch:
                s += f'; @launch kernel={n} grid=({g},1,1) block=({b},1,1) lds={l}\n'
        s += '.amdgcn_target "amdgcn-amd-amdhsa--gfx950"\n.text\n'
        s += '\n'.join(self.text) + '\n'
        s += '.section .rodata,"a"\n' + '\n'.join(self.kd) + '\n'
        open(path, 'w').write(s)
```

```python
import re
TRANS = ('v_exp_f32','v_log_f32','v_rcp_f32','v_rsq_f32','v_sqrt_f32','v_sin_f32','v_cos_f32','v_rcp_iflag_f32')
def regs_of(tok):
    tok = tok.strip()
    neg = tok.lstrip('-')
    if neg.startswith('abs(') : neg = neg[4:-1]
    if neg.startswith('|'): neg = neg.strip('|')
    m = re.fullmatch(r'([vas])(\d+)', neg)
    if m: return {(m.group(1), int(m.group(2)))}
    m = re.fullmatch(r'([vas])\[(\d+):(\d+)\]', neg)
    if m: return {(m.group(1), i) for i in range(int(m.group(2)), int(m.group(3))+1)}
    if neg == 'vcc': return {('s','vcc_lo'),('s','vcc_hi')}
    if neg in ('vcc_lo','vcc_hi'): return {('s',neg)}
    if neg == 'exec': return {('s','exec')}
    if neg == 'm0': return {('s','m0')}
    return set()
class I:
    def __init__(self, line):
        self.line = line
        s = line.split(';')[0].strip()
        self.is_label = s.endswith(':') or s.startswith('.') or not s
        self.op = ''; self.w=set(); self.r=set(); self.kind=''
        if self.is_label: return
        parts = s.split(None, 1)
        op = parts[0]; self.rawop = op
        rest = parts[1] if len(parts)>1 else ''
        self.dpp = '_dpp' in op or 'quad_perm' in rest or 'row_' in rest
        self.sdwa = '_sdwa' in op
        op = re.sub(r'_(e32|e64|dpp|sdwa)$', '', op); self.op = op
        ops=[]; cur=''; d=0
        for ch in rest:
            if ch=='[': d+=1
            if ch==']': d-=1
            if ch==',' and d==0: ops.append(cur.strip()); cur=''
            else: cur+=ch
        if cur.strip(): ops.append(cur.strip())
        mods=''
        if ops:
            l = ops[-1].split(None,1)
            ops[-1]=l[0]; mods = l[1] if len(l)>1 else ''
        self.ops=ops; self.mods=mods
        R=[regs_of(o) for o in ops]
        U=lambda L: set().union(*L) if L else set()
        if op.startswith('v_mfma'):
            self.kind='mfma'; self.w=R[0]; self.a=R[1]|R[2]; self.c=R[3]; self.r=self.a|self.c
            self.passes = 8 if '32x32' in op else 4
        elif op.startswith('v_'):
            self.kind='valu'
            if op.startswith('v_permlane') and 'swap' in op: self.w=R[0]|R[1]; self.r=R[0]|R[1]
            elif '_co_' in op: self.w=R[0]|R[1]; self.r=U(R[2:])
            else:
                self.w=R[0]; self.r=U(R[1:])
                if op.startswith(('v_fmac','v_dot2c','v_writelane')) or self.dpp: self.r|=R[0]
                if op.startswith('v_cmpx'): self.w|={('s','exec')}
            self.trans = op in TRANS
            self.dot = op.startswith('v_dot')
            if self.dot: self.c = R[3] if len(R)>3 else R[0]; self.a=R[1]|R[2]
        elif op.startswith(('buffer_','global_')):
            self.kind='vmem'; self.lds = bool(re.search(r'\blds\b', mods)) or '_lds_' in op
            self.store = 'store' in op or 'atomic' in op
            if self.lds: self.r=U(R)|{('s','m0')}
            elif 'load' in op: self.w=R[0]; self.r=U(R[1:])
            else: self.r=U(R)
            self.data=set()
            if self.store and re.search(r'x[34]$', op): self.data = R[0] if op.startswith('buffer_') else R[1]
            if 'atomic' in op and 'sc0' in mods: self.w=R[0]
        elif op.startswith('ds_'):
            self.kind='ds'
            if op.startswith(('ds_read','ds_bpermute','ds_permute','ds_swizzle')): self.w=R[0]; self.r=U(R[1:])
            else: self.r=U(R)
        elif op.startswith('s_'):
            self.kind='salu'
            if op.startswith(('s_cmp','s_cbranch','s_branch','s_waitcnt','s_barrier','s_nop','s_endpgm','s_sleep','s_setprio','s_bitcmp')): self.r=U(R)
            else:
                self.w=R[0] if R else set(); self.r=U(R[1:])
                if 'saveexec' in op: self.w|={('s','exec')}
    def states(self):
        if self.is_label: return 0
        if self.op=='s_nop': return int(self.ops[0],0)+1
        return 1
def need(p, c):
    n=0
    sg=lambda S:{x for x in S if x[0]=='s'}
    vg=lambda S:{x for x in S if x[0]!='s'}
    if p.kind=='valu':
        ws=sg(p.w); wv=vg(p.w)
        if c.kind=='vmem' and ws & c.r: n=max(n,5)
        if c.kind=='valu':
            if ws & c.r: n=max(n, 4 if c.op.startswith(('v_readlane','v_writelane')) else 2)
            if c.dpp and wv & c.r: n=max(n,2)
            if ('s','exec') in ws:
                if c.dpp: n=max(n,5)
                if c.op.startswith(('v_readlane','v_readfirstlane','v_writelane','v_permlane')): n=max(n,4)
            if c.op.startswith(('v_readlane','v_readfirstlane')) and wv & c.r: n=max(n,1)
            if c.op.startswith('v_permlane') and wv & c.r: n=max(n,2)
            if p.trans and wv & c.r: n=max(n,1)
            if p.sdwa and wv & (c.r|c.w): n=max(n,1)
        if c.kind=='mfma':
            if wv & c.r: n=max(n,2)
            if ('s','exec') in ws: n=max(n,4)
        if p.dot:
            if c.kind=='valu' and c.op==p.op:
                if wv & c.a: n=max(n,3)
            elif wv & (c.r|c.w): n=max(n,3)
        if p.trans and c.kind in('ds','vmem') and wv & c.r: n=max(n,1)
    if p.kind=='salu' and ('s','m0') in p.w and (c.kind=='vmem' and c.lds or 'addtid' in c.op): n=max(n,1)
    if p.kind=='vmem' and p.data and p.data & c.w: n=max(n,2)
    if p.kind=='mfma':
        big = {4:8, 8:12}[p.passes]; ovl={4:6, 8:10}[p.passes]; war={4:3,8:7}[p.passes]
        if c.kind=='mfma':
            if p.w & c.a: n=max(n,big)
            if p.w & c.c and not (p.w==c.c and p.passes==c.passes): n=max(n,ovl)
            if p.w & c.w and not (p.w==c.c): n=max(n,ovl)
        elif c.kind in ('valu','vmem','ds'):
            if p.w & (c.r|c.w): n=max(n,big)
            if p.c & c.w: n=max(n,war)
    return n
def fix(lines, verbose=False):
    out=[]; ins=[]; added=0
    for ln in lines:
        c=I(ln)
        if not c.is_label:
            dist=0; req=0
            for p in reversed(ins[-24:]):
                if not p.is_label:
                    k=need(p,c)
                    if k-dist>req: req=k-dist
                dist+=p.states()
                if dist>=13: break
            if req>0:
                nop=f'  s_nop {req-1}'
                out.append(nop); ins.append(I(nop)); added+=1
                if verbose: print('nop',req,'before',ln)
        out.append(ln); ins.append(c)
    return out, added
```

```python
import sys, struct, argparse
from asmlib import Prog, NAME
import hazard

def fbits(x): return '0x%08x' % struct.unpack('<I', struct.pack('<f', x))[0]

F1   = 0x010000
F2   = 0x020000
F3   = 0x040000
MODP = 0x080000
XBLK = 16640
XH   = 0x100000
ZY   = 0x520000
H2   = 0x940000
X2   = 0xB40000
WGU  = 0xD40000
WD   = 0x10C0000
ACT  = 0x1280000
STMP = 0x3000000
WS_BYTES = 0x10000000
S4   = 131072
L_U  = S4; USZ = 4608
L_P  = S4 + 2*USZ; PSZ = 8256
L_SB = L_P + 2*PSZ
L_Y  = 98304
L_MB = 98304
RST  = 544
L_RC = 0; RCSZ = 64*RST
L_KH = 2*RCSZ; KHSZ = 10240
L_GB = 98304
LDS_BYTES = 163840
pX,pAre,pAim,pBre,pBim,pCre,pCim,pLdt = 4,6,8,10,12,14,16,18
pD,pWg,pWu,pWd,pC,pWm,pOut,pWs = 20,24,26,28,30,32,34,38
SRD='s[40:43]'
sL,sW,sTag,sMask,sCnt = 44,45,46,47,48
sLo,sHi = 49,50
sOnes = 51
sMt,sNt,sTb,sDt = 52,53,54,55
sBad = 56
sT = 58
sM = 68
sDsk = 80
sStamp = 82
def sp(i): return f's[{i}:{i+1}]'
def vr(i, n): return f'v[{i}:{i+n-1}]'
def ar(i, n): return f'a[{i}:{i+n-1}]'

class G:
    def __init__(self, stamps=False, opts=None):
        self.p = Prog(); self.stamps = stamps; self.ns = 0; self.o = opts or {}
        self.stamp_names = []
    def e(self, s): self.p.e(s)
    def stamp(self, name):
        if not self.stamps: return
        if self.o.get('probe') is not None and name != self.o['probe']: return
        assert self.ns < 20
        self.e(f's_memrealtime s[22:23]\ns_waitcnt lgkmcnt(0)\ns_mov_b32 s{sStamp+self.ns}, s22')
        self.ns += 1; self.stamp_names.append(name)

    def check(self, issue, tags, vm=0):
        Lc = self.p.label('chk'); Ld = self.p.label('ok')
        self.e(f's_waitcnt vmcnt({vm})\n{Lc}:')
        self.e(f'v_cmp_ne_u32 {sp(sBad)}, v{tags[0]}, v2')
        for t in tags[1:]:
            self.e(f'v_cmp_ne_u32 vcc, v{t}, v2\ns_or_b64 {sp(sBad)}, {sp(sBad)}, vcc')
        self.e(f'''
        s_and_b64 exec, exec, {sp(sBad)}
        s_cbranch_scc0 {Ld}
        s_sub_u32 s{sCnt}, s{sCnt}, 1
        s_cbranch_scc1 L_end''')
        issue()
        self.e(f's_waitcnt vmcnt(0)\ns_branch {Lc}\n{Ld}:\ns_mov_b64 exec, -1')

    def flag_store(self, vaddr, soff):
        self.e(f'''
        s_mov_b32 exec_hi, 0
        buffer_store_dword v2, v{vaddr}, {SRD}, s{soff} offen sc1
        s_mov_b32 exec_hi, -1''')

    def stats_partial(self, src, t, vSBw):
        a,b,c,d = t,t+1,t+2,t+3
        for m in range(4):
            acc = lambda r: '0' if m == 0 else f'v{r}'
            self.e(f'''v_dot2_f32_bf16 v{a}, v{src+m}, s{sOnes}, {acc(a)}
            v_dot2_f32_bf16 v{b}, v{src+4+m}, s{sOnes}, {acc(b)}
            v_dot2_f32_bf16 v{c}, v{src+m}, v{src+m}, {acc(c)}
            v_dot2_f32_bf16 v{d}, v{src+4+m}, v{src+4+m}, {acc(d)}''')
        self.reduce4(a,b,c,d)
        self.e(f'ds_write_b32 v{vSBw}, v{a}')
    def reduce4(self, a,b,c,d):
        self.e(f'''
        v_permlane32_swap_b32 v{a}, v{b}
        v_permlane32_swap_b32 v{c}, v{d}
        v_add_f32 v{a}, v{a}, v{b}
        v_add_f32 v{c}, v{c}, v{d}
        v_permlane16_swap_b32 v{a}, v{c}
        v_add_f32 v{a}, v{a}, v{c}
        v_add_f32_dpp v{a}, v{a}, v{a} row_ror:4 row_mask:0xf bank_mask:0xf
        v_add_f32_dpp v{a}, v{a}, v{a} row_ror:8 row_mask:0xf bank_mask:0xf''')
    def stats_read(self, t, vSBr):
        for w in range(4): self.e(f'ds_read_b128 {vr(t+4*w,4)}, v{vSBr} offset:{16*w}')
    def stats_finish(self, t):
        self.e(f'''
        v_pk_add_f32 {vr(t,2)}, {vr(t,2)}, {vr(t+4,2)}
        v_pk_add_f32 {vr(t+2,2)}, {vr(t+2,2)}, {vr(t+6,2)}
        v_pk_add_f32 {vr(t+8,2)}, {vr(t+8,2)}, {vr(t+12,2)}
        v_pk_add_f32 {vr(t+10,2)}, {vr(t+10,2)}, {vr(t+14,2)}
        v_pk_add_f32 {vr(t,2)}, {vr(t,2)}, {vr(t+8,2)}
        v_pk_add_f32 {vr(t+2,2)}, {vr(t+2,2)}, {vr(t+10,2)}
        v_mul_f32 v{t+4}, {fbits(1/512)}, v{t}
        v_mul_f32 v{t+5}, {fbits(1/512)}, v{t+2}
        v_mul_f32 v{t+6}, {fbits(1/512)}, v{t+1}
        v_mul_f32 v{t+7}, {fbits(1/512)}, v{t+3}
        v_fma_f32 v{t+6}, -v{t+4}, v{t+4}, v{t+6}
        v_fma_f32 v{t+7}, -v{t+5}, v{t+5}, v{t+7}
        v_max_f32 v{t+6}, 0, v{t+6}
        v_max_f32 v{t+7}, 0, v{t+7}
        v_add_f32 v{t+6}, {fbits(1e-5)}, v{t+6}
        v_add_f32 v{t+7}, {fbits(1e-5)}, v{t+7}
        v_rsq_f32 v{t}, v{t+6}
        v_rsq_f32 v{t+2}, v{t+7}
        v_mul_f32 v{t+1}, -v{t+4}, v{t}
        v_mul_f32 v{t+3}, -v{t+5}, v{t+2}''')
    def cmul(self, d, a, b):
        return [f'v_pk_mul_f32 {vr(d,2)}, {vr(a,2)}, {vr(b,2)} op_sel_hi:[1,0]',
                f'v_pk_fma_f32 {vr(d,2)}, {vr(a,2)}, {vr(b,2)}, {vr(d,2)} op_sel:[1,1,0] op_sel_hi:[0,1,1] neg_lo:[1,0,0]']

    def dma_tile(self, i, slot):
        out = []
        for hf in range(2):
            for e_ in range(4):
                pre = ''
                if e_ == 0:
                    pre = (f's_add_u32 m0, s{sT+8}, {slot*32768 + hf*4096}\n'
                           f's_add_u32 s{sT+7}, s{sT+9}, {i*32768 + hf*4096}\n')
                out.append(pre + f'buffer_load_dwordx4 v1, {SRD}, s{sT+7} offen offset:{e_*1024} sc1 lds')
        return out

    def build(self):
        p = self.p; e = self.e
        k = NAME + '_kernel'
        p.add_launch(k, 256, 256, LDS_BYTES)
        p.begin(k)
        XR = 4; WM = 12; AB = 28; WG = 34; WDr = 50; EA = 58
        vXO = 3
        t = 68
        e(f'''
        s_cmp_ge_u32 s2, 256
        s_cbranch_scc1 L_end
        s_load_dwordx16 s[4:19], s[0:1], 0
        s_load_dwordx16 s[20:35], s[0:1], 64
        s_load_dwordx4 s[36:39], s[0:1], 128
        s_and_b32 s{sL}, s2, 7
        s_lshl_b32 s{sL}, s{sL}, 5
        s_lshr_b32 s3, s2, 3
        s_or_b32 s{sL}, s{sL}, s3
        v_lshrrev_b32 v{t}, 6, v0
        v_and_b32 v{t+1}, 63, v0
        v_readfirstlane_b32 s{sW}, v{t}
        v_lshlrev_b32 v1, 4, v{t+1}
        v_and_b32 v{t+2}, 3, v0
        v_lshrrev_b32 v{t+3}, 2, v0
        v_lshlrev_b32 v{t+3}, 4, v{t+3}
        v_lshl_add_u32 v{vXO}, v{t+2}, 11, v{t+3}
        s_lshl_b32 s{sT}, s{sL}, 13
        v_add_u32 v{vXO}, s{sT}, v{vXO}
        v_lshrrev_b32 v{t+4}, 3, v{t+1}
        v_min_u32 v{t+4}, 5, v{t+4}
        v_and_b32 v{t+5}, 0x70, v1
        v_lshl_add_u32 v{t+4}, v{t+4}, 10, v{t+5}
        s_and_b32 s{sT}, s{sL}, 31
        s_lshl_b32 s{sT}, s{sT}, 2
        s_add_u32 s{sT}, s{sT}, s{sW}
        s_lshl_b32 s{sT+2}, s{sT}, 3
        s_mul_i32 s{sT}, s{sT}, {4*6144}
        s_lshr_b32 s{sT+1}, s{sL}, 5
        s_lshl_b32 s{sT+1}, s{sT+1}, 7
        s_add_u32 s{sT}, s{sT}, s{sT+1}
        s_add_u32 s{sT}, s{sT}, 3072
        v_add_u32 v{t+4}, s{sT}, v{t+4}
        v_add_u32 v{t+5}, 12288, v{t+4}
        s_lshl_b32 s{sT}, s{sL}, 9
        v_lshl_add_u32 v{t+6}, v0, 1, s{sT}
        s_lshl_b32 s{sT+3}, s{sL}, 2
        s_mov_b32 s42, {WS_BYTES}
        s_mov_b32 s43, 0x20000
        s_mov_b32 s{sMask}, 0xffff0000
        s_mov_b32 s{sLo}, 0x05040100
        s_mov_b32 s{sHi}, 0x07060302
        s_mov_b32 s{sOnes}, 0x3f803f80
        s_mov_b32 s{sCnt}, 40000
        ''')
        for i in range(6): e(f'v_mov_b32 v{AB+i}, 0')
        e('s_waitcnt lgkmcnt(0)')
        self.stamp('start')
        e(f'''
        global_load_dwordx4 {vr(XR,4)}, v{vXO}, {sp(pX)}
        global_load_dwordx4 {vr(XR+4,4)}, v{vXO}, {sp(pX)} offset:1024
        global_load_dwordx4 {vr(WM,4)}, v{t+4}, {sp(pWm)} offset:-3072
        global_load_dwordx4 {vr(WM+4,4)}, v{t+4}, {sp(pWm)} offset:3072
        global_load_dwordx4 {vr(WM+8,4)}, v{t+5}, {sp(pWm)} offset:-3072
        global_load_dwordx4 {vr(WM+12,4)}, v{t+5}, {sp(pWm)} offset:3072
        s_load_dwordx2 {sp(sT+4)}, {sp(pC)}, s{sT+2}
        s_load_dword s{sT+6}, {sp(pLdt)}, s{sT+3}
        s_load_dword s{sDsk+1}, {sp(pD)}, s{sT+3}
        s_load_dword s{sTag}, {sp(pWs)}, 0
        s_mov_b32 s40, s{pWs}
        s_mov_b32 s41, s{pWs+1}
        ''')
        for i, ptr in enumerate([pAre,pAim,pBre,pBim,pCre,pCim]):
            e(f'global_load_short_d16_hi v{AB+i}, v{t+6}, {sp(ptr)}')
        e(f'''
        s_min_u32 s{sT}, s{sL}, 223
        s_lshl_b32 s{sT}, s{sT}, 2
        s_add_u32 s{sT}, s{sT}, s{sW}
        s_bitcmp1_b32 s{sT}, 0
        s_cselect_b32 s0, s{pWu}, s{pWg}
        s_cselect_b32 s1, s{pWu+1}, s{pWg+1}
        s_bfe_u32 s{sT+1}, s{sT}, 0x40001
        s_lshr_b32 s{sT+2}, s{sT}, 5
        s_mul_i32 s{sT+7}, s{sT+1}, {32*3584}
        s_lshl_b32 s{sT+3}, s{sT+2}, 7
        s_add_u32 s{sT+7}, s{sT+7}, s{sT+3}
        v_lshrrev_b32 v{t+7}, 4, v{t+1}
        v_and_b32 v{t+8}, 15, v{t+1}
        v_mul_u32_u24 v{t+9}, {8*3584}, v{t+7}
        v_lshl_add_u32 v{t+9}, v{t+8}, 3, v{t+9}
        v_add_u32 v{t+9}, s{sT+7}, v{t+9}
        s_lshl_b32 s{sT+2}, s{sT+2}, 17
        s_lshl_b32 s{sT+1}, s{sT+1}, 11
        s_add_u32 s{sT+2}, s{sT+2}, s{sT+1}
        s_and_b32 s{sT}, s{sT}, 1
        s_lshl_b32 s{sT}, s{sT}, 8
        s_add_u32 s{sT+2}, s{sT+2}, s{sT}
        s_add_u32 s{sT+8}, s{sT+2}, {WGU}
        ''')
        for jj in range(8):
            e(f'global_load_dwordx2 {vr(WG+2*jj,2)}, v{t+9}, s[0:1] offset:{3584*(jj&1)}')
            if jj & 1 and jj < 7: e(f's_add_u32 s0, s0, 7168\ns_addc_u32 s1, s1, 0')
        e(f'''
        s_sub_u32 s{sT}, 255, s{sL}
        s_min_u32 s{sT}, s{sT}, 223
        s_and_b32 s{sT+1}, s{sT}, 7
        s_lshr_b32 s{sT+2}, s{sT}, 3
        s_lshl_b32 s{sT+3}, s{sT+2}, 16
        s_lshl_b32 s{sT+7}, s{sW}, 10
        s_add_u32 s{sT+3}, s{sT+3}, s{sT+7}
        s_lshl_b32 s{sT+7}, s{sT+1}, 7
        s_add_u32 s{sT+3}, s{sT+3}, s{sT+7}
        s_add_u32 s{sT+3}, s{sT+3}, 4096
        v_lshrrev_b32 v{t+10}, 5, v{t+1}
        v_and_b32 v{t+11}, 31, v{t+1}
        v_lshlrev_b32 v{t+10}, 14, v{t+10}
        v_lshl_add_u32 v{t+10}, v{t+11}, 2, v{t+10}
        v_add_u32 v{t+10}, s{sT+3}, v{t+10}
        s_mul_i32 s{sT+1}, s{sT+1}, {112*2048}
        s_lshl_b32 s{sT+2}, s{sT+2}, 2
        s_add_u32 s{sT+2}, s{sT+2}, s{sW}
        s_lshl_b32 s{sT+2}, s{sT+2}, 11
        s_add_u32 s{sT+1}, s{sT+1}, s{sT+2}
        s_add_u32 s{sT+9}, s{sT+1}, {WD}
        ''')
        for jj in range(8):
            e(f'global_load_dword v{WDr+jj}, v{t+10}, {sp(pWd)} offset:{-4096 if jj&1==0 else 0}')
            if jj in (1,5): e(f's_add_u32 s{pWd}, s{pWd}, 8192\ns_addc_u32 s{pWd+1}, s{pWd+1}, 0')
            if jj == 3: e(f's_add_u32 s{pWd}, s{pWd}, {32768-8192}\ns_addc_u32 s{pWd+1}, s{pWd+1}, 0')
        vSBw, vSBr = 120, 121
        vWgS = 122
        e(f'''
        v_lshlrev_b32 v{vWgS}, 9, v{t+7}
        v_lshl_add_u32 v{vWgS}, v{t+8}, 4, v{vWgS}
        v_lshlrev_b32 v{vSBr}, 6, v{t+2}
        v_add_u32 v{vSBr}, {L_SB}, v{vSBr}
        s_lshl_b32 s{sT}, s{sW}, 4
        v_lshl_add_u32 v{vSBw}, v{t+7}, 2, s{sT}
        v_add_u32 v{vSBw}, v{vSBw}, v{vSBr}
        v_mov_b32 v{t+12}, 0
        v_lshrrev_b32 v{t+13}, 7, v0
        v_mul_u32_u24 v{t+13}, {USZ}, v{t+13}
        v_and_b32 v{t+14}, 127, v0
        v_lshl_add_u32 v{t+13}, v{t+14}, 2, v{t+13}
        v_add_u32 v{t+13}, {L_U}, v{t+13}
        ds_write_b32 v{t+13}, v{t+12}
        v_and_b32 v{t+13}, 1, v{t+7}
        v_mul_u32_u24 v{t+13}, {PSZ}, v{t+13}
        v_lshl_add_u32 v{t+13}, v{t+8}, 2, v{t+13}
        v_add_u32 v{t+13}, {L_P}, v{t+13}
        ds_write_b32 v{t+13}, v{t+12}
        v_lshlrev_b32 v{t+13}, 3, v0
        v_cvt_f32_u32 v{t+13}, v{t+13}
        ''')
        for i in range(5):
            e(f'''v_add_f32 v{t+14}, {fbits(2.0*i-2)}, v{t+13}
            v_add_f32 v{t+15}, {fbits(2048+2.0*i-2)}, v{t+13}
            v_cvt_pk_bf16_f32 v{t+14}, v{t+14}, v{t+15}
            v_and_b32 v{t+15}, s{sMask}, v{t+14}
            v_lshlrev_b32 v{t+14}, 16, v{t+14}
            v_cvt_u32_f32 v{EA+5+i}, v{t+15}
            v_cvt_u32_f32 v{EA+i}, v{t+14}
            v_add_u32 v{EA+5+i}, {L_KH}, v{EA+5+i}
            v_add_u32 v{EA+i}, {L_KH}, v{EA+i}''')
        e(f'''
        s_lshr_b32 s{sT}, s{sL}, 6
        s_lshl_b32 s{sT}, s{sT}, 2
        s_bfe_u32 s{sT+1}, s{sL}, 0x20003
        s_add_u32 s{sMt}, s{sT}, s{sT+1}
        s_bfe_u32 s{sT}, s{sL}, 0x10005
        s_and_b32 s{sDt}, s{sL}, 7
        s_lshl_b32 s{sNt}, s{sT}, 3
        s_add_u32 s{sNt}, s{sNt}, s{sDt}
        s_lshl_b32 s{sTb}, s{sMt}, 1
        s_add_u32 s{sTb}, s{sTb}, s{sT}
        s_waitcnt lgkmcnt(0)
        s_mul_i32 s{sTag}, s{sTag}, 1664525
        s_add_u32 s{sTag}, s{sTag}, 1013904223
        v_mov_b32 v2, s{sTag}
        s_lshl_b32 s{sDsk}, s{sDsk+1}, 16
        s_and_b32 s{sDsk+1}, s{sDsk+1}, s{sMask}
        s_lshl_b32 s{sT}, s{sT+4}, 16
        s_and_b32 s{sT+1}, s{sT+4}, s{sMask}
        s_lshl_b32 s{sT+2}, s{sT+5}, 16
        s_and_b32 s{sT+3}, s{sT+5}, s{sMask}
        s_lshl_b32 s{sT+4}, s{sT+6}, 16
        s_and_b32 s{sT+5}, s{sT+6}, s{sMask}
        s_cmp_ge_u32 s{sW}, 2
        s_cselect_b32 s{sT+4}, s{sT+5}, s{sT+4}
        v_mov_b32 v{t+12}, {fbits(-1.4426950408889634)}
        ''')
        vS = 124; vDt = 123
        for i in range(4): e(f'v_mul_f32 v{t+13+i}, s{sT+i}, v{t+12}')
        e(f'v_mul_f32 v{vDt}, s{sT+4}, -v{t+12}')
        for i in range(4): e(f'v_exp_f32 v{t+13+i}, v{t+13+i}')
        e(f'v_exp_f32 v{vDt}, v{vDt}')
        for i in range(4): e(f'v_add_f32 v{t+13+i}, 1.0, v{t+13+i}')
        e(f'v_cvt_pk_bf16_f32 v{vDt}, v{vDt}, v{vDt}')
        for i in range(4): e(f'v_rcp_f32 v{t+13+i}, v{t+13+i}')
        e(f'v_lshlrev_b32 v{vDt}, 16, v{vDt}')
        for i in range(4): e(f'v_mul_f32 v{t+13+i}, s{sT+i}, v{t+13+i}')
        e(f'v_cvt_pk_bf16_f32 v{vS}, v{t+13}, v{t+14}\nv_cvt_pk_bf16_f32 v{vS+1}, v{t+15}, v{t+16}')
        e('s_waitcnt vmcnt(26)')
        self.stamp('x_arrived')
        self.stats_partial(XR, t, vSBw)
        XF = 128
        for r in range(2):
            for i in range(4):
                e(f'v_lshlrev_b32 v{XF+8*r+2*i}, 16, v{XR+4*r+i}\nv_and_b32 v{XF+8*r+2*i+1}, s{sMask}, v{XR+4*r+i}')
        e('s_waitcnt vmcnt(22)')
        MA = 76
        for h in range(2):
            for m in range(4):
                e(f'''v_perm_b32 v{t+16+2*m}, v{WM+8*h+4+m}, v{WM+8*h+m}, s{sLo}
                v_perm_b32 v{t+17+2*m}, v{WM+8*h+4+m}, v{WM+8*h+m}, s{sHi}''')
            for m in range(8):
                e(f'v_dot2_f32_bf16 v{MA+m}, v{t+16+m}, v{vS+h}, {"0" if h==0 else "v%d"%(MA+m)}')
        e(f'''
        v_lshlrev_b32 v{t}, 5, v0
        v_add_u32 v{t}, {L_MB}, v{t}
        v_and_b32 v{t+1}, 1, v0
        v_bfe_u32 v{t+2}, v0, 1, 1
        v_mul_u32_u24 v{t+2}, 192, v{t+2}
        v_bfe_u32 v{t+3}, v0, 2, 5
        v_lshl_add_u32 v{t+1}, v{t+3}, 1, v{t+1}
        v_add_lshl_u32 v{t+1}, v{t+1}, v{t+2}, 2
        v_add_u32 v{t+1}, {L_MB}, v{t+1}
        ds_write_b128 v{t}, {vr(MA,4)}
        ds_write_b128 v{t}, {vr(MA+4,4)} offset:16
        s_waitcnt lgkmcnt(0)
        s_barrier''')
        ST = 84
        self.stats_read(ST, vSBr)
        MR = 100
        for w in range(0, 4, 2):
            for i in range(3):
                e(f'ds_read2st64_b32 {vr(MR+3*w+2*i,2)}, v{t+1} offset0:{8*w+i} offset1:{8*w+8+i}')
        e('s_waitcnt lgkmcnt(6)')
        self.stats_finish(ST)
        GR = 144
        e(f's_mul_i32 s{sT}, s{sL}, {XBLK}\ns_lshl_b32 s{sT+1}, s{sW}, 12\ns_add_u32 s{sT}, s{sT}, s{sT+1}\ns_add_u32 s{sT+1}, s{sT}, {XH}')
        for i in range(4):
            for r in range(2):
                x = XF+8*r+2*i
                e(f'v_pk_fma_f32 {vr(x,2)}, {vr(x,2)}, {vr(ST+2*r,2)}, {vr(ST+2*r,2)} op_sel:[0,0,1] op_sel_hi:[1,0,1]')
            e(f'v_mov_b32 v{GR+4*i+2}, 0\nv_mov_b32 v{GR+4*i+3}, v2')
            for r in range(2):
                x = XF+8*r+2*i
                e(f'v_cvt_pk_bf16_f32 v{GR+4*i+r}, v{x}, v{x+1}')
            e(f'buffer_store_dwordx4 {vr(GR+4*i,4)}, v1, {SRD}, s{sT+1} offen offset:{1024*i} sc1')
        e(f'''
        s_cmp_ge_u32 s{sW}, 2
        s_cbranch_scc1 L_nomod
        s_waitcnt lgkmcnt(0)
        v_pk_add_f32 {vr(MR,2)}, {vr(MR,2)}, {vr(MR+6,2)}
        v_pk_add_f32 {vr(MR+2,2)}, {vr(MR+2,2)}, {vr(MR+8,2)}
        v_pk_add_f32 {vr(MR+4,2)}, {vr(MR+4,2)}, {vr(MR+10,2)}
        v_add_f32 v{MR+8}, v{MR}, v{MR+1}
        v_add_f32 v{MR+9}, v{MR+2}, v{MR+3}
        v_add_f32 v{MR+10}, v{MR+4}, v{MR+5}
        v_mov_b32 v{MR+11}, v2
        s_lshl_b32 s{sT+1}, s{sL}, 11
        s_lshl_b32 s{sT+2}, s{sW}, 10
        s_add_u32 s{sT+1}, s{sT+1}, s{sT+2}
        s_add_u32 s{sT+1}, s{sT+1}, {MODP}
        buffer_store_dwordx4 {vr(MR+8,4)}, v1, {SRD}, s{sT+1} offen sc1
        L_nomod:
        s_waitcnt lgkmcnt(0)''')
        self.stamp('e1_stored')
        e('s_waitcnt vmcnt(20)')
        al, be = 68, 69
        Z1, Z8, Z256, Wc = 70, 72, 74, 76
        e(f'''
        v_mul_f32 v{al}, v{vDt}, v{AB}
        v_mul_f32 v{be}, v{vDt}, v{AB+1}
        v_mul_f32 v{AB+2}, v{vDt}, v{AB+2}
        v_mul_f32 v{AB+3}, v{vDt}, v{AB+3}
        v_mul_f32 v{al}, {fbits(1.4426950408889634)}, v{al}
        v_mul_f32 v{be}, 0.15915494, v{be}
        v_mul_f32 v{Wc}, v{AB+4}, v{AB+2}
        v_mul_f32 v{Wc+1}, v{AB+4}, v{AB+3}
        v_fma_f32 v{Wc}, -v{AB+5}, v{AB+3}, v{Wc}
        v_fma_f32 v{Wc+1}, -v{AB+5}, v{AB+2}, -v{Wc+1}
        ''')
        q = 78
        for n_, (Z, sc, conj) in enumerate([(Z1,1.0,True),(Z8,8.0,False),(Z256,256.0,True)]):
            e(f'v_mul_f32 v{q+3*n_}, {fbits(sc)}, v{al}\nv_mul_f32 v{q+3*n_+1}, {fbits(sc)}, v{be}')
        for n_ in range(3): e(f'v_exp_f32 v{q+3*n_}, v{q+3*n_}\nv_fract_f32 v{q+3*n_+1}, v{q+3*n_+1}')
        for n_ in range(3): e(f'v_sin_f32 v{q+3*n_+2}, v{q+3*n_+1}\nv_cos_f32 v{q+3*n_+1}, v{q+3*n_+1}')
        vRW = 87
        e(f'''
        s_lshr_b32 s{sT}, s{sW}, 1
        s_mul_i32 s{sT}, s{sT}, {RCSZ}
        v_and_b32 v{vRW}, 127, v0
        v_lshl_add_u32 v{vRW}, v{vRW}, 2, s{sT}''')
        for n_, (Z, sc, conj) in enumerate([(Z1,1.0,True),(Z8,8.0,False),(Z256,256.0,True)]):
            e(f'v_mul_f32 v{Z}, v{q+3*n_}, v{q+3*n_+1}\nv_mul_f32 v{Z+1}, {"-" if conj else ""}v{q+3*n_}, v{q+3*n_+2}')
        pk = [88, 89]
        def put(src, row, n):
            return [f'v_cvt_pk_bf16_f32 v{pk[n]}, v{src}, v{src+1}', f'ds_write_b32 v{vRW}, v{pk[n]} offset:{row*RST}']
        Rq = [[f'v_mov_b32 v{pk[0]}, 0x3f80', f'ds_write_b32 v{vRW}, v{pk[0]}'] + put(Z8, 1, 0)]
        Ra = [90, 92]; cur = Z8
        for rho in range(2, 32):
            d = Ra[rho & 1]
            Rq.append(self.cmul(d, cur, Z8) + put(d, rho, 0)); cur = d
        Cq = [put(Wc, 32, 1)]
        cr = {0: Wc}; nxt = [94]
        def newc():
            r = nxt[0]; nxt[0] += 2; return r
        tmp = [110, 112]
        for ee in range(1, 8):
            d = newc() if ee in (2,4,6) else tmp[0]
            Cq.append(self.cmul(d, cr[ee-1], Z1) + put(d, 32+ee, 1)); cr[ee] = d
        for n_, ee in enumerate((0,2,4,6)):
            d = newc() if ee in (0,4) else tmp[0]
            Cq.append(self.cmul(d, cr[ee], Z256) + put(d, 40+n_, 1)); cr[256+ee] = d
        chain = [(512,256,44),(516,260,45),(768,512,46),(772,516,47),(1024,768,48),(1280,1024,49),(1536,1280,50),(1792,1536,51),(2048,1792,52)]
        rot = [104, 106, 108, 110]
        for n_, (ee, src, row) in enumerate(chain):
            d = rot[n_ % 4]
            Cq.append(self.cmul(d, cr[src], Z256) + put(d, row, 1)); cr[ee] = d
        for n_ in range(max(len(Rq), len(Cq))):
            a_ = Rq[n_] if n_ < len(Rq) else []
            b_ = Cq[n_] if n_ < len(Cq) else []
            for j in range(max(len(a_), len(b_))):
                if j < len(a_): e(a_[j])
                if j < len(b_): e(b_[j])
        self.stamp('kgen1')
        e('s_waitcnt vmcnt(4)')
        O = 128
        e(f's_cmp_ge_u32 s{sL}, 224\ns_cbranch_scc1 L_nowg')
        for c in range(4):
            for m in range(4):
                e(f'v_perm_b32 v{O+4*c+m}, v{WG+2*(2*m+1)+(c>>1)}, v{WG+2*(2*m)+(c>>1)}, s{sHi if c&1 else sLo}')
            e(f'buffer_store_dwordx4 {vr(O+4*c,4)}, v{vWgS}, {SRD}, s{sT+8} offen sc1')
            if c < 3: e(f's_add_u32 s{sT+8}, s{sT+8}, 32768')
        e(f'L_nowg:\ns_cmp_lt_u32 s{sL}, 32\ns_cbranch_scc1 L_nowd')
        for c in range(2):
            for m in range(4):
                e(f'v_perm_b32 v{O+16+4*c+m}, v{WDr+2*m+1}, v{WDr+2*m}, s{sHi if c else sLo}')
            e(f'buffer_store_dwordx4 {vr(O+16+4*c,4)}, v1, {SRD}, s{sT+9} offen offset:{1024*c} sc1')
        e('L_nowd:')
        vKa, vKb, vKw0, vKw1 = 68, 69, 70, 71
        e(f'''
        v_and_b32 v{t+4}, 15, v0
        v_bfe_u32 v{t+5}, v0, 4, 2
        v_mul_u32_u24 v{vKb}, {RST}, v{t+4}
        v_lshl_add_u32 v{vKb}, v{t+5}, 4, v{vKb}
        v_add_u32 v{vKb}, s{sT}, v{vKb}
        s_and_b32 s{sT+1}, s{sW}, 1
        s_mul_i32 s{sT+2}, s{sT+1}, {16*RST}
        v_add_u32 v{vKa}, s{sT+2}, v{vKb}
        s_mov_b32 s{sT+2}, 0x76543210
        s_mov_b32 s{sT+3}, 0x40406420
        v_lshlrev_b32 v{t+6}, 2, v{t+4}
        v_lshrrev_b64 {vr(t+8,2)}, v{t+6}, {sp(sT+2)}
        v_and_b32 v{t+8}, 15, v{t+8}
        v_lshlrev_b32 v{t+6}, 1, v{t+4}
        s_mov_b32 s{sT+2}, 0xFA550000
        v_bfe_u32 v{t+9}, s{sT+2}, v{t+6}, 2
        v_lshl_add_u32 v{t+8}, v{t+9}, 8, v{t+8}
        s_lshr_b32 s{sT+2}, s{sW}, 1
        s_mul_i32 s{sT+2}, s{sT+2}, {KHSZ}
        s_lshl_b32 s{sT+1}, s{sT+1}, 8
        s_add_u32 s{sT+2}, s{sT+2}, s{sT+1}
        s_add_u32 s{sT+2}, s{sT+2}, {L_KH}
        v_lshl_add_u32 v{t+10}, v{t+5}, 6, s{sT+2}
        v_lshl_add_u32 v{vKw0}, v{t+8}, 1, v{t+10}
        v_lshl_add_u32 v{vKw1}, v{t+4}, 9, v{t+10}
        s_waitcnt lgkmcnt(0)
        s_barrier''')
        KF = 160
        for kk in range(8):
            e(f'''ds_read_b128 {vr(KF+12*kk,4)}, v{vKa} offset:{64*kk}
            ds_read_b128 {vr(KF+12*kk+4,4)}, v{vKb} offset:{32*RST+64*kk}
            ds_read_b128 {vr(KF+12*kk+8,4)}, v{vKb} offset:{48*RST+64*kk}''')
        KD = 80
        for kk in range(8):
            e(f's_waitcnt lgkmcnt({min(15, 3*(7-kk))})')
            for cb in range(2):
                e(f'v_mfma_f32_16x16x32_bf16 {vr(KD+4*cb,4)}, {vr(KF+12*kk,4)}, {vr(KF+12*kk+4+4*cb,4)}, {"0" if kk==0 else vr(KD+4*cb,4)}')
        for cb in range(2):
            for j in range(2):
                e(f'v_cvt_pk_bf16_f32 v{KD+8+2*cb+j}, v{KD+4*cb+2*j}, v{KD+4*cb+2*j+1}')
        for cb in range(2):
            for j in range(2):
                va = (vKw0, vKw1)[cb]; off = 2048*cb + 32*j
                e(f'ds_write_b16 v{va}, v{KD+8+2*cb+j} offset:{off}\nds_write_b16_d16_hi v{va}, v{KD+8+2*cb+j} offset:{off+16}')
        vF = 126
        e(f'''
        v_lshrrev_b32 v{vF}, 2, v1
        s_waitcnt vmcnt(0) lgkmcnt(0)
        s_barrier
        s_cmp_lg_u32 s{sW}, 0
        s_cbranch_scc1 L_nof1
        s_lshl_b32 s{sT}, s{sL}, 7
        s_add_u32 s{sT}, s{sT}, {F1}''')
        self.flag_store(vF, sT)
        e('L_nof1:')
        self.stamp('kgen2')
        vEX, vEM = 124, 125
        EG = 12
        e(f'''
        v_bfe_u32 v{t}, v0, 2, 4
        v_and_b32 v{t+1}, 3, v0
        v_lshlrev_b32 v{t+1}, 4, v{t+1}
        v_lshl_add_u32 v{vEM}, v{t}, 11, v{t+1}
        s_lshl_b32 s{sT}, s{sW}, 6
        v_add_u32 v{t}, s{sT}, v{t}
        s_mov_b32 s{sT}, {XBLK}
        v_mad_u32_u24 v{vEX}, v{t}, s{sT}, v{t+1}
        s_and_b32 s{sT}, s{sL}, 0xc0
        s_and_b32 s{sT+1}, s{sL}, 3
        s_lshl_b32 s{sT+1}, s{sT+1}, 4
        s_add_u32 s{sT}, s{sT}, s{sT+1}
        s_bfe_u32 s{sT+1}, s{sL}, 0x40002
        s_add_u32 s{sT}, s{sT}, s{sT+1}
        s_lshl_b32 s{sT}, s{sT}, 6
        s_add_u32 s{sT}, s{sT}, {XH}
        s_add_u32 s{sT+1}, s{sT}, {16*XBLK}
        s_add_u32 s{sT+2}, s{sT}, {32*XBLK}
        s_add_u32 s{sT+3}, s{sT}, {48*XBLK}
        s_lshr_b32 s{sT+4}, s{sL}, 5
        s_lshl_b32 s{sT+4}, s{sT+4}, 16
        s_and_b32 s{sT+5}, s{sL}, 31
        s_lshl_b32 s{sT+5}, s{sT+5}, 6
        s_add_u32 s{sT+4}, s{sT+4}, s{sT+5}
        s_add_u32 s{sT+4}, s{sT+4}, {MODP}
        s_add_u32 s{sT+5}, s{sT+4}, 32768''')
        def issue_e1():
            for i in range(2): e(f'buffer_load_dwordx4 {vr(EG+16+4*i,4)}, v{vEM}, {SRD}, s{sT+4+i} offen sc1')
            for i in range(4): e(f'buffer_load_dwordx4 {vr(EG+4*i,4)}, v{vEX}, {SRD}, s{sT+i} offen sc1')
        issue_e1()
        KV = 72
        for ch in range(2):
            for i in range(10): e(f'ds_read_u16 v{KV+10*ch+i}, v{EA+i} offset:{ch*KHSZ}')
        e(f'''
        v_cmp_eq_u32 vcc, 0, v0
        v_lshlrev_b32 v{t}, 4, v0
        v_add_u32 v{t}, {L_P+64}, v{t}''')
        PV = 92
        for ch in range(2):
            e(f's_waitcnt lgkmcnt({10 if ch==0 else 2})')
            e(f'v_cndmask_b32 v{KV+10*ch}, v{KV+10*ch}, 0, vcc')
            for v in range(2):
                for i in range(4):
                    e(f'v_lshl_or_b32 v{PV+8*ch+4*v+i}, v{KV+10*ch+5*v+i}, 16, v{KV+10*ch+5*v+i+1}')
                e(f'ds_write_b128 v{t}, {vr(PV+8*ch+4*v,4)} offset:{ch*PSZ+4096*v}')
        vPA = 68; vUB = 123
        e(f'''
        v_and_b32 v{t+1}, 15, v0
        v_bfe_u32 v{t+2}, v0, 4, 2
        s_lshr_b32 s{sT+6}, s{sW}, 1
        s_and_b32 s{sT+7}, s{sW}, 1
        s_mul_i32 s{sT+8}, s{sT+6}, {PSZ}
        s_lshl_b32 s{sT+9}, s{sT+7}, 9
        s_add_u32 s{sT+8}, s{sT+8}, s{sT+9}
        s_add_u32 s{sT+8}, s{sT+8}, {L_P + 26*4}
        v_lshl_add_u32 v{t+3}, v{t+1}, 2, s{sT+8}
        v_lshlrev_b32 v{vPA}, 5, v{t+2}
        v_sub_u32 v{vPA}, v{t+3}, v{vPA}
        s_mul_i32 s{sT+8}, s{sT+6}, {USZ}
        s_lshl_b32 s{sT+9}, s{sT+7}, 8
        s_sub_u32 s{sT+8}, s{sT+8}, s{sT+9}
        s_add_u32 s{sT+8}, s{sT+8}, {L_U + 480 - 192}
        v_lshl_add_u32 v{vUB}, v{t+1}, 5, s{sT+8}
        v_lshl_add_u32 v{vUB}, v{t+2}, 4, v{vUB}
        s_waitcnt lgkmcnt(0)
        s_barrier''')
        AF = 128
        af = lambda jq, J: AF + 32*jq + 4*J
        for J in range(8):
            for jq in range(4):
                e(f'''ds_read2_b32 {vr(af(jq,J),2)}, v{vPA} offset0:{32*jq+6} offset1:{32*jq+4}
                ds_read2_b32 {vr(af(jq,J)+2,2)}, v{vPA} offset0:{32*jq+2} offset1:{32*jq}''')
            if J < 7: e(f'v_add_u32 v{vPA}, 1024, v{vPA}')
        self.stamp('afrag')
        self.check(issue_e1, [EG+3, EG+7, EG+11, EG+15, EG+19, EG+23])
        self.stamp('e1_ok')
        vP1 = 122; vPolled = 127
        e(f'''
        s_mul_i32 s{sT}, s{sNt}, 7
        s_lshr_b32 s{sT}, s{sT}, 2
        s_lshl_b32 s{sT}, s{sT}, 3
        v_and_b32 v{t}, 31, v0
        v_min_u32 v{t+1}, 23, v{t}
        v_add_u32 v{t+1}, s{sT}, v{t+1}
        v_min_u32 v{t+1}, 223, v{t+1}
        v_min_u32 v{t}, 27, v{t}
        v_lshlrev_b32 v{t}, 3, v{t}
        s_sub_u32 s{sT}, 255, s{sDt}
        v_sub_u32 v{t}, s{sT}, v{t}
        v_cmp_gt_u32 vcc, 512, v1
        v_cndmask_b32 v{t}, v{t}, v{t+1}, vcc
        v_lshlrev_b32 v{vP1}, 7, v{t}
        v_add_u32 v{vP1}, {F1}, v{vP1}''')
        def issue_f1(): e(f'buffer_load_dword v{vPolled}, v{vP1}, {SRD}, 0 offen sc1')
        issue_f1()
        g0 = EG+16
        e(f'''
        v_add_f32 v{g0}, v{g0}, v{g0+4}
        v_add_f32 v{g0+1}, v{g0+1}, v{g0+5}
        v_add_f32 v{g0+2}, v{g0+2}, v{g0+6}
        v_mov_b32 v{g0+3}, 0
        v_bfe_u32 v{t}, v0, 4, 2
        v_cmp_eq_u32 vcc, 2, v{t}''')
        HF = 36
        for i in range(4):
            e(f'''v_lshlrev_b32 v{HF+4*i}, 16, v{EG+4*i}
            v_lshlrev_b32 v{HF+4*i+1}, 16, v{EG+4*i+1}
            v_and_b32 v{HF+4*i+2}, s{sMask}, v{EG+4*i}
            v_and_b32 v{HF+4*i+3}, s{sMask}, v{EG+4*i+1}''')
        self.reduce4(g0, g0+1, g0+2, g0+3)
        e(f'''
        v_cndmask_b32 v{t}, 0, 1.0, vcc
        v_cvt_pk_bf16_f32 v{g0}, v{g0}, v{g0}
        v_and_b32 v{g0}, s{sMask}, v{g0}
        v_add_f32 v{g0}, v{g0}, v{t}
        v_cvt_pk_bf16_f32 v{g0}, v{g0}, v{g0}
        v_and_b32 v{g0}, s{sMask}, v{g0}
        s_lshl_b32 s{sT}, s{sW}, 10
        s_add_u32 s{sT}, s{sT}, {L_U+512}
        v_add_u32 v{t+1}, s{sT}, v{vF}''')
        for n_, lane in enumerate([32,0,33,1,16,17,34,35,2,3,18,19]):
            e(f'v_readlane_b32 s{sM+n_}, v{g0}, {lane}')
        for i in range(4):
            for ch in range(2):
                h = HF+4*i+2*ch
                e(f'v_pk_fma_f32 {vr(h,2)}, {vr(h,2)}, {sp(sM+2*ch)}, {sp(sM+2*ch)} op_sel:[0,0,1] op_sel_hi:[1,0,1]')
            for ch in range(2):
                h = HF+4*i+2*ch
                e(f'v_cvt_pk_bf16_f32 v{t+2+ch}, v{h}, v{h+1}\nds_write_b32 v{t+1}, v{t+2+ch} offset:{ch*USZ+256*i}')
        e('s_waitcnt lgkmcnt(0)\ns_barrier')
        self.stamp('u_ready')
        BF = 72
        ACC = 224
        def bread(jq, m): return f'ds_read_b128 {vr(BF+4*m,4)}, v{vUB} offset:{512*m+192-64*jq}'
        for m in range(8): e(bread(0, m))
        e(f'''
        s_lshl_b32 s{sT+8}, s{sW}, 13
        s_mul_i32 s{sT+9}, s{sNt}, {7*32768}
        s_add_u32 s{sT+9}, s{sT+9}, s{sT+8}
        s_add_u32 s{sT+9}, s{sT+9}, {WGU}''')
        self.check(issue_f1, [vPolled])
        fill = []
        for i in range(4):
            for ch in range(2):
                for j in range(2):
                    fill.append(f'v_mul_f32 v{HF+4*i+2*ch+j}, s{sDsk+ch}, v{HF+4*i+2*ch+j}')
        for i in range(4):
            for ch in range(2):
                for j in range(2):
                    fill.append(f'v_mul_f32 v{HF+4*i+2*ch+j}, s{sM+4+ch}, v{HF+4*i+2*ch+j}')
        ZG = 12
        vYw, vYr = 52, 53
        fill += f'''s_pack_hh_b32_b16 s{sT}, s{sM+6}, s{sM+7}
        s_pack_hh_b32_b16 s{sT+1}, s{sM+8}, s{sM+9}
        s_pack_hh_b32_b16 s{sT+2}, s{sM+10}, s{sM+11}
        v_and_b32 v{t}, 3, v0
        v_mov_b32 v{t+1}, s{sT}
        v_mov_b32 v{t+2}, s{sT+1}
        v_cmp_eq_u32 vcc, 1, v{t}
        v_mov_b32 v{t+3}, s{sT+2}
        v_mov_b32 v{ZG+3}, v2
        v_cndmask_b32 v{t+1}, v{t+1}, v{t+2}, vcc
        v_cmp_eq_u32 vcc, 2, v{t}
        v_mov_b32 v{ZG+7}, v2
        v_mov_b32 v{ZG+11}, v2
        v_cndmask_b32 v{ZG+2}, v{t+1}, v{t+3}, vcc
        v_mov_b32 v{ZG+15}, v2
        v_mov_b32 v{ZG+6}, v{ZG+2}
        v_mov_b32 v{ZG+10}, v{ZG+2}
        v_mov_b32 v{ZG+14}, v{ZG+2}
        v_and_b32 v{t}, 15, v0
        v_bfe_u32 v{t+1}, v0, 4, 2
        v_bfe_u32 v{t+2}, v0, 1, 2
        v_xor_b32 v{t+2}, v{t+2}, v{t+1}
        v_lshlrev_b32 v{t+2}, 4, v{t+2}
        v_lshl_add_u32 v{vYw}, v{t}, 6, v{t+2}
        s_lshl_b32 s{sT}, s{sW}, 13
        s_add_u32 s{sT}, s{sT}, {L_Y}
        v_add_u32 v{vYw}, s{sT}, v{vYw}
        v_bfe_u32 v{t}, v0, 3, 3
        v_lshl_add_u32 v{t+2}, v{t}, 6, v{t+2}
        v_and_b32 v{t}, 1, v0
        v_lshl_add_u32 v{t+2}, v{t}, 3, v{t+2}
        s_lshl_b32 s{sT}, s{sW}, 11
        s_add_u32 s{sT}, s{sT}, {L_Y}
        v_add_u32 v{vYr}, s{sT}, v{t+2}'''.split('\n')
        dq = self.dma_tile(0,0) + self.dma_tile(1,1) + self.dma_tile(2,2)
        n = 0
        for jq in range(4):
            for m in range(8):
                e(f's_waitcnt lgkmcnt({(7-m) + (max(m-1,0) if jq<3 else 0)})')
                for J in range(8-m):
                    cb = J+m
                    c_ = '0' if (jq == 0 and m == 0) else ar(ACC+4*cb,4)
                    e(f'v_mfma_f32_16x16x32_bf16 {ar(ACC+4*cb,4)}, {vr(af(jq,J),4)}, {vr(BF+4*m,4)}, {c_}')
                    if J == 0 and m > 0 and jq < 3: e(bread(jq+1, m-1))
                    elif n % 6 == 3 and dq: e(dq.pop(0))
                    elif fill: e(fill.pop(0))
                    n += 1
            if jq < 3: e('s_nop 1\n' + bread(jq+1, 7))
        for x in dq + fill: e(x)
        self.stamp('conv')
        for cb in range(8): e(f'ds_write_b128 v{vYw}, {ar(ACC+4*cb,4)} offset:{1024*cb}')
        e(f'''
        s_mul_i32 s{sT}, s{sL}, {XBLK}
        s_lshl_b32 s{sT+1}, s{sW}, 12
        s_add_u32 s{sT}, s{sT}, s{sT+1}
        s_add_u32 s{sT}, s{sT}, {ZY}
        s_waitcnt lgkmcnt(0)
        s_barrier''')
        YR = 72
        for i in range(4):
            for pw in range(4): e(f'ds_read_b64 {vr(YR+8*i+2*pw,2)}, v{vYr} offset:{8192*pw+512*i}')
        for i in range(4):
            e(f's_waitcnt lgkmcnt({4*(3-i)})')
            for ch in range(2):
                y = YR+8*i+4*ch
                e(f'v_pk_add_f32 {vr(y,2)}, {vr(y,2)}, {vr(y+2,2)}')
            for ch in range(2):
                y = YR+8*i+4*ch
                e(f'v_pk_fma_f32 {vr(y,2)}, {vr(y,2)}, {sp(sM+4)}, {vr(HF+4*i+2*ch,2)} op_sel:[0,{ch},0] op_sel_hi:[1,{ch},1]')
            for r in range(2):
                e(f'v_cvt_pk_bf16_f32 v{ZG+4*i+r}, v{YR+8*i+r}, v{YR+8*i+4+r}')
            e(f'buffer_store_dwordx4 {vr(ZG+4*i,4)}, v1, {SRD}, s{sT} offen offset:{1024*i} sc1')
        self.stamp('z_stored')
        XF = 36
        for r in range(2):
            for i in range(4):
                e(f'v_lshlrev_b32 v{XF+8*r+2*i}, 16, v{XR+4*r+i}\nv_and_b32 v{XF+8*r+2*i+1}, s{sMask}, v{XR+4*r+i}')
        vZ = 52; vH2 = 53
        ZI = 72
        e(f'''
        v_and_b32 v{t}, 0xfc, v0
        v_and_b32 v{t+1}, 3, v0
        v_lshlrev_b32 v{t+1}, 4, v{t+1}
        s_mov_b32 s{sT}, {XBLK}
        v_mad_u32_u24 v{vZ}, v{t}, s{sT}, v{t+1}
        s_lshl_b32 s{sT}, s{sL}, 6
        s_add_u32 s{sT}, s{sT}, {ZY}
        s_add_u32 s{sT+1}, s{sT}, {XBLK}
        s_add_u32 s{sT+2}, s{sT}, {2*XBLK}
        s_add_u32 s{sT+3}, s{sT}, {3*XBLK}
        v_lshrrev_b32 v{t}, 3, v0
        v_and_b32 v{t+1}, 0x70, v1
        v_lshl_add_u32 v{vH2}, v{t}, 10, v{t+1}
        s_lshr_b32 s{sT+4}, s{sL}, 2
        s_lshl_b32 s{sT+4}, s{sT+4}, 15
        s_and_b32 s{sT+5}, s{sL}, 3
        s_lshl_b32 s{sT+5}, s{sT+5}, 8
        s_add_u32 s{sT+4}, s{sT+4}, s{sT+5}
        s_add_u32 s{sT+4}, s{sT+4}, {H2}
        s_mov_b32 s{sT+5}, {X2}
        s_waitcnt vmcnt(0)''')
        def issue_z():
            for i in range(4): e(f'buffer_load_dwordx4 {vr(ZI+4*i,4)}, v{vZ}, {SRD}, s{sT+i} offen sc1')
        issue_z()
        self.check(issue_z, [ZI+3, ZI+7, ZI+11, ZI+15])
        self.stamp('z_ok')
        ZF = 88
        for i in range(4):
            for r in range(2):
                z = ZF+8*r+2*i
                e(f'v_lshlrev_b32 v{z}, 16, v{ZI+4*i+r}\nv_and_b32 v{z+1}, s{sMask}, v{ZI+4*i+r}')
            for r in range(2):
                z = ZF+8*r+2*i; x = XF+8*r+2*i
                e(f'v_pk_add_f32 {vr(x,2)}, {vr(x,2)}, {vr(z,2)}')
            for r in range(2):
                x = XF+8*r+2*i
                e(f'v_cvt_pk_bf16_f32 v{XR+4*r+i}, v{x}, v{x+1}')
        self.stats_partial(XR, t, vSBw)
        for r in range(2):
            e(f'buffer_store_dwordx4 {vr(XR+4*r,4)}, v{vXO}, {SRD}, s{sT+5} offen offset:{1024*r} sc1')
        e('s_waitcnt lgkmcnt(0)\ns_barrier')
        ST = 104
        self.stats_read(ST, vSBr)
        for r in range(2):
            for i in range(4):
                e(f'v_lshlrev_b32 v{XF+8*r+2*i}, 16, v{XR+4*r+i}\nv_and_b32 v{XF+8*r+2*i+1}, s{sMask}, v{XR+4*r+i}')
        e(f'v_mov_b32 v{t}, s{sMask}')
        GBV = 12
        for i in range(4):
            for kind in range(2):
                d = ZF+8*kind+2*i
                qp = f'quad_perm:[{kind},{kind},{kind},{kind}] row_mask:0xf bank_mask:0xf'
                e(f'v_cvt_f32_bf16_dpp v{d}, v{ZI+4*i+2} {qp}\nv_and_b32_dpp v{d+1}, v{ZI+4*i+2}, v{t} {qp}')
            e(f'v_mov_b32 v{GBV+i}, v{ZI+4*i+2}')
        e('s_waitcnt lgkmcnt(0)')
        self.stats_finish(ST)
        HO = 16
        for r in range(2):
            for i in range(4):
                x = XF+8*r+2*i
                e(f'v_pk_fma_f32 {vr(x,2)}, {vr(x,2)}, {vr(ST+2*r,2)}, {vr(ST+2*r,2)} op_sel:[0,0,1] op_sel_hi:[1,0,1]')
            for i in range(4):
                x = XF+8*r+2*i
                e(f'v_pk_fma_f32 {vr(x,2)}, {vr(x,2)}, {vr(ZF+2*i,2)}, {vr(ZF+8+2*i,2)}')
            for i in range(4):
                x = XF+8*r+2*i
                e(f'v_cvt_pk_bf16_f32 v{HO+4*r+i}, v{x}, v{x+1}')
            e(f'buffer_store_dwordx4 {vr(HO+4*r,4)}, v{vH2}, {SRD}, s{sT+4} offen offset:{128*r} sc1')
        self.stamp('h2_stored')
        e('s_barrier')
        for x in self.dma_tile(3,3) + self.dma_tile(4,4): e(x)
        vP2 = 24; vXa = 25; vA2 = 26; vA4 = 27
        e(f'''
        s_lshl_b32 s{sT}, s{sL}, 2
        s_add_u32 s{sT}, s{sT}, s{sW}
        s_lshl_b32 s{sT}, s{sT}, 7
        s_add_u32 s{sT}, s{sT}, {F2}
        s_lshl_b32 s{sT+1}, s{sMt}, 2
        s_add_u32 s{sT+1}, s{sT+1}, s{sW}
        s_lshl_b32 s{sT+2}, s{sT+1}, 11
        s_add_u32 s{sT+2}, s{sT+2}, {F2}
        v_and_b32 v{vP2}, 15, v0
        v_lshlrev_b32 v{vP2}, 7, v{vP2}
        v_bfe_u32 v{t}, v0, 2, 3
        v_bfe_u32 v{t+1}, v0, 5, 1
        v_and_b32 v{t+2}, 0x30, v1
        v_lshl_add_u32 v{t+2}, v{t+1}, 6, v{t+2}
        v_lshl_add_u32 v{vXa}, v{t}, 7, v{t+2}
        s_lshl_b32 s{sT+3}, s{sT+1}, 15
        s_add_u32 s{sT+3}, s{sT+3}, {H2}
        v_add_u32 v{vA2}, 65536, v1
        v_add_u32 v{vA4}, 131072, v1
        s_mul_i32 s{sT+4}, s{sT+1}, 112
        s_mul_i32 s{sT+5}, s{sNt}, 7
        s_add_u32 s{sT+4}, s{sT+4}, s{sT+5}
        s_lshl_b32 s{sT+4}, s{sT+4}, 10
        s_add_u32 s{sT+4}, s{sT+4}, {ACT}
        s_add_u32 s{sT+5}, s{sT+4}, 4096
        s_waitcnt vmcnt(16)''')
        self.flag_store(vF, sT)
        def issue_f2(): e(f'buffer_load_dword v{vPolled}, v{vP2}, {SRD}, s{sT+2} offen sc1')
        e('s_waitcnt vmcnt(0)')
        issue_f2()
        self.check(issue_f2, [vPolled])
        self.stamp('f2_ok')
        X = 128
        for s in range(32):
            e(f'buffer_load_dwordx4 {vr(X+4*s,4)}, v{vXa}, {SRD}, s{sT+3} offen offset:{1024*(s&3)} sc1')
            if s & 3 == 3 and s < 31: e(f's_add_u32 s{sT+3}, s{sT+3}, 4096')
        e('s_barrier')
        AC = [28, 44, 60, 76]
        WF = 92; NB = 6; LA = 4
        GT = 116
        GO = 16
        vC2 = 20
        X2R = 4
        vWd = 21; vX2 = 22
        c1 = -2*1.4426950408889634*0.7978845608028654; c2 = c1*0.044715
        e(f'''
        v_mov_b32 v{vC2}, {fbits(c2)}
        s_lshl_b32 s{sT}, s{sW}, 7
        v_add_u32 v{vWd}, s{sT}, v1
        v_and_b32 v{vWd}, 0x1f0, v{vWd}
        v_and_b32 v{vX2}, 0x200, v1
        v_or_b32 v{vWd}, v{vWd}, v{vX2}
        s_mul_i32 s{sT+6}, s{sDt}, {112*2048}
        s_mul_i32 s{sT}, s{sW}, {56*1024}
        s_add_u32 s{sT+6}, s{sT+6}, s{sT}
        s_add_u32 s{sT+6}, s{sT+6}, {WD}
        v_bfe_u32 v{GT}, v0, 3, 2
        v_and_b32 v{GT+1}, 3, v0
        v_bfe_u32 v{GT+2}, v0, 2, 1
        v_lshl_add_u32 v{GT+1}, v{GT+1}, 1, v{GT+2}
        v_lshl_add_u32 v{GT}, v{GT}, 3, v{GT+1}
        v_bfe_u32 v{GT+1}, v0, 5, 1
        v_lshlrev_b32 v{GT+1}, 4, v{GT+1}
        v_lshl_add_u32 v{vX2}, v{GT}, 10, v{GT+1}
        s_lshl_b32 s{sT}, s{sTb}, 16
        s_lshl_b32 s{sT+1}, s{sDt}, 7
        s_add_u32 s{sT}, s{sT}, s{sT+1}
        s_lshl_b32 s{sT+1}, s{sW}, 5
        s_add_u32 s{sT}, s{sT}, s{sT+1}
        v_add_u32 v{vX2}, s{sT}, v{vX2}''')
        seq = [(tl, s) for s in range(32) for tl in range(3)] + [(tl, s) for tl in range(3,7) for s in range(32)]
        slot = {0:0,1:1,2:2,3:3,4:4,5:0,6:1}
        acc = {0:AC[0],1:AC[1],2:AC[2],3:AC[3],4:AC[0],5:AC[1],6:AC[2]}
        def wread(n):
            tl, s = seq[n]; sl = slot[tl]
            va = {0:1,1:1,2:vA2,3:vA2,4:vA4}[sl]
            return f'ds_read_b128 {vr(WF+4*(n%NB),4)}, v{va} offset:{(sl&1 if sl<4 else 0)*32768 + 1024*s}'
        def gelu(tl):
            a = acc[tl]; out = []
            for hf in range(2):
                E = [a+4*hf+j for j in range(4)]
                out += [f'v_mul_f32 v{GT+j}, v{E[j]}, v{E[j]}' for j in range(4)]
                out += [f'v_fmaak_f32 v{GT+j}, v{GT+j}, v{vC2}, {fbits(c1)}' for j in range(4)]
                out += [f'v_mul_f32 v{GT+j}, v{GT+j}, v{E[j]}' for j in range(4)]
                for j in range(4): out += [f'v_exp_f32 v{GT+j}, v{GT+j}', f'v_mul_f32 v{E[j]+8}, v{E[j]+8}, v{E[j]}']
                for j in range(4): out += [f'v_add_f32 v{GT+j}, 1.0, v{GT+j}']
                for j in range(4): out += [f'v_rcp_f32 v{GT+j}, v{GT+j}']
                for j in range(4): out += [f'v_mul_f32 v{E[j]+8}, v{E[j]+8}, v{GT+j}']
                out += [f'v_cvt_pk_bf16_f32 v{GO+2*hf+j}, v{E[2*j]+8}, v{E[2*j+1]+8}' for j in range(2)]
            out.append(f'buffer_store_dwordx4 {vr(GO,4)}, v1, {SRD}, s{sT+4+(tl>>2)} offen offset:{1024*(tl&3)} sc1')
            return out
        wdq = []
        for f in range(56):
            wdq.append(f'buffer_load_dwordx4 {ar(4*f,4)}, v{vWd}, {SRD}, s{sT+6} offen offset:{1024*(f&3)} sc1'
                       + (f'\ns_add_u32 s{sT+6}, s{sT+6}, 4096' if f&3 == 3 else ''))
        for n in range(LA): e(wread(n))
        gq = []
        vm_log = []
        vq = []
        def emit_vm(x, kind):
            e(x); vm_log.append(kind)
        for n, (tl, s) in enumerate(seq):
            if n == 96:
                e('s_barrier')
                vq += [(x,'dma') for x in self.dma_tile(5,0) + self.dma_tile(6,1)]
                vq += [(f's_mov_b32 s{sT}, {X2}\nbuffer_load_dwordx4 {vr(X2R,4)}, v{vX2}, {SRD}, s{sT} offen sc1','x2'),
                       (f's_mov_b32 s{sT}, {X2+32768}\nbuffer_load_dwordx4 {vr(X2R+4,4)}, v{vX2}, {SRD}, s{sT} offen sc1','x2')]
                vq += [(x,'wd') for x in wdq]
            if n == 100: gq += gelu(0) + gelu(1) + gelu(2)
            if n in (132, 164, 196): gq += gelu(tl-1)
            if n == 160 - LA:
                last = max(i for i, kd in enumerate(vm_log) if kd == 'dma')
                assert sum(kd == 'dma' for kd in vm_log) == 16
                e(f's_waitcnt vmcnt({len(vm_log)-1-last})\ns_barrier')
            w_ = f'lgkmcnt({min(LA-1, len(seq)-1-n)})'
            if n < 96 and tl == 0: w_ = f'vmcnt({31-s}) ' + w_
            e(f's_waitcnt {w_}')
            c_ = '0' if s == 0 else vr(acc[tl],16)
            if s == 0 and tl >= 4:
                assert not any(f'v{acc[tl]+j}' in x.replace(',',' ').split() for x in gq for j in range(16)), (n, len(gq))
            e(f'v_mfma_f32_32x32x16_bf16 {vr(acc[tl],16)}, {vr(WF+4*(n%NB),4)}, {vr(X+4*s,4)}, {c_}')
            if n + LA < len(seq): e(wread(n+LA))
            budget = 3 if (n % 3) else 4
            if vq and n >= 97 and (n % 5) in (0, 2, 4):
                x, kd = vq.pop(0); emit_vm(x, kd)
            while gq and budget > 0:
                x = gq.pop(0); budget -= 1
                if x.startswith('buffer_'): emit_vm(x, 'st')
                else: e(x)
        for x, kd in vq: emit_vm(x, kd)
        for x in gq: e(x)
        self.stamp('g1_mfma')
        for x in gelu(6): e(x)
        vP3 = 24
        e(f'''
        s_lshl_b32 s{sT}, s{sMt}, 4
        s_add_u32 s{sT+1}, s{sT}, s{sNt}
        s_lshl_b32 s{sT+1}, s{sT+1}, 2
        s_add_u32 s{sT+1}, s{sT+1}, s{sW}
        s_lshl_b32 s{sT+1}, s{sT+1}, 7
        s_add_u32 s{sT+1}, s{sT+1}, {F3}
        s_lshl_b32 s{sT+2}, s{sW}, 2
        s_add_u32 s{sT}, s{sT}, s{sT+2}
        s_lshl_b32 s{sT}, s{sT}, 2
        s_and_b32 s{sT+2}, s{sTb}, 1
        s_lshl_b32 s{sT+2}, s{sT+2}, 1
        s_add_u32 s{sT}, s{sT}, s{sT+2}
        s_lshl_b32 s{sT}, s{sT}, 7
        s_add_u32 s{sT+2}, s{sT}, {F3}
        v_bfe_u32 v{GT}, v0, 1, 2
        v_and_b32 v{GT+1}, 1, v0
        v_lshlrev_b32 v{GT+1}, 7, v{GT+1}
        v_lshl_add_u32 v{vP3}, v{GT}, 9, v{GT+1}
        s_mul_i32 s{sT+3}, s{sTb}, 224
        s_mul_i32 s{sT+4}, s{sW}, 28
        s_add_u32 s{sT+3}, s{sT+3}, s{sT+4}
        s_lshl_b32 s{sT+3}, s{sT+3}, 10
        s_add_u32 s{sT+3}, s{sT+3}, {ACT}
        s_add_u32 s{sT+4}, s{sT+3}, {112*1024}
        s_waitcnt vmcnt(0)''')
        self.flag_store(vF, sT+1)
        self.stamp('act_acked')
        e(f'''
        v_and_b32 v{GT}, 3, v0
        v_cmp_eq_u32 vcc, 2, v{GT}
        v_lshlrev_b32 v{GT+1}, 2, v0
        v_and_b32 v{GT+1}, 0x3f0, v{GT+1}
        v_add_u32 v{GT+1}, {L_GB}, v{GT+1}
        s_mov_b64 exec, vcc
        ds_write_b128 v{GT+1}, {vr(GBV,4)}
        s_mov_b64 exec, -1
        s_waitcnt vmcnt(0)''')
        def issue_f3(): e(f'buffer_load_dword v{12}, v{vP3}, {SRD}, s{sT+2} offen sc1')
        e('s_waitcnt lgkmcnt(0)')
        issue_f3()
        self.check(issue_f3, [12])
        self.stamp('f3_ok')
        A2 = 24; RB = 88; NR = 42
        def aload(n):
            T, tt = n >> 1, n & 1
            x = f'buffer_load_dwordx4 {vr(RB+4*(n%NR),4)}, v1, {SRD}, s{sT+3+tt} offen offset:{1024*(T&3)} sc1'
            if T & 3 == 3: x += f'\ns_add_u32 s{sT+3+tt}, s{sT+3+tt}, 4096'
            return x
        for n in range(NR): e(aload(n))
        issued = NR
        for n in range(56):
            T, tt = n >> 1, n & 1
            e(f's_waitcnt vmcnt({issued-1-n})')
            for c in range(2):
                a = A2 + 32*tt + 16*c
                e(f'v_mfma_f32_32x32x16_bf16 {vr(a,16)}, {ar(8*T+4*c,4)}, {vr(RB+4*(n%NR),4)}, {"0" if T==0 else vr(a,16)}')
            if n >= 1 and issued < 56:
                e(aload(issued)); issued += 1
        self.stamp('g2_mfma')
        vRw = 12; vRr = 15; vG = 16
        for i in range(1,4):
            e(f'''s_add_u32 s{sT}, s{sW}, {i}
            s_and_b32 s{sT}, s{sT}, 3
            s_mul_i32 s{sT}, s{sT}, 12288
            s_add_u32 s{sT}, s{sT}, {(i-1)*4096}
            v_add_u32 v{vRw+i-1}, s{sT}, v1''')
        e(f'''
        s_mul_i32 s{sT}, s{sW}, 12288
        v_add_u32 v{vRr}, s{sT}, v1
        s_lshl_b32 s{sT}, s{sDt}, 2
        s_add_u32 s{sT}, s{sT}, s{sW}
        s_lshl_b32 s{sT}, s{sT}, 5
        s_add_u32 s{sT}, s{sT}, {L_GB}
        v_bfe_u32 v{vG}, v0, 5, 1
        v_lshl_add_u32 v{vG}, v{vG}, 4, s{sT}
        s_barrier''')
        for i in range(1,4):
            for q_ in range(4):
                e(f'ds_write_b128 v{vRw+i-1}, {vr(A2+16*q_+4*i,4)} offset:{1024*q_}')
        GF = 88; XF2 = 100; RD = 116
        e(f'ds_read_b128 {vr(GF,4)}, v{vG}')
        for tt in range(2):
            for j in range(4):
                e(f'v_lshlrev_b32 v{XF2+8*tt+j}, 16, v{X2R+4*tt+j}\nv_and_b32 v{XF2+8*tt+4+j}, s{sMask}, v{X2R+4*tt+j}')
        e('s_waitcnt lgkmcnt(0)\ns_barrier')
        for q_ in range(4):
            for i in range(3):
                e(f'ds_read_b128 {vr(RD+12*q_+4*i,4)}, v{vRr} offset:{4096*i+1024*q_}')
        for j in range(4):
            e(f'v_lshlrev_b32 v{GF+4+j}, 16, v{GF+j}\nv_and_b32 v{GF+8+j}, s{sMask}, v{GF+j}')
        OO = 164
        e(f's_add_u32 s0, s{pOut}, 32768\ns_addc_u32 s1, s{pOut+1}, 0')
        for tt in range(2):
            for c in range(2):
                q_ = 2*tt+c; a = A2+16*q_; r = RD+12*q_
                e(f's_waitcnt lgkmcnt({3*(3-q_)})')
                for hh in range(2):
                    e(f'v_pk_add_f32 {vr(a+2*hh,2)}, {vr(a+2*hh,2)}, {vr(r+2*hh,2)}\nv_pk_add_f32 {vr(r+4+2*hh,2)}, {vr(r+4+2*hh,2)}, {vr(r+8+2*hh,2)}')
                for hh in range(2):
                    e(f'v_pk_add_f32 {vr(a+2*hh,2)}, {vr(a+2*hh,2)}, {vr(r+4+2*hh,2)}')
                for hh in range(2):
                    e(f'v_pk_fma_f32 {vr(a+2*hh,2)}, {vr(a+2*hh,2)}, {vr(GF+4+4*c+2*hh,2)}, {vr(XF2+8*tt+4*c+2*hh,2)}')
            for j in range(4):
                e(f'v_cvt_pk_bf16_f32 v{OO+4*tt+j}, v{A2+32*tt+j}, v{A2+32*tt+16+j}')
            e(f'global_store_dwordx4 v{vX2}, {vr(OO+4*tt,4)}, {sp(pOut) if tt==0 else "s[0:1]"}')
        self.stamp('end')
        e(f'''
        s_or_b32 s{sT}, s{sL}, s{sW}
        s_cmp_lg_u32 s{sT}, 0
        s_cbranch_scc1 L_noep
        v_lshrrev_b32 v{vF}, 2, v1
        s_mov_b32 s{sT}, 0''')
        self.flag_store(vF, sT)
        e('L_noep:')
        if self.stamps:
            e(f'''
            s_lshl_b32 s{sT}, s{sL}, 2
            s_add_u32 s{sT}, s{sT}, s{sW}
            s_lshl_b32 s{sT}, s{sT}, 7
            s_add_u32 s{sT}, s{sT}, {STMP}
            v_mov_b32 v4, 0
            s_mov_b64 exec, 1''')
            for i in range(self.ns):
                e(f'v_mov_b32 v5, s{sStamp+i}\nbuffer_store_dword v5, v4, {SRD}, s{sT} offen offset:{4*i}')
            e(f'v_mov_b32 v5, s{sCnt}\nbuffer_store_dword v5, v4, {SRD}, s{sT} offen offset:124')
        if self.o.get('probe') is not None:
            kk = self.stamp_names.index(self.o['probe'])
            e(f'''
            s_add_u32 s{sT}, s{sStamp+kk}, 5000
            L_spin:
            s_sleep 1
            s_memrealtime s[22:23]
            s_waitcnt lgkmcnt(0)
            s_sub_u32 s{sT+1}, s22, s{sT}
            s_cmp_lt_i32 s{sT+1}, 0
            s_cbranch_scc1 L_spin''')
        e('L_end:\ns_endpgm')
        p.end(k, vgpr=256, agpr=256, sgpr=102)
        p.text, added = hazard.fix(p.text, verbose=self.o.get('verbose'))
        return added

if __name__ == '__main__':
    ap = argparse.ArgumentParser()
    ap.add_argument('out'); ap.add_argument('--stamps', action='store_true'); ap.add_argument('-v', action='store_true'); ap.add_argument('--probe', default=None); ap.add_argument('-o', action='append', default=[])
    a = ap.parse_args()
    opts = dict(verbose=a.v, probe=a.probe)
    for kv in a.o:
        kk, vv = kv.split('='); opts[kk] = int(vv)
    g = G(a.stamps or a.probe is not None, opts)
    added = g.build()
    g.p.dump(a.out, single=True)
    n = sum(1 for l in g.p.text if l.startswith('  '))
    print('instructions', n, 'nops added', added, 'stamps', g.stamp_names)
    if a.stamps: open(a.out + '.names', 'w').write(' '.join(g.stamp_names))
```

```python
import sys, struct, argparse
from asmlib import Prog, NAME
import hazard

def fbits(x): return '0x%08x' % struct.unpack('<I', struct.pack('<f', x))[0]

F1   = 0x010000
F2   = 0x020000
F3   = 0x040000
F3S  = 0x020000
MODP = 0x0C0000
XBLK = 16640
XH   = 0x140000
ZY   = 0x560000
H2   = 0x980000
X2   = 0xB80000
WGU  = 0xD80000
WD   = 0x1100000
ACT  = 0x12C0000
STMP = 0x3000000
WS_BYTES = 0x10000000
S4   = 131072
L_U  = S4; USZ = 4608
L_P  = S4 + 2*USZ; PSZ = 8256
L_SB = L_P + 2*PSZ
L_Y  = 98304
L_MB = 98304
RST  = 544
L_KH = 0; KHSZ = 10240
L_RC = 2*KHSZ; RCSZ = 64*RST
L_RED = 65536; RSA = 576; RQ = 8*RSA
L_GB = L_RED + 16*RQ
LDS_BYTES = 163840
pX,pAre,pAim,pBre,pBim,pCre,pCim,pLdt = 4,6,8,10,12,14,16,18
pD,pWg,pWu,pWd,pC,pWm,pOut,pWs = 20,24,26,28,30,32,34,38
SRD='s[40:43]'
sL,sW,sTag,sMask,sCnt = 44,45,46,47,48
sLo,sHi = 49,50
sOnes = 51
sMt,sNt,sTb,sDt = 52,53,54,55
sBad = 56
sT = 58
sM = 68
sDsk = 80
sStamp = 82
sDmaL, sDmaG, sDmaT = 4, 5, 6
sWdG, sWdT = 7, 8
sActG, sActT = 9, 10
sActS = 12
sF3o, sF3p = 14, 15
sXg = 16
def sp(i): return f's[{i}:{i+1}]'
def vr(i, n): return f'v[{i}:{i+n-1}]'
def ar(i, n): return f'a[{i}:{i+n-1}]'

class G:
    def __init__(self, stamps=False, opts=None):
        self.p = Prog(); self.stamps = stamps; self.ns = 0; self.o = opts or {}
        self.stamp_names = []; self.nvm = 0; self.nlg = 0; self.tail = []; self.maybe = False
    def opt(self, k, d): return self.o.get(k, d)
    def e(self, s):
        for line in s.split('\n'):
            l = line.strip()
            if not l: continue
            if l.startswith(('buffer_', 'global_')) and not self.maybe: self.nvm += 1
            if l.startswith('ds_') and not self.maybe: self.nlg += 1
            self.p.e(l)
        return self.nvm
    def wvm(self, i): return f'vmcnt({min(63, self.nvm - i)})'
    def wlg(self, i): return f'lgkmcnt({min(15, self.nlg - i)})'
    def stamp(self, name):
        if not self.stamps: return
        if self.o.get('probe') is not None and name != self.o['probe']: return
        if self.o.get('only') and not (name == 'start' or name.startswith(tuple(self.o['only'].split(',')))): return
        if not self.o.get('only') and self.o.get('probe') is None and name.startswith('_'): return
        assert self.ns < 20
        self.e(f's_memrealtime s[22:23]\ns_waitcnt lgkmcnt(0)\ns_mov_b32 s{sStamp+self.ns}, s22')
        self.ns += 1; self.stamp_names.append(name)

    def check_text(self, loads, tags, last):
        Lc = self.p.label('chk'); Lr = self.p.label('retry')
        s = f's_waitcnt {self.wvm(last)}\n{Lc}:\n'
        if len(tags) == 1:
            s += f'v_cmp_ne_u32 vcc, v{tags[0]}, v2\ns_cmp_lg_u64 vcc, 0\ns_cbranch_scc1 {Lr}'
            self.tail.append(f'''{Lr}:
            s_sub_u32 s{sCnt}, s{sCnt}, 1
            s_cbranch_scc1 L_end
            {loads}
            s_waitcnt vmcnt(0)
            s_branch {Lc}''')
        else:
            s += f'v_cmp_ne_u32 {sp(sBad)}, v{tags[0]}, v2\n'
            for t in tags[1:]: s += f'v_cmp_ne_u32 vcc, v{t}, v2\ns_or_b64 {sp(sBad)}, {sp(sBad)}, vcc\n'
            s += f's_cbranch_scc1 {Lr}'
            self.tail.append(f'''{Lr}:
            s_sub_u32 s{sCnt}, s{sCnt}, 1
            s_cbranch_scc1 L_end
            s_mov_b64 exec, {sp(sBad)}
            {loads}
            s_mov_b64 exec, -1
            s_waitcnt vmcnt(0)
            s_branch {Lc}''')
        return s
    def check(self, loads, tags, last): self.e(self.check_text(loads, tags, last))

    def flag_text(self, vaddr, soff):
        return f's_mov_b32 exec_hi, 0\nbuffer_store_dword v2, v{vaddr}, {SRD}, s{soff} offen sc1\ns_mov_b32 exec_hi, -1'

    def stats_partial(self, src, t, vSBw, fill=()):
        a,b,c,d = t,t+1,t+2,t+3
        for m in range(4):
            acc = lambda r: '0' if m == 0 else f'v{r}'
            self.e(f'''v_dot2_f32_bf16 v{a}, v{src+m}, s{sOnes}, {acc(a)}
            v_dot2_f32_bf16 v{b}, v{src+4+m}, s{sOnes}, {acc(b)}
            v_dot2_f32_bf16 v{c}, v{src+m}, v{src+m}, {acc(c)}
            v_dot2_f32_bf16 v{d}, v{src+4+m}, v{src+4+m}, {acc(d)}''')
        self.reduce4(a,b,c,d, fill)
        self.e(f'ds_write_b32 v{vSBw}, v{a}')
    def reduce4(self, a,b,c,d, fill=()):
        fill = list(fill)
        def f(n):
            for _ in range(n):
                if fill: self.e(fill.pop(0))
        f(2); self.e(f'v_permlane32_swap_b32 v{a}, v{b}\nv_permlane32_swap_b32 v{c}, v{d}\nv_add_f32 v{a}, v{a}, v{b}\nv_add_f32 v{c}, v{c}, v{d}')
        f(2); self.e(f'v_permlane16_swap_b32 v{a}, v{c}\nv_add_f32 v{a}, v{a}, v{c}')
        f(2); self.e(f'v_add_f32_dpp v{a}, v{a}, v{a} row_ror:4 row_mask:0xf bank_mask:0xf')
        f(2); self.e(f'v_add_f32_dpp v{a}, v{a}, v{a} row_ror:8 row_mask:0xf bank_mask:0xf')
        self.rest = fill
    def stats_read(self, t, vSBr):
        for w in range(4): self.e(f'ds_read_b128 {vr(t+4*w,4)}, v{vSBr} offset:{16*w}')
        return self.nlg
    def stats_finish(self, t, vInv):
        self.e(f'''
        v_pk_add_f32 {vr(t,2)}, {vr(t,2)}, {vr(t+4,2)}
        v_pk_add_f32 {vr(t+2,2)}, {vr(t+2,2)}, {vr(t+6,2)}
        v_pk_add_f32 {vr(t+8,2)}, {vr(t+8,2)}, {vr(t+12,2)}
        v_pk_add_f32 {vr(t+10,2)}, {vr(t+10,2)}, {vr(t+14,2)}
        v_pk_add_f32 {vr(t,2)}, {vr(t,2)}, {vr(t+8,2)}
        v_pk_add_f32 {vr(t+2,2)}, {vr(t+2,2)}, {vr(t+10,2)}
        v_pk_mul_f32 {vr(t+4,2)}, {vr(t,2)}, {vr(vInv,2)} op_sel_hi:[1,0]
        v_pk_mul_f32 {vr(t+6,2)}, {vr(t+2,2)}, {vr(vInv,2)} op_sel_hi:[1,0]
        v_fma_f32 v{t+5}, -v{t+4}, v{t+4}, v{t+5}
        v_fma_f32 v{t+7}, -v{t+6}, v{t+6}, v{t+7}
        v_max_f32 v{t+5}, 0, v{t+5}
        v_max_f32 v{t+7}, 0, v{t+7}
        v_add_f32 v{t+5}, v{vInv+1}, v{t+5}
        v_add_f32 v{t+7}, v{vInv+1}, v{t+7}
        v_rsq_f32 v{t}, v{t+5}
        v_rsq_f32 v{t+2}, v{t+7}
        v_mul_f32 v{t+1}, -v{t+4}, v{t}
        v_mul_f32 v{t+3}, -v{t+6}, v{t+2}''')
    def cmul(self, d, a, b):
        return [f'v_pk_mul_f32 {vr(d,2)}, {vr(a,2)}, {vr(b,2)} op_sel_hi:[1,0]',
                f'v_pk_fma_f32 {vr(d,2)}, {vr(a,2)}, {vr(b,2)}, {vr(d,2)} op_sel:[1,1,0] op_sel_hi:[0,1,1] neg_lo:[1,0,0]']
    def unpack(self, d, s): return [f'v_lshlrev_b32 v{d}, 16, v{s}', f'v_and_b32 v{d+1}, s{sMask}, v{s}']

    def dma_tile(self, i, slot):
        out = []
        for hf in range(2):
            for e_ in range(4):
                pre = ''
                if e_ == 0:
                    pre = (f's_add_u32 m0, s{sDmaL}, {slot*32768 + hf*4096}\n'
                           f's_add_u32 s{sDmaT}, s{sDmaG}, {i*32768 + hf*4096}\n')
                out.append(pre + f'buffer_load_dwordx4 v1, {SRD}, s{sDmaT} offen offset:{e_*1024} sc1 lds')
        return out

    def build(self):
        p = self.p; e = self.e
        k = NAME + '_kernel'
        p.add_launch(k, 256, 256, LDS_BYTES)
        p.begin(k)
        XR = 4; WM = 12; AB = 28; WG = 34; WDr = 50; EA = 58
        vXO = 3; t = 68
        vInv = 118; vSBw, vSBr = 120, 121; vWgS = 122; vDt = 123; vS = 124; vF = 126; vPolled = 127
        groups = [(0,1,2),(3,4),(5,6)]
        korder = [7*pp + i for g in groups for i in g for pp in range(4)]
        wdq = []
        for T in korder:
            for c in range(2):
                wdq.append((f's_add_u32 s{sWdT}, s{sWdG}, {T*2048}\n' if c == 0 else '') +
                           f'buffer_load_dwordx4 {ar(8*T+4*c,4)}, v1, {SRD}, s{sWdT} offen offset:{1024*c} sc1')
        wd_id = []
        def wd_issue(n):
            for _ in range(n):
                if wdq: wd_id.append(e(wdq.pop(0)))
        e(f'''
        s_load_dwordx16 s[4:19], s[0:1], 0
        s_load_dwordx16 s[20:35], s[0:1], 64
        s_load_dwordx4 s[36:39], s[0:1], 128
        s_cmp_ge_u32 s2, 256
        s_cbranch_scc1 L_end
        v_lshrrev_b32 v{t}, 6, v0
        v_and_b32 v{t+1}, 63, v0
        v_readfirstlane_b32 s{sW}, v{t}
        s_lshr_b32 s3, s2, 3
        s_getpc_b64 {sp(sM)}
        L_pc:
        s_lshl2_add_u32 s{sT}, s3, s{sW}
        s_lshl_b32 s{sM+2}, s{sT}, 8
        s_min_u32 s{sM+2}, s{sM+2}, L_end-L_pc-256
        v_lshl_add_u32 v{t+7}, v{t+1}, 2, s{sM+2}
        global_load_dword v{vPolled}, v{t+7}, {sp(sM)}
        s_and_b32 s{sT+1}, s2, 7
        s_lshl_b32 s{sL}, s{sT+1}, 5
        s_or_b32 s{sL}, s{sL}, s3
        v_lshlrev_b32 v1, 4, v{t+1}
        v_and_b32 v{t+2}, 3, v0
        v_and_b32 v{t+3}, 0xfc, v0
        s_lshl_b32 s{sT+3}, s{sL}, 13
        v_lshl_add_u32 v{t+3}, v{t+3}, 2, s{sT+3}
        v_lshl_add_u32 v{vXO}, v{t+2}, 11, v{t+3}
        v_lshrrev_b32 v{t+4}, 3, v{t+1}
        v_min_u32 v{t+4}, 5, v{t+4}
        v_and_b32 v{t+5}, 0x70, v1
        v_lshl_add_u32 v{t+4}, v{t+4}, 10, v{t+5}
        s_lshl_b32 s{sT+2}, s{sT}, 3
        s_mul_i32 s{sT}, s{sT}, {4*6144}
        s_lshl_b32 s{sT+1}, s{sT+1}, 7
        s_add_u32 s{sT}, s{sT}, s{sT+1}
        s_add_u32 s{sT}, s{sT}, 3072
        v_add_u32 v{t+4}, s{sT}, v{t+4}
        v_add_u32 v{t+5}, 12288, v{t+4}
        s_lshl_b32 s{sT}, s{sL}, 9
        v_lshl_add_u32 v{t+6}, v0, 1, s{sT}
        s_lshl_b32 s{sT+3}, s{sL}, 2
        ''')
        for i in range(6): e(f'v_mov_b32 v{AB+i}, 0')
        e('s_waitcnt lgkmcnt(0)')
        self.stamp('start')
        e(f'''
        s_load_dwordx2 {sp(sT+4)}, {sp(pC)}, s{sT+2}
        global_load_dwordx4 {vr(XR,4)}, v{vXO}, {sp(pX)}''')
        id_x = e(f'global_load_dwordx4 {vr(XR+4,4)}, v{vXO}, {sp(pX)} offset:1024')
        id_wm = e(f'''
        s_load_dword s{sTag}, {sp(pWs)}, 0
        global_load_dwordx4 {vr(WM,4)}, v{t+4}, {sp(pWm)} offset:-3072
        global_load_dwordx4 {vr(WM+4,4)}, v{t+4}, {sp(pWm)} offset:3072
        global_load_dwordx4 {vr(WM+8,4)}, v{t+5}, {sp(pWm)} offset:-3072
        global_load_dwordx4 {vr(WM+12,4)}, v{t+5}, {sp(pWm)} offset:3072
        s_load_dword s{sT+6}, {sp(pLdt)}, s{sT+3}
        s_load_dword s{sDsk+1}, {sp(pD)}, s{sT+3}''')
        for i, ptr in enumerate([pAre,pAim,pBre,pBim,pCre,pCim]):
            id_ab = e(f'global_load_short_d16_hi v{AB+i}, v{t+6}, {sp(ptr)}')
        e(f'''
        s_min_u32 s{sT}, s{sL}, 223
        s_lshl2_add_u32 s{sT}, s{sT}, s{sW}
        s_bitcmp1_b32 s{sT}, 0
        s_cselect_b32 s0, s{pWu}, s{pWg}
        s_cselect_b32 s1, s{pWu+1}, s{pWg+1}
        s_cselect_b32 s{sT+8}, {WGU+256}, {WGU}
        s_bfe_u32 s{sT+1}, s{sT}, 0x40001
        s_lshr_b32 s{sT+2}, s{sT}, 5
        s_mul_i32 s{sT+7}, s{sT+1}, {32*3584}
        s_lshl_b32 s{sT+3}, s{sT+2}, 7
        s_add_u32 s{sT+7}, s{sT+7}, s{sT+3}
        v_lshrrev_b32 v{t+7}, 4, v{t+1}
        v_and_b32 v{t+8}, 15, v{t+1}
        v_mul_u32_u24 v{t+9}, {8*3584}, v{t+7}
        v_lshl_add_u32 v{t+10}, v{t+8}, 3, s{sT+7}
        v_add_u32 v{t+9}, v{t+10}, v{t+9}
        '''.replace(f's_cselect_b32 s{sT+8}, {WGU+256}, {WGU}', f's_cselect_b32 s{sT+8}, 256, 0'))
        for jj in range(8):
            e(f'global_load_dwordx2 {vr(WG+2*jj,2)}, v{t+9}, s[0:1] offset:{3584*(jj&1)}')
            if jj & 1 and jj < 7: e(f'v_add_u32 v{t+9}, 7168, v{t+9}')
        e(f'''
        s_lshl_b32 s{sT+2}, s{sT+2}, 17
        s_lshl_b32 s{sT+1}, s{sT+1}, 11
        s_add_u32 s{sT+2}, s{sT+2}, s{sT+1}
        s_add_u32 s{sT+8}, s{sT+8}, s{sT+2}
        s_add_u32 s{sT+8}, s{sT+8}, {WGU}
        s_sub_u32 s{sT}, 255, s{sL}
        s_min_u32 s{sT}, s{sT}, 223
        s_and_b32 s{sT+1}, s{sT}, 7
        s_lshr_b32 s{sT+2}, s{sT}, 3
        s_lshl_b32 s{sT+3}, s{sT+2}, 6
        s_add_u32 s{sT+3}, s{sT+3}, s{sW}
        s_lshl3_add_u32 s{sT+3}, s{sT+3}, s{sT+1}
        s_add_u32 s{sT+3}, s{sT+3}, 32
        s_lshl_b32 s{sT+3}, s{sT+3}, 7
        v_lshrrev_b32 v{t+10}, 5, v{t+1}
        v_and_b32 v{t+11}, 31, v{t+1}
        v_lshl_add_u32 v{t+10}, v{t+10}, 14, s{sT+3}
        v_lshl_add_u32 v{t+10}, v{t+11}, 2, v{t+10}
        ''')
        for jj in range(8):
            id_w = e(f'global_load_dword v{WDr+jj}, v{t+10}, {sp(pWd)} offset:{-4096 if jj&1==0 else 0}')
            if jj in (1,5): e(f'v_add_u32 v{t+10}, 8192, v{t+10}')
            if jj == 3: e(f'v_add_u32 v{t+10}, {32768-8192}, v{t+10}')
        GR = 144
        e(f'''
        s_mul_i32 s{sT+1}, s{sT+1}, 112
        s_lshl2_add_u32 s{sT+2}, s{sT+2}, s{sW}
        s_add_u32 s{sT+1}, s{sT+1}, s{sT+2}
        s_lshl_b32 s{sT+1}, s{sT+1}, 11
        s_add_u32 s{sT+9}, s{sT+1}, {WD}
        s_mov_b32 s40, s{pWs}
        s_mov_b32 s41, s{pWs+1}
        s_mov_b32 s42, {WS_BYTES}
        s_mov_b32 s43, 0x20000
        s_mov_b32 s{sMask}, 0xffff0000
        s_mov_b32 s{sLo}, 0x05040100
        s_mov_b32 s{sHi}, 0x07060302
        s_mov_b32 s{sOnes}, 0x3f803f80
        s_mov_b32 s{sCnt}, 40000
        v_mov_b32 v{vInv}, {fbits(1/512)}
        v_mov_b32 v{vInv+1}, {fbits(1e-5)}
        v_lshlrev_b32 v{vWgS}, 9, v{t+7}
        v_lshl_add_u32 v{vWgS}, v{t+8}, 4, v{vWgS}
        v_lshlrev_b32 v{vSBr}, 6, v{t+2}
        v_add_u32 v{vSBr}, {L_SB}, v{vSBr}
        s_lshl_b32 s{sT}, s{sW}, 4
        v_lshl_add_u32 v{vSBw}, v{t+7}, 2, s{sT}
        v_add_u32 v{vSBw}, v{vSBw}, v{vSBr}
        v_lshrrev_b32 v{vF}, 2, v1
        v_mov_b32 v{t+12}, {fbits(-1.4426950408889634)}
        v_lshlrev_b32 v{t+4}, 5, v0
        v_add_u32 v{t+4}, {L_MB}, v{t+4}
        v_and_b32 v{t+5}, 1, v0
        v_bfe_u32 v{t+6}, v0, 1, 1
        v_mul_u32_u24 v{t+6}, 192, v{t+6}
        v_bfe_u32 v{t+3}, v0, 2, 5
        v_lshl_add_u32 v{t+5}, v{t+3}, 1, v{t+5}
        v_add_lshl_u32 v{t+5}, v{t+5}, v{t+6}, 2
        v_add_u32 v{t+5}, {L_MB}, v{t+5}
        s_waitcnt lgkmcnt(0)
        s_lshl_b32 s{sT}, s{sT+4}, 16
        s_and_b32 s{sT+1}, s{sT+4}, s{sMask}
        s_lshl_b32 s{sT+2}, s{sT+5}, 16
        s_and_b32 s{sT+3}, s{sT+5}, s{sMask}
        s_lshl_b32 s{sT+4}, s{sT+6}, 16
        s_and_b32 s{sT+5}, s{sT+6}, s{sMask}
        s_cmp_ge_u32 s{sW}, 2
        s_cselect_b32 s{sT+4}, s{sT+5}, s{sT+4}
        s_mul_i32 s{sTag}, s{sTag}, 1664525
        s_add_u32 s{sTag}, s{sTag}, 1013904223
        ''')
        vMBw, vMBr = t+4, t+5
        for i in range(4): e(f'v_mul_f32 v{t+13+i}, s{sT+i}, v{t+12}')
        e(f'v_mul_f32 v{vDt}, s{sT+4}, -v{t+12}')
        for i in range(4): e(f'v_exp_f32 v{t+13+i}, v{t+13+i}')
        e(f'v_exp_f32 v{vDt}, v{vDt}')
        for i in range(4): e(f'v_add_f32 v{t+13+i}, 1.0, v{t+13+i}')
        e(f'v_cvt_pk_bf16_f32 v{vDt}, v{vDt}, v{vDt}')
        for i in range(4): e(f'v_rcp_f32 v{t+13+i}, v{t+13+i}')
        e(f'v_lshlrev_b32 v{vDt}, 16, v{vDt}')
        for i in range(4): e(f'v_mul_f32 v{t+13+i}, s{sT+i}, v{t+13+i}')
        e(f'v_cvt_pk_bf16_f32 v{vS}, v{t+13}, v{t+14}\nv_cvt_pk_bf16_f32 v{vS+1}, v{t+15}, v{t+16}')
        e(f'v_mov_b32 v2, s{sTag}')
        for i in range(4): e(f'v_mov_b32 v{GR+4*i+2}, 0\nv_mov_b32 v{GR+4*i+3}, s{sTag}')
        e(f'''
        s_mul_i32 s{sT}, s{sL}, {XBLK}
        s_lshl_b32 s{sT+1}, s{sW}, 12
        s_add_u32 s{sT+6}, s{sT}, s{sT+1}
        s_add_u32 s{sT+1}, s{sT+6}, {XH}
        s_lshl1_add_u32 s{sT+2}, s{sL}, s{sW}
        s_lshl_b32 s{sT+2}, s{sT+2}, 10
        s_add_u32 s{sT+2}, s{sT+2}, {MODP}''')
        self.stamp('_pre_x')
        e(f's_waitcnt {self.wvm(id_x)}')
        self.stamp('x_arrived')
        XF = 128
        unp = [x for r in range(2) for i in range(4) for x in self.unpack(XF+8*r+2*i, XR+4*r+i)]
        self.stats_partial(XR, t, vSBw, unp)
        unp = self.rest
        e(f's_waitcnt {self.wvm(id_wm)}')
        MA = 76
        for h in range(2):
            for m in range(4):
                e(f'''v_perm_b32 v{t+16+2*m}, v{WM+8*h+4+m}, v{WM+8*h+m}, s{sLo}
                v_perm_b32 v{t+17+2*m}, v{WM+8*h+4+m}, v{WM+8*h+m}, s{sHi}''')
            for m in range(8):
                e(f'v_dot2_f32_bf16 v{MA+m}, v{t+16+m}, v{vS+h}, {"0" if h==0 else "v%d"%(MA+m)}')
        e(f'ds_write_b128 v{vMBw}, {vr(MA,4)}')
        e(unp.pop(0)); e(unp.pop(0))
        e(f'ds_write_b128 v{vMBw}, {vr(MA+4,4)} offset:16')
        e('s_waitcnt lgkmcnt(0)\ns_barrier')
        ST = 84
        id_st = self.stats_read(ST, vSBr)
        MR = 100
        for w in range(0, 4, 2):
            for i in range(3):
                e(f'ds_read2st64_b32 {vr(MR+3*w+2*i,2)}, v{vMBr} offset0:{8*w+i} offset1:{8*w+8+i}')
        for x in unp: e(x)
        e(f's_waitcnt {self.wlg(id_st)}')
        self.stats_finish(ST, vInv)
        for i in range(4):
            for r in range(2):
                x = XF+8*r+2*i
                e(f'v_pk_fma_f32 {vr(x,2)}, {vr(x,2)}, {vr(ST+2*r,2)}, {vr(ST+2*r,2)} op_sel:[0,0,1] op_sel_hi:[1,0,1]')
            for r in range(2):
                x = XF+8*r+2*i
                e(f'v_cvt_pk_bf16_f32 v{GR+4*i+r}, v{x}, v{x+1}')
            e(f'buffer_store_dwordx4 {vr(GR+4*i,4)}, v1, {SRD}, s{sT+1} offen offset:{1024*i} sc1')
        e(f's_waitcnt lgkmcnt(0)\ns_cmp_ge_u32 s{sW}, 2\ns_cbranch_scc1 L_nomod')
        self.maybe = True
        e(f'''
        v_pk_add_f32 {vr(MR,2)}, {vr(MR,2)}, {vr(MR+6,2)}
        v_pk_add_f32 {vr(MR+2,2)}, {vr(MR+2,2)}, {vr(MR+8,2)}
        v_pk_add_f32 {vr(MR+4,2)}, {vr(MR+4,2)}, {vr(MR+10,2)}
        v_mov_b32 v{MR+11}, v2
        v_add_f32 v{MR+8}, v{MR}, v{MR+1}
        v_add_f32 v{MR+9}, v{MR+2}, v{MR+3}
        v_add_f32 v{MR+10}, v{MR+4}, v{MR+5}
        buffer_store_dwordx4 {vr(MR+8,4)}, v1, {SRD}, s{sT+2} offen sc1
        L_nomod:''')
        self.maybe = False
        self.stamp('e1_stored')
        e(f's_waitcnt {self.wvm(id_w)}')
        O = 160
        self.maybe = True
        e(f's_cmp_ge_u32 s{sL}, 224\ns_cbranch_scc1 L_nowg')
        for c in range(4):
            for m in range(4):
                e(f'v_perm_b32 v{O+4*c+m}, v{WG+2*(2*m+1)+(c>>1)}, v{WG+2*(2*m)+(c>>1)}, s{sHi if c&1 else sLo}')
            e(f'buffer_store_dwordx4 {vr(O+4*c,4)}, v{vWgS}, {SRD}, s{sT+8} offen sc1')
            if c < 3: e(f's_add_u32 s{sT+8}, s{sT+8}, 32768')
        e(f'L_nowg:\ns_cmp_lt_u32 s{sL}, 32\ns_cbranch_scc1 L_nowd')
        for c in range(2):
            for m in range(4):
                e(f'v_perm_b32 v{O+16+4*c+m}, v{WDr+2*m+1}, v{WDr+2*m}, s{sHi if c else sLo}')
            e(f'buffer_store_dwordx4 {vr(O+16+4*c,4)}, v1, {SRD}, s{sT+9} offen offset:{1024*c} sc1')
        e('L_nowd:')
        self.maybe = False
        self.stamp('_wjob')
        al, be = 68, 69
        Z1, Z8, Z256, Wc = 70, 72, 74, 76
        q = 78; vRW = 87
        e(f'''
        v_mul_f32 v{al}, v{vDt}, v{AB}
        v_mul_f32 v{be}, v{vDt}, v{AB+1}
        v_mul_f32 v{AB+2}, v{vDt}, v{AB+2}
        v_mul_f32 v{AB+3}, v{vDt}, v{AB+3}
        v_mul_f32 v{q}, {fbits(1.4426950408889634)}, v{al}
        v_mul_f32 v{q+1}, 0.15915494, v{be}
        v_mul_f32 v{Wc}, v{AB+4}, v{AB+2}
        v_mul_f32 v{Wc+1}, v{AB+4}, v{AB+3}
        v_mul_f32 v{q+3}, {fbits(8.0)}, v{q}
        v_mul_f32 v{q+4}, {fbits(8.0)}, v{q+1}
        v_mul_f32 v{q+6}, {fbits(256.0)}, v{q}
        v_mul_f32 v{q+7}, {fbits(256.0)}, v{q+1}
        v_fma_f32 v{Wc}, -v{AB+5}, v{AB+3}, v{Wc}
        v_fma_f32 v{Wc+1}, -v{AB+5}, v{AB+2}, -v{Wc+1}
        s_lshr_b32 s{sT+7}, s{sW}, 1
        s_mul_i32 s{sT}, s{sT+7}, {RCSZ}
        s_add_u32 s{sT}, s{sT}, {L_RC}
        ''')
        for n_ in range(3): e(f'v_exp_f32 v{q+3*n_}, v{q+3*n_}\nv_fract_f32 v{q+3*n_+1}, v{q+3*n_+1}')
        for n_ in range(3): e(f'v_sin_f32 v{q+3*n_+2}, v{q+3*n_+1}\nv_cos_f32 v{q+3*n_+1}, v{q+3*n_+1}')
        e(f'v_and_b32 v{vRW}, 127, v0\nv_lshl_add_u32 v{vRW}, v{vRW}, 2, s{sT}')
        for n_, (Z, conj) in enumerate([(Z1,True),(Z8,False),(Z256,True)]):
            e(f'v_mul_f32 v{Z}, v{q+3*n_}, v{q+3*n_+1}\nv_mul_f32 v{Z+1}, {"-" if conj else ""}v{q+3*n_}, v{q+3*n_+2}')
        def put(src, row, pk):
            return [f'v_cvt_pk_bf16_f32 v{pk}, v{src}, v{src+1}', f'ds_write_b32 v{vRW}, v{pk} offset:{row*RST}']
        Z16 = 78
        R0 = [[f'v_mov_b32 v88, 0x3f80', f'ds_write_b32 v{vRW}, v88'], self.cmul(Z16, Z8, Z8) + put(Z16, 2, 88)]
        R1 = [put(Z8, 1, 84), []]
        cur = [Z16, Z8]; bufs = [[80, 82], [90, 92]]
        for rho in range(3, 32):
            par = rho & 1
            d = bufs[par][(rho >> 1) & 1]
            (R1 if par else R0).append(self.cmul(d, cur[par], Z16) + put(d, rho, 84 if par else 88)); cur[par] = d
        Cq = [put(Wc, 32, 89)]
        cr = {0: Wc}; nxt = [94]
        def newc():
            r = nxt[0]; nxt[0] += 2; return r
        for ee in range(1, 8):
            d = newc() if ee in (2,4,6) else 110
            Cq.append(self.cmul(d, cr[ee-1], Z1) + put(d, 32+ee, 89)); cr[ee] = d
        for n_, ee in enumerate((0,2,4,6)):
            d = newc() if ee in (0,4) else 110
            Cq.append(self.cmul(d, cr[ee], Z256) + put(d, 40+n_, 89)); cr[256+ee] = d
        chain = [(512,256,44),(516,260,45),(768,512,46),(772,516,47),(1024,768,48),(1280,1024,49),(1536,1280,50),(1792,1536,51),(2048,1792,52)]
        rot = [104, 106, 108, 110]
        for n_, (ee, src, row) in enumerate(chain):
            d = rot[n_ % 4]
            Cq.append(self.cmul(d, cr[src], Z256) + put(d, row, 89)); cr[ee] = d
        vKa, vKb, vKw0, vKw1 = 112, 113, 114, 115
        u = 12
        extra = f'''v_and_b32 v{u}, 15, v0
        v_bfe_u32 v{u+1}, v0, 4, 2
        v_mul_u32_u24 v{vKb}, {RST}, v{u}
        v_lshl_add_u32 v{u+2}, v{u+1}, 4, s{sT}
        v_add_u32 v{vKb}, v{u+2}, v{vKb}
        s_and_b32 s{sT+1}, s{sW}, 1
        s_mul_i32 s{sT+2}, s{sT+1}, {16*RST}
        v_add_u32 v{vKa}, s{sT+2}, v{vKb}
        s_mov_b32 s{sT+2}, 0x76543210
        s_mov_b32 s{sT+3}, 0x40406420
        v_lshlrev_b32 v{u+2}, 2, v{u}
        v_lshrrev_b64 {vr(u+4,2)}, v{u+2}, {sp(sT+2)}
        v_and_b32 v{u+4}, 15, v{u+4}
        v_lshlrev_b32 v{u+2}, 1, v{u}
        s_mov_b32 s{sT+2}, 0xFA550000
        v_bfe_u32 v{u+5}, s{sT+2}, v{u+2}, 2
        v_lshl_add_u32 v{u+4}, v{u+5}, 8, v{u+4}
        s_mul_i32 s{sT+2}, s{sT+7}, {KHSZ}
        s_lshl_b32 s{sT+3}, s{sT+1}, 8
        s_add_u32 s{sT+2}, s{sT+2}, s{sT+3}
        v_lshl_add_u32 v{u+6}, v{u+1}, 6, s{sT+2}
        v_lshl_add_u32 v{vKw0}, v{u+4}, 1, v{u+6}
        v_lshl_add_u32 v{vKw1}, v{u}, 9, v{u+6}'''.split('\n')
        for n_ in range(len(Cq)):
            st = [a_[n_] if n_ < len(a_) else None for a_ in (R0, R1, Cq)]
            for j in range(4):
                for a_ in st:
                    if a_ is None:
                        if extra: e(extra.pop(0))
                    elif j < len(a_): e(a_[j])
        for x in extra: e(x)
        self.stamp('kgen1')
        e(f'''
        s_lshl_b32 s{sT+8}, s{sL}, 7
        s_add_u32 s{sT+8}, s{sT+8}, {F1}
        s_waitcnt vmcnt(0) lgkmcnt(0)
        s_barrier''')
        self.stamp('_kbar1')
        KF = 160
        kf_id = []
        for kk in range(8):
            e(f'''ds_read_b128 {vr(KF+12*kk,4)}, v{vKa} offset:{64*kk}
            ds_read_b128 {vr(KF+12*kk+4,4)}, v{vKb} offset:{32*RST+64*kk}
            ds_read_b128 {vr(KF+12*kk+8,4)}, v{vKb} offset:{48*RST+64*kk}''')
            kf_id.append(self.nlg)
            if kk == 3:
                self.maybe = True
                e(f's_cmp_lg_u32 s{sW}, 0\ns_cbranch_scc1 L_nof1\n' + self.flag_text(vF, sT+8) + '\nL_nof1:')
                self.maybe = False
        vEX, vEM = 124, 125
        EG = 12
        e(f'''
        v_bfe_u32 v{t}, v0, 2, 4
        v_and_b32 v{t+1}, 0x30, v1
        v_lshl_add_u32 v{vEM}, v{t}, 11, v{t+1}
        s_lshl_b32 s{sT}, s{sW}, 6
        v_add_u32 v{t}, s{sT}, v{t}
        s_movk_i32 s{sT}, {XBLK}
        v_mad_u32_u24 v{vEX}, v{t}, s{sT}, v{t+1}
        s_and_b32 s{sT}, s{sL}, 0xc0
        s_and_b32 s{sT+1}, s{sL}, 3
        s_lshl4_add_u32 s{sT}, s{sT+1}, s{sT}
        s_bfe_u32 s{sT+1}, s{sL}, 0x40002
        s_add_u32 s{sT}, s{sT}, s{sT+1}
        s_lshl_b32 s{sT}, s{sT}, 6
        s_add_u32 s{sT}, s{sT}, {XH}
        s_add_u32 s{sT+1}, s{sT}, {16*XBLK}
        s_add_u32 s{sT+2}, s{sT}, {32*XBLK}
        s_add_u32 s{sT+3}, s{sT}, {48*XBLK}
        s_lshr_b32 s{sT+4}, s{sL}, 5
        s_lshl_b32 s{sT+4}, s{sT+4}, 16
        s_lshl_b32 s{sT+5}, s3, 6
        s_add_u32 s{sT+4}, s{sT+4}, s{sT+5}
        s_add_u32 s{sT+4}, s{sT+4}, {MODP}
        s_add_u32 s{sT+5}, s{sT+4}, 32768''')
        e1_loads = '\n'.join([f'buffer_load_dwordx4 {vr(EG+16+4*i,4)}, v{vEM}, {SRD}, s{sT+4+i} offen sc1' for i in range(2)] +
                             [f'buffer_load_dwordx4 {vr(EG+4*i,4)}, v{vEX}, {SRD}, s{sT+i} offen sc1' for i in range(4)])
        id_e1 = e(e1_loads)
        fill = [f'v_lshlrev_b32 v{t}, 3, v0', f'v_cvt_f32_u32 v{t}, v{t}']
        for i in range(5):
            fill += f'''v_add_f32 v{t+1}, {fbits(2.0*i-2)}, v{t}
            v_add_f32 v{t+2}, {fbits(2048+2.0*i-2)}, v{t}
            v_cvt_pk_bf16_f32 v{t+1}, v{t+1}, v{t+2}
            v_and_b32 v{t+2}, s{sMask}, v{t+1}
            v_lshlrev_b32 v{t+1}, 16, v{t+1}
            v_cvt_u32_f32 v{EA+5+i}, v{t+2}
            v_cvt_u32_f32 v{EA+i}, v{t+1}'''.split('\n')
        KD = 80
        for kk in range(8):
            e(f's_waitcnt {self.wlg(kf_id[kk])}')
            for cb in range(2):
                e(f'v_mfma_f32_16x16x32_bf16 {vr(KD+4*cb,4)}, {vr(KF+12*kk,4)}, {vr(KF+12*kk+4+4*cb,4)}, {"0" if kk==0 else vr(KD+4*cb,4)}')
                e(fill.pop(0))
                if cb: e(fill.pop(0))
        for x in fill: e(x)
        for cb in range(2):
            for j in range(2):
                e(f'v_cvt_pk_bf16_f32 v{KD+8+2*cb+j}, v{KD+4*cb+2*j}, v{KD+4*cb+2*j+1}')
        for cb in range(2):
            for j in range(2):
                va = (vKw0, vKw1)[cb]; off = L_KH + 2048*cb + 32*j
                e(f'ds_write_b16 v{va}, v{KD+8+2*cb+j} offset:{off}\nds_write_b16_d16_hi v{va}, v{KD+8+2*cb+j} offset:{off+16}')
        e(f'''
        v_mov_b32 v{t}, 0
        v_and_b32 v{t+1}, 127, v0
        s_mul_i32 s{sT+8}, s{sT+7}, {USZ}
        s_add_u32 s{sT+8}, s{sT+8}, {L_U}
        v_lshl_add_u32 v{t+1}, v{t+1}, 2, s{sT+8}
        s_mul_i32 s{sT+9}, s{sT+7}, {PSZ}
        s_add_u32 s{sT+9}, s{sT+9}, {L_P}
        v_and_b32 v{t+3}, 15, v0
        v_lshl_add_u32 v{t+2}, v{t+3}, 2, s{sT+9}
        ds_write_b32 v{t+1}, v{t}
        ds_write_b32 v{t+2}, v{t}
        s_waitcnt lgkmcnt(2)
        s_barrier''')
        self.stamp('kgen2')
        KV = 72; PV = 92; vPw = 108; vPA = 109; vUB = 123
        kv_id = []
        for ch in range(2):
            for i in range(10): e(f'ds_read_u16 v{KV+10*ch+i}, v{EA+i} offset:{L_KH+ch*KHSZ}')
            kv_id.append(self.nlg)
        e(f'''
        v_cmp_eq_u32 vcc, 0, v0
        v_lshlrev_b32 v{vPw}, 4, v0
        v_add_u32 v{vPw}, {L_P+64}, v{vPw}
        v_bfe_u32 v{t}, v0, 4, 2
        s_and_b32 s0, s{sW}, 1
        s_lshl_b32 s1, s0, 9
        s_add_u32 s1, s1, {26*4}
        v_add_u32 v{t+2}, s1, v{t+2}
        v_lshlrev_b32 v{vPA}, 5, v{t}
        v_sub_u32 v{vPA}, v{t+2}, v{vPA}
        s_lshl_b32 s1, s0, 8
        s_sub_u32 s{sT+8}, s{sT+8}, s1
        s_add_u32 s{sT+8}, s{sT+8}, {480 - 192}
        v_lshl_add_u32 v{vUB}, v{t+3}, 5, s{sT+8}
        v_lshl_add_u32 v{vUB}, v{t}, 4, v{vUB}''')
        for ch in range(2):
            e(f's_waitcnt {self.wlg(kv_id[ch])}')
            e(f'v_cndmask_b32 v{KV+10*ch}, v{KV+10*ch}, 0, vcc')
            for v in range(2):
                for i in range(4):
                    e(f'v_lshl_or_b32 v{PV+8*ch+4*v+i}, v{KV+10*ch+5*v+i}, 16, v{KV+10*ch+5*v+i+1}')
                e(f'ds_write_b128 v{vPw}, {vr(PV+8*ch+4*v,4)} offset:{ch*PSZ+4096*v}')
        vP1 = 122
        PJ = 110
        e(f'''
        s_lshr_b32 s0, s{sL}, 6
        s_bfe_u32 s1, s{sL}, 0x20003
        s_lshl2_add_u32 s{sMt}, s0, s1
        s_bfe_u32 s0, s{sL}, 0x10005
        s_and_b32 s{sDt}, s{sL}, 7
        s_lshl3_add_u32 s{sNt}, s0, s{sDt}
        s_lshl1_add_u32 s{sTb}, s{sMt}, s0
        s_mul_i32 s0, s{sNt}, 7
        s_lshr_b32 s0, s0, 2
        s_lshl_b32 s0, s0, 3
        v_and_b32 v{t+1}, 31, v0
        v_min_u32 v{t+2}, 23, v{t+1}
        v_add_u32 v{t+2}, s0, v{t+2}
        v_min_u32 v{t+2}, 223, v{t+2}
        v_min_u32 v{t+1}, 27, v{t+1}
        v_cmp_gt_u32 vcc, 512, v1
        v_lshlrev_b32 v{t+1}, 3, v{t+1}
        s_sub_u32 s0, 255, s{sDt}
        v_sub_u32 v{t+1}, s0, v{t+1}
        v_cndmask_b32 v{t+1}, v{t+1}, v{t+2}, vcc
        v_lshlrev_b32 v{vP1}, 7, v{t+1}
        v_add_u32 v{vP1}, {F1}, v{vP1}
        v_cmp_eq_u32 {sp(sM)}, 2, v{t}''')
        for J in range(1,8): e(f'v_add_u32 v{PJ+J-1}, {1024*J}, v{vPA}')
        e(f'v_cndmask_b32 v{t}, 0, 1.0, {sp(sM)}')
        self.stamp('expand')
        self.check(e1_loads, [EG+3, EG+7, EG+11, EG+15, EG+19, EG+23], id_e1)
        self.stamp('e1_ok')
        f1_load = f'buffer_load_dword v{vPolled}, v{vP1}, {SRD}, 0 offen sc1'
        id_f1 = e(f1_load)
        g0 = EG+16
        HF = 36
        e(f'''
        v_add_f32 v{g0}, v{g0}, v{g0+4}
        v_add_f32 v{g0+1}, v{g0+1}, v{g0+5}
        v_add_f32 v{g0+2}, v{g0+2}, v{g0+6}
        v_mov_b32 v{g0+3}, 0''')
        unp = []
        for i in range(4):
            unp += [f'v_lshlrev_b32 v{HF+4*i}, 16, v{EG+4*i}', f'v_lshlrev_b32 v{HF+4*i+1}, 16, v{EG+4*i+1}',
                    f'v_and_b32 v{HF+4*i+2}, s{sMask}, v{EG+4*i}', f'v_and_b32 v{HF+4*i+3}, s{sMask}, v{EG+4*i+1}']
        self.reduce4(g0, g0+1, g0+2, g0+3, unp)
        unp = self.rest
        e(f'''
        v_cvt_pk_bf16_f32 v{g0}, v{g0}, v{g0}
        s_lshl_b32 s{sT}, s{sW}, 10
        v_and_b32 v{g0}, s{sMask}, v{g0}
        s_add_u32 s{sT}, s{sT}, {L_U+512}
        v_add_f32 v{g0}, v{g0}, v{t}
        v_cvt_pk_bf16_f32 v{g0}, v{g0}, v{g0}
        v_and_b32 v{g0}, s{sMask}, v{g0}
        v_add_u32 v{t+1}, s{sT}, v{vF}''')
        lanes = [32,0,33,1,16,17,34,35,2,3,18,19]
        for n_ in range(4): e(f'v_readlane_b32 s{sM+n_}, v{g0}, {lanes[n_]}')
        for x in unp: e(x)
        for i in range(4):
            for ch in range(2):
                h = HF+4*i+2*ch
                e(f'v_pk_fma_f32 {vr(h,2)}, {vr(h,2)}, {sp(sM+2*ch)}, {sp(sM+2*ch)} op_sel:[0,0,1] op_sel_hi:[1,0,1]')
            for ch in range(2):
                h = HF+4*i+2*ch
                e(f'v_cvt_pk_bf16_f32 v{t+2+ch}, v{h}, v{h+1}\nds_write_b32 v{t+1}, v{t+2+ch} offset:{ch*USZ+256*i}')
        e('s_waitcnt lgkmcnt(0)\ns_barrier')
        self.stamp('u_ready')
        BF = 72; ACC = 224; AF = 128
        af = lambda jq, J: AF + 32*jq + 4*J
        pj = lambda J: vPA if J == 0 else PJ+J-1
        def bread(jq, m): return f'ds_read_b128 {vr(BF+4*m,4)}, v{vUB} offset:{512*m+192-64*jq}'
        def aread(jq, J, hh): return f'ds_read2_b32 {vr(af(jq,J)+2*hh,2)}, v{pj(J)} offset0:{32*jq+6-4*hh} offset1:{32*jq+4-4*hh}'
        rid = {}
        def rd(kind, jq, i):
            if kind == 'b': e(bread(jq, i))
            else: e(aread(jq, i, 0)); e(aread(jq, i, 1))
            rid[(kind, jq, i)] = self.nlg
        for i in range(4): rd('b', 0, i); rd('a', 0, i)
        ZG = 12; vYw, vYr = 52, 53
        fill = [f'v_readlane_b32 s{sM+n_}, v{g0}, {lanes[n_]}' for n_ in range(4, 12)]
        fill += f'''s_lshl_b32 s{sDmaL}, s{sW}, 13
        s_mul_i32 s{sDmaG}, s{sNt}, {7*32768}
        s_add_u32 s{sDmaG}, s{sDmaG}, s{sDmaL}
        s_add_u32 s{sDmaG}, s{sDmaG}, {WGU}
        s_lshl2_add_u32 s{sWdG}, s{sDt}, s{sW}
        s_mul_i32 s{sWdG}, s{sWdG}, {56*1024}
        s_add_u32 s{sWdG}, s{sWdG}, {WD}
        s_lshl_b32 s{sDsk}, s{sDsk+1}, 16
        s_and_b32 s{sDsk+1}, s{sDsk+1}, s{sMask}'''.split('\n')
        nprio = len(fill)
        for sc in (sDsk, sM+4):
            for i in range(4):
                for ch in range(2):
                    for j in range(2):
                        fill.append(f'v_mul_f32 v{HF+4*i+2*ch+j}, s{sc+ch}, v{HF+4*i+2*ch+j}')
        fill += f'''s_pack_hh_b32_b16 s{sT}, s{sM+6}, s{sM+7}
        s_pack_hh_b32_b16 s{sT+1}, s{sM+8}, s{sM+9}
        s_pack_hh_b32_b16 s{sT+2}, s{sM+10}, s{sM+11}
        v_and_b32 v{t}, 3, v0
        v_mov_b32 v{t+1}, s{sT}
        v_mov_b32 v{t+2}, s{sT+1}
        v_cmp_eq_u32 {sp(sBad)}, 1, v{t}
        v_mov_b32 v{t+3}, s{sT+2}
        v_mov_b32 v{ZG+3}, v2
        v_cndmask_b32 v{t+1}, v{t+1}, v{t+2}, {sp(sBad)}
        v_cmp_eq_u32 {sp(sBad)}, 2, v{t}
        v_mov_b32 v{ZG+7}, v2
        v_mov_b32 v{ZG+11}, v2
        v_cndmask_b32 v{ZG+2}, v{t+1}, v{t+3}, {sp(sBad)}
        v_mov_b32 v{ZG+15}, v2
        v_mov_b32 v{ZG+6}, v{ZG+2}
        v_mov_b32 v{ZG+10}, v{ZG+2}
        v_mov_b32 v{ZG+14}, v{ZG+2}
        v_and_b32 v{t}, 15, v0
        v_bfe_u32 v{t+1}, v0, 4, 2
        v_bfe_u32 v{t+2}, v0, 1, 2
        v_xor_b32 v{t+2}, v{t+2}, v{t+1}
        v_lshlrev_b32 v{t+2}, 4, v{t+2}
        v_lshl_add_u32 v{vYw}, v{t}, 6, v{t+2}
        s_add_u32 s{sT}, s{sDmaL}, {L_Y}
        v_add_u32 v{vYw}, s{sT}, v{vYw}
        v_bfe_u32 v{t}, v0, 3, 3
        v_lshl_add_u32 v{t+2}, v{t}, 6, v{t+2}
        v_and_b32 v{t}, 1, v0
        v_lshl_add_u32 v{t+2}, v{t}, 3, v{t+2}
        s_lshl_b32 s{sT}, s{sW}, 11
        s_add_u32 s{sT}, s{sT}, {L_Y}
        v_add_u32 v{vYr}, s{sT}, v{t+2}
        s_add_u32 s{sT+6}, s{sT+6}, {ZY}'''.split('\n')
        dq = self.dma_tile(0,0) + self.dma_tile(1,1) + self.dma_tile(2,2)
        nwd_conv = self.opt('wd_conv', 8)
        order = []
        for jq in range(4):
            if jq == 0: order += [(jq, cb-m, m) for cb in range(8) for m in range(cb+1)]
            elif jq == 3: order += [(jq, J, cb-J) for cb in range(8) for J in range(cb+1)]
            else: order += [(jq, J, m) for m in range(8) for J in range(8-m)]
        lastB = {}
        for n, (jq, J, m) in enumerate(order): lastB[(jq, m)] = n
        rq = []
        for i in range(4, 8): rq += [(0, 'b', 0, i), (0, 'a', 0, i)]
        for jq in range(1, 4):
            aa = [(36*(jq-1)+8, 'a', jq, J) for J in range(8)]
            bb = sorted([(lastB[(jq-1, m)]+1, 'b', jq, m) for m in range(8)])
            rq += sorted(aa + bb, key=lambda x: x[0])
        seen = set(); done_w = 0; waited = 0
        ncheck = self.opt('f1_at', 20); pace = self.opt('conv_pace', 4)
        for n, (jq, J, m) in enumerate(order):
            cb = J+m
            while ('a', jq, J) not in rid or ('b', jq, m) not in rid:
                _, kd, a_, b_ = rq.pop(0); rd(kd, a_, b_)
            need = max(rid[('a', jq, J)], rid[('b', jq, m)])
            if need > waited:
                e(f's_waitcnt {self.wlg(need)}'); waited = max(need, self.nlg - 15)
            c_ = ar(ACC+4*cb,4) if cb in seen else '0'; seen.add(cb)
            e(f'v_mfma_f32_16x16x32_bf16 {ar(ACC+4*cb,4)}, {vr(af(jq,J),4)}, {vr(BF+4*m,4)}, {c_}')
            if n == ncheck:
                while nprio > 0: e(fill.pop(0)); nprio -= 1
                self.check(f1_load, [vPolled], id_f1)
            elif n > ncheck and (n - ncheck) % pace == 1 and (dq or nwd_conv):
                if dq: e(dq.pop(0))
                else: wd_issue(1); nwd_conv -= 1
            elif rq and rq[0][0] <= n:
                _, kd, a_, b_ = rq.pop(0); rd(kd, a_, b_)
            elif jq == 3 and done_w < cb and (J >= 4 or done_w < cb-1):
                while fill: e(fill.pop(0))
                e(f'ds_write_b128 v{vYw}, {ar(ACC+4*done_w,4)} offset:{1024*done_w}'); done_w += 1
            else:
                for _ in range(2):
                    if fill: e(fill.pop(0)); nprio -= 1
        assert not rq
        for x in dq + fill: e(x)
        self.stamp('conv')
        while done_w < 8:
            e(f'ds_write_b128 v{vYw}, {ar(ACC+4*done_w,4)} offset:{1024*done_w}'); done_w += 1
        e('s_waitcnt lgkmcnt(0)\ns_barrier')
        YR = 72; y_id = []
        for i in range(4):
            for pw in range(4): e(f'ds_read_b64 {vr(YR+8*i+2*pw,2)}, v{vYr} offset:{8192*pw+512*i}')
            y_id.append(self.nlg)
        for i in range(4):
            e(f's_waitcnt {self.wlg(y_id[i])}')
            for ch in range(2):
                y = YR+8*i+4*ch
                e(f'v_pk_add_f32 {vr(y,2)}, {vr(y,2)}, {vr(y+2,2)}')
            for ch in range(2):
                y = YR+8*i+4*ch
                e(f'v_pk_fma_f32 {vr(y,2)}, {vr(y,2)}, {sp(sM+4)}, {vr(HF+4*i+2*ch,2)} op_sel:[0,{ch},0] op_sel_hi:[1,{ch},1]')
            for r in range(2):
                e(f'v_cvt_pk_bf16_f32 v{ZG+4*i+r}, v{YR+8*i+r}, v{YR+8*i+4+r}')
            id_z = e(f'buffer_store_dwordx4 {vr(ZG+4*i,4)}, v1, {SRD}, s{sT+6} offen offset:{1024*i} sc1')
        self.stamp('z_stored')
        wd_issue(self.opt('wd_zack', 4))
        XF = 36
        for r in range(2):
            for i in range(4):
                for x in self.unpack(XF+8*r+2*i, XR+4*r+i): e(x)
        vZ = 52; vH2 = 53; ZI = 72; vMsk = 54
        vP2 = 24; vXa = 25; vA2 = 26; vA4 = 27; vP3 = 23; vX2 = 22; vAc1 = 21; vC2 = 20
        c1 = -2*1.4426950408889634*0.7978845608028654; c2 = c1*0.044715
        e(f'''
        v_and_b32 v{t}, 0xfc, v0
        v_and_b32 v{t+2}, 0x30, v1
        s_movk_i32 s{sT}, {XBLK}
        v_mad_u32_u24 v{vZ}, v{t}, s{sT}, v{t+2}
        s_lshl_b32 s{sT}, s{sL}, 6
        s_add_u32 s{sT}, s{sT}, {ZY}
        s_add_u32 s{sT+1}, s{sT}, {XBLK}
        s_add_u32 s{sT+2}, s{sT}, {2*XBLK}
        s_add_u32 s{sT+3}, s{sT}, {3*XBLK}
        v_lshrrev_b32 v{t}, 3, v0
        v_and_b32 v{t+1}, 0x70, v1
        v_lshl_add_u32 v{vH2}, v{t}, 10, v{t+1}
        s_lshr_b32 s{sT+4}, s{sL}, 2
        s_lshl_b32 s{sT+4}, s{sT+4}, 7
        s_and_b32 s{sT+5}, s{sL}, 3
        s_add_u32 s{sT+4}, s{sT+4}, s{sT+5}
        s_lshl_b32 s{sT+4}, s{sT+4}, 8
        s_add_u32 s{sT+4}, s{sT+4}, {H2}
        s_mov_b32 s{sT+5}, {X2}
        v_mov_b32 v{vMsk}, s{sMask}
        s_lshl2_add_u32 s{sT+6}, s{sL}, s{sW}
        s_lshl_b32 s{sT+6}, s{sT+6}, 7
        s_add_u32 s{sT+6}, s{sT+6}, {F2}
        s_lshl2_add_u32 s0, s{sMt}, s{sW}
        s_lshl_b32 s{sT+7}, s0, 11
        s_add_u32 s{sT+7}, s{sT+7}, {F2}
        s_lshl_b32 s{sXg}, s0, 15
        s_add_u32 s{sXg}, s{sXg}, {H2}
        s_lshl4_add_u32 s0, s0, s{sNt}
        s_mul_i32 s0, s0, {7*1024}
        s_add_u32 s{sActS}, s0, {ACT}
        s_add_u32 s{sActS+1}, s0, {ACT+4096}
        s_lshl4_add_u32 s0, s{sMt}, s{sNt}
        s_lshl2_add_u32 s0, s0, s{sW}
        s_lshl_b32 s0, s0, 7
        s_add_u32 s{sF3o}, s0, {F3}
        s_lshl2_add_u32 s0, s{sMt}, s{sW}
        s_and_b32 s1, s{sTb}, 1
        s_lshl3_add_u32 s0, s0, s1
        s_lshl_b32 s0, s0, 8
        s_add_u32 s{sF3p}, s0, {F3}
        s_lshl3_add_u32 s0, s{sTb}, s{sW}
        s_mul_i32 s0, s0, {28*1024}
        s_add_u32 s{sActG}, s0, {ACT}
        s_waitcnt {self.wvm(id_z)}''')
        z_loads = '\n'.join(f'buffer_load_dwordx4 {vr(ZI+4*i,4)}, v{vZ}, {SRD}, s{sT+i} offen sc1' for i in range(4))
        id_zl = e(z_loads)
        e(f'''
        v_and_b32 v{vP2}, 15, v0
        v_lshlrev_b32 v{vP2}, 7, v{vP2}
        v_bfe_u32 v{t}, v0, 2, 3
        v_bfe_u32 v{t+3}, v0, 5, 1
        v_lshl_add_u32 v{t+2}, v{t+3}, 6, v{t+2}
        v_lshl_add_u32 v{vXa}, v{t}, 7, v{t+2}
        v_add_u32 v{vA2}, 65536, v1
        v_add_u32 v{vA4}, 131072, v1
        v_add_u32 v{vAc1}, {112*1024}, v1
        v_mov_b32 v{vC2}, {fbits(c2)}
        v_bfe_u32 v{t}, v0, 1, 2
        v_and_b32 v{t+2}, 1, v0
        v_lshlrev_b32 v{t+2}, 7, v{t+2}
        v_lshl_add_u32 v{vP3}, v{t}, 9, v{t+2}
        v_bfe_u32 v{t}, v0, 3, 2
        v_lshl_add_u32 v{t}, v{t}, 1, v{t+3}
        v_lshl_add_u32 v{t}, v{t}, 10, v{t+1}
        s_lshl3_add_u32 s0, s{sTb}, s{sW}
        s_lshl_b32 s0, s0, 6
        s_add_u32 s0, s0, s{sDt}
        s_lshl_b32 s0, s0, 7
        v_add_u32 v{vX2}, s0, v{t}''')
        self.check(z_loads, [ZI+3, ZI+7, ZI+11, ZI+15], id_zl)
        self.stamp('z_ok')
        wd_issue(self.opt('wd_ln2', 6))
        ZF = 88
        for i in range(4):
            for r in range(2):
                for x in self.unpack(ZF+8*r+2*i, ZI+4*i+r): e(x)
            for r in range(2):
                z = ZF+8*r+2*i; x = XF+8*r+2*i
                e(f'v_pk_add_f32 {vr(x,2)}, {vr(x,2)}, {vr(z,2)}')
            for r in range(2):
                x = XF+8*r+2*i
                e(f'v_cvt_pk_bf16_f32 v{XR+4*r+i}, v{x}, v{x+1}')
        unp = [x for r in range(2) for i in range(4) for x in self.unpack(XF+8*r+2*i, XR+4*r+i)]
        self.stats_partial(XR, t, vSBw, unp)
        unp = self.rest
        for r in range(2):
            e(f'buffer_store_dwordx4 {vr(XR+4*r,4)}, v{vXO}, {SRD}, s{sT+5} offen offset:{1024*r} sc1')
        for x in unp: e(x)
        e('s_waitcnt lgkmcnt(0)\ns_barrier')
        ST = 56
        self.stats_read(ST, vSBr)
        GBV = 12
        for i in range(4):
            for kind in range(2):
                d = ZF+8*kind+2*i
                qp = f'quad_perm:[{kind},{kind},{kind},{kind}] row_mask:0xf bank_mask:0xf'
                e(f'v_cvt_f32_bf16_dpp v{d}, v{ZI+4*i+2} {qp}\nv_and_b32_dpp v{d+1}, v{ZI+4*i+2}, v{vMsk} {qp}')
        e('s_waitcnt lgkmcnt(0)')
        self.stats_finish(ST, vInv)
        HO = 104
        for r in range(2):
            for i in range(4):
                x = XF+8*r+2*i
                e(f'v_pk_fma_f32 {vr(x,2)}, {vr(x,2)}, {vr(ST+2*r,2)}, {vr(ST+2*r,2)} op_sel:[0,0,1] op_sel_hi:[1,0,1]')
            for i in range(4):
                x = XF+8*r+2*i
                e(f'v_pk_fma_f32 {vr(x,2)}, {vr(x,2)}, {vr(ZF+2*i,2)}, {vr(ZF+8+2*i,2)}')
            for i in range(4):
                x = XF+8*r+2*i
                e(f'v_cvt_pk_bf16_f32 v{HO+4*r+i}, v{x}, v{x+1}')
            id_h = e(f'buffer_store_dwordx4 {vr(HO+4*r,4)}, v{vH2}, {SRD}, s{sT+4} offen offset:{128*r} sc1')
        self.stamp('h2_stored')
        for i in range(4): e(f'v_mov_b32 v{GBV+i}, v{ZI+4*i+2}')
        e(f's_waitcnt {self.wvm(id_h)}')
        id_fl = e(self.flag_text(vF, sT+6))
        self.stamp('_h2_ack')
        for x in self.dma_tile(3,3): id_t3 = e(x)
        e(f's_barrier\ns_waitcnt {self.wvm(id_fl)}')
        f2_load = f'buffer_load_dword v{vPolled}, v{vP2}, {SRD}, s{sT+7} offen sc1'
        id_f2 = e(f2_load)
        X = 128
        AC = [28, 44, 60, 76]
        WF = 92; NB = 6; LA = 4
        GT = 116; GO = 16; X2R = 4
        P1 = self.opt('p1', 3)
        seq = [(tl, s) for s in range(32) for tl in range(P1)] + [(tl, s) for tl in range(P1,7) for s in range(32)]
        slot = {0:0,1:1,2:2,3:3,4:4,5:0,6:1}
        acc = {tl: AC[tl % 4] for tl in range(7)}
        def wread(n):
            tl, s = seq[n]; sl = slot[tl]
            va = {0:1,1:1,2:vA2,3:vA2,4:vA4}[sl]
            return f'ds_read_b128 {vr(WF+4*(n%NB),4)}, v{va} offset:{(sl&1 if sl<4 else 0)*32768 + 1024*s}'
        for n in range(LA): e(wread(n))
        self.check(f2_load, [vPolled], id_f2)
        self.stamp('f2_ok')
        x_id = []
        def xload():
            s = len(x_id)
            x_id.append(e(f'buffer_load_dwordx4 {vr(X+4*s,4)}, v{vXa}, {SRD}, s{sXg} offen offset:{1024*(s&3)} sc1'))
            if s & 3 == 3 and s < 31: e(f's_add_u32 s{sXg}, s{sXg}, 4096')
        XLA = self.opt('xla', 8)
        for s in range(XLA): xload()
        def gelu(tl):
            a = acc[tl]; out = []
            for hf in range(2):
                E = [a+4*hf+j for j in range(4)]
                out += [f'v_mul_f32 v{GT+j}, v{E[j]}, v{E[j]}' for j in range(4)]
                out += [f'v_fmaak_f32 v{GT+j}, v{GT+j}, v{vC2}, {fbits(c1)}' for j in range(4)]
                out += [f'v_mul_f32 v{GT+j}, v{GT+j}, v{E[j]}' for j in range(4)]
                for j in range(4): out += [f'v_exp_f32 v{GT+j}, v{GT+j}', f'v_mul_f32 v{E[j]+8}, v{E[j]+8}, v{E[j]}']
                for j in range(4): out += [f'v_add_f32 v{GT+j}, 1.0, v{GT+j}']
                for j in range(4): out += [f'v_rcp_f32 v{GT+j}, v{GT+j}']
                for j in range(4): out += [f'v_mul_f32 v{E[j]+8}, v{E[j]+8}, v{GT+j}']
                out += [f'v_cvt_pk_bf16_f32 v{GO+2*hf+j}, v{E[2*j]+8}, v{E[2*j+1]+8}' for j in range(2)]
            out.append(f'buffer_store_dwordx4 {vr(GO,4)}, v1, {SRD}, s{sActS+(tl>>2)} offen offset:{1024*(tl&3)} sc1')
            return [(x, tl) for x in out]
        last = {tl: max(n for n, (a_, _) in enumerate(seq) if a_ == tl) for tl in range(7)}
        first = {tl: min(n for n, (a_, _) in enumerate(seq) if a_ == tl) for tl in range(7)}
        gq = []; vq = []; dma_id = {3: id_t3}; st_id = {}; st_n = {}
        a_id = []
        def aload():
            kk = len(a_id); T, tt = korder[kk >> 1], kk & 1
            if tt == 0: e(f's_add_u32 s{sActT}, s{sActG}, {T*1024}')
            a_id.append(e(f'buffer_load_dwordx4 {vr(X+4*(kk%32),4)}, v{vAc1 if tt else 1}, {SRD}, s{sActT} offen sc1'))
        ACKD = self.opt('ackd', 22); VISD = self.opt('visd', 20); POLD = self.opt('pold', 12)
        flagged = 0; polled = 0; checked = 0; flag_n = {}; poll_n = {}; poll_id = {}
        gend = [sum(len(g) for g in groups[:i+1])*8 for i in range(len(groups))]
        PV3 = [120, 121, 122]
        def f3load(g): return f's_add_u32 s0, s{sF3p}, {g*F3S}\nbuffer_load_dword v{PV3[g]}, v{vP3}, {SRD}, s0 offen sc1'
        def progress(n, force=None):
            nonlocal flagged, polled, checked
            did = False
            if flagged < len(groups) and groups[flagged][-1] in st_id and (n >= st_n[groups[flagged][-1]] + ACKD or force is not None and force >= flagged):
                e(f's_add_u32 s0, s{sF3o}, {flagged*F3S}\ns_waitcnt {self.wvm(st_id[groups[flagged][-1]])}\n' + self.flag_text(vF, 0))
                flag_n[flagged] = n; flagged += 1; did = True
                if force is not None and force >= flagged-1: e(f's_waitcnt {self.wvm(self.nvm)}')
            if polled < flagged and (n >= flag_n[polled] + VISD or force is not None and force >= polled):
                poll_id[polled] = e(f3load(polled)); poll_n[polled] = n; polled += 1; did = True
            if checked < polled and (n >= poll_n[checked] + POLD or force is not None and force >= checked):
                self.check(f3load(checked), [PV3[checked]], poll_id[checked]); checked += 1; did = True
                self.stamp(f'_f3{checked-1}')
            return did
        vpace = self.opt('vpace', 2)
        grate = self.opt('grate', 10)
        for n, (tl, s) in enumerate(seq):
            if n in (1, 48, 96, 128, 160, 192): self.stamp(f'_g{n}')
            if n == last[1] + 1:
                e('s_barrier')
                vq += [(x,'d5') for x in self.dma_tile(5,0)] + [(x,'d6') for x in self.dma_tile(6,1)]
                vq += [(f's_mov_b32 s0, {X2}\nbuffer_load_dwordx4 {vr(X2R,4)}, v{vX2}, {SRD}, s0 offen sc1','x2'),
                       (f's_mov_b32 s0, {X2+32768}\nbuffer_load_dwordx4 {vr(X2R+4,4)}, v{vX2}, {SRD}, s0 offen sc1','x2')]
            for a_ in range(6):
                if n == last[a_] + 4: gq += gelu(a_)
            for a_ in (3,4,5,6):
                if n == first[a_] - LA:
                    while a_ not in dma_id or any(kd == f'd{a_}' for _, kd in vq):
                        x, kd = vq.pop(0); i_ = e(x)
                        if kd[0] == 'd': dma_id[int(kd[1])] = i_
                    e(f's_waitcnt {self.wvm(dma_id[a_])}\ns_barrier')
            w_ = f'lgkmcnt({min(LA-1, len(seq)-1-n)})'
            if tl == 0: w_ = self.wvm(x_id[s]) + ' ' + w_
            e(f's_waitcnt {w_}')
            if s == 0: assert not any(b_ == tl-4 for _, b_ in gq), (n, len(gq))
            c_ = '0' if s == 0 else vr(acc[tl],16)
            e(f'v_mfma_f32_32x32x16_bf16 {vr(acc[tl],16)}, {vr(WF+4*(n%NB),4)}, {vr(X+4*s,4)}, {c_}')
            if n + LA < len(seq): e(wread(n+LA))
            budget = (grate*(n+1))//3 - (grate*n)//3
            if progress(n): budget -= 2
            elif len(x_id) < 32:
                if tl == 0:
                    xload()
                    if len(x_id) == 32: vq += [(x,'d4') for x in self.dma_tile(4,4)]
            elif n % vpace == 0:
                if tl == 6 and checked and len(a_id) < min(s, gend[checked-1]): aload()
                elif vq:
                    x, kd = vq.pop(0); i_ = e(x)
                    if kd[0] == 'd': dma_id[int(kd[1])] = i_
                else: wd_issue(1)
            while gq and budget > 0:
                x, b_ = gq.pop(0); budget -= 1
                i_ = e(x)
                if x.startswith('buffer_'): st_id[b_] = i_; st_n[b_] = n
        assert not vq
        self.stamp('g1_mfma')
        n = len(seq)
        e(f'''
        v_and_b32 v{WF}, 3, v0
        v_cmp_eq_u32 vcc, 2, v{WF}
        v_and_b32 v{WF+1}, 0xfc, v0
        v_lshlrev_b32 v{WF+1}, 2, v{WF+1}
        v_add_u32 v{WF+1}, {L_GB}, v{WF+1}
        s_mov_b64 exec, vcc
        ds_write_b128 v{WF+1}, {vr(GBV,4)}
        s_mov_b64 exec, -1''')
        cnt = 0
        for x, b_ in gq + gelu(6):
            i_ = e(x); cnt += 1
            if x.startswith('buffer_'): st_id[b_] = i_; st_n[b_] = n
            if cnt % 8 == 0:
                n += 1
                if not progress(n) and checked and len(a_id) < min(32, gend[checked-1]): aload()
        self.stamp('gelu6')
        A2 = 28
        vRw = 12; vRr = 13; vG = 14
        fill = f'''v_bfe_u32 v{WF}, v0, 5, 1
        v_and_b32 v{WF+1}, 0x1f0, v1
        s_mul_i32 s{sT}, s{sW}, {4*RQ}
        s_add_u32 s{sT}, s{sT}, {L_RED}
        v_mul_u32_u24 v{WF}, {RSA}, v{WF}
        v_add3_u32 v{vRw}, v{WF}, v{WF+1}, s{sT}
        v_and_b32 v{WF}, 7, v0
        v_lshrrev_b32 v{WF+1}, 3, v0
        v_mul_u32_u24 v{WF+2}, {RSA}, v{WF}
        v_lshl_add_u32 v{vRr}, v{WF+1}, 4, v{WF+2}
        v_add_u32 v{vRr}, {L_RED}, v{vRr}
        s_lshl_b32 s{sT}, s{sDt}, 7
        s_add_u32 s{sT}, s{sT}, {L_GB}
        v_lshl_add_u32 v{vG}, v{WF}, 4, s{sT}
        s_add_u32 s{sT+2}, s{pOut}, 32768
        s_addc_u32 s{sT+3}, s{pOut+1}, 0'''.split('\n')
        XF2 = 96
        for tt in range(2):
            for j in range(4):
                fill += [f'v_lshlrev_b32 v{XF2+8*tt+j}, 16, v{X2R+4*tt+j}', f'v_and_b32 v{XF2+8*tt+4+j}, s{sMask}, v{X2R+4*tt+j}']
        TAILK = self.opt('tailk', 4)
        o2 = [(kk, tt) for kk in range(28-TAILK) for tt in range(2)] + [(kk, tt) for tt in range(2) for kk in range(28-TAILK, 28)]
        ALA = self.opt('ala', 10)
        consumed = set(); wq = []
        for m_, (kk, tt) in enumerate(o2):
            f = 2*kk + tt; T = korder[kk]
            if m_ in (0, 14, 28, 42): self.stamp(f'_h{m_}')
            while len(wd_id) < 2*kk+2: wd_issue(1)
            while len(a_id) <= f:
                g = min(i for i in range(len(groups)) if gend[i] > len(a_id))
                while checked <= g: progress(n, force=g)
                assert len(a_id) < 32 or len(a_id)-32 in consumed
                aload()
            e(f's_waitcnt {self.wvm(max(a_id[f], wd_id[2*kk+1]))}')
            for c in range(2):
                a = A2 + 32*tt + 16*c
                e(f'v_mfma_f32_32x32x16_bf16 {vr(a,16)}, {ar(8*T+4*c,4)}, {vr(X+4*(f%32),4)}, {"0" if kk==0 else vr(a,16)}')
                n += 1
                if progress(n): pass
                elif len(a_id) < 56 and len(a_id) < gend[checked-1] and len(a_id) <= f + ALA and (len(a_id) < 32 or len(a_id)-32 in consumed): aload()
                elif wdq: wd_issue(1)
                if wq and m_ >= 57-TAILK:
                    e(wq.pop(0))
                    if wq: e(wq.pop(0))
                for _ in range(3):
                    if fill: e(fill.pop(0))
            consumed.add(f)
            if m_ == 55-TAILK:
                wq = [f'ds_write_b128 v{vRw}, {vr(A2+16*c+4*i,4)} offset:{c*RQ+2*RSA*i}' for c in range(2) for i in range(4)]
        self.stamp('g2_mfma')
        for x in wq: e(x)
        for c in range(2):
            for i in range(4): e(f'ds_write_b128 v{vRw}, {vr(A2+32+16*c+4*i,4)} offset:{(2+c)*RQ+2*RSA*i}')
        e('s_waitcnt lgkmcnt(0)\ns_barrier')
        GF = 112; RD = 128; r_id = []
        e(f'ds_read_b128 {vr(GF+8,4)}, v{vG}'); g_id = self.nlg
        e(f'v_add_u32 v{vRw}, {8*RQ}, v{vRr}')
        for q_ in range(4):
            for w in range(4):
                e(f'ds_read_b128 {vr(RD+16*q_+4*w,4)}, v{vRr if w<2 else vRw} offset:{(4*(w&1)+q_)*RQ}')
            r_id.append(self.nlg)
            if q_ == 2:
                e(f's_waitcnt {self.wlg(g_id)}')
                for j in range(4): e(f'v_lshlrev_b32 v{GF+j}, 16, v{GF+8+j}\nv_and_b32 v{GF+4+j}, s{sMask}, v{GF+8+j}')
        OO = 28
        for tt in range(2):
            for c in range(2):
                q_ = 2*tt+c; r = RD+16*q_
                e(f's_waitcnt {self.wlg(r_id[q_])}')
                for hh in range(2):
                    e(f'v_pk_add_f32 {vr(r+2*hh,2)}, {vr(r+2*hh,2)}, {vr(r+4+2*hh,2)}\nv_pk_add_f32 {vr(r+8+2*hh,2)}, {vr(r+8+2*hh,2)}, {vr(r+12+2*hh,2)}')
                for hh in range(2):
                    e(f'v_pk_add_f32 {vr(r+2*hh,2)}, {vr(r+2*hh,2)}, {vr(r+8+2*hh,2)}')
                for hh in range(2):
                    e(f'v_pk_fma_f32 {vr(r+2*hh,2)}, {vr(r+2*hh,2)}, {vr(GF+4*c+2*hh,2)}, {vr(XF2+8*tt+4*c+2*hh,2)}')
            for j in range(4):
                e(f'v_cvt_pk_bf16_f32 v{OO+4*tt+j}, v{RD+32*tt+j}, v{RD+32*tt+16+j}')
            e(f'global_store_dwordx4 v{vX2}, {vr(OO+4*tt,4)}, {sp(pOut) if tt==0 else sp(sT+2)} {self.opt("outflag","sc1").replace("_"," ").replace("none","")}')
        self.stamp('end')
        e(f'''
        s_or_b32 s0, s{sL}, s{sW}
        s_cbranch_scc1 L_noep''')
        e(self.flag_text(vF, 0))
        e('L_noep:')
        if self.stamps:
            e(f'''
            s_lshl2_add_u32 s{sT}, s{sL}, s{sW}
            s_lshl_b32 s{sT}, s{sT}, 7
            s_add_u32 s{sT}, s{sT}, {STMP}
            v_mov_b32 v4, 0
            s_mov_b64 exec, 1''')
            for i in range(self.ns):
                e(f'v_mov_b32 v5, s{sStamp+i}\nbuffer_store_dword v5, v4, {SRD}, s{sT} offen offset:{4*i}')
            e(f'v_mov_b32 v5, s{sCnt}\nbuffer_store_dword v5, v4, {SRD}, s{sT} offen offset:124')
        if self.o.get('probe') is not None:
            kk = self.stamp_names.index(self.o['probe'])
            e(f'''
            s_add_u32 s{sT}, s{sStamp+kk}, 5000
            L_spin:
            s_sleep 1
            s_memrealtime s[22:23]
            s_waitcnt lgkmcnt(0)
            s_sub_u32 s{sT+1}, s22, s{sT}
            s_cmp_lt_i32 s{sT+1}, 0
            s_cbranch_scc1 L_spin''')
        e('s_endpgm')
        for x in self.tail: e(x)
        e('L_end:\ns_endpgm')
        p.end(k, vgpr=256, agpr=256, sgpr=102)
        p.text, added = hazard.fix(p.text, verbose=self.o.get('verbose'))
        return added

if __name__ == '__main__':
    ap = argparse.ArgumentParser()
    ap.add_argument('out'); ap.add_argument('--stamps', action='store_true'); ap.add_argument('-v', action='store_true')
    ap.add_argument('--probe', default=None); ap.add_argument('-o', action='append', default=[])
    a = ap.parse_args()
    opts = dict(verbose=a.v, probe=a.probe)
    for kv in a.o:
        kk, vv = kv.split('='); opts[kk] = int(vv) if vv.lstrip('-').isdigit() else vv
    g = G(a.stamps or a.probe is not None, opts)
    added = g.build()
    g.p.dump(a.out, single=True)
    n = sum(1 for l in g.p.text if l.startswith('  '))
    print(a.out, 'instructions', n, 'nops added', added, 'stamps', g.stamp_names)
    if a.stamps: open(a.out + '.names', 'w').write(' '.join(g.stamp_names))
```

```python
import sys, struct, argparse
from asmlib import Prog, NAME
import hazard

def fbits(x): return '0x%08x' % struct.unpack('<I', struct.pack('<f', x))[0]

F1   = 0x010000
F2   = 0x020000
F3   = 0x040000
F3S  = 0x020000
MODP = 0x0C0000
XBLK = 16640
XH   = 0x140000
ZY   = 0x560000
H2   = 0x980000
X2   = 0xB80000
WGU  = 0xD80000
WD   = 0x1100000
ACT  = 0x12C0000
STMP = 0x3000000
WS_BYTES = 0x10000000
S4   = 131072
L_U  = S4; USZ = 4608
L_P  = S4 + 2*USZ; PSZ = 8256
L_SB = L_P + 2*PSZ
L_Y  = 98304
L_MB = 98304
RST  = 544
L_KH = 0; KHSZ = 10240
L_RC = 2*KHSZ; RCSZ = 64*RST
L_RED = 65536; RSA = 576; RQ = 8*RSA
L_GB = L_RED + 16*RQ
LDS_BYTES = 163840
pX,pAre,pAim,pBre,pBim,pCre,pCim,pLdt = 4,6,8,10,12,14,16,18
pD,pWg,pWu,pWd,pC,pWm,pOut,pWs = 20,24,26,28,30,32,34,38
SRD='s[40:43]'
sL,sW,sTag,sMask,sCnt = 44,45,46,47,48
sLo,sHi = 49,50
sOnes = 51
sMt,sNt,sTb,sDt = 52,53,54,55
sBad = 56
sT = 58
sM = 68
sDsk = 80
sStamp = 82
sDmaL, sDmaG, sDmaT = 4, 5, 6
sWdG, sWdT = 7, 8
sActG, sActT = 9, 10
sActS = 12
sF3o, sF3p = 14, 15
sXg = 16
def sp(i): return f's[{i}:{i+1}]'
def vr(i, n): return f'v[{i}:{i+n-1}]'
def ar(i, n): return f'a[{i}:{i+n-1}]'

class G:
    def __init__(self, stamps=False, opts=None):
        self.p = Prog(); self.stamps = stamps; self.ns = 0; self.o = opts or {}
        self.stamp_names = []; self.nvm = 0; self.nlg = 0; self.tail = []; self.maybe = False
    def opt(self, k, d): return self.o.get(k, d)
    def e(self, s):
        for line in s.split('\n'):
            l = line.strip()
            if not l: continue
            if l.startswith(('buffer_', 'global_')) and not self.maybe: self.nvm += 1
            if l.startswith('ds_') and not self.maybe: self.nlg += 1
            self.p.e(l)
        return self.nvm
    def wvm(self, i): return f'vmcnt({min(63, self.nvm - i)})'
    def wlg(self, i): return f'lgkmcnt({min(15, self.nlg - i)})'
    def stamp(self, name):
        if not self.stamps: return
        if self.o.get('probe') is not None and name != self.o['probe']: return
        if self.o.get('only') and not (name == 'start' or name.startswith(tuple(self.o['only'].split(',')))): return
        if not self.o.get('only') and self.o.get('probe') is None and name.startswith('_'): return
        assert self.ns < 20
        self.e(f's_memrealtime s[22:23]\ns_waitcnt lgkmcnt(0)\ns_mov_b32 s{sStamp+self.ns}, s22')
        self.ns += 1; self.stamp_names.append(name)

    def check_text(self, loads, tags, last):
        Lc = self.p.label('chk'); Lr = self.p.label('retry')
        s = f's_waitcnt {self.wvm(last)}\n{Lc}:\n'
        if len(tags) == 1:
            s += f'v_cmp_ne_u32 vcc, v{tags[0]}, v2\ns_cmp_lg_u64 vcc, 0\ns_cbranch_scc1 {Lr}'
            self.tail.append(f'''{Lr}:
            s_sub_u32 s{sCnt}, s{sCnt}, 1
            s_cbranch_scc1 L_end
            {loads}
            s_waitcnt vmcnt(0)
            s_branch {Lc}''')
        else:
            s += f'v_cmp_ne_u32 {sp(sBad)}, v{tags[0]}, v2\n'
            for t in tags[1:]: s += f'v_cmp_ne_u32 vcc, v{t}, v2\ns_or_b64 {sp(sBad)}, {sp(sBad)}, vcc\n'
            s += f's_cbranch_scc1 {Lr}'
            self.tail.append(f'''{Lr}:
            s_sub_u32 s{sCnt}, s{sCnt}, 1
            s_cbranch_scc1 L_end
            s_mov_b64 exec, {sp(sBad)}
            {loads}
            s_mov_b64 exec, -1
            s_waitcnt vmcnt(0)
            s_branch {Lc}''')
        return s
    def check(self, loads, tags, last): self.e(self.check_text(loads, tags, last))

    def flag_text(self, vaddr, soff):
        return f's_mov_b32 exec_hi, 0\nbuffer_store_dword v2, v{vaddr}, {SRD}, s{soff} offen sc1\ns_mov_b32 exec_hi, -1'

    def stats_partial(self, src, t, vSBw, fill=()):
        a,b,c,d = t,t+1,t+2,t+3
        for m in range(4):
            acc = lambda r: '0' if m == 0 else f'v{r}'
            self.e(f'''v_dot2_f32_bf16 v{a}, v{src+m}, s{sOnes}, {acc(a)}
            v_dot2_f32_bf16 v{b}, v{src+4+m}, s{sOnes}, {acc(b)}
            v_dot2_f32_bf16 v{c}, v{src+m}, v{src+m}, {acc(c)}
            v_dot2_f32_bf16 v{d}, v{src+4+m}, v{src+4+m}, {acc(d)}''')
        self.reduce4(a,b,c,d, fill)
        self.e(f'ds_write_b32 v{vSBw}, v{a}')
    def reduce4(self, a,b,c,d, fill=()):
        fill = list(fill)
        def f(n):
            for _ in range(n):
                if fill: self.e(fill.pop(0))
        f(2); self.e(f'v_permlane32_swap_b32 v{a}, v{b}\nv_permlane32_swap_b32 v{c}, v{d}\nv_add_f32 v{a}, v{a}, v{b}\nv_add_f32 v{c}, v{c}, v{d}')
        f(2); self.e(f'v_permlane16_swap_b32 v{a}, v{c}\nv_add_f32 v{a}, v{a}, v{c}')
        f(2); self.e(f'v_add_f32_dpp v{a}, v{a}, v{a} row_ror:4 row_mask:0xf bank_mask:0xf')
        f(2); self.e(f'v_add_f32_dpp v{a}, v{a}, v{a} row_ror:8 row_mask:0xf bank_mask:0xf')
        self.rest = fill
    def stats_read(self, t, vSBr):
        for w in range(4): self.e(f'ds_read_b128 {vr(t+4*w,4)}, v{vSBr} offset:{16*w}')
        return self.nlg
    def stats_finish(self, t, vInv):
        self.e(f'''
        v_pk_add_f32 {vr(t,2)}, {vr(t,2)}, {vr(t+4,2)}
        v_pk_add_f32 {vr(t+2,2)}, {vr(t+2,2)}, {vr(t+6,2)}
        v_pk_add_f32 {vr(t+8,2)}, {vr(t+8,2)}, {vr(t+12,2)}
        v_pk_add_f32 {vr(t+10,2)}, {vr(t+10,2)}, {vr(t+14,2)}
        v_pk_add_f32 {vr(t,2)}, {vr(t,2)}, {vr(t+8,2)}
        v_pk_add_f32 {vr(t+2,2)}, {vr(t+2,2)}, {vr(t+10,2)}
        v_pk_mul_f32 {vr(t+4,2)}, {vr(t,2)}, {vr(vInv,2)} op_sel_hi:[1,0]
        v_pk_mul_f32 {vr(t+6,2)}, {vr(t+2,2)}, {vr(vInv,2)} op_sel_hi:[1,0]
        v_fma_f32 v{t+5}, -v{t+4}, v{t+4}, v{t+5}
        v_fma_f32 v{t+7}, -v{t+6}, v{t+6}, v{t+7}
        v_max_f32 v{t+5}, 0, v{t+5}
        v_max_f32 v{t+7}, 0, v{t+7}
        v_add_f32 v{t+5}, v{vInv+1}, v{t+5}
        v_add_f32 v{t+7}, v{vInv+1}, v{t+7}
        v_rsq_f32 v{t}, v{t+5}
        v_rsq_f32 v{t+2}, v{t+7}
        v_mul_f32 v{t+1}, -v{t+4}, v{t}
        v_mul_f32 v{t+3}, -v{t+6}, v{t+2}''')
    def cmul(self, d, a, b):
        return [f'v_pk_mul_f32 {vr(d,2)}, {vr(a,2)}, {vr(b,2)} op_sel_hi:[1,0]',
                f'v_pk_fma_f32 {vr(d,2)}, {vr(a,2)}, {vr(b,2)}, {vr(d,2)} op_sel:[1,1,0] op_sel_hi:[0,1,1] neg_lo:[1,0,0]']
    def unpack(self, d, s): return [f'v_lshlrev_b32 v{d}, 16, v{s}', f'v_and_b32 v{d+1}, s{sMask}, v{s}']

    def dma_tile(self, i, slot):
        out = []
        for hf in range(2):
            for e_ in range(4):
                pre = ''
                if e_ == 0:
                    pre = (f's_add_u32 m0, s{sDmaL}, {slot*32768 + hf*4096}\n'
                           f's_add_u32 s{sDmaT}, s{sDmaG}, {i*32768 + hf*4096}\n')
                out.append(pre + f'buffer_load_dwordx4 v1, {SRD}, s{sDmaT} offen offset:{e_*1024} sc1 lds')
        return out

    def build(self):
        p = self.p; e = self.e
        k = NAME + '_kernel'
        p.add_launch(k, 256, 256, LDS_BYTES)
        p.begin(k)
        XR = 4; WM = 12; AB = 28; WG = 34; WDr = 50; EA = 58
        vXO = 3; t = 68
        vInv = 118; vSBw, vSBr = 120, 121; vWgS = 122; vDt = 123; vS = 124; vF = 126; vPolled = 127
        groups = [(0,1,2),(3,4),(5,6)]
        korder = [7*pp + i for g in groups for i in g for pp in range(4)]
        wdq = []
        for T in korder:
            for c in range(2):
                wdq.append((f's_add_u32 s{sWdT}, s{sWdG}, {T*2048}\n' if c == 0 else '') +
                           f'buffer_load_dwordx4 {ar(8*T+4*c,4)}, v1, {SRD}, s{sWdT} offen offset:{1024*c} sc1')
        wd_id = []
        def wd_issue(n):
            for _ in range(n):
                if wdq: wd_id.append(e(wdq.pop(0)))
        e(f'''
        s_load_dwordx16 s[4:19], s[0:1], 0
        s_load_dwordx16 s[20:35], s[0:1], 64
        s_load_dwordx4 s[36:39], s[0:1], 128
        s_cmp_ge_u32 s2, 256
        s_cbranch_scc1 L_end
        v_lshrrev_b32 v{t}, 6, v0
        v_and_b32 v{t+1}, 63, v0
        v_readfirstlane_b32 s{sW}, v{t}
        s_lshr_b32 s3, s2, 3
        s_getpc_b64 {sp(sM)}
        L_pc:
        s_lshl2_add_u32 s{sT}, s3, s{sW}
        s_lshl_b32 s{sM+2}, s{sT}, 8
        s_min_u32 s{sM+2}, s{sM+2}, L_end-L_pc-256
        v_lshl_add_u32 v{t+7}, v{t+1}, 2, s{sM+2}
        global_load_dword v{vPolled}, v{t+7}, {sp(sM)}
        s_and_b32 s{sT+1}, s2, 7
        s_lshl_b32 s{sL}, s{sT+1}, 5
        s_or_b32 s{sL}, s{sL}, s3
        v_lshlrev_b32 v1, 4, v{t+1}
        v_and_b32 v{t+2}, 3, v0
        v_and_b32 v{t+3}, 0xfc, v0
        s_lshl_b32 s{sT+3}, s{sL}, 13
        v_lshl_add_u32 v{t+3}, v{t+3}, 2, s{sT+3}
        v_lshl_add_u32 v{vXO}, v{t+2}, 11, v{t+3}
        v_lshrrev_b32 v{t+4}, 3, v{t+1}
        v_min_u32 v{t+4}, 5, v{t+4}
        v_and_b32 v{t+5}, 0x70, v1
        v_lshl_add_u32 v{t+4}, v{t+4}, 10, v{t+5}
        s_lshl_b32 s{sT+2}, s{sT}, 3
        s_mul_i32 s{sT}, s{sT}, {4*6144}
        s_lshl_b32 s{sT+1}, s{sT+1}, 7
        s_add_u32 s{sT}, s{sT}, s{sT+1}
        s_add_u32 s{sT}, s{sT}, 3072
        v_add_u32 v{t+4}, s{sT}, v{t+4}
        v_add_u32 v{t+5}, 12288, v{t+4}
        s_lshl_b32 s{sT}, s{sL}, 9
        v_lshl_add_u32 v{t+6}, v0, 1, s{sT}
        s_lshl_b32 s{sT+3}, s{sL}, 2
        ''')
        for i in range(6): e(f'v_mov_b32 v{AB+i}, 0')
        e('s_waitcnt lgkmcnt(0)')
        self.stamp('start')
        e(f'''
        s_load_dwordx2 {sp(sT+4)}, {sp(pC)}, s{sT+2}
        global_load_dwordx4 {vr(XR,4)}, v{vXO}, {sp(pX)}''')
        id_x = e(f'global_load_dwordx4 {vr(XR+4,4)}, v{vXO}, {sp(pX)} offset:1024')
        id_wm = e(f'''
        s_load_dword s{sT+6}, {sp(pLdt)}, s{sT+3}
        s_load_dword s{sDsk+1}, {sp(pD)}, s{sT+3}
        global_load_dwordx4 {vr(WM,4)}, v{t+4}, {sp(pWm)} offset:-3072
        global_load_dwordx4 {vr(WM+4,4)}, v{t+4}, {sp(pWm)} offset:3072
        global_load_dwordx4 {vr(WM+8,4)}, v{t+5}, {sp(pWm)} offset:-3072
        global_load_dwordx4 {vr(WM+12,4)}, v{t+5}, {sp(pWm)} offset:3072''')
        id_ep = e(f'global_load_dword v2, v{AB}, {sp(pWs)} sc1')
        for i, ptr in enumerate([pAre,pAim,pBre,pBim,pCre,pCim]):
            id_ab = e(f'global_load_short_d16_hi v{AB+i}, v{t+6}, {sp(ptr)}')
        GR = 144
        e(f'''
        s_mov_b32 s{sMask}, 0xffff0000
        s_mov_b32 s{sLo}, 0x05040100
        s_mov_b32 s{sHi}, 0x07060302
        s_mov_b32 s{sOnes}, 0x3f803f80
        v_lshrrev_b32 v{t+7}, 4, v{t+1}
        v_lshlrev_b32 v{vSBr}, 6, v{t+2}
        v_add_u32 v{vSBr}, {L_SB}, v{vSBr}
        s_lshl_b32 s{sT}, s{sW}, 4
        v_lshl_add_u32 v{vSBw}, v{t+7}, 2, s{sT}
        v_add_u32 v{vSBw}, v{vSBw}, v{vSBr}
        v_mov_b32 v{t+12}, {fbits(-1.4426950408889634)}
        v_lshlrev_b32 v{t+4}, 5, v0
        v_add_u32 v{t+4}, {L_MB}, v{t+4}
        s_min_u32 s{sT}, s{sL}, 223
        s_lshl2_add_u32 s{sT}, s{sT}, s{sW}
        s_bitcmp1_b32 s{sT}, 0
        s_cselect_b32 s0, s{pWu}, s{pWg}
        s_cselect_b32 s1, s{pWu+1}, s{pWg+1}
        s_cselect_b32 s{sT+8}, 256, 0
        s_bfe_u32 s{sT+1}, s{sT}, 0x40001
        s_lshr_b32 s{sT+2}, s{sT}, 5
        s_mul_i32 s{sT+7}, s{sT+1}, {32*3584}
        s_lshl_b32 s{sT+3}, s{sT+2}, 7
        s_add_u32 s{sT+7}, s{sT+7}, s{sT+3}
        v_and_b32 v{t+8}, 15, v{t+1}
        v_mul_u32_u24 v{t+9}, {8*3584}, v{t+7}
        v_lshl_add_u32 v{t+10}, v{t+8}, 3, s{sT+7}
        v_add_u32 v{t+9}, v{t+10}, v{t+9}
        v_lshlrev_b32 v{vWgS}, 9, v{t+7}
        v_lshl_add_u32 v{vWgS}, v{t+8}, 4, v{vWgS}
        s_lshl_b32 s{sT+2}, s{sT+2}, 17
        s_lshl_b32 s{sT+1}, s{sT+1}, 11
        s_add_u32 s{sT+2}, s{sT+2}, s{sT+1}
        s_add_u32 s{sT+8}, s{sT+8}, s{sT+2}
        s_add_u32 s{sT+8}, s{sT+8}, {WGU}
        s_sub_u32 s{sT}, 255, s{sL}
        s_min_u32 s{sT}, s{sT}, 223
        s_and_b32 s{sT+1}, s{sT}, 7
        s_lshr_b32 s{sT+2}, s{sT}, 3
        s_lshl_b32 s{sT+3}, s{sT+2}, 6
        s_add_u32 s{sT+3}, s{sT+3}, s{sW}
        s_lshl3_add_u32 s{sT+3}, s{sT+3}, s{sT+1}
        s_add_u32 s{sT+3}, s{sT+3}, 32
        s_lshl_b32 s{sT+3}, s{sT+3}, 7
        v_lshrrev_b32 v{t+10}, 5, v{t+1}
        v_and_b32 v{t+11}, 31, v{t+1}
        v_lshl_add_u32 v{t+10}, v{t+10}, 14, s{sT+3}
        v_lshl_add_u32 v{t+10}, v{t+11}, 2, v{t+10}
        s_mul_i32 s{sT+1}, s{sT+1}, 112
        s_lshl2_add_u32 s{sT+2}, s{sT+2}, s{sW}
        s_add_u32 s{sT+1}, s{sT+1}, s{sT+2}
        s_lshl_b32 s{sT+1}, s{sT+1}, 11
        s_add_u32 s{sT+9}, s{sT+1}, {WD}
        s_waitcnt lgkmcnt(0)
        s_lshl_b32 s{sT}, s{sT+4}, 16
        s_and_b32 s{sT+1}, s{sT+4}, s{sMask}
        s_lshl_b32 s{sT+2}, s{sT+5}, 16
        s_and_b32 s{sT+3}, s{sT+5}, s{sMask}
        ''')
        self.stamp('_smem')
        vMBw, vMBr = t+4, t+5
        for i in range(4): e(f'v_mul_f32 v{t+13+i}, s{sT+i}, v{t+12}')
        for i in range(4): e(f'v_exp_f32 v{t+13+i}, v{t+13+i}')
        e(f'''
        s_lshl_b32 s{sT+4}, s{sT+6}, 16
        s_and_b32 s{sT+5}, s{sT+6}, s{sMask}
        s_cmp_ge_u32 s{sW}, 2
        s_cselect_b32 s{sT+4}, s{sT+5}, s{sT+4}''')
        for i in range(4): e(f'v_add_f32 v{t+13+i}, 1.0, v{t+13+i}')
        for i in range(4): e(f'v_rcp_f32 v{t+13+i}, v{t+13+i}')
        e(f'v_mul_f32 v{vDt}, s{sT+4}, -v{t+12}')
        for i in range(4): e(f'v_mul_f32 v{t+13+i}, s{sT+i}, v{t+13+i}')
        e(f'v_cvt_pk_bf16_f32 v{vS}, v{t+13}, v{t+14}\nv_cvt_pk_bf16_f32 v{vS+1}, v{t+15}, v{t+16}')
        for jj in range(8):
            e(f'global_load_dwordx2 {vr(WG+2*jj,2)}, v{t+9}, s[0:1] offset:{3584*(jj&1)}')
            if jj & 1 and jj < 7: e(f'v_add_u32 v{t+9}, 7168, v{t+9}')
        for jj in range(8):
            id_w = e(f'global_load_dword v{WDr+jj}, v{t+10}, {sp(pWd)} offset:{-4096 if jj&1==0 else 0}')
            if jj in (1,5): e(f'v_add_u32 v{t+10}, 8192, v{t+10}')
            if jj == 3: e(f'v_add_u32 v{t+10}, {32768-8192}, v{t+10}')
        late = f'''v_and_b32 v{t+5}, 1, v0
        v_bfe_u32 v{t+6}, v0, 1, 1
        v_mul_u32_u24 v{t+6}, 192, v{t+6}
        v_bfe_u32 v{t+7}, v0, 2, 5
        v_lshl_add_u32 v{t+5}, v{t+7}, 1, v{t+5}
        v_add_lshl_u32 v{t+5}, v{t+5}, v{t+6}, 2
        v_add_u32 v{t+5}, {L_MB}, v{t+5}
        v_exp_f32 v{vDt}, v{vDt}'''.split('\n')
        late2 = f'''s_mov_b32 s40, s{pWs}
        s_mov_b32 s41, s{pWs+1}
        s_mov_b32 s42, {WS_BYTES}
        s_mov_b32 s43, 0x20000
        s_mov_b32 s{sCnt}, 40000
        v_mov_b32 v{vInv}, {fbits(1/512)}
        v_mov_b32 v{vInv+1}, {fbits(1e-5)}
        s_mul_i32 s{sT}, s{sL}, {XBLK}
        s_lshl_b32 s{sT+1}, s{sW}, 12
        s_add_u32 s{sT+6}, s{sT}, s{sT+1}
        s_add_u32 s{sT+1}, s{sT+6}, {XH}
        s_lshl1_add_u32 s{sT+2}, s{sL}, s{sW}
        s_lshl_b32 s{sT+2}, s{sT+2}, 10
        s_add_u32 s{sT+2}, s{sT+2}, {MODP}
        s_mov_b32 s{sTag}, 1664525'''.split('\n')
        self.stamp('_pre_x')
        e(f's_waitcnt {self.wvm(id_x)}')
        self.stamp('x_arrived')
        XF = 128
        unp = [x for r in range(2) for i in range(4) for x in self.unpack(XF+8*r+2*i, XR+4*r+i)]
        self.stats_partial(XR, t, vSBw, late)
        assert not self.rest
        self.stamp('_stat1')
        e(f's_waitcnt {self.wvm(id_wm)}')
        self.stamp('_wm')
        MA = 76
        for h in range(2):
            for m in range(4):
                e(f'''v_perm_b32 v{t+16+2*m}, v{WM+8*h+4+m}, v{WM+8*h+m}, s{sLo}
                v_perm_b32 v{t+17+2*m}, v{WM+8*h+4+m}, v{WM+8*h+m}, s{sHi}''')
            for m in range(8):
                e(f'v_dot2_f32_bf16 v{MA+m}, v{t+16+m}, v{vS+h}, {"0" if h==0 else "v%d"%(MA+m)}')
        e(f'ds_write_b128 v{vMBw}, {vr(MA,4)}')
        e(unp.pop(0)); e(unp.pop(0))
        e(f'ds_write_b128 v{vMBw}, {vr(MA+4,4)} offset:16')
        for x in late2: e(x)
        e(f's_waitcnt {self.wvm(id_ep)} lgkmcnt(0)\ns_barrier')
        self.stamp('_bar0')
        ST = 84
        id_st = self.stats_read(ST, vSBr)
        MR = 100
        for w in range(0, 4, 2):
            for i in range(3):
                e(f'ds_read2st64_b32 {vr(MR+3*w+2*i,2)}, v{vMBr} offset0:{8*w+i} offset1:{8*w+8+i}')
        for x in unp: e(x)
        e(f'v_mul_lo_u32 v2, v2, s{sTag}\nv_add_u32 v2, 1013904223, v2')
        for i in range(4): e(f'v_mov_b32 v{GR+4*i+3}, v2')
        e(f's_waitcnt {self.wlg(id_st)}')
        self.stats_finish(ST, vInv)
        for i in range(4):
            for r in range(2):
                x = XF+8*r+2*i
                e(f'v_pk_fma_f32 {vr(x,2)}, {vr(x,2)}, {vr(ST+2*r,2)}, {vr(ST+2*r,2)} op_sel:[0,0,1] op_sel_hi:[1,0,1]')
            for r in range(2):
                x = XF+8*r+2*i
                e(f'v_cvt_pk_bf16_f32 v{GR+4*i+r}, v{x}, v{x+1}')
            e(f'buffer_store_dwordx4 {vr(GR+4*i,4)}, v1, {SRD}, s{sT+1} offen offset:{1024*i} sc1')
        e(f's_waitcnt lgkmcnt(0)\ns_cmp_ge_u32 s{sW}, 2\ns_cbranch_scc1 L_nomod')
        self.maybe = True
        e(f'''
        v_pk_add_f32 {vr(MR,2)}, {vr(MR,2)}, {vr(MR+6,2)}
        v_pk_add_f32 {vr(MR+2,2)}, {vr(MR+2,2)}, {vr(MR+8,2)}
        v_pk_add_f32 {vr(MR+4,2)}, {vr(MR+4,2)}, {vr(MR+10,2)}
        v_mov_b32 v{MR+11}, v2
        v_add_f32 v{MR+8}, v{MR}, v{MR+1}
        v_add_f32 v{MR+9}, v{MR+2}, v{MR+3}
        v_add_f32 v{MR+10}, v{MR+4}, v{MR+5}
        buffer_store_dwordx4 {vr(MR+8,4)}, v1, {SRD}, s{sT+2} offen sc1
        L_nomod:''')
        self.maybe = False
        self.stamp('e1_stored')
        e(f'v_cvt_pk_bf16_f32 v{vDt}, v{vDt}, v{vDt}\nv_lshrrev_b32 v{vF}, 2, v1\nv_lshlrev_b32 v{vDt}, 16, v{vDt}')
        e(f's_waitcnt {self.wvm(id_w)}')
        self.stamp('_warr')
        O = 160
        self.maybe = True
        e(f's_cmp_ge_u32 s{sL}, 224\ns_cbranch_scc1 L_nowg')
        for c in range(4):
            for m in range(4):
                e(f'v_perm_b32 v{O+4*c+m}, v{WG+2*(2*m+1)+(c>>1)}, v{WG+2*(2*m)+(c>>1)}, s{sHi if c&1 else sLo}')
            e(f'buffer_store_dwordx4 {vr(O+4*c,4)}, v{vWgS}, {SRD}, s{sT+8} offen sc1')
            if c < 3: e(f's_add_u32 s{sT+8}, s{sT+8}, 32768')
        e(f'L_nowg:\ns_cmp_lt_u32 s{sL}, 32\ns_cbranch_scc1 L_nowd')
        for c in range(2):
            for m in range(4):
                e(f'v_perm_b32 v{O+16+4*c+m}, v{WDr+2*m+1}, v{WDr+2*m}, s{sHi if c else sLo}')
            e(f'buffer_store_dwordx4 {vr(O+16+4*c,4)}, v1, {SRD}, s{sT+9} offen offset:{1024*c} sc1')
        e('L_nowd:')
        self.maybe = False
        self.stamp('_wjob')
        al, be = 68, 69
        Z1, Z8, Z256, Wc = 70, 72, 74, 76
        q = 78; vRW = 87
        e(f'''
        v_mul_f32 v{al}, v{vDt}, v{AB}
        v_mul_f32 v{be}, v{vDt}, v{AB+1}
        v_mul_f32 v{AB+2}, v{vDt}, v{AB+2}
        v_mul_f32 v{AB+3}, v{vDt}, v{AB+3}
        v_mul_f32 v{q}, {fbits(1.4426950408889634)}, v{al}
        v_mul_f32 v{q+1}, 0.15915494, v{be}
        v_mul_f32 v{Wc}, v{AB+4}, v{AB+2}
        v_mul_f32 v{Wc+1}, v{AB+4}, v{AB+3}
        v_mul_f32 v{q+3}, {fbits(8.0)}, v{q}
        v_mul_f32 v{q+4}, {fbits(8.0)}, v{q+1}
        v_mul_f32 v{q+6}, {fbits(256.0)}, v{q}
        v_mul_f32 v{q+7}, {fbits(256.0)}, v{q+1}
        v_fma_f32 v{Wc}, -v{AB+5}, v{AB+3}, v{Wc}
        v_fma_f32 v{Wc+1}, -v{AB+5}, v{AB+2}, -v{Wc+1}
        s_lshr_b32 s{sT+7}, s{sW}, 1
        s_mul_i32 s{sT}, s{sT+7}, {RCSZ}
        s_add_u32 s{sT}, s{sT}, {L_RC}
        ''')
        for n_ in range(3): e(f'v_exp_f32 v{q+3*n_}, v{q+3*n_}\nv_fract_f32 v{q+3*n_+1}, v{q+3*n_+1}')
        for n_ in range(3): e(f'v_sin_f32 v{q+3*n_+2}, v{q+3*n_+1}\nv_cos_f32 v{q+3*n_+1}, v{q+3*n_+1}')
        e(f'v_and_b32 v{vRW}, 127, v0\nv_lshl_add_u32 v{vRW}, v{vRW}, 2, s{sT}')
        for n_, (Z, conj) in enumerate([(Z1,True),(Z8,False),(Z256,True)]):
            e(f'v_mul_f32 v{Z}, v{q+3*n_}, v{q+3*n_+1}\nv_mul_f32 v{Z+1}, {"-" if conj else ""}v{q+3*n_}, v{q+3*n_+2}')
        def put(src, row, pk):
            return [f'v_cvt_pk_bf16_f32 v{pk}, v{src}, v{src+1}', f'ds_write_b32 v{vRW}, v{pk} offset:{row*RST}']
        Z16 = 78
        R0 = [[f'v_mov_b32 v88, 0x3f80', f'ds_write_b32 v{vRW}, v88'], self.cmul(Z16, Z8, Z8) + put(Z16, 2, 88)]
        R1 = [put(Z8, 1, 84), []]
        cur = [Z16, Z8]; bufs = [[80, 82], [90, 92]]
        for rho in range(3, 32):
            par = rho & 1
            d = bufs[par][(rho >> 1) & 1]
            (R1 if par else R0).append(self.cmul(d, cur[par], Z16) + put(d, rho, 84 if par else 88)); cur[par] = d
        Cq = [put(Wc, 32, 89)]
        cr = {0: Wc}; nxt = [94]
        def newc():
            r = nxt[0]; nxt[0] += 2; return r
        for ee in range(1, 8):
            d = newc() if ee in (2,4,6) else 110
            Cq.append(self.cmul(d, cr[ee-1], Z1) + put(d, 32+ee, 89)); cr[ee] = d
        for n_, ee in enumerate((0,2,4,6)):
            d = newc() if ee in (0,4) else 110
            Cq.append(self.cmul(d, cr[ee], Z256) + put(d, 40+n_, 89)); cr[256+ee] = d
        chain = [(512,256,44),(516,260,45),(768,512,46),(772,516,47),(1024,768,48),(1280,1024,49),(1536,1280,50),(1792,1536,51),(2048,1792,52)]
        rot = [104, 106, 108, 110]
        for n_, (ee, src, row) in enumerate(chain):
            d = rot[n_ % 4]
            Cq.append(self.cmul(d, cr[src], Z256) + put(d, row, 89)); cr[ee] = d
        vKa, vKb, vKw0, vKw1 = 112, 113, 114, 115
        u = 12
        extra = f'''v_and_b32 v{u}, 15, v0
        v_bfe_u32 v{u+1}, v0, 4, 2
        v_mul_u32_u24 v{vKb}, {RST}, v{u}
        v_lshl_add_u32 v{u+2}, v{u+1}, 4, s{sT}
        v_add_u32 v{vKb}, v{u+2}, v{vKb}
        s_and_b32 s{sT+1}, s{sW}, 1
        s_mul_i32 s{sT+2}, s{sT+1}, {16*RST}
        v_add_u32 v{vKa}, s{sT+2}, v{vKb}
        s_mov_b32 s{sT+2}, 0x76543210
        s_mov_b32 s{sT+3}, 0x40406420
        v_lshlrev_b32 v{u+2}, 2, v{u}
        v_lshrrev_b64 {vr(u+4,2)}, v{u+2}, {sp(sT+2)}
        v_and_b32 v{u+4}, 15, v{u+4}
        v_lshlrev_b32 v{u+2}, 1, v{u}
        s_mov_b32 s{sT+2}, 0xFA550000
        v_bfe_u32 v{u+5}, s{sT+2}, v{u+2}, 2
        v_lshl_add_u32 v{u+4}, v{u+5}, 8, v{u+4}
        s_mul_i32 s{sT+2}, s{sT+7}, {KHSZ}
        s_lshl_b32 s{sT+3}, s{sT+1}, 8
        s_add_u32 s{sT+2}, s{sT+2}, s{sT+3}
        v_lshl_add_u32 v{u+6}, v{u+1}, 6, s{sT+2}
        v_lshl_add_u32 v{vKw0}, v{u+4}, 1, v{u+6}
        v_lshl_add_u32 v{vKw1}, v{u}, 9, v{u+6}'''.split('\n')
        for n_ in range(len(Cq)):
            st = [a_[n_] if n_ < len(a_) else None for a_ in (R0, R1, Cq)]
            for j in range(4):
                for a_ in st:
                    if a_ is None:
                        if extra: e(extra.pop(0))
                    elif j < len(a_): e(a_[j])
        for x in extra: e(x)
        self.stamp('kgen1')
        e(f'''
        s_lshl_b32 s{sT+8}, s{sL}, 7
        s_add_u32 s{sT+8}, s{sT+8}, {F1}
        s_waitcnt vmcnt(0) lgkmcnt(0)
        s_barrier''')
        self.stamp('_kbar1')
        KF = 160
        kf_id = []
        for kk in range(8):
            e(f'''ds_read_b128 {vr(KF+12*kk,4)}, v{vKa} offset:{64*kk}
            ds_read_b128 {vr(KF+12*kk+4,4)}, v{vKb} offset:{32*RST+64*kk}
            ds_read_b128 {vr(KF+12*kk+8,4)}, v{vKb} offset:{48*RST+64*kk}''')
            kf_id.append(self.nlg)
            if kk == 3:
                self.maybe = True
                e(f's_cmp_lg_u32 s{sW}, 0\ns_cbranch_scc1 L_nof1\n' + self.flag_text(vF, sT+8) + '\nL_nof1:')
                self.maybe = False
        vEX, vEM = 124, 125
        EG = 12
        e(f'''
        v_bfe_u32 v{t}, v0, 2, 4
        v_and_b32 v{t+1}, 0x30, v1
        v_lshl_add_u32 v{vEM}, v{t}, 11, v{t+1}
        s_lshl_b32 s{sT}, s{sW}, 6
        v_add_u32 v{t}, s{sT}, v{t}
        s_movk_i32 s{sT}, {XBLK}
        v_mad_u32_u24 v{vEX}, v{t}, s{sT}, v{t+1}
        s_and_b32 s{sT}, s{sL}, 0xc0
        s_and_b32 s{sT+1}, s{sL}, 3
        s_lshl4_add_u32 s{sT}, s{sT+1}, s{sT}
        s_bfe_u32 s{sT+1}, s{sL}, 0x40002
        s_add_u32 s{sT}, s{sT}, s{sT+1}
        s_lshl_b32 s{sT}, s{sT}, 6
        s_add_u32 s{sT}, s{sT}, {XH}
        s_add_u32 s{sT+1}, s{sT}, {16*XBLK}
        s_add_u32 s{sT+2}, s{sT}, {32*XBLK}
        s_add_u32 s{sT+3}, s{sT}, {48*XBLK}
        s_lshr_b32 s{sT+4}, s{sL}, 5
        s_lshl_b32 s{sT+4}, s{sT+4}, 16
        s_lshl_b32 s{sT+5}, s3, 6
        s_add_u32 s{sT+4}, s{sT+4}, s{sT+5}
        s_add_u32 s{sT+4}, s{sT+4}, {MODP}
        s_add_u32 s{sT+5}, s{sT+4}, 32768''')
        e1_loads = '\n'.join([f'buffer_load_dwordx4 {vr(EG+16+4*i,4)}, v{vEM}, {SRD}, s{sT+4+i} offen sc1' for i in range(2)] +
                             [f'buffer_load_dwordx4 {vr(EG+4*i,4)}, v{vEX}, {SRD}, s{sT+i} offen sc1' for i in range(4)])
        self.stamp('_kfrd')
        id_e1 = e(e1_loads)
        self.stamp('_e1iss')
        fill = [f'v_lshlrev_b32 v{t}, 3, v0', f'v_cvt_f32_u32 v{t}, v{t}']
        for i in range(5):
            fill += f'''v_add_f32 v{t+1}, {fbits(2.0*i-2)}, v{t}
            v_add_f32 v{t+2}, {fbits(2048+2.0*i-2)}, v{t}
            v_cvt_pk_bf16_f32 v{t+1}, v{t+1}, v{t+2}
            v_and_b32 v{t+2}, s{sMask}, v{t+1}
            v_lshlrev_b32 v{t+1}, 16, v{t+1}
            v_cvt_u32_f32 v{EA+5+i}, v{t+2}
            v_cvt_u32_f32 v{EA+i}, v{t+1}'''.split('\n')
        KD = 80
        for kk in range(8):
            e(f's_waitcnt {self.wlg(kf_id[kk])}')
            for cb in range(2):
                e(f'v_mfma_f32_16x16x32_bf16 {vr(KD+4*cb,4)}, {vr(KF+12*kk,4)}, {vr(KF+12*kk+4+4*cb,4)}, {"0" if kk==0 else vr(KD+4*cb,4)}')
                e(fill.pop(0))
                if cb: e(fill.pop(0))
        for x in fill: e(x)
        self.stamp('_kmf')
        for cb in range(2):
            for j in range(2):
                e(f'v_cvt_pk_bf16_f32 v{KD+8+2*cb+j}, v{KD+4*cb+2*j}, v{KD+4*cb+2*j+1}')
        for cb in range(2):
            for j in range(2):
                va = (vKw0, vKw1)[cb]; off = L_KH + 2048*cb + 32*j
                e(f'ds_write_b16 v{va}, v{KD+8+2*cb+j} offset:{off}\nds_write_b16_d16_hi v{va}, v{KD+8+2*cb+j} offset:{off+16}')
        e(f'''
        v_mov_b32 v{t}, 0
        v_and_b32 v{t+1}, 127, v0
        s_mul_i32 s{sT+8}, s{sT+7}, {USZ}
        s_add_u32 s{sT+8}, s{sT+8}, {L_U}
        v_lshl_add_u32 v{t+1}, v{t+1}, 2, s{sT+8}
        s_mul_i32 s{sT+9}, s{sT+7}, {PSZ}
        s_add_u32 s{sT+9}, s{sT+9}, {L_P}
        v_and_b32 v{t+3}, 15, v0
        v_lshl_add_u32 v{t+2}, v{t+3}, 2, s{sT+9}
        ds_write_b32 v{t+1}, v{t}
        ds_write_b32 v{t+2}, v{t}
        s_waitcnt lgkmcnt(2)
        s_barrier''')
        self.stamp('kgen2')
        KV = 72; PV = 92; vPw = 108; vPA = 109; vUB = 123
        kv_id = []
        for ch in range(2):
            for i in range(10): e(f'ds_read_u16 v{KV+10*ch+i}, v{EA+i} offset:{L_KH+ch*KHSZ}')
            kv_id.append(self.nlg)
        e(f'''
        v_cmp_eq_u32 vcc, 0, v0
        v_lshlrev_b32 v{vPw}, 4, v0
        v_add_u32 v{vPw}, {L_P+64}, v{vPw}
        v_bfe_u32 v{t}, v0, 4, 2
        s_and_b32 s0, s{sW}, 1
        s_lshl_b32 s1, s0, 9
        s_add_u32 s1, s1, {26*4}
        v_add_u32 v{t+2}, s1, v{t+2}
        v_lshlrev_b32 v{vPA}, 5, v{t}
        v_sub_u32 v{vPA}, v{t+2}, v{vPA}
        s_lshl_b32 s1, s0, 8
        s_sub_u32 s{sT+8}, s{sT+8}, s1
        s_add_u32 s{sT+8}, s{sT+8}, {480 - 192}
        v_lshl_add_u32 v{vUB}, v{t+3}, 5, s{sT+8}
        v_lshl_add_u32 v{vUB}, v{t}, 4, v{vUB}''')
        for ch in range(2):
            e(f's_waitcnt {self.wlg(kv_id[ch])}')
            e(f'v_cndmask_b32 v{KV+10*ch}, v{KV+10*ch}, 0, vcc')
            for v in range(2):
                for i in range(4):
                    e(f'v_lshl_or_b32 v{PV+8*ch+4*v+i}, v{KV+10*ch+5*v+i}, 16, v{KV+10*ch+5*v+i+1}')
                e(f'ds_write_b128 v{vPw}, {vr(PV+8*ch+4*v,4)} offset:{ch*PSZ+4096*v}')
        vP1 = 122
        PJ = 110
        e(f'''
        s_lshr_b32 s0, s{sL}, 6
        s_bfe_u32 s1, s{sL}, 0x20003
        s_lshl2_add_u32 s{sMt}, s0, s1
        s_bfe_u32 s0, s{sL}, 0x10005
        s_and_b32 s{sDt}, s{sL}, 7
        s_lshl3_add_u32 s{sNt}, s0, s{sDt}
        s_lshl1_add_u32 s{sTb}, s{sMt}, s0
        s_mul_i32 s0, s{sNt}, 7
        s_lshr_b32 s0, s0, 2
        s_lshl_b32 s0, s0, 3
        v_and_b32 v{t+1}, 31, v0
        v_min_u32 v{t+2}, 23, v{t+1}
        v_add_u32 v{t+2}, s0, v{t+2}
        v_min_u32 v{t+2}, 223, v{t+2}
        v_min_u32 v{t+1}, 27, v{t+1}
        v_cmp_gt_u32 vcc, 512, v1
        v_lshlrev_b32 v{t+1}, 3, v{t+1}
        s_sub_u32 s0, 255, s{sDt}
        v_sub_u32 v{t+1}, s0, v{t+1}
        v_cndmask_b32 v{t+1}, v{t+1}, v{t+2}, vcc
        v_lshlrev_b32 v{vP1}, 7, v{t+1}
        v_add_u32 v{vP1}, {F1}, v{vP1}
        v_cmp_eq_u32 {sp(sM)}, 2, v{t}''')
        for J in range(1,8): e(f'v_add_u32 v{PJ+J-1}, {1024*J}, v{vPA}')
        e(f'v_cndmask_b32 v{t}, 0, 1.0, {sp(sM)}')
        self.stamp('expand')
        self.check(e1_loads, [EG+3, EG+7, EG+11, EG+15, EG+19, EG+23], id_e1)
        self.stamp('e1_ok')
        f1_load = f'buffer_load_dword v{vPolled}, v{vP1}, {SRD}, 0 offen sc1'
        id_f1 = e(f1_load)
        g0 = EG+16
        HF = 36
        e(f'''
        v_add_f32 v{g0}, v{g0}, v{g0+4}
        v_add_f32 v{g0+1}, v{g0+1}, v{g0+5}
        v_add_f32 v{g0+2}, v{g0+2}, v{g0+6}
        v_mov_b32 v{g0+3}, 0''')
        unp = []
        for i in range(4):
            unp += [f'v_lshlrev_b32 v{HF+4*i}, 16, v{EG+4*i}', f'v_lshlrev_b32 v{HF+4*i+1}, 16, v{EG+4*i+1}',
                    f'v_and_b32 v{HF+4*i+2}, s{sMask}, v{EG+4*i}', f'v_and_b32 v{HF+4*i+3}, s{sMask}, v{EG+4*i+1}']
        self.reduce4(g0, g0+1, g0+2, g0+3, unp)
        unp = self.rest
        e(f'''
        v_cvt_pk_bf16_f32 v{g0}, v{g0}, v{g0}
        s_lshl_b32 s{sT}, s{sW}, 10
        v_and_b32 v{g0}, s{sMask}, v{g0}
        s_add_u32 s{sT}, s{sT}, {L_U+512}
        v_add_f32 v{g0}, v{g0}, v{t}
        v_cvt_pk_bf16_f32 v{g0}, v{g0}, v{g0}
        v_and_b32 v{g0}, s{sMask}, v{g0}
        v_add_u32 v{t+1}, s{sT}, v{vF}''')
        lanes = [32,0,33,1,16,17,34,35,2,3,18,19]
        for n_ in range(4): e(f'v_readlane_b32 s{sM+n_}, v{g0}, {lanes[n_]}')
        for x in unp: e(x)
        for i in range(4):
            for ch in range(2):
                h = HF+4*i+2*ch
                e(f'v_pk_fma_f32 {vr(h,2)}, {vr(h,2)}, {sp(sM+2*ch)}, {sp(sM+2*ch)} op_sel:[0,0,1] op_sel_hi:[1,0,1]')
            for ch in range(2):
                h = HF+4*i+2*ch
                e(f'v_cvt_pk_bf16_f32 v{t+2+ch}, v{h}, v{h+1}\nds_write_b32 v{t+1}, v{t+2+ch} offset:{ch*USZ+256*i}')
        e('s_waitcnt lgkmcnt(0)\ns_barrier')
        self.stamp('u_ready')
        BF = 72; ACC = 224; AF = 128
        af = lambda jq, J: AF + 32*jq + 4*J
        pj = lambda J: vPA if J == 0 else PJ+J-1
        def bread(jq, m): return f'ds_read_b128 {vr(BF+4*m,4)}, v{vUB} offset:{512*m+192-64*jq}'
        def aread(jq, J, hh): return f'ds_read2_b32 {vr(af(jq,J)+2*hh,2)}, v{pj(J)} offset0:{32*jq+6-4*hh} offset1:{32*jq+4-4*hh}'
        rid = {}
        def rd(kind, jq, i):
            if kind == 'b': e(bread(jq, i))
            else: e(aread(jq, i, 0)); e(aread(jq, i, 1))
            rid[(kind, jq, i)] = self.nlg
        for i in range(4): rd('b', 0, i); rd('a', 0, i)
        ZG = 12; vYw, vYr = 52, 53
        fill = [f'v_readlane_b32 s{sM+n_}, v{g0}, {lanes[n_]}' for n_ in range(4, 12)]
        fill += f'''s_lshl_b32 s{sDmaL}, s{sW}, 13
        s_mul_i32 s{sDmaG}, s{sNt}, {7*32768}
        s_add_u32 s{sDmaG}, s{sDmaG}, s{sDmaL}
        s_add_u32 s{sDmaG}, s{sDmaG}, {WGU}
        s_lshl2_add_u32 s{sWdG}, s{sDt}, s{sW}
        s_mul_i32 s{sWdG}, s{sWdG}, {56*1024}
        s_add_u32 s{sWdG}, s{sWdG}, {WD}
        s_lshl_b32 s{sDsk}, s{sDsk+1}, 16
        s_and_b32 s{sDsk+1}, s{sDsk+1}, s{sMask}'''.split('\n')
        nprio = len(fill)
        for sc in (sDsk, sM+4):
            for i in range(4):
                for ch in range(2):
                    for j in range(2):
                        fill.append(f'v_mul_f32 v{HF+4*i+2*ch+j}, s{sc+ch}, v{HF+4*i+2*ch+j}')
        fill += f'''s_pack_hh_b32_b16 s{sT}, s{sM+6}, s{sM+7}
        s_pack_hh_b32_b16 s{sT+1}, s{sM+8}, s{sM+9}
        s_pack_hh_b32_b16 s{sT+2}, s{sM+10}, s{sM+11}
        v_and_b32 v{t}, 3, v0
        v_mov_b32 v{t+1}, s{sT}
        v_mov_b32 v{t+2}, s{sT+1}
        v_cmp_eq_u32 {sp(sBad)}, 1, v{t}
        v_mov_b32 v{t+3}, s{sT+2}
        v_mov_b32 v{ZG+3}, v2
        v_cndmask_b32 v{t+1}, v{t+1}, v{t+2}, {sp(sBad)}
        v_cmp_eq_u32 {sp(sBad)}, 2, v{t}
        v_mov_b32 v{ZG+7}, v2
        v_mov_b32 v{ZG+11}, v2
        v_cndmask_b32 v{ZG+2}, v{t+1}, v{t+3}, {sp(sBad)}
        v_mov_b32 v{ZG+15}, v2
        v_mov_b32 v{ZG+6}, v{ZG+2}
        v_mov_b32 v{ZG+10}, v{ZG+2}
        v_mov_b32 v{ZG+14}, v{ZG+2}
        v_and_b32 v{t}, 15, v0
        v_bfe_u32 v{t+1}, v0, 4, 2
        v_bfe_u32 v{t+2}, v0, 1, 2
        v_xor_b32 v{t+2}, v{t+2}, v{t+1}
        v_lshlrev_b32 v{t+2}, 4, v{t+2}
        v_lshl_add_u32 v{vYw}, v{t}, 6, v{t+2}
        s_add_u32 s{sT}, s{sDmaL}, {L_Y}
        v_add_u32 v{vYw}, s{sT}, v{vYw}
        v_bfe_u32 v{t}, v0, 3, 3
        v_lshl_add_u32 v{t+2}, v{t}, 6, v{t+2}
        v_and_b32 v{t}, 1, v0
        v_lshl_add_u32 v{t+2}, v{t}, 3, v{t+2}
        s_lshl_b32 s{sT}, s{sW}, 11
        s_add_u32 s{sT}, s{sT}, {L_Y}
        v_add_u32 v{vYr}, s{sT}, v{t+2}
        s_add_u32 s{sT+6}, s{sT+6}, {ZY}'''.split('\n')
        dq = self.dma_tile(0,0) + self.dma_tile(1,1) + self.dma_tile(2,2)
        nwd_conv = self.opt('wd_conv', 8)
        order = []
        for jq in range(4):
            if jq == 0: order += [(jq, cb-m, m) for cb in range(8) for m in range(cb+1)]
            elif jq == 3: order += [(jq, J, cb-J) for cb in range(8) for J in range(cb+1)]
            else: order += [(jq, J, m) for m in range(8) for J in range(8-m)]
        lastB = {}
        for n, (jq, J, m) in enumerate(order): lastB[(jq, m)] = n
        rq = []
        for i in range(4, 8): rq += [(0, 'b', 0, i), (0, 'a', 0, i)]
        for jq in range(1, 4):
            aa = [(36*(jq-1)+8, 'a', jq, J) for J in range(8)]
            bb = sorted([(lastB[(jq-1, m)]+1, 'b', jq, m) for m in range(8)])
            rq += sorted(aa + bb, key=lambda x: x[0])
        seen = set(); done_w = 0; waited = 0
        ncheck = self.opt('f1_at', 20); pace = self.opt('conv_pace', 4)
        for n, (jq, J, m) in enumerate(order):
            cb = J+m
            while ('a', jq, J) not in rid or ('b', jq, m) not in rid:
                _, kd, a_, b_ = rq.pop(0); rd(kd, a_, b_)
            need = max(rid[('a', jq, J)], rid[('b', jq, m)])
            if need > waited:
                e(f's_waitcnt {self.wlg(need)}'); waited = max(need, self.nlg - 15)
            c_ = ar(ACC+4*cb,4) if cb in seen else '0'; seen.add(cb)
            e(f'v_mfma_f32_16x16x32_bf16 {ar(ACC+4*cb,4)}, {vr(af(jq,J),4)}, {vr(BF+4*m,4)}, {c_}')
            if n == ncheck:
                while nprio > 0: e(fill.pop(0)); nprio -= 1
                self.check(f1_load, [vPolled], id_f1)
            elif n > ncheck and (n - ncheck) % pace == 1 and (dq or nwd_conv):
                if dq: e(dq.pop(0))
                else: wd_issue(1); nwd_conv -= 1
            elif rq and rq[0][0] <= n:
                _, kd, a_, b_ = rq.pop(0); rd(kd, a_, b_)
            elif jq == 3 and done_w < cb and (J >= 4 or done_w < cb-1):
                while fill: e(fill.pop(0))
                e(f'ds_write_b128 v{vYw}, {ar(ACC+4*done_w,4)} offset:{1024*done_w}'); done_w += 1
            else:
                for _ in range(2):
                    if fill: e(fill.pop(0)); nprio -= 1
        assert not rq
        for x in dq + fill: e(x)
        self.stamp('conv')
        while done_w < 8:
            e(f'ds_write_b128 v{vYw}, {ar(ACC+4*done_w,4)} offset:{1024*done_w}'); done_w += 1
        e('s_waitcnt lgkmcnt(0)\ns_barrier')
        YR = 72; y_id = []
        for i in range(4):
            for pw in range(4): e(f'ds_read_b64 {vr(YR+8*i+2*pw,2)}, v{vYr} offset:{8192*pw+512*i}')
            y_id.append(self.nlg)
        for i in range(4):
            e(f's_waitcnt {self.wlg(y_id[i])}')
            for ch in range(2):
                y = YR+8*i+4*ch
                e(f'v_pk_add_f32 {vr(y,2)}, {vr(y,2)}, {vr(y+2,2)}')
            for ch in range(2):
                y = YR+8*i+4*ch
                e(f'v_pk_fma_f32 {vr(y,2)}, {vr(y,2)}, {sp(sM+4)}, {vr(HF+4*i+2*ch,2)} op_sel:[0,{ch},0] op_sel_hi:[1,{ch},1]')
            for r in range(2):
                e(f'v_cvt_pk_bf16_f32 v{ZG+4*i+r}, v{YR+8*i+r}, v{YR+8*i+4+r}')
            id_z = e(f'buffer_store_dwordx4 {vr(ZG+4*i,4)}, v1, {SRD}, s{sT+6} offen offset:{1024*i} sc1')
        self.stamp('z_stored')
        wd_issue(self.opt('wd_zack', 4))
        XF = 36
        for r in range(2):
            for i in range(4):
                for x in self.unpack(XF+8*r+2*i, XR+4*r+i): e(x)
        vZ = 52; vH2 = 53; ZI = 72; vMsk = 54
        vP2 = 24; vXa = 25; vA2 = 26; vA4 = 27; vP3 = 23; vX2 = 22; vAc1 = 21; vC2 = 20
        c1 = -2*1.4426950408889634*0.7978845608028654; c2 = c1*0.044715
        e(f'''
        v_and_b32 v{t}, 0xfc, v0
        v_and_b32 v{t+2}, 0x30, v1
        s_movk_i32 s{sT}, {XBLK}
        v_mad_u32_u24 v{vZ}, v{t}, s{sT}, v{t+2}
        s_lshl_b32 s{sT}, s{sL}, 6
        s_add_u32 s{sT}, s{sT}, {ZY}
        s_add_u32 s{sT+1}, s{sT}, {XBLK}
        s_add_u32 s{sT+2}, s{sT}, {2*XBLK}
        s_add_u32 s{sT+3}, s{sT}, {3*XBLK}
        v_lshrrev_b32 v{t}, 3, v0
        v_and_b32 v{t+1}, 0x70, v1
        v_lshl_add_u32 v{vH2}, v{t}, 10, v{t+1}
        s_lshr_b32 s{sT+4}, s{sL}, 2
        s_lshl_b32 s{sT+4}, s{sT+4}, 7
        s_and_b32 s{sT+5}, s{sL}, 3
        s_add_u32 s{sT+4}, s{sT+4}, s{sT+5}
        s_lshl_b32 s{sT+4}, s{sT+4}, 8
        s_add_u32 s{sT+4}, s{sT+4}, {H2}
        s_mov_b32 s{sT+5}, {X2}
        v_mov_b32 v{vMsk}, s{sMask}
        s_lshl2_add_u32 s{sT+6}, s{sL}, s{sW}
        s_lshl_b32 s{sT+6}, s{sT+6}, 7
        s_add_u32 s{sT+6}, s{sT+6}, {F2}
        s_lshl2_add_u32 s0, s{sMt}, s{sW}
        s_lshl_b32 s{sT+7}, s0, 11
        s_add_u32 s{sT+7}, s{sT+7}, {F2}
        s_lshl_b32 s{sXg}, s0, 15
        s_add_u32 s{sXg}, s{sXg}, {H2}
        s_lshl4_add_u32 s0, s0, s{sNt}
        s_mul_i32 s0, s0, {7*1024}
        s_add_u32 s{sActS}, s0, {ACT}
        s_add_u32 s{sActS+1}, s0, {ACT+4096}
        s_lshl4_add_u32 s0, s{sMt}, s{sNt}
        s_lshl2_add_u32 s0, s0, s{sW}
        s_lshl_b32 s0, s0, 7
        s_add_u32 s{sF3o}, s0, {F3}
        s_lshl2_add_u32 s0, s{sMt}, s{sW}
        s_and_b32 s1, s{sTb}, 1
        s_lshl3_add_u32 s0, s0, s1
        s_lshl_b32 s0, s0, 8
        s_add_u32 s{sF3p}, s0, {F3}
        s_lshl3_add_u32 s0, s{sTb}, s{sW}
        s_mul_i32 s0, s0, {28*1024}
        s_add_u32 s{sActG}, s0, {ACT}
        s_waitcnt {self.wvm(id_z)}''')
        z_loads = '\n'.join(f'buffer_load_dwordx4 {vr(ZI+4*i,4)}, v{vZ}, {SRD}, s{sT+i} offen sc1' for i in range(4))
        id_zl = e(z_loads)
        e(f'''
        v_and_b32 v{vP2}, 15, v0
        v_lshlrev_b32 v{vP2}, 7, v{vP2}
        v_bfe_u32 v{t}, v0, 2, 3
        v_bfe_u32 v{t+3}, v0, 5, 1
        v_lshl_add_u32 v{t+2}, v{t+3}, 6, v{t+2}
        v_lshl_add_u32 v{vXa}, v{t}, 7, v{t+2}
        v_add_u32 v{vA2}, 65536, v1
        v_add_u32 v{vA4}, 131072, v1
        v_add_u32 v{vAc1}, {112*1024}, v1
        v_mov_b32 v{vC2}, {fbits(c2)}
        v_bfe_u32 v{t}, v0, 1, 2
        v_and_b32 v{t+2}, 1, v0
        v_lshlrev_b32 v{t+2}, 7, v{t+2}
        v_lshl_add_u32 v{vP3}, v{t}, 9, v{t+2}
        v_bfe_u32 v{t}, v0, 3, 2
        v_lshl_add_u32 v{t}, v{t}, 1, v{t+3}
        v_lshl_add_u32 v{t}, v{t}, 10, v{t+1}
        s_lshl3_add_u32 s0, s{sTb}, s{sW}
        s_lshl_b32 s0, s0, 6
        s_add_u32 s0, s0, s{sDt}
        s_lshl_b32 s0, s0, 7
        v_add_u32 v{vX2}, s0, v{t}''')
        self.check(z_loads, [ZI+3, ZI+7, ZI+11, ZI+15], id_zl)
        self.stamp('z_ok')
        wd_issue(self.opt('wd_ln2', 6))
        ZF = 88
        for i in range(4):
            for r in range(2):
                for x in self.unpack(ZF+8*r+2*i, ZI+4*i+r): e(x)
            for r in range(2):
                z = ZF+8*r+2*i; x = XF+8*r+2*i
                e(f'v_pk_add_f32 {vr(x,2)}, {vr(x,2)}, {vr(z,2)}')
            for r in range(2):
                x = XF+8*r+2*i
                e(f'v_cvt_pk_bf16_f32 v{XR+4*r+i}, v{x}, v{x+1}')
        unp = [x for r in range(2) for i in range(4) for x in self.unpack(XF+8*r+2*i, XR+4*r+i)]
        self.stats_partial(XR, t, vSBw, unp)
        unp = self.rest
        for r in range(2):
            e(f'buffer_store_dwordx4 {vr(XR+4*r,4)}, v{vXO}, {SRD}, s{sT+5} offen offset:{1024*r} sc1')
        for x in unp: e(x)
        e('s_waitcnt lgkmcnt(0)\ns_barrier')
        ST = 56
        self.stats_read(ST, vSBr)
        GBV = 12
        for i in range(4):
            for kind in range(2):
                d = ZF+8*kind+2*i
                qp = f'quad_perm:[{kind},{kind},{kind},{kind}] row_mask:0xf bank_mask:0xf'
                e(f'v_cvt_f32_bf16_dpp v{d}, v{ZI+4*i+2} {qp}\nv_and_b32_dpp v{d+1}, v{ZI+4*i+2}, v{vMsk} {qp}')
        e('s_waitcnt lgkmcnt(0)')
        self.stats_finish(ST, vInv)
        HO = 104
        for r in range(2):
            for i in range(4):
                x = XF+8*r+2*i
                e(f'v_pk_fma_f32 {vr(x,2)}, {vr(x,2)}, {vr(ST+2*r,2)}, {vr(ST+2*r,2)} op_sel:[0,0,1] op_sel_hi:[1,0,1]')
            for i in range(4):
                x = XF+8*r+2*i
                e(f'v_pk_fma_f32 {vr(x,2)}, {vr(x,2)}, {vr(ZF+2*i,2)}, {vr(ZF+8+2*i,2)}')
            for i in range(4):
                x = XF+8*r+2*i
                e(f'v_cvt_pk_bf16_f32 v{HO+4*r+i}, v{x}, v{x+1}')
            id_h = e(f'buffer_store_dwordx4 {vr(HO+4*r,4)}, v{vH2}, {SRD}, s{sT+4} offen offset:{128*r} sc1')
        self.stamp('h2_stored')
        for i in range(4): e(f'v_mov_b32 v{GBV+i}, v{ZI+4*i+2}')
        e(f's_waitcnt {self.wvm(id_h)}')
        id_fl = e(self.flag_text(vF, sT+6))
        self.stamp('_h2_ack')
        for x in self.dma_tile(3,3): id_t3 = e(x)
        e(f's_barrier\ns_waitcnt {self.wvm(id_fl)}')
        f2_load = f'buffer_load_dword v{vPolled}, v{vP2}, {SRD}, s{sT+7} offen sc1'
        id_f2 = e(f2_load)
        X = 128
        AC = [28, 44, 60, 76]
        WF = 92; NB = 6; LA = 4
        GT = 116; GO = 16; X2R = 4
        P1 = self.opt('p1', 3)
        seq = [(tl, s) for s in range(32) for tl in range(P1)] + [(tl, s) for tl in range(P1,7) for s in range(32)]
        slot = {0:0,1:1,2:2,3:3,4:4,5:0,6:1}
        acc = {tl: AC[tl % 4] for tl in range(7)}
        def wread(n):
            tl, s = seq[n]; sl = slot[tl]
            va = {0:1,1:1,2:vA2,3:vA2,4:vA4}[sl]
            return f'ds_read_b128 {vr(WF+4*(n%NB),4)}, v{va} offset:{(sl&1 if sl<4 else 0)*32768 + 1024*s}'
        for n in range(LA): e(wread(n))
        self.check(f2_load, [vPolled], id_f2)
        self.stamp('f2_ok')
        x_id = []
        def xload():
            s = len(x_id)
            x_id.append(e(f'buffer_load_dwordx4 {vr(X+4*s,4)}, v{vXa}, {SRD}, s{sXg} offen offset:{1024*(s&3)} sc1'))
            if s & 3 == 3 and s < 31: e(f's_add_u32 s{sXg}, s{sXg}, 4096')
        XLA = self.opt('xla', 8)
        for s in range(XLA): xload()
        def gelu(tl):
            a = acc[tl]; out = []
            for hf in range(2):
                E = [a+4*hf+j for j in range(4)]
                out += [f'v_mul_f32 v{GT+j}, v{E[j]}, v{E[j]}' for j in range(4)]
                out += [f'v_fmaak_f32 v{GT+j}, v{GT+j}, v{vC2}, {fbits(c1)}' for j in range(4)]
                out += [f'v_mul_f32 v{GT+j}, v{GT+j}, v{E[j]}' for j in range(4)]
                for j in range(4): out += [f'v_exp_f32 v{GT+j}, v{GT+j}', f'v_mul_f32 v{E[j]+8}, v{E[j]+8}, v{E[j]}']
                for j in range(4): out += [f'v_add_f32 v{GT+j}, 1.0, v{GT+j}']
                for j in range(4): out += [f'v_rcp_f32 v{GT+j}, v{GT+j}']
                for j in range(4): out += [f'v_mul_f32 v{E[j]+8}, v{E[j]+8}, v{GT+j}']
                out += [f'v_cvt_pk_bf16_f32 v{GO+2*hf+j}, v{E[2*j]+8}, v{E[2*j+1]+8}' for j in range(2)]
            out.append(f'buffer_store_dwordx4 {vr(GO,4)}, v1, {SRD}, s{sActS+(tl>>2)} offen offset:{1024*(tl&3)} sc1')
            return [(x, tl) for x in out]
        last = {tl: max(n for n, (a_, _) in enumerate(seq) if a_ == tl) for tl in range(7)}
        first = {tl: min(n for n, (a_, _) in enumerate(seq) if a_ == tl) for tl in range(7)}
        gq = []; vq = []; dma_id = {3: id_t3}; st_id = {}; st_n = {}
        a_id = []
        def aload():
            kk = len(a_id); T, tt = korder[kk >> 1], kk & 1
            if tt == 0: e(f's_add_u32 s{sActT}, s{sActG}, {T*1024}')
            a_id.append(e(f'buffer_load_dwordx4 {vr(X+4*(kk%32),4)}, v{vAc1 if tt else 1}, {SRD}, s{sActT} offen sc1'))
        ACKD = self.opt('ackd', 22); VISD = self.opt('visd', 20); POLD = self.opt('pold', 12)
        flagged = 0; polled = 0; checked = 0; flag_n = {}; poll_n = {}; poll_id = {}
        gend = [sum(len(g) for g in groups[:i+1])*8 for i in range(len(groups))]
        PV3 = [120, 121, 122]
        def f3load(g): return f's_add_u32 s0, s{sF3p}, {g*F3S}\nbuffer_load_dword v{PV3[g]}, v{vP3}, {SRD}, s0 offen sc1'
        def progress(n, force=None):
            nonlocal flagged, polled, checked
            did = False
            if flagged < len(groups) and groups[flagged][-1] in st_id and (n >= st_n[groups[flagged][-1]] + ACKD or force is not None and force >= flagged):
                e(f's_add_u32 s0, s{sF3o}, {flagged*F3S}\ns_waitcnt {self.wvm(st_id[groups[flagged][-1]])}\n' + self.flag_text(vF, 0))
                flag_n[flagged] = n; flagged += 1; did = True
                if force is not None and force >= flagged-1: e(f's_waitcnt {self.wvm(self.nvm)}')
            if polled < flagged and (n >= flag_n[polled] + VISD or force is not None and force >= polled):
                poll_id[polled] = e(f3load(polled)); poll_n[polled] = n; polled += 1; did = True
            if checked < polled and (n >= poll_n[checked] + POLD or force is not None and force >= checked):
                self.check(f3load(checked), [PV3[checked]], poll_id[checked]); checked += 1; did = True
                self.stamp(f'_f3{checked-1}')
            return did
        vpace = self.opt('vpace', 2)
        grate = self.opt('grate', 10)
        for n, (tl, s) in enumerate(seq):
            if n in (1, 48, 96, 128, 160, 192): self.stamp(f'_g{n}')
            if n == last[1] + 1:
                e('s_barrier')
                vq += [(x,'d5') for x in self.dma_tile(5,0)] + [(x,'d6') for x in self.dma_tile(6,1)]
                vq += [(f's_mov_b32 s0, {X2}\nbuffer_load_dwordx4 {vr(X2R,4)}, v{vX2}, {SRD}, s0 offen sc1','x2'),
                       (f's_mov_b32 s0, {X2+32768}\nbuffer_load_dwordx4 {vr(X2R+4,4)}, v{vX2}, {SRD}, s0 offen sc1','x2')]
            for a_ in range(6):
                if n == last[a_] + 4: gq += gelu(a_)
            for a_ in (3,4,5,6):
                if n == first[a_] - LA:
                    while a_ not in dma_id or any(kd == f'd{a_}' for _, kd in vq):
                        x, kd = vq.pop(0); i_ = e(x)
                        if kd[0] == 'd': dma_id[int(kd[1])] = i_
                    e(f's_waitcnt {self.wvm(dma_id[a_])}\ns_barrier')
            w_ = f'lgkmcnt({min(LA-1, len(seq)-1-n)})'
            if tl == 0: w_ = self.wvm(x_id[s]) + ' ' + w_
            e(f's_waitcnt {w_}')
            if s == 0: assert not any(b_ == tl-4 for _, b_ in gq), (n, len(gq))
            c_ = '0' if s == 0 else vr(acc[tl],16)
            e(f'v_mfma_f32_32x32x16_bf16 {vr(acc[tl],16)}, {vr(WF+4*(n%NB),4)}, {vr(X+4*s,4)}, {c_}')
            if n + LA < len(seq): e(wread(n+LA))
            budget = (grate*(n+1))//3 - (grate*n)//3
            if progress(n): budget -= 2
            elif len(x_id) < 32:
                if tl == 0:
                    xload()
                    if len(x_id) == 32: vq += [(x,'d4') for x in self.dma_tile(4,4)]
            elif n % vpace == 0:
                if tl == 6 and checked and len(a_id) < min(s, gend[checked-1]): aload()
                elif vq:
                    x, kd = vq.pop(0); i_ = e(x)
                    if kd[0] == 'd': dma_id[int(kd[1])] = i_
                else: wd_issue(1)
            while gq and budget > 0:
                x, b_ = gq.pop(0); budget -= 1
                i_ = e(x)
                if x.startswith('buffer_'): st_id[b_] = i_; st_n[b_] = n
        assert not vq
        self.stamp('g1_mfma')
        n = len(seq)
        e(f'''
        v_and_b32 v{WF}, 3, v0
        v_cmp_eq_u32 vcc, 2, v{WF}
        v_and_b32 v{WF+1}, 0xfc, v0
        v_lshlrev_b32 v{WF+1}, 2, v{WF+1}
        v_add_u32 v{WF+1}, {L_GB}, v{WF+1}
        s_mov_b64 exec, vcc
        ds_write_b128 v{WF+1}, {vr(GBV,4)}
        s_mov_b64 exec, -1''')
        cnt = 0
        for x, b_ in gq + gelu(6):
            i_ = e(x); cnt += 1
            if x.startswith('buffer_'): st_id[b_] = i_; st_n[b_] = n
            if cnt % 8 == 0:
                n += 1
                if not progress(n) and checked and len(a_id) < min(32, gend[checked-1]): aload()
        self.stamp('gelu6')
        A2 = 28
        vRw = 12; vRr = 13; vG = 14
        fill = f'''v_bfe_u32 v{WF}, v0, 5, 1
        v_and_b32 v{WF+1}, 0x1f0, v1
        s_mul_i32 s{sT}, s{sW}, {4*RQ}
        s_add_u32 s{sT}, s{sT}, {L_RED}
        v_mul_u32_u24 v{WF}, {RSA}, v{WF}
        v_add3_u32 v{vRw}, v{WF}, v{WF+1}, s{sT}
        v_and_b32 v{WF}, 7, v0
        v_lshrrev_b32 v{WF+1}, 3, v0
        v_mul_u32_u24 v{WF+2}, {RSA}, v{WF}
        v_lshl_add_u32 v{vRr}, v{WF+1}, 4, v{WF+2}
        v_add_u32 v{vRr}, {L_RED}, v{vRr}
        s_lshl_b32 s{sT}, s{sDt}, 7
        s_add_u32 s{sT}, s{sT}, {L_GB}
        v_lshl_add_u32 v{vG}, v{WF}, 4, s{sT}
        s_add_u32 s{sT+2}, s{pOut}, 32768
        s_addc_u32 s{sT+3}, s{pOut+1}, 0'''.split('\n')
        XF2 = 96
        for tt in range(2):
            for j in range(4):
                fill += [f'v_lshlrev_b32 v{XF2+8*tt+j}, 16, v{X2R+4*tt+j}', f'v_and_b32 v{XF2+8*tt+4+j}, s{sMask}, v{X2R+4*tt+j}']
        TAILK = self.opt('tailk', 4)
        o2 = [(kk, tt) for kk in range(28-TAILK) for tt in range(2)] + [(kk, tt) for tt in range(2) for kk in range(28-TAILK, 28)]
        ALA = self.opt('ala', 10)
        consumed = set(); wq = []
        for m_, (kk, tt) in enumerate(o2):
            f = 2*kk + tt; T = korder[kk]
            if m_ in (0, 14, 28, 42): self.stamp(f'_h{m_}')
            while len(wd_id) < 2*kk+2: wd_issue(1)
            while len(a_id) <= f:
                g = min(i for i in range(len(groups)) if gend[i] > len(a_id))
                while checked <= g: progress(n, force=g)
                assert len(a_id) < 32 or len(a_id)-32 in consumed
                aload()
            e(f's_waitcnt {self.wvm(max(a_id[f], wd_id[2*kk+1]))}')
            for c in range(2):
                a = A2 + 32*tt + 16*c
                e(f'v_mfma_f32_32x32x16_bf16 {vr(a,16)}, {ar(8*T+4*c,4)}, {vr(X+4*(f%32),4)}, {"0" if kk==0 else vr(a,16)}')
                n += 1
                if progress(n): pass
                elif len(a_id) < 56 and len(a_id) < gend[checked-1] and len(a_id) <= f + ALA and (len(a_id) < 32 or len(a_id)-32 in consumed): aload()
                elif wdq: wd_issue(1)
                if wq and m_ >= 57-TAILK:
                    e(wq.pop(0))
                    if wq: e(wq.pop(0))
                for _ in range(3):
                    if fill: e(fill.pop(0))
            consumed.add(f)
            if m_ == 55-TAILK:
                wq = [f'ds_write_b128 v{vRw}, {vr(A2+16*c+4*i,4)} offset:{c*RQ+2*RSA*i}' for c in range(2) for i in range(4)]
        self.stamp('g2_mfma')
        for x in wq: e(x)
        for c in range(2):
            for i in range(4): e(f'ds_write_b128 v{vRw}, {vr(A2+32+16*c+4*i,4)} offset:{(2+c)*RQ+2*RSA*i}')
        e('s_waitcnt lgkmcnt(0)\ns_barrier')
        GF = 112; RD = 128; r_id = []
        e(f'ds_read_b128 {vr(GF+8,4)}, v{vG}'); g_id = self.nlg
        e(f'v_add_u32 v{vRw}, {8*RQ}, v{vRr}')
        for q_ in range(4):
            for w in range(4):
                e(f'ds_read_b128 {vr(RD+16*q_+4*w,4)}, v{vRr if w<2 else vRw} offset:{(4*(w&1)+q_)*RQ}')
            r_id.append(self.nlg)
            if q_ == 2:
                e(f's_waitcnt {self.wlg(g_id)}')
                for j in range(4): e(f'v_lshlrev_b32 v{GF+j}, 16, v{GF+8+j}\nv_and_b32 v{GF+4+j}, s{sMask}, v{GF+8+j}')
        OO = 28
        for tt in range(2):
            for c in range(2):
                q_ = 2*tt+c; r = RD+16*q_
                e(f's_waitcnt {self.wlg(r_id[q_])}')
                for hh in range(2):
                    e(f'v_pk_add_f32 {vr(r+2*hh,2)}, {vr(r+2*hh,2)}, {vr(r+4+2*hh,2)}\nv_pk_add_f32 {vr(r+8+2*hh,2)}, {vr(r+8+2*hh,2)}, {vr(r+12+2*hh,2)}')
                for hh in range(2):
                    e(f'v_pk_add_f32 {vr(r+2*hh,2)}, {vr(r+2*hh,2)}, {vr(r+8+2*hh,2)}')
                for hh in range(2):
                    e(f'v_pk_fma_f32 {vr(r+2*hh,2)}, {vr(r+2*hh,2)}, {vr(GF+4*c+2*hh,2)}, {vr(XF2+8*tt+4*c+2*hh,2)}')
            for j in range(4):
                e(f'v_cvt_pk_bf16_f32 v{OO+4*tt+j}, v{RD+32*tt+j}, v{RD+32*tt+16+j}')
            e(f'global_store_dwordx4 v{vX2}, {vr(OO+4*tt,4)}, {sp(pOut) if tt==0 else sp(sT+2)} {self.opt("outflag","sc1").replace("_"," ").replace("none","")}')
        self.stamp('end')
        e(f'''
        s_or_b32 s0, s{sL}, s{sW}
        s_cbranch_scc1 L_noep''')
        e(self.flag_text(vF, 0))
        e('L_noep:')
        if self.stamps:
            e(f'''
            s_lshl2_add_u32 s{sT}, s{sL}, s{sW}
            s_lshl_b32 s{sT}, s{sT}, 7
            s_add_u32 s{sT}, s{sT}, {STMP}
            v_mov_b32 v4, 0
            s_mov_b64 exec, 1''')
            for i in range(self.ns):
                e(f'v_mov_b32 v5, s{sStamp+i}\nbuffer_store_dword v5, v4, {SRD}, s{sT} offen offset:{4*i}')
            e(f'v_mov_b32 v5, s{sCnt}\nbuffer_store_dword v5, v4, {SRD}, s{sT} offen offset:124')
        if self.o.get('probe') is not None:
            kk = self.stamp_names.index(self.o['probe'])
            e(f'''
            s_add_u32 s{sT}, s{sStamp+kk}, 5000
            L_spin:
            s_sleep 1
            s_memrealtime s[22:23]
            s_waitcnt lgkmcnt(0)
            s_sub_u32 s{sT+1}, s22, s{sT}
            s_cmp_lt_i32 s{sT+1}, 0
            s_cbranch_scc1 L_spin''')
        e('s_endpgm')
        for x in self.tail: e(x)
        e('L_end:\ns_endpgm')
        p.end(k, vgpr=256, agpr=256, sgpr=102)
        p.text, added = hazard.fix(p.text, verbose=self.o.get('verbose'))
        return added

if __name__ == '__main__':
    ap = argparse.ArgumentParser()
    ap.add_argument('out'); ap.add_argument('--stamps', action='store_true'); ap.add_argument('-v', action='store_true')
    ap.add_argument('--probe', default=None); ap.add_argument('-o', action='append', default=[])
    a = ap.parse_args()
    opts = dict(verbose=a.v, probe=a.probe)
    for kv in a.o:
        kk, vv = kv.split('='); opts[kk] = int(vv) if vv.lstrip('-').isdigit() else vv
    g = G(a.stamps or a.probe is not None, opts)
    added = g.build()
    g.p.dump(a.out, single=True)
    n = sum(1 for l in g.p.text if l.startswith('  '))
    print(a.out, 'instructions', n, 'nops added', added, 'stamps', g.stamp_names)
    if a.stamps: open(a.out + '.names', 'w').write(' '.join(g.stamp_names))
```

```python
import sys, struct, argparse
from asmlib import Prog, NAME
import hazard

def fbits(x): return '0x%08x' % struct.unpack('<I', struct.pack('<f', x))[0]

F1   = 0x010000
F2   = 0x020000
F3   = 0x040000
F3S  = 0x020000
MODP = 0x0C0000
XBLK = 16640
XH   = 0x140000
ZY   = 0x560000
H2   = 0x980000
X2   = 0xB80000
WGU  = 0xD80000
WD   = 0x1100000
ACT  = 0x12C0000
STMP = 0x3000000
WS_BYTES = 0x10000000
S4   = 131072
L_U  = S4; USZ = 4608
L_P  = S4 + 2*USZ; PSZ = 8256
L_SB = L_P + 2*PSZ
L_Y  = 98304
L_MB = 98304
RST  = 544
L_KH = 0; KHSZ = 10240
L_RC = 2*KHSZ; RCSZ = 64*RST
L_RED = 65536; RSA = 576; RQ = 8*RSA
L_GB = L_RED + 16*RQ
LDS_BYTES = 163840
pX,pAre,pAim,pBre,pBim,pCre,pCim,pLdt = 4,6,8,10,12,14,16,18
pD,pWg,pWu,pWd,pC,pWm,pOut,pWs = 20,24,26,28,30,32,34,38
SRD='s[40:43]'
sL,sW,sTag,sMask,sCnt = 44,45,46,47,48
sLo,sHi = 49,50
sOnes = 51
sMt,sNt,sTb,sDt = 52,53,54,55
sBad = 56
sT = 58
sM = 68
sDsk = 80
sStamp = 82
sDmaL, sDmaG, sDmaT = 4, 5, 6
sWdG, sWdT = 7, 8
sActG, sActT = 9, 10
sActS = 12
sF3o, sF3p = 14, 15
sXg = 16
def sp(i): return f's[{i}:{i+1}]'
def vr(i, n): return f'v[{i}:{i+n-1}]'
def ar(i, n): return f'a[{i}:{i+n-1}]'

class G:
    def __init__(self, stamps=False, opts=None):
        self.p = Prog(); self.stamps = stamps; self.ns = 0; self.o = opts or {}
        self.stamp_names = []; self.nvm = 0; self.nlg = 0; self.tail = []; self.maybe = False
    def opt(self, k, d): return self.o.get(k, d)
    def e(self, s):
        for line in s.split('\n'):
            l = line.strip()
            if not l: continue
            if l.startswith(('buffer_', 'global_')) and not self.maybe: self.nvm += 1
            if l.startswith('ds_') and not self.maybe: self.nlg += 1
            self.p.e(l)
        return self.nvm
    def wvm(self, i): return f'vmcnt({min(63, self.nvm - i)})'
    def wlg(self, i): return f'lgkmcnt({min(15, self.nlg - i)})'
    def stamp(self, name):
        if not self.stamps: return
        if self.o.get('probe') is not None and name != self.o['probe']: return
        if self.o.get('only') and not (name == 'start' or name.startswith(tuple(self.o['only'].split(',')))): return
        if not self.o.get('only') and self.o.get('probe') is None and name.startswith('_'): return
        assert self.ns < 20
        self.e(f's_memrealtime s[22:23]\ns_waitcnt lgkmcnt(0)\ns_mov_b32 s{sStamp+self.ns}, s22')
        self.ns += 1; self.stamp_names.append(name)

    def check_text(self, loads, tags, last):
        Lc = self.p.label('chk'); Lr = self.p.label('retry')
        s = f's_waitcnt {self.wvm(last)}\n{Lc}:\n'
        if len(tags) == 1:
            s += f'v_cmp_ne_u32 vcc, v{tags[0]}, v2\ns_cmp_lg_u64 vcc, 0\ns_cbranch_scc1 {Lr}'
            self.tail.append(f'''{Lr}:
            s_sub_u32 s{sCnt}, s{sCnt}, 1
            s_cbranch_scc1 L_end
            {loads}
            s_waitcnt vmcnt(0)
            s_branch {Lc}''')
        else:
            s += f'v_cmp_ne_u32 {sp(sBad)}, v{tags[0]}, v2\n'
            for t in tags[1:]: s += f'v_cmp_ne_u32 vcc, v{t}, v2\ns_or_b64 {sp(sBad)}, {sp(sBad)}, vcc\n'
            s += f's_cbranch_scc1 {Lr}'
            self.tail.append(f'''{Lr}:
            s_sub_u32 s{sCnt}, s{sCnt}, 1
            s_cbranch_scc1 L_end
            s_mov_b64 exec, {sp(sBad)}
            {loads}
            s_mov_b64 exec, -1
            s_waitcnt vmcnt(0)
            s_branch {Lc}''')
        return s
    def check(self, loads, tags, last): self.e(self.check_text(loads, tags, last))

    def flag_text(self, vaddr, soff):
        return f's_mov_b32 exec_hi, 0\nbuffer_store_dword v2, v{vaddr}, {SRD}, s{soff} offen sc1\ns_mov_b32 exec_hi, -1'

    def stats_partial(self, src, t, vSBw, fill=()):
        a,b,c,d = t,t+1,t+2,t+3
        for m in range(4):
            acc = lambda r: '0' if m == 0 else f'v{r}'
            self.e(f'''v_dot2_f32_bf16 v{a}, v{src+m}, s{sOnes}, {acc(a)}
            v_dot2_f32_bf16 v{b}, v{src+4+m}, s{sOnes}, {acc(b)}
            v_dot2_f32_bf16 v{c}, v{src+m}, v{src+m}, {acc(c)}
            v_dot2_f32_bf16 v{d}, v{src+4+m}, v{src+4+m}, {acc(d)}''')
        self.reduce4(a,b,c,d, fill)
        self.e(f'ds_write_b32 v{vSBw}, v{a}')
    def reduce4(self, a,b,c,d, fill=()):
        fill = list(fill)
        def f(n):
            for _ in range(n):
                if fill: self.e(fill.pop(0))
        f(2); self.e(f'v_permlane32_swap_b32 v{a}, v{b}\nv_permlane32_swap_b32 v{c}, v{d}\nv_add_f32 v{a}, v{a}, v{b}\nv_add_f32 v{c}, v{c}, v{d}')
        f(2); self.e(f'v_permlane16_swap_b32 v{a}, v{c}\nv_add_f32 v{a}, v{a}, v{c}')
        f(2); self.e(f'v_add_f32_dpp v{a}, v{a}, v{a} row_ror:4 row_mask:0xf bank_mask:0xf')
        f(2); self.e(f'v_add_f32_dpp v{a}, v{a}, v{a} row_ror:8 row_mask:0xf bank_mask:0xf')
        self.rest = fill
    def stats_read(self, t, vSBr):
        for w in range(4): self.e(f'ds_read_b128 {vr(t+4*w,4)}, v{vSBr} offset:{16*w}')
        return self.nlg
    def stats_finish(self, t, vInv):
        self.e(f'''
        v_pk_add_f32 {vr(t,2)}, {vr(t,2)}, {vr(t+4,2)}
        v_pk_add_f32 {vr(t+2,2)}, {vr(t+2,2)}, {vr(t+6,2)}
        v_pk_add_f32 {vr(t+8,2)}, {vr(t+8,2)}, {vr(t+12,2)}
        v_pk_add_f32 {vr(t+10,2)}, {vr(t+10,2)}, {vr(t+14,2)}
        v_pk_add_f32 {vr(t,2)}, {vr(t,2)}, {vr(t+8,2)}
        v_pk_add_f32 {vr(t+2,2)}, {vr(t+2,2)}, {vr(t+10,2)}
        v_pk_mul_f32 {vr(t+4,2)}, {vr(t,2)}, {vr(vInv,2)} op_sel_hi:[1,0]
        v_pk_mul_f32 {vr(t+6,2)}, {vr(t+2,2)}, {vr(vInv,2)} op_sel_hi:[1,0]
        v_fma_f32 v{t+5}, -v{t+4}, v{t+4}, v{t+5}
        v_fma_f32 v{t+7}, -v{t+6}, v{t+6}, v{t+7}
        v_max_f32 v{t+5}, 0, v{t+5}
        v_max_f32 v{t+7}, 0, v{t+7}
        v_add_f32 v{t+5}, v{vInv+1}, v{t+5}
        v_add_f32 v{t+7}, v{vInv+1}, v{t+7}
        v_rsq_f32 v{t}, v{t+5}
        v_rsq_f32 v{t+2}, v{t+7}
        v_mul_f32 v{t+1}, -v{t+4}, v{t}
        v_mul_f32 v{t+3}, -v{t+6}, v{t+2}''')
    def cmul(self, d, a, b):
        return [f'v_pk_mul_f32 {vr(d,2)}, {vr(a,2)}, {vr(b,2)} op_sel_hi:[1,0]',
                f'v_pk_fma_f32 {vr(d,2)}, {vr(a,2)}, {vr(b,2)}, {vr(d,2)} op_sel:[1,1,0] op_sel_hi:[0,1,1] neg_lo:[1,0,0]']
    def unpack(self, d, s): return [f'v_lshlrev_b32 v{d}, 16, v{s}', f'v_and_b32 v{d+1}, s{sMask}, v{s}']

    def dma_tile(self, i, slot):
        out = []
        for hf in range(2):
            for e_ in range(4):
                pre = ''
                if e_ == 0:
                    pre = (f's_add_u32 m0, s{sDmaL}, {slot*32768 + hf*4096}\n'
                           f's_add_u32 s{sDmaT}, s{sDmaG}, {i*32768 + hf*4096}\n')
                out.append(pre + f'buffer_load_dwordx4 v1, {SRD}, s{sDmaT} offen offset:{e_*1024} sc1 lds')
        return out

    def build(self):
        p = self.p; e = self.e
        k = NAME + '_kernel'
        p.add_launch(k, 256, 256, LDS_BYTES)
        p.begin(k)
        XR = 4; WM = 12; AB = 28; WG = 34; WDr = 50; EA = 58
        vXO = 3; t = 68
        vInv = 118; vSBw, vSBr = 120, 121; vWgS = 122; vDt = 123; vS = 124; vF = 126; vPolled = 127
        groups = [(0,1,2),(3,4),(5,6)]
        korder = [7*pp + i for g in groups for i in g for pp in range(4)]
        wdq = []
        for T in korder:
            for c in range(2):
                wdq.append((f's_add_u32 s{sWdT}, s{sWdG}, {T*2048}\n' if c == 0 else '') +
                           f'buffer_load_dwordx4 {ar(8*T+4*c,4)}, v1, {SRD}, s{sWdT} offen offset:{1024*c} sc1')
        wd_id = []
        def wd_issue(n):
            for _ in range(n):
                if wdq: wd_id.append(e(wdq.pop(0)))
        e(f'''
        s_load_dwordx16 s[4:19], s[0:1], 0
        s_load_dwordx16 s[20:35], s[0:1], 64
        s_load_dwordx4 s[36:39], s[0:1], 128
        s_cmp_ge_u32 s2, 256
        s_cbranch_scc1 L_end
        v_lshrrev_b32 v{t}, 6, v0
        v_and_b32 v{t+1}, 63, v0
        v_readfirstlane_b32 s{sW}, v{t}
        s_lshr_b32 s3, s2, 3
        s_getpc_b64 {sp(sM)}
        L_pc:
        s_lshl2_add_u32 s{sT}, s3, s{sW}
        s_lshl_b32 s{sM+2}, s{sT}, 8
        s_min_u32 s{sM+2}, s{sM+2}, L_end-L_pc-256
        v_lshl_add_u32 v{t+7}, v{t+1}, 2, s{sM+2}
        global_load_dword v{vPolled}, v{t+7}, {sp(sM)}
        s_and_b32 s{sT+1}, s2, 7
        s_lshl_b32 s{sL}, s{sT+1}, 5
        s_or_b32 s{sL}, s{sL}, s3
        v_lshlrev_b32 v1, 4, v{t+1}
        v_and_b32 v{t+2}, 3, v0
        v_and_b32 v{t+3}, 0xfc, v0
        s_lshl_b32 s{sT+3}, s{sL}, 13
        v_lshl_add_u32 v{t+3}, v{t+3}, 2, s{sT+3}
        v_lshl_add_u32 v{vXO}, v{t+2}, 11, v{t+3}
        v_lshrrev_b32 v{t+4}, 3, v{t+1}
        v_min_u32 v{t+4}, 5, v{t+4}
        v_and_b32 v{t+5}, 0x70, v1
        v_lshl_add_u32 v{t+4}, v{t+4}, 10, v{t+5}
        s_lshl_b32 s{sT+2}, s{sT}, 3
        s_mul_i32 s{sT}, s{sT}, {4*6144}
        s_lshl_b32 s{sT+1}, s{sT+1}, 7
        s_add_u32 s{sT}, s{sT}, s{sT+1}
        s_add_u32 s{sT}, s{sT}, 3072
        v_add_u32 v{t+4}, s{sT}, v{t+4}
        v_add_u32 v{t+5}, 12288, v{t+4}
        s_lshl_b32 s{sT}, s{sL}, 9
        v_lshl_add_u32 v{t+6}, v0, 1, s{sT}
        s_lshl_b32 s{sT+3}, s{sL}, 2
        ''')
        for i in range(6): e(f'v_mov_b32 v{AB+i}, 0')
        e('s_waitcnt lgkmcnt(0)')
        self.stamp('start')
        e(f'''
        s_load_dwordx2 {sp(sT+4)}, {sp(pC)}, s{sT+2}
        global_load_dwordx4 {vr(XR,4)}, v{vXO}, {sp(pX)}''')
        id_x = e(f'global_load_dwordx4 {vr(XR+4,4)}, v{vXO}, {sp(pX)} offset:1024')
        id_wm = e(f'''
        s_load_dword s{sT+6}, {sp(pLdt)}, s{sT+3}
        s_load_dword s{sDsk+1}, {sp(pD)}, s{sT+3}
        global_load_dwordx4 {vr(WM,4)}, v{t+4}, {sp(pWm)} offset:-3072
        global_load_dwordx4 {vr(WM+4,4)}, v{t+4}, {sp(pWm)} offset:3072
        global_load_dwordx4 {vr(WM+8,4)}, v{t+5}, {sp(pWm)} offset:-3072
        global_load_dwordx4 {vr(WM+12,4)}, v{t+5}, {sp(pWm)} offset:3072''')
        id_ep = e(f'global_load_dword v2, v{AB}, {sp(pWs)} sc1')
        for i, ptr in enumerate([pAre,pAim,pBre,pBim,pCre,pCim]):
            id_ab = e(f'global_load_short_d16_hi v{AB+i}, v{t+6}, {sp(ptr)}')
        GR = 144
        def touch():
            e(f'''v_lshlrev_b32 v116, 15, v1
            v_lshlrev_b32 v117, 11, v1
            global_load_dword v116, v116, {sp(pWs)} offset:256
            global_load_dword v117, v117, {sp(pOut)}''')
        if self.opt('touch', 1) == 2: touch()
        e(f'''
        s_mov_b32 s{sMask}, 0xffff0000
        s_mov_b32 s{sLo}, 0x05040100
        s_mov_b32 s{sHi}, 0x07060302
        s_mov_b32 s{sOnes}, 0x3f803f80
        v_lshrrev_b32 v{t+7}, 4, v{t+1}
        v_lshlrev_b32 v{vSBr}, 6, v{t+2}
        v_add_u32 v{vSBr}, {L_SB}, v{vSBr}
        s_lshl_b32 s{sT}, s{sW}, 4
        v_lshl_add_u32 v{vSBw}, v{t+7}, 2, s{sT}
        v_add_u32 v{vSBw}, v{vSBw}, v{vSBr}
        v_mov_b32 v{t+12}, {fbits(-1.4426950408889634)}
        v_lshlrev_b32 v{t+4}, 5, v0
        v_add_u32 v{t+4}, {L_MB}, v{t+4}
        s_min_u32 s{sT}, s{sL}, 223
        s_lshl2_add_u32 s{sT}, s{sT}, s{sW}
        s_bitcmp1_b32 s{sT}, 0
        s_cselect_b32 s0, s{pWu}, s{pWg}
        s_cselect_b32 s1, s{pWu+1}, s{pWg+1}
        s_cselect_b32 s{sT+8}, 256, 0
        s_bfe_u32 s{sT+1}, s{sT}, 0x40001
        s_lshr_b32 s{sT+2}, s{sT}, 5
        s_mul_i32 s{sT+7}, s{sT+1}, {32*3584}
        s_lshl_b32 s{sT+3}, s{sT+2}, 7
        s_add_u32 s{sT+7}, s{sT+7}, s{sT+3}
        v_and_b32 v{t+8}, 15, v{t+1}
        v_mul_u32_u24 v{t+9}, {8*3584}, v{t+7}
        v_lshl_add_u32 v{t+10}, v{t+8}, 3, s{sT+7}
        v_add_u32 v{t+9}, v{t+10}, v{t+9}
        v_lshlrev_b32 v{vWgS}, 9, v{t+7}
        v_lshl_add_u32 v{vWgS}, v{t+8}, 4, v{vWgS}
        s_lshl_b32 s{sT+2}, s{sT+2}, 17
        s_lshl_b32 s{sT+1}, s{sT+1}, 11
        s_add_u32 s{sT+2}, s{sT+2}, s{sT+1}
        s_add_u32 s{sT+8}, s{sT+8}, s{sT+2}
        s_add_u32 s{sT+8}, s{sT+8}, {WGU}
        s_sub_u32 s{sT}, 255, s{sL}
        s_min_u32 s{sT}, s{sT}, 223
        s_and_b32 s{sT+1}, s{sT}, 7
        s_lshr_b32 s{sT+2}, s{sT}, 3
        s_lshl_b32 s{sT+3}, s{sT+2}, 6
        s_add_u32 s{sT+3}, s{sT+3}, s{sW}
        s_lshl3_add_u32 s{sT+3}, s{sT+3}, s{sT+1}
        s_add_u32 s{sT+3}, s{sT+3}, 32
        s_lshl_b32 s{sT+3}, s{sT+3}, 7
        v_lshrrev_b32 v{t+10}, 5, v{t+1}
        v_and_b32 v{t+11}, 31, v{t+1}
        v_lshl_add_u32 v{t+10}, v{t+10}, 14, s{sT+3}
        v_lshl_add_u32 v{t+10}, v{t+11}, 2, v{t+10}
        s_mul_i32 s{sT+1}, s{sT+1}, 112
        s_lshl2_add_u32 s{sT+2}, s{sT+2}, s{sW}
        s_add_u32 s{sT+1}, s{sT+1}, s{sT+2}
        s_lshl_b32 s{sT+1}, s{sT+1}, 11
        s_add_u32 s{sT+9}, s{sT+1}, {WD}
        s_waitcnt lgkmcnt(0)
        s_lshl_b32 s{sT}, s{sT+4}, 16
        s_and_b32 s{sT+1}, s{sT+4}, s{sMask}
        s_lshl_b32 s{sT+2}, s{sT+5}, 16
        s_and_b32 s{sT+3}, s{sT+5}, s{sMask}
        ''')
        self.stamp('_smem')
        vMBw, vMBr = t+4, t+5
        for i in range(4): e(f'v_mul_f32 v{t+13+i}, s{sT+i}, v{t+12}')
        for i in range(4): e(f'v_exp_f32 v{t+13+i}, v{t+13+i}')
        e(f'''
        s_lshl_b32 s{sT+4}, s{sT+6}, 16
        s_and_b32 s{sT+5}, s{sT+6}, s{sMask}
        s_cmp_ge_u32 s{sW}, 2
        s_cselect_b32 s{sT+4}, s{sT+5}, s{sT+4}''')
        for i in range(4): e(f'v_add_f32 v{t+13+i}, 1.0, v{t+13+i}')
        for i in range(4): e(f'v_rcp_f32 v{t+13+i}, v{t+13+i}')
        e(f'v_mul_f32 v{vDt}, s{sT+4}, -v{t+12}')
        for i in range(4): e(f'v_mul_f32 v{t+13+i}, s{sT+i}, v{t+13+i}')
        e(f'v_cvt_pk_bf16_f32 v{vS}, v{t+13}, v{t+14}\nv_cvt_pk_bf16_f32 v{vS+1}, v{t+15}, v{t+16}')
        for jj in range(8):
            e(f'global_load_dwordx2 {vr(WG+2*jj,2)}, v{t+9}, s[0:1] offset:{3584*(jj&1)}')
            if jj & 1 and jj < 7: e(f'v_add_u32 v{t+9}, 7168, v{t+9}')
        for jj in range(8):
            id_w = e(f'global_load_dword v{WDr+jj}, v{t+10}, {sp(pWd)} offset:{-4096 if jj&1==0 else 0}')
            if jj in (1,5): e(f'v_add_u32 v{t+10}, 8192, v{t+10}')
            if jj == 3: e(f'v_add_u32 v{t+10}, {32768-8192}, v{t+10}')
        if self.opt('touch', 1) == 1: touch()
        late = f'''v_and_b32 v{t+5}, 1, v0
        v_bfe_u32 v{t+6}, v0, 1, 1
        v_mul_u32_u24 v{t+6}, 192, v{t+6}
        v_bfe_u32 v{t+7}, v0, 2, 5
        v_lshl_add_u32 v{t+5}, v{t+7}, 1, v{t+5}
        v_add_lshl_u32 v{t+5}, v{t+5}, v{t+6}, 2
        v_add_u32 v{t+5}, {L_MB}, v{t+5}
        v_exp_f32 v{vDt}, v{vDt}'''.split('\n')
        late2 = f'''s_mov_b32 s40, s{pWs}
        s_mov_b32 s41, s{pWs+1}
        s_mov_b32 s42, {WS_BYTES}
        s_mov_b32 s43, 0x20000
        s_mov_b32 s{sCnt}, 40000
        v_mov_b32 v{vInv}, {fbits(1/512)}
        v_mov_b32 v{vInv+1}, {fbits(1e-5)}
        s_mul_i32 s{sT}, s{sL}, {XBLK}
        s_lshl_b32 s{sT+1}, s{sW}, 12
        s_add_u32 s{sT+6}, s{sT}, s{sT+1}
        s_add_u32 s{sT+1}, s{sT+6}, {XH}
        s_lshl1_add_u32 s{sT+2}, s{sL}, s{sW}
        s_lshl_b32 s{sT+2}, s{sT+2}, 10
        s_add_u32 s{sT+2}, s{sT+2}, {MODP}
        s_mov_b32 s{sTag}, 1664525'''.split('\n')
        self.stamp('_pre_x')
        e(f's_waitcnt {self.wvm(id_x)}')
        self.stamp('x_arrived')
        XF = 128
        unp = [x for r in range(2) for i in range(4) for x in self.unpack(XF+8*r+2*i, XR+4*r+i)]
        self.stats_partial(XR, t, vSBw, late)
        assert not self.rest
        self.stamp('_stat1')
        e(f's_waitcnt {self.wvm(id_wm)}')
        self.stamp('_wm')
        MA = 76
        for h in range(2):
            for m in range(4):
                e(f'''v_perm_b32 v{t+16+2*m}, v{WM+8*h+4+m}, v{WM+8*h+m}, s{sLo}
                v_perm_b32 v{t+17+2*m}, v{WM+8*h+4+m}, v{WM+8*h+m}, s{sHi}''')
            for m in range(8):
                e(f'v_dot2_f32_bf16 v{MA+m}, v{t+16+m}, v{vS+h}, {"0" if h==0 else "v%d"%(MA+m)}')
        e(f'ds_write_b128 v{vMBw}, {vr(MA,4)}')
        e(unp.pop(0)); e(unp.pop(0))
        e(f'ds_write_b128 v{vMBw}, {vr(MA+4,4)} offset:16')
        for x in late2: e(x)
        e(f's_waitcnt {self.wvm(id_ep)} lgkmcnt(0)\ns_barrier')
        self.stamp('_bar0')
        ST = 84
        id_st = self.stats_read(ST, vSBr)
        MR = 100
        for w in range(0, 4, 2):
            for i in range(3):
                e(f'ds_read2st64_b32 {vr(MR+3*w+2*i,2)}, v{vMBr} offset0:{8*w+i} offset1:{8*w+8+i}')
        for x in unp: e(x)
        e(f'v_mul_lo_u32 v2, v2, s{sTag}\nv_add_u32 v2, 1013904223, v2')
        for i in range(4): e(f'v_mov_b32 v{GR+4*i+3}, v2')
        e(f's_waitcnt {self.wlg(id_st)}')
        self.stats_finish(ST, vInv)
        for i in range(4):
            for r in range(2):
                x = XF+8*r+2*i
                e(f'v_pk_fma_f32 {vr(x,2)}, {vr(x,2)}, {vr(ST+2*r,2)}, {vr(ST+2*r,2)} op_sel:[0,0,1] op_sel_hi:[1,0,1]')
            for r in range(2):
                x = XF+8*r+2*i
                e(f'v_cvt_pk_bf16_f32 v{GR+4*i+r}, v{x}, v{x+1}')
            e(f'buffer_store_dwordx4 {vr(GR+4*i,4)}, v1, {SRD}, s{sT+1} offen offset:{1024*i} sc1')
        e(f's_waitcnt lgkmcnt(0)\ns_cmp_ge_u32 s{sW}, 2\ns_cbranch_scc1 L_nomod')
        self.maybe = True
        e(f'''
        v_pk_add_f32 {vr(MR,2)}, {vr(MR,2)}, {vr(MR+6,2)}
        v_pk_add_f32 {vr(MR+2,2)}, {vr(MR+2,2)}, {vr(MR+8,2)}
        v_pk_add_f32 {vr(MR+4,2)}, {vr(MR+4,2)}, {vr(MR+10,2)}
        v_mov_b32 v{MR+11}, v2
        v_add_f32 v{MR+8}, v{MR}, v{MR+1}
        v_add_f32 v{MR+9}, v{MR+2}, v{MR+3}
        v_add_f32 v{MR+10}, v{MR+4}, v{MR+5}
        buffer_store_dwordx4 {vr(MR+8,4)}, v1, {SRD}, s{sT+2} offen sc1
        L_nomod:''')
        self.maybe = False
        self.stamp('e1_stored')
        e(f'v_cvt_pk_bf16_f32 v{vDt}, v{vDt}, v{vDt}\nv_lshrrev_b32 v{vF}, 2, v1\nv_lshlrev_b32 v{vDt}, 16, v{vDt}')
        e(f's_waitcnt {self.wvm(id_w)}')
        self.stamp('_warr')
        O = 160
        self.maybe = True
        e(f's_cmp_ge_u32 s{sL}, 224\ns_cbranch_scc1 L_nowg')
        for c in range(4):
            for m in range(4):
                e(f'v_perm_b32 v{O+4*c+m}, v{WG+2*(2*m+1)+(c>>1)}, v{WG+2*(2*m)+(c>>1)}, s{sHi if c&1 else sLo}')
            e(f'buffer_store_dwordx4 {vr(O+4*c,4)}, v{vWgS}, {SRD}, s{sT+8} offen sc1')
            if c < 3: e(f's_add_u32 s{sT+8}, s{sT+8}, 32768')
        e(f'L_nowg:\ns_cmp_lt_u32 s{sL}, 32\ns_cbranch_scc1 L_nowd')
        for c in range(2):
            for m in range(4):
                e(f'v_perm_b32 v{O+16+4*c+m}, v{WDr+2*m+1}, v{WDr+2*m}, s{sHi if c else sLo}')
            e(f'buffer_store_dwordx4 {vr(O+16+4*c,4)}, v1, {SRD}, s{sT+9} offen offset:{1024*c} sc1')
        e('L_nowd:')
        self.maybe = False
        self.stamp('_wjob')
        al, be = 68, 69
        Z1, Z8, Z256, Wc = 70, 72, 74, 76
        q = 78; vRW = 87
        e(f'''
        v_mul_f32 v{al}, v{vDt}, v{AB}
        v_mul_f32 v{be}, v{vDt}, v{AB+1}
        v_mul_f32 v{AB+2}, v{vDt}, v{AB+2}
        v_mul_f32 v{AB+3}, v{vDt}, v{AB+3}
        v_mul_f32 v{q}, {fbits(1.4426950408889634)}, v{al}
        v_mul_f32 v{q+1}, 0.15915494, v{be}
        v_mul_f32 v{Wc}, v{AB+4}, v{AB+2}
        v_mul_f32 v{Wc+1}, v{AB+4}, v{AB+3}
        v_mul_f32 v{q+3}, {fbits(8.0)}, v{q}
        v_mul_f32 v{q+4}, {fbits(8.0)}, v{q+1}
        v_mul_f32 v{q+6}, {fbits(256.0)}, v{q}
        v_mul_f32 v{q+7}, {fbits(256.0)}, v{q+1}
        v_fma_f32 v{Wc}, -v{AB+5}, v{AB+3}, v{Wc}
        v_fma_f32 v{Wc+1}, -v{AB+5}, v{AB+2}, -v{Wc+1}
        s_lshr_b32 s{sT+7}, s{sW}, 1
        s_mul_i32 s{sT}, s{sT+7}, {RCSZ}
        s_add_u32 s{sT}, s{sT}, {L_RC}
        ''')
        for n_ in range(3): e(f'v_exp_f32 v{q+3*n_}, v{q+3*n_}\nv_fract_f32 v{q+3*n_+1}, v{q+3*n_+1}')
        for n_ in range(3): e(f'v_sin_f32 v{q+3*n_+2}, v{q+3*n_+1}\nv_cos_f32 v{q+3*n_+1}, v{q+3*n_+1}')
        e(f'v_and_b32 v{vRW}, 127, v0\nv_lshl_add_u32 v{vRW}, v{vRW}, 2, s{sT}')
        for n_, (Z, conj) in enumerate([(Z1,True),(Z8,False),(Z256,True)]):
            e(f'v_mul_f32 v{Z}, v{q+3*n_}, v{q+3*n_+1}\nv_mul_f32 v{Z+1}, {"-" if conj else ""}v{q+3*n_}, v{q+3*n_+2}')
        def put(src, row, pk):
            return [f'v_cvt_pk_bf16_f32 v{pk}, v{src}, v{src+1}', f'ds_write_b32 v{vRW}, v{pk} offset:{row*RST}']
        Z16 = 78
        R0 = [[f'v_mov_b32 v88, 0x3f80', f'ds_write_b32 v{vRW}, v88'], self.cmul(Z16, Z8, Z8) + put(Z16, 2, 88)]
        R1 = [put(Z8, 1, 84), []]
        cur = [Z16, Z8]; bufs = [[80, 82], [90, 92]]
        for rho in range(3, 32):
            par = rho & 1
            d = bufs[par][(rho >> 1) & 1]
            (R1 if par else R0).append(self.cmul(d, cur[par], Z16) + put(d, rho, 84 if par else 88)); cur[par] = d
        Cq = [put(Wc, 32, 89)]
        cr = {0: Wc}; nxt = [94]
        def newc():
            r = nxt[0]; nxt[0] += 2; return r
        for ee in range(1, 8):
            d = newc() if ee in (2,4,6) else 110
            Cq.append(self.cmul(d, cr[ee-1], Z1) + put(d, 32+ee, 89)); cr[ee] = d
        for n_, ee in enumerate((0,2,4,6)):
            d = newc() if ee in (0,4) else 110
            Cq.append(self.cmul(d, cr[ee], Z256) + put(d, 40+n_, 89)); cr[256+ee] = d
        chain = [(512,256,44),(516,260,45),(768,512,46),(772,516,47),(1024,768,48),(1280,1024,49),(1536,1280,50),(1792,1536,51),(2048,1792,52)]
        rot = [104, 106, 108, 110]
        for n_, (ee, src, row) in enumerate(chain):
            d = rot[n_ % 4]
            Cq.append(self.cmul(d, cr[src], Z256) + put(d, row, 89)); cr[ee] = d
        vKa, vKb, vKw0, vKw1 = 112, 113, 114, 115
        u = 12
        extra = f'''v_and_b32 v{u}, 15, v0
        v_bfe_u32 v{u+1}, v0, 4, 2
        v_mul_u32_u24 v{vKb}, {RST}, v{u}
        v_lshl_add_u32 v{u+2}, v{u+1}, 4, s{sT}
        v_add_u32 v{vKb}, v{u+2}, v{vKb}
        s_and_b32 s{sT+1}, s{sW}, 1
        s_mul_i32 s{sT+2}, s{sT+1}, {16*RST}
        v_add_u32 v{vKa}, s{sT+2}, v{vKb}
        s_mov_b32 s{sT+2}, 0x76543210
        s_mov_b32 s{sT+3}, 0x40406420
        v_lshlrev_b32 v{u+2}, 2, v{u}
        v_lshrrev_b64 {vr(u+4,2)}, v{u+2}, {sp(sT+2)}
        v_and_b32 v{u+4}, 15, v{u+4}
        v_lshlrev_b32 v{u+2}, 1, v{u}
        s_mov_b32 s{sT+2}, 0xFA550000
        v_bfe_u32 v{u+5}, s{sT+2}, v{u+2}, 2
        v_lshl_add_u32 v{u+4}, v{u+5}, 8, v{u+4}
        s_mul_i32 s{sT+2}, s{sT+7}, {KHSZ}
        s_lshl_b32 s{sT+3}, s{sT+1}, 8
        s_add_u32 s{sT+2}, s{sT+2}, s{sT+3}
        v_lshl_add_u32 v{u+6}, v{u+1}, 6, s{sT+2}
        v_lshl_add_u32 v{vKw0}, v{u+4}, 1, v{u+6}
        v_lshl_add_u32 v{vKw1}, v{u}, 9, v{u+6}'''.split('\n')
        for n_ in range(len(Cq)):
            st = [a_[n_] if n_ < len(a_) else None for a_ in (R0, R1, Cq)]
            for j in range(4):
                for a_ in st:
                    if a_ is None:
                        if extra: e(extra.pop(0))
                    elif j < len(a_): e(a_[j])
        for x in extra: e(x)
        self.stamp('kgen1')
        e(f'''
        s_lshl_b32 s{sT+8}, s{sL}, 7
        s_add_u32 s{sT+8}, s{sT+8}, {F1}
        s_waitcnt vmcnt(0) lgkmcnt(0)
        s_barrier''')
        self.stamp('_kbar1')
        KF = 160
        kf_id = []
        for kk in range(8):
            e(f'''ds_read_b128 {vr(KF+12*kk,4)}, v{vKa} offset:{64*kk}
            ds_read_b128 {vr(KF+12*kk+4,4)}, v{vKb} offset:{32*RST+64*kk}
            ds_read_b128 {vr(KF+12*kk+8,4)}, v{vKb} offset:{48*RST+64*kk}''')
            kf_id.append(self.nlg)
            if kk == 3:
                self.maybe = True
                e(f's_cmp_lg_u32 s{sW}, 0\ns_cbranch_scc1 L_nof1\n' + self.flag_text(vF, sT+8) + '\nL_nof1:')
                self.maybe = False
        vEX, vEM = 124, 125
        EG = 12
        e(f'''
        v_bfe_u32 v{t}, v0, 2, 4
        v_and_b32 v{t+1}, 0x30, v1
        v_lshl_add_u32 v{vEM}, v{t}, 11, v{t+1}
        s_lshl_b32 s{sT}, s{sW}, 6
        v_add_u32 v{t}, s{sT}, v{t}
        s_movk_i32 s{sT}, {XBLK}
        v_mad_u32_u24 v{vEX}, v{t}, s{sT}, v{t+1}
        s_and_b32 s{sT}, s{sL}, 0xc0
        s_and_b32 s{sT+1}, s{sL}, 3
        s_lshl4_add_u32 s{sT}, s{sT+1}, s{sT}
        s_bfe_u32 s{sT+1}, s{sL}, 0x40002
        s_add_u32 s{sT}, s{sT}, s{sT+1}
        s_lshl_b32 s{sT}, s{sT}, 6
        s_add_u32 s{sT}, s{sT}, {XH}
        s_add_u32 s{sT+1}, s{sT}, {16*XBLK}
        s_add_u32 s{sT+2}, s{sT}, {32*XBLK}
        s_add_u32 s{sT+3}, s{sT}, {48*XBLK}
        s_lshr_b32 s{sT+4}, s{sL}, 5
        s_lshl_b32 s{sT+4}, s{sT+4}, 16
        s_lshl_b32 s{sT+5}, s3, 6
        s_add_u32 s{sT+4}, s{sT+4}, s{sT+5}
        s_add_u32 s{sT+4}, s{sT+4}, {MODP}
        s_add_u32 s{sT+5}, s{sT+4}, 32768''')
        e1_loads = '\n'.join([f'buffer_load_dwordx4 {vr(EG+16+4*i,4)}, v{vEM}, {SRD}, s{sT+4+i} offen sc1' for i in range(2)] +
                             [f'buffer_load_dwordx4 {vr(EG+4*i,4)}, v{vEX}, {SRD}, s{sT+i} offen sc1' for i in range(4)])
        self.stamp('_kfrd')
        id_e1 = e(e1_loads)
        self.stamp('_e1iss')
        fill = [f'v_lshlrev_b32 v{t}, 3, v0', f'v_cvt_f32_u32 v{t}, v{t}']
        for i in range(5):
            fill += f'''v_add_f32 v{t+1}, {fbits(2.0*i-2)}, v{t}
            v_add_f32 v{t+2}, {fbits(2048+2.0*i-2)}, v{t}
            v_cvt_pk_bf16_f32 v{t+1}, v{t+1}, v{t+2}
            v_and_b32 v{t+2}, s{sMask}, v{t+1}
            v_lshlrev_b32 v{t+1}, 16, v{t+1}
            v_cvt_u32_f32 v{EA+5+i}, v{t+2}
            v_cvt_u32_f32 v{EA+i}, v{t+1}'''.split('\n')
        KD = 80
        for kk in range(8):
            e(f's_waitcnt {self.wlg(kf_id[kk])}')
            for cb in range(2):
                e(f'v_mfma_f32_16x16x32_bf16 {vr(KD+4*cb,4)}, {vr(KF+12*kk,4)}, {vr(KF+12*kk+4+4*cb,4)}, {"0" if kk==0 else vr(KD+4*cb,4)}')
                e(fill.pop(0))
                if cb: e(fill.pop(0))
        for x in fill: e(x)
        self.stamp('_kmf')
        for cb in range(2):
            for j in range(2):
                e(f'v_cvt_pk_bf16_f32 v{KD+8+2*cb+j}, v{KD+4*cb+2*j}, v{KD+4*cb+2*j+1}')
        for cb in range(2):
            for j in range(2):
                va = (vKw0, vKw1)[cb]; off = L_KH + 2048*cb + 32*j
                e(f'ds_write_b16 v{va}, v{KD+8+2*cb+j} offset:{off}\nds_write_b16_d16_hi v{va}, v{KD+8+2*cb+j} offset:{off+16}')
        e(f'''
        v_mov_b32 v{t}, 0
        v_and_b32 v{t+1}, 127, v0
        s_mul_i32 s{sT+8}, s{sT+7}, {USZ}
        s_add_u32 s{sT+8}, s{sT+8}, {L_U}
        v_lshl_add_u32 v{t+1}, v{t+1}, 2, s{sT+8}
        s_mul_i32 s{sT+9}, s{sT+7}, {PSZ}
        s_add_u32 s{sT+9}, s{sT+9}, {L_P}
        v_and_b32 v{t+3}, 15, v0
        v_lshl_add_u32 v{t+2}, v{t+3}, 2, s{sT+9}
        ds_write_b32 v{t+1}, v{t}
        ds_write_b32 v{t+2}, v{t}
        s_waitcnt lgkmcnt(2)
        s_barrier''')
        self.stamp('kgen2')
        KV = 72; PV = 92; vPw = 108; vPA = 109; vUB = 123
        kv_id = []
        for ch in range(2):
            for i in range(10): e(f'ds_read_u16 v{KV+10*ch+i}, v{EA+i} offset:{L_KH+ch*KHSZ}')
            kv_id.append(self.nlg)
        e(f'''
        v_cmp_eq_u32 vcc, 0, v0
        v_lshlrev_b32 v{vPw}, 4, v0
        v_add_u32 v{vPw}, {L_P+64}, v{vPw}
        v_bfe_u32 v{t}, v0, 4, 2
        s_and_b32 s0, s{sW}, 1
        s_lshl_b32 s1, s0, 9
        s_add_u32 s1, s1, {26*4}
        v_add_u32 v{t+2}, s1, v{t+2}
        v_lshlrev_b32 v{vPA}, 5, v{t}
        v_sub_u32 v{vPA}, v{t+2}, v{vPA}
        s_lshl_b32 s1, s0, 8
        s_sub_u32 s{sT+8}, s{sT+8}, s1
        s_add_u32 s{sT+8}, s{sT+8}, {480 - 192}
        v_lshl_add_u32 v{vUB}, v{t+3}, 5, s{sT+8}
        v_lshl_add_u32 v{vUB}, v{t}, 4, v{vUB}''')
        for ch in range(2):
            e(f's_waitcnt {self.wlg(kv_id[ch])}')
            e(f'v_cndmask_b32 v{KV+10*ch}, v{KV+10*ch}, 0, vcc')
            for v in range(2):
                for i in range(4):
                    e(f'v_lshl_or_b32 v{PV+8*ch+4*v+i}, v{KV+10*ch+5*v+i}, 16, v{KV+10*ch+5*v+i+1}')
                e(f'ds_write_b128 v{vPw}, {vr(PV+8*ch+4*v,4)} offset:{ch*PSZ+4096*v}')
        vP1 = 122
        PJ = 110
        e(f'''
        s_lshr_b32 s0, s{sL}, 6
        s_bfe_u32 s1, s{sL}, 0x20003
        s_lshl2_add_u32 s{sMt}, s0, s1
        s_bfe_u32 s0, s{sL}, 0x10005
        s_and_b32 s{sDt}, s{sL}, 7
        s_lshl3_add_u32 s{sNt}, s0, s{sDt}
        s_lshl1_add_u32 s{sTb}, s{sMt}, s0
        s_mul_i32 s0, s{sNt}, 7
        s_lshr_b32 s0, s0, 2
        s_lshl_b32 s0, s0, 3
        v_and_b32 v{t+1}, 31, v0
        v_min_u32 v{t+2}, 23, v{t+1}
        v_add_u32 v{t+2}, s0, v{t+2}
        v_min_u32 v{t+2}, 223, v{t+2}
        v_min_u32 v{t+1}, 27, v{t+1}
        v_cmp_gt_u32 vcc, 512, v1
        v_lshlrev_b32 v{t+1}, 3, v{t+1}
        s_sub_u32 s0, 255, s{sDt}
        v_sub_u32 v{t+1}, s0, v{t+1}
        v_cndmask_b32 v{t+1}, v{t+1}, v{t+2}, vcc
        v_lshlrev_b32 v{vP1}, 7, v{t+1}
        v_add_u32 v{vP1}, {F1}, v{vP1}
        v_cmp_eq_u32 {sp(sM)}, 2, v{t}''')
        for J in range(1,8): e(f'v_add_u32 v{PJ+J-1}, {1024*J}, v{vPA}')
        e(f'v_cndmask_b32 v{t}, 0, 1.0, {sp(sM)}')
        self.stamp('expand')
        self.check(e1_loads, [EG+3, EG+7, EG+11, EG+15, EG+19, EG+23], id_e1)
        self.stamp('e1_ok')
        f1_load = f'buffer_load_dword v{vPolled}, v{vP1}, {SRD}, 0 offen sc1'
        id_f1 = e(f1_load)
        g0 = EG+16
        HF = 36
        e(f'''
        v_add_f32 v{g0}, v{g0}, v{g0+4}
        v_add_f32 v{g0+1}, v{g0+1}, v{g0+5}
        v_add_f32 v{g0+2}, v{g0+2}, v{g0+6}
        v_mov_b32 v{g0+3}, 0''')
        unp = []
        for i in range(4):
            unp += [f'v_lshlrev_b32 v{HF+4*i}, 16, v{EG+4*i}', f'v_lshlrev_b32 v{HF+4*i+1}, 16, v{EG+4*i+1}',
                    f'v_and_b32 v{HF+4*i+2}, s{sMask}, v{EG+4*i}', f'v_and_b32 v{HF+4*i+3}, s{sMask}, v{EG+4*i+1}']
        self.reduce4(g0, g0+1, g0+2, g0+3, unp)
        unp = self.rest
        e(f'''
        v_cvt_pk_bf16_f32 v{g0}, v{g0}, v{g0}
        s_lshl_b32 s{sT}, s{sW}, 10
        v_and_b32 v{g0}, s{sMask}, v{g0}
        s_add_u32 s{sT}, s{sT}, {L_U+512}
        v_add_f32 v{g0}, v{g0}, v{t}
        v_cvt_pk_bf16_f32 v{g0}, v{g0}, v{g0}
        v_and_b32 v{g0}, s{sMask}, v{g0}
        v_add_u32 v{t+1}, s{sT}, v{vF}''')
        lanes = [32,0,33,1,16,17,34,35,2,3,18,19]
        for n_ in range(4): e(f'v_readlane_b32 s{sM+n_}, v{g0}, {lanes[n_]}')
        for x in unp: e(x)
        for i in range(4):
            for ch in range(2):
                h = HF+4*i+2*ch
                e(f'v_pk_fma_f32 {vr(h,2)}, {vr(h,2)}, {sp(sM+2*ch)}, {sp(sM+2*ch)} op_sel:[0,0,1] op_sel_hi:[1,0,1]')
            for ch in range(2):
                h = HF+4*i+2*ch
                e(f'v_cvt_pk_bf16_f32 v{t+2+ch}, v{h}, v{h+1}\nds_write_b32 v{t+1}, v{t+2+ch} offset:{ch*USZ+256*i}')
        e('s_waitcnt lgkmcnt(0)\ns_barrier')
        self.stamp('u_ready')
        BF = 72; ACC = 224; AF = 128
        af = lambda jq, J: AF + 32*jq + 4*J
        pj = lambda J: vPA if J == 0 else PJ+J-1
        def bread(jq, m): return f'ds_read_b128 {vr(BF+4*m,4)}, v{vUB} offset:{512*m+192-64*jq}'
        def aread(jq, J, hh): return f'ds_read2_b32 {vr(af(jq,J)+2*hh,2)}, v{pj(J)} offset0:{32*jq+6-4*hh} offset1:{32*jq+4-4*hh}'
        rid = {}
        def rd(kind, jq, i):
            if kind == 'b': e(bread(jq, i))
            else: e(aread(jq, i, 0)); e(aread(jq, i, 1))
            rid[(kind, jq, i)] = self.nlg
        for i in range(4): rd('b', 0, i); rd('a', 0, i)
        ZG = 12; vYw, vYr = 52, 53
        fill = [f'v_readlane_b32 s{sM+n_}, v{g0}, {lanes[n_]}' for n_ in range(4, 12)]
        fill += f'''s_lshl_b32 s{sDmaL}, s{sW}, 13
        s_mul_i32 s{sDmaG}, s{sNt}, {7*32768}
        s_add_u32 s{sDmaG}, s{sDmaG}, s{sDmaL}
        s_add_u32 s{sDmaG}, s{sDmaG}, {WGU}
        s_lshl2_add_u32 s{sWdG}, s{sDt}, s{sW}
        s_mul_i32 s{sWdG}, s{sWdG}, {56*1024}
        s_add_u32 s{sWdG}, s{sWdG}, {WD}
        s_lshl_b32 s{sDsk}, s{sDsk+1}, 16
        s_and_b32 s{sDsk+1}, s{sDsk+1}, s{sMask}'''.split('\n')
        nprio = len(fill)
        for sc in (sDsk, sM+4):
            for i in range(4):
                for ch in range(2):
                    for j in range(2):
                        fill.append(f'v_mul_f32 v{HF+4*i+2*ch+j}, s{sc+ch}, v{HF+4*i+2*ch+j}')
        fill += f'''s_pack_hh_b32_b16 s{sT}, s{sM+6}, s{sM+7}
        s_pack_hh_b32_b16 s{sT+1}, s{sM+8}, s{sM+9}
        s_pack_hh_b32_b16 s{sT+2}, s{sM+10}, s{sM+11}
        v_and_b32 v{t}, 3, v0
        v_mov_b32 v{t+1}, s{sT}
        v_mov_b32 v{t+2}, s{sT+1}
        v_cmp_eq_u32 {sp(sBad)}, 1, v{t}
        v_mov_b32 v{t+3}, s{sT+2}
        v_mov_b32 v{ZG+3}, v2
        v_cndmask_b32 v{t+1}, v{t+1}, v{t+2}, {sp(sBad)}
        v_cmp_eq_u32 {sp(sBad)}, 2, v{t}
        v_mov_b32 v{ZG+7}, v2
        v_mov_b32 v{ZG+11}, v2
        v_cndmask_b32 v{ZG+2}, v{t+1}, v{t+3}, {sp(sBad)}
        v_mov_b32 v{ZG+15}, v2
        v_mov_b32 v{ZG+6}, v{ZG+2}
        v_mov_b32 v{ZG+10}, v{ZG+2}
        v_mov_b32 v{ZG+14}, v{ZG+2}
        v_and_b32 v{t}, 15, v0
        v_bfe_u32 v{t+1}, v0, 4, 2
        v_bfe_u32 v{t+2}, v0, 1, 2
        v_xor_b32 v{t+2}, v{t+2}, v{t+1}
        v_lshlrev_b32 v{t+2}, 4, v{t+2}
        v_lshl_add_u32 v{vYw}, v{t}, 6, v{t+2}
        s_add_u32 s{sT}, s{sDmaL}, {L_Y}
        v_add_u32 v{vYw}, s{sT}, v{vYw}
        v_bfe_u32 v{t}, v0, 3, 3
        v_lshl_add_u32 v{t+2}, v{t}, 6, v{t+2}
        v_and_b32 v{t}, 1, v0
        v_lshl_add_u32 v{t+2}, v{t}, 3, v{t+2}
        s_lshl_b32 s{sT}, s{sW}, 11
        s_add_u32 s{sT}, s{sT}, {L_Y}
        v_add_u32 v{vYr}, s{sT}, v{t+2}
        s_add_u32 s{sT+6}, s{sT+6}, {ZY}'''.split('\n')
        dq = self.dma_tile(0,0) + self.dma_tile(1,1) + self.dma_tile(2,2)
        nwd_conv = self.opt('wd_conv', 8)
        order = []
        for jq in range(4):
            if jq == 0: order += [(jq, cb-m, m) for cb in range(8) for m in range(cb+1)]
            elif jq == 3: order += [(jq, J, cb-J) for cb in range(8) for J in range(cb+1)]
            else: order += [(jq, J, m) for m in range(8) for J in range(8-m)]
        lastB = {}
        for n, (jq, J, m) in enumerate(order): lastB[(jq, m)] = n
        rq = []
        for i in range(4, 8): rq += [(0, 'b', 0, i), (0, 'a', 0, i)]
        for jq in range(1, 4):
            aa = [(36*(jq-1)+8, 'a', jq, J) for J in range(8)]
            bb = sorted([(lastB[(jq-1, m)]+1, 'b', jq, m) for m in range(8)])
            rq += sorted(aa + bb, key=lambda x: x[0])
        seen = set(); done_w = 0; waited = 0
        ncheck = self.opt('f1_at', 20); pace = self.opt('conv_pace', 4)
        for n, (jq, J, m) in enumerate(order):
            cb = J+m
            while ('a', jq, J) not in rid or ('b', jq, m) not in rid:
                _, kd, a_, b_ = rq.pop(0); rd(kd, a_, b_)
            need = max(rid[('a', jq, J)], rid[('b', jq, m)])
            if need > waited:
                e(f's_waitcnt {self.wlg(need)}'); waited = max(need, self.nlg - 15)
            c_ = ar(ACC+4*cb,4) if cb in seen else '0'; seen.add(cb)
            e(f'v_mfma_f32_16x16x32_bf16 {ar(ACC+4*cb,4)}, {vr(af(jq,J),4)}, {vr(BF+4*m,4)}, {c_}')
            if n == ncheck:
                while nprio > 0: e(fill.pop(0)); nprio -= 1
                self.check(f1_load, [vPolled], id_f1)
            elif n > ncheck and (n - ncheck) % pace == 1 and (dq or nwd_conv):
                if dq: e(dq.pop(0))
                else: wd_issue(1); nwd_conv -= 1
            elif rq and rq[0][0] <= n:
                _, kd, a_, b_ = rq.pop(0); rd(kd, a_, b_)
            elif jq == 3 and done_w < cb and (J >= 4 or done_w < cb-1):
                while fill: e(fill.pop(0))
                e(f'ds_write_b128 v{vYw}, {ar(ACC+4*done_w,4)} offset:{1024*done_w}'); done_w += 1
            else:
                for _ in range(2):
                    if fill: e(fill.pop(0)); nprio -= 1
        assert not rq
        for x in dq + fill: e(x)
        self.stamp('conv')
        while done_w < 8:
            e(f'ds_write_b128 v{vYw}, {ar(ACC+4*done_w,4)} offset:{1024*done_w}'); done_w += 1
        e('s_waitcnt lgkmcnt(0)\ns_barrier')
        YR = 72; y_id = []
        for i in range(4):
            for pw in range(4): e(f'ds_read_b64 {vr(YR+8*i+2*pw,2)}, v{vYr} offset:{8192*pw+512*i}')
            y_id.append(self.nlg)
        for i in range(4):
            e(f's_waitcnt {self.wlg(y_id[i])}')
            for ch in range(2):
                y = YR+8*i+4*ch
                e(f'v_pk_add_f32 {vr(y,2)}, {vr(y,2)}, {vr(y+2,2)}')
            for ch in range(2):
                y = YR+8*i+4*ch
                e(f'v_pk_fma_f32 {vr(y,2)}, {vr(y,2)}, {sp(sM+4)}, {vr(HF+4*i+2*ch,2)} op_sel:[0,{ch},0] op_sel_hi:[1,{ch},1]')
            for r in range(2):
                e(f'v_cvt_pk_bf16_f32 v{ZG+4*i+r}, v{YR+8*i+r}, v{YR+8*i+4+r}')
            id_z = e(f'buffer_store_dwordx4 {vr(ZG+4*i,4)}, v1, {SRD}, s{sT+6} offen offset:{1024*i} sc1')
        self.stamp('z_stored')
        wd_issue(self.opt('wd_zack', 4))
        XF = 36
        for r in range(2):
            for i in range(4):
                for x in self.unpack(XF+8*r+2*i, XR+4*r+i): e(x)
        vZ = 52; vH2 = 53; ZI = 72; vMsk = 54
        vP2 = 24; vXa = 25; vA2 = 26; vA4 = 27; vP3 = 23; vX2 = 22; vAc1 = 21; vC2 = 20
        c1 = -2*1.4426950408889634*0.7978845608028654; c2 = c1*0.044715
        e(f'''
        v_and_b32 v{t}, 0xfc, v0
        v_and_b32 v{t+2}, 0x30, v1
        s_movk_i32 s{sT}, {XBLK}
        v_mad_u32_u24 v{vZ}, v{t}, s{sT}, v{t+2}
        s_lshl_b32 s{sT}, s{sL}, 6
        s_add_u32 s{sT}, s{sT}, {ZY}
        s_add_u32 s{sT+1}, s{sT}, {XBLK}
        s_add_u32 s{sT+2}, s{sT}, {2*XBLK}
        s_add_u32 s{sT+3}, s{sT}, {3*XBLK}
        v_lshrrev_b32 v{t}, 3, v0
        v_and_b32 v{t+1}, 0x70, v1
        v_lshl_add_u32 v{vH2}, v{t}, 10, v{t+1}
        s_lshr_b32 s{sT+4}, s{sL}, 2
        s_lshl_b32 s{sT+4}, s{sT+4}, 7
        s_and_b32 s{sT+5}, s{sL}, 3
        s_add_u32 s{sT+4}, s{sT+4}, s{sT+5}
        s_lshl_b32 s{sT+4}, s{sT+4}, 8
        s_add_u32 s{sT+4}, s{sT+4}, {H2}
        s_mov_b32 s{sT+5}, {X2}
        v_mov_b32 v{vMsk}, s{sMask}
        s_lshl2_add_u32 s{sT+6}, s{sL}, s{sW}
        s_lshl_b32 s{sT+6}, s{sT+6}, 7
        s_add_u32 s{sT+6}, s{sT+6}, {F2}
        s_lshl2_add_u32 s0, s{sMt}, s{sW}
        s_lshl_b32 s{sT+7}, s0, 11
        s_add_u32 s{sT+7}, s{sT+7}, {F2}
        s_lshl_b32 s{sXg}, s0, 15
        s_add_u32 s{sXg}, s{sXg}, {H2}
        s_lshl4_add_u32 s0, s0, s{sNt}
        s_mul_i32 s0, s0, {7*1024}
        s_add_u32 s{sActS}, s0, {ACT}
        s_add_u32 s{sActS+1}, s0, {ACT+4096}
        s_lshl4_add_u32 s0, s{sMt}, s{sNt}
        s_lshl2_add_u32 s0, s0, s{sW}
        s_lshl_b32 s0, s0, 7
        s_add_u32 s{sF3o}, s0, {F3}
        s_lshl2_add_u32 s0, s{sMt}, s{sW}
        s_and_b32 s1, s{sTb}, 1
        s_lshl3_add_u32 s0, s0, s1
        s_lshl_b32 s0, s0, 8
        s_add_u32 s{sF3p}, s0, {F3}
        s_lshl3_add_u32 s0, s{sTb}, s{sW}
        s_mul_i32 s0, s0, {28*1024}
        s_add_u32 s{sActG}, s0, {ACT}
        s_waitcnt {self.wvm(id_z)}''')
        z_loads = '\n'.join(f'buffer_load_dwordx4 {vr(ZI+4*i,4)}, v{vZ}, {SRD}, s{sT+i} offen sc1' for i in range(4))
        id_zl = e(z_loads)
        e(f'''
        v_and_b32 v{vP2}, 15, v0
        v_lshlrev_b32 v{vP2}, 7, v{vP2}
        v_bfe_u32 v{t}, v0, 2, 3
        v_bfe_u32 v{t+3}, v0, 5, 1
        v_lshl_add_u32 v{t+2}, v{t+3}, 6, v{t+2}
        v_lshl_add_u32 v{vXa}, v{t}, 7, v{t+2}
        v_add_u32 v{vA2}, 65536, v1
        v_add_u32 v{vA4}, 131072, v1
        v_add_u32 v{vAc1}, {112*1024}, v1
        v_mov_b32 v{vC2}, {fbits(c2)}
        v_bfe_u32 v{t}, v0, 1, 2
        v_and_b32 v{t+2}, 1, v0
        v_lshlrev_b32 v{t+2}, 7, v{t+2}
        v_lshl_add_u32 v{vP3}, v{t}, 9, v{t+2}
        v_bfe_u32 v{t}, v0, 3, 2
        v_lshl_add_u32 v{t}, v{t}, 1, v{t+3}
        v_lshl_add_u32 v{t}, v{t}, 10, v{t+1}
        s_lshl3_add_u32 s0, s{sTb}, s{sW}
        s_lshl_b32 s0, s0, 6
        s_add_u32 s0, s0, s{sDt}
        s_lshl_b32 s0, s0, 7
        v_add_u32 v{vX2}, s0, v{t}''')
        self.check(z_loads, [ZI+3, ZI+7, ZI+11, ZI+15], id_zl)
        self.stamp('z_ok')
        wd_issue(self.opt('wd_ln2', 6))
        ZF = 88
        for i in range(4):
            for r in range(2):
                for x in self.unpack(ZF+8*r+2*i, ZI+4*i+r): e(x)
            for r in range(2):
                z = ZF+8*r+2*i; x = XF+8*r+2*i
                e(f'v_pk_add_f32 {vr(x,2)}, {vr(x,2)}, {vr(z,2)}')
            for r in range(2):
                x = XF+8*r+2*i
                e(f'v_cvt_pk_bf16_f32 v{XR+4*r+i}, v{x}, v{x+1}')
        unp = [x for r in range(2) for i in range(4) for x in self.unpack(XF+8*r+2*i, XR+4*r+i)]
        self.stats_partial(XR, t, vSBw, unp)
        unp = self.rest
        for r in range(2):
            e(f'buffer_store_dwordx4 {vr(XR+4*r,4)}, v{vXO}, {SRD}, s{sT+5} offen offset:{1024*r} sc1')
        for x in unp: e(x)
        e('s_waitcnt lgkmcnt(0)\ns_barrier')
        ST = 56
        self.stats_read(ST, vSBr)
        GBV = 12
        for i in range(4):
            for kind in range(2):
                d = ZF+8*kind+2*i
                qp = f'quad_perm:[{kind},{kind},{kind},{kind}] row_mask:0xf bank_mask:0xf'
                e(f'v_cvt_f32_bf16_dpp v{d}, v{ZI+4*i+2} {qp}\nv_and_b32_dpp v{d+1}, v{ZI+4*i+2}, v{vMsk} {qp}')
        e('s_waitcnt lgkmcnt(0)')
        self.stats_finish(ST, vInv)
        HO = 104
        for r in range(2):
            for i in range(4):
                x = XF+8*r+2*i
                e(f'v_pk_fma_f32 {vr(x,2)}, {vr(x,2)}, {vr(ST+2*r,2)}, {vr(ST+2*r,2)} op_sel:[0,0,1] op_sel_hi:[1,0,1]')
            for i in range(4):
                x = XF+8*r+2*i
                e(f'v_pk_fma_f32 {vr(x,2)}, {vr(x,2)}, {vr(ZF+2*i,2)}, {vr(ZF+8+2*i,2)}')
            for i in range(4):
                x = XF+8*r+2*i
                e(f'v_cvt_pk_bf16_f32 v{HO+4*r+i}, v{x}, v{x+1}')
            id_h = e(f'buffer_store_dwordx4 {vr(HO+4*r,4)}, v{vH2}, {SRD}, s{sT+4} offen offset:{128*r} sc1')
        self.stamp('h2_stored')
        for i in range(4): e(f'v_mov_b32 v{GBV+i}, v{ZI+4*i+2}')
        e(f's_waitcnt {self.wvm(id_h)}')
        id_fl = e(self.flag_text(vF, sT+6))
        self.stamp('_h2_ack')
        for x in self.dma_tile(3,3): id_t3 = e(x)
        e(f's_barrier\ns_waitcnt {self.wvm(id_fl)}')
        f2_load = f'buffer_load_dword v{vPolled}, v{vP2}, {SRD}, s{sT+7} offen sc1'
        id_f2 = e(f2_load)
        X = 128
        AC = [28, 44, 60, 76]
        WF = 92; NB = 6; LA = 4
        GT = 116; GO = 16; X2R = 4
        P1 = self.opt('p1', 3)
        seq = [(tl, s) for s in range(32) for tl in range(P1)] + [(tl, s) for tl in range(P1,7) for s in range(32)]
        slot = {0:0,1:1,2:2,3:3,4:4,5:0,6:1}
        acc = {tl: AC[tl % 4] for tl in range(7)}
        def wread(n):
            tl, s = seq[n]; sl = slot[tl]
            va = {0:1,1:1,2:vA2,3:vA2,4:vA4}[sl]
            return f'ds_read_b128 {vr(WF+4*(n%NB),4)}, v{va} offset:{(sl&1 if sl<4 else 0)*32768 + 1024*s}'
        for n in range(LA): e(wread(n))
        self.check(f2_load, [vPolled], id_f2)
        self.stamp('f2_ok')
        x_id = []
        def xload():
            s = len(x_id)
            x_id.append(e(f'buffer_load_dwordx4 {vr(X+4*s,4)}, v{vXa}, {SRD}, s{sXg} offen offset:{1024*(s&3)} sc1'))
            if s & 3 == 3 and s < 31: e(f's_add_u32 s{sXg}, s{sXg}, 4096')
        XLA = self.opt('xla', 8)
        for s in range(XLA): xload()
        def gelu(tl):
            a = acc[tl]; out = []
            for hf in range(2):
                E = [a+4*hf+j for j in range(4)]
                out += [f'v_mul_f32 v{GT+j}, v{E[j]}, v{E[j]}' for j in range(4)]
                out += [f'v_fmaak_f32 v{GT+j}, v{GT+j}, v{vC2}, {fbits(c1)}' for j in range(4)]
                out += [f'v_mul_f32 v{GT+j}, v{GT+j}, v{E[j]}' for j in range(4)]
                for j in range(4): out += [f'v_exp_f32 v{GT+j}, v{GT+j}', f'v_mul_f32 v{E[j]+8}, v{E[j]+8}, v{E[j]}']
                for j in range(4): out += [f'v_add_f32 v{GT+j}, 1.0, v{GT+j}']
                for j in range(4): out += [f'v_rcp_f32 v{GT+j}, v{GT+j}']
                for j in range(4): out += [f'v_mul_f32 v{E[j]+8}, v{E[j]+8}, v{GT+j}']
                out += [f'v_cvt_pk_bf16_f32 v{GO+2*hf+j}, v{E[2*j]+8}, v{E[2*j+1]+8}' for j in range(2)]
            out.append(f'buffer_store_dwordx4 {vr(GO,4)}, v1, {SRD}, s{sActS+(tl>>2)} offen offset:{1024*(tl&3)} sc1')
            return [(x, tl) for x in out]
        last = {tl: max(n for n, (a_, _) in enumerate(seq) if a_ == tl) for tl in range(7)}
        first = {tl: min(n for n, (a_, _) in enumerate(seq) if a_ == tl) for tl in range(7)}
        gq = []; vq = []; dma_id = {3: id_t3}; st_id = {}; st_n = {}
        a_id = []
        def aload():
            kk = len(a_id); T, tt = korder[kk >> 1], kk & 1
            if tt == 0: e(f's_add_u32 s{sActT}, s{sActG}, {T*1024}')
            a_id.append(e(f'buffer_load_dwordx4 {vr(X+4*(kk%32),4)}, v{vAc1 if tt else 1}, {SRD}, s{sActT} offen sc1'))
        ACKD = self.opt('ackd', 22); VISD = self.opt('visd', 20); POLD = self.opt('pold', 12)
        flagged = 0; polled = 0; checked = 0; flag_n = {}; poll_n = {}; poll_id = {}
        gend = [sum(len(g) for g in groups[:i+1])*8 for i in range(len(groups))]
        PV3 = [120, 121, 122]
        def f3load(g): return f's_add_u32 s0, s{sF3p}, {g*F3S}\nbuffer_load_dword v{PV3[g]}, v{vP3}, {SRD}, s0 offen sc1'
        def progress(n, force=None):
            nonlocal flagged, polled, checked
            did = False
            if flagged < len(groups) and groups[flagged][-1] in st_id and (n >= st_n[groups[flagged][-1]] + ACKD or force is not None and force >= flagged):
                e(f's_add_u32 s0, s{sF3o}, {flagged*F3S}\ns_waitcnt {self.wvm(st_id[groups[flagged][-1]])}\n' + self.flag_text(vF, 0))
                flag_n[flagged] = n; flagged += 1; did = True
                if force is not None and force >= flagged-1: e(f's_waitcnt {self.wvm(self.nvm)}')
            if polled < flagged and (n >= flag_n[polled] + VISD or force is not None and force >= polled):
                poll_id[polled] = e(f3load(polled)); poll_n[polled] = n; polled += 1; did = True
            if checked < polled and (n >= poll_n[checked] + POLD or force is not None and force >= checked):
                self.check(f3load(checked), [PV3[checked]], poll_id[checked]); checked += 1; did = True
                self.stamp(f'_f3{checked-1}')
            return did
        vpace = self.opt('vpace', 2)
        grate = self.opt('grate', 10)
        for n, (tl, s) in enumerate(seq):
            if n in (1, 48, 96, 128, 160, 192): self.stamp(f'_g{n}')
            if n == last[1] + 1:
                e('s_barrier')
                vq += [(x,'d5') for x in self.dma_tile(5,0)] + [(x,'d6') for x in self.dma_tile(6,1)]
                vq += [(f's_mov_b32 s0, {X2}\nbuffer_load_dwordx4 {vr(X2R,4)}, v{vX2}, {SRD}, s0 offen sc1','x2'),
                       (f's_mov_b32 s0, {X2+32768}\nbuffer_load_dwordx4 {vr(X2R+4,4)}, v{vX2}, {SRD}, s0 offen sc1','x2')]
            for a_ in range(6):
                if n == last[a_] + 4: gq += gelu(a_)
            for a_ in (3,4,5,6):
                if n == first[a_] - LA:
                    while a_ not in dma_id or any(kd == f'd{a_}' for _, kd in vq):
                        x, kd = vq.pop(0); i_ = e(x)
                        if kd[0] == 'd': dma_id[int(kd[1])] = i_
                    e(f's_waitcnt {self.wvm(dma_id[a_])}\ns_barrier')
            w_ = f'lgkmcnt({min(LA-1, len(seq)-1-n)})'
            if tl == 0: w_ = self.wvm(x_id[s]) + ' ' + w_
            e(f's_waitcnt {w_}')
            if s == 0: assert not any(b_ == tl-4 for _, b_ in gq), (n, len(gq))
            c_ = '0' if s == 0 else vr(acc[tl],16)
            e(f'v_mfma_f32_32x32x16_bf16 {vr(acc[tl],16)}, {vr(WF+4*(n%NB),4)}, {vr(X+4*s,4)}, {c_}')
            if n + LA < len(seq): e(wread(n+LA))
            budget = (grate*(n+1))//3 - (grate*n)//3
            if progress(n): budget -= 2
            elif len(x_id) < 32:
                if tl == 0:
                    xload()
                    if len(x_id) == 32: vq += [(x,'d4') for x in self.dma_tile(4,4)]
            elif n % vpace == 0:
                if tl == 6 and checked and len(a_id) < min(s, gend[checked-1]): aload()
                elif vq:
                    x, kd = vq.pop(0); i_ = e(x)
                    if kd[0] == 'd': dma_id[int(kd[1])] = i_
                else: wd_issue(1)
            while gq and budget > 0:
                x, b_ = gq.pop(0); budget -= 1
                i_ = e(x)
                if x.startswith('buffer_'): st_id[b_] = i_; st_n[b_] = n
        assert not vq
        self.stamp('g1_mfma')
        n = len(seq)
        e(f'''
        v_and_b32 v{WF}, 3, v0
        v_cmp_eq_u32 vcc, 2, v{WF}
        v_and_b32 v{WF+1}, 0xfc, v0
        v_lshlrev_b32 v{WF+1}, 2, v{WF+1}
        v_add_u32 v{WF+1}, {L_GB}, v{WF+1}
        s_mov_b64 exec, vcc
        ds_write_b128 v{WF+1}, {vr(GBV,4)}
        s_mov_b64 exec, -1''')
        cnt = 0
        for x, b_ in gq + gelu(6):
            i_ = e(x); cnt += 1
            if x.startswith('buffer_'): st_id[b_] = i_; st_n[b_] = n
            if cnt % 8 == 0:
                n += 1
                if not progress(n) and checked and len(a_id) < min(32, gend[checked-1]): aload()
        self.stamp('gelu6')
        A2 = 28
        vRw = 12; vRr = 13; vG = 14
        fill = f'''v_bfe_u32 v{WF}, v0, 5, 1
        v_and_b32 v{WF+1}, 0x1f0, v1
        s_mul_i32 s{sT}, s{sW}, {4*RQ}
        s_add_u32 s{sT}, s{sT}, {L_RED}
        v_mul_u32_u24 v{WF}, {RSA}, v{WF}
        v_add3_u32 v{vRw}, v{WF}, v{WF+1}, s{sT}
        v_and_b32 v{WF}, 7, v0
        v_lshrrev_b32 v{WF+1}, 3, v0
        v_mul_u32_u24 v{WF+2}, {RSA}, v{WF}
        v_lshl_add_u32 v{vRr}, v{WF+1}, 4, v{WF+2}
        v_add_u32 v{vRr}, {L_RED}, v{vRr}
        s_lshl_b32 s{sT}, s{sDt}, 7
        s_add_u32 s{sT}, s{sT}, {L_GB}
        v_lshl_add_u32 v{vG}, v{WF}, 4, s{sT}
        s_add_u32 s{sT+2}, s{pOut}, 32768
        s_addc_u32 s{sT+3}, s{pOut+1}, 0'''.split('\n')
        XF2 = 96
        for tt in range(2):
            for j in range(4):
                fill += [f'v_lshlrev_b32 v{XF2+8*tt+j}, 16, v{X2R+4*tt+j}', f'v_and_b32 v{XF2+8*tt+4+j}, s{sMask}, v{X2R+4*tt+j}']
        TAILK = self.opt('tailk', 4)
        o2 = [(kk, tt) for kk in range(28-TAILK) for tt in range(2)] + [(kk, tt) for tt in range(2) for kk in range(28-TAILK, 28)]
        ALA = self.opt('ala', 10)
        consumed = set(); wq = []
        for m_, (kk, tt) in enumerate(o2):
            f = 2*kk + tt; T = korder[kk]
            if m_ in (0, 14, 28, 42): self.stamp(f'_h{m_}')
            while len(wd_id) < 2*kk+2: wd_issue(1)
            while len(a_id) <= f:
                g = min(i for i in range(len(groups)) if gend[i] > len(a_id))
                while checked <= g: progress(n, force=g)
                assert len(a_id) < 32 or len(a_id)-32 in consumed
                aload()
            e(f's_waitcnt {self.wvm(max(a_id[f], wd_id[2*kk+1]))}')
            for c in range(2):
                a = A2 + 32*tt + 16*c
                e(f'v_mfma_f32_32x32x16_bf16 {vr(a,16)}, {ar(8*T+4*c,4)}, {vr(X+4*(f%32),4)}, {"0" if kk==0 else vr(a,16)}')
                n += 1
                if progress(n): pass
                elif len(a_id) < 56 and len(a_id) < gend[checked-1] and len(a_id) <= f + ALA and (len(a_id) < 32 or len(a_id)-32 in consumed): aload()
                elif wdq: wd_issue(1)
                if wq and m_ >= 57-TAILK:
                    e(wq.pop(0))
                    if wq: e(wq.pop(0))
                for _ in range(3):
                    if fill: e(fill.pop(0))
            consumed.add(f)
            if m_ == 55-TAILK:
                wq = [f'ds_write_b128 v{vRw}, {vr(A2+16*c+4*i,4)} offset:{c*RQ+2*RSA*i}' for c in range(2) for i in range(4)]
        self.stamp('g2_mfma')
        for x in wq: e(x)
        for c in range(2):
            for i in range(4): e(f'ds_write_b128 v{vRw}, {vr(A2+32+16*c+4*i,4)} offset:{(2+c)*RQ+2*RSA*i}')
        e('s_waitcnt lgkmcnt(0)\ns_barrier')
        GF = 112; RD = 128; r_id = []
        e(f'ds_read_b128 {vr(GF+8,4)}, v{vG}'); g_id = self.nlg
        e(f'v_add_u32 v{vRw}, {8*RQ}, v{vRr}')
        for q_ in range(4):
            for w in range(4):
                e(f'ds_read_b128 {vr(RD+16*q_+4*w,4)}, v{vRr if w<2 else vRw} offset:{(4*(w&1)+q_)*RQ}')
            r_id.append(self.nlg)
            if q_ == 2:
                e(f's_waitcnt {self.wlg(g_id)}')
                for j in range(4): e(f'v_lshlrev_b32 v{GF+j}, 16, v{GF+8+j}\nv_and_b32 v{GF+4+j}, s{sMask}, v{GF+8+j}')
        OO = 28
        for tt in range(2):
            for c in range(2):
                q_ = 2*tt+c; r = RD+16*q_
                e(f's_waitcnt {self.wlg(r_id[q_])}')
                for hh in range(2):
                    e(f'v_pk_add_f32 {vr(r+2*hh,2)}, {vr(r+2*hh,2)}, {vr(r+4+2*hh,2)}\nv_pk_add_f32 {vr(r+8+2*hh,2)}, {vr(r+8+2*hh,2)}, {vr(r+12+2*hh,2)}')
                for hh in range(2):
                    e(f'v_pk_add_f32 {vr(r+2*hh,2)}, {vr(r+2*hh,2)}, {vr(r+8+2*hh,2)}')
                for hh in range(2):
                    e(f'v_pk_fma_f32 {vr(r+2*hh,2)}, {vr(r+2*hh,2)}, {vr(GF+4*c+2*hh,2)}, {vr(XF2+8*tt+4*c+2*hh,2)}')
            for j in range(4):
                e(f'v_cvt_pk_bf16_f32 v{OO+4*tt+j}, v{RD+32*tt+j}, v{RD+32*tt+16+j}')
            e(f'global_store_dwordx4 v{vX2}, {vr(OO+4*tt,4)}, {sp(pOut) if tt==0 else sp(sT+2)} {self.opt("outflag","sc1").replace("_"," ").replace("none","")}')
        self.stamp('end')
        e(f'''
        s_or_b32 s0, s{sL}, s{sW}
        s_cbranch_scc1 L_noep''')
        e(self.flag_text(vF, 0))
        e('L_noep:')
        if self.stamps:
            e(f'''
            s_lshl2_add_u32 s{sT}, s{sL}, s{sW}
            s_lshl_b32 s{sT}, s{sT}, 7
            s_add_u32 s{sT}, s{sT}, {STMP}
            v_mov_b32 v4, 0
            s_mov_b64 exec, 1''')
            for i in range(self.ns):
                e(f'v_mov_b32 v5, s{sStamp+i}\nbuffer_store_dword v5, v4, {SRD}, s{sT} offen offset:{4*i}')
            e(f'v_mov_b32 v5, s{sCnt}\nbuffer_store_dword v5, v4, {SRD}, s{sT} offen offset:124')
        if self.o.get('probe') is not None:
            kk = self.stamp_names.index(self.o['probe'])
            e(f'''
            s_add_u32 s{sT}, s{sStamp+kk}, 5000
            L_spin:
            s_sleep 1
            s_memrealtime s[22:23]
            s_waitcnt lgkmcnt(0)
            s_sub_u32 s{sT+1}, s22, s{sT}
            s_cmp_lt_i32 s{sT+1}, 0
            s_cbranch_scc1 L_spin''')
        e('s_endpgm')
        for x in self.tail: e(x)
        e('L_end:\ns_endpgm')
        p.end(k, vgpr=256, agpr=256, sgpr=102)
        p.text, added = hazard.fix(p.text, verbose=self.o.get('verbose'))
        return added

if __name__ == '__main__':
    ap = argparse.ArgumentParser()
    ap.add_argument('out'); ap.add_argument('--stamps', action='store_true'); ap.add_argument('-v', action='store_true')
    ap.add_argument('--probe', default=None); ap.add_argument('-o', action='append', default=[])
    a = ap.parse_args()
    opts = dict(verbose=a.v, probe=a.probe)
    for kv in a.o:
        kk, vv = kv.split('='); opts[kk] = int(vv) if vv.lstrip('-').isdigit() else vv
    g = G(a.stamps or a.probe is not None, opts)
    added = g.build()
    g.p.dump(a.out, single=True)
    n = sum(1 for l in g.p.text if l.startswith('  '))
    print(a.out, 'instructions', n, 'nops added', added, 'stamps', g.stamp_names)
    if a.stamps: open(a.out + '.names', 'w').write(' '.join(g.stamp_names))
```

```python
import sys, struct, argparse
from asmlib import Prog, NAME
import hazard

def fbits(x): return '0x%08x' % struct.unpack('<I', struct.pack('<f', x))[0]

F1   = 0x010000
F2   = 0x020000
F3   = 0x040000
F3S  = 0x020000
MODP = 0x0C0000
XBLK = 16640
XH   = 0x140000
ZY   = 0x560000
H2   = 0x980000
X2   = 0xB80000
WGU  = 0xD80000
WD   = 0x1100000
ACT  = 0x12C0000
STMP = 0x3000000
WS_BYTES = 0x10000000
S4   = 131072
L_U  = S4; USZ = 4608
L_P  = S4 + 2*USZ; PSZ = 8256
L_SB = L_P + 2*PSZ
L_Y  = 98304
L_MB = 98304
RST  = 544
L_KH = 0; KHSZ = 10240
L_RC = 2*KHSZ; RCSZ = 64*RST
L_RED = 65536; RSA = 576; RQ = 8*RSA
L_GB = L_RED + 16*RQ
LDS_BYTES = 163840
pX,pAre,pAim,pBre,pBim,pCre,pCim,pLdt = 4,6,8,10,12,14,16,18
pD,pWg,pWu,pWd,pC,pWm,pOut,pWs = 20,24,26,28,30,32,34,38
SRD='s[40:43]'
sL,sW,sTag,sMask,sCnt = 44,45,46,47,48
sLo,sHi = 49,50
sOnes = 51
sMt,sNt,sTb,sDt = 52,53,54,55
sBad = 56
sT = 58
sM = 68
sDsk = 80
sStamp = 82
sDmaL, sDmaG, sDmaT = 4, 5, 6
sWdG, sWdT = 7, 8
sActG, sActT = 9, 10
sActS = 12
sF3o, sF3p = 14, 15
sXg = 16
def sp(i): return f's[{i}:{i+1}]'
def vr(i, n): return f'v[{i}:{i+n-1}]'
def ar(i, n): return f'a[{i}:{i+n-1}]'

class G:
    def __init__(self, stamps=False, opts=None):
        self.p = Prog(); self.stamps = stamps; self.ns = 0; self.o = opts or {}
        self.stamp_names = []; self.nvm = 0; self.nlg = 0; self.tail = []; self.maybe = False
    def opt(self, k, d): return self.o.get(k, d)
    def e(self, s):
        for line in s.split('\n'):
            l = line.strip()
            if not l: continue
            if l.startswith(('buffer_', 'global_')) and not self.maybe: self.nvm += 1
            if l.startswith('ds_') and not self.maybe: self.nlg += 1
            self.p.e(l)
        return self.nvm
    def wvm(self, i): return f'vmcnt({min(63, self.nvm - i)})'
    def wlg(self, i): return f'lgkmcnt({min(15, self.nlg - i)})'
    def stamp(self, name):
        if not self.stamps: return
        if self.o.get('probe') is not None and name != self.o['probe']: return
        if self.o.get('only') and not (name == 'start' or name.startswith(tuple(self.o['only'].split(',')))): return
        if not self.o.get('only') and self.o.get('probe') is None and name.startswith('_'): return
        assert self.ns < 20
        self.e(f's_memrealtime s[22:23]\ns_waitcnt lgkmcnt(0)\ns_mov_b32 s{sStamp+self.ns}, s22')
        self.ns += 1; self.stamp_names.append(name)

    def check_text(self, loads, tags, last):
        Lc = self.p.label('chk'); Lr = self.p.label('retry')
        s = f's_waitcnt {self.wvm(last)}\n{Lc}:\n'
        if len(tags) == 1:
            s += f'v_cmp_ne_u32 vcc, v{tags[0]}, v2\ns_cmp_lg_u64 vcc, 0\ns_cbranch_scc1 {Lr}'
            self.tail.append(f'''{Lr}:
            s_sub_u32 s{sCnt}, s{sCnt}, 1
            s_cbranch_scc1 L_end
            {loads}
            s_waitcnt vmcnt(0)
            s_branch {Lc}''')
        else:
            s += f'v_cmp_ne_u32 {sp(sBad)}, v{tags[0]}, v2\n'
            for t in tags[1:]: s += f'v_cmp_ne_u32 vcc, v{t}, v2\ns_or_b64 {sp(sBad)}, {sp(sBad)}, vcc\n'
            s += f's_cbranch_scc1 {Lr}'
            self.tail.append(f'''{Lr}:
            s_sub_u32 s{sCnt}, s{sCnt}, 1
            s_cbranch_scc1 L_end
            s_mov_b64 exec, {sp(sBad)}
            {loads}
            s_mov_b64 exec, -1
            s_waitcnt vmcnt(0)
            s_branch {Lc}''')
        return s
    def check(self, loads, tags, last): self.e(self.check_text(loads, tags, last))

    def flag_text(self, vaddr, soff):
        return f's_mov_b32 exec_hi, 0\nbuffer_store_dword v2, v{vaddr}, {SRD}, s{soff} offen sc1\ns_mov_b32 exec_hi, -1'

    def stats_partial(self, src, t, vSBw, fill=()):
        a,b,c,d = t,t+1,t+2,t+3
        for m in range(4):
            acc = lambda r: '0' if m == 0 else f'v{r}'
            self.e(f'''v_dot2_f32_bf16 v{a}, v{src+m}, s{sOnes}, {acc(a)}
            v_dot2_f32_bf16 v{b}, v{src+4+m}, s{sOnes}, {acc(b)}
            v_dot2_f32_bf16 v{c}, v{src+m}, v{src+m}, {acc(c)}
            v_dot2_f32_bf16 v{d}, v{src+4+m}, v{src+4+m}, {acc(d)}''')
        self.reduce4(a,b,c,d, fill)
        self.e(f'ds_write_b32 v{vSBw}, v{a}')
    def reduce4(self, a,b,c,d, fill=()):
        fill = list(fill)
        def f(n):
            for _ in range(n):
                if fill: self.e(fill.pop(0))
        f(2); self.e(f'v_permlane32_swap_b32 v{a}, v{b}\nv_permlane32_swap_b32 v{c}, v{d}\nv_add_f32 v{a}, v{a}, v{b}\nv_add_f32 v{c}, v{c}, v{d}')
        f(2); self.e(f'v_permlane16_swap_b32 v{a}, v{c}\nv_add_f32 v{a}, v{a}, v{c}')
        f(2); self.e(f'v_add_f32_dpp v{a}, v{a}, v{a} row_ror:4 row_mask:0xf bank_mask:0xf')
        f(2); self.e(f'v_add_f32_dpp v{a}, v{a}, v{a} row_ror:8 row_mask:0xf bank_mask:0xf')
        self.rest = fill
    def stats_read(self, t, vSBr):
        for w in range(4): self.e(f'ds_read_b128 {vr(t+4*w,4)}, v{vSBr} offset:{16*w}')
        return self.nlg
    def stats_finish(self, t, vInv):
        self.e(f'''
        v_pk_add_f32 {vr(t,2)}, {vr(t,2)}, {vr(t+4,2)}
        v_pk_add_f32 {vr(t+2,2)}, {vr(t+2,2)}, {vr(t+6,2)}
        v_pk_add_f32 {vr(t+8,2)}, {vr(t+8,2)}, {vr(t+12,2)}
        v_pk_add_f32 {vr(t+10,2)}, {vr(t+10,2)}, {vr(t+14,2)}
        v_pk_add_f32 {vr(t,2)}, {vr(t,2)}, {vr(t+8,2)}
        v_pk_add_f32 {vr(t+2,2)}, {vr(t+2,2)}, {vr(t+10,2)}
        v_pk_mul_f32 {vr(t+4,2)}, {vr(t,2)}, {vr(vInv,2)} op_sel_hi:[1,0]
        v_pk_mul_f32 {vr(t+6,2)}, {vr(t+2,2)}, {vr(vInv,2)} op_sel_hi:[1,0]
        v_fma_f32 v{t+5}, -v{t+4}, v{t+4}, v{t+5}
        v_fma_f32 v{t+7}, -v{t+6}, v{t+6}, v{t+7}
        v_max_f32 v{t+5}, 0, v{t+5}
        v_max_f32 v{t+7}, 0, v{t+7}
        v_add_f32 v{t+5}, v{vInv+1}, v{t+5}
        v_add_f32 v{t+7}, v{vInv+1}, v{t+7}
        v_rsq_f32 v{t}, v{t+5}
        v_rsq_f32 v{t+2}, v{t+7}
        v_mul_f32 v{t+1}, -v{t+4}, v{t}
        v_mul_f32 v{t+3}, -v{t+6}, v{t+2}''')
    def cmul(self, d, a, b):
        return [f'v_pk_mul_f32 {vr(d,2)}, {vr(a,2)}, {vr(b,2)} op_sel_hi:[1,0]',
                f'v_pk_fma_f32 {vr(d,2)}, {vr(a,2)}, {vr(b,2)}, {vr(d,2)} op_sel:[1,1,0] op_sel_hi:[0,1,1] neg_lo:[1,0,0]']
    def unpack(self, d, s): return [f'v_lshlrev_b32 v{d}, 16, v{s}', f'v_and_b32 v{d+1}, s{sMask}, v{s}']

    def dma_tile(self, i, slot):
        out = []
        for hf in range(2):
            for e_ in range(4):
                pre = ''
                if e_ == 0:
                    pre = (f's_add_u32 m0, s{sDmaL}, {slot*32768 + hf*4096}\n'
                           f's_add_u32 s{sDmaT}, s{sDmaG}, {i*32768 + hf*4096}\n')
                out.append(pre + f'buffer_load_dwordx4 v1, {SRD}, s{sDmaT} offen offset:{e_*1024} sc1 lds')
        return out

    def build(self):
        p = self.p; e = self.e
        k = NAME + '_kernel'
        p.add_launch(k, 256, 256, LDS_BYTES)
        p.begin(k)
        XR = 4; WM = 12; AB = 28; WG = 34; WDr = 50; EA = 58
        vXO = 3; t = 68
        vInv = 118; vSBw, vSBr = 120, 121; vWgS = 122; vDt = 123; vS = 124; vF = 126; vPolled = 127
        groups = [(0,1,2),(3,4),(5,6)]
        korder = [7*pp + i for g in groups for i in g for pp in range(4)]
        wdq = []
        for T in korder:
            for c in range(2):
                wdq.append((f's_add_u32 s{sWdT}, s{sWdG}, {T*2048}\n' if c == 0 else '') +
                           f'buffer_load_dwordx4 {ar(8*T+4*c,4)}, v1, {SRD}, s{sWdT} offen offset:{1024*c} sc1')
        wd_id = []
        def wd_issue(n):
            for _ in range(n):
                if wdq: wd_id.append(e(wdq.pop(0)))
        e(f'''
        s_load_dwordx16 s[4:19], s[0:1], 0
        s_load_dwordx16 s[20:35], s[0:1], 64
        s_load_dwordx4 s[36:39], s[0:1], 128
        s_cmp_ge_u32 s2, 256
        s_cbranch_scc1 L_end
        v_lshrrev_b32 v{t}, 6, v0
        v_and_b32 v{t+1}, 63, v0
        v_readfirstlane_b32 s{sW}, v{t}
        s_lshr_b32 s3, s2, 3
        s_getpc_b64 {sp(sM)}
        L_pc:
        s_lshl2_add_u32 s{sT}, s3, s{sW}
        s_lshl_b32 s{sM+2}, s{sT}, 8
        s_min_u32 s{sM+2}, s{sM+2}, L_end-L_pc-256
        v_lshl_add_u32 v{t+7}, v{t+1}, 2, s{sM+2}
        global_load_dword v{vPolled}, v{t+7}, {sp(sM)}
        s_and_b32 s{sT+1}, s2, 7
        s_lshl_b32 s{sL}, s{sT+1}, 5
        s_or_b32 s{sL}, s{sL}, s3
        v_lshlrev_b32 v1, 4, v{t+1}
        v_and_b32 v{t+2}, 3, v0
        v_and_b32 v{t+3}, 0xfc, v0
        s_lshl_b32 s{sT+3}, s{sL}, 13
        v_lshl_add_u32 v{t+3}, v{t+3}, 2, s{sT+3}
        v_lshl_add_u32 v{vXO}, v{t+2}, 11, v{t+3}
        v_lshrrev_b32 v{t+4}, 3, v{t+1}
        v_min_u32 v{t+4}, 5, v{t+4}
        v_and_b32 v{t+5}, 0x70, v1
        v_lshl_add_u32 v{t+4}, v{t+4}, 10, v{t+5}
        s_lshl_b32 s{sT+2}, s{sT}, 3
        s_mul_i32 s{sT}, s{sT}, {4*6144}
        s_lshl_b32 s{sT+1}, s{sT+1}, 7
        s_add_u32 s{sT}, s{sT}, s{sT+1}
        s_add_u32 s{sT}, s{sT}, 3072
        v_add_u32 v{t+4}, s{sT}, v{t+4}
        v_add_u32 v{t+5}, 12288, v{t+4}
        s_lshl_b32 s{sT}, s{sL}, 9
        v_lshl_add_u32 v{t+6}, v0, 1, s{sT}
        s_lshl_b32 s{sT+3}, s{sL}, 2
        ''')
        for i in range(6): e(f'v_mov_b32 v{AB+i}, 0')
        e('s_waitcnt lgkmcnt(0)')
        self.stamp('start')
        e(f'''
        s_load_dwordx2 {sp(sT+4)}, {sp(pC)}, s{sT+2}
        global_load_dwordx4 {vr(XR,4)}, v{vXO}, {sp(pX)}''')
        id_x = e(f'global_load_dwordx4 {vr(XR+4,4)}, v{vXO}, {sp(pX)} offset:1024')
        id_wm = e(f'''
        s_load_dword s{sT+6}, {sp(pLdt)}, s{sT+3}
        s_load_dword s{sDsk+1}, {sp(pD)}, s{sT+3}
        global_load_dwordx4 {vr(WM,4)}, v{t+4}, {sp(pWm)} offset:-3072
        global_load_dwordx4 {vr(WM+4,4)}, v{t+4}, {sp(pWm)} offset:3072
        global_load_dwordx4 {vr(WM+8,4)}, v{t+5}, {sp(pWm)} offset:-3072
        global_load_dwordx4 {vr(WM+12,4)}, v{t+5}, {sp(pWm)} offset:3072''')
        id_ep = e(f'global_load_dword v2, v{AB}, {sp(pWs)} sc1')
        for i, ptr in enumerate([pAre,pAim,pBre,pBim,pCre,pCim]):
            id_ab = e(f'global_load_short_d16_hi v{AB+i}, v{t+6}, {sp(ptr)}')
        GR = 144
        def touch():
            e(f'''v_lshlrev_b32 v116, 15, v1
            v_lshlrev_b32 v117, 11, v1
            global_load_dword v116, v116, {sp(pWs)} offset:256
            global_load_dword v117, v117, {sp(pOut)}''')
        if self.opt('touch', 0) == 2: touch()
        e(f'''
        s_mov_b32 s{sMask}, 0xffff0000
        s_mov_b32 s{sLo}, 0x05040100
        s_mov_b32 s{sHi}, 0x07060302
        s_mov_b32 s{sOnes}, 0x3f803f80
        v_lshrrev_b32 v{t+7}, 4, v{t+1}
        v_lshlrev_b32 v{vSBr}, 6, v{t+2}
        v_add_u32 v{vSBr}, {L_SB}, v{vSBr}
        s_lshl_b32 s{sT}, s{sW}, 4
        v_lshl_add_u32 v{vSBw}, v{t+7}, 2, s{sT}
        v_add_u32 v{vSBw}, v{vSBw}, v{vSBr}
        v_mov_b32 v{t+12}, {fbits(-1.4426950408889634)}
        v_lshlrev_b32 v{t+4}, 5, v0
        v_add_u32 v{t+4}, {L_MB}, v{t+4}
        s_min_u32 s{sT}, s{sL}, 223
        s_lshl2_add_u32 s{sT}, s{sT}, s{sW}
        s_bitcmp1_b32 s{sT}, 0
        s_cselect_b32 s0, s{pWu}, s{pWg}
        s_cselect_b32 s1, s{pWu+1}, s{pWg+1}
        s_cselect_b32 s{sT+8}, 256, 0
        s_bfe_u32 s{sT+1}, s{sT}, 0x40001
        s_lshr_b32 s{sT+2}, s{sT}, 5
        s_mul_i32 s{sT+7}, s{sT+1}, {32*3584}
        s_lshl_b32 s{sT+3}, s{sT+2}, 7
        s_add_u32 s{sT+7}, s{sT+7}, s{sT+3}
        v_and_b32 v{t+8}, 15, v{t+1}
        v_mul_u32_u24 v{t+9}, {8*3584}, v{t+7}
        v_lshl_add_u32 v{t+10}, v{t+8}, 3, s{sT+7}
        v_add_u32 v{t+9}, v{t+10}, v{t+9}
        v_lshlrev_b32 v{vWgS}, 9, v{t+7}
        v_lshl_add_u32 v{vWgS}, v{t+8}, 4, v{vWgS}
        s_lshl_b32 s{sT+2}, s{sT+2}, 17
        s_lshl_b32 s{sT+1}, s{sT+1}, 11
        s_add_u32 s{sT+2}, s{sT+2}, s{sT+1}
        s_add_u32 s{sT+8}, s{sT+8}, s{sT+2}
        s_add_u32 s{sT+8}, s{sT+8}, {WGU}
        s_sub_u32 s{sT}, 255, s{sL}
        s_min_u32 s{sT}, s{sT}, 223
        s_and_b32 s{sT+1}, s{sT}, 7
        s_lshr_b32 s{sT+2}, s{sT}, 3
        s_lshl_b32 s{sT+3}, s{sT+2}, 6
        s_add_u32 s{sT+3}, s{sT+3}, s{sW}
        s_lshl3_add_u32 s{sT+3}, s{sT+3}, s{sT+1}
        s_add_u32 s{sT+3}, s{sT+3}, 32
        s_lshl_b32 s{sT+3}, s{sT+3}, 7
        v_lshrrev_b32 v{t+10}, 5, v{t+1}
        v_and_b32 v{t+11}, 31, v{t+1}
        v_lshl_add_u32 v{t+10}, v{t+10}, 14, s{sT+3}
        v_lshl_add_u32 v{t+10}, v{t+11}, 2, v{t+10}
        s_mul_i32 s{sT+1}, s{sT+1}, 112
        s_lshl2_add_u32 s{sT+2}, s{sT+2}, s{sW}
        s_add_u32 s{sT+1}, s{sT+1}, s{sT+2}
        s_lshl_b32 s{sT+1}, s{sT+1}, 11
        s_add_u32 s{sT+9}, s{sT+1}, {WD}
        s_waitcnt lgkmcnt(0)
        s_lshl_b32 s{sT}, s{sT+4}, 16
        s_and_b32 s{sT+1}, s{sT+4}, s{sMask}
        s_lshl_b32 s{sT+2}, s{sT+5}, 16
        s_and_b32 s{sT+3}, s{sT+5}, s{sMask}
        ''')
        self.stamp('_smem')
        vMBw, vMBr = t+4, t+5
        for i in range(4): e(f'v_mul_f32 v{t+13+i}, s{sT+i}, v{t+12}')
        for i in range(4): e(f'v_exp_f32 v{t+13+i}, v{t+13+i}')
        e(f'''
        s_lshl_b32 s{sT+4}, s{sT+6}, 16
        s_and_b32 s{sT+5}, s{sT+6}, s{sMask}
        s_cmp_ge_u32 s{sW}, 2
        s_cselect_b32 s{sT+4}, s{sT+5}, s{sT+4}''')
        for i in range(4): e(f'v_add_f32 v{t+13+i}, 1.0, v{t+13+i}')
        for i in range(4): e(f'v_rcp_f32 v{t+13+i}, v{t+13+i}')
        e(f'v_mul_f32 v{vDt}, s{sT+4}, -v{t+12}')
        for i in range(4): e(f'v_mul_f32 v{t+13+i}, s{sT+i}, v{t+13+i}')
        e(f'v_cvt_pk_bf16_f32 v{vS}, v{t+13}, v{t+14}\nv_cvt_pk_bf16_f32 v{vS+1}, v{t+15}, v{t+16}')
        e(f's_lshl_b32 s{sT+7}, s{sW}, 6\ns_add_u32 s{sT+7}, s{sT+7}, {L_MB}')
        for jj in range(8):
            e(f'global_load_dwordx2 {vr(WG+2*jj,2)}, v{t+9}, s[0:1] offset:{3584*(jj&1)}')
            if jj & 1 and jj < 7: e(f'v_add_u32 v{t+9}, 7168, v{t+9}')
        for jj in range(8):
            id_w = e(f'global_load_dword v{WDr+jj}, v{t+10}, {sp(pWd)} offset:{-4096 if jj&1==0 else 0}')
            if jj in (1,5): e(f'v_add_u32 v{t+10}, 8192, v{t+10}')
            if jj == 3: e(f'v_add_u32 v{t+10}, {32768-8192}, v{t+10}')
        if self.opt('touch', 0) == 1: touch()
        late = f'''v_and_b32 v{t+5}, 1, v0
        v_bfe_u32 v{t+6}, v0, 1, 1
        v_mul_u32_u24 v{t+6}, 192, v{t+6}
        v_bfe_u32 v{t+7}, v0, 2, 3
        v_lshl_add_u32 v{t+5}, v{t+7}, 1, v{t+5}
        v_add_lshl_u32 v{t+5}, v{t+5}, v{t+6}, 2
        v_add_u32 v{t+5}, s{sT+7}, v{t+5}
        v_exp_f32 v{vDt}, v{vDt}'''.split('\n')
        late2 = f'''s_mov_b32 s40, s{pWs}
        s_mov_b32 s41, s{pWs+1}
        s_mov_b32 s42, {WS_BYTES}
        s_mov_b32 s43, 0x20000
        s_mov_b32 s{sCnt}, 40000
        v_mov_b32 v{vInv}, {fbits(1/512)}
        v_mov_b32 v{vInv+1}, {fbits(1e-5)}
        s_mul_i32 s{sT}, s{sL}, {XBLK}
        s_lshl_b32 s{sT+1}, s{sW}, 12
        s_add_u32 s{sT+6}, s{sT}, s{sT+1}
        s_add_u32 s{sT+1}, s{sT+6}, {XH}
        s_lshl2_add_u32 s{sT+2}, s{sL}, s{sW}
        s_lshl_b32 s{sT+2}, s{sT+2}, 9
        s_add_u32 s{sT+2}, s{sT+2}, {MODP}
        s_mov_b32 s{sTag}, 1664525'''.split('\n')
        self.stamp('_pre_x')
        e(f's_waitcnt {self.wvm(id_x)}')
        self.stamp('x_arrived')
        XF = 128
        unp = [x for r in range(2) for i in range(4) for x in self.unpack(XF+8*r+2*i, XR+4*r+i)]
        self.stats_partial(XR, t, vSBw, late)
        assert not self.rest
        self.stamp('_stat1')
        e(f's_waitcnt {self.wvm(id_wm)}')
        self.stamp('_wm')
        MA = 76
        for h in range(2):
            for m in range(4):
                e(f'''v_perm_b32 v{t+16+2*m}, v{WM+8*h+4+m}, v{WM+8*h+m}, s{sLo}
                v_perm_b32 v{t+17+2*m}, v{WM+8*h+4+m}, v{WM+8*h+m}, s{sHi}''')
            for m in range(8):
                e(f'v_dot2_f32_bf16 v{MA+m}, v{t+16+m}, v{vS+h}, {"0" if h==0 else "v%d"%(MA+m)}')
        e(f'ds_write_b128 v{vMBw}, {vr(MA,4)}')
        e(unp.pop(0)); e(unp.pop(0))
        e(f'ds_write_b128 v{vMBw}, {vr(MA+4,4)} offset:16')
        for x in late2: e(x)
        e(f's_waitcnt {self.wvm(id_ep)} lgkmcnt(0)\ns_barrier')
        self.stamp('_bar0')
        ST = 84
        id_st = self.stats_read(ST, vSBr)
        MR = 100
        for w in range(0, 4, 2):
            for i in range(3):
                e(f'ds_read2st64_b32 {vr(MR+3*w+2*i,2)}, v{vMBr} offset0:{8*w+i} offset1:{8*w+8+i}')
        for x in unp: e(x)
        e(f'v_mul_lo_u32 v2, v2, s{sTag}\nv_add_u32 v2, 1013904223, v2')
        for i in range(4): e(f'v_mov_b32 v{GR+4*i+3}, v2')
        e(f's_waitcnt {self.wlg(id_st)}')
        self.stats_finish(ST, vInv)
        for i in range(4):
            for r in range(2):
                x = XF+8*r+2*i
                e(f'v_pk_fma_f32 {vr(x,2)}, {vr(x,2)}, {vr(ST+2*r,2)}, {vr(ST+2*r,2)} op_sel:[0,0,1] op_sel_hi:[1,0,1]')
            for r in range(2):
                x = XF+8*r+2*i
                e(f'v_cvt_pk_bf16_f32 v{GR+4*i+r}, v{x}, v{x+1}')
            e(f'buffer_store_dwordx4 {vr(GR+4*i,4)}, v1, {SRD}, s{sT+1} offen offset:{1024*i} sc1')
        id_e1s = e(f'''
        s_waitcnt lgkmcnt(0)
        v_pk_add_f32 {vr(MR,2)}, {vr(MR,2)}, {vr(MR+6,2)}
        v_pk_add_f32 {vr(MR+2,2)}, {vr(MR+2,2)}, {vr(MR+8,2)}
        v_pk_add_f32 {vr(MR+4,2)}, {vr(MR+4,2)}, {vr(MR+10,2)}
        v_mov_b32 v{MR+11}, v2
        v_add_f32 v{MR+8}, v{MR}, v{MR+1}
        v_add_f32 v{MR+9}, v{MR+2}, v{MR+3}
        v_add_f32 v{MR+10}, v{MR+4}, v{MR+5}
        s_mov_b32 exec_hi, 0
        buffer_store_dwordx4 {vr(MR+8,4)}, v1, {SRD}, s{sT+2} offen sc1
        s_mov_b32 exec_hi, -1''')
        self.stamp('e1_stored')
        if self.o.get('probe') == '_abarr': e(f's_waitcnt {self.wvm(id_ab)}'); self.stamp('_abarr')
        if self.o.get('probe') == '_e1ack': e(f's_waitcnt {self.wvm(id_e1s)}'); self.stamp('_e1ack')
        e(f'v_cvt_pk_bf16_f32 v{vDt}, v{vDt}, v{vDt}\nv_lshrrev_b32 v{vF}, 2, v1\nv_lshlrev_b32 v{vDt}, 16, v{vDt}')
        e(f's_waitcnt {self.wvm(id_w)}')
        self.stamp('_warr')
        O = 160
        self.maybe = True
        e(f's_cmp_ge_u32 s{sL}, 224\ns_cbranch_scc1 L_nowg')
        for c in range(4):
            for m in range(4):
                e(f'v_perm_b32 v{O+4*c+m}, v{WG+2*(2*m+1)+(c>>1)}, v{WG+2*(2*m)+(c>>1)}, s{sHi if c&1 else sLo}')
            e(f'buffer_store_dwordx4 {vr(O+4*c,4)}, v{vWgS}, {SRD}, s{sT+8} offen sc1')
            if c < 3: e(f's_add_u32 s{sT+8}, s{sT+8}, 32768')
        e(f'L_nowg:\ns_cmp_lt_u32 s{sL}, 32\ns_cbranch_scc1 L_nowd')
        for c in range(2):
            for m in range(4):
                e(f'v_perm_b32 v{O+16+4*c+m}, v{WDr+2*m+1}, v{WDr+2*m}, s{sHi if c else sLo}')
            e(f'buffer_store_dwordx4 {vr(O+16+4*c,4)}, v1, {SRD}, s{sT+9} offen offset:{1024*c} sc1')
        e('L_nowd:')
        self.maybe = False
        self.stamp('_wjob')
        al, be = 68, 69
        Z1, Z8, Z256, Wc = 70, 72, 74, 76
        q = 78; vRW = 87
        e(f'''
        v_mul_f32 v{al}, v{vDt}, v{AB}
        v_mul_f32 v{be}, v{vDt}, v{AB+1}
        v_mul_f32 v{AB+2}, v{vDt}, v{AB+2}
        v_mul_f32 v{AB+3}, v{vDt}, v{AB+3}
        v_mul_f32 v{q}, {fbits(1.4426950408889634)}, v{al}
        v_mul_f32 v{q+1}, 0.15915494, v{be}
        v_mul_f32 v{Wc}, v{AB+4}, v{AB+2}
        v_mul_f32 v{Wc+1}, v{AB+4}, v{AB+3}
        v_mul_f32 v{q+3}, {fbits(8.0)}, v{q}
        v_mul_f32 v{q+4}, {fbits(8.0)}, v{q+1}
        v_mul_f32 v{q+6}, {fbits(256.0)}, v{q}
        v_mul_f32 v{q+7}, {fbits(256.0)}, v{q+1}
        v_fma_f32 v{Wc}, -v{AB+5}, v{AB+3}, v{Wc}
        v_fma_f32 v{Wc+1}, -v{AB+5}, v{AB+2}, -v{Wc+1}
        s_lshr_b32 s{sT+7}, s{sW}, 1
        s_mul_i32 s{sT}, s{sT+7}, {RCSZ}
        s_add_u32 s{sT}, s{sT}, {L_RC}
        ''')
        for n_ in range(3): e(f'v_exp_f32 v{q+3*n_}, v{q+3*n_}\nv_fract_f32 v{q+3*n_+1}, v{q+3*n_+1}')
        for n_ in range(3): e(f'v_sin_f32 v{q+3*n_+2}, v{q+3*n_+1}\nv_cos_f32 v{q+3*n_+1}, v{q+3*n_+1}')
        e(f'v_and_b32 v{vRW}, 127, v0\nv_lshl_add_u32 v{vRW}, v{vRW}, 2, s{sT}')
        for n_, (Z, conj) in enumerate([(Z1,True),(Z8,False),(Z256,True)]):
            e(f'v_mul_f32 v{Z}, v{q+3*n_}, v{q+3*n_+1}\nv_mul_f32 v{Z+1}, {"-" if conj else ""}v{q+3*n_}, v{q+3*n_+2}')
        def put(src, row, pk):
            return [f'v_cvt_pk_bf16_f32 v{pk}, v{src}, v{src+1}', f'ds_write_b32 v{vRW}, v{pk} offset:{row*RST}']
        Z16 = 78
        R0 = [[f'v_mov_b32 v88, 0x3f80', f'ds_write_b32 v{vRW}, v88'], self.cmul(Z16, Z8, Z8) + put(Z16, 2, 88)]
        R1 = [put(Z8, 1, 84), []]
        cur = [Z16, Z8]; bufs = [[80, 82], [90, 92]]
        for rho in range(3, 32):
            par = rho & 1
            d = bufs[par][(rho >> 1) & 1]
            (R1 if par else R0).append(self.cmul(d, cur[par], Z16) + put(d, rho, 84 if par else 88)); cur[par] = d
        Cq = [put(Wc, 32, 89)]
        cr = {0: Wc}; nxt = [94]
        def newc():
            r = nxt[0]; nxt[0] += 2; return r
        for ee in range(1, 8):
            d = newc() if ee in (2,4,6) else 110
            Cq.append(self.cmul(d, cr[ee-1], Z1) + put(d, 32+ee, 89)); cr[ee] = d
        for n_, ee in enumerate((0,2,4,6)):
            d = newc() if ee in (0,4) else 110
            Cq.append(self.cmul(d, cr[ee], Z256) + put(d, 40+n_, 89)); cr[256+ee] = d
        chain = [(512,256,44),(516,260,45),(768,512,46),(772,516,47),(1024,768,48),(1280,1024,49),(1536,1280,50),(1792,1536,51),(2048,1792,52)]
        rot = [104, 106, 108, 110]
        for n_, (ee, src, row) in enumerate(chain):
            d = rot[n_ % 4]
            Cq.append(self.cmul(d, cr[src], Z256) + put(d, row, 89)); cr[ee] = d
        vKa, vKb, vKw0, vKw1 = 112, 113, 114, 115
        u = 12
        extra = f'''v_and_b32 v{u}, 15, v0
        v_bfe_u32 v{u+1}, v0, 4, 2
        v_mul_u32_u24 v{vKb}, {RST}, v{u}
        v_lshl_add_u32 v{u+2}, v{u+1}, 4, s{sT}
        v_add_u32 v{vKb}, v{u+2}, v{vKb}
        s_and_b32 s{sT+1}, s{sW}, 1
        s_mul_i32 s{sT+2}, s{sT+1}, {16*RST}
        v_add_u32 v{vKa}, s{sT+2}, v{vKb}
        s_mov_b32 s{sT+2}, 0x76543210
        s_mov_b32 s{sT+3}, 0x40406420
        v_lshlrev_b32 v{u+2}, 2, v{u}
        v_lshrrev_b64 {vr(u+4,2)}, v{u+2}, {sp(sT+2)}
        v_and_b32 v{u+4}, 15, v{u+4}
        v_lshlrev_b32 v{u+2}, 1, v{u}
        s_mov_b32 s{sT+2}, 0xFA550000
        v_bfe_u32 v{u+5}, s{sT+2}, v{u+2}, 2
        v_lshl_add_u32 v{u+4}, v{u+5}, 8, v{u+4}
        s_mul_i32 s{sT+2}, s{sT+7}, {KHSZ}
        s_lshl_b32 s{sT+3}, s{sT+1}, 8
        s_add_u32 s{sT+2}, s{sT+2}, s{sT+3}
        v_lshl_add_u32 v{u+6}, v{u+1}, 6, s{sT+2}
        v_lshl_add_u32 v{vKw0}, v{u+4}, 1, v{u+6}
        v_lshl_add_u32 v{vKw1}, v{u}, 9, v{u+6}'''.split('\n')
        for n_ in range(len(Cq)):
            st = [a_[n_] if n_ < len(a_) else None for a_ in (R0, R1, Cq)]
            for j in range(4):
                for a_ in st:
                    if a_ is None:
                        if extra: e(extra.pop(0))
                    elif j < len(a_): e(a_[j])
        for x in extra: e(x)
        self.stamp('kgen1')
        e(f'''
        s_lshl_b32 s{sT+8}, s{sL}, 7
        s_add_u32 s{sT+8}, s{sT+8}, {F1}
        s_waitcnt vmcnt(0) lgkmcnt(0)
        s_barrier''')
        self.stamp('_kbar1')
        KF = 160
        kf_id = []
        for kk in range(8):
            e(f'''ds_read_b128 {vr(KF+12*kk,4)}, v{vKa} offset:{64*kk}
            ds_read_b128 {vr(KF+12*kk+4,4)}, v{vKb} offset:{32*RST+64*kk}
            ds_read_b128 {vr(KF+12*kk+8,4)}, v{vKb} offset:{48*RST+64*kk}''')
            kf_id.append(self.nlg)
            if kk == 3:
                self.maybe = True
                e(f's_cmp_lg_u32 s{sW}, 0\ns_cbranch_scc1 L_nof1\n' + self.flag_text(vF, sT+8) + '\nL_nof1:')
                self.maybe = False
        vEX, vEM = 124, 125
        EG = 12
        e(f'''
        v_bfe_u32 v{t}, v0, 2, 4
        v_and_b32 v{t+1}, 0x30, v1
        v_lshl_add_u32 v{vEM}, v{t}, 11, v{t+1}
        s_lshl_b32 s{sT}, s{sW}, 6
        v_add_u32 v{t}, s{sT}, v{t}
        s_movk_i32 s{sT}, {XBLK}
        v_mad_u32_u24 v{vEX}, v{t}, s{sT}, v{t+1}
        s_and_b32 s{sT}, s{sL}, 0xc0
        s_and_b32 s{sT+1}, s{sL}, 3
        s_lshl4_add_u32 s{sT}, s{sT+1}, s{sT}
        s_bfe_u32 s{sT+1}, s{sL}, 0x40002
        s_add_u32 s{sT}, s{sT}, s{sT+1}
        s_lshl_b32 s{sT}, s{sT}, 6
        s_add_u32 s{sT}, s{sT}, {XH}
        s_add_u32 s{sT+1}, s{sT}, {16*XBLK}
        s_add_u32 s{sT+2}, s{sT}, {32*XBLK}
        s_add_u32 s{sT+3}, s{sT}, {48*XBLK}
        s_lshr_b32 s{sT+4}, s{sL}, 5
        s_lshl_b32 s{sT+4}, s{sT+4}, 16
        s_lshl_b32 s{sT+5}, s3, 6
        s_add_u32 s{sT+4}, s{sT+4}, s{sT+5}
        s_add_u32 s{sT+4}, s{sT+4}, {MODP}
        s_add_u32 s{sT+5}, s{sT+4}, 32768''')
        e1_loads = '\n'.join([f'buffer_load_dwordx4 {vr(EG+16+4*i,4)}, v{vEM}, {SRD}, s{sT+4+i} offen sc1' for i in range(2)] +
                             [f'buffer_load_dwordx4 {vr(EG+4*i,4)}, v{vEX}, {SRD}, s{sT+i} offen sc1' for i in range(4)])
        self.stamp('_kfrd')
        id_e1 = e(e1_loads)
        self.stamp('_e1iss')
        fill = [f'v_lshlrev_b32 v{t}, 3, v0', f'v_cvt_f32_u32 v{t}, v{t}']
        for i in range(5):
            fill += f'''v_add_f32 v{t+1}, {fbits(2.0*i-2)}, v{t}
            v_add_f32 v{t+2}, {fbits(2048+2.0*i-2)}, v{t}
            v_cvt_pk_bf16_f32 v{t+1}, v{t+1}, v{t+2}
            v_and_b32 v{t+2}, s{sMask}, v{t+1}
            v_lshlrev_b32 v{t+1}, 16, v{t+1}
            v_cvt_u32_f32 v{EA+5+i}, v{t+2}
            v_cvt_u32_f32 v{EA+i}, v{t+1}'''.split('\n')
        KD = 80
        for kk in range(8):
            e(f's_waitcnt {self.wlg(kf_id[kk])}')
            for cb in range(2):
                e(f'v_mfma_f32_16x16x32_bf16 {vr(KD+4*cb,4)}, {vr(KF+12*kk,4)}, {vr(KF+12*kk+4+4*cb,4)}, {"0" if kk==0 else vr(KD+4*cb,4)}')
                e(fill.pop(0))
                if cb: e(fill.pop(0))
        for x in fill: e(x)
        self.stamp('_kmf')
        for cb in range(2):
            for j in range(2):
                e(f'v_cvt_pk_bf16_f32 v{KD+8+2*cb+j}, v{KD+4*cb+2*j}, v{KD+4*cb+2*j+1}')
        for cb in range(2):
            for j in range(2):
                va = (vKw0, vKw1)[cb]; off = L_KH + 2048*cb + 32*j
                e(f'ds_write_b16 v{va}, v{KD+8+2*cb+j} offset:{off}\nds_write_b16_d16_hi v{va}, v{KD+8+2*cb+j} offset:{off+16}')
        e(f'''
        v_mov_b32 v{t}, 0
        v_and_b32 v{t+1}, 127, v0
        s_mul_i32 s{sT+8}, s{sT+7}, {USZ}
        s_add_u32 s{sT+8}, s{sT+8}, {L_U}
        v_lshl_add_u32 v{t+1}, v{t+1}, 2, s{sT+8}
        s_mul_i32 s{sT+9}, s{sT+7}, {PSZ}
        s_add_u32 s{sT+9}, s{sT+9}, {L_P}
        v_and_b32 v{t+3}, 15, v0
        v_lshl_add_u32 v{t+2}, v{t+3}, 2, s{sT+9}
        ds_write_b32 v{t+1}, v{t}
        ds_write_b32 v{t+2}, v{t}
        s_waitcnt lgkmcnt(2)
        s_barrier''')
        self.stamp('kgen2')
        KV = 72; PV = 92; vPw = 108; vPA = 109; vUB = 123
        kv_id = []
        for ch in range(2):
            for i in range(10): e(f'ds_read_u16 v{KV+10*ch+i}, v{EA+i} offset:{L_KH+ch*KHSZ}')
            kv_id.append(self.nlg)
        e(f'''
        v_cmp_eq_u32 vcc, 0, v0
        v_lshlrev_b32 v{vPw}, 4, v0
        v_add_u32 v{vPw}, {L_P+64}, v{vPw}
        v_bfe_u32 v{t}, v0, 4, 2
        s_and_b32 s0, s{sW}, 1
        s_lshl_b32 s1, s0, 9
        s_add_u32 s1, s1, {26*4}
        v_add_u32 v{t+2}, s1, v{t+2}
        v_lshlrev_b32 v{vPA}, 5, v{t}
        v_sub_u32 v{vPA}, v{t+2}, v{vPA}
        s_lshl_b32 s1, s0, 8
        s_sub_u32 s{sT+8}, s{sT+8}, s1
        s_add_u32 s{sT+8}, s{sT+8}, {480 - 192}
        v_lshl_add_u32 v{vUB}, v{t+3}, 5, s{sT+8}
        v_lshl_add_u32 v{vUB}, v{t}, 4, v{vUB}''')
        for ch in range(2):
            e(f's_waitcnt {self.wlg(kv_id[ch])}')
            e(f'v_cndmask_b32 v{KV+10*ch}, v{KV+10*ch}, 0, vcc')
            for v in range(2):
                for i in range(4):
                    e(f'v_lshl_or_b32 v{PV+8*ch+4*v+i}, v{KV+10*ch+5*v+i}, 16, v{KV+10*ch+5*v+i+1}')
                e(f'ds_write_b128 v{vPw}, {vr(PV+8*ch+4*v,4)} offset:{ch*PSZ+4096*v}')
        vP1 = 122
        PJ = 110
        e(f'''
        s_lshr_b32 s0, s{sL}, 6
        s_bfe_u32 s1, s{sL}, 0x20003
        s_lshl2_add_u32 s{sMt}, s0, s1
        s_bfe_u32 s0, s{sL}, 0x10005
        s_and_b32 s{sDt}, s{sL}, 7
        s_lshl3_add_u32 s{sNt}, s0, s{sDt}
        s_lshl1_add_u32 s{sTb}, s{sMt}, s0
        s_mul_i32 s0, s{sNt}, 7
        s_lshr_b32 s0, s0, 2
        s_lshl_b32 s0, s0, 3
        v_and_b32 v{t+1}, 31, v0
        v_min_u32 v{t+2}, 23, v{t+1}
        v_add_u32 v{t+2}, s0, v{t+2}
        v_min_u32 v{t+2}, 223, v{t+2}
        v_min_u32 v{t+1}, 27, v{t+1}
        v_cmp_gt_u32 vcc, 512, v1
        v_lshlrev_b32 v{t+1}, 3, v{t+1}
        s_sub_u32 s0, 255, s{sDt}
        v_sub_u32 v{t+1}, s0, v{t+1}
        v_cndmask_b32 v{t+1}, v{t+1}, v{t+2}, vcc
        v_lshlrev_b32 v{vP1}, 7, v{t+1}
        v_add_u32 v{vP1}, {F1}, v{vP1}
        v_cmp_eq_u32 {sp(sM)}, 2, v{t}''')
        for J in range(1,8): e(f'v_add_u32 v{PJ+J-1}, {1024*J}, v{vPA}')
        e(f'v_cndmask_b32 v{t}, 0, 1.0, {sp(sM)}')
        self.stamp('expand')
        self.check(e1_loads, [EG+3, EG+7, EG+11, EG+15, EG+19, EG+23], id_e1)
        self.stamp('e1_ok')
        f1_load = f'buffer_load_dword v{vPolled}, v{vP1}, {SRD}, 0 offen sc1'
        id_f1 = e(f1_load)
        g0 = EG+16
        HF = 36
        e(f'''
        v_add_f32 v{g0}, v{g0}, v{g0+4}
        v_add_f32 v{g0+1}, v{g0+1}, v{g0+5}
        v_add_f32 v{g0+2}, v{g0+2}, v{g0+6}
        v_mov_b32 v{g0+3}, 0''')
        unp = []
        for i in range(4):
            unp += [f'v_lshlrev_b32 v{HF+4*i}, 16, v{EG+4*i}', f'v_lshlrev_b32 v{HF+4*i+1}, 16, v{EG+4*i+1}',
                    f'v_and_b32 v{HF+4*i+2}, s{sMask}, v{EG+4*i}', f'v_and_b32 v{HF+4*i+3}, s{sMask}, v{EG+4*i+1}']
        self.reduce4(g0, g0+1, g0+2, g0+3, unp)
        unp = self.rest
        e(f'''
        v_cvt_pk_bf16_f32 v{g0}, v{g0}, v{g0}
        s_lshl_b32 s{sT}, s{sW}, 10
        v_and_b32 v{g0}, s{sMask}, v{g0}
        s_add_u32 s{sT}, s{sT}, {L_U+512}
        v_add_f32 v{g0}, v{g0}, v{t}
        v_cvt_pk_bf16_f32 v{g0}, v{g0}, v{g0}
        v_and_b32 v{g0}, s{sMask}, v{g0}
        v_add_u32 v{t+1}, s{sT}, v{vF}''')
        lanes = [32,0,33,1,16,17,34,35,2,3,18,19]
        for n_ in range(4): e(f'v_readlane_b32 s{sM+n_}, v{g0}, {lanes[n_]}')
        for x in unp: e(x)
        for i in range(4):
            for ch in range(2):
                h = HF+4*i+2*ch
                e(f'v_pk_fma_f32 {vr(h,2)}, {vr(h,2)}, {sp(sM+2*ch)}, {sp(sM+2*ch)} op_sel:[0,0,1] op_sel_hi:[1,0,1]')
            for ch in range(2):
                h = HF+4*i+2*ch
                e(f'v_cvt_pk_bf16_f32 v{t+2+ch}, v{h}, v{h+1}\nds_write_b32 v{t+1}, v{t+2+ch} offset:{ch*USZ+256*i}')
        e('s_waitcnt lgkmcnt(0)\ns_barrier')
        self.stamp('u_ready')
        BF = 72; ACC = 224; AF = 128
        af = lambda jq, J: AF + 32*jq + 4*J
        pj = lambda J: vPA if J == 0 else PJ+J-1
        def bread(jq, m): return f'ds_read_b128 {vr(BF+4*m,4)}, v{vUB} offset:{512*m+192-64*jq}'
        def aread(jq, J, hh): return f'ds_read2_b32 {vr(af(jq,J)+2*hh,2)}, v{pj(J)} offset0:{32*jq+6-4*hh} offset1:{32*jq+4-4*hh}'
        rid = {}
        def rd(kind, jq, i):
            if kind == 'b': e(bread(jq, i))
            else: e(aread(jq, i, 0)); e(aread(jq, i, 1))
            rid[(kind, jq, i)] = self.nlg
        for i in range(4): rd('b', 0, i); rd('a', 0, i)
        ZG = 12; vYw, vYr = 52, 53
        fill = [f'v_readlane_b32 s{sM+n_}, v{g0}, {lanes[n_]}' for n_ in range(4, 12)]
        fill += f'''s_lshl_b32 s{sDmaL}, s{sW}, 13
        s_mul_i32 s{sDmaG}, s{sNt}, {7*32768}
        s_add_u32 s{sDmaG}, s{sDmaG}, s{sDmaL}
        s_add_u32 s{sDmaG}, s{sDmaG}, {WGU}
        s_lshl2_add_u32 s{sWdG}, s{sDt}, s{sW}
        s_mul_i32 s{sWdG}, s{sWdG}, {56*1024}
        s_add_u32 s{sWdG}, s{sWdG}, {WD}
        s_lshl_b32 s{sDsk}, s{sDsk+1}, 16
        s_and_b32 s{sDsk+1}, s{sDsk+1}, s{sMask}'''.split('\n')
        nprio = len(fill)
        for sc in (sDsk, sM+4):
            for i in range(4):
                for ch in range(2):
                    for j in range(2):
                        fill.append(f'v_mul_f32 v{HF+4*i+2*ch+j}, s{sc+ch}, v{HF+4*i+2*ch+j}')
        fill += f'''s_pack_hh_b32_b16 s{sT}, s{sM+6}, s{sM+7}
        s_pack_hh_b32_b16 s{sT+1}, s{sM+8}, s{sM+9}
        s_pack_hh_b32_b16 s{sT+2}, s{sM+10}, s{sM+11}
        v_and_b32 v{t}, 3, v0
        v_mov_b32 v{t+1}, s{sT}
        v_mov_b32 v{t+2}, s{sT+1}
        v_cmp_eq_u32 {sp(sBad)}, 1, v{t}
        v_mov_b32 v{t+3}, s{sT+2}
        v_mov_b32 v{ZG+3}, v2
        v_cndmask_b32 v{t+1}, v{t+1}, v{t+2}, {sp(sBad)}
        v_cmp_eq_u32 {sp(sBad)}, 2, v{t}
        v_mov_b32 v{ZG+7}, v2
        v_mov_b32 v{ZG+11}, v2
        v_cndmask_b32 v{ZG+2}, v{t+1}, v{t+3}, {sp(sBad)}
        v_mov_b32 v{ZG+15}, v2
        v_mov_b32 v{ZG+6}, v{ZG+2}
        v_mov_b32 v{ZG+10}, v{ZG+2}
        v_mov_b32 v{ZG+14}, v{ZG+2}
        v_and_b32 v{t}, 15, v0
        v_bfe_u32 v{t+1}, v0, 4, 2
        v_bfe_u32 v{t+2}, v0, 1, 2
        v_xor_b32 v{t+2}, v{t+2}, v{t+1}
        v_lshlrev_b32 v{t+2}, 4, v{t+2}
        v_lshl_add_u32 v{vYw}, v{t}, 6, v{t+2}
        s_add_u32 s{sT}, s{sDmaL}, {L_Y}
        v_add_u32 v{vYw}, s{sT}, v{vYw}
        v_bfe_u32 v{t}, v0, 3, 3
        v_lshl_add_u32 v{t+2}, v{t}, 6, v{t+2}
        v_and_b32 v{t}, 1, v0
        v_lshl_add_u32 v{t+2}, v{t}, 3, v{t+2}
        s_lshl_b32 s{sT}, s{sW}, 11
        s_add_u32 s{sT}, s{sT}, {L_Y}
        v_add_u32 v{vYr}, s{sT}, v{t+2}
        s_add_u32 s{sT+6}, s{sT+6}, {ZY}'''.split('\n')
        dq = self.dma_tile(0,0) + self.dma_tile(1,1) + self.dma_tile(2,2)
        nwd_conv = self.opt('wd_conv', 8)
        order = []
        for jq in range(4):
            if jq == 0: order += [(jq, cb-m, m) for cb in range(8) for m in range(cb+1)]
            elif jq == 3: order += [(jq, J, cb-J) for cb in range(8) for J in range(cb+1)]
            else: order += [(jq, J, m) for m in range(8) for J in range(8-m)]
        lastB = {}
        for n, (jq, J, m) in enumerate(order): lastB[(jq, m)] = n
        rq = []
        for i in range(4, 8): rq += [(0, 'b', 0, i), (0, 'a', 0, i)]
        for jq in range(1, 4):
            aa = [(36*(jq-1)+8, 'a', jq, J) for J in range(8)]
            bb = sorted([(lastB[(jq-1, m)]+1, 'b', jq, m) for m in range(8)])
            rq += sorted(aa + bb, key=lambda x: x[0])
        seen = set(); done_w = 0; waited = 0
        ncheck = self.opt('f1_at', 20); pace = self.opt('conv_pace', 4)
        for n, (jq, J, m) in enumerate(order):
            cb = J+m
            while ('a', jq, J) not in rid or ('b', jq, m) not in rid:
                _, kd, a_, b_ = rq.pop(0); rd(kd, a_, b_)
            need = max(rid[('a', jq, J)], rid[('b', jq, m)])
            if need > waited:
                e(f's_waitcnt {self.wlg(need)}'); waited = max(need, self.nlg - 15)
            c_ = ar(ACC+4*cb,4) if cb in seen else '0'; seen.add(cb)
            e(f'v_mfma_f32_16x16x32_bf16 {ar(ACC+4*cb,4)}, {vr(af(jq,J),4)}, {vr(BF+4*m,4)}, {c_}')
            if n == ncheck:
                while nprio > 0: e(fill.pop(0)); nprio -= 1
                self.check(f1_load, [vPolled], id_f1)
            elif n > ncheck and (n - ncheck) % pace == 1 and (dq or nwd_conv):
                if dq: e(dq.pop(0))
                else: wd_issue(1); nwd_conv -= 1
            elif rq and rq[0][0] <= n:
                _, kd, a_, b_ = rq.pop(0); rd(kd, a_, b_)
            elif jq == 3 and done_w < cb and (J >= 4 or done_w < cb-1):
                while fill: e(fill.pop(0))
                e(f'ds_write_b128 v{vYw}, {ar(ACC+4*done_w,4)} offset:{1024*done_w}'); done_w += 1
            else:
                for _ in range(2):
                    if fill: e(fill.pop(0)); nprio -= 1
        assert not rq
        for x in dq + fill: e(x)
        self.stamp('conv')
        while done_w < 8:
            e(f'ds_write_b128 v{vYw}, {ar(ACC+4*done_w,4)} offset:{1024*done_w}'); done_w += 1
        e('s_waitcnt lgkmcnt(0)\ns_barrier')
        YR = 72; y_id = []
        for i in range(4):
            for pw in range(4): e(f'ds_read_b64 {vr(YR+8*i+2*pw,2)}, v{vYr} offset:{8192*pw+512*i}')
            y_id.append(self.nlg)
        for i in range(4):
            e(f's_waitcnt {self.wlg(y_id[i])}')
            for ch in range(2):
                y = YR+8*i+4*ch
                e(f'v_pk_add_f32 {vr(y,2)}, {vr(y,2)}, {vr(y+2,2)}')
            for ch in range(2):
                y = YR+8*i+4*ch
                e(f'v_pk_fma_f32 {vr(y,2)}, {vr(y,2)}, {sp(sM+4)}, {vr(HF+4*i+2*ch,2)} op_sel:[0,{ch},0] op_sel_hi:[1,{ch},1]')
            for r in range(2):
                e(f'v_cvt_pk_bf16_f32 v{ZG+4*i+r}, v{YR+8*i+r}, v{YR+8*i+4+r}')
            id_z = e(f'buffer_store_dwordx4 {vr(ZG+4*i,4)}, v1, {SRD}, s{sT+6} offen offset:{1024*i} sc1')
        self.stamp('z_stored')
        wd_issue(self.opt('wd_zack', 4))
        XF = 36
        for r in range(2):
            for i in range(4):
                for x in self.unpack(XF+8*r+2*i, XR+4*r+i): e(x)
        vZ = 52; vH2 = 53; ZI = 72; vMsk = 54
        vP2 = 24; vXa = 25; vA2 = 26; vA4 = 27; vP3 = 23; vX2 = 22; vAc1 = 21; vC2 = 20
        c1 = -2*1.4426950408889634*0.7978845608028654; c2 = c1*0.044715
        e(f'''
        v_and_b32 v{t}, 0xfc, v0
        v_and_b32 v{t+2}, 0x30, v1
        s_movk_i32 s{sT}, {XBLK}
        v_mad_u32_u24 v{vZ}, v{t}, s{sT}, v{t+2}
        s_lshl_b32 s{sT}, s{sL}, 6
        s_add_u32 s{sT}, s{sT}, {ZY}
        s_add_u32 s{sT+1}, s{sT}, {XBLK}
        s_add_u32 s{sT+2}, s{sT}, {2*XBLK}
        s_add_u32 s{sT+3}, s{sT}, {3*XBLK}
        v_lshrrev_b32 v{t}, 3, v0
        v_and_b32 v{t+1}, 0x70, v1
        v_lshl_add_u32 v{vH2}, v{t}, 10, v{t+1}
        s_lshr_b32 s{sT+4}, s{sL}, 2
        s_lshl_b32 s{sT+4}, s{sT+4}, 7
        s_and_b32 s{sT+5}, s{sL}, 3
        s_add_u32 s{sT+4}, s{sT+4}, s{sT+5}
        s_lshl_b32 s{sT+4}, s{sT+4}, 8
        s_add_u32 s{sT+4}, s{sT+4}, {H2}
        s_mov_b32 s{sT+5}, {X2}
        v_mov_b32 v{vMsk}, s{sMask}
        s_lshl2_add_u32 s{sT+6}, s{sL}, s{sW}
        s_lshl_b32 s{sT+6}, s{sT+6}, 7
        s_add_u32 s{sT+6}, s{sT+6}, {F2}
        s_lshl2_add_u32 s0, s{sMt}, s{sW}
        s_lshl_b32 s{sT+7}, s0, 11
        s_add_u32 s{sT+7}, s{sT+7}, {F2}
        s_lshl_b32 s{sXg}, s0, 15
        s_add_u32 s{sXg}, s{sXg}, {H2}
        s_lshl4_add_u32 s0, s0, s{sNt}
        s_mul_i32 s0, s0, {7*1024}
        s_add_u32 s{sActS}, s0, {ACT}
        s_add_u32 s{sActS+1}, s0, {ACT+4096}
        s_lshl4_add_u32 s0, s{sMt}, s{sNt}
        s_lshl2_add_u32 s0, s0, s{sW}
        s_lshl_b32 s0, s0, 7
        s_add_u32 s{sF3o}, s0, {F3}
        s_lshl2_add_u32 s0, s{sMt}, s{sW}
        s_and_b32 s1, s{sTb}, 1
        s_lshl3_add_u32 s0, s0, s1
        s_lshl_b32 s0, s0, 8
        s_add_u32 s{sF3p}, s0, {F3}
        s_lshl3_add_u32 s0, s{sTb}, s{sW}
        s_mul_i32 s0, s0, {28*1024}
        s_add_u32 s{sActG}, s0, {ACT}
        s_waitcnt {self.wvm(id_z)}''')
        z_loads = '\n'.join(f'buffer_load_dwordx4 {vr(ZI+4*i,4)}, v{vZ}, {SRD}, s{sT+i} offen sc1' for i in range(4))
        id_zl = e(z_loads)
        e(f'''
        v_and_b32 v{vP2}, 15, v0
        v_lshlrev_b32 v{vP2}, 7, v{vP2}
        v_bfe_u32 v{t}, v0, 2, 3
        v_bfe_u32 v{t+3}, v0, 5, 1
        v_lshl_add_u32 v{t+2}, v{t+3}, 6, v{t+2}
        v_lshl_add_u32 v{vXa}, v{t}, 7, v{t+2}
        v_add_u32 v{vA2}, 65536, v1
        v_add_u32 v{vA4}, 131072, v1
        v_add_u32 v{vAc1}, {112*1024}, v1
        v_mov_b32 v{vC2}, {fbits(c2)}
        v_bfe_u32 v{t}, v0, 1, 2
        v_and_b32 v{t+2}, 1, v0
        v_lshlrev_b32 v{t+2}, 7, v{t+2}
        v_lshl_add_u32 v{vP3}, v{t}, 9, v{t+2}
        v_bfe_u32 v{t}, v0, 3, 2
        v_lshl_add_u32 v{t}, v{t}, 1, v{t+3}
        v_lshl_add_u32 v{t}, v{t}, 10, v{t+1}
        s_lshl3_add_u32 s0, s{sTb}, s{sW}
        s_lshl_b32 s0, s0, 6
        s_add_u32 s0, s0, s{sDt}
        s_lshl_b32 s0, s0, 7
        v_add_u32 v{vX2}, s0, v{t}''')
        self.check(z_loads, [ZI+3, ZI+7, ZI+11, ZI+15], id_zl)
        self.stamp('z_ok')
        wd_issue(self.opt('wd_ln2', 6))
        ZF = 88
        for i in range(4):
            for r in range(2):
                for x in self.unpack(ZF+8*r+2*i, ZI+4*i+r): e(x)
            for r in range(2):
                z = ZF+8*r+2*i; x = XF+8*r+2*i
                e(f'v_pk_add_f32 {vr(x,2)}, {vr(x,2)}, {vr(z,2)}')
            for r in range(2):
                x = XF+8*r+2*i
                e(f'v_cvt_pk_bf16_f32 v{XR+4*r+i}, v{x}, v{x+1}')
        unp = [x for r in range(2) for i in range(4) for x in self.unpack(XF+8*r+2*i, XR+4*r+i)]
        self.stats_partial(XR, t, vSBw, unp)
        unp = self.rest
        for r in range(2):
            e(f'buffer_store_dwordx4 {vr(XR+4*r,4)}, v{vXO}, {SRD}, s{sT+5} offen offset:{1024*r} sc1')
        for x in unp: e(x)
        e('s_waitcnt lgkmcnt(0)\ns_barrier')
        ST = 56
        self.stats_read(ST, vSBr)
        GBV = 12
        for i in range(4):
            for kind in range(2):
                d = ZF+8*kind+2*i
                qp = f'quad_perm:[{kind},{kind},{kind},{kind}] row_mask:0xf bank_mask:0xf'
                e(f'v_cvt_f32_bf16_dpp v{d}, v{ZI+4*i+2} {qp}\nv_and_b32_dpp v{d+1}, v{ZI+4*i+2}, v{vMsk} {qp}')
        e('s_waitcnt lgkmcnt(0)')
        self.stats_finish(ST, vInv)
        HO = 104
        for r in range(2):
            for i in range(4):
                x = XF+8*r+2*i
                e(f'v_pk_fma_f32 {vr(x,2)}, {vr(x,2)}, {vr(ST+2*r,2)}, {vr(ST+2*r,2)} op_sel:[0,0,1] op_sel_hi:[1,0,1]')
            for i in range(4):
                x = XF+8*r+2*i
                e(f'v_pk_fma_f32 {vr(x,2)}, {vr(x,2)}, {vr(ZF+2*i,2)}, {vr(ZF+8+2*i,2)}')
            for i in range(4):
                x = XF+8*r+2*i
                e(f'v_cvt_pk_bf16_f32 v{HO+4*r+i}, v{x}, v{x+1}')
            id_h = e(f'buffer_store_dwordx4 {vr(HO+4*r,4)}, v{vH2}, {SRD}, s{sT+4} offen offset:{128*r} sc1')
        self.stamp('h2_stored')
        for i in range(4): e(f'v_mov_b32 v{GBV+i}, v{ZI+4*i+2}')
        e(f's_waitcnt {self.wvm(id_h)}')
        id_fl = e(self.flag_text(vF, sT+6))
        self.stamp('_h2_ack')
        for x in self.dma_tile(3,3): id_t3 = e(x)
        e(f's_barrier\ns_waitcnt {self.wvm(id_fl)}')
        f2_load = f'buffer_load_dword v{vPolled}, v{vP2}, {SRD}, s{sT+7} offen sc1'
        id_f2 = e(f2_load)
        X = 128
        AC = [28, 44, 60, 76]
        WF = 92; NB = 6; LA = 4
        GT = 116; GO = 16; X2R = 4
        P1 = self.opt('p1', 3)
        seq = [(tl, s) for s in range(32) for tl in range(P1)] + [(tl, s) for tl in range(P1,7) for s in range(32)]
        slot = {0:0,1:1,2:2,3:3,4:4,5:0,6:1}
        acc = {tl: AC[tl % 4] for tl in range(7)}
        def wread(n):
            tl, s = seq[n]; sl = slot[tl]
            va = {0:1,1:1,2:vA2,3:vA2,4:vA4}[sl]
            return f'ds_read_b128 {vr(WF+4*(n%NB),4)}, v{va} offset:{(sl&1 if sl<4 else 0)*32768 + 1024*s}'
        for n in range(LA): e(wread(n))
        self.check(f2_load, [vPolled], id_f2)
        self.stamp('f2_ok')
        x_id = []
        def xload():
            s = len(x_id)
            x_id.append(e(f'buffer_load_dwordx4 {vr(X+4*s,4)}, v{vXa}, {SRD}, s{sXg} offen offset:{1024*(s&3)} sc1'))
            if s & 3 == 3 and s < 31: e(f's_add_u32 s{sXg}, s{sXg}, 4096')
        XLA = self.opt('xla', 8)
        for s in range(XLA): xload()
        def gelu(tl):
            a = acc[tl]; out = []
            for hf in range(2):
                E = [a+4*hf+j for j in range(4)]
                out += [f'v_mul_f32 v{GT+j}, v{E[j]}, v{E[j]}' for j in range(4)]
                out += [f'v_fmaak_f32 v{GT+j}, v{GT+j}, v{vC2}, {fbits(c1)}' for j in range(4)]
                out += [f'v_mul_f32 v{GT+j}, v{GT+j}, v{E[j]}' for j in range(4)]
                for j in range(4): out += [f'v_exp_f32 v{GT+j}, v{GT+j}', f'v_mul_f32 v{E[j]+8}, v{E[j]+8}, v{E[j]}']
                for j in range(4): out += [f'v_add_f32 v{GT+j}, 1.0, v{GT+j}']
                for j in range(4): out += [f'v_rcp_f32 v{GT+j}, v{GT+j}']
                for j in range(4): out += [f'v_mul_f32 v{E[j]+8}, v{E[j]+8}, v{GT+j}']
                out += [f'v_cvt_pk_bf16_f32 v{GO+2*hf+j}, v{E[2*j]+8}, v{E[2*j+1]+8}' for j in range(2)]
            out.append(f'buffer_store_dwordx4 {vr(GO,4)}, v1, {SRD}, s{sActS+(tl>>2)} offen offset:{1024*(tl&3)} sc1')
            return [(x, tl) for x in out]
        last = {tl: max(n for n, (a_, _) in enumerate(seq) if a_ == tl) for tl in range(7)}
        first = {tl: min(n for n, (a_, _) in enumerate(seq) if a_ == tl) for tl in range(7)}
        gq = []; vq = []; dma_id = {3: id_t3}; st_id = {}; st_n = {}
        a_id = []
        def aload():
            kk = len(a_id); T, tt = korder[kk >> 1], kk & 1
            if tt == 0: e(f's_add_u32 s{sActT}, s{sActG}, {T*1024}')
            a_id.append(e(f'buffer_load_dwordx4 {vr(X+4*(kk%32),4)}, v{vAc1 if tt else 1}, {SRD}, s{sActT} offen sc1'))
        ACKD = self.opt('ackd', 22); VISD = self.opt('visd', 20); POLD = self.opt('pold', 12)
        flagged = 0; polled = 0; checked = 0; flag_n = {}; poll_n = {}; poll_id = {}
        gend = [sum(len(g) for g in groups[:i+1])*8 for i in range(len(groups))]
        PV3 = [120, 121, 122]
        def f3load(g): return f's_add_u32 s0, s{sF3p}, {g*F3S}\nbuffer_load_dword v{PV3[g]}, v{vP3}, {SRD}, s0 offen sc1'
        def progress(n, force=None):
            nonlocal flagged, polled, checked
            did = False
            if flagged < len(groups) and groups[flagged][-1] in st_id and (n >= st_n[groups[flagged][-1]] + ACKD or force is not None and force >= flagged):
                e(f's_add_u32 s0, s{sF3o}, {flagged*F3S}\ns_waitcnt {self.wvm(st_id[groups[flagged][-1]])}\n' + self.flag_text(vF, 0))
                flag_n[flagged] = n; flagged += 1; did = True
                if force is not None and force >= flagged-1: e(f's_waitcnt {self.wvm(self.nvm)}')
            if polled < flagged and (n >= flag_n[polled] + VISD or force is not None and force >= polled):
                poll_id[polled] = e(f3load(polled)); poll_n[polled] = n; polled += 1; did = True
            if checked < polled and (n >= poll_n[checked] + POLD or force is not None and force >= checked):
                self.check(f3load(checked), [PV3[checked]], poll_id[checked]); checked += 1; did = True
                self.stamp(f'_f3{checked-1}')
            return did
        vpace = self.opt('vpace', 2)
        grate = self.opt('grate', 10)
        for n, (tl, s) in enumerate(seq):
            if n in (1, 48, 96, 128, 160, 192): self.stamp(f'_g{n}')
            if n == last[1] + 1:
                e('s_barrier')
                vq += [(x,'d5') for x in self.dma_tile(5,0)] + [(x,'d6') for x in self.dma_tile(6,1)]
                vq += [(f's_mov_b32 s0, {X2}\nbuffer_load_dwordx4 {vr(X2R,4)}, v{vX2}, {SRD}, s0 offen sc1','x2'),
                       (f's_mov_b32 s0, {X2+32768}\nbuffer_load_dwordx4 {vr(X2R+4,4)}, v{vX2}, {SRD}, s0 offen sc1','x2')]
            for a_ in range(6):
                if n == last[a_] + 4: gq += gelu(a_)
            for a_ in (3,4,5,6):
                if n == first[a_] - LA:
                    while a_ not in dma_id or any(kd == f'd{a_}' for _, kd in vq):
                        x, kd = vq.pop(0); i_ = e(x)
                        if kd[0] == 'd': dma_id[int(kd[1])] = i_
                    e(f's_waitcnt {self.wvm(dma_id[a_])}\ns_barrier')
            w_ = f'lgkmcnt({min(LA-1, len(seq)-1-n)})'
            if tl == 0: w_ = self.wvm(x_id[s]) + ' ' + w_
            e(f's_waitcnt {w_}')
            if s == 0: assert not any(b_ == tl-4 for _, b_ in gq), (n, len(gq))
            c_ = '0' if s == 0 else vr(acc[tl],16)
            e(f'v_mfma_f32_32x32x16_bf16 {vr(acc[tl],16)}, {vr(WF+4*(n%NB),4)}, {vr(X+4*s,4)}, {c_}')
            if n + LA < len(seq): e(wread(n+LA))
            budget = (grate*(n+1))//3 - (grate*n)//3
            if progress(n): budget -= 2
            elif len(x_id) < 32:
                if tl == 0:
                    xload()
                    if len(x_id) == 32: vq += [(x,'d4') for x in self.dma_tile(4,4)]
            elif n % vpace == 0:
                if tl == 6 and checked and len(a_id) < min(s, gend[checked-1]): aload()
                elif vq:
                    x, kd = vq.pop(0); i_ = e(x)
                    if kd[0] == 'd': dma_id[int(kd[1])] = i_
                else: wd_issue(1)
            while gq and budget > 0:
                x, b_ = gq.pop(0); budget -= 1
                i_ = e(x)
                if x.startswith('buffer_'): st_id[b_] = i_; st_n[b_] = n
        assert not vq
        self.stamp('g1_mfma')
        n = len(seq)
        e(f'''
        v_and_b32 v{WF}, 3, v0
        v_cmp_eq_u32 vcc, 2, v{WF}
        v_and_b32 v{WF+1}, 0xfc, v0
        v_lshlrev_b32 v{WF+1}, 2, v{WF+1}
        v_add_u32 v{WF+1}, {L_GB}, v{WF+1}
        s_mov_b64 exec, vcc
        ds_write_b128 v{WF+1}, {vr(GBV,4)}
        s_mov_b64 exec, -1''')
        cnt = 0
        for x, b_ in gq + gelu(6):
            i_ = e(x); cnt += 1
            if x.startswith('buffer_'): st_id[b_] = i_; st_n[b_] = n
            if cnt % 8 == 0:
                n += 1
                if not progress(n) and checked and len(a_id) < min(32, gend[checked-1]): aload()
        self.stamp('gelu6')
        A2 = 28
        vRw = 12; vRr = 13; vG = 14
        fill = f'''v_bfe_u32 v{WF}, v0, 5, 1
        v_and_b32 v{WF+1}, 0x1f0, v1
        s_mul_i32 s{sT}, s{sW}, {4*RQ}
        s_add_u32 s{sT}, s{sT}, {L_RED}
        v_mul_u32_u24 v{WF}, {RSA}, v{WF}
        v_add3_u32 v{vRw}, v{WF}, v{WF+1}, s{sT}
        v_and_b32 v{WF}, 7, v0
        v_lshrrev_b32 v{WF+1}, 3, v0
        v_mul_u32_u24 v{WF+2}, {RSA}, v{WF}
        v_lshl_add_u32 v{vRr}, v{WF+1}, 4, v{WF+2}
        v_add_u32 v{vRr}, {L_RED}, v{vRr}
        s_lshl_b32 s{sT}, s{sDt}, 7
        s_add_u32 s{sT}, s{sT}, {L_GB}
        v_lshl_add_u32 v{vG}, v{WF}, 4, s{sT}
        s_add_u32 s{sT+2}, s{pOut}, 32768
        s_addc_u32 s{sT+3}, s{pOut+1}, 0'''.split('\n')
        XF2 = 96
        for tt in range(2):
            for j in range(4):
                fill += [f'v_lshlrev_b32 v{XF2+8*tt+j}, 16, v{X2R+4*tt+j}', f'v_and_b32 v{XF2+8*tt+4+j}, s{sMask}, v{X2R+4*tt+j}']
        TAILK = self.opt('tailk', 4)
        o2 = [(kk, tt) for kk in range(28-TAILK) for tt in range(2)] + [(kk, tt) for tt in range(2) for kk in range(28-TAILK, 28)]
        ALA = self.opt('ala', 10)
        consumed = set(); wq = []
        for m_, (kk, tt) in enumerate(o2):
            f = 2*kk + tt; T = korder[kk]
            if m_ in (0, 14, 28, 42): self.stamp(f'_h{m_}')
            while len(wd_id) < 2*kk+2: wd_issue(1)
            while len(a_id) <= f:
                g = min(i for i in range(len(groups)) if gend[i] > len(a_id))
                while checked <= g: progress(n, force=g)
                assert len(a_id) < 32 or len(a_id)-32 in consumed
                aload()
            e(f's_waitcnt {self.wvm(max(a_id[f], wd_id[2*kk+1]))}')
            for c in range(2):
                a = A2 + 32*tt + 16*c
                e(f'v_mfma_f32_32x32x16_bf16 {vr(a,16)}, {ar(8*T+4*c,4)}, {vr(X+4*(f%32),4)}, {"0" if kk==0 else vr(a,16)}')
                n += 1
                if progress(n): pass
                elif len(a_id) < 56 and len(a_id) < gend[checked-1] and len(a_id) <= f + ALA and (len(a_id) < 32 or len(a_id)-32 in consumed): aload()
                elif wdq: wd_issue(1)
                if wq and m_ >= 57-TAILK:
                    e(wq.pop(0))
                    if wq: e(wq.pop(0))
                for _ in range(3):
                    if fill: e(fill.pop(0))
            consumed.add(f)
            if m_ == 55-TAILK:
                wq = [f'ds_write_b128 v{vRw}, {vr(A2+16*c+4*i,4)} offset:{c*RQ+2*RSA*i}' for c in range(2) for i in range(4)]
        self.stamp('g2_mfma')
        for x in wq: e(x)
        for c in range(2):
            for i in range(4): e(f'ds_write_b128 v{vRw}, {vr(A2+32+16*c+4*i,4)} offset:{(2+c)*RQ+2*RSA*i}')
        e('s_waitcnt lgkmcnt(0)\ns_barrier')
        GF = 112; RD = 128; r_id = []
        e(f'ds_read_b128 {vr(GF+8,4)}, v{vG}'); g_id = self.nlg
        e(f'v_add_u32 v{vRw}, {8*RQ}, v{vRr}')
        for q_ in range(4):
            for w in range(4):
                e(f'ds_read_b128 {vr(RD+16*q_+4*w,4)}, v{vRr if w<2 else vRw} offset:{(4*(w&1)+q_)*RQ}')
            r_id.append(self.nlg)
            if q_ == 2:
                e(f's_waitcnt {self.wlg(g_id)}')
                for j in range(4): e(f'v_lshlrev_b32 v{GF+j}, 16, v{GF+8+j}\nv_and_b32 v{GF+4+j}, s{sMask}, v{GF+8+j}')
        OO = 28
        for tt in range(2):
            for c in range(2):
                q_ = 2*tt+c; r = RD+16*q_
                e(f's_waitcnt {self.wlg(r_id[q_])}')
                for hh in range(2):
                    e(f'v_pk_add_f32 {vr(r+2*hh,2)}, {vr(r+2*hh,2)}, {vr(r+4+2*hh,2)}\nv_pk_add_f32 {vr(r+8+2*hh,2)}, {vr(r+8+2*hh,2)}, {vr(r+12+2*hh,2)}')
                for hh in range(2):
                    e(f'v_pk_add_f32 {vr(r+2*hh,2)}, {vr(r+2*hh,2)}, {vr(r+8+2*hh,2)}')
                for hh in range(2):
                    e(f'v_pk_fma_f32 {vr(r+2*hh,2)}, {vr(r+2*hh,2)}, {vr(GF+4*c+2*hh,2)}, {vr(XF2+8*tt+4*c+2*hh,2)}')
            for j in range(4):
                e(f'v_cvt_pk_bf16_f32 v{OO+4*tt+j}, v{RD+32*tt+j}, v{RD+32*tt+16+j}')
            e(f'global_store_dwordx4 v{vX2}, {vr(OO+4*tt,4)}, {sp(pOut) if tt==0 else sp(sT+2)} {self.opt("outflag","sc1").replace("_"," ").replace("none","")}')
        self.stamp('end')
        e(f'''
        s_or_b32 s0, s{sL}, s{sW}
        s_cbranch_scc1 L_noep''')
        e(self.flag_text(vF, 0))
        e('L_noep:')
        if self.stamps:
            e(f'''
            s_lshl2_add_u32 s{sT}, s{sL}, s{sW}
            s_lshl_b32 s{sT}, s{sT}, 7
            s_add_u32 s{sT}, s{sT}, {STMP}
            v_mov_b32 v4, 0
            s_mov_b64 exec, 1''')
            for i in range(self.ns):
                e(f'v_mov_b32 v5, s{sStamp+i}\nbuffer_store_dword v5, v4, {SRD}, s{sT} offen offset:{4*i}')
            e(f'v_mov_b32 v5, s{sCnt}\nbuffer_store_dword v5, v4, {SRD}, s{sT} offen offset:124')
        if self.o.get('probe') is not None:
            kk = self.stamp_names.index(self.o['probe'])
            e(f'''
            s_add_u32 s{sT}, s{sStamp+kk}, 5000
            L_spin:
            s_sleep 1
            s_memrealtime s[22:23]
            s_waitcnt lgkmcnt(0)
            s_sub_u32 s{sT+1}, s22, s{sT}
            s_cmp_lt_i32 s{sT+1}, 0
            s_cbranch_scc1 L_spin''')
        e('s_endpgm')
        for x in self.tail: e(x)
        e('L_end:\ns_endpgm')
        p.end(k, vgpr=256, agpr=256, sgpr=102)
        p.text, added = hazard.fix(p.text, verbose=self.o.get('verbose'))
        return added

if __name__ == '__main__':
    ap = argparse.ArgumentParser()
    ap.add_argument('out'); ap.add_argument('--stamps', action='store_true'); ap.add_argument('-v', action='store_true')
    ap.add_argument('--probe', default=None); ap.add_argument('-o', action='append', default=[])
    a = ap.parse_args()
    opts = dict(verbose=a.v, probe=a.probe)
    for kv in a.o:
        kk, vv = kv.split('='); opts[kk] = int(vv) if vv.lstrip('-').isdigit() else vv
    g = G(a.stamps or a.probe is not None, opts)
    added = g.build()
    g.p.dump(a.out, single=True)
    n = sum(1 for l in g.p.text if l.startswith('  '))
    print(a.out, 'instructions', n, 'nops added', added, 'stamps', g.stamp_names)
    if a.stamps: open(a.out + '.names', 'w').write(' '.join(g.stamp_names))
```

```python
import sys, struct, argparse
from asmlib import Prog, NAME
import hazard

def fbits(x): return '0x%08x' % struct.unpack('<I', struct.pack('<f', x))[0]

F1   = 0x010000
F2   = 0x020000
F3   = 0x040000
F3S  = 0x020000
MODP = 0x0C0000
XBLK = 16640
XH   = 0x140000
ZY   = 0x560000
H2   = 0x980000
X2   = 0xB80000
WGU  = 0xD80000
WD   = 0x1100000
ACT  = 0x12C0000
STMP = 0x3000000
WS_BYTES = 0x10000000
S4   = 131072
L_U  = S4; USZ = 4608
L_P  = S4 + 2*USZ; PSZ = 8256
L_SB = L_P + 2*PSZ
L_Y  = 98304
L_MB = 98304
RST  = 544
L_KH = 0; KHSZ = 10240
L_RC = 2*KHSZ; RCSZ = 64*RST
L_RED = 65536; RSA = 576; RQ = 8*RSA
L_GB = L_RED + 16*RQ
LDS_BYTES = 163840
pX,pAre,pAim,pBre,pBim,pCre,pCim,pLdt = 4,6,8,10,12,14,16,18
pD,pWg,pWu,pWd,pC,pWm,pOut,pWs = 20,24,26,28,30,32,34,38
SRD='s[40:43]'
sL,sW,sTag,sMask,sCnt = 44,45,46,47,48
sLo,sHi = 49,50
sOnes = 51
sMt,sNt,sTb,sDt = 52,53,54,55
sBad = 56
sT = 58
sM = 68
sDsk = 80
sStamp = 82
sDmaL, sDmaG, sDmaT = 4, 5, 6
sWdG, sWdT = 7, 8
sActG, sActT = 9, 10
sActS = 12
sF3o, sF3p = 14, 15
sXg = 16
def sp(i): return f's[{i}:{i+1}]'
def vr(i, n): return f'v[{i}:{i+n-1}]'
def ar(i, n): return f'a[{i}:{i+n-1}]'

class G:
    def __init__(self, stamps=False, opts=None):
        self.p = Prog(); self.stamps = stamps; self.ns = 0; self.o = opts or {}
        self.stamp_names = []; self.nvm = 0; self.nlg = 0; self.tail = []; self.maybe = False
    def opt(self, k, d): return self.o.get(k, d)
    def e(self, s):
        for line in s.split('\n'):
            l = line.strip()
            if not l: continue
            if l.startswith(('buffer_', 'global_')) and not self.maybe: self.nvm += 1
            if l.startswith('ds_') and not self.maybe: self.nlg += 1
            self.p.e(l)
        return self.nvm
    def wvm(self, i): return f'vmcnt({min(63, self.nvm - i)})'
    def wlg(self, i): return f'lgkmcnt({min(15, self.nlg - i)})'
    def stamp(self, name):
        if not self.stamps: return
        if self.o.get('probe') is not None and name != self.o['probe']: return
        if self.o.get('only') and not (name == 'start' or name.startswith(tuple(self.o['only'].split(',')))): return
        if not self.o.get('only') and self.o.get('probe') is None and name.startswith('_'): return
        assert self.ns < 20
        self.e(f's_memrealtime s[22:23]\ns_waitcnt lgkmcnt(0)\ns_mov_b32 s{sStamp+self.ns}, s22')
        self.ns += 1; self.stamp_names.append(name)

    def check_text(self, loads, tags, last):
        Lc = self.p.label('chk'); Lr = self.p.label('retry')
        s = f's_waitcnt {self.wvm(last)}\n{Lc}:\n'
        if len(tags) == 1:
            s += f'v_cmp_ne_u32 vcc, v{tags[0]}, v2\ns_cmp_lg_u64 vcc, 0\ns_cbranch_scc1 {Lr}'
            self.tail.append(f'''{Lr}:
            s_sub_u32 s{sCnt}, s{sCnt}, 1
            s_cbranch_scc1 L_end
            {loads}
            s_waitcnt vmcnt(0)
            s_branch {Lc}''')
        else:
            s += f'v_cmp_ne_u32 {sp(sBad)}, v{tags[0]}, v2\n'
            for t in tags[1:]: s += f'v_cmp_ne_u32 vcc, v{t}, v2\ns_or_b64 {sp(sBad)}, {sp(sBad)}, vcc\n'
            s += f's_cbranch_scc1 {Lr}'
            self.tail.append(f'''{Lr}:
            s_sub_u32 s{sCnt}, s{sCnt}, 1
            s_cbranch_scc1 L_end
            s_mov_b64 exec, {sp(sBad)}
            {loads}
            s_mov_b64 exec, -1
            s_waitcnt vmcnt(0)
            s_branch {Lc}''')
        return s
    def check(self, loads, tags, last): self.e(self.check_text(loads, tags, last))

    def flag_text(self, vaddr, soff):
        return f's_mov_b32 exec_hi, 0\nbuffer_store_dword v2, v{vaddr}, {SRD}, s{soff} offen sc1\ns_mov_b32 exec_hi, -1'

    def stats_partial(self, src, t, vSBw, fill=()):
        a,b,c,d = t,t+1,t+2,t+3
        for m in range(4):
            acc = lambda r: '0' if m == 0 else f'v{r}'
            self.e(f'''v_dot2_f32_bf16 v{a}, v{src+m}, s{sOnes}, {acc(a)}
            v_dot2_f32_bf16 v{b}, v{src+4+m}, s{sOnes}, {acc(b)}
            v_dot2_f32_bf16 v{c}, v{src+m}, v{src+m}, {acc(c)}
            v_dot2_f32_bf16 v{d}, v{src+4+m}, v{src+4+m}, {acc(d)}''')
        self.reduce4(a,b,c,d, fill)
        self.e(f'ds_write_b32 v{vSBw}, v{a}')
    def reduce4(self, a,b,c,d, fill=()):
        fill = list(fill)
        def f(n):
            for _ in range(n):
                if fill: self.e(fill.pop(0))
        f(2); self.e(f'v_permlane32_swap_b32 v{a}, v{b}\nv_permlane32_swap_b32 v{c}, v{d}\nv_add_f32 v{a}, v{a}, v{b}\nv_add_f32 v{c}, v{c}, v{d}')
        f(2); self.e(f'v_permlane16_swap_b32 v{a}, v{c}\nv_add_f32 v{a}, v{a}, v{c}')
        f(2); self.e(f'v_add_f32_dpp v{a}, v{a}, v{a} row_ror:4 row_mask:0xf bank_mask:0xf')
        f(2); self.e(f'v_add_f32_dpp v{a}, v{a}, v{a} row_ror:8 row_mask:0xf bank_mask:0xf')
        self.rest = fill
    def stats_read(self, t, vSBr):
        for w in range(4): self.e(f'ds_read_b128 {vr(t+4*w,4)}, v{vSBr} offset:{16*w}')
        return self.nlg
    def stats_finish(self, t, vInv):
        self.e(f'''
        v_pk_add_f32 {vr(t,2)}, {vr(t,2)}, {vr(t+4,2)}
        v_pk_add_f32 {vr(t+2,2)}, {vr(t+2,2)}, {vr(t+6,2)}
        v_pk_add_f32 {vr(t+8,2)}, {vr(t+8,2)}, {vr(t+12,2)}
        v_pk_add_f32 {vr(t+10,2)}, {vr(t+10,2)}, {vr(t+14,2)}
        v_pk_add_f32 {vr(t,2)}, {vr(t,2)}, {vr(t+8,2)}
        v_pk_add_f32 {vr(t+2,2)}, {vr(t+2,2)}, {vr(t+10,2)}
        v_pk_mul_f32 {vr(t+4,2)}, {vr(t,2)}, {vr(vInv,2)} op_sel_hi:[1,0]
        v_pk_mul_f32 {vr(t+6,2)}, {vr(t+2,2)}, {vr(vInv,2)} op_sel_hi:[1,0]
        v_fma_f32 v{t+5}, -v{t+4}, v{t+4}, v{t+5}
        v_fma_f32 v{t+7}, -v{t+6}, v{t+6}, v{t+7}
        v_max_f32 v{t+5}, 0, v{t+5}
        v_max_f32 v{t+7}, 0, v{t+7}
        v_add_f32 v{t+5}, v{vInv+1}, v{t+5}
        v_add_f32 v{t+7}, v{vInv+1}, v{t+7}
        v_rsq_f32 v{t}, v{t+5}
        v_rsq_f32 v{t+2}, v{t+7}
        v_mul_f32 v{t+1}, -v{t+4}, v{t}
        v_mul_f32 v{t+3}, -v{t+6}, v{t+2}''')
    def cmul(self, d, a, b):
        return [f'v_pk_mul_f32 {vr(d,2)}, {vr(a,2)}, {vr(b,2)} op_sel_hi:[1,0]',
                f'v_pk_fma_f32 {vr(d,2)}, {vr(a,2)}, {vr(b,2)}, {vr(d,2)} op_sel:[1,1,0] op_sel_hi:[0,1,1] neg_lo:[1,0,0]']
    def unpack(self, d, s): return [f'v_lshlrev_b32 v{d}, 16, v{s}', f'v_and_b32 v{d+1}, s{sMask}, v{s}']

    def dma_tile(self, i, slot):
        out = []
        for hf in range(2):
            for e_ in range(4):
                pre = ''
                if e_ == 0:
                    pre = (f's_add_u32 m0, s{sDmaL}, {slot*32768 + hf*4096}\n'
                           f's_add_u32 s{sDmaT}, s{sDmaG}, {i*32768 + hf*4096}\n')
                out.append(pre + f'buffer_load_dwordx4 v1, {SRD}, s{sDmaT} offen offset:{e_*1024} sc1 lds')
        return out

    def build(self):
        p = self.p; e = self.e
        k = NAME + '_kernel'
        p.add_launch(k, 256, 256, LDS_BYTES)
        p.begin(k)
        XR = 4; WM = 12; AB = 28; WG = 34; WDr = 50; EA = 58
        vXO = 3; t = 68
        vInv = 118; vSBw, vSBr = 120, 121; vWgS = 122; vDt = 123; vS = 124; vF = 126; vPolled = 127
        groups = [(0,1,2),(3,4),(5,6)]
        korder = [7*pp + i for g in groups for i in g for pp in range(4)]
        wdq = []
        for T in korder:
            for c in range(2):
                wdq.append((f's_add_u32 s{sWdT}, s{sWdG}, {T*2048}\n' if c == 0 else '') +
                           f'buffer_load_dwordx4 {ar(8*T+4*c,4)}, v1, {SRD}, s{sWdT} offen offset:{1024*c} sc1')
        wd_id = []
        def wd_issue(n):
            for _ in range(n):
                if wdq: wd_id.append(e(wdq.pop(0)))
        e(f'''
        s_load_dwordx16 s[4:19], s[0:1], 0
        s_load_dwordx16 s[20:35], s[0:1], 64
        s_load_dwordx4 s[36:39], s[0:1], 128
        s_cmp_ge_u32 s2, 256
        s_cbranch_scc1 L_end
        v_lshrrev_b32 v{t}, 6, v0
        v_and_b32 v{t+1}, 63, v0
        v_readfirstlane_b32 s{sW}, v{t}
        s_lshr_b32 s3, s2, 3
        s_getpc_b64 {sp(sM)}
        L_pc:
        s_lshl2_add_u32 s{sT}, s3, s{sW}
        s_lshl_b32 s{sM+2}, s{sT}, 8
        s_min_u32 s{sM+2}, s{sM+2}, L_end-L_pc-256
        v_lshl_add_u32 v{t+7}, v{t+1}, 2, s{sM+2}
        global_load_dword v{vPolled}, v{t+7}, {sp(sM)}
        s_and_b32 s{sT+1}, s2, 7
        s_lshl_b32 s{sL}, s{sT+1}, 5
        s_or_b32 s{sL}, s{sL}, s3
        v_lshlrev_b32 v1, 4, v{t+1}
        v_and_b32 v{t+2}, 3, v0
        v_and_b32 v{t+3}, 0xfc, v0
        s_lshl_b32 s{sT+3}, s{sL}, 13
        v_lshl_add_u32 v{t+3}, v{t+3}, 2, s{sT+3}
        v_lshl_add_u32 v{vXO}, v{t+2}, 11, v{t+3}
        v_lshrrev_b32 v{t+4}, 3, v{t+1}
        v_min_u32 v{t+4}, 5, v{t+4}
        v_and_b32 v{t+5}, 0x70, v1
        v_lshl_add_u32 v{t+4}, v{t+4}, 10, v{t+5}
        s_lshl_b32 s{sT+2}, s{sT}, 3
        s_mul_i32 s{sT}, s{sT}, {4*6144}
        s_lshl_b32 s{sT+1}, s{sT+1}, 7
        s_add_u32 s{sT}, s{sT}, s{sT+1}
        s_add_u32 s{sT}, s{sT}, 3072
        v_add_u32 v{t+4}, s{sT}, v{t+4}
        v_add_u32 v{t+5}, 12288, v{t+4}
        s_lshl_b32 s{sT}, s{sL}, 9
        v_lshl_add_u32 v{t+6}, v0, 1, s{sT}
        s_lshl_b32 s{sT+3}, s{sL}, 2
        ''')
        for i in range(6): e(f'v_mov_b32 v{AB+i}, 0')
        e('s_waitcnt lgkmcnt(0)')
        self.stamp('start')
        e(f'''
        s_load_dwordx2 {sp(sT+4)}, {sp(pC)}, s{sT+2}
        global_load_dwordx4 {vr(XR,4)}, v{vXO}, {sp(pX)}''')
        id_x = e(f'global_load_dwordx4 {vr(XR+4,4)}, v{vXO}, {sp(pX)} offset:1024')
        id_wm = e(f'''
        s_load_dword s{sT+6}, {sp(pLdt)}, s{sT+3}
        s_load_dword s{sDsk+1}, {sp(pD)}, s{sT+3}
        global_load_dwordx4 {vr(WM,4)}, v{t+4}, {sp(pWm)} offset:-3072
        global_load_dwordx4 {vr(WM+4,4)}, v{t+4}, {sp(pWm)} offset:3072
        global_load_dwordx4 {vr(WM+8,4)}, v{t+5}, {sp(pWm)} offset:-3072
        global_load_dwordx4 {vr(WM+12,4)}, v{t+5}, {sp(pWm)} offset:3072''')
        id_ep = e(f'global_load_dword v2, v{AB}, {sp(pWs)} sc1')
        for i, ptr in enumerate([pAre,pAim,pBre,pBim,pCre,pCim]):
            id_ab = e(f'global_load_short_d16_hi v{AB+i}, v{t+6}, {sp(ptr)}')
        GR = 144
        def touch():
            e(f'''v_lshlrev_b32 v116, 15, v1
            v_lshlrev_b32 v117, 11, v1
            global_load_dword v116, v116, {sp(pWs)} offset:256
            global_load_dword v117, v117, {sp(pOut)}''')
        if self.opt('touch', 0) == 2: touch()
        e(f'''
        s_mov_b32 s{sMask}, 0xffff0000
        s_mov_b32 s{sLo}, 0x05040100
        s_mov_b32 s{sHi}, 0x07060302
        s_mov_b32 s{sOnes}, 0x3f803f80
        v_lshrrev_b32 v{t+7}, 4, v{t+1}
        v_lshlrev_b32 v{vSBr}, 6, v{t+2}
        v_add_u32 v{vSBr}, {L_SB}, v{vSBr}
        s_lshl_b32 s{sT}, s{sW}, 4
        v_lshl_add_u32 v{vSBw}, v{t+7}, 2, s{sT}
        v_add_u32 v{vSBw}, v{vSBw}, v{vSBr}
        v_mov_b32 v{t+12}, {fbits(-1.4426950408889634)}
        v_lshlrev_b32 v{t+4}, 5, v0
        v_add_u32 v{t+4}, {L_MB}, v{t+4}
        s_min_u32 s{sT}, s{sL}, 223
        s_lshl2_add_u32 s{sT}, s{sT}, s{sW}
        s_bitcmp1_b32 s{sT}, 0
        s_cselect_b32 s0, s{pWu}, s{pWg}
        s_cselect_b32 s1, s{pWu+1}, s{pWg+1}
        s_cselect_b32 s{sT+8}, 256, 0
        s_bfe_u32 s{sT+1}, s{sT}, 0x40001
        s_lshr_b32 s{sT+2}, s{sT}, 5
        s_mul_i32 s{sT+7}, s{sT+1}, {32*3584}
        s_lshl_b32 s{sT+3}, s{sT+2}, 7
        s_add_u32 s{sT+7}, s{sT+7}, s{sT+3}
        v_and_b32 v{t+8}, 15, v{t+1}
        v_mul_u32_u24 v{t+9}, {8*3584}, v{t+7}
        v_lshl_add_u32 v{t+10}, v{t+8}, 3, s{sT+7}
        v_add_u32 v{t+9}, v{t+10}, v{t+9}
        v_lshlrev_b32 v{vWgS}, 9, v{t+7}
        v_lshl_add_u32 v{vWgS}, v{t+8}, 4, v{vWgS}
        s_lshl_b32 s{sT+2}, s{sT+2}, 17
        s_lshl_b32 s{sT+1}, s{sT+1}, 11
        s_add_u32 s{sT+2}, s{sT+2}, s{sT+1}
        s_add_u32 s{sT+8}, s{sT+8}, s{sT+2}
        s_add_u32 s{sT+8}, s{sT+8}, {WGU}
        s_sub_u32 s{sT}, 255, s{sL}
        s_min_u32 s{sT}, s{sT}, 223
        s_and_b32 s{sT+1}, s{sT}, 7
        s_lshr_b32 s{sT+2}, s{sT}, 3
        s_lshl_b32 s{sT+3}, s{sT+2}, 6
        s_add_u32 s{sT+3}, s{sT+3}, s{sW}
        s_lshl3_add_u32 s{sT+3}, s{sT+3}, s{sT+1}
        s_add_u32 s{sT+3}, s{sT+3}, 32
        s_lshl_b32 s{sT+3}, s{sT+3}, 7
        v_lshrrev_b32 v{t+10}, 5, v{t+1}
        v_and_b32 v{t+11}, 31, v{t+1}
        v_lshl_add_u32 v{t+10}, v{t+10}, 14, s{sT+3}
        v_lshl_add_u32 v{t+10}, v{t+11}, 2, v{t+10}
        s_mul_i32 s{sT+1}, s{sT+1}, 112
        s_lshl2_add_u32 s{sT+2}, s{sT+2}, s{sW}
        s_add_u32 s{sT+1}, s{sT+1}, s{sT+2}
        s_lshl_b32 s{sT+1}, s{sT+1}, 11
        s_add_u32 s{sT+9}, s{sT+1}, {WD}''')
        wid = [0, 0]
        def wloads():
            for jj in range(8):
                wid[0] = e(f'global_load_dwordx2 {vr(WG+2*jj,2)}, v{t+9}, s[0:1] offset:{3584*(jj&1)}')
                if jj & 1 and jj < 7: e(f'v_add_u32 v{t+9}, 7168, v{t+9}')
            for jj in range(8):
                wid[1] = e(f'global_load_dword v{WDr+jj}, v{t+10}, {sp(pWd)} offset:{-4096 if jj&1==0 else 0}')
                if jj in (1,5): e(f'v_add_u32 v{t+10}, 8192, v{t+10}')
                if jj == 3: e(f'v_add_u32 v{t+10}, {32768-8192}, v{t+10}')
        if self.opt('wearly', 0): wloads()
        e(f'''
        s_waitcnt lgkmcnt(0)
        s_lshl_b32 s{sT}, s{sT+4}, 16
        s_and_b32 s{sT+1}, s{sT+4}, s{sMask}
        s_lshl_b32 s{sT+2}, s{sT+5}, 16
        s_and_b32 s{sT+3}, s{sT+5}, s{sMask}
        ''')
        self.stamp('_smem')
        vMBw, vMBr = t+4, t+5
        for i in range(4): e(f'v_mul_f32 v{t+13+i}, s{sT+i}, v{t+12}')
        for i in range(4): e(f'v_exp_f32 v{t+13+i}, v{t+13+i}')
        e(f'''
        s_lshl_b32 s{sT+4}, s{sT+6}, 16
        s_and_b32 s{sT+5}, s{sT+6}, s{sMask}
        s_cmp_ge_u32 s{sW}, 2
        s_cselect_b32 s{sT+4}, s{sT+5}, s{sT+4}''')
        for i in range(4): e(f'v_add_f32 v{t+13+i}, 1.0, v{t+13+i}')
        for i in range(4): e(f'v_rcp_f32 v{t+13+i}, v{t+13+i}')
        e(f'v_mul_f32 v{vDt}, s{sT+4}, -v{t+12}')
        for i in range(4): e(f'v_mul_f32 v{t+13+i}, s{sT+i}, v{t+13+i}')
        e(f'v_cvt_pk_bf16_f32 v{vS}, v{t+13}, v{t+14}\nv_cvt_pk_bf16_f32 v{vS+1}, v{t+15}, v{t+16}')
        e(f's_lshl_b32 s{sT+7}, s{sW}, 6\ns_add_u32 s{sT+7}, s{sT+7}, {L_MB}')
        if not self.opt('wearly', 0): wloads()
        id_wg, id_w = wid
        if self.opt('touch', 0) == 1: touch()
        late = f'''v_and_b32 v{t+5}, 1, v0
        v_bfe_u32 v{t+6}, v0, 1, 1
        v_mul_u32_u24 v{t+6}, 192, v{t+6}
        v_bfe_u32 v{t+7}, v0, 2, 3
        v_lshl_add_u32 v{t+5}, v{t+7}, 1, v{t+5}
        v_add_lshl_u32 v{t+5}, v{t+5}, v{t+6}, 2
        v_add_u32 v{t+5}, s{sT+7}, v{t+5}
        v_exp_f32 v{vDt}, v{vDt}'''.split('\n')
        late2 = f'''s_mov_b32 s40, s{pWs}
        s_mov_b32 s41, s{pWs+1}
        s_mov_b32 s42, {WS_BYTES}
        s_mov_b32 s43, 0x20000
        s_mov_b32 s{sCnt}, 40000
        v_mov_b32 v{vInv}, {fbits(1/512)}
        v_mov_b32 v{vInv+1}, {fbits(1e-5)}
        s_mul_i32 s{sT}, s{sL}, {XBLK}
        s_lshl_b32 s{sT+1}, s{sW}, 12
        s_add_u32 s{sT+6}, s{sT}, s{sT+1}
        s_add_u32 s{sT+1}, s{sT+6}, {XH}
        s_lshl2_add_u32 s{sT+2}, s{sL}, s{sW}
        s_lshl_b32 s{sT+2}, s{sT+2}, 9
        s_add_u32 s{sT+2}, s{sT+2}, {MODP}
        s_mov_b32 s{sTag}, 1664525'''.split('\n')
        self.stamp('_pre_x')
        e(f's_waitcnt {self.wvm(id_x)}')
        self.stamp('x_arrived')
        XF = 128
        unp = [x for r in range(2) for i in range(4) for x in self.unpack(XF+8*r+2*i, XR+4*r+i)]
        self.stats_partial(XR, t, vSBw, late)
        assert not self.rest
        self.stamp('_stat1')
        e(f's_waitcnt {self.wvm(id_wm)}')
        self.stamp('_wm')
        MA = 76
        for h in range(2):
            for m in range(4):
                e(f'''v_perm_b32 v{t+16+2*m}, v{WM+8*h+4+m}, v{WM+8*h+m}, s{sLo}
                v_perm_b32 v{t+17+2*m}, v{WM+8*h+4+m}, v{WM+8*h+m}, s{sHi}''')
            for m in range(8):
                e(f'v_dot2_f32_bf16 v{MA+m}, v{t+16+m}, v{vS+h}, {"0" if h==0 else "v%d"%(MA+m)}')
        e(f'ds_write_b128 v{vMBw}, {vr(MA,4)}')
        e(unp.pop(0)); e(unp.pop(0))
        e(f'ds_write_b128 v{vMBw}, {vr(MA+4,4)} offset:16')
        for x in late2: e(x)
        e(f's_waitcnt {self.wvm(id_ep)} lgkmcnt(0)\ns_barrier')
        self.stamp('_bar0')
        ST = 84
        id_st = self.stats_read(ST, vSBr)
        MR = 100
        for w in range(0, 4, 2):
            for i in range(3):
                e(f'ds_read2st64_b32 {vr(MR+3*w+2*i,2)}, v{vMBr} offset0:{8*w+i} offset1:{8*w+8+i}')
        for x in unp: e(x)
        e(f'v_mul_lo_u32 v2, v2, s{sTag}\nv_add_u32 v2, 1013904223, v2')
        for i in range(4): e(f'v_mov_b32 v{GR+4*i+3}, v2')
        e(f's_waitcnt {self.wlg(id_st)}')
        self.stats_finish(ST, vInv)
        for i in range(4):
            for r in range(2):
                x = XF+8*r+2*i
                e(f'v_pk_fma_f32 {vr(x,2)}, {vr(x,2)}, {vr(ST+2*r,2)}, {vr(ST+2*r,2)} op_sel:[0,0,1] op_sel_hi:[1,0,1]')
            for r in range(2):
                x = XF+8*r+2*i
                e(f'v_cvt_pk_bf16_f32 v{GR+4*i+r}, v{x}, v{x+1}')
            e(f'buffer_store_dwordx4 {vr(GR+4*i,4)}, v1, {SRD}, s{sT+1} offen offset:{1024*i} sc1')
        id_e1s = e(f'''
        s_waitcnt lgkmcnt(0)
        v_pk_add_f32 {vr(MR,2)}, {vr(MR,2)}, {vr(MR+6,2)}
        v_pk_add_f32 {vr(MR+2,2)}, {vr(MR+2,2)}, {vr(MR+8,2)}
        v_pk_add_f32 {vr(MR+4,2)}, {vr(MR+4,2)}, {vr(MR+10,2)}
        v_mov_b32 v{MR+11}, v2
        v_add_f32 v{MR+8}, v{MR}, v{MR+1}
        v_add_f32 v{MR+9}, v{MR+2}, v{MR+3}
        v_add_f32 v{MR+10}, v{MR+4}, v{MR+5}
        s_mov_b32 exec_hi, 0
        buffer_store_dwordx4 {vr(MR+8,4)}, v1, {SRD}, s{sT+2} offen sc1
        s_mov_b32 exec_hi, -1''')
        self.stamp('e1_stored')
        if self.o.get('probe') == '_abarr': e(f's_waitcnt {self.wvm(id_ab)}'); self.stamp('_abarr')
        if self.o.get('probe') == '_wgarr': e(f's_waitcnt {self.wvm(id_wg)}'); self.stamp('_wgarr')
        if self.o.get('probe') == '_e1ack': e(f's_waitcnt {self.wvm(id_e1s)}'); self.stamp('_e1ack')
        e(f'v_cvt_pk_bf16_f32 v{vDt}, v{vDt}, v{vDt}\nv_lshrrev_b32 v{vF}, 2, v1\nv_lshlrev_b32 v{vDt}, 16, v{vDt}')
        e(f's_waitcnt {self.wvm(id_w)}')
        self.stamp('_warr')
        O = 160
        self.maybe = True
        e(f's_cmp_ge_u32 s{sL}, 224\ns_cbranch_scc1 L_nowg')
        for c in range(4):
            for m in range(4):
                e(f'v_perm_b32 v{O+4*c+m}, v{WG+2*(2*m+1)+(c>>1)}, v{WG+2*(2*m)+(c>>1)}, s{sHi if c&1 else sLo}')
            e(f'buffer_store_dwordx4 {vr(O+4*c,4)}, v{vWgS}, {SRD}, s{sT+8} offen sc1')
            if c < 3: e(f's_add_u32 s{sT+8}, s{sT+8}, 32768')
        e(f'L_nowg:\ns_cmp_lt_u32 s{sL}, 32\ns_cbranch_scc1 L_nowd')
        for c in range(2):
            for m in range(4):
                e(f'v_perm_b32 v{O+16+4*c+m}, v{WDr+2*m+1}, v{WDr+2*m}, s{sHi if c else sLo}')
            e(f'buffer_store_dwordx4 {vr(O+16+4*c,4)}, v1, {SRD}, s{sT+9} offen offset:{1024*c} sc1')
        e('L_nowd:')
        self.maybe = False
        self.stamp('_wjob')
        al, be = 68, 69
        Z1, Z8, Z256, Wc = 70, 72, 74, 76
        q = 78; vRW = 87
        e(f'''
        v_mul_f32 v{al}, v{vDt}, v{AB}
        v_mul_f32 v{be}, v{vDt}, v{AB+1}
        v_mul_f32 v{AB+2}, v{vDt}, v{AB+2}
        v_mul_f32 v{AB+3}, v{vDt}, v{AB+3}
        v_mul_f32 v{q}, {fbits(1.4426950408889634)}, v{al}
        v_mul_f32 v{q+1}, 0.15915494, v{be}
        v_mul_f32 v{Wc}, v{AB+4}, v{AB+2}
        v_mul_f32 v{Wc+1}, v{AB+4}, v{AB+3}
        v_mul_f32 v{q+3}, {fbits(8.0)}, v{q}
        v_mul_f32 v{q+4}, {fbits(8.0)}, v{q+1}
        v_mul_f32 v{q+6}, {fbits(256.0)}, v{q}
        v_mul_f32 v{q+7}, {fbits(256.0)}, v{q+1}
        v_fma_f32 v{Wc}, -v{AB+5}, v{AB+3}, v{Wc}
        v_fma_f32 v{Wc+1}, -v{AB+5}, v{AB+2}, -v{Wc+1}
        s_lshr_b32 s{sT+7}, s{sW}, 1
        s_mul_i32 s{sT}, s{sT+7}, {RCSZ}
        s_add_u32 s{sT}, s{sT}, {L_RC}
        ''')
        for n_ in range(3): e(f'v_exp_f32 v{q+3*n_}, v{q+3*n_}\nv_fract_f32 v{q+3*n_+1}, v{q+3*n_+1}')
        for n_ in range(3): e(f'v_sin_f32 v{q+3*n_+2}, v{q+3*n_+1}\nv_cos_f32 v{q+3*n_+1}, v{q+3*n_+1}')
        e(f'v_and_b32 v{vRW}, 127, v0\nv_lshl_add_u32 v{vRW}, v{vRW}, 2, s{sT}')
        for n_, (Z, conj) in enumerate([(Z1,True),(Z8,False),(Z256,True)]):
            e(f'v_mul_f32 v{Z}, v{q+3*n_}, v{q+3*n_+1}\nv_mul_f32 v{Z+1}, {"-" if conj else ""}v{q+3*n_}, v{q+3*n_+2}')
        def put(src, row, pk):
            return [f'v_cvt_pk_bf16_f32 v{pk}, v{src}, v{src+1}', f'ds_write_b32 v{vRW}, v{pk} offset:{row*RST}']
        Z16 = 78
        R0 = [[f'v_mov_b32 v88, 0x3f80', f'ds_write_b32 v{vRW}, v88'], self.cmul(Z16, Z8, Z8) + put(Z16, 2, 88)]
        R1 = [put(Z8, 1, 84), []]
        cur = [Z16, Z8]; bufs = [[80, 82], [90, 92]]
        for rho in range(3, 32):
            par = rho & 1
            d = bufs[par][(rho >> 1) & 1]
            (R1 if par else R0).append(self.cmul(d, cur[par], Z16) + put(d, rho, 84 if par else 88)); cur[par] = d
        Cq = [put(Wc, 32, 89)]
        cr = {0: Wc}; nxt = [94]
        def newc():
            r = nxt[0]; nxt[0] += 2; return r
        for ee in range(1, 8):
            d = newc() if ee in (2,4,6) else 110
            Cq.append(self.cmul(d, cr[ee-1], Z1) + put(d, 32+ee, 89)); cr[ee] = d
        for n_, ee in enumerate((0,2,4,6)):
            d = newc() if ee in (0,4) else 110
            Cq.append(self.cmul(d, cr[ee], Z256) + put(d, 40+n_, 89)); cr[256+ee] = d
        chain = [(512,256,44),(516,260,45),(768,512,46),(772,516,47),(1024,768,48),(1280,1024,49),(1536,1280,50),(1792,1536,51),(2048,1792,52)]
        rot = [104, 106, 108, 110]
        for n_, (ee, src, row) in enumerate(chain):
            d = rot[n_ % 4]
            Cq.append(self.cmul(d, cr[src], Z256) + put(d, row, 89)); cr[ee] = d
        vKa, vKb, vKw0, vKw1 = 112, 113, 114, 115
        u = 12
        extra = f'''v_and_b32 v{u}, 15, v0
        v_bfe_u32 v{u+1}, v0, 4, 2
        v_mul_u32_u24 v{vKb}, {RST}, v{u}
        v_lshl_add_u32 v{u+2}, v{u+1}, 4, s{sT}
        v_add_u32 v{vKb}, v{u+2}, v{vKb}
        s_and_b32 s{sT+1}, s{sW}, 1
        s_mul_i32 s{sT+2}, s{sT+1}, {16*RST}
        v_add_u32 v{vKa}, s{sT+2}, v{vKb}
        s_mov_b32 s{sT+2}, 0x76543210
        s_mov_b32 s{sT+3}, 0x40406420
        v_lshlrev_b32 v{u+2}, 2, v{u}
        v_lshrrev_b64 {vr(u+4,2)}, v{u+2}, {sp(sT+2)}
        v_and_b32 v{u+4}, 15, v{u+4}
        v_lshlrev_b32 v{u+2}, 1, v{u}
        s_mov_b32 s{sT+2}, 0xFA550000
        v_bfe_u32 v{u+5}, s{sT+2}, v{u+2}, 2
        v_lshl_add_u32 v{u+4}, v{u+5}, 8, v{u+4}
        s_mul_i32 s{sT+2}, s{sT+7}, {KHSZ}
        s_lshl_b32 s{sT+3}, s{sT+1}, 8
        s_add_u32 s{sT+2}, s{sT+2}, s{sT+3}
        v_lshl_add_u32 v{u+6}, v{u+1}, 6, s{sT+2}
        v_lshl_add_u32 v{vKw0}, v{u+4}, 1, v{u+6}
        v_lshl_add_u32 v{vKw1}, v{u}, 9, v{u+6}'''.split('\n')
        for n_ in range(len(Cq)):
            st = [a_[n_] if n_ < len(a_) else None for a_ in (R0, R1, Cq)]
            for j in range(4):
                for a_ in st:
                    if a_ is None:
                        if extra: e(extra.pop(0))
                    elif j < len(a_): e(a_[j])
        for x in extra: e(x)
        self.stamp('kgen1')
        e(f'''
        s_lshl_b32 s{sT+8}, s{sL}, 7
        s_add_u32 s{sT+8}, s{sT+8}, {F1}
        s_waitcnt vmcnt(0) lgkmcnt(0)
        s_barrier''')
        self.stamp('_kbar1')
        KF = 160
        kf_id = []
        for kk in range(8):
            e(f'''ds_read_b128 {vr(KF+12*kk,4)}, v{vKa} offset:{64*kk}
            ds_read_b128 {vr(KF+12*kk+4,4)}, v{vKb} offset:{32*RST+64*kk}
            ds_read_b128 {vr(KF+12*kk+8,4)}, v{vKb} offset:{48*RST+64*kk}''')
            kf_id.append(self.nlg)
            if kk == 3:
                self.maybe = True
                e(f's_cmp_lg_u32 s{sW}, 0\ns_cbranch_scc1 L_nof1\n' + self.flag_text(vF, sT+8) + '\nL_nof1:')
                self.maybe = False
        vEX, vEM = 124, 125
        EG = 12
        e(f'''
        v_bfe_u32 v{t}, v0, 2, 4
        v_and_b32 v{t+1}, 0x30, v1
        v_lshl_add_u32 v{vEM}, v{t}, 11, v{t+1}
        s_lshl_b32 s{sT}, s{sW}, 6
        v_add_u32 v{t}, s{sT}, v{t}
        s_movk_i32 s{sT}, {XBLK}
        v_mad_u32_u24 v{vEX}, v{t}, s{sT}, v{t+1}
        s_and_b32 s{sT}, s{sL}, 0xc0
        s_and_b32 s{sT+1}, s{sL}, 3
        s_lshl4_add_u32 s{sT}, s{sT+1}, s{sT}
        s_bfe_u32 s{sT+1}, s{sL}, 0x40002
        s_add_u32 s{sT}, s{sT}, s{sT+1}
        s_lshl_b32 s{sT}, s{sT}, 6
        s_add_u32 s{sT}, s{sT}, {XH}
        s_add_u32 s{sT+1}, s{sT}, {16*XBLK}
        s_add_u32 s{sT+2}, s{sT}, {32*XBLK}
        s_add_u32 s{sT+3}, s{sT}, {48*XBLK}
        s_lshr_b32 s{sT+4}, s{sL}, 5
        s_lshl_b32 s{sT+4}, s{sT+4}, 16
        s_lshl_b32 s{sT+5}, s3, 6
        s_add_u32 s{sT+4}, s{sT+4}, s{sT+5}
        s_add_u32 s{sT+4}, s{sT+4}, {MODP}
        s_add_u32 s{sT+5}, s{sT+4}, 32768''')
        e1_loads = '\n'.join([f'buffer_load_dwordx4 {vr(EG+16+4*i,4)}, v{vEM}, {SRD}, s{sT+4+i} offen sc1' for i in range(2)] +
                             [f'buffer_load_dwordx4 {vr(EG+4*i,4)}, v{vEX}, {SRD}, s{sT+i} offen sc1' for i in range(4)])
        self.stamp('_kfrd')
        id_e1 = e(e1_loads)
        self.stamp('_e1iss')
        fill = [f'v_lshlrev_b32 v{t}, 3, v0', f'v_cvt_f32_u32 v{t}, v{t}']
        for i in range(5):
            fill += f'''v_add_f32 v{t+1}, {fbits(2.0*i-2)}, v{t}
            v_add_f32 v{t+2}, {fbits(2048+2.0*i-2)}, v{t}
            v_cvt_pk_bf16_f32 v{t+1}, v{t+1}, v{t+2}
            v_and_b32 v{t+2}, s{sMask}, v{t+1}
            v_lshlrev_b32 v{t+1}, 16, v{t+1}
            v_cvt_u32_f32 v{EA+5+i}, v{t+2}
            v_cvt_u32_f32 v{EA+i}, v{t+1}'''.split('\n')
        KD = 80
        for kk in range(8):
            e(f's_waitcnt {self.wlg(kf_id[kk])}')
            for cb in range(2):
                e(f'v_mfma_f32_16x16x32_bf16 {vr(KD+4*cb,4)}, {vr(KF+12*kk,4)}, {vr(KF+12*kk+4+4*cb,4)}, {"0" if kk==0 else vr(KD+4*cb,4)}')
                e(fill.pop(0))
                if cb: e(fill.pop(0))
        for x in fill: e(x)
        self.stamp('_kmf')
        for cb in range(2):
            for j in range(2):
                e(f'v_cvt_pk_bf16_f32 v{KD+8+2*cb+j}, v{KD+4*cb+2*j}, v{KD+4*cb+2*j+1}')
        for cb in range(2):
            for j in range(2):
                va = (vKw0, vKw1)[cb]; off = L_KH + 2048*cb + 32*j
                e(f'ds_write_b16 v{va}, v{KD+8+2*cb+j} offset:{off}\nds_write_b16_d16_hi v{va}, v{KD+8+2*cb+j} offset:{off+16}')
        e(f'''
        v_mov_b32 v{t}, 0
        v_and_b32 v{t+1}, 127, v0
        s_mul_i32 s{sT+8}, s{sT+7}, {USZ}
        s_add_u32 s{sT+8}, s{sT+8}, {L_U}
        v_lshl_add_u32 v{t+1}, v{t+1}, 2, s{sT+8}
        s_mul_i32 s{sT+9}, s{sT+7}, {PSZ}
        s_add_u32 s{sT+9}, s{sT+9}, {L_P}
        v_and_b32 v{t+3}, 15, v0
        v_lshl_add_u32 v{t+2}, v{t+3}, 2, s{sT+9}
        ds_write_b32 v{t+1}, v{t}
        ds_write_b32 v{t+2}, v{t}
        s_waitcnt lgkmcnt(2)
        s_barrier''')
        self.stamp('kgen2')
        KV = 72; PV = 92; vPw = 108; vPA = 109; vUB = 123
        kv_id = []
        for ch in range(2):
            for i in range(10): e(f'ds_read_u16 v{KV+10*ch+i}, v{EA+i} offset:{L_KH+ch*KHSZ}')
            kv_id.append(self.nlg)
        e(f'''
        v_cmp_eq_u32 vcc, 0, v0
        v_lshlrev_b32 v{vPw}, 4, v0
        v_add_u32 v{vPw}, {L_P+64}, v{vPw}
        v_bfe_u32 v{t}, v0, 4, 2
        s_and_b32 s0, s{sW}, 1
        s_lshl_b32 s1, s0, 9
        s_add_u32 s1, s1, {26*4}
        v_add_u32 v{t+2}, s1, v{t+2}
        v_lshlrev_b32 v{vPA}, 5, v{t}
        v_sub_u32 v{vPA}, v{t+2}, v{vPA}
        s_lshl_b32 s1, s0, 8
        s_sub_u32 s{sT+8}, s{sT+8}, s1
        s_add_u32 s{sT+8}, s{sT+8}, {480 - 192}
        v_lshl_add_u32 v{vUB}, v{t+3}, 5, s{sT+8}
        v_lshl_add_u32 v{vUB}, v{t}, 4, v{vUB}''')
        for ch in range(2):
            e(f's_waitcnt {self.wlg(kv_id[ch])}')
            e(f'v_cndmask_b32 v{KV+10*ch}, v{KV+10*ch}, 0, vcc')
            for v in range(2):
                for i in range(4):
                    e(f'v_lshl_or_b32 v{PV+8*ch+4*v+i}, v{KV+10*ch+5*v+i}, 16, v{KV+10*ch+5*v+i+1}')
                e(f'ds_write_b128 v{vPw}, {vr(PV+8*ch+4*v,4)} offset:{ch*PSZ+4096*v}')
        vP1 = 122
        PJ = 110
        e(f'''
        s_lshr_b32 s0, s{sL}, 6
        s_bfe_u32 s1, s{sL}, 0x20003
        s_lshl2_add_u32 s{sMt}, s0, s1
        s_bfe_u32 s0, s{sL}, 0x10005
        s_and_b32 s{sDt}, s{sL}, 7
        s_lshl3_add_u32 s{sNt}, s0, s{sDt}
        s_lshl1_add_u32 s{sTb}, s{sMt}, s0
        s_mul_i32 s0, s{sNt}, 7
        s_lshr_b32 s0, s0, 2
        s_lshl_b32 s0, s0, 3
        v_and_b32 v{t+1}, 31, v0
        v_min_u32 v{t+2}, 23, v{t+1}
        v_add_u32 v{t+2}, s0, v{t+2}
        v_min_u32 v{t+2}, 223, v{t+2}
        v_min_u32 v{t+1}, 27, v{t+1}
        v_cmp_gt_u32 vcc, 512, v1
        v_lshlrev_b32 v{t+1}, 3, v{t+1}
        s_sub_u32 s0, 255, s{sDt}
        v_sub_u32 v{t+1}, s0, v{t+1}
        v_cndmask_b32 v{t+1}, v{t+1}, v{t+2}, vcc
        v_lshlrev_b32 v{vP1}, 7, v{t+1}
        v_add_u32 v{vP1}, {F1}, v{vP1}
        v_cmp_eq_u32 {sp(sM)}, 2, v{t}''')
        for J in range(1,8): e(f'v_add_u32 v{PJ+J-1}, {1024*J}, v{vPA}')
        e(f'v_cndmask_b32 v{t}, 0, 1.0, {sp(sM)}')
        self.stamp('expand')
        self.check(e1_loads, [EG+3, EG+7, EG+11, EG+15, EG+19, EG+23], id_e1)
        self.stamp('e1_ok')
        f1_load = f'buffer_load_dword v{vPolled}, v{vP1}, {SRD}, 0 offen sc1'
        id_f1 = e(f1_load)
        g0 = EG+16
        HF = 36
        e(f'''
        v_add_f32 v{g0}, v{g0}, v{g0+4}
        v_add_f32 v{g0+1}, v{g0+1}, v{g0+5}
        v_add_f32 v{g0+2}, v{g0+2}, v{g0+6}
        v_mov_b32 v{g0+3}, 0''')
        unp = []
        for i in range(4):
            unp += [f'v_lshlrev_b32 v{HF+4*i}, 16, v{EG+4*i}', f'v_lshlrev_b32 v{HF+4*i+1}, 16, v{EG+4*i+1}',
                    f'v_and_b32 v{HF+4*i+2}, s{sMask}, v{EG+4*i}', f'v_and_b32 v{HF+4*i+3}, s{sMask}, v{EG+4*i+1}']
        self.reduce4(g0, g0+1, g0+2, g0+3, unp)
        unp = self.rest
        e(f'''
        v_cvt_pk_bf16_f32 v{g0}, v{g0}, v{g0}
        s_lshl_b32 s{sT}, s{sW}, 10
        v_and_b32 v{g0}, s{sMask}, v{g0}
        s_add_u32 s{sT}, s{sT}, {L_U+512}
        v_add_f32 v{g0}, v{g0}, v{t}
        v_cvt_pk_bf16_f32 v{g0}, v{g0}, v{g0}
        v_and_b32 v{g0}, s{sMask}, v{g0}
        v_add_u32 v{t+1}, s{sT}, v{vF}''')
        lanes = [32,0,33,1,16,17,34,35,2,3,18,19]
        for n_ in range(4): e(f'v_readlane_b32 s{sM+n_}, v{g0}, {lanes[n_]}')
        for x in unp: e(x)
        for i in range(4):
            for ch in range(2):
                h = HF+4*i+2*ch
                e(f'v_pk_fma_f32 {vr(h,2)}, {vr(h,2)}, {sp(sM+2*ch)}, {sp(sM+2*ch)} op_sel:[0,0,1] op_sel_hi:[1,0,1]')
            for ch in range(2):
                h = HF+4*i+2*ch
                e(f'v_cvt_pk_bf16_f32 v{t+2+ch}, v{h}, v{h+1}\nds_write_b32 v{t+1}, v{t+2+ch} offset:{ch*USZ+256*i}')
        e('s_waitcnt lgkmcnt(0)\ns_barrier')
        self.stamp('u_ready')
        BF = 72; ACC = 224; AF = 128
        af = lambda jq, J: AF + 32*jq + 4*J
        pj = lambda J: vPA if J == 0 else PJ+J-1
        def bread(jq, m): return f'ds_read_b128 {vr(BF+4*m,4)}, v{vUB} offset:{512*m+192-64*jq}'
        def aread(jq, J, hh): return f'ds_read2_b32 {vr(af(jq,J)+2*hh,2)}, v{pj(J)} offset0:{32*jq+6-4*hh} offset1:{32*jq+4-4*hh}'
        rid = {}
        def rd(kind, jq, i):
            if kind == 'b': e(bread(jq, i))
            else: e(aread(jq, i, 0)); e(aread(jq, i, 1))
            rid[(kind, jq, i)] = self.nlg
        for i in range(4): rd('b', 0, i); rd('a', 0, i)
        ZG = 12; vYw, vYr = 52, 53
        fill = [f'v_readlane_b32 s{sM+n_}, v{g0}, {lanes[n_]}' for n_ in range(4, 12)]
        fill += f'''s_lshl_b32 s{sDmaL}, s{sW}, 13
        s_mul_i32 s{sDmaG}, s{sNt}, {7*32768}
        s_add_u32 s{sDmaG}, s{sDmaG}, s{sDmaL}
        s_add_u32 s{sDmaG}, s{sDmaG}, {WGU}
        s_lshl2_add_u32 s{sWdG}, s{sDt}, s{sW}
        s_mul_i32 s{sWdG}, s{sWdG}, {56*1024}
        s_add_u32 s{sWdG}, s{sWdG}, {WD}
        s_lshl_b32 s{sDsk}, s{sDsk+1}, 16
        s_and_b32 s{sDsk+1}, s{sDsk+1}, s{sMask}'''.split('\n')
        nprio = len(fill)
        for sc in (sDsk, sM+4):
            for i in range(4):
                for ch in range(2):
                    for j in range(2):
                        fill.append(f'v_mul_f32 v{HF+4*i+2*ch+j}, s{sc+ch}, v{HF+4*i+2*ch+j}')
        fill += f'''s_pack_hh_b32_b16 s{sT}, s{sM+6}, s{sM+7}
        s_pack_hh_b32_b16 s{sT+1}, s{sM+8}, s{sM+9}
        s_pack_hh_b32_b16 s{sT+2}, s{sM+10}, s{sM+11}
        v_and_b32 v{t}, 3, v0
        v_mov_b32 v{t+1}, s{sT}
        v_mov_b32 v{t+2}, s{sT+1}
        v_cmp_eq_u32 {sp(sBad)}, 1, v{t}
        v_mov_b32 v{t+3}, s{sT+2}
        v_mov_b32 v{ZG+3}, v2
        v_cndmask_b32 v{t+1}, v{t+1}, v{t+2}, {sp(sBad)}
        v_cmp_eq_u32 {sp(sBad)}, 2, v{t}
        v_mov_b32 v{ZG+7}, v2
        v_mov_b32 v{ZG+11}, v2
        v_cndmask_b32 v{ZG+2}, v{t+1}, v{t+3}, {sp(sBad)}
        v_mov_b32 v{ZG+15}, v2
        v_mov_b32 v{ZG+6}, v{ZG+2}
        v_mov_b32 v{ZG+10}, v{ZG+2}
        v_mov_b32 v{ZG+14}, v{ZG+2}
        v_and_b32 v{t}, 15, v0
        v_bfe_u32 v{t+1}, v0, 4, 2
        v_bfe_u32 v{t+2}, v0, 1, 2
        v_xor_b32 v{t+2}, v{t+2}, v{t+1}
        v_lshlrev_b32 v{t+2}, 4, v{t+2}
        v_lshl_add_u32 v{vYw}, v{t}, 6, v{t+2}
        s_add_u32 s{sT}, s{sDmaL}, {L_Y}
        v_add_u32 v{vYw}, s{sT}, v{vYw}
        v_bfe_u32 v{t}, v0, 3, 3
        v_lshl_add_u32 v{t+2}, v{t}, 6, v{t+2}
        v_and_b32 v{t}, 1, v0
        v_lshl_add_u32 v{t+2}, v{t}, 3, v{t+2}
        s_lshl_b32 s{sT}, s{sW}, 11
        s_add_u32 s{sT}, s{sT}, {L_Y}
        v_add_u32 v{vYr}, s{sT}, v{t+2}
        s_add_u32 s{sT+6}, s{sT+6}, {ZY}'''.split('\n')
        dq = self.dma_tile(0,0) + self.dma_tile(1,1) + self.dma_tile(2,2)
        nwd_conv = self.opt('wd_conv', 8)
        order = []
        for jq in range(4):
            if jq == 0: order += [(jq, cb-m, m) for cb in range(8) for m in range(cb+1)]
            elif jq == 3: order += [(jq, J, cb-J) for cb in range(8) for J in range(cb+1)]
            else: order += [(jq, J, m) for m in range(8) for J in range(8-m)]
        lastB = {}
        for n, (jq, J, m) in enumerate(order): lastB[(jq, m)] = n
        rq = []
        for i in range(4, 8): rq += [(0, 'b', 0, i), (0, 'a', 0, i)]
        for jq in range(1, 4):
            aa = [(36*(jq-1)+8, 'a', jq, J) for J in range(8)]
            bb = sorted([(lastB[(jq-1, m)]+1, 'b', jq, m) for m in range(8)])
            rq += sorted(aa + bb, key=lambda x: x[0])
        seen = set(); done_w = 0; waited = 0
        ncheck = self.opt('f1_at', 20); pace = self.opt('conv_pace', 4)
        for n, (jq, J, m) in enumerate(order):
            cb = J+m
            while ('a', jq, J) not in rid or ('b', jq, m) not in rid:
                _, kd, a_, b_ = rq.pop(0); rd(kd, a_, b_)
            need = max(rid[('a', jq, J)], rid[('b', jq, m)])
            if need > waited:
                e(f's_waitcnt {self.wlg(need)}'); waited = max(need, self.nlg - 15)
            c_ = ar(ACC+4*cb,4) if cb in seen else '0'; seen.add(cb)
            e(f'v_mfma_f32_16x16x32_bf16 {ar(ACC+4*cb,4)}, {vr(af(jq,J),4)}, {vr(BF+4*m,4)}, {c_}')
            if n == ncheck:
                while nprio > 0: e(fill.pop(0)); nprio -= 1
                self.check(f1_load, [vPolled], id_f1)
            elif n > ncheck and (n - ncheck) % pace == 1 and (dq or nwd_conv):
                if dq: e(dq.pop(0))
                else: wd_issue(1); nwd_conv -= 1
            elif rq and rq[0][0] <= n:
                _, kd, a_, b_ = rq.pop(0); rd(kd, a_, b_)
            elif jq == 3 and done_w < cb and (J >= 4 or done_w < cb-1):
                while fill: e(fill.pop(0))
                e(f'ds_write_b128 v{vYw}, {ar(ACC+4*done_w,4)} offset:{1024*done_w}'); done_w += 1
            else:
                for _ in range(2):
                    if fill: e(fill.pop(0)); nprio -= 1
        assert not rq
        for x in dq + fill: e(x)
        self.stamp('conv')
        while done_w < 8:
            e(f'ds_write_b128 v{vYw}, {ar(ACC+4*done_w,4)} offset:{1024*done_w}'); done_w += 1
        e('s_waitcnt lgkmcnt(0)\ns_barrier')
        YR = 72; y_id = []
        for i in range(4):
            for pw in range(4): e(f'ds_read_b64 {vr(YR+8*i+2*pw,2)}, v{vYr} offset:{8192*pw+512*i}')
            y_id.append(self.nlg)
        for i in range(4):
            e(f's_waitcnt {self.wlg(y_id[i])}')
            for ch in range(2):
                y = YR+8*i+4*ch
                e(f'v_pk_add_f32 {vr(y,2)}, {vr(y,2)}, {vr(y+2,2)}')
            for ch in range(2):
                y = YR+8*i+4*ch
                e(f'v_pk_fma_f32 {vr(y,2)}, {vr(y,2)}, {sp(sM+4)}, {vr(HF+4*i+2*ch,2)} op_sel:[0,{ch},0] op_sel_hi:[1,{ch},1]')
            for r in range(2):
                e(f'v_cvt_pk_bf16_f32 v{ZG+4*i+r}, v{YR+8*i+r}, v{YR+8*i+4+r}')
            id_z = e(f'buffer_store_dwordx4 {vr(ZG+4*i,4)}, v1, {SRD}, s{sT+6} offen offset:{1024*i} sc1')
        self.stamp('z_stored')
        wd_issue(self.opt('wd_zack', 4))
        XF = 36
        for r in range(2):
            for i in range(4):
                for x in self.unpack(XF+8*r+2*i, XR+4*r+i): e(x)
        vZ = 52; vH2 = 53; ZI = 72; vMsk = 54
        vP2 = 24; vXa = 25; vA2 = 26; vA4 = 27; vP3 = 23; vX2 = 22; vAc1 = 21; vC2 = 20
        c1 = -2*1.4426950408889634*0.7978845608028654; c2 = c1*0.044715
        e(f'''
        v_and_b32 v{t}, 0xfc, v0
        v_and_b32 v{t+2}, 0x30, v1
        s_movk_i32 s{sT}, {XBLK}
        v_mad_u32_u24 v{vZ}, v{t}, s{sT}, v{t+2}
        s_lshl_b32 s{sT}, s{sL}, 6
        s_add_u32 s{sT}, s{sT}, {ZY}
        s_add_u32 s{sT+1}, s{sT}, {XBLK}
        s_add_u32 s{sT+2}, s{sT}, {2*XBLK}
        s_add_u32 s{sT+3}, s{sT}, {3*XBLK}
        v_lshrrev_b32 v{t}, 3, v0
        v_and_b32 v{t+1}, 0x70, v1
        v_lshl_add_u32 v{vH2}, v{t}, 10, v{t+1}
        s_lshr_b32 s{sT+4}, s{sL}, 2
        s_lshl_b32 s{sT+4}, s{sT+4}, 7
        s_and_b32 s{sT+5}, s{sL}, 3
        s_add_u32 s{sT+4}, s{sT+4}, s{sT+5}
        s_lshl_b32 s{sT+4}, s{sT+4}, 8
        s_add_u32 s{sT+4}, s{sT+4}, {H2}
        s_mov_b32 s{sT+5}, {X2}
        v_mov_b32 v{vMsk}, s{sMask}
        s_lshl2_add_u32 s{sT+6}, s{sL}, s{sW}
        s_lshl_b32 s{sT+6}, s{sT+6}, 7
        s_add_u32 s{sT+6}, s{sT+6}, {F2}
        s_lshl2_add_u32 s0, s{sMt}, s{sW}
        s_lshl_b32 s{sT+7}, s0, 11
        s_add_u32 s{sT+7}, s{sT+7}, {F2}
        s_lshl_b32 s{sXg}, s0, 15
        s_add_u32 s{sXg}, s{sXg}, {H2}
        s_lshl4_add_u32 s0, s0, s{sNt}
        s_mul_i32 s0, s0, {7*1024}
        s_add_u32 s{sActS}, s0, {ACT}
        s_add_u32 s{sActS+1}, s0, {ACT+4096}
        s_lshl4_add_u32 s0, s{sMt}, s{sNt}
        s_lshl2_add_u32 s0, s0, s{sW}
        s_lshl_b32 s0, s0, 7
        s_add_u32 s{sF3o}, s0, {F3}
        s_lshl2_add_u32 s0, s{sMt}, s{sW}
        s_and_b32 s1, s{sTb}, 1
        s_lshl3_add_u32 s0, s0, s1
        s_lshl_b32 s0, s0, 8
        s_add_u32 s{sF3p}, s0, {F3}
        s_lshl3_add_u32 s0, s{sTb}, s{sW}
        s_mul_i32 s0, s0, {28*1024}
        s_add_u32 s{sActG}, s0, {ACT}
        s_waitcnt {self.wvm(id_z)}''')
        z_loads = '\n'.join(f'buffer_load_dwordx4 {vr(ZI+4*i,4)}, v{vZ}, {SRD}, s{sT+i} offen sc1' for i in range(4))
        id_zl = e(z_loads)
        e(f'''
        v_and_b32 v{vP2}, 15, v0
        v_lshlrev_b32 v{vP2}, 7, v{vP2}
        v_bfe_u32 v{t}, v0, 2, 3
        v_bfe_u32 v{t+3}, v0, 5, 1
        v_lshl_add_u32 v{t+2}, v{t+3}, 6, v{t+2}
        v_lshl_add_u32 v{vXa}, v{t}, 7, v{t+2}
        v_add_u32 v{vA2}, 65536, v1
        v_add_u32 v{vA4}, 131072, v1
        v_add_u32 v{vAc1}, {112*1024}, v1
        v_mov_b32 v{vC2}, {fbits(c2)}
        v_bfe_u32 v{t}, v0, 1, 2
        v_and_b32 v{t+2}, 1, v0
        v_lshlrev_b32 v{t+2}, 7, v{t+2}
        v_lshl_add_u32 v{vP3}, v{t}, 9, v{t+2}
        v_bfe_u32 v{t}, v0, 3, 2
        v_lshl_add_u32 v{t}, v{t}, 1, v{t+3}
        v_lshl_add_u32 v{t}, v{t}, 10, v{t+1}
        s_lshl3_add_u32 s0, s{sTb}, s{sW}
        s_lshl_b32 s0, s0, 6
        s_add_u32 s0, s0, s{sDt}
        s_lshl_b32 s0, s0, 7
        v_add_u32 v{vX2}, s0, v{t}''')
        self.check(z_loads, [ZI+3, ZI+7, ZI+11, ZI+15], id_zl)
        self.stamp('z_ok')
        wd_issue(self.opt('wd_ln2', 6))
        ZF = 88
        for i in range(4):
            for r in range(2):
                for x in self.unpack(ZF+8*r+2*i, ZI+4*i+r): e(x)
            for r in range(2):
                z = ZF+8*r+2*i; x = XF+8*r+2*i
                e(f'v_pk_add_f32 {vr(x,2)}, {vr(x,2)}, {vr(z,2)}')
            for r in range(2):
                x = XF+8*r+2*i
                e(f'v_cvt_pk_bf16_f32 v{XR+4*r+i}, v{x}, v{x+1}')
        unp = [x for r in range(2) for i in range(4) for x in self.unpack(XF+8*r+2*i, XR+4*r+i)]
        self.stats_partial(XR, t, vSBw, unp)
        unp = self.rest
        for r in range(2):
            e(f'buffer_store_dwordx4 {vr(XR+4*r,4)}, v{vXO}, {SRD}, s{sT+5} offen offset:{1024*r} sc1')
        for x in unp: e(x)
        e('s_waitcnt lgkmcnt(0)\ns_barrier')
        ST = 56
        self.stats_read(ST, vSBr)
        GBV = 12
        for i in range(4):
            for kind in range(2):
                d = ZF+8*kind+2*i
                qp = f'quad_perm:[{kind},{kind},{kind},{kind}] row_mask:0xf bank_mask:0xf'
                e(f'v_cvt_f32_bf16_dpp v{d}, v{ZI+4*i+2} {qp}\nv_and_b32_dpp v{d+1}, v{ZI+4*i+2}, v{vMsk} {qp}')
        e('s_waitcnt lgkmcnt(0)')
        self.stats_finish(ST, vInv)
        HO = 104
        for r in range(2):
            for i in range(4):
                x = XF+8*r+2*i
                e(f'v_pk_fma_f32 {vr(x,2)}, {vr(x,2)}, {vr(ST+2*r,2)}, {vr(ST+2*r,2)} op_sel:[0,0,1] op_sel_hi:[1,0,1]')
            for i in range(4):
                x = XF+8*r+2*i
                e(f'v_pk_fma_f32 {vr(x,2)}, {vr(x,2)}, {vr(ZF+2*i,2)}, {vr(ZF+8+2*i,2)}')
            for i in range(4):
                x = XF+8*r+2*i
                e(f'v_cvt_pk_bf16_f32 v{HO+4*r+i}, v{x}, v{x+1}')
            id_h = e(f'buffer_store_dwordx4 {vr(HO+4*r,4)}, v{vH2}, {SRD}, s{sT+4} offen offset:{128*r} sc1')
        self.stamp('h2_stored')
        for i in range(4): e(f'v_mov_b32 v{GBV+i}, v{ZI+4*i+2}')
        e(f's_waitcnt {self.wvm(id_h)}')
        id_fl = e(self.flag_text(vF, sT+6))
        self.stamp('_h2_ack')
        for x in self.dma_tile(3,3): id_t3 = e(x)
        e(f's_barrier\ns_waitcnt {self.wvm(id_fl)}')
        f2_load = f'buffer_load_dword v{vPolled}, v{vP2}, {SRD}, s{sT+7} offen sc1'
        id_f2 = e(f2_load)
        X = 128
        AC = [28, 44, 60, 76]
        WF = 92; NB = 6; LA = 4
        GT = 116; GO = 16; X2R = 4
        P1 = self.opt('p1', 3)
        seq = [(tl, s) for s in range(32) for tl in range(P1)] + [(tl, s) for tl in range(P1,7) for s in range(32)]
        slot = {0:0,1:1,2:2,3:3,4:4,5:0,6:1}
        acc = {tl: AC[tl % 4] for tl in range(7)}
        def wread(n):
            tl, s = seq[n]; sl = slot[tl]
            va = {0:1,1:1,2:vA2,3:vA2,4:vA4}[sl]
            return f'ds_read_b128 {vr(WF+4*(n%NB),4)}, v{va} offset:{(sl&1 if sl<4 else 0)*32768 + 1024*s}'
        for n in range(LA): e(wread(n))
        self.check(f2_load, [vPolled], id_f2)
        self.stamp('f2_ok')
        x_id = []
        def xload():
            s = len(x_id)
            x_id.append(e(f'buffer_load_dwordx4 {vr(X+4*s,4)}, v{vXa}, {SRD}, s{sXg} offen offset:{1024*(s&3)} sc1'))
            if s & 3 == 3 and s < 31: e(f's_add_u32 s{sXg}, s{sXg}, 4096')
        XLA = self.opt('xla', 8)
        for s in range(XLA): xload()
        def gelu(tl):
            a = acc[tl]; out = []
            for hf in range(2):
                E = [a+4*hf+j for j in range(4)]
                out += [f'v_mul_f32 v{GT+j}, v{E[j]}, v{E[j]}' for j in range(4)]
                out += [f'v_fmaak_f32 v{GT+j}, v{GT+j}, v{vC2}, {fbits(c1)}' for j in range(4)]
                out += [f'v_mul_f32 v{GT+j}, v{GT+j}, v{E[j]}' for j in range(4)]
                for j in range(4): out += [f'v_exp_f32 v{GT+j}, v{GT+j}', f'v_mul_f32 v{E[j]+8}, v{E[j]+8}, v{E[j]}']
                for j in range(4): out += [f'v_add_f32 v{GT+j}, 1.0, v{GT+j}']
                for j in range(4): out += [f'v_rcp_f32 v{GT+j}, v{GT+j}']
                for j in range(4): out += [f'v_mul_f32 v{E[j]+8}, v{E[j]+8}, v{GT+j}']
                out += [f'v_cvt_pk_bf16_f32 v{GO+2*hf+j}, v{E[2*j]+8}, v{E[2*j+1]+8}' for j in range(2)]
            out.append(f'buffer_store_dwordx4 {vr(GO,4)}, v1, {SRD}, s{sActS+(tl>>2)} offen offset:{1024*(tl&3)} sc1')
            return [(x, tl) for x in out]
        last = {tl: max(n for n, (a_, _) in enumerate(seq) if a_ == tl) for tl in range(7)}
        first = {tl: min(n for n, (a_, _) in enumerate(seq) if a_ == tl) for tl in range(7)}
        gq = []; vq = []; dma_id = {3: id_t3}; st_id = {}; st_n = {}
        a_id = []
        def aload():
            kk = len(a_id); T, tt = korder[kk >> 1], kk & 1
            if tt == 0: e(f's_add_u32 s{sActT}, s{sActG}, {T*1024}')
            a_id.append(e(f'buffer_load_dwordx4 {vr(X+4*(kk%32),4)}, v{vAc1 if tt else 1}, {SRD}, s{sActT} offen sc1'))
        ACKD = self.opt('ackd', 22); VISD = self.opt('visd', 20); POLD = self.opt('pold', 12)
        flagged = 0; polled = 0; checked = 0; flag_n = {}; poll_n = {}; poll_id = {}
        gend = [sum(len(g) for g in groups[:i+1])*8 for i in range(len(groups))]
        PV3 = [120, 121, 122]
        def f3load(g): return f's_add_u32 s0, s{sF3p}, {g*F3S}\nbuffer_load_dword v{PV3[g]}, v{vP3}, {SRD}, s0 offen sc1'
        def progress(n, force=None):
            nonlocal flagged, polled, checked
            did = False
            if flagged < len(groups) and groups[flagged][-1] in st_id and (n >= st_n[groups[flagged][-1]] + ACKD or force is not None and force >= flagged):
                e(f's_add_u32 s0, s{sF3o}, {flagged*F3S}\ns_waitcnt {self.wvm(st_id[groups[flagged][-1]])}\n' + self.flag_text(vF, 0))
                flag_n[flagged] = n; flagged += 1; did = True
                if force is not None and force >= flagged-1: e(f's_waitcnt {self.wvm(self.nvm)}')
            if polled < flagged and (n >= flag_n[polled] + VISD or force is not None and force >= polled):
                poll_id[polled] = e(f3load(polled)); poll_n[polled] = n; polled += 1; did = True
            if checked < polled and (n >= poll_n[checked] + POLD or force is not None and force >= checked):
                self.check(f3load(checked), [PV3[checked]], poll_id[checked]); checked += 1; did = True
                self.stamp(f'_f3{checked-1}')
            return did
        vpace = self.opt('vpace', 2)
        grate = self.opt('grate', 10)
        for n, (tl, s) in enumerate(seq):
            if n in (1, 48, 96, 128, 160, 192): self.stamp(f'_g{n}')
            if n == last[1] + 1:
                e('s_barrier')
                vq += [(x,'d5') for x in self.dma_tile(5,0)] + [(x,'d6') for x in self.dma_tile(6,1)]
                vq += [(f's_mov_b32 s0, {X2}\nbuffer_load_dwordx4 {vr(X2R,4)}, v{vX2}, {SRD}, s0 offen sc1','x2'),
                       (f's_mov_b32 s0, {X2+32768}\nbuffer_load_dwordx4 {vr(X2R+4,4)}, v{vX2}, {SRD}, s0 offen sc1','x2')]
            for a_ in range(6):
                if n == last[a_] + 4: gq += gelu(a_)
            for a_ in (3,4,5,6):
                if n == first[a_] - LA:
                    while a_ not in dma_id or any(kd == f'd{a_}' for _, kd in vq):
                        x, kd = vq.pop(0); i_ = e(x)
                        if kd[0] == 'd': dma_id[int(kd[1])] = i_
                    e(f's_waitcnt {self.wvm(dma_id[a_])}\ns_barrier')
            w_ = f'lgkmcnt({min(LA-1, len(seq)-1-n)})'
            if tl == 0: w_ = self.wvm(x_id[s]) + ' ' + w_
            e(f's_waitcnt {w_}')
            if s == 0: assert not any(b_ == tl-4 for _, b_ in gq), (n, len(gq))
            c_ = '0' if s == 0 else vr(acc[tl],16)
            e(f'v_mfma_f32_32x32x16_bf16 {vr(acc[tl],16)}, {vr(WF+4*(n%NB),4)}, {vr(X+4*s,4)}, {c_}')
            if n + LA < len(seq): e(wread(n+LA))
            budget = (grate*(n+1))//3 - (grate*n)//3
            if progress(n): budget -= 2
            elif len(x_id) < 32:
                if tl == 0:
                    xload()
                    if len(x_id) == 32: vq += [(x,'d4') for x in self.dma_tile(4,4)]
            elif n % vpace == 0:
                if tl == 6 and checked and len(a_id) < min(s, gend[checked-1]): aload()
                elif vq:
                    x, kd = vq.pop(0); i_ = e(x)
                    if kd[0] == 'd': dma_id[int(kd[1])] = i_
                else: wd_issue(1)
            while gq and budget > 0:
                x, b_ = gq.pop(0); budget -= 1
                i_ = e(x)
                if x.startswith('buffer_'): st_id[b_] = i_; st_n[b_] = n
        assert not vq
        self.stamp('g1_mfma')
        n = len(seq)
        e(f'''
        v_and_b32 v{WF}, 3, v0
        v_cmp_eq_u32 vcc, 2, v{WF}
        v_and_b32 v{WF+1}, 0xfc, v0
        v_lshlrev_b32 v{WF+1}, 2, v{WF+1}
        v_add_u32 v{WF+1}, {L_GB}, v{WF+1}
        s_mov_b64 exec, vcc
        ds_write_b128 v{WF+1}, {vr(GBV,4)}
        s_mov_b64 exec, -1''')
        cnt = 0
        for x, b_ in gq + gelu(6):
            i_ = e(x); cnt += 1
            if x.startswith('buffer_'): st_id[b_] = i_; st_n[b_] = n
            if cnt % 8 == 0:
                n += 1
                if not progress(n) and checked and len(a_id) < min(32, gend[checked-1]): aload()
        self.stamp('gelu6')
        A2 = 28
        vRw = 12; vRr = 13; vG = 14
        fill = f'''v_bfe_u32 v{WF}, v0, 5, 1
        v_and_b32 v{WF+1}, 0x1f0, v1
        s_mul_i32 s{sT}, s{sW}, {4*RQ}
        s_add_u32 s{sT}, s{sT}, {L_RED}
        v_mul_u32_u24 v{WF}, {RSA}, v{WF}
        v_add3_u32 v{vRw}, v{WF}, v{WF+1}, s{sT}
        v_and_b32 v{WF}, 7, v0
        v_lshrrev_b32 v{WF+1}, 3, v0
        v_mul_u32_u24 v{WF+2}, {RSA}, v{WF}
        v_lshl_add_u32 v{vRr}, v{WF+1}, 4, v{WF+2}
        v_add_u32 v{vRr}, {L_RED}, v{vRr}
        s_lshl_b32 s{sT}, s{sDt}, 7
        s_add_u32 s{sT}, s{sT}, {L_GB}
        v_lshl_add_u32 v{vG}, v{WF}, 4, s{sT}
        s_add_u32 s{sT+2}, s{pOut}, 32768
        s_addc_u32 s{sT+3}, s{pOut+1}, 0'''.split('\n')
        XF2 = 96
        for tt in range(2):
            for j in range(4):
                fill += [f'v_lshlrev_b32 v{XF2+8*tt+j}, 16, v{X2R+4*tt+j}', f'v_and_b32 v{XF2+8*tt+4+j}, s{sMask}, v{X2R+4*tt+j}']
        TAILK = self.opt('tailk', 4)
        o2 = [(kk, tt) for kk in range(28-TAILK) for tt in range(2)] + [(kk, tt) for tt in range(2) for kk in range(28-TAILK, 28)]
        ALA = self.opt('ala', 10)
        consumed = set(); wq = []
        for m_, (kk, tt) in enumerate(o2):
            f = 2*kk + tt; T = korder[kk]
            if m_ in (0, 14, 28, 42): self.stamp(f'_h{m_}')
            while len(wd_id) < 2*kk+2: wd_issue(1)
            while len(a_id) <= f:
                g = min(i for i in range(len(groups)) if gend[i] > len(a_id))
                while checked <= g: progress(n, force=g)
                assert len(a_id) < 32 or len(a_id)-32 in consumed
                aload()
            e(f's_waitcnt {self.wvm(max(a_id[f], wd_id[2*kk+1]))}')
            for c in range(2):
                a = A2 + 32*tt + 16*c
                e(f'v_mfma_f32_32x32x16_bf16 {vr(a,16)}, {ar(8*T+4*c,4)}, {vr(X+4*(f%32),4)}, {"0" if kk==0 else vr(a,16)}')
                n += 1
                if progress(n): pass
                elif len(a_id) < 56 and len(a_id) < gend[checked-1] and len(a_id) <= f + ALA and (len(a_id) < 32 or len(a_id)-32 in consumed): aload()
                elif wdq: wd_issue(1)
                if wq and m_ >= 57-TAILK:
                    e(wq.pop(0))
                    if wq: e(wq.pop(0))
                for _ in range(3):
                    if fill: e(fill.pop(0))
            consumed.add(f)
            if m_ == 55-TAILK:
                wq = [f'ds_write_b128 v{vRw}, {vr(A2+16*c+4*i,4)} offset:{c*RQ+2*RSA*i}' for c in range(2) for i in range(4)]
        self.stamp('g2_mfma')
        for x in wq: e(x)
        for c in range(2):
            for i in range(4): e(f'ds_write_b128 v{vRw}, {vr(A2+32+16*c+4*i,4)} offset:{(2+c)*RQ+2*RSA*i}')
        e('s_waitcnt lgkmcnt(0)\ns_barrier')
        GF = 112; RD = 128; r_id = []
        e(f'ds_read_b128 {vr(GF+8,4)}, v{vG}'); g_id = self.nlg
        e(f'v_add_u32 v{vRw}, {8*RQ}, v{vRr}')
        for q_ in range(4):
            for w in range(4):
                e(f'ds_read_b128 {vr(RD+16*q_+4*w,4)}, v{vRr if w<2 else vRw} offset:{(4*(w&1)+q_)*RQ}')
            r_id.append(self.nlg)
            if q_ == 2:
                e(f's_waitcnt {self.wlg(g_id)}')
                for j in range(4): e(f'v_lshlrev_b32 v{GF+j}, 16, v{GF+8+j}\nv_and_b32 v{GF+4+j}, s{sMask}, v{GF+8+j}')
        OO = 28
        for tt in range(2):
            for c in range(2):
                q_ = 2*tt+c; r = RD+16*q_
                e(f's_waitcnt {self.wlg(r_id[q_])}')
                for hh in range(2):
                    e(f'v_pk_add_f32 {vr(r+2*hh,2)}, {vr(r+2*hh,2)}, {vr(r+4+2*hh,2)}\nv_pk_add_f32 {vr(r+8+2*hh,2)}, {vr(r+8+2*hh,2)}, {vr(r+12+2*hh,2)}')
                for hh in range(2):
                    e(f'v_pk_add_f32 {vr(r+2*hh,2)}, {vr(r+2*hh,2)}, {vr(r+8+2*hh,2)}')
                for hh in range(2):
                    e(f'v_pk_fma_f32 {vr(r+2*hh,2)}, {vr(r+2*hh,2)}, {vr(GF+4*c+2*hh,2)}, {vr(XF2+8*tt+4*c+2*hh,2)}')
            for j in range(4):
                e(f'v_cvt_pk_bf16_f32 v{OO+4*tt+j}, v{RD+32*tt+j}, v{RD+32*tt+16+j}')
            e(f'global_store_dwordx4 v{vX2}, {vr(OO+4*tt,4)}, {sp(pOut) if tt==0 else sp(sT+2)} {self.opt("outflag","sc1").replace("_"," ").replace("none","")}')
        self.stamp('end')
        e(f'''
        s_or_b32 s0, s{sL}, s{sW}
        s_cbranch_scc1 L_noep''')
        e(self.flag_text(vF, 0))
        e('L_noep:')
        if self.stamps:
            e(f'''
            s_lshl2_add_u32 s{sT}, s{sL}, s{sW}
            s_lshl_b32 s{sT}, s{sT}, 7
            s_add_u32 s{sT}, s{sT}, {STMP}
            v_mov_b32 v4, 0
            s_mov_b64 exec, 1''')
            for i in range(self.ns):
                e(f'v_mov_b32 v5, s{sStamp+i}\nbuffer_store_dword v5, v4, {SRD}, s{sT} offen offset:{4*i}')
            e(f'v_mov_b32 v5, s{sCnt}\nbuffer_store_dword v5, v4, {SRD}, s{sT} offen offset:124')
        if self.o.get('probe') is not None:
            kk = self.stamp_names.index(self.o['probe'])
            e(f'''
            s_add_u32 s{sT}, s{sStamp+kk}, 5000
            L_spin:
            s_sleep 1
            s_memrealtime s[22:23]
            s_waitcnt lgkmcnt(0)
            s_sub_u32 s{sT+1}, s22, s{sT}
            s_cmp_lt_i32 s{sT+1}, 0
            s_cbranch_scc1 L_spin''')
        e('s_endpgm')
        for x in self.tail: e(x)
        e('L_end:\ns_endpgm')
        p.end(k, vgpr=256, agpr=256, sgpr=102)
        p.text, added = hazard.fix(p.text, verbose=self.o.get('verbose'))
        return added

if __name__ == '__main__':
    ap = argparse.ArgumentParser()
    ap.add_argument('out'); ap.add_argument('--stamps', action='store_true'); ap.add_argument('-v', action='store_true')
    ap.add_argument('--probe', default=None); ap.add_argument('-o', action='append', default=[])
    a = ap.parse_args()
    opts = dict(verbose=a.v, probe=a.probe)
    for kv in a.o:
        kk, vv = kv.split('='); opts[kk] = int(vv) if vv.lstrip('-').isdigit() else vv
    g = G(a.stamps or a.probe is not None, opts)
    added = g.build()
    g.p.dump(a.out, single=True)
    n = sum(1 for l in g.p.text if l.startswith('  '))
    print(a.out, 'instructions', n, 'nops added', added, 'stamps', g.stamp_names)
    if a.stamps: open(a.out + '.names', 'w').write(' '.join(g.stamp_names))
```

```python
import sys, struct, argparse
from asmlib import Prog, NAME
import hazard

def fbits(x): return '0x%08x' % struct.unpack('<I', struct.pack('<f', x))[0]

F1   = 0x140000
F2   = 0x020000
F3   = 0x040000
F3S  = 0x020000
F4   = 0x0A0000
MODP = 0x0C0000
XBLK = 16640
HBLK = 8448
TAGM = 0x70007000
XH   = 0x160000
ZY   = 0x580000
H2   = 0x9A0000
X2   = 0xBA0000
WGU  = 0xDA0000
ACT  = 0x1120000
STMP = 0x3000000
WS_BYTES = 0x10000000
S4   = 131072
L_U  = S4; USZ = 4608
L_P  = S4 + 2*USZ; PSZ = 4288
L_ZB = L_P + 2*PSZ
L_JK = L_ZB + 1024
L_BD = L_P + 12288
L_SB = L_BD + 1024
L_TS = L_SB + 256; TIMG = 1152
L_Y  = 98304
L_MB = 98304
RST  = 544
L_RC = 0; RCSZ = 54*RST
L_RED = 65536; RSA = 576; RQ = 8*RSA
L_GB = L_RED + 16*RQ
LDS_BYTES = 163840
pX,pAre,pAim,pBre,pBim,pCre,pCim,pLdt = 4,6,8,10,12,14,16,18
pD,pWg,pWu,pWd,pC,pWm,pOut,pWs = 20,24,26,28,30,32,34,38
SRD='s[40:43]'
sL,sW,sTag,sMask,sCnt = 44,45,46,47,48
sLo,sHi = 49,50
sOnes = 51
sMt,sNt,sTb,sDt = 52,53,54,55
sBad = 56
sT = 58
sM = 68
sDsk = 80
sStamp = 82
sDmaL, sDmaG, sDmaT = 4, 5, 6
sActG, sActT = 9, 10
sActS = 12
sF3o, sF3p = 14, 15
sXg = 16
sCh, sHb = 17, 18
sE1 = 4
sZs = 10
sTm = 25
sWs, sF1o = 14, 24
def sp(i): return f's[{i}:{i+1}]'
def vr(i, n): return f'v[{i}:{i+n-1}]'
def ar(i, n): return f'a[{i}:{i+n-1}]'

class G:
    def __init__(self, stamps=False, opts=None):
        self.p = Prog(); self.stamps = stamps; self.ns = 0; self.o = opts or {}
        self.stamp_names = []; self.nvm = 0; self.nlg = 0; self.tail = []; self.maybe = False
    def opt(self, k, d): return self.o.get(k, d)
    def e(self, s):
        for line in s.split('\n'):
            l = line.strip()
            if not l: continue
            if l.startswith(('buffer_', 'global_')) and not self.maybe: self.nvm += 1
            if l.startswith('ds_') and not self.maybe: self.nlg += 1
            self.p.e(l)
        return self.nvm
    def wvm(self, i): return f'vmcnt({min(62, self.nvm - i)})'
    def wlg(self, i): return f'lgkmcnt({min(14, self.nlg - i)})'
    def stamp(self, name):
        if not self.stamps: return
        if self.o.get('probe') is not None and name != self.o['probe']: return
        if self.o.get('only') and not (name == 'start' or name.startswith(tuple(self.o['only'].split(',')))): return
        if not self.o.get('only') and self.o.get('probe') is None and name.startswith('_'): return
        assert self.ns < 20
        self.e(f's_memrealtime s[22:23]\ns_waitcnt lgkmcnt(0)\ns_mov_b32 s{sStamp+self.ns}, s22')
        self.ns += 1; self.stamp_names.append(name)

    def check_text(self, loads, tags, last):
        Lc = self.p.label('chk'); Lr = self.p.label('retry')
        s = f's_waitcnt {self.wvm(last)}\n{Lc}:\n'
        if len(tags) == 1:
            s += f'v_cmp_ne_u32 vcc, v{tags[0]}, v2\ns_cmp_lg_u64 vcc, 0\ns_cbranch_scc1 {Lr}'
            self.tail.append(f'''{Lr}:
            s_sub_u32 s{sCnt}, s{sCnt}, 1
            s_cbranch_scc1 L_end
            {loads}
            s_waitcnt vmcnt(0)
            s_branch {Lc}''')
        else:
            s += f'v_cmp_ne_u32 {sp(sBad)}, v{tags[0]}, v2\n'
            for t in tags[1:]: s += f'v_cmp_ne_u32 vcc, v{t}, v2\ns_or_b64 {sp(sBad)}, {sp(sBad)}, vcc\n'
            s += f's_cbranch_scc1 {Lr}'
            self.tail.append(f'''{Lr}:
            s_sub_u32 s{sCnt}, s{sCnt}, 1
            s_cbranch_scc1 L_end
            s_mov_b64 exec, {sp(sBad)}
            {loads}
            s_mov_b64 exec, -1
            s_waitcnt vmcnt(0)
            s_branch {Lc}''')
        return s
    def check(self, loads, tags, last): self.e(self.check_text(loads, tags, last))

    def flag_text(self, vaddr, soff):
        return f's_mov_b32 exec_hi, 0\nbuffer_store_dword v2, v{vaddr}, {SRD}, s{soff} offen sc1\ns_mov_b32 exec_hi, -1'

    def stats_partial(self, src, t, vSBw, fill=()):
        a,b,c,d = t,t+1,t+2,t+3
        for m in range(4):
            acc = lambda r: '0' if m == 0 else f'v{r}'
            self.e(f'''v_dot2_f32_bf16 v{a}, v{src+m}, s{sOnes}, {acc(a)}
            v_dot2_f32_bf16 v{b}, v{src+4+m}, s{sOnes}, {acc(b)}
            v_dot2_f32_bf16 v{c}, v{src+m}, v{src+m}, {acc(c)}
            v_dot2_f32_bf16 v{d}, v{src+4+m}, v{src+4+m}, {acc(d)}''')
        self.reduce4(a,b,c,d, fill)
        self.e(f'ds_write_b32 v{vSBw}, v{a}')
    def reduce4(self, a,b,c,d, fill=()):
        fill = list(fill)
        def f(n):
            for _ in range(n):
                if fill: self.e(fill.pop(0))
        f(2); self.e(f'v_permlane32_swap_b32 v{a}, v{b}\nv_permlane32_swap_b32 v{c}, v{d}\nv_add_f32 v{a}, v{a}, v{b}\nv_add_f32 v{c}, v{c}, v{d}')
        f(2); self.e(f'v_permlane16_swap_b32 v{a}, v{c}\nv_add_f32 v{a}, v{a}, v{c}')
        f(2); self.e(f'v_add_f32_dpp v{a}, v{a}, v{a} row_ror:4 row_mask:0xf bank_mask:0xf')
        f(2); self.e(f'v_add_f32_dpp v{a}, v{a}, v{a} row_ror:8 row_mask:0xf bank_mask:0xf')
        self.rest = fill
    def stats_read(self, t, vSBr):
        for w in range(4): self.e(f'ds_read_b128 {vr(t+4*w,4)}, v{vSBr} offset:{16*w}')
        return self.nlg
    def stats_finish(self, t, vInv, scale=None):
        self.e(f'''
        v_pk_add_f32 {vr(t,2)}, {vr(t,2)}, {vr(t+4,2)}
        v_pk_add_f32 {vr(t+2,2)}, {vr(t+2,2)}, {vr(t+6,2)}
        v_pk_add_f32 {vr(t+8,2)}, {vr(t+8,2)}, {vr(t+12,2)}
        v_pk_add_f32 {vr(t+10,2)}, {vr(t+10,2)}, {vr(t+14,2)}
        v_pk_add_f32 {vr(t,2)}, {vr(t,2)}, {vr(t+8,2)}
        v_pk_add_f32 {vr(t+2,2)}, {vr(t+2,2)}, {vr(t+10,2)}
        v_pk_mul_f32 {vr(t+4,2)}, {vr(t,2)}, {vr(vInv,2)} op_sel_hi:[1,0]
        v_pk_mul_f32 {vr(t+6,2)}, {vr(t+2,2)}, {vr(vInv,2)} op_sel_hi:[1,0]
        v_fma_f32 v{t+5}, -v{t+4}, v{t+4}, v{t+5}
        v_fma_f32 v{t+7}, -v{t+6}, v{t+6}, v{t+7}
        v_max_f32 v{t+5}, 0, v{t+5}
        v_max_f32 v{t+7}, 0, v{t+7}
        v_add_f32 v{t+5}, v{vInv+1}, v{t+5}
        v_add_f32 v{t+7}, v{vInv+1}, v{t+7}
        v_rsq_f32 v{t}, v{t+5}
        v_rsq_f32 v{t+2}, v{t+7}''')
        if scale: self.e(f'v_mul_f32 v{t}, {fbits(scale)}, v{t}\nv_mul_f32 v{t+2}, {fbits(scale)}, v{t+2}')
        self.e(f'''
        v_mul_f32 v{t+1}, -v{t+4}, v{t}
        v_mul_f32 v{t+3}, -v{t+6}, v{t+2}''')
    def cmul(self, d, a, b):
        return [f'v_pk_mul_f32 {vr(d,2)}, {vr(a,2)}, {vr(b,2)} op_sel_hi:[1,0]',
                f'v_pk_fma_f32 {vr(d,2)}, {vr(a,2)}, {vr(b,2)}, {vr(d,2)} op_sel:[1,1,0] op_sel_hi:[0,1,1] neg_lo:[1,0,0]']
    def unpack(self, d, s): return [f'v_lshlrev_b32 v{d}, 16, v{s}', f'v_and_b32 v{d+1}, s{sMask}, v{s}']

    def dma_tile(self, i, slot):
        out = []
        for hf in range(2):
            for e_ in range(4):
                pre = ''
                if e_ == 0:
                    pre = (f's_add_u32 m0, s{sDmaL}, {slot*32768 + hf*4096}\n'
                           f's_add_u32 s{sDmaT}, s{sDmaG}, {i*32768 + hf*4096}\n')
                out.append(pre + f'buffer_load_dwordx4 v1, {SRD}, s{sDmaT} offen offset:{e_*1024} sc1 lds')
        return out

    def build(self):
        p = self.p; e = self.e
        k = NAME + '_kernel'
        p.add_launch(k, 256, 256, LDS_BYTES)
        p.begin(k)
        XR = 4; WM = 12; AB = 28; WG = 36
        vXO = 3; t = 68
        vTg = 252; vWgL = 35; vTab = 97; vPf = 255; vInv = 52; vDt = 34; vS = 54; vPolled = 123; vMBw = 72
        vSBw, vSBr, vMBr, vEM = 112, 113, 114, 115
        vRW, vKa, vKb0, vKb1 = 116, 117, 118, 119
        vWgS, vTw, vTr, vF = 124, 125, 126, 127
        vEX, vWdA, vBv, vOne = 64, 65, 66, 67
        vKw0, vKw1, vBd, vBd2 = 120, 121, 122, 123
        vPA, vPX, vQ, vUS = 56, 57, 58, 59
        vYw, vYr, vUB, vUw = 60, 61, 62, 63
        TP = 160; TB = 98304
        def consts(tid):
            w, l = tid >> 6, tid & 63; ch, hb = w >> 1, w & 1; c, q_, rp = l & 15, l >> 4, l & 3
            P = L_P + ch*PSZ; U = L_U + ch*USZ; RC = L_RC + ch*RCSZ
            lo, wd = [(3,3),(6,5),(5,7),(4,9)][w]
            x = l - 16 - lo
            band = (0x3f80 if 0 <= x < wd else 0) | (0x3f800000 if 0 <= x-1 < wd else 0)
            if c < 8: kw1 = P + 4*(608 + 16*[1,5,2,6,10,11,12,13][c] + 8*hb + 2*q_)
            elif 120 <= (tid & 127) < 125: kw1 = P + 4*((520 if c < 11 else 568) + c) - 932
            else: kw1 = L_JK
            sw = (((l >> 1) & 3) ^ q_) * 16
            TS = L_TS + w*2*TIMG
            full = [(tid >> 2)*HBLK + rp*16, (448*w + 16*(l>>5) + 4*((l>>3)&3))*1024 + (l&7)*16, band, 0x3f800000 if q_ == 2 else 0]
            half = {vSBw: L_SB + rp*64 + w*16 + q_*4, vSBr: L_SB + rp*64,
              vMBr: L_MB + 4*(192*((l>>1)&1) + 2*(8*w + ((l>>2)&7)) + (l&1)), vMBw: L_MB + 32*tid,
              vRW: RC + 4*(tid & 127), vKa: RC + (16*hb + c)*RST + 16*q_,
              vKb0: RC + [0,1,2,3,4,5,6,7,8,8,9,10,10,10,11,12][c]*RST + 16*q_, vKb1: RC + [1,2,3,4,5,6,7,8,0,0,0,4,4,0,0,0][c]*RST + 16*q_,
              vTw: TS + ((l>>2)&1)*576 + (l>>5)*256 + ((l>>3)&3)*64 + (l&3)*16, vTr: TS + (l>>5)*256 + ((l>>2)&3)*64 + ((l>>4)&1)*32 + (l&3)*8,
              vEM: (l >> 2)*2048 + rp*16, vWgS: q_*512 + c*16,
              vKw0: P + 64 + 512*hb + 4*((c&7) + 256*(c>>3) + 32*q_), vKw1: kw1,
              vBd: L_BD + 4*(26 + c - 8*q_), vBd2: L_BD + 4*(26 + c - 8*q_) + 256*hb,
              vPA: P + 512*hb + 4*(26 + c - 8*q_), vPX: (P + 2048 if hb == 0 else L_ZB) + 4*(26 + c - 8*q_),
              vQ: P + 4*(608 + 12 + c - 4*q_) + 928*hb, vUS: U + 32*c + 16*q_ + 480 - 16*hb,
              vYw: L_Y + w*8192 + c*64 + sw, vYr: L_Y + (tid & 0xf9)*8 + sw, vUB: U + 32*c + 16*q_ + 288 - 256*hb, vUw: L_U + 512 + 4*tid}
            return full, half
        hregs = list(consts(0)[1]); assert len(hregs) == 24
        hbase = {r: (TB if consts(0)[1][r] >= TB else 0) for r in hregs}
        def trow(tid):
            full, half = consts(tid)
            h = [half[r] - hbase[r] for r in hregs]; assert all(0 <= v < 65536 for v in h)
            return [h[2*i] | h[2*i+1] << 16 for i in range(12)] + full
        self.table = [v for qd in range(4) for tid in range(256) for v in trow(tid)[4*qd:4*qd+4]]
        def tunpack():
            out = []
            for i, r in enumerate(hregs):
                b_ = f's{sT+9}' if hbase[r] else '0'
                out.append(f'v_add_u32_sdwa v{r}, {b_}, v{TP+(i>>1)} dst_sel:DWORD dst_unused:UNUSED_PAD src0_sel:DWORD src1_sel:WORD_{i&1}')
            return out
        groups = [(0,1,2),(3,4),(5,6)]
        korder = [7*pp + i for g in groups for i in g for pp in range(4)]
        wdq = []
        for Gl in range(7):
            for jh in range(2):
                for c in range(4):
                    wdq.append(((4*Gl+c, jh), f'global_load_dwordx4 {ar(8*(4*Gl+c)+4*jh,4)}, v{vWdA}, {sp(pWd)} offset:{1024*c}' +
                               (f'\nv_add_u32 v{vWdA}, 32768, v{vWdA}' if c == 3 and (Gl, jh) != (6, 1) else '')))
        wd_id = {}
        def wd_issue(n):
            for _ in range(n):
                if wdq:
                    key, x = wdq.pop(0); wd_id[key] = e(x) if not self.opt('nowd', 0) else 1
        trn = [0]; trw = [0]
        def tr_ops(T):
            return [f'ds_write_b128 v{vTw}, {ar(8*T,4)}', f'ds_write_b128 v{vTw}, {ar(8*T+4,4)} offset:{TIMG}'] + \
                   [f'ds_read_b64_tr_b16 {ar(8*T+4*c+2*jh,2)}, v{vTr} offset:{576*c+TIMG*jh}' for c in range(2) for jh in range(2)]
        def tr_do(n):
            for _ in range(n):
                T = trn[0]
                if T >= 28 or (T, 1) not in wd_id: return
                if wd_id[(T,1)] > trw[0]:
                    trw[0] = wd_id.get((T|3, 1), wd_id[(T,1)]); e(f's_waitcnt {self.wvm(trw[0])}')
                if not self.opt('notr', 0):
                    for x in tr_ops(T): e(x)
                trn[0] += 1
        e(f"""
        s_load_dwordx16 s[4:19], s[0:1], 0
        s_load_dwordx16 s[20:35], s[0:1], 64
        s_load_dwordx4 s[36:39], s[0:1], 128
        s_cmp_ge_u32 s2, 256
        s_cbranch_scc1 L_end
        v_lshrrev_b32 v{t}, 6, v0
        v_and_b32 v{t+1}, 63, v0
        v_readfirstlane_b32 s{sW}, v{t}
        s_lshr_b32 s3, s2, 3
        s_getpc_b64 {sp(sM)}
        L_pc:
        s_lshl2_add_u32 s{sT}, s3, s{sW}
        s_lshl_b32 s{sM+2}, s{sT}, 8
        s_min_u32 s{sM+2}, s{sM+2}, L_end-L_pc-256
        v_lshl_add_u32 v{t+7}, v{t+1}, 2, s{sM+2}
        global_load_dword v123, v{t+7}, {sp(sM)}
        s_add_u32 s{sM+4}, s{sM}, L_tab-L_pc+4096
        s_addc_u32 s{sM+5}, s{sM+1}, 0
        v_lshlrev_b32 v{vTab}, 4, v0""")
        id_tab = e(f"""
        global_load_dwordx4 {vr(TP,4)}, v{vTab}, {sp(sM+4)} offset:-4096
        global_load_dwordx4 {vr(TP+4,4)}, v{vTab}, {sp(sM+4)}
        v_add_u32 v{vTab}, 8192, v{vTab}
        global_load_dwordx4 {vr(TP+8,4)}, v{vTab}, {sp(sM+4)} offset:-4096
        global_load_dwordx4 {vr(vEX,4)}, v{vTab}, {sp(sM+4)}""")
        e(f"""
        s_and_b32 s{sT+1}, s2, 7
        s_lshl_b32 s{sL}, s{sT+1}, 5
        s_or_b32 s{sL}, s{sL}, s3
        v_lshlrev_b32 v1, 4, v{t+1}
        v_and_b32 v{t+2}, 3, v0
        v_and_b32 v{t+3}, 0xfc, v0
        s_lshl_b32 s{sT+3}, s{sL}, 13
        v_lshl_add_u32 v{t+3}, v{t+3}, 2, s{sT+3}
        v_lshl_add_u32 v{vXO}, v{t+2}, 11, v{t+3}
        v_lshrrev_b32 v{t+4}, 3, v{t+1}
        v_min_u32 v{t+4}, 5, v{t+4}
        v_and_b32 v{t+5}, 0x70, v1
        v_lshl_add_u32 v{t+4}, v{t+4}, 10, v{t+5}
        s_lshl_b32 s{sT+2}, s{sT}, 3
        s_mul_i32 s{sT}, s{sT}, {4*6144}
        s_lshl_b32 s{sT+1}, s{sT+1}, 7
        s_add_u32 s{sT}, s{sT}, s{sT+1}
        s_add_u32 s{sT}, s{sT}, 3072
        v_add_u32 v{t+4}, s{sT}, v{t+4}
        v_add_u32 v{t+5}, 12288, v{t+4}
        s_lshl_b32 s{sT}, s{sL}, 9
        v_lshl_add_u32 v{t+6}, v0, 1, s{sT}
        s_lshl_b32 s{sT+3}, s{sL}, 2
        """)
        for i in range(6): e(f'v_mov_b32 v{AB+i}, 0')
        e('s_waitcnt lgkmcnt(0)')
        self.stamp('start')
        e(f"""
        s_load_dwordx2 {sp(sT+4)}, {sp(pC)}, s{sT+2}
        global_load_dwordx4 {vr(XR,4)}, v{vXO}, {sp(pX)}""")
        id_x = e(f'global_load_dwordx4 {vr(XR+4,4)}, v{vXO}, {sp(pX)} offset:1024')
        id_ep = e(f"""
        s_load_dword s{sT+6}, {sp(pLdt)}, s{sT+3}
        s_load_dword s{sDsk+1}, {sp(pD)}, s{sT+3}
        global_load_dword v2, v{AB}, {sp(pWs)} sc1""")
        for i, ptr in enumerate([pAre,pAim,pBre,pBim,pCre,pCim]):
            id_ab = e(f'global_load_short_d16_hi v{AB+i}, v{t+6}, {sp(ptr)}')
        id_wm = e(f"""
        global_load_dwordx4 {vr(WM,4)}, v{t+4}, {sp(pWm)} offset:-3072
        global_load_dwordx4 {vr(WM+4,4)}, v{t+4}, {sp(pWm)} offset:3072
        global_load_dwordx4 {vr(WM+8,4)}, v{t+5}, {sp(pWm)} offset:-3072
        global_load_dwordx4 {vr(WM+12,4)}, v{t+5}, {sp(pWm)} offset:3072""")
        GR = 144
        u = 92
        e(f"""
        s_mov_b32 s{sMask}, 0xffff0000
        s_mov_b32 s{sLo}, 0x05040100
        s_mov_b32 s{sHi}, 0x07060302
        s_mov_b32 s{sOnes}, 0x3f803f80
        v_mov_b32 v{t+12}, {fbits(-1.4426950408889634)}
        s_add_u32 s{sT+7}, s{sT+3}, s{sW}
        s_min_u32 s{sT}, s{sT+7}, 895
        v_and_b32 v{t+8}, 15, v{t+1}
        s_lshl_b32 s{sT+1}, s{sT}, 11
        v_lshl_add_u32 v{vPf}, v{t+8}, 7, s{sT+1}
        s_mov_b64 s[0:1], {sp(pWd)}
        s_bitcmp1_b32 s{sT}, 0
        s_cselect_b32 s{pWu}, s{pWu}, s{pWg}
        s_cselect_b32 s{pWu+1}, s{pWu+1}, s{pWg+1}
        s_cselect_b32 s{sWs}, 256, 0
        s_bfe_u32 s{sT+1}, s{sT}, 0x40001
        s_lshr_b32 s{sT+2}, s{sT}, 5
        s_mul_i32 s{sT+8}, s{sT+1}, {32*3584}
        s_lshl_b32 s{sT+3}, s{sT+2}, 7
        s_add_u32 s{sT+8}, s{sT+8}, s{sT+3}
        v_lshrrev_b32 v{t+7}, 4, v{t+1}
        v_mul_u32_u24 v{t+7}, {8*3584}, v{t+7}
        v_lshl_add_u32 v{t+10}, v{t+8}, 3, s{sT+8}
        v_add_u32 v{vWgL}, v{t+10}, v{t+7}
        s_lshl_b32 s{sT+2}, s{sT+2}, 17
        s_lshl_b32 s{sT+1}, s{sT+1}, 11
        s_add_u32 s{sT+2}, s{sT+2}, s{sT+1}
        s_add_u32 s{sWs}, s{sWs}, s{sT+2}
        s_add_u32 s{sWs}, s{sWs}, {WGU}
        s_cmp_ge_u32 s{sL}, 224
        s_cselect_b32 s{sWs}, {WS_BYTES}, s{sWs}
        s_lshl_b32 s{sF1o}, s{sT+7}, 7
        s_add_u32 s{sF1o}, s{sF1o}, {F1}
        v_mov_b32 v{u}, 0
        v_mov_b32 v{u+1}, 0
        v_mov_b32 v{u+2}, 0
        v_mov_b32 v{u+3}, 0
        v_lshlrev_b32 v{u+4}, 4, v0
        v_add_u32 v{u+4}, {L_P}, v{u+4}
        s_lshr_b32 s{sCh}, s{sW}, 1
        s_mul_i32 s{sT}, s{sCh}, {USZ-512}
        s_add_u32 s{sT}, s{sT}, {L_U}
        v_lshl_add_u32 v{t+9}, v0, 2, s{sT}
        s_mov_b32 s{sT+9}, {TB}
        v_lshrrev_b32 v{vF}, 2, v1
        s_waitcnt lgkmcnt(0)
        ds_write_b128 v{u+4}, {vr(u,4)}
        ds_write_b128 v{u+4}, {vr(u,4)} offset:4096
        ds_write_b128 v{u+4}, {vr(u,4)} offset:8192
        ds_write_b32 v{t+9}, v{u}
        s_lshl_b32 s{sT}, s{sT+4}, 16
        s_and_b32 s{sT+1}, s{sT+4}, s{sMask}
        s_lshl_b32 s{sT+2}, s{sT+5}, 16
        s_and_b32 s{sT+3}, s{sT+5}, s{sMask}
        """)
        self.stamp('_smem')
        for i in range(4): e(f'v_mul_f32 v{t+13+i}, s{sT+i}, v{t+12}')
        for i in range(4): e(f'v_exp_f32 v{t+13+i}, v{t+13+i}')
        e(f"""
        s_lshl_b32 s{sT+4}, s{sCh}, 4
        s_lshr_b32 s{sT+5}, s{sT+6}, s{sT+4}
        s_lshl_b32 s{sT+5}, s{sT+5}, 16
        s_lshr_b32 s{sDsk}, s{sDsk+1}, s{sT+4}
        s_lshl_b32 s{sDsk}, s{sDsk}, 16""")
        for i in range(4): e(f'v_add_f32 v{t+13+i}, 1.0, v{t+13+i}')
        for i in range(4): e(f'v_rcp_f32 v{t+13+i}, v{t+13+i}')
        e(f'v_mul_f32 v{vDt}, s{sT+5}, -v{t+12}')
        for i in range(4): e(f'v_mul_f32 v{t+13+i}, s{sT+i}, v{t+13+i}')
        e(f'v_exp_f32 v{vDt}, v{vDt}')
        e(f'v_cvt_pk_bf16_f32 v{vS}, v{t+13}, v{t+14}\nv_cvt_pk_bf16_f32 v{vS+1}, v{t+15}, v{t+16}')
        e(f"""
        s_mov_b32 s40, s{pWs}
        s_mov_b32 s41, s{pWs+1}
        s_mov_b32 s42, {WS_BYTES}
        s_mov_b32 s43, 0x20000
        s_mov_b32 s{sCnt}, 40000
        v_mov_b32 v{vInv}, {fbits(1/512)}
        v_mov_b32 v{vInv+1}, {fbits(1e-5)}
        v_cvt_pk_bf16_f32 v{vDt}, v{vDt}, v{vDt}
        s_mul_i32 s{sT}, s{sL}, {XBLK}
        s_mul_i32 s{sT+2}, s{sL}, {HBLK}
        s_lshl_b32 s{sT+1}, s{sW}, 11
        s_add_u32 s{sT+1}, s{sT+2}, s{sT+1}
        s_add_u32 s{sT+1}, s{sT+1}, {XH}
        s_lshl_b32 s{sT+2}, s{sT+7}, 9
        s_add_u32 s{sT+2}, s{sT+2}, {MODP}
        s_mov_b32 s{sTag}, 1664525
        v_lshlrev_b32 v{vDt}, 16, v{vDt}
        s_lshl_b32 s{sT+3}, s{sW}, 10
        s_add_u32 s{sT}, s{sT}, s{sT+3}
        s_add_u32 s{sZs}, s{sT}, {ZY}
        s_add_u32 s{sZs+1}, s{sT}, {ZY+4096}
        s_add_u32 s{sZs+2}, s{sT}, {ZY+8192}
        s_add_u32 s{sZs+3}, s{sT}, {ZY+12288}
        s_lshr_b32 s{sT}, s{sL}, 6
        s_bfe_u32 s{sT+3}, s{sL}, 0x10001
        s_lshl1_add_u32 s{sT}, s{sT}, s{sT+3}
        s_bfe_u32 s{sT+3}, s{sL}, 0x40002
        s_lshl4_add_u32 s{sT}, s{sT}, s{sT+3}
        s_and_b32 s{sT+3}, s{sL}, 1
        s_lshl3_add_u32 s{sT}, s{sT}, s{sT+3}
        s_lshl_b32 s{sT}, s{sT}, 3
        s_add_u32 s{sE1}, s{sT}, {XH}
        s_add_u32 s{sE1+1}, s{sT}, {XH+64*HBLK}
        s_add_u32 s{sE1+2}, s{sT}, {XH+128*HBLK}
        s_add_u32 s{sE1+3}, s{sT}, {XH+192*HBLK}
        s_mov_b32 s{sTm}, {TAGM}
        v_lshlrev_b32 v{vTg}, 2, v{t+2}
        v_add_u32 v{vTg+1}, 2, v{vTg}
        s_and_b32 s{sT}, s2, 7
        s_lshl_b32 s{sT}, s{sT}, 10
        s_add_u32 s{sT}, s{sT}, s3
        s_lshl_b32 s{sT}, s{sT}, 6
        s_add_u32 s{sE1+4}, s{sT}, {MODP}
        s_add_u32 s{sE1+5}, s{sT}, {MODP+32768}""")
        wgq = []; idw = [0]
        for jj in range(8):
            wgq.append(f'global_load_dwordx2 {vr(WG+2*jj,2)}, v{vWgL}, {sp(pWu)} offset:{3584*(jj&1)}' + (f'\nv_add_u32 v{vWgL}, 7168, v{vWgL}' if jj & 1 and jj < 7 else ''))
        def wg_issue(n):
            for _ in range(n):
                if wgq: idw[0] = e(wgq.pop(0))
        WGA = self.opt('wgat', 1)
        PFA = self.opt('pfat', 0)
        def wd_pf(): e(f'global_load_dword a251, v{vPf}, s[0:1]')
        if PFA == 0: wd_pf()
        if WGA == 0: wg_issue(8)
        e(f's_waitcnt {self.wvm(id_tab)}')
        for x in tunpack(): e(x)
        e(f"""
        s_bfe_u32 s{sT}, s{sL}, 0x10005
        s_and_b32 s{sDt}, s{sL}, 3
        s_lshl2_add_u32 s{sDt}, s{sT}, s{sDt}
        s_lshl_b32 s{sT}, s{sDt}, 7
        s_add_u32 s{pWd}, s{pWd}, s{sT}
        s_addc_u32 s{pWd+1}, s{pWd+1}, 0""")
        self.stamp('_pre_x')
        e(f's_waitcnt {self.wvm(id_x)}')
        self.stamp('x_arrived')
        XF = 128
        unp = [x for r in range(2) for i in range(4) for x in self.unpack(XF+8*r+2*i, XR+4*r+i)]
        self.stats_partial(XR, t, vSBw, unp)
        unp = self.rest
        e(f'v_add_u32 v{t+1}, {L_BD-L_U-512}, v{vUw}\nds_write_b32 v{t+1}, v{vBv}')
        e(f's_waitcnt {self.wvm(id_ep)} lgkmcnt(1)\ns_barrier')
        self.stamp('_bar0')
        ST = 84
        id_st = self.stats_read(ST, vSBr)
        for x in unp: e(x)
        e(f'v_mul_lo_u32 v2, v2, s{sTag}\nv_add_u32 v2, 1013904223, v2')
        vTP = 26
        e(f"""v_alignbit_b32 v{vTg}, v2, v2, v{vTg}
        v_alignbit_b32 v{vTg+1}, v2, v2, v{vTg+1}
        v_and_b32 v{vTg}, s{sTm}, v{vTg}
        v_and_b32 v{vTg+1}, s{sTm}, v{vTg+1}""")
        e(f's_waitcnt {self.wlg(id_st)}')
        self.stats_finish(ST, vInv, 2.0**-100)
        for i in range(4):
            for r in range(2):
                x = XF+8*r+2*i
                e(f'v_pk_fma_f32 {vr(x,2)}, {vr(x,2)}, {vr(ST+2*r,2)}, {vr(ST+2*r,2)} op_sel:[0,0,1] op_sel_hi:[1,0,1]')
            for r in range(2):
                x = XF+8*r+2*i
                e(f'v_cvt_pk_bf16_f32 v{GR+2*i+r}, v{x}, v{x+1}')
            for r in range(2):
                e(f'v_bfi_b32 v{GR+2*i+r}, s{sTm}, v{vTg+r}, v{GR+2*i+r}')
            if i & 1: e(f'buffer_store_dwordx4 {vr(GR+2*i-2,4)}, v1, {SRD}, s{sT+1} offen offset:{512*(i-1)} sc1')
        self.stamp('e1_stored')
        e(f's_waitcnt {self.wvm(id_wm)}')
        self.stamp('_wm')
        MA = 160; MP = 168; MR = 176
        for h in range(2):
            for m in range(4):
                e(f"""v_perm_b32 v{MP+2*m}, v{WM+8*h+4+m}, v{WM+8*h+m}, s{sLo}
                v_perm_b32 v{MP+1+2*m}, v{WM+8*h+4+m}, v{WM+8*h+m}, s{sHi}""")
            for m in range(8):
                e(f'v_dot2_f32_bf16 v{MA+m}, v{MP+m}, v{vS+h}, {"0" if h==0 else "v%d"%(MA+m)}')
        e(f'ds_write_b128 v{vMBw}, {vr(MA,4)}\nv_mov_b32 v{MR+15}, v2\nv_mul_f32 v68, v{vDt}, v{AB}')
        e(f'ds_write_b128 v{vMBw}, {vr(MA+4,4)} offset:16')
        e(f'v_mov_b32 v{vTP}, v{vTg}\nv_mov_b32 v{vTP+1}, v{vTg+1}')
        def mod_read():
            e('s_waitcnt lgkmcnt(0)\ns_barrier')
            for w in range(0, 4, 2):
                for i in range(3):
                    e(f'ds_read2st64_b32 {vr(MR+3*w+2*i,2)}, v{vMBr} offset0:{8*w+i} offset1:{8*w+8+i}')
            return self.nlg
        def mod_store(i_):
            e(f"""
            s_waitcnt {self.wlg(i_)}
            v_pk_add_f32 {vr(MR,2)}, {vr(MR,2)}, {vr(MR+6,2)}
            v_pk_add_f32 {vr(MR+2,2)}, {vr(MR+2,2)}, {vr(MR+8,2)}
            v_pk_add_f32 {vr(MR+4,2)}, {vr(MR+4,2)}, {vr(MR+10,2)}
            v_add_f32 v{MR+12}, v{MR}, v{MR+1}
            v_add_f32 v{MR+13}, v{MR+2}, v{MR+3}
            v_add_f32 v{MR+14}, v{MR+4}, v{MR+5}
            s_mov_b32 exec_hi, 0
            buffer_store_dwordx4 {vr(MR+12,4)}, v1, {SRD}, s{sT+2} offen sc1
            s_mov_b32 exec_hi, -1""")
            self.stamp('_modst')
            if PFA == 1: wd_pf()
            if WGA == 1: wg_issue(8)
        wst = [0]
        def wjob_ops():
            out = []
            for c in range(4):
                O = 20 + 4*(c & 1)
                out += [f'v_perm_b32 v{O+m}, v{WG+2*(2*m+1)+(c>>1)}, v{WG+2*(2*m)+(c>>1)}, s{sHi if c&1 else sLo}' for m in range(4)]
                out.append(f'buffer_store_dwordx4 {vr(O,4)}, v{vWgS}, {SRD}, s{sWs} offen sc1' + (f'\ns_add_u32 s{sWs}, s{sWs}, 32768' if c < 3 else ''))
            return out
        WJN = self.opt('wjn', 0)
        al, be = 68, 69
        Z1, Z8, Z256, Wc = 70, 72, 74, 76
        q = 78
        e(f"""
        v_mul_f32 v{be}, v{vDt}, v{AB+1}
        v_mul_f32 v{AB+2}, v{vDt}, v{AB+2}
        v_mul_f32 v{AB+3}, v{vDt}, v{AB+3}
        v_mul_f32 v{q}, {fbits(1.4426950408889634)}, v{al}
        v_mul_f32 v{q+1}, 0.15915494, v{be}
        v_mul_f32 v{Wc}, v{AB+4}, v{AB+2}
        v_mul_f32 v{Wc+1}, v{AB+4}, v{AB+3}
        v_mul_f32 v{q+3}, {fbits(8.0)}, v{q}
        v_mul_f32 v{q+4}, {fbits(8.0)}, v{q+1}
        v_mul_f32 v{q+6}, {fbits(256.0)}, v{q}
        v_mul_f32 v{q+7}, {fbits(256.0)}, v{q+1}
        v_fma_f32 v{Wc}, -v{AB+5}, v{AB+3}, v{Wc}
        v_fma_f32 v{Wc+1}, -v{AB+5}, v{AB+2}, -v{Wc+1}
        """)
        for n_ in range(3): e(f'v_exp_f32 v{q+3*n_}, v{q+3*n_}\nv_fract_f32 v{q+3*n_+1}, v{q+3*n_+1}')
        for n_ in range(3): e(f'v_sin_f32 v{q+3*n_+2}, v{q+3*n_+1}\nv_cos_f32 v{q+3*n_+1}, v{q+3*n_+1}')
        e(f'v_and_b32 v87, 127, v0\nv_cmp_eq_u32 vcc, 0, v87')
        for n_, (Z, conj) in enumerate([(Z1,True),(Z8,False),(Z256,True)]):
            e(f'v_mul_f32 v{Z}, v{q+3*n_}, v{q+3*n_+1}\nv_mul_f32 v{Z+1}, {"-" if conj else ""}v{q+3*n_}, v{q+3*n_+2}')
        id_mr = mod_read()
        def put(src, row, pk):
            return [f'v_cvt_pk_bf16_f32 v{pk}, v{src}, v{src+1}', f'ds_write_b32 v{vRW}, v{pk} offset:{row*RST}']
        Z16 = 78
        R0 = [[f'v_mov_b32 v88, 0x3f80', f'ds_write_b32 v{vRW}, v88'], self.cmul(Z16, Z8, Z8) + put(Z16, 2, 88)]
        R1 = [put(Z8, 1, 84), []]
        cur = [Z16, Z8]; bufs = [[80, 82], [90, 92]]
        for rho in range(3, 32):
            par = rho & 1
            d = bufs[par][(rho >> 1) & 1]
            (R1 if par else R0).append(self.cmul(d, cur[par], Z16) + put(d, rho, 84 if par else 88)); cur[par] = d
        Cq = [put(Wc, 32, 89)]
        cr = {0: Wc}
        reg = {1:110, 2:94, 3:110, 4:96, 5:110, 6:98, 7:110, 8:100}
        for ee in range(1, 9):
            Cq.append(self.cmul(reg[ee], cr[ee-1], Z1) + (put(reg[ee], 32+ee, 89) if ee < 8 else [])); cr[ee] = reg[ee]
        chain = [(264,8,44,102),(520,264,46,104),(776,520,48,102),(1032,776,49,104),(1288,1032,50,102),(1544,1288,51,104),(1800,1544,52,102)]
        for ee, src, row, d in chain:
            Cq.append(self.cmul(d, cr[src], Z256) + put(d, row, 89)); cr[ee] = d
        side = [(260,4,42,106),(516,260,45,108),(772,516,47,106)]
        for ee, src, row, d in side:
            R0.append(self.cmul(d, cr[src], Z256) + put(d, row, 88)); cr[ee] = d
        R1.append(self.cmul(90, cr[0], Z256) + put(90, 40, 84))
        R1.append(self.cmul(92, cr[2], Z256) + put(92, 41, 84))
        Cq.append(self.cmul(110, cr[6], Z256) + put(110, 43, 89))
        KD = 12
        Cq.append([f'v_mov_b32 v{KD+1}, s{sDsk}', f'v_mov_b32 v{KD+2}, 0', f'v_cndmask_b32 v{KD}, 0, v{KD+1}, vcc', f'v_mov_b32 v{KD+1}, 0'])
        Cq.append([f'v_mov_b32 v{KD+3}, 0', f'v_mul_f32 v{vBv}, {fbits(2.0**100)}, v{vOne}', f'v_max_f32 v{vBv}, 1.0, v{vBv}'])
        for n_ in range(max(len(R0), len(R1), len(Cq))):
            st = [a_[n_] if n_ < len(a_) else [] for a_ in (R0, R1, Cq)]
            for j in range(4):
                for a_ in st:
                    if j < len(a_): e(a_[j])
            if n_ == 1: mod_store(id_mr)
            if 2 <= n_ < 2 + self.opt('wd_k1', 0): wd_issue(1)
        self.stamp('kgen1')
        EG = 68
        e1_loads = '\n'.join([f'buffer_load_dwordx4 {vr(EG+16+4*i,4)}, v{vEM}, {SRD}, s{sE1+4+i} offen sc1' for i in range(2)] +
                             [f'buffer_load_dwordx2 {vr(EG+2*i,2)}, v{vEX}, {SRD}, s{sE1+i} offen sc1' for i in range(4)])
        E1AT = self.opt('e1at', 1)
        e('s_waitcnt lgkmcnt(0)')
        if E1AT == 0: id_e1 = e(e1_loads)
        e('s_barrier')
        self.stamp('_kbar1')
        KF = 160
        kf_id = []
        for kk in range(8):
            e(f"""ds_read_b128 {vr(KF+12*kk,4)}, v{vKa} offset:{64*kk}
            ds_read_b128 {vr(KF+12*kk+4,4)}, v{vKb0} offset:{32*RST+64*kk}
            ds_read_b128 {vr(KF+12*kk+8,4)}, v{vKb1} offset:{44*RST+64*kk}""")
            kf_id.append(self.nlg)
            if kk == 4:
                if E1AT == 1: id_e1 = e(e1_loads)
        for kk in range(8):
            e(f's_waitcnt {self.wlg(kf_id[kk])}')
            for cb in range(2):
                e(f'v_mfma_f32_16x16x32_bf16 {vr(KD+4*cb,4)}, {vr(KF+12*kk,4)}, {vr(KF+12*kk+4+4*cb,4)}, {"0" if kk==0 and cb==1 else vr(KD+4*cb,4)}')
            if E1AT < 2 and kk < self.opt('wd_k2', 0): wd_issue(1)
        if E1AT == 2: id_e1 = e(e1_loads)
        if WGA == 2: wg_issue(8)
        AN = 128; AX = 160; T2 = 192; T3 = 204; BND = 196; SF2 = 208; SF3 = 232; SD = 240; US = 72
        e(f"""
        ds_read2_b32 {vr(BND,2)}, v{vBd} offset0:6 offset1:4
        ds_read2_b32 {vr(BND+2,2)}, v{vBd} offset0:2 offset1:0
        ds_read2_b32 {vr(BND+4,2)}, v{vBd} offset0:70 offset1:68
        ds_read2_b32 {vr(BND+6,2)}, v{vBd} offset0:66 offset1:64
        ds_read2_b32 {vr(BND+8,2)}, v{vBd2} offset0:134 offset1:132
        ds_read2_b32 {vr(BND+10,2)}, v{vBd2} offset0:130 offset1:128""")
        for cb in range(2):
            for j in range(2):
                e(f'v_cvt_pk_bf16_f32 v{KD+8+2*cb+j}, v{KD+4*cb+2*j}, v{KD+4*cb+2*j+1}')
        def scat(cb, j):
            va = (vKw0, vKw1)[cb]; off = 32*j if cb == 0 else (j&1)*928 + (j>>1)*4
            op = 'ds_write_b16_d16_hi' if j & 1 else 'ds_write_b16'
            e(f'{op} v{va}, v{KD+8+2*cb+(j>>1)} offset:{off}\n{op} v{va}, v{KD+8+2*cb+(j>>1)} offset:{off+6}')
        for j in range(4): scat(0, j)
        scat(1, 3)
        e('s_mov_b32 exec_lo, 0x00ff00ff\ns_mov_b32 exec_hi, 0x00ff00ff')
        for j in range(3): scat(1, j)
        e('s_mov_b64 exec, -1')
        self.stamp('kgen2')
        XC = EG+8
        e(f's_waitcnt {self.wvm(id_e1)}\nL_e1chk:')
        for i in range(8): e(f'v_xor_b32 v{XC+i}, v{EG+i}, v{vTP+(i&1)}')
        e(f"""
        v_cmp_ne_u32 {sp(sBad)}, v{EG+19}, v2
        v_or3_b32 v92, v{XC}, v{XC+1}, v{XC+2}
        v_or3_b32 v93, v{XC+3}, v{XC+4}, v{XC+5}
        v_cmp_ne_u32 vcc, v{EG+23}, v2
        v_or3_b32 v92, v92, v{XC+6}, v{XC+7}
        s_or_b64 {sp(sBad)}, {sp(sBad)}, vcc
        v_bitop3_b32 v92, v92, v93, s{sTm} bitop3:0xa8
        v_cmp_ne_u32 vcc, 0, v92
        s_or_b64 {sp(sBad)}, {sp(sBad)}, vcc
        s_cbranch_scc1 L_e1retry""")
        self.tail.append(f"""L_e1retry:
        s_sub_u32 s{sCnt}, s{sCnt}, 1
        s_cbranch_scc1 L_end
        {e1_loads}
        s_waitcnt vmcnt(0)
        s_branch L_e1chk""")
        self.stamp('e1_ok')
        if WGA == 3: wg_issue(8)
        wd_issue(self.opt('wd_h', 2))
        g0 = 28; HF = 96
        e(f"""
        v_add_f32 v{g0}, v{EG+16}, v{EG+20}
        v_add_f32 v{g0+1}, v{EG+17}, v{EG+21}
        v_add_f32 v{g0+2}, v{EG+18}, v{EG+22}
        v_mov_b32 v{g0+3}, 0""")
        unp = []
        for i in range(4):
            unp += [f'v_lshlrev_b32 v{HF+4*i}, 16, v{XC+2*i}', f'v_lshlrev_b32 v{HF+4*i+1}, 16, v{XC+2*i+1}',
                    f'v_and_b32 v{HF+4*i+2}, s{sMask}, v{XC+2*i}', f'v_and_b32 v{HF+4*i+3}, s{sMask}, v{XC+2*i+1}']
        self.reduce4(g0, g0+1, g0+2, g0+3, unp)
        unp = self.rest
        e(f"""
        v_cvt_pk_bf16_f32 v{g0}, v{g0}, v{g0}
        v_and_b32 v{g0}, s{sMask}, v{g0}
        v_add_f32 v{g0+1}, v{g0}, v{vOne}
        v_readlane_b32 s{sM+4}, v{g0}, 16
        v_readlane_b32 s{sM+5}, v{g0}, 17
        v_cvt_pk_bf16_f32 v{g0}, v{g0+1}, v{g0+1}
        v_and_b32 v{g0}, s{sMask}, v{g0}
        v_mul_f32 v{g0+3}, v{vBv}, v{g0}
        v_mul_f32 v{g0+1}, s{sM+4}, v{g0+3}
        v_mul_f32 v{g0+2}, s{sM+5}, v{g0+3}
        v_readlane_b32 s{sM}, v{g0+1}, 32
        v_readlane_b32 s{sM+1}, v{g0+1}, 0
        v_readlane_b32 s{sM+2}, v{g0+2}, 33
        v_readlane_b32 s{sM+3}, v{g0+2}, 1""")
        for x in unp: e(x)
        for i in range(4):
            for ch in range(2):
                h = HF+4*i+2*ch
                e(f'v_pk_fma_f32 {vr(h,2)}, {vr(h,2)}, {sp(sM+2*ch)}, {sp(sM+2*ch)} op_sel:[0,0,1] op_sel_hi:[1,0,1]')
            for ch in range(2):
                h = HF+4*i+2*ch
                e(f'v_cvt_pk_bf16_f32 v{g0+2+ch}, v{h}, v{h+1}\nds_write_b32 v{vUw}, v{g0+2+ch} offset:{ch*USZ+1024*i}')
        if WJN < 0:
            e(f's_waitcnt {self.wvm(idw[0])}')
            for x in wjob_ops(): wst[0] = e(x)
        e('s_waitcnt lgkmcnt(0)\ns_barrier')
        self.stamp('u_ready')
        ACC = 224; ZG = 12
        BR = [96,100,104,108,116,120,168,172,176,180,184,188]
        F1N = self.opt('f1n', 107)
        def f1_publish(): e(f's_waitcnt {self.wvm(wst[0])}\n' + self.flag_text(vF, sF1o))
        def rd2(d, va, o): return [f'ds_read2_b32 {vr(d,2)}, v{va} offset0:{o+6} offset1:{o+4}', f'ds_read2_b32 {vr(d+2,2)}, v{va} offset0:{o+2} offset1:{o}']
        def rq2(d, o0, o1): return [f'ds_read2_b32 {ar(d,2)}, v{vQ} offset0:{o0} offset1:{o0-2}', f'ds_read2_b32 {ar(d+2,2)}, v{vQ} offset0:{o1} offset1:{o1-2}']
        vPA1 = 68
        reads = {}
        for be_ in range(6): reads[('u', be_)] = (US+4*be_, [f'ds_read_b128 {vr(US+4*be_,4)}, v{vUS} offset:{512*be_}'])
        for jq in range(4):
            for J in range(2): reads[('a', jq, J)] = (AN+8*jq+4*J, rd2(AN+8*jq+4*J, vPA1 if J else vPA, 32*jq))
        reads[('x', 16)] = (AX, rd2(AX, vPX, 0)); reads[('x', 32)] = (AX+4, rd2(AX+4, vPX, 48))
        for d_ in (2,3,4): reads[('t2', d_)] = (T2+4*(d_-2), rq2(T2+4*(d_-2), 16*d_-28, 64+16*d_-28))
        for d_ in (4,5,6,7): reads[('t3', d_)] = (T3+4*(d_-4), rq2(T3+4*(d_-4), 128+16*d_-44, 128+16*d_-60))
        for m in range(8):
            for jq in range(4):
                r_ = BR[(4*m+jq) % len(BR)]
                reads[('b', m, jq)] = (r_, [f'ds_read_b128 {vr(r_,4)}, v{vUB} offset:{512*m+192-64*jq}'])
        ops = []
        S = lambda nm, be_: ops.append(('S', (nm, be_), ('u', be_), ('bnd', nm)))
        def near(m, Js):
            for jq in range(4):
                for J in Js: ops.append(('M', m+J, ('a', jq, J), ('b', m, jq)))
        def far(cb):
            ops.append(('M', cb, ('x', 16), ('u', cb-2)))
            if cb >= 4: ops.append(('M', cb, ('x', 32), ('u', cb-4)))
            for d_ in (4,3,2):
                if cb-d_ >= 0: ops.append(('M', cb, ('s2', cb-d_), ('t2', d_)))
            if cb >= 4: ops.append(('M', cb, ('s3', 0), ('t3', cb)))
            if cb >= 6: ops.append(('M', cb, ('s3', 1), ('t3', cb-2)))
        S('a',0); S('b',0); S('a',1); S('b',1)
        near(0,(0,1)); near(1,(0,1)); far(2); S('c',0); S('c',1); near(2,(0,1)); S('a',2); S('b',2); far(3); near(3,(0,))
        S('a',3); S('b',3); near(3,(1,)); far(4); near(4,(0,1)); far(5); near(5,(0,))
        S('a',4); S('b',4); S('c',2); S('c',3); near(5,(1,)); S('a',5); S('b',5); near(6,(0,1)); far(6); near(7,(0,)); far(7)
        assert len(ops) == 107
        def opreg(o):
            if o[0] == 'bnd': return BND + 4*'abc'.index(o[1])
            if o[0] == 's2': return SF2 + 4*o[1]
            if o[0] == 's3': return SF3 + 4*o[1]
            return reads[o][0]
        firstuse = {}; lastuse = {}; accdone = {}
        for n, (kd, dst, oa, ob) in enumerate(ops):
            for o in (oa, ob): firstuse.setdefault(o, n); lastuse[o] = n
            if kd == 'M': accdone[dst] = n
        rq = []
        for o in sorted(reads, key=lambda o: firstuse[o]):
            early = -1
            if o[0] == 'b' and 4*o[1]+o[2] >= len(BR):
                idx = 4*o[1]+o[2]-len(BR); early = lastuse[('b', idx//4, idx%4)] + 1
            for x in reads[o][1]: rq.append((early, o, x))
        rid = {}
        def popread():
            _, o, x = rq.pop(0); e(x)
            if not any(o2 == o for _, o2, _ in rq): rid[o] = self.nlg
        e(f'v_add_u32 v{vPA1}, 1024, v{vPA}')
        for _ in range(self.opt('cpre', 14)): popread()
        tq = 69
        fill = [f'v_readlane_b32 s{sM+6+n_}, v{g0}, {ln}' for n_, ln in enumerate([34,35,2,3,18,19])]
        fill += f"""v_and_b32 v{tq}, 3, v0
        s_pack_hh_b32_b16 s{sT}, s{sM+6}, s{sM+7}
        s_pack_hh_b32_b16 s{sT+1}, s{sM+8}, s{sM+9}
        s_pack_hh_b32_b16 s{sT+2}, s{sM+10}, s{sM+11}
        v_cmp_eq_u32 vcc, 1, v{tq}
        v_mov_b32 v{tq+1}, s{sT}
        v_mov_b32 v{tq+2}, s{sT+1}
        v_cndmask_b32 v{tq+1}, v{tq+1}, v{tq+2}, vcc
        v_cmp_eq_u32 vcc, 2, v{tq}
        v_mov_b32 v{tq+2}, s{sT+2}
        v_mov_b32 v{ZG+3}, v2
        v_cndmask_b32 v{ZG+2}, v{tq+1}, v{tq+2}, vcc
        v_mov_b32 v{ZG+7}, v2
        v_mov_b32 v{ZG+6}, v{ZG+2}""".split('\n')
        stages = {'ab': [(0,1),(2,),(3,)], 'a': [(0,1),(2,3)], 'b': [(0,1,2),(3,)], 'n': [(0,1,2,3)]}[self.opt('stages', 'ab')]
        YRS = [28, SD, SD+8, 36]
        wr_id = {}; cq = []; sq = []; sdone = {}; nsd = 0; stage = 0; done_w = 0; waited = 0
        zst = {}
        def stage_ops(sg, final):
            out = []
            regs = {i: (YRS[k_] if not (final and k_) else 72+8*k_) for k_, i in enumerate(sg)}
            for i in sg:
                for pw in range(4): out.append(('rd', i, f'ds_read_b64 {vr(regs[i]+2*pw,2)}, v{vYr} offset:{8192*pw+2048*i}'))
            for i in sg:
                y = regs[i]; zg = ZG + 4*(i & 1)
                out.append(('wait', i, None))
                if final:
                    out += [('v', i, f'v_pk_add_f32 {vr(y+4*ch,2)}, {vr(y+4*ch,2)}, {vr(y+4*ch+2,2)}') for ch in range(2)]
                else:
                    out += [('v', i, f'v_add_f32 v{y+4*ch+r}, v{y+4*ch+r}, v{y+4*ch+2+r}') for r in range(2) for ch in range(2)]
                out += [('v', i, f'v_cvt_pk_bf16_f32 v{zg+r}, v{y+r}, v{y+4+r}') for r in range(2)]
                out.append(('st', i, f'buffer_store_dwordx4 {vr(zg,4)}, v1, {SRD}, s{sZs+i} offen sc1'))
            return out
        y_id = {}
        def popstage():
            nonlocal waited
            kd, i, x = sq.pop(0)
            if kd == 'wait':
                e(f's_waitcnt {self.wlg(y_id[i])}'); waited = max(waited, y_id[i])
            else:
                r_ = e(x)
                if kd == 'rd': y_id[i] = self.nlg
                if kd == 'st': zst[i] = r_
        seen = set(); hold = 0; accpos = {}; wj = []
        for n, (kd, dst, oa, ob) in enumerate(ops):
            for o in (oa, ob):
                while o in reads and o not in rid: popread()
                if o[0] in ('s2', 's3'):
                    while any(tg == o for _, tg, _ in cq): e(cq.pop(0)[2])
            need = max(rid.get(oa, 0), rid.get(ob, 0))
            if need > waited:
                e(f's_waitcnt {self.wlg(need)}'); waited = max(need, self.nlg - 14)
            if kd == 'S':
                d = SD + 4*(nsd % 4); nsd += 1
                while any(f'v{d},' in x or x.endswith(f'v{d+3}') for _, _, x in cq): e(cq.pop(0)[2])
                while any(k_ != 'st' for k_, _, _ in sq): popstage()
                e(f'v_mfma_f32_16x16x32_bf16 {vr(d,4)}, {vr(opreg(oa),4)}, {vr(opreg(ob),4)}, 0')
                nm, be_ = dst
                tg = ('s2', be_) if nm != 'c' else ('s3', be_ >> 1)
                o_ = opreg(tg) + (2*'ab'.index(nm) if nm != 'c' else 2*(be_ & 1))
                cq += [(len(p.text), tg, f'v_cvt_pk_bf16_f32 v{o_+j}, v{d+2*j}, v{d+2*j+1}') for j in range(2)]
            else:
                c_ = ar(ACC+4*dst,4) if dst in seen else '0'; seen.add(dst)
                e(f'v_mfma_f32_16x16x32_bf16 {ar(ACC+4*dst,4)}, {vr(opreg(oa),4)}, {(ar if ob[0][0] == "t" else vr)(opreg(ob),4)}, {c_}')
                if accdone[dst] == n: accpos[dst] = len(p.text)
            budget = 2
            if n == F1N: f1_publish(); budget = 0
            elif n % self.opt('wd_pace', 4) == 1 and n <= self.opt('wd_last', 100) and len(wdq) > 8: wd_issue(1); budget = 1
            if n == WJN: e(f's_waitcnt {self.wvm(idw[0])}'); wj = wjob_ops()
            if stage < len(stages)-1 and done_w > 2*stages[stage][-1]+1 and n >= wr_n + 3 and not sq:
                while fill: e(fill.pop(0))
                while cq and len(stages[stage]) > 1: e(cq.pop(0)[2])
                e(f's_waitcnt {self.wlg(wr_id[done_w-1])}\ns_barrier'); waited = max(waited, wr_id[done_w-1])
                sq = stage_ops(stages[stage], False); stage += 1; budget = 0
            while budget > 0:
                budget -= 1
                if rq and rq[0][0] <= n and firstuse[rq[0][1]] <= n + 8: popread()
                elif cq and len(p.text) - cq[0][0] >= 8: e(cq.pop(0)[2])
                elif done_w in accpos and len(p.text) - accpos[done_w] >= 8:
                    e(f'ds_write_b128 v{vYw}, {ar(ACC+4*done_w,4)} offset:{1024*done_w}'); wr_id[done_w] = self.nlg; wr_n = n; done_w += 1
                elif sq and not (sq[0][0] == 'wait' and hold > n):
                    if sq[0][0] == 'rd': hold = n + 4
                    popstage()
                elif fill: e(fill.pop(0))
                elif wj: wst[0] = e(wj.pop(0))
                elif rq and rq[0][0] <= n: popread()
        assert not rq and not cq and not wj and len(wdq) >= 8 and stage == len(stages)-1
        while sq: popstage()
        for x in fill: e(x)
        self.stamp('conv')
        while done_w < 8:
            e(f'ds_write_b128 v{vYw}, {ar(ACC+4*done_w,4)} offset:{1024*done_w}'); done_w += 1
        e('s_waitcnt lgkmcnt(0)\ns_barrier')
        sq = stage_ops(stages[-1], True)
        while sq: popstage()
        id_z = self.nvm
        if F1N == 107: f1_publish()
        self.stamp('z_stored')
        vP1 = 122
        e(f"""
        s_bfe_u32 s1, s{sL}, 0x30002
        s_lshr_b32 s0, s{sL}, 7
        s_lshl3_add_u32 s{sMt}, s0, s1
        s_lshr_b32 s0, s{sL}, 6
        s_lshl3_add_u32 s{sTb}, s0, s1
        s_bfe_u32 s0, s{sL}, 0x20005
        s_and_b32 s1, s{sL}, 3
        s_lshl2_add_u32 s{sNt}, s0, s1
        s_mul_i32 s0, s{sNt}, 7
        s_lshr_b32 s0, s0, 2
        v_bfe_u32 v{t+1}, v0, 3, 3
        v_min_u32 v{t+1}, 2, v{t+1}
        v_add_u32 v{t+1}, s0, v{t+1}
        v_min_u32 v{t+1}, 27, v{t+1}
        v_and_b32 v{t+2}, 7, v0
        v_lshl_add_u32 v{t+1}, v{t+1}, 5, v{t+2}
        s_lshl_b32 s0, s{sW}, 10
        s_add_u32 s0, s0, {F1}
        v_lshl_add_u32 v{vP1}, v{t+1}, 7, s0""")
        f1_load = f'buffer_load_dword v{vPolled}, v{vP1}, {SRD}, 0 offen sc1'
        F1P = self.opt('f1p', 1)
        if F1P == 0: id_f1 = e(f1_load)
        e(f"""
        s_lshl_b32 s{sDmaL}, s{sW}, 13
        s_mul_i32 s{sDmaG}, s{sNt}, {7*32768}
        s_add_u32 s{sDmaG}, s{sDmaG}, s{sDmaL}
        s_add_u32 s{sDmaG}, s{sDmaG}, {WGU}""")
        dq = [(x, i) for i in range(4) for x in self.dma_tile(i,i)]
        dma_id = {}
        f1ok = [False]; maxt = [2]
        def bg_issue(n):
            for _ in range(n):
                if wdq: wd_issue(1)
                elif f1ok[0] and dq and dq[0][1] <= maxt[0]:
                    x, i = dq.pop(0); dma_id[i] = e(x)
        def bg(name, nT, nL):
            v = self.opt(name, None)
            if v is not None: nT, nL = v // 100, v % 100
            done = 0
            for i in range(nT):
                k_ = (nL*(i+1) + nT-1)//nT - done; bg_issue(k_); done += k_
                tr_do(1)
            bg_issue(nL - done)
        bg('b_zack', 3, 6)
        XF = 36
        for r in range(2):
            for i in range(4):
                for x in self.unpack(XF+8*r+2*i, XR+4*r+i): e(x)
        vZ = 28; vH2 = 29; ZI = 72; vMsk = 30
        vP2 = 24; vXa = 25; vA2 = 26; vA4 = 27; vP3 = 23; vX2 = 22; vAc1 = 21; vC2 = 20
        c1 = -2*1.4426950408889634*0.7978845608028654; c2 = c1*0.044715
        e(f'''
        v_and_b32 v{t}, 0xfc, v0
        v_and_b32 v{t+2}, 0x30, v1
        s_movk_i32 s{sT}, {XBLK}
        v_mad_u32_u24 v{vZ}, v{t}, s{sT}, v{t+2}
        s_lshl_b32 s{sT}, s{sL}, 6
        s_add_u32 s{sT}, s{sT}, {ZY}
        s_add_u32 s{sT+1}, s{sT}, {XBLK}
        s_add_u32 s{sT+2}, s{sT}, {2*XBLK}
        s_add_u32 s{sT+3}, s{sT}, {3*XBLK}
        v_lshrrev_b32 v{t}, 3, v0
        v_and_b32 v{t+1}, 0x70, v1
        v_lshl_add_u32 v{vH2}, v{t}, 10, v{t+1}
        s_lshr_b32 s{sT+4}, s{sL}, 2
        s_lshl_b32 s{sT+4}, s{sT+4}, 7
        s_and_b32 s{sT+5}, s{sL}, 3
        s_add_u32 s{sT+4}, s{sT+4}, s{sT+5}
        s_lshl_b32 s{sT+4}, s{sT+4}, 8
        s_add_u32 s{sT+4}, s{sT+4}, {H2}
        s_mov_b32 s{sT+5}, {X2}
        v_mov_b32 v{vMsk}, s{sMask}
        s_lshl2_add_u32 s{sT+6}, s{sL}, s{sW}
        s_lshl_b32 s{sT+6}, s{sT+6}, 7
        s_add_u32 s{sT+6}, s{sT+6}, {F2}
        s_lshl2_add_u32 s0, s{sMt}, s{sW}
        s_lshl_b32 s{sT+7}, s0, 11
        s_add_u32 s{sT+7}, s{sT+7}, {F2}
        s_lshl_b32 s{sXg}, s0, 15
        s_add_u32 s{sXg}, s{sXg}, {H2}
        s_lshl4_add_u32 s0, s0, s{sNt}
        s_mul_i32 s0, s0, {7*1024}
        s_add_u32 s{sActS}, s0, {ACT}
        s_add_u32 s{sActS+1}, s0, {ACT+4096}
        s_lshl4_add_u32 s0, s{sMt}, s{sNt}
        s_lshl2_add_u32 s0, s0, s{sW}
        s_lshl_b32 s0, s0, 7
        s_add_u32 s{sF3o}, s0, {F3}
        s_lshr_b32 s0, s{sTb}, 1
        s_lshl2_add_u32 s0, s0, s{sW}
        s_and_b32 s1, s{sTb}, 1
        s_lshl3_add_u32 s0, s0, s1
        s_lshl_b32 s0, s0, 8
        s_add_u32 s{sF3p}, s0, {F3}
        s_lshl3_add_u32 s0, s{sTb}, s{sW}
        s_mul_i32 s0, s0, {28*1024}
        s_add_u32 s{sActG}, s0, {ACT}
        s_waitcnt {self.wvm(id_z)}''')
        self.stamp('_zack')
        if F1N == 108: f1_publish()
        z_loads = '\n'.join(f'buffer_load_dwordx4 {vr(ZI+4*i,4)}, v{vZ}, {SRD}, s{sT+i} offen sc1' for i in range(4))
        id_zl = e(z_loads)
        if F1P == 0:
            self.check(f1_load, [vPolled], id_f1); f1ok[0] = True
        elif F1P == 1: id_f1 = e(f1_load)
        bg('b_zld', 4, 0)
        bg('b_zld2', 2, 5)
        e(f'''
        v_and_b32 v{vP2}, 15, v0
        v_lshlrev_b32 v{vP2}, 7, v{vP2}
        v_bfe_u32 v{t}, v0, 2, 3
        v_bfe_u32 v{t+3}, v0, 5, 1
        v_lshl_add_u32 v{t+2}, v{t+3}, 6, v{t+2}
        v_lshl_add_u32 v{vXa}, v{t}, 7, v{t+2}
        v_add_u32 v{vA2}, 65536, v1
        v_add_u32 v{vA4}, 131072, v1
        v_add_u32 v{vAc1}, {112*1024}, v1
        v_mov_b32 v{vC2}, {fbits(c2)}
        v_bfe_u32 v{t}, v0, 1, 2
        v_and_b32 v{t+2}, 1, v0
        v_lshlrev_b32 v{t+2}, 7, v{t+2}
        v_lshl_add_u32 v{vP3}, v{t}, 9, v{t+2}
        v_bfe_u32 v{t}, v0, 3, 2
        v_lshl_add_u32 v{t}, v{t}, 1, v{t+3}
        v_lshl_add_u32 v{t}, v{t}, 10, v{t+1}
        s_lshl3_add_u32 s0, s{sTb}, s{sW}
        s_lshl_b32 s0, s0, 6
        s_add_u32 s0, s0, s{sDt}
        s_lshl_b32 s0, s0, 7
        v_add_u32 v{vX2}, s0, v{t}''')
        self.stamp('_zchk')
        self.check(z_loads, [ZI+3, ZI+7, ZI+11, ZI+15], id_zl)
        self.stamp('z_ok')
        if F1P == 1: self.check(f1_load, [vPolled], id_f1); f1ok[0] = True
        elif F1P == 2: id_f1 = e(f1_load)
        nl2 = [self.opt('b_ln2', 10)]
        def ln2bg(n=1):
            for _ in range(n):
                if nl2[0] > 0: bg_issue(1); nl2[0] -= 1
        ZF = 88
        for i in range(4):
            ln2bg()
            for r in range(2):
                for x in self.unpack(ZF+8*r+2*i, ZI+4*i+r): e(x)
            for r in range(2):
                z = ZF+8*r+2*i; x = XF+8*r+2*i
                e(f'v_pk_add_f32 {vr(x,2)}, {vr(x,2)}, {vr(z,2)}')
            for r in range(2):
                x = XF+8*r+2*i
                e(f'v_cvt_pk_bf16_f32 v{XR+4*r+i}, v{x}, v{x+1}')
        unp = [x for r in range(2) for i in range(4) for x in self.unpack(XF+8*r+2*i, XR+4*r+i)]
        self.stats_partial(XR, t, vSBw, unp)
        unp = self.rest
        ln2bg(2)
        for x in unp: e(x)
        e('s_waitcnt lgkmcnt(0)\ns_barrier')
        maxt[0] = 3
        self.stamp('_ln2bar')
        ST = 128
        self.stats_read(ST, vSBr)
        GBV = 12
        for i in range(4):
            ln2bg()
            for kind in range(2):
                d = ZF+8*kind+2*i
                qp = f'quad_perm:[{kind},{kind},{kind},{kind}] row_mask:0xf bank_mask:0xf'
                e(f'v_cvt_f32_bf16_dpp v{d}, v{ZI+4*i+2} {qp}\nv_and_b32_dpp v{d+1}, v{ZI+4*i+2}, v{vMsk} {qp}')
        e('s_waitcnt lgkmcnt(0)')
        self.stats_finish(ST, vInv)
        HO = 104
        for r in range(2):
            for i in range(4):
                x = XF+8*r+2*i
                e(f'v_pk_fma_f32 {vr(x,2)}, {vr(x,2)}, {vr(ST+2*r,2)}, {vr(ST+2*r,2)} op_sel:[0,0,1] op_sel_hi:[1,0,1]')
            for i in range(4):
                x = XF+8*r+2*i
                e(f'v_pk_fma_f32 {vr(x,2)}, {vr(x,2)}, {vr(ZF+2*i,2)}, {vr(ZF+8+2*i,2)}')
            for i in range(4):
                x = XF+8*r+2*i
                e(f'v_cvt_pk_bf16_f32 v{HO+4*r+i}, v{x}, v{x+1}')
            id_h = e(f'buffer_store_dwordx4 {vr(HO+4*r,4)}, v{vH2}, {SRD}, s{sT+4} offen offset:{128*r} sc1')
        self.stamp('h2_stored')
        for i in range(4): e(f'v_mov_b32 v{GBV+i}, v{ZI+4*i+2}')
        if F1P == 2: self.check(f1_load, [vPolled], id_f1); f1ok[0] = True
        bg('b_hack', 4, 6)
        e(f's_waitcnt {self.wvm(id_h)}')
        id_fl = e(self.flag_text(vF, sT+6))
        self.stamp('_h2_ack')
        bg('b_flag', 6, 10)
        P1 = self.opt('p1', 3)
        while wdq or (dq and dq[0][1] < P1): bg_issue(1)
        e(f's_waitcnt {self.wvm(id_fl)}')
        self.stamp('_flack')
        f2_load = f'buffer_load_dword v{vPolled}, v{vP2}, {SRD}, s{sT+7} offen sc1'
        id_f2 = e(f2_load)
        bg('b_f2', 3, 0)
        X = 128
        AC = [28, 44, 60, 76]
        WF = 92; NB = 6; LA = 4
        GT = 116; GO = 16; X2R = 4
        seq = [(tl, s) for s in range(32) for tl in range(P1)] + [(tl, s) for tl in range(P1,7) for s in range(32)]
        slot = {0:0,1:1,2:2,3:3,4:4,5:0,6:1}
        acc = {tl: AC[tl % 4] for tl in range(7)}
        def wread(n):
            tl, s = seq[n]; sl = slot[tl]
            va = {0:1,1:1,2:vA2,3:vA2,4:vA4}[sl]
            return f'ds_read_b128 {vr(WF+4*(n%NB),4)}, v{va} offset:{(sl&1 if sl<4 else 0)*32768 + 1024*s}'
        self.check(f2_load, [vPolled], id_f2)
        self.stamp('f2_ok')
        x_id = []
        def xload():
            s = len(x_id)
            x_id.append(e(f'buffer_load_dwordx4 {vr(X+4*s,4)}, v{vXa}, {SRD}, s{sXg} offen offset:{1024*(s&3)} sc1'))
            if s & 3 == 3 and s < 31: e(f's_add_u32 s{sXg}, s{sXg}, 4096')
        XLA = self.opt('xla', 8)
        for s in range(XLA): xload()
        assert not wdq
        if self.o.get('verbose'): print('transposes left', 28-trn[0], 'dq left', len(dq))
        tr_do(28)
        e('s_waitcnt lgkmcnt(0)\ns_barrier')
        for n in range(LA): e(wread(n))
        vP4 = 24
        e(f'''
        v_and_b32 v{vP4}, 7, v0
        s_lshr_b32 s0, s{sDt}, 1
        s_lshl_b32 s1, s{sTb}, 5
        s_add_u32 s0, s0, s1
        s_lshl_b32 s0, s0, 7
        s_add_u32 s0, s0, {F4}
        v_lshl_add_u32 v{vP4}, v{vP4}, 9, s0''')
        f4_load = f'buffer_load_dword v{vPolled}, v{vP4}, {SRD}, 0 offen sc1'
        def gelu(tl):
            a = acc[tl]; out = []
            for hf in range(2):
                E = [a+4*hf+j for j in range(4)]
                out += [f'v_mul_f32 v{GT+j}, v{E[j]}, v{E[j]}' for j in range(4)]
                out += [f'v_fmaak_f32 v{GT+j}, v{GT+j}, v{vC2}, {fbits(c1)}' for j in range(4)]
                out += [f'v_mul_f32 v{GT+j}, v{GT+j}, v{E[j]}' for j in range(4)]
                for j in range(4): out += [f'v_exp_f32 v{GT+j}, v{GT+j}', f'v_mul_f32 v{E[j]+8}, v{E[j]+8}, v{E[j]}']
                for j in range(4): out += [f'v_add_f32 v{GT+j}, 1.0, v{GT+j}']
                for j in range(4): out += [f'v_rcp_f32 v{GT+j}, v{GT+j}']
                for j in range(4): out += [f'v_mul_f32 v{E[j]+8}, v{E[j]+8}, v{GT+j}']
                out += [f'v_cvt_pk_bf16_f32 v{GO+2*hf+j}, v{E[2*j]+8}, v{E[2*j+1]+8}' for j in range(2)]
            out.append(f'buffer_store_dwordx4 {vr(GO,4)}, v1, {SRD}, s{sActS+(tl>>2)} offen offset:{1024*(tl&3)} sc1')
            return [(x, tl) for x in out]
        last = {tl: max(n for n, (a_, _) in enumerate(seq) if a_ == tl) for tl in range(7)}
        first = {tl: min(n for n, (a_, _) in enumerate(seq) if a_ == tl) for tl in range(7)}
        gq = []; vq = [(x,f'd{i_}') for x, i_ in dq] + [(x,'d4') for x in self.dma_tile(4,4)]; st_id = {}; st_n = {}
        a_id = []
        def aload():
            kk = len(a_id); T, tt = korder[kk >> 1], kk & 1
            if tt == 0: e(f's_add_u32 s{sActT}, s{sActG}, {T*1024}')
            a_id.append(e(f'buffer_load_dwordx4 {vr(X+4*(kk%32),4)}, v{vAc1 if tt else 1}, {SRD}, s{sActT} offen sc1'))
        ACKD = self.opt('ackd', 22); VISD = self.opt('visd', 20); POLD = self.opt('pold', 12)
        flagged = 0; polled = 0; checked = 0; flag_n = {}; poll_n = {}; poll_id = {}
        gend = [sum(len(g) for g in groups[:i+1])*8 for i in range(len(groups))]
        PV3 = [120, 121, 122]
        def f3load(g): return f's_add_u32 s0, s{sF3p}, {g*F3S}\nbuffer_load_dword v{PV3[g]}, v{vP3}, {SRD}, s0 offen sc1'
        def progress(n, force=None):
            nonlocal flagged, polled, checked
            did = False
            if flagged < len(groups) and groups[flagged][-1] in st_id and (n >= st_n[groups[flagged][-1]] + ACKD or force is not None and force >= flagged):
                e(f's_add_u32 s0, s{sF3o}, {flagged*F3S}\ns_waitcnt {self.wvm(st_id[groups[flagged][-1]])}\n' + self.flag_text(vF, 0))
                flag_n[flagged] = n; flagged += 1; did = True
                if force is not None and force >= flagged-1: e(f's_waitcnt {self.wvm(self.nvm)}')
            if polled < flagged and (n >= flag_n[polled] + VISD or force is not None and force >= polled):
                poll_id[polled] = e(f3load(polled)); poll_n[polled] = n; polled += 1; did = True
            if checked < polled and (n >= poll_n[checked] + POLD or force is not None and force >= checked):
                self.check(f3load(checked), [PV3[checked]], poll_id[checked]); checked += 1; did = True
                self.stamp(f'_f3{checked-1}')
            return did
        vpace = self.opt('vpace', 2)
        grate = self.opt('grate', 10)
        for n, (tl, s) in enumerate(seq):
            if n in (1, 48, 96, 128, 160, 192): self.stamp(f'_g{n}')
            if n == last[1] + 1:
                e('s_barrier')
                vq += [(x,'d5') for x in self.dma_tile(5,0)] + [(x,'d6') for x in self.dma_tile(6,1)]
            X2N = self.opt('x2n', 74)
            if n in (X2N, X2N+8): id_x2s = e(f'buffer_store_dwordx4 {vr(XR+4*(n>X2N),4)}, v{vXO}, {SRD}, s{sT+5} offen offset:{1024*(n>X2N)} sc1')
            if n == X2N+36: e(f's_add_u32 s0, s{sT+6}, {F4-F2}\ns_waitcnt {self.wvm(id_x2s)}\n' + self.flag_text(vF, 0))
            if n == X2N+90: id_f4 = e(f4_load)
            if n == X2N+106:
                self.check(f4_load, [vPolled], id_f4)
                vq += [(f's_mov_b32 s0, {X2}\nbuffer_load_dwordx4 {vr(X2R,4)}, v{vX2}, {SRD}, s0 offen sc1','x2'),
                       (f's_mov_b32 s0, {X2+32768}\nbuffer_load_dwordx4 {vr(X2R+4,4)}, v{vX2}, {SRD}, s0 offen sc1','x2')]
            for a_ in range(6):
                if n == last[a_] + 4: gq += gelu(a_)
            for a_ in range(P1, 7):
                if n == first[a_] - LA:
                    while a_ not in dma_id or any(kd == f'd{a_}' for _, kd in vq):
                        x, kd = vq.pop(0); i_ = e(x)
                        if kd[0] == 'd': dma_id[int(kd[1])] = i_
                    e(f's_waitcnt {self.wvm(dma_id[a_])}\ns_barrier')
            w_ = f'lgkmcnt({min(LA-1, len(seq)-1-n)})'
            if tl == 0: w_ = self.wvm(x_id[s]) + ' ' + w_
            e(f's_waitcnt {w_}')
            if s == 0: assert not any(b_ == tl-4 for _, b_ in gq), (n, len(gq))
            c_ = '0' if s == 0 else vr(acc[tl],16)
            e(f'v_mfma_f32_32x32x16_bf16 {vr(acc[tl],16)}, {vr(WF+4*(n%NB),4)}, {vr(X+4*s,4)}, {c_}')
            if n + LA < len(seq): e(wread(n+LA))
            budget = (grate*(n+1))//3 - (grate*n)//3
            if progress(n): budget -= 2
            elif len(x_id) < 32 and tl == 0: xload()
            elif len(x_id) < 32 and not (tl == 1 and s % self.opt('p1bg', 2) == 0): pass
            elif len(x_id) < 32 or n % vpace == 0:
                if tl == 6 and checked and len(a_id) < min(s, gend[checked-1]): aload()
                elif vq:
                    x, kd = vq.pop(0); i_ = e(x)
                    if kd[0] == 'd': dma_id[int(kd[1])] = i_
            while gq and budget > 0:
                x, b_ = gq.pop(0); budget -= 1
                i_ = e(x)
                if x.startswith('buffer_'): st_id[b_] = i_; st_n[b_] = n
        assert not vq
        self.stamp('g1_mfma')
        n = len(seq)
        e(f'''
        v_and_b32 v{WF}, 3, v0
        v_cmp_eq_u32 vcc, 2, v{WF}
        v_and_b32 v{WF+1}, 0xfc, v0
        v_lshlrev_b32 v{WF+1}, 2, v{WF+1}
        v_add_u32 v{WF+1}, {L_GB}, v{WF+1}
        s_mov_b64 exec, vcc
        ds_write_b128 v{WF+1}, {vr(GBV,4)}
        s_mov_b64 exec, -1''')
        cnt = 0
        for x, b_ in gq + gelu(6):
            i_ = e(x); cnt += 1
            if x.startswith('buffer_'): st_id[b_] = i_; st_n[b_] = n
            if cnt % 8 == 0:
                n += 1
                if not progress(n) and checked and len(a_id) < min(32, gend[checked-1]): aload()
        self.stamp('gelu6')
        A2 = 28
        vRw = 12; vRr = 13; vG = 14
        fill = f'''v_bfe_u32 v{WF}, v0, 5, 1
        v_and_b32 v{WF+1}, 0x1f0, v1
        s_mul_i32 s{sT}, s{sW}, {4*RQ}
        s_add_u32 s{sT}, s{sT}, {L_RED}
        v_mul_u32_u24 v{WF}, {RQ}, v{WF}
        v_add3_u32 v{vRw}, v{WF}, v{WF+1}, s{sT}
        v_and_b32 v{WF}, 7, v0
        v_lshrrev_b32 v{WF+1}, 3, v0
        v_mul_u32_u24 v{WF+2}, {RSA}, v{WF}
        v_lshl_add_u32 v{vRr}, v{WF+1}, 4, v{WF+2}
        v_add_u32 v{vRr}, {L_RED}, v{vRr}
        s_lshl_b32 s{sT}, s{sDt}, 7
        s_add_u32 s{sT}, s{sT}, {L_GB}
        v_lshl_add_u32 v{vG}, v{WF}, 4, s{sT}
        s_add_u32 s{sT+2}, s{pOut}, 32768
        s_addc_u32 s{sT+3}, s{pOut+1}, 0'''.split('\n')
        XF2 = 96
        for tt in range(2):
            for j in range(4):
                fill += self.unpack(XF2+8*tt+2*j, X2R+4*tt+j)
        TAILK = self.opt('tailk', 4)
        o2 = [(kk, tt) for kk in range(28-TAILK) for tt in range(2)] + [(kk, tt) for tt in range(2) for kk in range(28-TAILK, 28)]
        ALA = self.opt('ala', 10)
        consumed = set(); wq = []
        for m_, (kk, tt) in enumerate(o2):
            f = 2*kk + tt; T = korder[kk]
            if m_ in (0, 14, 28, 42): self.stamp(f'_h{m_}')
            while len(a_id) <= f:
                g = min(i for i in range(len(groups)) if gend[i] > len(a_id))
                while checked <= g: progress(n, force=g)
                assert len(a_id) < 32 or len(a_id)-32 in consumed
                aload()
            e(f's_waitcnt {self.wvm(a_id[f])}')
            for c in range(2):
                a = A2 + 32*tt + 16*c
                e(f'v_mfma_f32_32x32x16_bf16 {vr(a,16)}, {ar(8*T+4*c,4)}, {vr(X+4*(f%32),4)}, {"0" if kk==0 else vr(a,16)}')
                n += 1
                if progress(n): pass
                elif len(a_id) < 56 and len(a_id) < gend[checked-1] and len(a_id) <= f + ALA and (len(a_id) < 32 or len(a_id)-32 in consumed): aload()
                if wq and m_ >= 57-TAILK:
                    e(wq.pop(0))
                    if wq: e(wq.pop(0))
                for _ in range(3):
                    if fill: e(fill.pop(0))
            consumed.add(f)
            if m_ == 55-TAILK:
                wq = [f'ds_write_b128 v{vRw}, {vr(A2+16*c+4*i,4)} offset:{(4*c+i)*RSA}' for c in range(2) for i in range(4)]
        self.stamp('g2_mfma')
        for x in wq: e(x)
        for c in range(2):
            for i in range(4): e(f'ds_write_b128 v{vRw}, {vr(A2+32+16*c+4*i,4)} offset:{2*RQ+(4*c+i)*RSA}')
        e('s_waitcnt lgkmcnt(0)\ns_barrier')
        GF = 112; RD = 128; r_id = []
        e(f'ds_read_b128 {vr(GF+8,4)}, v{vG}'); g_id = self.nlg
        e(f'v_add_u32 v{vRw}, {8*RQ}, v{vRr}')
        for q_ in range(4):
            for w in range(4):
                e(f'ds_read_b128 {vr(RD+16*q_+4*w,4)}, v{vRr if w<2 else vRw} offset:{(4*(w&1)+q_)*RQ}')
            r_id.append(self.nlg)
            if q_ == 2:
                e(f's_waitcnt {self.wlg(g_id)}')
                for j in range(4): e('\n'.join(self.unpack(GF+2*j, GF+8+j)))
        OO = 28
        for tt in range(2):
            for c in range(2):
                q_ = 2*tt+c; r = RD+16*q_
                e(f's_waitcnt {self.wlg(r_id[q_])}')
                for hh in range(2):
                    e(f'v_pk_add_f32 {vr(r+2*hh,2)}, {vr(r+2*hh,2)}, {vr(r+4+2*hh,2)}\nv_pk_add_f32 {vr(r+8+2*hh,2)}, {vr(r+8+2*hh,2)}, {vr(r+12+2*hh,2)}')
                for hh in range(2):
                    e(f'v_pk_add_f32 {vr(r+2*hh,2)}, {vr(r+2*hh,2)}, {vr(r+8+2*hh,2)}')
                for hh in range(2):
                    e(f'v_pk_fma_f32 {vr(r+2*hh,2)}, {vr(r+2*hh,2)}, {vr(GF+4*c+2*hh,2)}, {vr(XF2+8*tt+4*c+2*hh,2)}')
            for j in range(4):
                r = RD+32*tt+16*(j>>1)+2*(j&1); e(f'v_cvt_pk_bf16_f32 v{OO+4*tt+j}, v{r}, v{r+1}')
            e(f'global_store_dwordx4 v{vX2}, {vr(OO+4*tt,4)}, {sp(pOut) if tt==0 else sp(sT+2)} {self.opt("outflag","sc1").replace("_"," ").replace("none","")}')
        self.stamp('end')
        e(f'''
        s_or_b32 s0, s{sL}, s{sW}
        s_cbranch_scc1 L_noep''')
        e(self.flag_text(vF, 0))
        e('L_noep:')
        if self.stamps:
            e(f'''
            s_lshl2_add_u32 s{sT}, s{sL}, s{sW}
            s_lshl_b32 s{sT}, s{sT}, 7
            s_add_u32 s{sT}, s{sT}, {STMP}
            v_mov_b32 v4, 0
            s_mov_b64 exec, 1''')
            for i in range(self.ns):
                e(f'v_mov_b32 v5, s{sStamp+i}\nbuffer_store_dword v5, v4, {SRD}, s{sT} offen offset:{4*i}')
            e(f'v_mov_b32 v5, s{sCnt}\nbuffer_store_dword v5, v4, {SRD}, s{sT} offen offset:124')
        if self.o.get('probe') is not None:
            kk = self.stamp_names.index(self.o['probe'])
            e(f'''
            s_add_u32 s{sT}, s{sStamp+kk}, 5000
            L_spin:
            s_sleep 1
            s_memrealtime s[22:23]
            s_waitcnt lgkmcnt(0)
            s_sub_u32 s{sT+1}, s22, s{sT}
            s_cmp_lt_i32 s{sT+1}, 0
            s_cbranch_scc1 L_spin''')
        e('s_endpgm')
        for x in self.tail: e(x)
        e('L_end:\ns_endpgm')
        p.end(k, vgpr=256, agpr=256, sgpr=102)
        p.text, added = hazard.fix(p.text, verbose=self.o.get('verbose'))
        p.text += ['.p2align 8', 'L_tab:'] + ['.long ' + ', '.join(hex(v) for v in self.table[i:i+16]) for i in range(0, len(self.table), 16)]
        return added

if __name__ == '__main__':
    ap = argparse.ArgumentParser()
    ap.add_argument('out'); ap.add_argument('--stamps', action='store_true'); ap.add_argument('-v', action='store_true')
    ap.add_argument('--probe', default=None); ap.add_argument('-o', action='append', default=[])
    a = ap.parse_args()
    opts = dict(verbose=a.v, probe=a.probe)
    for kv in a.o:
        kk, vv = kv.split('='); opts[kk] = int(vv) if vv.lstrip('-').isdigit() else vv
    g = G(a.stamps or a.probe is not None, opts)
    added = g.build()
    g.p.dump(a.out, single=True)
    n = sum(1 for l in g.p.text if l.startswith('  '))
    print(a.out, 'instructions', n, 'nops added', added, 'stamps', g.stamp_names)
    if a.stamps: open(a.out + '.names', 'w').write(' '.join(g.stamp_names))
```

```python
import sys, struct, argparse
from asmlib import Prog, NAME
import hazard

def fbits(x): return '0x%08x' % struct.unpack('<I', struct.pack('<f', x))[0]

F1   = 0x140000
F2   = 0x020000
F3   = 0x040000
F3S  = 0x020000
MODP = 0x0C0000
XBLK = 16640
HBLK = 8448
TAGM = 0x70007000
XH   = 0x160000
ZY   = 0x580000
H2   = 0x9A0000
X2   = 0xBA0000
WGU  = 0xDA0000
ACT  = 0x1120000
STMP = 0x3000000
WS_BYTES = 0x10000000
S4   = 131072
L_U  = S4; USZ = 4608
L_P  = S4 + 2*USZ; PSZ = 4288
L_ZB = L_P + 2*PSZ
L_JK = L_ZB + 1024
L_BD = L_P + 12288
L_SB = L_BD + 1024
L_TS = L_SB + 256; TIMG = 1152
L_Y  = 98304
L_MB = 98304
RST  = 544
L_RC = 0; RCSZ = 54*RST
L_RED = 65536; RSA = 576; RQ = 8*RSA
L_GB = L_RED + 16*RQ
LDS_BYTES = 163840
pX,pAre,pAim,pBre,pBim,pCre,pCim,pLdt = 4,6,8,10,12,14,16,18
pD,pWg,pWu,pWd,pC,pWm,pOut,pWs = 20,24,26,28,30,32,34,38
SRD='s[40:43]'
sL,sW,sTag,sMask,sCnt = 44,45,46,47,48
sLo,sHi = 49,50
sOnes = 51
sMt,sNt,sTb,sDt = 52,53,54,55
sBad = 56
sT = 58
sM = 68
sDsk = 80
sStamp = 82
sDmaL, sDmaG, sDmaT = 4, 5, 6
sActG, sActT = 9, 10
sActS = 12
sF3o, sF3p = 14, 15
sXg = 16
sCh, sHb = 17, 18
sE1 = 4
sZs = 10
sTm = 25
sWs, sF1o = 14, 24
def sp(i): return f's[{i}:{i+1}]'
def vr(i, n): return f'v[{i}:{i+n-1}]'
def ar(i, n): return f'a[{i}:{i+n-1}]'

class G:
    def __init__(self, stamps=False, opts=None):
        self.p = Prog(); self.stamps = stamps; self.ns = 0; self.o = opts or {}
        self.stamp_names = []; self.nvm = 0; self.nlg = 0; self.tail = []; self.maybe = False
    def opt(self, k, d): return self.o.get(k, d)
    def e(self, s):
        for line in s.split('\n'):
            l = line.strip()
            if not l: continue
            if l.startswith(('buffer_', 'global_')) and not self.maybe: self.nvm += 1
            if l.startswith('ds_') and not self.maybe: self.nlg += 1
            self.p.e(l)
        return self.nvm
    def wvm(self, i): return f'vmcnt({min(62, self.nvm - i)})'
    def wlg(self, i): return f'lgkmcnt({min(14, self.nlg - i)})'
    def stamp(self, name):
        if not self.stamps: return
        if self.o.get('probe') is not None and name != self.o['probe']: return
        if self.o.get('only') and not (name == 'start' or name.startswith(tuple(self.o['only'].split(',')))): return
        if not self.o.get('only') and self.o.get('probe') is None and name.startswith('_'): return
        assert self.ns < 20
        self.e(f's_memrealtime s[22:23]\ns_waitcnt lgkmcnt(0)\ns_mov_b32 s{sStamp+self.ns}, s22')
        self.ns += 1; self.stamp_names.append(name)

    def check_text(self, loads, tags, last):
        Lc = self.p.label('chk'); Lr = self.p.label('retry')
        s = f's_waitcnt {self.wvm(last)}\n{Lc}:\n'
        if len(tags) == 1:
            s += f'v_cmp_ne_u32 vcc, v{tags[0]}, v2\ns_cmp_lg_u64 vcc, 0\ns_cbranch_scc1 {Lr}'
            self.tail.append(f'''{Lr}:
            s_sub_u32 s{sCnt}, s{sCnt}, 1
            s_cbranch_scc1 L_end
            {loads}
            s_waitcnt vmcnt(0)
            s_branch {Lc}''')
        else:
            s += f'v_cmp_ne_u32 {sp(sBad)}, v{tags[0]}, v2\n'
            for t in tags[1:]: s += f'v_cmp_ne_u32 vcc, v{t}, v2\ns_or_b64 {sp(sBad)}, {sp(sBad)}, vcc\n'
            s += f's_cbranch_scc1 {Lr}'
            self.tail.append(f'''{Lr}:
            s_sub_u32 s{sCnt}, s{sCnt}, 1
            s_cbranch_scc1 L_end
            s_mov_b64 exec, {sp(sBad)}
            {loads}
            s_mov_b64 exec, -1
            s_waitcnt vmcnt(0)
            s_branch {Lc}''')
        return s
    def check(self, loads, tags, last): self.e(self.check_text(loads, tags, last))

    def flag_text(self, vaddr, soff):
        return f's_mov_b32 exec_hi, 0\nbuffer_store_dword v2, v{vaddr}, {SRD}, s{soff} offen sc1\ns_mov_b32 exec_hi, -1'

    def stats_partial(self, src, t, vSBw, fill=()):
        a,b,c,d = t,t+1,t+2,t+3
        for m in range(4):
            acc = lambda r: '0' if m == 0 else f'v{r}'
            self.e(f'''v_dot2_f32_bf16 v{a}, v{src+m}, s{sOnes}, {acc(a)}
            v_dot2_f32_bf16 v{b}, v{src+4+m}, s{sOnes}, {acc(b)}
            v_dot2_f32_bf16 v{c}, v{src+m}, v{src+m}, {acc(c)}
            v_dot2_f32_bf16 v{d}, v{src+4+m}, v{src+4+m}, {acc(d)}''')
        self.reduce4(a,b,c,d, fill)
        self.e(f'ds_write_b32 v{vSBw}, v{a}')
    def reduce4(self, a,b,c,d, fill=()):
        fill = list(fill)
        def f(n):
            for _ in range(n):
                if fill: self.e(fill.pop(0))
        f(2); self.e(f'v_permlane32_swap_b32 v{a}, v{b}\nv_permlane32_swap_b32 v{c}, v{d}\nv_add_f32 v{a}, v{a}, v{b}\nv_add_f32 v{c}, v{c}, v{d}')
        f(2); self.e(f'v_permlane16_swap_b32 v{a}, v{c}\nv_add_f32 v{a}, v{a}, v{c}')
        f(2); self.e(f'v_add_f32_dpp v{a}, v{a}, v{a} row_ror:4 row_mask:0xf bank_mask:0xf')
        f(2); self.e(f'v_add_f32_dpp v{a}, v{a}, v{a} row_ror:8 row_mask:0xf bank_mask:0xf')
        self.rest = fill
    def stats_read(self, t, vSBr):
        for w in range(4): self.e(f'ds_read_b128 {vr(t+4*w,4)}, v{vSBr} offset:{16*w}')
        return self.nlg
    def stats_finish(self, t, vInv, scale=None):
        self.e(f'''
        v_pk_add_f32 {vr(t,2)}, {vr(t,2)}, {vr(t+4,2)}
        v_pk_add_f32 {vr(t+2,2)}, {vr(t+2,2)}, {vr(t+6,2)}
        v_pk_add_f32 {vr(t+8,2)}, {vr(t+8,2)}, {vr(t+12,2)}
        v_pk_add_f32 {vr(t+10,2)}, {vr(t+10,2)}, {vr(t+14,2)}
        v_pk_add_f32 {vr(t,2)}, {vr(t,2)}, {vr(t+8,2)}
        v_pk_add_f32 {vr(t+2,2)}, {vr(t+2,2)}, {vr(t+10,2)}
        v_pk_mul_f32 {vr(t+4,2)}, {vr(t,2)}, {vr(vInv,2)} op_sel_hi:[1,0]
        v_pk_mul_f32 {vr(t+6,2)}, {vr(t+2,2)}, {vr(vInv,2)} op_sel_hi:[1,0]
        v_fma_f32 v{t+5}, -v{t+4}, v{t+4}, v{t+5}
        v_fma_f32 v{t+7}, -v{t+6}, v{t+6}, v{t+7}
        v_max_f32 v{t+5}, 0, v{t+5}
        v_max_f32 v{t+7}, 0, v{t+7}
        v_add_f32 v{t+5}, v{vInv+1}, v{t+5}
        v_add_f32 v{t+7}, v{vInv+1}, v{t+7}
        v_rsq_f32 v{t}, v{t+5}
        v_rsq_f32 v{t+2}, v{t+7}''')
        if scale: self.e(f'v_mul_f32 v{t}, {fbits(scale)}, v{t}\nv_mul_f32 v{t+2}, {fbits(scale)}, v{t+2}')
        self.e(f'''
        v_mul_f32 v{t+1}, -v{t+4}, v{t}
        v_mul_f32 v{t+3}, -v{t+6}, v{t+2}''')
    def cmul(self, d, a, b):
        return [f'v_pk_mul_f32 {vr(d,2)}, {vr(a,2)}, {vr(b,2)} op_sel_hi:[1,0]',
                f'v_pk_fma_f32 {vr(d,2)}, {vr(a,2)}, {vr(b,2)}, {vr(d,2)} op_sel:[1,1,0] op_sel_hi:[0,1,1] neg_lo:[1,0,0]']
    def unpack(self, d, s): return [f'v_lshlrev_b32 v{d}, 16, v{s}', f'v_and_b32 v{d+1}, s{sMask}, v{s}']

    def dma_tile(self, i, slot):
        out = []
        for hf in range(2):
            for e_ in range(4):
                pre = ''
                if e_ == 0:
                    pre = (f's_add_u32 m0, s{sDmaL}, {slot*32768 + hf*4096}\n'
                           f's_add_u32 s{sDmaT}, s{sDmaG}, {i*32768 + hf*4096}\n')
                out.append(pre + f'buffer_load_dwordx4 v1, {SRD}, s{sDmaT} offen offset:{e_*1024} sc1 lds')
        return out

    def build(self):
        p = self.p; e = self.e
        k = NAME + '_kernel'
        p.add_launch(k, 256, 256, LDS_BYTES)
        p.begin(k)
        XR = 4; WM = 12; AB = 28; WG = 36
        vXO = 3; t = 68
        vTg = 252; vWgL = 35; vTab = 97; vPf = 255; vInv = 52; vDt = 34; vS = 54; vPolled = 123; vMBw = 72
        vSBw, vSBr, vMBr, vEM = 112, 113, 114, 115
        vRW, vKa, vKb0, vKb1 = 116, 117, 118, 119
        vWgS, vTw, vTr, vF = 124, 125, 126, 127
        vEX, vWdA, vBv, vOne = 64, 65, 66, 67
        vKw0, vKw1, vBd, vBd2 = 120, 121, 122, 123
        vPA, vPX, vQ, vUS = 56, 57, 58, 59
        vYw, vYr, vUB, vUw = 60, 61, 62, 63
        TP = 160; TB = 98304
        def consts(tid):
            w, l = tid >> 6, tid & 63; ch, hb = w >> 1, w & 1; c, q_, rp = l & 15, l >> 4, l & 3
            P = L_P + ch*PSZ; U = L_U + ch*USZ; RC = L_RC + ch*RCSZ
            lo, wd = [(3,3),(6,5),(5,7),(4,9)][w]
            x = l - 16 - lo
            band = (0x3f80 if 0 <= x < wd else 0) | (0x3f800000 if 0 <= x-1 < wd else 0)
            if c < 8: kw1 = P + 4*(608 + 16*[1,5,2,6,10,11,12,13][c] + 8*hb + 2*q_)
            elif 120 <= (tid & 127) < 125: kw1 = P + 4*((520 if c < 11 else 568) + c) - 932
            else: kw1 = L_JK
            sw = (((l >> 1) & 3) ^ q_) * 16
            TS = L_TS + w*2*TIMG
            full = [(tid >> 2)*HBLK + rp*16, (448*w + 16*(l>>5) + 4*((l>>3)&3))*1024 + (l&7)*16, band, 0x3f800000 if q_ == 2 else 0]
            half = {vSBw: L_SB + rp*64 + w*16 + q_*4, vSBr: L_SB + rp*64,
              vMBr: L_MB + 4*(192*((l>>1)&1) + 2*(8*w + ((l>>2)&7)) + (l&1)), vMBw: L_MB + 32*tid,
              vRW: RC + 4*(tid & 127), vKa: RC + (16*hb + c)*RST + 16*q_,
              vKb0: RC + [0,1,2,3,4,5,6,7,8,8,9,10,10,10,11,12][c]*RST + 16*q_, vKb1: RC + [1,2,3,4,5,6,7,8,0,0,0,4,4,0,0,0][c]*RST + 16*q_,
              vTw: TS + ((l>>2)&1)*576 + (l>>5)*256 + ((l>>3)&3)*64 + (l&3)*16, vTr: TS + (l>>5)*256 + ((l>>2)&3)*64 + ((l>>4)&1)*32 + (l&3)*8,
              vEM: (l >> 2)*2048 + rp*16, vWgS: q_*512 + c*16,
              vKw0: P + 64 + 512*hb + 4*((c&7) + 256*(c>>3) + 32*q_), vKw1: kw1,
              vBd: L_BD + 4*(26 + c - 8*q_), vBd2: L_BD + 4*(26 + c - 8*q_) + 256*hb,
              vPA: P + 512*hb + 4*(26 + c - 8*q_), vPX: (P + 2048 if hb == 0 else L_ZB) + 4*(26 + c - 8*q_),
              vQ: P + 4*(608 + 12 + c - 4*q_) + 928*hb, vUS: U + 32*c + 16*q_ + 480 - 16*hb,
              vYw: L_Y + w*8192 + c*64 + sw, vYr: L_Y + (tid & 0xf9)*8 + sw, vUB: U + 32*c + 16*q_ + 288 - 256*hb, vUw: L_U + 512 + 4*tid}
            return full, half
        hregs = list(consts(0)[1]); assert len(hregs) == 24
        hbase = {r: (TB if consts(0)[1][r] >= TB else 0) for r in hregs}
        def trow(tid):
            full, half = consts(tid)
            h = [half[r] - hbase[r] for r in hregs]; assert all(0 <= v < 65536 for v in h)
            return [h[2*i] | h[2*i+1] << 16 for i in range(12)] + full
        self.table = [v for qd in range(4) for tid in range(256) for v in trow(tid)[4*qd:4*qd+4]]
        def tunpack():
            out = []
            for i, r in enumerate(hregs):
                b_ = f's{sT+9}' if hbase[r] else '0'
                out.append(f'v_add_u32_sdwa v{r}, {b_}, v{TP+(i>>1)} dst_sel:DWORD dst_unused:UNUSED_PAD src0_sel:DWORD src1_sel:WORD_{i&1}')
            return out
        groups = [tuple(int(c) for c in g) for g in str(self.opt('groups', '01_23_45_6')).split('_')]
        korder = [7*pp + i for g in groups for i in g for pp in range(4)]
        wdq = []
        for Gl in range(7):
            for jh in range(2):
                for c in range(4):
                    wdq.append(((4*Gl+c, jh), f'global_load_dwordx4 {ar(8*(4*Gl+c)+4*jh,4)}, v{vWdA}, {sp(pWd)} offset:{1024*c}' +
                               (f'\nv_add_u32 v{vWdA}, 32768, v{vWdA}' if c == 3 and (Gl, jh) != (6, 1) else '')))
        wd_id = {}
        def wd_issue(n):
            for _ in range(n):
                if wdq:
                    key, x = wdq.pop(0); wd_id[key] = e(x) if not self.opt('nowd', 0) else 1
        trn = [0]; trw = [0]; trd = set()
        def tr_ops(T):
            return [f'ds_write_b128 v{vTw}, {ar(8*T,4)}', f'ds_write_b128 v{vTw}, {ar(8*T+4,4)} offset:{TIMG}'] + \
                   [f'ds_read_b64_tr_b16 {ar(8*T+4*c+2*jh,2)}, v{vTr} offset:{576*c+TIMG*jh}' for c in range(2) for jh in range(2)]
        def tr_do(n):
            for _ in range(n):
                todo = [T_ for T_ in korder if T_ not in trd and (T_, 1) in wd_id and wd_id[(T_, 1)] <= self.nvm - self.opt('trlag', 8)]
                if not todo: return
                T = todo[0]; trd.add(T)
                if wd_id[(T,1)] > trw[0]:
                    trw[0] = wd_id[(T,1)]; e(f's_waitcnt {self.wvm(trw[0])}')
                if not self.opt('notr', 0):
                    for x in tr_ops(T): e(x)
                trn[0] += 1
        e(f"""
        s_load_dwordx16 s[4:19], s[0:1], 0
        s_load_dwordx16 s[20:35], s[0:1], 64
        s_load_dwordx4 s[36:39], s[0:1], 128
        s_cmp_ge_u32 s2, 256
        s_cbranch_scc1 L_end
        v_lshrrev_b32 v{t}, 6, v0
        v_and_b32 v{t+1}, 63, v0
        v_readfirstlane_b32 s{sW}, v{t}
        s_lshr_b32 s3, s2, 3
        s_getpc_b64 {sp(sM)}
        L_pc:
        s_lshl2_add_u32 s{sT}, s3, s{sW}
        s_lshl_b32 s{sM+2}, s{sT}, 8
        s_min_u32 s{sM+2}, s{sM+2}, L_end-L_pc-256
        v_lshl_add_u32 v{t+7}, v{t+1}, 2, s{sM+2}
        global_load_dword v123, v{t+7}, {sp(sM)}
        s_add_u32 s{sM+4}, s{sM}, L_tab-L_pc+4096
        s_addc_u32 s{sM+5}, s{sM+1}, 0
        v_lshlrev_b32 v{vTab}, 4, v0""")
        id_tab = e(f"""
        global_load_dwordx4 {vr(TP,4)}, v{vTab}, {sp(sM+4)} offset:-4096
        global_load_dwordx4 {vr(TP+4,4)}, v{vTab}, {sp(sM+4)}
        v_add_u32 v{vTab}, 8192, v{vTab}
        global_load_dwordx4 {vr(TP+8,4)}, v{vTab}, {sp(sM+4)} offset:-4096
        global_load_dwordx4 {vr(vEX,4)}, v{vTab}, {sp(sM+4)}""")
        e(f"""
        s_and_b32 s{sT+1}, s2, 7
        s_lshl_b32 s{sL}, s{sT+1}, 5
        s_or_b32 s{sL}, s{sL}, s3
        v_lshlrev_b32 v1, 4, v{t+1}
        v_and_b32 v{t+2}, 3, v0
        v_and_b32 v{t+3}, 0xfc, v0
        s_lshl_b32 s{sT+3}, s{sL}, 13
        v_lshl_add_u32 v{t+3}, v{t+3}, 2, s{sT+3}
        v_lshl_add_u32 v{vXO}, v{t+2}, 11, v{t+3}
        v_lshrrev_b32 v{t+4}, 3, v{t+1}
        v_min_u32 v{t+4}, 5, v{t+4}
        v_and_b32 v{t+5}, 0x70, v1
        v_lshl_add_u32 v{t+4}, v{t+4}, 10, v{t+5}
        s_lshl_b32 s{sT+2}, s{sT}, 3
        s_mul_i32 s{sT}, s{sT}, {4*6144}
        s_lshl_b32 s{sT+1}, s{sT+1}, 7
        s_add_u32 s{sT}, s{sT}, s{sT+1}
        s_add_u32 s{sT}, s{sT}, 3072
        v_add_u32 v{t+4}, s{sT}, v{t+4}
        v_add_u32 v{t+5}, 12288, v{t+4}
        s_lshl_b32 s{sT}, s{sL}, 9
        v_lshl_add_u32 v{t+6}, v0, 1, s{sT}
        s_lshl_b32 s{sT+3}, s{sL}, 2
        """)
        for i in range(6): e(f'v_mov_b32 v{AB+i}, 0')
        e('s_waitcnt lgkmcnt(0)')
        self.stamp('start')
        e(f"""
        s_load_dwordx2 {sp(sT+4)}, {sp(pC)}, s{sT+2}
        global_load_dwordx4 {vr(XR,4)}, v{vXO}, {sp(pX)}""")
        id_x = e(f'global_load_dwordx4 {vr(XR+4,4)}, v{vXO}, {sp(pX)} offset:1024')
        id_ep = e(f"""
        s_load_dword s{sT+6}, {sp(pLdt)}, s{sT+3}
        s_load_dword s{sDsk+1}, {sp(pD)}, s{sT+3}
        global_load_dword v2, v{AB}, {sp(pWs)} sc1""")
        for i, ptr in enumerate([pAre,pAim,pBre,pBim,pCre,pCim]):
            id_ab = e(f'global_load_short_d16_hi v{AB+i}, v{t+6}, {sp(ptr)}')
        id_wm = e(f"""
        global_load_dwordx4 {vr(WM,4)}, v{t+4}, {sp(pWm)} offset:-3072
        global_load_dwordx4 {vr(WM+4,4)}, v{t+4}, {sp(pWm)} offset:3072
        global_load_dwordx4 {vr(WM+8,4)}, v{t+5}, {sp(pWm)} offset:-3072
        global_load_dwordx4 {vr(WM+12,4)}, v{t+5}, {sp(pWm)} offset:3072""")
        GR = 144
        u = 92
        e(f"""
        s_mov_b32 s{sMask}, 0xffff0000
        s_mov_b32 s{sLo}, 0x05040100
        s_mov_b32 s{sHi}, 0x07060302
        s_mov_b32 s{sOnes}, 0x3f803f80
        v_mov_b32 v{t+12}, {fbits(-1.4426950408889634)}
        s_add_u32 s{sT+7}, s{sT+3}, s{sW}
        s_min_u32 s{sT}, s{sT+7}, 895
        v_and_b32 v{t+8}, 15, v{t+1}
        s_lshl_b32 s{sT+1}, s{sT}, 11
        v_lshl_add_u32 v{vPf}, v{t+8}, 7, s{sT+1}
        s_mov_b64 s[0:1], {sp(pWd)}
        s_bitcmp1_b32 s{sT}, 0
        s_cselect_b32 s{pWu}, s{pWu}, s{pWg}
        s_cselect_b32 s{pWu+1}, s{pWu+1}, s{pWg+1}
        s_cselect_b32 s{sWs}, 256, 0
        s_bfe_u32 s{sT+1}, s{sT}, 0x40001
        s_lshr_b32 s{sT+2}, s{sT}, 5
        s_mul_i32 s{sT+8}, s{sT+1}, {32*3584}
        s_lshl_b32 s{sT+3}, s{sT+2}, 7
        s_add_u32 s{sT+8}, s{sT+8}, s{sT+3}
        v_lshrrev_b32 v{t+7}, 4, v{t+1}
        v_mul_u32_u24 v{t+7}, {8*3584}, v{t+7}
        v_lshl_add_u32 v{t+10}, v{t+8}, 3, s{sT+8}
        v_add_u32 v{vWgL}, v{t+10}, v{t+7}
        s_lshl_b32 s{sT+2}, s{sT+2}, 17
        s_lshl_b32 s{sT+1}, s{sT+1}, 11
        s_add_u32 s{sT+2}, s{sT+2}, s{sT+1}
        s_add_u32 s{sWs}, s{sWs}, s{sT+2}
        s_add_u32 s{sWs}, s{sWs}, {WGU}
        s_cmp_ge_u32 s{sL}, 224
        s_cselect_b32 s{sWs}, {WS_BYTES}, s{sWs}
        s_lshl_b32 s{sF1o}, s{sT+7}, 7
        s_add_u32 s{sF1o}, s{sF1o}, {F1}
        v_mov_b32 v{u}, 0
        v_mov_b32 v{u+1}, 0
        v_mov_b32 v{u+2}, 0
        v_mov_b32 v{u+3}, 0
        v_lshlrev_b32 v{u+4}, 4, v0
        v_add_u32 v{u+4}, {L_P}, v{u+4}
        s_lshr_b32 s{sCh}, s{sW}, 1
        s_mul_i32 s{sT}, s{sCh}, {USZ-512}
        s_add_u32 s{sT}, s{sT}, {L_U}
        v_lshl_add_u32 v{t+9}, v0, 2, s{sT}
        s_mov_b32 s{sT+9}, {TB}
        v_lshrrev_b32 v{vF}, 2, v1
        s_waitcnt lgkmcnt(0)
        ds_write_b128 v{u+4}, {vr(u,4)}
        ds_write_b128 v{u+4}, {vr(u,4)} offset:4096
        ds_write_b128 v{u+4}, {vr(u,4)} offset:8192
        ds_write_b32 v{t+9}, v{u}
        s_lshl_b32 s{sT}, s{sT+4}, 16
        s_and_b32 s{sT+1}, s{sT+4}, s{sMask}
        s_lshl_b32 s{sT+2}, s{sT+5}, 16
        s_and_b32 s{sT+3}, s{sT+5}, s{sMask}
        """)
        self.stamp('_smem')
        for i in range(4): e(f'v_mul_f32 v{t+13+i}, s{sT+i}, v{t+12}')
        for i in range(4): e(f'v_exp_f32 v{t+13+i}, v{t+13+i}')
        e(f"""
        s_lshl_b32 s{sT+4}, s{sCh}, 4
        s_lshr_b32 s{sT+5}, s{sT+6}, s{sT+4}
        s_lshl_b32 s{sT+5}, s{sT+5}, 16
        s_lshr_b32 s{sDsk}, s{sDsk+1}, s{sT+4}
        s_lshl_b32 s{sDsk}, s{sDsk}, 16""")
        for i in range(4): e(f'v_add_f32 v{t+13+i}, 1.0, v{t+13+i}')
        for i in range(4): e(f'v_rcp_f32 v{t+13+i}, v{t+13+i}')
        e(f'v_mul_f32 v{vDt}, s{sT+5}, -v{t+12}')
        for i in range(4): e(f'v_mul_f32 v{t+13+i}, s{sT+i}, v{t+13+i}')
        e(f'v_exp_f32 v{vDt}, v{vDt}')
        e(f'v_cvt_pk_bf16_f32 v{vS}, v{t+13}, v{t+14}\nv_cvt_pk_bf16_f32 v{vS+1}, v{t+15}, v{t+16}')
        e(f"""
        s_mov_b32 s40, s{pWs}
        s_mov_b32 s41, s{pWs+1}
        s_mov_b32 s42, {WS_BYTES}
        s_mov_b32 s43, 0x20000
        s_mov_b32 s{sCnt}, 40000
        v_mov_b32 v{vInv}, {fbits(1/512)}
        v_mov_b32 v{vInv+1}, {fbits(1e-5)}
        v_cvt_pk_bf16_f32 v{vDt}, v{vDt}, v{vDt}
        s_mul_i32 s{sT}, s{sL}, {XBLK}
        s_mul_i32 s{sT+2}, s{sL}, {HBLK}
        s_lshl_b32 s{sT+1}, s{sW}, 11
        s_add_u32 s{sT+1}, s{sT+2}, s{sT+1}
        s_add_u32 s{sT+1}, s{sT+1}, {XH}
        s_lshl_b32 s{sT+2}, s{sT+7}, 9
        s_add_u32 s{sT+2}, s{sT+2}, {MODP}
        s_mov_b32 s{sTag}, 1664525
        v_lshlrev_b32 v{vDt}, 16, v{vDt}
        s_lshl_b32 s{sT+3}, s{sW}, 10
        s_add_u32 s{sT}, s{sT}, s{sT+3}
        s_add_u32 s{sZs}, s{sT}, {ZY}
        s_add_u32 s{sZs+1}, s{sT}, {ZY+4096}
        s_add_u32 s{sZs+2}, s{sT}, {ZY+8192}
        s_add_u32 s{sZs+3}, s{sT}, {ZY+12288}
        s_lshr_b32 s{sT}, s{sL}, 6
        s_bfe_u32 s{sT+3}, s{sL}, 0x10001
        s_lshl1_add_u32 s{sT}, s{sT}, s{sT+3}
        s_bfe_u32 s{sT+3}, s{sL}, 0x40002
        s_lshl4_add_u32 s{sT}, s{sT}, s{sT+3}
        s_and_b32 s{sT+3}, s{sL}, 1
        s_lshl3_add_u32 s{sT}, s{sT}, s{sT+3}
        s_lshl_b32 s{sT}, s{sT}, 3
        s_add_u32 s{sE1}, s{sT}, {XH}
        s_add_u32 s{sE1+1}, s{sT}, {XH+64*HBLK}
        s_add_u32 s{sE1+2}, s{sT}, {XH+128*HBLK}
        s_add_u32 s{sE1+3}, s{sT}, {XH+192*HBLK}
        s_mov_b32 s{sTm}, {TAGM}
        v_lshlrev_b32 v{vTg}, 2, v{t+2}
        v_add_u32 v{vTg+1}, 2, v{vTg}
        s_and_b32 s{sT}, s2, 7
        s_lshl_b32 s{sT}, s{sT}, 10
        s_add_u32 s{sT}, s{sT}, s3
        s_lshl_b32 s{sT}, s{sT}, 6
        s_add_u32 s{sE1+4}, s{sT}, {MODP}
        s_add_u32 s{sE1+5}, s{sT}, {MODP+32768}""")
        wgq = []; idw = [0]
        for jj in range(8):
            wgq.append(f'global_load_dwordx2 {vr(WG+2*jj,2)}, v{vWgL}, {sp(pWu)} offset:{3584*(jj&1)}' + (f'\nv_add_u32 v{vWgL}, 7168, v{vWgL}' if jj & 1 and jj < 7 else ''))
        def wg_issue(n):
            for _ in range(n):
                if wgq: idw[0] = e(wgq.pop(0))
        WGA = self.opt('wgat', 0)
        PFA = self.opt('pfat', 0)
        def wd_pf(): e(f'global_load_dword a223, v{vPf}, s[0:1]')
        if PFA == 0: wd_pf()
        PF2 = self.opt('pf2', -1); vPf2 = 159
        e(f"""
        v_min_u32 v{vPf2}, 55, v{t+1}
        v_lshrrev_b32 v{vPf2-1}, 2, v{vPf2}
        v_and_b32 v{vPf2}, 3, v{vPf2}
        v_lshlrev_b32 v{vPf2}, 7, v{vPf2}
        v_lshl_add_u32 v{vPf2}, v{vPf2-1}, 10, v{vPf2}
        s_and_b32 s{sT}, s{sT+7}, 127
        s_mul_i32 s{sT}, s{sT}, 28
        s_bfe_u32 s{sT+3}, s2, 0x10001
        s_add_u32 s{sT}, s{sT}, s{sT+3}
        s_lshl_b32 s{sT}, s{sT}, 9
        v_add_u32 v{vPf2}, s{sT}, v{vPf2}""" if PF2 >= 0 else '')
        def wd_pf2(k_):
            if PF2 == k_: e(f'global_load_dword a222, v{vPf2}, s[0:1]')
        wd_pf2(0)
        if WGA == 0: wg_issue(8)
        e(f's_waitcnt {self.wvm(id_tab)}')
        for x in tunpack(): e(x)
        e(f"""
        s_bfe_u32 s{sT}, s{sL}, 0x10006
        s_and_b32 s{sDt}, s{sL}, 3
        s_lshl2_add_u32 s{sDt}, s{sT}, s{sDt}
        s_lshl_b32 s{sT}, s{sDt}, 7
        s_add_u32 s{pWd}, s{pWd}, s{sT}
        s_addc_u32 s{pWd+1}, s{pWd+1}, 0""")
        self.stamp('_pre_x')
        e(f's_waitcnt {self.wvm(id_x)}')
        self.stamp('x_arrived')
        XF = 128
        unp = [x for r in range(2) for i in range(4) for x in self.unpack(XF+8*r+2*i, XR+4*r+i)]
        self.stats_partial(XR, t, vSBw, unp)
        unp = self.rest
        e(f'v_add_u32 v{t+1}, {L_BD-L_U-512}, v{vUw}\nds_write_b32 v{t+1}, v{vBv}')
        e(f's_waitcnt {self.wvm(id_ep)} lgkmcnt(1)\ns_barrier')
        self.stamp('_bar0')
        ST = 84
        id_st = self.stats_read(ST, vSBr)
        for x in unp: e(x)
        e(f'v_mul_lo_u32 v2, v2, s{sTag}\nv_add_u32 v2, 1013904223, v2')
        vTP = 26
        e(f"""v_alignbit_b32 v{vTg}, v2, v2, v{vTg}
        v_alignbit_b32 v{vTg+1}, v2, v2, v{vTg+1}
        v_and_b32 v{vTg}, s{sTm}, v{vTg}
        v_and_b32 v{vTg+1}, s{sTm}, v{vTg+1}""")
        e(f's_waitcnt {self.wlg(id_st)}')
        self.stats_finish(ST, vInv, 2.0**-100)
        for i in range(4):
            for r in range(2):
                x = XF+8*r+2*i
                e(f'v_pk_fma_f32 {vr(x,2)}, {vr(x,2)}, {vr(ST+2*r,2)}, {vr(ST+2*r,2)} op_sel:[0,0,1] op_sel_hi:[1,0,1]')
            for r in range(2):
                x = XF+8*r+2*i
                e(f'v_cvt_pk_bf16_f32 v{GR+2*i+r}, v{x}, v{x+1}')
            for r in range(2):
                e(f'v_bfi_b32 v{GR+2*i+r}, s{sTm}, v{vTg+r}, v{GR+2*i+r}')
            if i & 1: e(f'buffer_store_dwordx4 {vr(GR+2*i-2,4)}, v1, {SRD}, s{sT+1} offen offset:{512*(i-1)} sc1')
        self.stamp('e1_stored')
        e(f's_waitcnt {self.wvm(id_wm)}')
        self.stamp('_wm')
        MA = 160; MP = 168; MR = 176
        for h in range(2):
            for m in range(4):
                e(f"""v_perm_b32 v{MP+2*m}, v{WM+8*h+4+m}, v{WM+8*h+m}, s{sLo}
                v_perm_b32 v{MP+1+2*m}, v{WM+8*h+4+m}, v{WM+8*h+m}, s{sHi}""")
            for m in range(8):
                e(f'v_dot2_f32_bf16 v{MA+m}, v{MP+m}, v{vS+h}, {"0" if h==0 else "v%d"%(MA+m)}')
        e(f'ds_write_b128 v{vMBw}, {vr(MA,4)}\nv_mov_b32 v{MR+15}, v2\nv_mul_f32 v68, v{vDt}, v{AB}')
        e(f'ds_write_b128 v{vMBw}, {vr(MA+4,4)} offset:16')
        e(f'v_mov_b32 v{vTP}, v{vTg}\nv_mov_b32 v{vTP+1}, v{vTg+1}')
        def mod_read():
            e('s_waitcnt lgkmcnt(0)\ns_barrier')
            for w in range(0, 4, 2):
                for i in range(3):
                    e(f'ds_read2st64_b32 {vr(MR+3*w+2*i,2)}, v{vMBr} offset0:{8*w+i} offset1:{8*w+8+i}')
            return self.nlg
        def mod_store(i_):
            e(f"""
            s_waitcnt {self.wlg(i_)}
            v_pk_add_f32 {vr(MR,2)}, {vr(MR,2)}, {vr(MR+6,2)}
            v_pk_add_f32 {vr(MR+2,2)}, {vr(MR+2,2)}, {vr(MR+8,2)}
            v_pk_add_f32 {vr(MR+4,2)}, {vr(MR+4,2)}, {vr(MR+10,2)}
            v_add_f32 v{MR+12}, v{MR}, v{MR+1}
            v_add_f32 v{MR+13}, v{MR+2}, v{MR+3}
            v_add_f32 v{MR+14}, v{MR+4}, v{MR+5}
            s_mov_b32 exec_hi, 0
            buffer_store_dwordx4 {vr(MR+12,4)}, v1, {SRD}, s{sT+2} offen sc1
            s_mov_b32 exec_hi, -1""")
            self.stamp('_modst')
            if PFA == 1: wd_pf()
            wd_pf2(1)
            if WGA == 1: wg_issue(8)
        wst = [0]
        def wjob_ops(OB=20):
            out = []
            for c in range(4):
                O = OB + 4*(c & 1)
                out += [f'v_perm_b32 v{O+m}, v{WG+2*(2*m+1)+(c>>1)}, v{WG+2*(2*m)+(c>>1)}, s{sHi if c&1 else sLo}' for m in range(4)]
                out.append(f'buffer_store_dwordx4 {vr(O,4)}, v{vWgS}, {SRD}, s{sWs} offen sc1' + (f'\ns_add_u32 s{sWs}, s{sWs}, 32768' if c < 3 else ''))
            return out
        WJN = self.opt('wjn', -1)
        al, be = 68, 69
        Z1, Z8, Z256, Wc = 70, 72, 74, 76
        q = 78
        e(f"""
        v_mul_f32 v{be}, v{vDt}, v{AB+1}
        v_mul_f32 v{AB+2}, v{vDt}, v{AB+2}
        v_mul_f32 v{AB+3}, v{vDt}, v{AB+3}
        v_mul_f32 v{q}, {fbits(1.4426950408889634)}, v{al}
        v_mul_f32 v{q+1}, 0.15915494, v{be}
        v_mul_f32 v{Wc}, v{AB+4}, v{AB+2}
        v_mul_f32 v{Wc+1}, v{AB+4}, v{AB+3}
        v_mul_f32 v{q+3}, {fbits(8.0)}, v{q}
        v_mul_f32 v{q+4}, {fbits(8.0)}, v{q+1}
        v_mul_f32 v{q+6}, {fbits(256.0)}, v{q}
        v_mul_f32 v{q+7}, {fbits(256.0)}, v{q+1}
        v_fma_f32 v{Wc}, -v{AB+5}, v{AB+3}, v{Wc}
        v_fma_f32 v{Wc+1}, -v{AB+5}, v{AB+2}, -v{Wc+1}
        """)
        for n_ in range(3): e(f'v_exp_f32 v{q+3*n_}, v{q+3*n_}\nv_fract_f32 v{q+3*n_+1}, v{q+3*n_+1}')
        for n_ in range(3): e(f'v_sin_f32 v{q+3*n_+2}, v{q+3*n_+1}\nv_cos_f32 v{q+3*n_+1}, v{q+3*n_+1}')
        e(f'v_and_b32 v87, 127, v0\nv_cmp_eq_u32 vcc, 0, v87')
        for n_, (Z, conj) in enumerate([(Z1,True),(Z8,False),(Z256,True)]):
            e(f'v_mul_f32 v{Z}, v{q+3*n_}, v{q+3*n_+1}\nv_mul_f32 v{Z+1}, {"-" if conj else ""}v{q+3*n_}, v{q+3*n_+2}')
        id_mr = mod_read()
        def put(src, row, pk):
            return [f'v_cvt_pk_bf16_f32 v{pk}, v{src}, v{src+1}', f'ds_write_b32 v{vRW}, v{pk} offset:{row*RST}']
        Z16 = 78
        R0 = [[f'v_mov_b32 v88, 0x3f80', f'ds_write_b32 v{vRW}, v88'], self.cmul(Z16, Z8, Z8) + put(Z16, 2, 88)]
        R1 = [put(Z8, 1, 84), []]
        cur = [Z16, Z8]; bufs = [[80, 82], [90, 92]]
        for rho in range(3, 32):
            par = rho & 1
            d = bufs[par][(rho >> 1) & 1]
            (R1 if par else R0).append(self.cmul(d, cur[par], Z16) + put(d, rho, 84 if par else 88)); cur[par] = d
        Cq = [put(Wc, 32, 89)]
        cr = {0: Wc}
        reg = {1:110, 2:94, 3:110, 4:96, 5:110, 6:98, 7:110, 8:100}
        for ee in range(1, 9):
            Cq.append(self.cmul(reg[ee], cr[ee-1], Z1) + (put(reg[ee], 32+ee, 89) if ee < 8 else [])); cr[ee] = reg[ee]
        chain = [(264,8,44,102),(520,264,46,104),(776,520,48,102),(1032,776,49,104),(1288,1032,50,102),(1544,1288,51,104),(1800,1544,52,102)]
        for ee, src, row, d in chain:
            Cq.append(self.cmul(d, cr[src], Z256) + put(d, row, 89)); cr[ee] = d
        side = [(260,4,42,106),(516,260,45,108),(772,516,47,106)]
        for ee, src, row, d in side:
            R0.append(self.cmul(d, cr[src], Z256) + put(d, row, 88)); cr[ee] = d
        R1.append(self.cmul(90, cr[0], Z256) + put(90, 40, 84))
        R1.append(self.cmul(92, cr[2], Z256) + put(92, 41, 84))
        Cq.append(self.cmul(110, cr[6], Z256) + put(110, 43, 89))
        KD = 12
        Cq.append([f'v_mov_b32 v{KD+1}, s{sDsk}', f'v_mov_b32 v{KD+2}, 0', f'v_cndmask_b32 v{KD}, 0, v{KD+1}, vcc', f'v_mov_b32 v{KD+1}, 0'])
        Cq.append([f'v_mov_b32 v{KD+3}, 0', f'v_mul_f32 v{vBv}, {fbits(2.0**100)}, v{vOne}', f'v_max_f32 v{vBv}, 1.0, v{vBv}'])
        for n_ in range(max(len(R0), len(R1), len(Cq))):
            st = [a_[n_] if n_ < len(a_) else [] for a_ in (R0, R1, Cq)]
            for j in range(4):
                for a_ in st:
                    if j < len(a_): e(a_[j])
            if n_ == 1: mod_store(id_mr)
            if WJN <= -2 and n_ == -WJN-1:
                e(f's_waitcnt {self.wvm(idw[0])}')
                for x in wjob_ops(128): wst[0] = e(x)
            if self.opt('wd_k1s', 2) <= n_ < self.opt('wd_k1s', 2) + self.opt('wd_k1', 6): wd_issue(1)
        self.stamp('kgen1')
        EG = 68
        e1_loads = '\n'.join([f'buffer_load_dwordx4 {vr(EG+16+4*i,4)}, v{vEM}, {SRD}, s{sE1+4+i} offen sc1' for i in range(2)] +
                             [f'buffer_load_dwordx2 {vr(EG+2*i,2)}, v{vEX}, {SRD}, s{sE1+i} offen sc1' for i in range(4)])
        E1AT = self.opt('e1at', 1)
        e('s_waitcnt lgkmcnt(0)')
        if E1AT == 0: id_e1 = e(e1_loads)
        e('s_barrier')
        self.stamp('_kbar1')
        KF = 160
        kf_id = []
        for kk in range(8):
            e(f"""ds_read_b128 {vr(KF+12*kk,4)}, v{vKa} offset:{64*kk}
            ds_read_b128 {vr(KF+12*kk+4,4)}, v{vKb0} offset:{32*RST+64*kk}
            ds_read_b128 {vr(KF+12*kk+8,4)}, v{vKb1} offset:{44*RST+64*kk}""")
            kf_id.append(self.nlg)
            if kk == 4:
                if E1AT == 1: id_e1 = e(e1_loads)
        for kk in range(8):
            e(f's_waitcnt {self.wlg(kf_id[kk])}')
            for cb in range(2):
                e(f'v_mfma_f32_16x16x32_bf16 {vr(KD+4*cb,4)}, {vr(KF+12*kk,4)}, {vr(KF+12*kk+4+4*cb,4)}, {"0" if kk==0 and cb==1 else vr(KD+4*cb,4)}')
            if E1AT < 2 and kk < self.opt('wd_k2', 0): wd_issue(1)
        if E1AT == 2: id_e1 = e(e1_loads)
        wd_pf2(2)
        if WGA == 2: wg_issue(8)
        AN = 128; AX = 160; T2 = 192; T3 = 204; BND = 196; SF2 = 208; SF3 = 232; SD = 240; US = 72
        e(f"""
        ds_read2_b32 {vr(BND,2)}, v{vBd} offset0:6 offset1:4
        ds_read2_b32 {vr(BND+2,2)}, v{vBd} offset0:2 offset1:0
        ds_read2_b32 {vr(BND+4,2)}, v{vBd} offset0:70 offset1:68
        ds_read2_b32 {vr(BND+6,2)}, v{vBd} offset0:66 offset1:64
        ds_read2_b32 {vr(BND+8,2)}, v{vBd2} offset0:134 offset1:132
        ds_read2_b32 {vr(BND+10,2)}, v{vBd2} offset0:130 offset1:128""")
        for cb in range(2):
            for j in range(2):
                e(f'v_cvt_pk_bf16_f32 v{KD+8+2*cb+j}, v{KD+4*cb+2*j}, v{KD+4*cb+2*j+1}')
        def scat(cb, j):
            va = (vKw0, vKw1)[cb]; off = 32*j if cb == 0 else (j&1)*928 + (j>>1)*4
            op = 'ds_write_b16_d16_hi' if j & 1 else 'ds_write_b16'
            e(f'{op} v{va}, v{KD+8+2*cb+(j>>1)} offset:{off}\n{op} v{va}, v{KD+8+2*cb+(j>>1)} offset:{off+6}')
        for j in range(4): scat(0, j)
        scat(1, 3)
        e('s_mov_b32 exec_lo, 0x00ff00ff\ns_mov_b32 exec_hi, 0x00ff00ff')
        for j in range(3): scat(1, j)
        e('s_mov_b64 exec, -1')
        self.stamp('kgen2')
        XC = EG+8
        e(f's_waitcnt {self.wvm(id_e1)}\nL_e1chk:')
        for i in range(8): e(f'v_xor_b32 v{XC+i}, v{EG+i}, v{vTP+(i&1)}')
        e(f"""
        v_cmp_ne_u32 {sp(sBad)}, v{EG+19}, v2
        v_or3_b32 v92, v{XC}, v{XC+1}, v{XC+2}
        v_or3_b32 v93, v{XC+3}, v{XC+4}, v{XC+5}
        v_cmp_ne_u32 vcc, v{EG+23}, v2
        v_or3_b32 v92, v92, v{XC+6}, v{XC+7}
        s_or_b64 {sp(sBad)}, {sp(sBad)}, vcc
        v_bitop3_b32 v92, v92, v93, s{sTm} bitop3:0xa8
        v_cmp_ne_u32 vcc, 0, v92
        s_or_b64 {sp(sBad)}, {sp(sBad)}, vcc
        s_cbranch_scc1 L_e1retry""")
        self.tail.append(f"""L_e1retry:
        s_sub_u32 s{sCnt}, s{sCnt}, 1
        s_cbranch_scc1 L_end
        {e1_loads}
        s_waitcnt vmcnt(0)
        s_branch L_e1chk""")
        self.stamp('e1_ok')
        wd_pf2(3)
        if WGA == 3: wg_issue(8)
        wd_issue(self.opt('wd_h', 2))
        g0 = 28; HF = 96
        e(f"""
        v_add_f32 v{g0}, v{EG+16}, v{EG+20}
        v_add_f32 v{g0+1}, v{EG+17}, v{EG+21}
        v_add_f32 v{g0+2}, v{EG+18}, v{EG+22}
        v_mov_b32 v{g0+3}, 0""")
        unp = []
        for i in range(4):
            unp += [f'v_lshlrev_b32 v{HF+4*i}, 16, v{XC+2*i}', f'v_lshlrev_b32 v{HF+4*i+1}, 16, v{XC+2*i+1}',
                    f'v_and_b32 v{HF+4*i+2}, s{sMask}, v{XC+2*i}', f'v_and_b32 v{HF+4*i+3}, s{sMask}, v{XC+2*i+1}']
        self.reduce4(g0, g0+1, g0+2, g0+3, unp)
        unp = self.rest
        e(f"""
        v_cvt_pk_bf16_f32 v{g0}, v{g0}, v{g0}
        v_and_b32 v{g0}, s{sMask}, v{g0}
        v_add_f32 v{g0+1}, v{g0}, v{vOne}
        v_readlane_b32 s{sM+4}, v{g0}, 16
        v_readlane_b32 s{sM+5}, v{g0}, 17
        v_cvt_pk_bf16_f32 v{g0}, v{g0+1}, v{g0+1}
        v_and_b32 v{g0}, s{sMask}, v{g0}
        v_mul_f32 v{g0+3}, v{vBv}, v{g0}
        v_mul_f32 v{g0+1}, s{sM+4}, v{g0+3}
        v_mul_f32 v{g0+2}, s{sM+5}, v{g0+3}
        v_readlane_b32 s{sM}, v{g0+1}, 32
        v_readlane_b32 s{sM+1}, v{g0+1}, 0
        v_readlane_b32 s{sM+2}, v{g0+2}, 33
        v_readlane_b32 s{sM+3}, v{g0+2}, 1""")
        for x in unp: e(x)
        for i in range(4):
            for ch in range(2):
                h = HF+4*i+2*ch
                e(f'v_pk_fma_f32 {vr(h,2)}, {vr(h,2)}, {sp(sM+2*ch)}, {sp(sM+2*ch)} op_sel:[0,0,1] op_sel_hi:[1,0,1]')
            for ch in range(2):
                h = HF+4*i+2*ch
                e(f'v_cvt_pk_bf16_f32 v{g0+2+ch}, v{h}, v{h+1}\nds_write_b32 v{vUw}, v{g0+2+ch} offset:{ch*USZ+1024*i}')
        if WJN == -1:
            e(f's_waitcnt {self.wvm(idw[0])}')
            for x in wjob_ops(): wst[0] = e(x)
        e('s_waitcnt lgkmcnt(0)\ns_barrier')
        self.stamp('u_ready')
        ACC = 224; ZG = 12
        BR = [96,100,104,108,116,120,168,172,176,180,184,188]
        F1N = self.opt('f1n', 107)
        def f1_publish(): e(f's_waitcnt {self.wvm(wst[0])}\n' + self.flag_text(vF, sF1o))
        def rd2(d, va, o): return [f'ds_read2_b32 {vr(d,2)}, v{va} offset0:{o+6} offset1:{o+4}', f'ds_read2_b32 {vr(d+2,2)}, v{va} offset0:{o+2} offset1:{o}']
        def rq2(d, o0, o1): return [f'ds_read2_b32 {ar(d,2)}, v{vQ} offset0:{o0} offset1:{o0-2}', f'ds_read2_b32 {ar(d+2,2)}, v{vQ} offset0:{o1} offset1:{o1-2}']
        vPA1 = 68
        reads = {}
        for be_ in range(6): reads[('u', be_)] = (US+4*be_, [f'ds_read_b128 {vr(US+4*be_,4)}, v{vUS} offset:{512*be_}'])
        for jq in range(4):
            for J in range(2): reads[('a', jq, J)] = (AN+8*jq+4*J, rd2(AN+8*jq+4*J, vPA1 if J else vPA, 32*jq))
        reads[('x', 16)] = (AX, rd2(AX, vPX, 0)); reads[('x', 32)] = (AX+4, rd2(AX+4, vPX, 48))
        for d_ in (2,3,4): reads[('t2', d_)] = (T2+4*(d_-2), rq2(T2+4*(d_-2), 16*d_-28, 64+16*d_-28))
        for d_ in (4,5,6,7): reads[('t3', d_)] = (T3+4*(d_-4), rq2(T3+4*(d_-4), 128+16*d_-44, 128+16*d_-60))
        for m in range(8):
            for jq in range(4):
                r_ = BR[(4*m+jq) % len(BR)]
                reads[('b', m, jq)] = (r_, [f'ds_read_b128 {vr(r_,4)}, v{vUB} offset:{512*m+192-64*jq}'])
        ops = []
        S = lambda nm, be_: ops.append(('S', (nm, be_), ('u', be_), ('bnd', nm)))
        def near(m, Js):
            for jq in range(4):
                for J in Js: ops.append(('M', m+J, ('a', jq, J), ('b', m, jq)))
        def far(cb):
            ops.append(('M', cb, ('x', 16), ('u', cb-2)))
            if cb >= 4: ops.append(('M', cb, ('x', 32), ('u', cb-4)))
            for d_ in (4,3,2):
                if cb-d_ >= 0: ops.append(('M', cb, ('s2', cb-d_), ('t2', d_)))
            if cb >= 4: ops.append(('M', cb, ('s3', 0), ('t3', cb)))
            if cb >= 6: ops.append(('M', cb, ('s3', 1), ('t3', cb-2)))
        S('a',0); S('b',0); S('a',1); S('b',1)
        near(0,(0,1)); near(1,(0,1)); far(2); S('c',0); S('c',1); near(2,(0,1)); S('a',2); S('b',2); far(3); near(3,(0,))
        S('a',3); S('b',3); near(3,(1,)); far(4); near(4,(0,1)); far(5); near(5,(0,))
        S('a',4); S('b',4); S('c',2); S('c',3); near(5,(1,)); S('a',5); S('b',5); near(6,(0,1)); far(6); near(7,(0,)); far(7)
        assert len(ops) == 107
        def opreg(o):
            if o[0] == 'bnd': return BND + 4*'abc'.index(o[1])
            if o[0] == 's2': return SF2 + 4*o[1]
            if o[0] == 's3': return SF3 + 4*o[1]
            return reads[o][0]
        firstuse = {}; lastuse = {}; accdone = {}
        for n, (kd, dst, oa, ob) in enumerate(ops):
            for o in (oa, ob): firstuse.setdefault(o, n); lastuse[o] = n
            if kd == 'M': accdone[dst] = n
        rq = []
        for o in sorted(reads, key=lambda o: firstuse[o]):
            early = -1
            if o[0] == 'b' and 4*o[1]+o[2] >= len(BR):
                idx = 4*o[1]+o[2]-len(BR); early = lastuse[('b', idx//4, idx%4)] + 1
            for x in reads[o][1]: rq.append((early, o, x))
        rid = {}
        def popread():
            _, o, x = rq.pop(0); e(x)
            if not any(o2 == o for _, o2, _ in rq): rid[o] = self.nlg
        e(f'v_add_u32 v{vPA1}, 1024, v{vPA}')
        for _ in range(self.opt('cpre', 14)): popread()
        tq = 69
        fill = [f'v_readlane_b32 s{sM+6+n_}, v{g0}, {ln}' for n_, ln in enumerate([34,35,2,3,18,19])]
        fill += f"""v_and_b32 v{tq}, 3, v0
        s_pack_hh_b32_b16 s{sT}, s{sM+6}, s{sM+7}
        s_pack_hh_b32_b16 s{sT+1}, s{sM+8}, s{sM+9}
        s_pack_hh_b32_b16 s{sT+2}, s{sM+10}, s{sM+11}
        v_cmp_eq_u32 vcc, 1, v{tq}
        v_mov_b32 v{tq+1}, s{sT}
        v_mov_b32 v{tq+2}, s{sT+1}
        v_cndmask_b32 v{tq+1}, v{tq+1}, v{tq+2}, vcc
        v_cmp_eq_u32 vcc, 2, v{tq}
        v_mov_b32 v{tq+2}, s{sT+2}
        v_mov_b32 v{ZG+3}, v2
        v_cndmask_b32 v{ZG+2}, v{tq+1}, v{tq+2}, vcc
        v_mov_b32 v{ZG+7}, v2
        v_mov_b32 v{ZG+6}, v{ZG+2}""".split('\n')
        stages = {'ab': [(0,1),(2,),(3,)], 'a': [(0,1),(2,3)], 'b': [(0,1,2),(3,)], 'n': [(0,1,2,3)]}[self.opt('stages', 'ab')]
        YRS = [28, SD, SD+8, 36]
        wr_id = {}; cq = []; sq = []; sdone = {}; nsd = 0; stage = 0; done_w = 0; waited = 0
        zst = {}
        def stage_ops(sg, final):
            out = []
            regs = {i: (YRS[k_] if not (final and k_) else 72+8*k_) for k_, i in enumerate(sg)}
            for i in sg:
                for pw in range(4): out.append(('rd', i, f'ds_read_b64 {vr(regs[i]+2*pw,2)}, v{vYr} offset:{8192*pw+2048*i}'))
            for i in sg:
                y = regs[i]; zg = ZG + 4*(i & 1)
                out.append(('wait', i, None))
                if final:
                    out += [('v', i, f'v_pk_add_f32 {vr(y+4*ch,2)}, {vr(y+4*ch,2)}, {vr(y+4*ch+2,2)}') for ch in range(2)]
                else:
                    out += [('v', i, f'v_add_f32 v{y+4*ch+r}, v{y+4*ch+r}, v{y+4*ch+2+r}') for r in range(2) for ch in range(2)]
                out += [('v', i, f'v_cvt_pk_bf16_f32 v{zg+r}, v{y+r}, v{y+4+r}') for r in range(2)]
                out.append(('st', i, f'buffer_store_dwordx4 {vr(zg,4)}, v1, {SRD}, s{sZs+i} offen sc1'))
            return out
        y_id = {}; ride = [0]; pub = []
        def popstage():
            nonlocal waited
            kd, i, x = sq.pop(0)
            if kd == 'wait':
                e(f's_waitcnt {self.wlg(y_id[i])}'); waited = max(waited, y_id[i])
            else:
                r_ = e(x)
                if kd == 'rd': y_id[i] = self.nlg
                if kd == 'st':
                    zst[i] = r_
                    if not sq:
                        ride[0] = self.opt('ride', 0)
                        if F1N == 200 and not pub: f1_publish(); pub.append(1)
        seen = set(); hold = 0; accpos = {}; wj = []
        for n, (kd, dst, oa, ob) in enumerate(ops):
            for o in (oa, ob):
                while o in reads and o not in rid: popread()
                if o[0] in ('s2', 's3'):
                    while any(tg == o for _, tg, _ in cq): e(cq.pop(0)[2])
            need = max(rid.get(oa, 0), rid.get(ob, 0))
            if need > waited:
                e(f's_waitcnt {self.wlg(need)}'); waited = max(need, self.nlg - 14)
            if kd == 'S':
                d = SD + 4*(nsd % 4); nsd += 1
                while any(f'v{d},' in x or x.endswith(f'v{d+3}') for _, _, x in cq): e(cq.pop(0)[2])
                while any(k_ != 'st' for k_, _, _ in sq): popstage()
                e(f'v_mfma_f32_16x16x32_bf16 {vr(d,4)}, {vr(opreg(oa),4)}, {vr(opreg(ob),4)}, 0')
                nm, be_ = dst
                tg = ('s2', be_) if nm != 'c' else ('s3', be_ >> 1)
                o_ = opreg(tg) + (2*'ab'.index(nm) if nm != 'c' else 2*(be_ & 1))
                cq += [(len(p.text), tg, f'v_cvt_pk_bf16_f32 v{o_+j}, v{d+2*j}, v{d+2*j+1}') for j in range(2)]
            else:
                c_ = ar(ACC+4*dst,4) if dst in seen else '0'; seen.add(dst)
                e(f'v_mfma_f32_16x16x32_bf16 {ar(ACC+4*dst,4)}, {vr(opreg(oa),4)}, {(ar if ob[0][0] == "t" else vr)(opreg(ob),4)}, {c_}')
                if accdone[dst] == n: accpos[dst] = len(p.text)
            budget = 2
            if n == F1N: f1_publish(); budget = 0
            elif n % self.opt('wd_pace', 6) == 1 and self.opt('wd_first', 0) <= n <= self.opt('wd_last', 100) and len(wdq) > 8: wd_issue(1); budget = 1
            elif ride[0] > 0 and n % 2 == 0 and len(wdq) > 8: wd_issue(1); budget = 1; ride[0] -= 1
            if n == WJN: e(f's_waitcnt {self.wvm(idw[0])}'); wj = wjob_ops()
            if stage < len(stages)-1 and done_w > 2*stages[stage][-1]+1 and n >= wr_n + 3 and not sq:
                while fill: e(fill.pop(0))
                while cq and len(stages[stage]) > 1: e(cq.pop(0)[2])
                e(f's_waitcnt {self.wlg(wr_id[done_w-1])}\ns_barrier'); waited = max(waited, wr_id[done_w-1])
                sq = stage_ops(stages[stage], False); stage += 1; budget = 0
            while budget > 0:
                budget -= 1
                if rq and rq[0][0] <= n and firstuse[rq[0][1]] <= n + 8: popread()
                elif cq and len(p.text) - cq[0][0] >= 8: e(cq.pop(0)[2])
                elif done_w in accpos and len(p.text) - accpos[done_w] >= 8:
                    e(f'ds_write_b128 v{vYw}, {ar(ACC+4*done_w,4)} offset:{1024*done_w}'); wr_id[done_w] = self.nlg; wr_n = n; done_w += 1
                elif sq and not (sq[0][0] == 'wait' and hold > n):
                    if sq[0][0] == 'rd': hold = n + 4
                    popstage()
                elif fill: e(fill.pop(0))
                elif wj: wst[0] = e(wj.pop(0))
                elif rq and rq[0][0] <= n: popread()
        assert not rq and not cq and not wj and len(wdq) >= 8 and stage == len(stages)-1
        while sq: popstage()
        for x in fill: e(x)
        self.stamp('conv')
        while done_w < 8:
            e(f'ds_write_b128 v{vYw}, {ar(ACC+4*done_w,4)} offset:{1024*done_w}'); done_w += 1
        e('s_waitcnt lgkmcnt(0)\ns_barrier')
        sq = stage_ops(stages[-1], True)
        while sq: popstage()
        id_z = self.nvm
        if F1N == 107: f1_publish()
        self.stamp('z_stored')
        vP1 = 122
        e(f"""
        s_bfe_u32 s1, s{sL}, 0x30002
        s_lshr_b32 s0, s{sL}, 7
        s_lshl3_add_u32 s{sMt}, s0, s1
        s_bfe_u32 s0, s{sL}, 0x10005
        s_lshl1_add_u32 s{sTb}, s{sMt}, s0
        s_bfe_u32 s0, s{sL}, 0x20005
        s_and_b32 s1, s{sL}, 3
        s_lshl2_add_u32 s{sNt}, s0, s1
        s_mul_i32 s0, s{sNt}, 7
        s_lshr_b32 s0, s0, 2
        v_bfe_u32 v{t+1}, v0, 3, 3
        v_min_u32 v{t+1}, 2, v{t+1}
        v_add_u32 v{t+1}, s0, v{t+1}
        v_min_u32 v{t+1}, 27, v{t+1}
        v_and_b32 v{t+2}, 7, v0
        v_lshl_add_u32 v{t+1}, v{t+1}, 5, v{t+2}
        s_lshl_b32 s0, s{sW}, 10
        s_add_u32 s0, s0, {F1}
        v_lshl_add_u32 v{vP1}, v{t+1}, 7, s0""")
        f1_load = f'buffer_load_dword v{vPolled}, v{vP1}, {SRD}, 0 offen sc1'
        F1P = self.opt('f1p', 1)
        if F1P == 0: id_f1 = e(f1_load)
        e(f"""
        s_lshl_b32 s{sDmaL}, s{sW}, 13
        s_mul_i32 s{sDmaG}, s{sNt}, {7*32768}
        s_add_u32 s{sDmaG}, s{sDmaG}, s{sDmaL}
        s_add_u32 s{sDmaG}, s{sDmaG}, {WGU}""")
        dq = [(x, i) for i in range(4) for x in self.dma_tile(i,i)]
        dma_id = {}
        f1ok = [False]; maxt = [2]
        def bg_issue(n):
            for _ in range(n):
                if f1ok[0] and dq and (dq[0][1] <= 2 or not wdq and dq[0][1] <= maxt[0]):
                    x, i = dq.pop(0); dma_id[i] = e(x)
                else: wd_issue(1)
        def bg(name, nT, nL):
            v = self.opt(name, None)
            if v is not None: nT, nL = v // 100, v % 100
            done = 0
            for i in range(nT):
                k_ = (nL*(i+1) + nT-1)//nT - done; bg_issue(k_); done += k_
                tr_do(1)
            bg_issue(nL - done)
        bg('b_zack', 2, 6)
        XF = 36
        for r in range(2):
            for i in range(4):
                for x in self.unpack(XF+8*r+2*i, XR+4*r+i): e(x)
        vZ = 28; vH2 = 29; ZI = 72; vMsk = 30
        vP2 = 24; vXa = 25; vA2 = 26; vA4 = 27; vP3 = 23; vX2 = 22; vAc1 = 21; vC2 = 20
        c1 = -2*1.4426950408889634*0.7978845608028654; c2 = c1*0.044715
        e(f'''
        v_and_b32 v{t}, 0xfc, v0
        v_and_b32 v{t+2}, 0x30, v1
        s_movk_i32 s{sT}, {XBLK}
        v_mad_u32_u24 v{vZ}, v{t}, s{sT}, v{t+2}
        s_lshl_b32 s{sT}, s{sL}, 6
        s_add_u32 s{sT}, s{sT}, {ZY}
        s_add_u32 s{sT+1}, s{sT}, {XBLK}
        s_add_u32 s{sT+2}, s{sT}, {2*XBLK}
        s_add_u32 s{sT+3}, s{sT}, {3*XBLK}
        v_lshrrev_b32 v{t}, 3, v0
        v_and_b32 v{t+1}, 0x70, v1
        v_lshl_add_u32 v{vH2}, v{t}, 10, v{t+1}
        s_lshr_b32 s{sT+4}, s{sL}, 2
        s_lshl_b32 s{sT+4}, s{sT+4}, 7
        s_and_b32 s{sT+5}, s{sL}, 3
        s_add_u32 s{sT+4}, s{sT+4}, s{sT+5}
        s_lshl_b32 s{sT+4}, s{sT+4}, 8
        s_add_u32 s{sT+4}, s{sT+4}, {H2}
        s_mov_b32 s{sT+5}, {X2}
        v_mov_b32 v{vMsk}, s{sMask}
        s_lshl2_add_u32 s{sT+6}, s{sL}, s{sW}
        s_lshl_b32 s{sT+6}, s{sT+6}, 7
        s_add_u32 s{sT+6}, s{sT+6}, {F2}
        s_lshl2_add_u32 s0, s{sMt}, s{sW}
        s_lshl_b32 s{sT+7}, s0, 11
        s_add_u32 s{sT+7}, s{sT+7}, {F2}
        s_lshl_b32 s{sXg}, s0, 15
        s_add_u32 s{sXg}, s{sXg}, {H2}
        s_lshl4_add_u32 s0, s0, s{sNt}
        s_mul_i32 s0, s0, {7*1024}
        s_add_u32 s{sActS}, s0, {ACT}
        s_add_u32 s{sActS+1}, s0, {ACT+4096}
        s_add_u32 s{sF3o}, s{sT+6}, {F3-F2}
        s_and_b32 s0, s{sL}, 0x9c
        s_lshl_b32 s1, s{sW}, 5
        s_add_u32 s0, s0, s1
        s_and_b32 s1, s{sTb}, 1
        s_lshl1_add_u32 s0, s0, s1
        s_lshl_b32 s0, s0, 8
        s_add_u32 s{sF3p}, s0, {F3}
        s_lshl3_add_u32 s0, s{sTb}, s{sW}
        s_mul_i32 s0, s0, {28*1024}
        s_add_u32 s{sActG}, s0, {ACT}
        s_waitcnt {self.wvm(id_z)}''')
        self.stamp('_zack')
        if F1N == 108: f1_publish()
        z_loads = '\n'.join(f'buffer_load_dwordx4 {vr(ZI+4*i,4)}, v{vZ}, {SRD}, s{sT+i} offen sc1' for i in range(4))
        id_zl = e(z_loads)
        if F1P == 0:
            self.check(f1_load, [vPolled], id_f1); f1ok[0] = True
        elif F1P == 1: id_f1 = e(f1_load)
        bg('b_zld', 3, 0)
        bg('b_zld2', 0, 5)
        e(f'''
        v_and_b32 v{vP2}, 15, v0
        v_lshlrev_b32 v{vP2}, 7, v{vP2}
        v_bfe_u32 v{t}, v0, 2, 3
        v_bfe_u32 v{t+3}, v0, 5, 1
        v_lshl_add_u32 v{t+2}, v{t+3}, 6, v{t+2}
        v_lshl_add_u32 v{vXa}, v{t}, 7, v{t+2}
        v_add_u32 v{vA2}, 65536, v1
        v_add_u32 v{vA4}, 131072, v1
        v_add_u32 v{vAc1}, {112*1024}, v1
        v_mov_b32 v{vC2}, {fbits(c2)}
        v_bfe_u32 v{t}, v0, 1, 2
        v_and_b32 v{t+2}, 1, v0
        v_lshlrev_b32 v{t+2}, 7, v{t+2}
        v_lshl_add_u32 v{vP3}, v{t}, 9, v{t+2}
        v_bfe_u32 v{t}, v0, 3, 2
        v_lshl_add_u32 v{t}, v{t}, 1, v{t+3}
        v_lshl_add_u32 v{t}, v{t}, 10, v{t+1}
        s_lshl3_add_u32 s0, s{sTb}, s{sW}
        s_lshl_b32 s0, s0, 6
        s_add_u32 s0, s0, s{sDt}
        s_lshl_b32 s0, s0, 7
        v_add_u32 v{vX2}, s0, v{t}''')
        self.stamp('_zchk')
        self.check(z_loads, [ZI+3, ZI+7, ZI+11, ZI+15], id_zl)
        self.stamp('z_ok')
        if F1P == 1: self.check(f1_load, [vPolled], id_f1); f1ok[0] = True
        elif F1P == 2: id_f1 = e(f1_load)
        nl2 = [self.opt('b_ln2', 10)]
        def ln2bg(n=1):
            for _ in range(n):
                if nl2[0] > 0: bg_issue(1); nl2[0] -= 1
        ZF = 88
        for i in range(4):
            ln2bg()
            for r in range(2):
                for x in self.unpack(ZF+8*r+2*i, ZI+4*i+r): e(x)
            for r in range(2):
                z = ZF+8*r+2*i; x = XF+8*r+2*i
                e(f'v_pk_add_f32 {vr(x,2)}, {vr(x,2)}, {vr(z,2)}')
            for r in range(2):
                x = XF+8*r+2*i
                e(f'v_cvt_pk_bf16_f32 v{XR+4*r+i}, v{x}, v{x+1}')
        unp = [x for r in range(2) for i in range(4) for x in self.unpack(XF+8*r+2*i, XR+4*r+i)]
        self.stats_partial(XR, t, vSBw, unp)
        unp = self.rest
        ln2bg(2)
        for x in unp: e(x)
        e('s_waitcnt lgkmcnt(0)\ns_barrier')
        maxt[0] = 3
        self.stamp('_ln2bar')
        ST = 128
        self.stats_read(ST, vSBr)
        GBV = 12
        for i in range(4):
            ln2bg()
            for kind in range(2):
                d = ZF+8*kind+2*i
                qp = f'quad_perm:[{kind},{kind},{kind},{kind}] row_mask:0xf bank_mask:0xf'
                e(f'v_cvt_f32_bf16_dpp v{d}, v{ZI+4*i+2} {qp}\nv_and_b32_dpp v{d+1}, v{ZI+4*i+2}, v{vMsk} {qp}')
        e('s_waitcnt lgkmcnt(0)')
        self.stats_finish(ST, vInv)
        HO = 104
        for r in range(2):
            for i in range(4):
                x = XF+8*r+2*i
                e(f'v_pk_fma_f32 {vr(x,2)}, {vr(x,2)}, {vr(ST+2*r,2)}, {vr(ST+2*r,2)} op_sel:[0,0,1] op_sel_hi:[1,0,1]')
            for i in range(4):
                x = XF+8*r+2*i
                e(f'v_pk_fma_f32 {vr(x,2)}, {vr(x,2)}, {vr(ZF+2*i,2)}, {vr(ZF+8+2*i,2)}')
            for i in range(4):
                x = XF+8*r+2*i
                e(f'v_cvt_pk_bf16_f32 v{HO+4*r+i}, v{x}, v{x+1}')
            id_h = e(f'buffer_store_dwordx4 {vr(HO+4*r,4)}, v{vH2}, {SRD}, s{sT+4} offen offset:{128*r} sc1')
        self.stamp('h2_stored')
        for i in range(4): e(f'v_mov_b32 v{GBV+i}, v{ZI+4*i+2}')
        if F1P == 2: self.check(f1_load, [vPolled], id_f1); f1ok[0] = True
        bg('b_hack', 2, 6)
        e(f's_waitcnt {self.wvm(id_h)}')
        id_fl = e(self.flag_text(vF, sT+6))
        self.stamp('_h2_ack')
        bg('b_flag', 3, 8)
        while dq and dq[0][1] < 3:
            x, i = dq.pop(0); dma_id[i] = e(x)
        e(f's_waitcnt {self.wvm(id_fl)}')
        self.stamp('_flack')
        f2_load = f'buffer_load_dword v{vPolled}, v{vP2}, {SRD}, s{sT+7} offen sc1'
        id_f2 = e(f2_load)
        bg('b_f2', 2, 0)
        X = 128
        AC = [28, 44, 60, 76]
        WE = self.opt('we', 2); LA = 3 + WE; NB = LA + 2; WF = 92
        GT = 120; GO = 16; X2R = 4; vP4 = 24; vPo = 25; vPo4 = 3
        P1 = self.opt('p1', 25)
        if P1 == 25:
            seq = []
            for s in range(32):
                seq += [(0, s), (1, s)]
                if s & 1: seq.append((2, s >> 1))
            seq += [(2, s) for s in range(16, 32)]
        else:
            seq = [(tl, s) for s in range(32) for tl in range(P1)] + [(tl, s) for tl in range(P1,3) for s in range(32)]
        seq += [(tl, s) for tl in range(3,7) for s in range(32)]
        slot = {0:0,1:1,2:2,3:3,4:4,5:0,6:1}
        acc = {tl: AC[tl % 4] for tl in range(7)}
        w_id = {}
        def wread(n):
            tl, s = seq[n]; sl = slot[tl]
            va = {0:1,1:1,2:vA2,3:vA2,4:vA4}[sl]
            e(f'ds_read_b128 {vr(WF+4*(n%NB),4)}, v{va} offset:{(sl&1 if sl<4 else 0)*32768 + 1024*s}'); w_id[n] = self.nlg
        self.check(f2_load, [vPolled], id_f2)
        self.stamp('f2_ok')
        x_id = []
        def xload():
            s = len(x_id)
            x_id.append(e(f'buffer_load_dwordx4 {vr(X+4*s,4)}, v{vXa}, {SRD}, s{sXg} offen offset:{1024*(s&3)} sc1'))
            if s & 3 == 3 and s < 31: e(f's_add_u32 s{sXg}, s{sXg}, 4096')
        XLA = self.opt('xla', 10)
        for s in range(XLA): xload()
        bg('b_x', 2, 0)
        if self.o.get('verbose'): print('transposes left', 28-len(trd), 'wd left', len(wdq), 'dq left', len(dq))
        e(f"""
        v_mov_b32 v124, v{vWdA}
        v_and_b32 v{vP4}, 7, v0
        s_lshr_b32 s0, s{sDt}, 1
        s_lshl_b32 s1, s{sTb}, 5
        s_add_u32 s0, s0, s1
        s_lshl_b32 s0, s0, 7
        s_add_u32 s0, s0, {F3}
        v_lshl_add_u32 v{vP4}, v{vP4}, 9, s0
        s_waitcnt lgkmcnt(0)
        s_barrier""")
        wdq[:] = [(k_, x.replace(f'v{vWdA}', 'v124')) for k_, x in wdq]
        for n in range(LA): wread(n)
        f4_load = f'buffer_load_dword v{vPo4}, v{vP4}, {SRD}, 0 offen sc1'
        def gelu(tl):
            a = acc[tl]; out = []
            for hf in range(2):
                E = [a+4*hf+j for j in range(4)]
                out += [f'v_mul_f32 v{GT+j}, v{E[j]}, v{E[j]}' for j in range(4)]
                out += [f'v_fmaak_f32 v{GT+j}, v{GT+j}, v{vC2}, {fbits(c1)}' for j in range(4)]
                out += [f'v_mul_f32 v{GT+j}, v{GT+j}, v{E[j]}' for j in range(4)]
                for j in range(4): out += [f'v_exp_f32 v{GT+j}, v{GT+j}', f'v_mul_f32 v{E[j]+8}, v{E[j]+8}, v{E[j]}']
                for j in range(4): out += [f'v_add_f32 v{GT+j}, 1.0, v{GT+j}']
                for j in range(4): out += [f'v_rcp_f32 v{GT+j}, v{GT+j}']
                for j in range(4): out += [f'v_mul_f32 v{E[j]+8}, v{E[j]+8}, v{GT+j}']
                out += [f'v_cvt_pk_bf16_f32 v{GO+2*hf+j}, v{E[2*j]+8}, v{E[2*j+1]+8}' for j in range(2)]
            out.append(f'buffer_store_dwordx4 {vr(GO,4)}, v1, {SRD}, s{sActS+(tl>>2)} offen offset:{1024*(tl&3)} sc1')
            return [(x, tl) for x in out]
        last = {tl: max(n for n, (a_, _) in enumerate(seq) if a_ == tl) for tl in range(7)}
        first = {tl: min(n for n, (a_, _) in enumerate(seq) if a_ == tl) for tl in range(7)}
        gq = []; vq = list(dq) + [(x, 4) for x in self.dma_tile(4,4)]; st_id = {}; st_n = {}
        a_id = []; xfree = [0]; consumed = set()
        NAG = 8
        def areg(kk): return ar(224+4*kk, 4) if kk < NAG else vr(X+4*((kk-NAG) % 32), 4)
        def acan():
            kk = len(a_id)
            if not checked or kk >= gend[checked-1]: return False
            return kk < NAG or (kk-NAG < xfree[0] if kk-NAG < 32 else kk-32 in consumed)
        def aload():
            kk = len(a_id); T, tt = korder[kk >> 1], kk & 1
            if tt == 0: e(f's_add_u32 s{sActT}, s{sActG}, {T*1024}')
            a_id.append(e(f'buffer_load_dwordx4 {areg(kk)}, v{vAc1 if tt else 1}, {SRD}, s{sActT} offen sc1'))
        ACKD = self.opt('ackd', 20); VISD = [int(v) for v in str(self.opt('visd', '44_40_30_30')).split('_')]*4; POLD = self.opt('pold', 14)
        flagged = 0; polled = 0; checked = 0; flag_n = {}; poll_n = {}; poll_id = {}
        gend = [sum(len(g) for g in groups[:i+1])*8 for i in range(len(groups))]
        def f3load(g): return f's_add_u32 s0, s{sF3p}, {g*F3S}\nbuffer_load_dword v{vPo}, v{vP3}, {SRD}, s0 offen sc1'
        def do_flag(n):
            nonlocal flagged
            e(f's_add_u32 s0, s{sF3o}, {flagged*F3S}\ns_waitcnt {self.wvm(st_id[groups[flagged][-1]])}\n' + self.flag_text(vF, 0))
            flag_n[flagged] = n; flagged += 1
        def progress(n, force=None):
            nonlocal polled, checked
            did = False; fo = -1 if force is None else force
            if flagged < len(groups) and groups[flagged][-1] in st_id and (len(st_id) == 7 or not self.opt('adj', 1)) and \
               (n >= st_n[groups[flagged][-1]] + ACKD or fo >= flagged):
                do_flag(n); did = True
                if fo >= flagged-1: e(f's_waitcnt {self.wvm(self.nvm)}')
            if polled < flagged and polled == checked and (n >= flag_n[polled] + VISD[polled] or fo >= polled):
                poll_id[polled] = e(f3load(polled)); poll_n[polled] = n; polled += 1; did = True
            if checked < polled and (n >= poll_n[checked] + POLD or fo >= checked):
                self.check(f3load(checked), [vPo], poll_id[checked]); checked += 1; did = True
                self.stamp(f'_f3{checked-1}')
            return did
        def emit_g(x, b_, n):
            i_ = e(x)
            if x.startswith('buffer_'):
                if b_ == 0:
                    for r in range(2): i_ = e(f'buffer_store_dwordx4 {vr(XR+4*r,4)}, v{vXO}, {SRD}, s{sT+5} offen offset:{1024*r} sc1')
                if self.opt('adj', 1) and flagged < len(groups) and groups[flagged][-1] in st_id: do_flag(n)
                st_id[b_] = i_; st_n[b_] = n
        PACE = self.opt('pace', 25); nextv = [0]
        def pump(n):
            if 10*n < nextv[0]: return False
            if vq and (first[vq[0][1]] - n < self.opt('urg', 40) or not (acan() or wdq)):
                x, i = vq.pop(0); dma_id[i] = e(x)
            elif acan(): aload()
            elif wdq: wd_issue(1)
            else: return False
            nextv[0] = max(nextv[0], 10*n - 10) + PACE
            return True
        grate = self.opt('grate', 12); wwait = 0
        for n, (tl, s) in enumerate(seq):
            if n in (1, 48, 96, 128, 160, 192): self.stamp(f'_g{n}')
            for a_ in range(6):
                if n == last[a_] + 4: gq += gelu(a_)
            if n == last[1] + 1 and n > first[3] - LA:
                e('s_barrier'); vq += [(x, i) for i in (5,6) for x in self.dma_tile(i, i-5)]
            for a_ in range(3, 7):
                if n == first[a_] - LA:
                    while a_ not in dma_id or any(i == a_ for _, i in vq):
                        x, i = vq.pop(0); dma_id[i] = e(x)
                    e(f's_waitcnt {self.wvm(dma_id[a_])}\ns_barrier')
                    if a_ == 3 and n > last[1]: vq += [(x, i) for i in (5,6) for x in self.dma_tile(i, i-5)]
            w_ = ''
            if w_id[n] > wwait:
                tgt = w_id[min(n+WE-1, len(seq)-1)]; w_ = self.wlg(tgt); wwait = tgt
            if tl == 0: w_ = self.wvm(x_id[s]) + ' ' + w_
            if w_: e(f's_waitcnt {w_}')
            if s == 0: assert not any(b_ == tl-4 for _, b_ in gq), (n, len(gq))
            c_ = '0' if s == 0 else vr(acc[tl],16)
            e(f'v_mfma_f32_32x32x16_bf16 {vr(acc[tl],16)}, {vr(WF+4*(n%NB),4)}, {vr(X+4*s,4)}, {c_}')
            if tl == 6: xfree[0] = s
            if n + LA < len(seq): wread(n+LA)
            budget = (grate*(n+1))//3 - (grate*n)//3
            if progress(n): budget -= 2
            elif len(x_id) < 32:
                if tl == 0: xload()
                elif P1 == 3 and tl == 1 and s % 4 == 0: pump(n)
            else: pump(n)
            while gq and budget > 0:
                x, b_ = gq.pop(0); budget -= 1
                emit_g(x, b_, n)
        assert not vq
        self.stamp('g1_mfma')
        n = len(seq); xfree[0] = 32
        wd_issue(56)
        e(f"""
        v_and_b32 v{WF}, 3, v0
        v_cmp_eq_u32 vcc, 2, v{WF}
        v_and_b32 v{WF+1}, 0xfc, v0
        v_lshlrev_b32 v{WF+1}, 2, v{WF+1}
        v_add_u32 v{WF+1}, {L_GB}, v{WF+1}
        s_mov_b64 exec, vcc
        ds_write_b128 v{WF+1}, {vr(GBV,4)}
        s_mov_b64 exec, -1""")
        tq_ = [(T, x) for T in korder if T not in trd for x in tr_ops(T)]
        t_id = {}
        def poptr():
            T, x = tq_.pop(0)
            if wd_id[(T,1)] > trw[0]:
                trw[0] = wd_id[(T,1)]; e(f's_waitcnt {self.wvm(trw[0])}')
            e(x); t_id[T] = self.nlg
        cnt = 0
        for x, b_ in gq + gelu(6):
            emit_g(x, b_, n); cnt += 1
            if cnt % 6 == 0 and tq_: poptr()
            if cnt % 8 == 0:
                n += 1
                if not progress(n): pump(n)
        self.stamp('gelu6')
        A2 = 28
        vRw = 12; vRr = 13; vG = 14
        fill = f"""v_bfe_u32 v{WF}, v0, 5, 1
        v_and_b32 v{WF+1}, 0x1f0, v1
        s_mul_i32 s{sT}, s{sW}, {4*RQ}
        s_add_u32 s{sT}, s{sT}, {L_RED}
        v_mul_u32_u24 v{WF}, {RQ}, v{WF}
        v_add3_u32 v{vRw}, v{WF}, v{WF+1}, s{sT}
        v_and_b32 v{WF}, 7, v0
        v_lshrrev_b32 v{WF+1}, 3, v0
        v_mul_u32_u24 v{WF+2}, {RSA}, v{WF}
        v_lshl_add_u32 v{vRr}, v{WF+1}, 4, v{WF+2}
        v_add_u32 v{vRr}, {L_RED}, v{vRr}
        s_lshl_b32 s{sT}, s{sDt}, 7
        s_add_u32 s{sT}, s{sT}, {L_GB}
        v_lshl_add_u32 v{vG}, v{WF}, 4, s{sT}
        s_add_u32 s{sT+2}, s{pOut}, 32768
        s_addc_u32 s{sT+3}, s{pOut+1}, 0""".split('\n')
        fill[-2:] = ['\n'.join(fill[-2:])]
        XF2 = 96
        fill2 = [x for tt in range(2) for j in range(4) for x in self.unpack(XF2+8*tt+2*j, X2R+4*tt+j)]
        TAILK = self.opt('tailk', 6)
        o2 = [(kk, tt) for kk in range(28-TAILK) for tt in range(2)] + [(kk, tt) for tt in range(2) for kk in range(28-TAILK, 28)]
        PACE = self.opt('pace2', 20)
        wq = []; twait = 0; X2M = self.opt('x2m', 2)
        for m_, (kk, tt) in enumerate(o2):
            f = 2*kk + tt; T = korder[kk]
            if m_ in (0, 14, 28, 42): self.stamp(f'_h{m_}')
            if m_ == X2M: id_f4 = e(f4_load)
            if m_ == X2M + 10:
                self.check(f4_load, [vPo4], id_f4)
                id_x2l = e(f's_mov_b32 s0, {X2}\nbuffer_load_dwordx4 {vr(X2R,4)}, v{vX2}, {SRD}, s0 offen sc1\ns_mov_b32 s0, {X2+32768}\nbuffer_load_dwordx4 {vr(X2R+4,4)}, v{vX2}, {SRD}, s0 offen sc1')
            if m_ == 44:
                e(f's_waitcnt {self.wvm(id_x2l)}'); fill += fill2
            while len(a_id) <= f:
                g = min(i for i in range(len(groups)) if gend[i] > len(a_id))
                while checked <= g: progress(n, force=g)
                assert acan()
                aload()
            while acan() and len(a_id) < m_ + self.opt('amin', 8): aload(); nextv[0] = 10*n + PACE
            while any(T_ == T for T_, _ in tq_): poptr()
            w_ = self.wvm(a_id[f])
            if t_id.get(T, 0) > twait: w_ += ' ' + self.wlg(t_id[T]); twait = t_id[T]
            e(f's_waitcnt {w_}')
            for c in range(2):
                a = A2 + 32*tt + 16*c
                e(f'v_mfma_f32_32x32x16_bf16 {vr(a,16)}, {ar(8*T+4*c,4)}, {areg(f)}, {"0" if kk==0 else vr(a,16)}')
                n += 1
                if not progress(n): pump(n)
                if wq and len(p.text) - wpos >= 12:
                    e(wq.pop(0))
                    if wq: e(wq.pop(0))
                for _ in range(self.opt('trate', 2) - c):
                    if tq_: poptr()
                for _ in range(2):
                    if fill: e(fill.pop(0))
            consumed.add(f)
            if m_ == 55-TAILK:
                wq = [f'ds_write_b128 v{vRw}, {vr(A2+16*c+4*i,4)} offset:{(4*c+i)*RSA}' for c in range(2) for i in range(4)]; wpos = len(p.text)
        assert not fill and not tq_
        self.stamp('g2_mfma')
        for x in wq: e(x)
        for c in range(2):
            for i in range(4): e(f'ds_write_b128 v{vRw}, {vr(A2+32+16*c+4*i,4)} offset:{2*RQ+(4*c+i)*RSA}')
        e('s_waitcnt lgkmcnt(0)\ns_barrier')
        GF = 112; RD = 128; r_id = []
        e(f'ds_read_b128 {vr(GF+8,4)}, v{vG}'); g_id = self.nlg
        e(f'v_add_u32 v{vRw}, {8*RQ}, v{vRr}')
        for q_ in range(4):
            for w in range(4):
                e(f'ds_read_b128 {vr(RD+16*q_+4*w,4)}, v{vRr if w<2 else vRw} offset:{(4*(w&1)+q_)*RQ}')
            r_id.append(self.nlg)
            if q_ == 2:
                e(f's_waitcnt {self.wlg(g_id)}')
                for j in range(4): e('\n'.join(self.unpack(GF+2*j, GF+8+j)))
        OO = 28
        for tt in range(2):
            for c in range(2):
                q_ = 2*tt+c; r = RD+16*q_
                e(f's_waitcnt {self.wlg(r_id[q_])}')
                for hh in range(2):
                    e(f'v_pk_add_f32 {vr(r+2*hh,2)}, {vr(r+2*hh,2)}, {vr(r+4+2*hh,2)}\nv_pk_add_f32 {vr(r+8+2*hh,2)}, {vr(r+8+2*hh,2)}, {vr(r+12+2*hh,2)}')
                for hh in range(2):
                    e(f'v_pk_add_f32 {vr(r+2*hh,2)}, {vr(r+2*hh,2)}, {vr(r+8+2*hh,2)}')
                for hh in range(2):
                    e(f'v_pk_fma_f32 {vr(r+2*hh,2)}, {vr(r+2*hh,2)}, {vr(GF+4*c+2*hh,2)}, {vr(XF2+8*tt+4*c+2*hh,2)}')
            for j in range(4):
                r = RD+32*tt+16*(j>>1)+2*(j&1); e(f'v_cvt_pk_bf16_f32 v{OO+4*tt+j}, v{r}, v{r+1}')
            e(f'global_store_dwordx4 v{vX2}, {vr(OO+4*tt,4)}, {sp(pOut) if tt==0 else sp(sT+2)} {self.opt("outflag","sc1").replace("_"," ").replace("none","")}')
        self.stamp('end')
        e(f'''
        s_or_b32 s0, s{sL}, s{sW}
        s_cbranch_scc1 L_noep''')
        e(self.flag_text(vF, 0))
        e('L_noep:')
        if self.stamps:
            e(f'''
            s_lshl2_add_u32 s{sT}, s{sL}, s{sW}
            s_lshl_b32 s{sT}, s{sT}, 7
            s_add_u32 s{sT}, s{sT}, {STMP}
            v_mov_b32 v4, 0
            s_mov_b64 exec, 1''')
            for i in range(self.ns):
                e(f'v_mov_b32 v5, s{sStamp+i}\nbuffer_store_dword v5, v4, {SRD}, s{sT} offen offset:{4*i}')
            e(f'v_mov_b32 v5, s{sCnt}\nbuffer_store_dword v5, v4, {SRD}, s{sT} offen offset:124')
        if self.o.get('probe') is not None:
            kk = self.stamp_names.index(self.o['probe'])
            e(f'''
            s_add_u32 s{sT}, s{sStamp+kk}, 5000
            L_spin:
            s_sleep 1
            s_memrealtime s[22:23]
            s_waitcnt lgkmcnt(0)
            s_sub_u32 s{sT+1}, s22, s{sT}
            s_cmp_lt_i32 s{sT+1}, 0
            s_cbranch_scc1 L_spin''')
        e('s_endpgm')
        for x in self.tail: e(x)
        e('L_end:\ns_endpgm')
        p.end(k, vgpr=256, agpr=256, sgpr=102)
        p.text, added = hazard.fix(p.text, verbose=self.o.get('verbose'))
        p.text += ['.p2align 8', 'L_tab:'] + ['.long ' + ', '.join(hex(v) for v in self.table[i:i+16]) for i in range(0, len(self.table), 16)]
        return added

if __name__ == '__main__':
    ap = argparse.ArgumentParser()
    ap.add_argument('out'); ap.add_argument('--stamps', action='store_true'); ap.add_argument('-v', action='store_true')
    ap.add_argument('--probe', default=None); ap.add_argument('-o', action='append', default=[])
    a = ap.parse_args()
    opts = dict(verbose=a.v, probe=a.probe)
    for kv in a.o:
        kk, vv = kv.split('='); opts[kk] = int(vv) if vv.lstrip('-').isdigit() else vv
    g = G(a.stamps or a.probe is not None, opts)
    added = g.build()
    g.p.dump(a.out, single=True)
    n = sum(1 for l in g.p.text if l.startswith('  '))
    print(a.out, 'instructions', n, 'nops added', added, 'stamps', g.stamp_names)
    if a.stamps: open(a.out + '.names', 'w').write(' '.join(g.stamp_names))
```

```python
import sys, struct, argparse
from asmlib import Prog, NAME
import hazard, align

def fbits(x): return '0x%08x' % struct.unpack('<I', struct.pack('<f', x))[0]

F1   = 0x0C0000
F2   = 0x020000
F3   = 0x040000
F3S  = 0x020000
MODP = 0x0E0000
MX   = 0x008000
TAGZ = 0x40004000
HBLK = 8448
TAGM = 0x70007000
XH   = 0x160000
ZY   = 0x380000
H2   = 0x5A0000
X2   = 0x7A0000
WGU  = 0x9A0000
ACT  = 0xD20000
STMP = 0x3000000
WS_BYTES = 0x10000000
S4   = 131072
L_U  = S4; USZ = 4608
L_P  = S4 + 2*USZ; PSZ = 4288
L_ZB = L_P + 2*PSZ
L_JK = L_ZB + 1024
L_BD = L_P + 12288
L_SB = L_BD + 1024
L_TS = L_SB + 256; TIMG = 1152
L_Y  = 98304
L_MB = 98304
RST  = 544
L_RC = 0; RCSZ = 54*RST
L_RED = 65536; RSA = 576; RQ = 8*RSA
L_GB = L_RED + 16*RQ
LDS_BYTES = 163840
pX,pAre,pAim,pBre,pBim,pCre,pCim,pLdt = 4,6,8,10,12,14,16,18
pD,pWg,pWu,pWd,pC,pWm,pOut,pWs = 20,24,26,28,30,32,34,38
SRD='s[40:43]'
sL,sW,sTag,sMask,sCnt = 44,45,46,47,48
sLo,sHi = 49,50
sOnes = 51
sMt,sNt,sTb,sDt = 52,53,54,55
sBad = 56
sT = 58
sM = 68
sDsk = 80
sStamp = 82
sDmaL, sDmaG, sDmaT = 4, 5, 6
sActG, sActT = 9, 10
sActS = 12
sF3o, sF3p = 14, 15
sXg = 16
sCh, sHb = 17, 18
sE1 = 4
sZs = 10
sTm = 25
sWs, sF1o = 14, 24
def sp(i): return f's[{i}:{i+1}]'
def vr(i, n): return f'v[{i}:{i+n-1}]'
def ar(i, n): return f'a[{i}:{i+n-1}]'

class G:
    def __init__(self, stamps=False, opts=None):
        self.p = Prog(); self.stamps = stamps; self.ns = 0; self.o = opts or {}
        self.stamp_names = []; self.nvm = 0; self.nlg = 0; self.tail = []; self.maybe = False
    def opt(self, k, d): return self.o.get(k, d)
    def e(self, s):
        for line in s.split('\n'):
            l = line.strip()
            if not l: continue
            if l.startswith(('buffer_', 'global_')) and not self.maybe: self.nvm += 1
            if l.startswith('ds_') and not self.maybe: self.nlg += 1
            self.p.e(l)
        return self.nvm
    def wvm(self, i): return f'vmcnt({min(62, self.nvm - i)})'
    def wlg(self, i): return f'lgkmcnt({min(14, self.nlg - i)})'
    def stamp(self, name):
        if not self.stamps: return
        if self.o.get('probe') is not None and name != self.o['probe']: return
        if self.o.get('only') and not (name == 'start' or name.startswith(tuple(self.o['only'].split(',')))): return
        if not self.o.get('only') and self.o.get('probe') is None and name.startswith('_'): return
        assert self.ns < 20
        self.e(f'{"s_memtime" if self.opt("cyc", 0) else "s_memrealtime"} s[22:23]\ns_waitcnt lgkmcnt(0)\ns_mov_b32 s{sStamp+self.ns}, s22')
        self.ns += 1; self.stamp_names.append(name)

    def check_text(self, loads, tags, last):
        Lc = self.p.label('chk'); Lr = self.p.label('retry')
        s = f's_waitcnt {self.wvm(last)}\n{Lc}:\n'
        if len(tags) == 1:
            s += f'v_cmp_ne_u32 vcc, v{tags[0]}, v2\ns_cmp_lg_u64 vcc, 0\ns_cbranch_scc1 {Lr}'
            self.tail.append(f'''{Lr}:
            s_sub_u32 s{sCnt}, s{sCnt}, 1
            s_cbranch_scc1 L_end
            {loads}
            s_waitcnt vmcnt(0)
            s_branch {Lc}''')
        else:
            s += f'v_cmp_ne_u32 {sp(sBad)}, v{tags[0]}, v2\n'
            for t in tags[1:]: s += f'v_cmp_ne_u32 vcc, v{t}, v2\ns_or_b64 {sp(sBad)}, {sp(sBad)}, vcc\n'
            s += f's_cbranch_scc1 {Lr}'
            self.tail.append(f'''{Lr}:
            s_sub_u32 s{sCnt}, s{sCnt}, 1
            s_cbranch_scc1 L_end
            s_mov_b64 exec, {sp(sBad)}
            {loads}
            s_mov_b64 exec, -1
            s_waitcnt vmcnt(0)
            s_branch {Lc}''')
        return s
    def check(self, loads, tags, last): self.e(self.check_text(loads, tags, last))

    def flag_text(self, vaddr, soff):
        return f's_mov_b32 exec_hi, 0\nbuffer_store_dword v2, v{vaddr}, {SRD}, s{soff} offen sc1\ns_mov_b32 exec_hi, -1'

    def stats_partial(self, src, t, vSBw, fill=()):
        a,b,c,d = t,t+1,t+2,t+3
        for m in range(4):
            acc = lambda r: '0' if m == 0 else f'v{r}'
            self.e(f'''v_dot2_f32_bf16 v{a}, v{src+m}, s{sOnes}, {acc(a)}
            v_dot2_f32_bf16 v{b}, v{src+4+m}, s{sOnes}, {acc(b)}
            v_dot2_f32_bf16 v{c}, v{src+m}, v{src+m}, {acc(c)}
            v_dot2_f32_bf16 v{d}, v{src+4+m}, v{src+4+m}, {acc(d)}''')
        self.reduce4(a,b,c,d, fill)
        self.e(f'ds_write_b32 v{vSBw}, v{a}')
    def reduce4(self, a,b,c,d, fill=()):
        fill = list(fill)
        def f(n):
            for _ in range(n):
                if fill: self.e(fill.pop(0))
        f(2); self.e(f'v_permlane32_swap_b32 v{a}, v{b}\nv_permlane32_swap_b32 v{c}, v{d}\nv_add_f32 v{a}, v{a}, v{b}\nv_add_f32 v{c}, v{c}, v{d}')
        f(2); self.e(f'v_permlane16_swap_b32 v{a}, v{c}\nv_add_f32 v{a}, v{a}, v{c}')
        f(2); self.e(f'v_add_f32_dpp v{a}, v{a}, v{a} row_ror:4 row_mask:0xf bank_mask:0xf')
        f(2); self.e(f'v_add_f32_dpp v{a}, v{a}, v{a} row_ror:8 row_mask:0xf bank_mask:0xf')
        self.rest = fill
    def stats_read(self, t, vSBr):
        for w in range(4): self.e(f'ds_read_b128 {vr(t+4*w,4)}, v{vSBr} offset:{16*w}')
        return self.nlg
    def stats_finish(self, t, vInv, scale=None, pre=None):
        self.e(f'''
        v_pk_add_f32 {vr(t,2)}, {vr(t,2)}, {vr(t+4,2)}
        v_pk_add_f32 {vr(t+2,2)}, {vr(t+2,2)}, {vr(t+6,2)}
        v_pk_add_f32 {vr(t+8,2)}, {vr(t+8,2)}, {vr(t+12,2)}
        v_pk_add_f32 {vr(t+10,2)}, {vr(t+10,2)}, {vr(t+14,2)}
        v_pk_add_f32 {vr(t,2)}, {vr(t,2)}, {vr(t+8,2)}
        v_pk_add_f32 {vr(t+2,2)}, {vr(t+2,2)}, {vr(t+10,2)}
        v_pk_mul_f32 {vr(t+4,2)}, {vr(t,2)}, {vr(vInv,2)} op_sel_hi:[1,0]
        v_pk_mul_f32 {vr(t+6,2)}, {vr(t+2,2)}, {vr(vInv,2)} op_sel_hi:[1,0]
        v_fma_f32 v{t+5}, -v{t+4}, v{t+4}, v{t+5}
        v_fma_f32 v{t+7}, -v{t+6}, v{t+6}, v{t+7}
        v_max_f32 v{t+5}, 0, v{t+5}
        v_max_f32 v{t+7}, 0, v{t+7}
        {f'v_fmamk_f32 v{t+5}, v{t+5}, {fbits(pre)}, v{vInv+1}' if pre else f'v_add_f32 v{t+5}, v{vInv+1}, v{t+5}'}
        {f'v_fmamk_f32 v{t+7}, v{t+7}, {fbits(pre)}, v{vInv+1}' if pre else f'v_add_f32 v{t+7}, v{vInv+1}, v{t+7}'}
        v_rsq_f32 v{t}, v{t+5}
        v_rsq_f32 v{t+2}, v{t+7}''')
        if scale: self.e(f'v_mul_f32 v{t}, {fbits(scale)}, v{t}\nv_mul_f32 v{t+2}, {fbits(scale)}, v{t+2}')
        self.e(f'''
        v_mul_f32 v{t+1}, -v{t+4}, v{t}
        v_mul_f32 v{t+3}, -v{t+6}, v{t+2}''')
    def cmul(self, d, a, b):
        return [f'v_pk_mul_f32 {vr(d,2)}, {vr(a,2)}, {vr(b,2)} op_sel_hi:[1,0]',
                f'v_pk_fma_f32 {vr(d,2)}, {vr(a,2)}, {vr(b,2)}, {vr(d,2)} op_sel:[1,1,0] op_sel_hi:[0,1,1] neg_lo:[1,0,0]']
    def unpack(self, d, s): return [f'v_lshlrev_b32 v{d}, 16, v{s}', f'v_and_b32 v{d+1}, s{sMask}, v{s}']

    def dma_tile(self, i, slot):
        out = []
        for hf in range(2):
            for e_ in range(4):
                pre = ''
                if e_ == 0:
                    pre = (f's_add_u32 m0, s{sDmaL}, {slot*32768 + hf*4096}\n'
                           f's_add_u32 s{sDmaT}, s{sDmaG}, {i*32768 + hf*4096}\n')
                out.append(pre + f'buffer_load_dwordx4 v1, {SRD}, s{sDmaT} offen offset:{e_*1024} sc1 lds')
        return out

    def build(self):
        p = self.p; e = self.e
        k = NAME + '_kernel'
        p.add_launch(k, 256, 256, LDS_BYTES)
        p.begin(k)
        XR = 4; WM = 12; AB = 28; WG = 36
        vXO = 3; t = 68
        vTg = 252; vWgL = 35; vTab = 97; vPf = 255; vInv = 52; vDt = 34; vS = 54; vPolled = 123; vMBw = 72
        vSBw, vSBr, vMBr, vEM = 112, 113, 114, 115
        vRW, vKa, vKb0, vKb1 = 116, 117, 118, 119
        vWgS, vTw, vTr, vF = 124, 125, 126, 127
        vEX, vWdA, vBv, vOne = 64, 65, 66, 67
        vKw0, vKw1, vBd, vBd2 = 120, 121, 122, 123
        vPA, vPX, vQ, vUS = 56, 57, 58, 59
        vYw, vYr, vUB, vUw = 60, 61, 62, 63
        TP = 160; TB = 98304
        def consts(tid):
            w, l = tid >> 6, tid & 63; ch, hb = w >> 1, w & 1; c, q_, rp = l & 15, l >> 4, l & 3
            P = L_P + ch*PSZ; U = L_U + ch*USZ; RC = L_RC + ch*RCSZ
            lo, wd = [(3,3),(6,5),(5,7),(4,9)][w]
            x = l - 16 - lo
            band = (0x3f80 if 0 <= x < wd else 0) | (0x3f800000 if 0 <= x-1 < wd else 0)
            if c < 8: kw1 = P + 4*(608 + 16*[1,5,2,6,10,11,12,13][c] + 8*hb + 2*q_)
            elif 120 <= (tid & 127) < 125: kw1 = P + 4*((520 if c < 11 else 568) + c) - 932
            else: kw1 = L_JK
            sw = (((l >> 1) & 3) ^ q_) * 16
            TS = L_TS + w*2*TIMG
            full = [(tid >> 2)*HBLK + rp*16, (448*w + 16*(l>>5) + 4*((l>>3)&3))*1024 + (l&7)*16, band, 0x3f800000 if q_ == 2 else 0]
            half = {vSBw: L_SB + rp*64 + w*16 + q_*4, vSBr: L_SB + rp*64,
              vMBr: L_MB + 4*(192*((l>>1)&1) + 2*(8*w + ((l>>2)&7)) + (l&1)), vMBw: L_MB + 32*tid,
              vRW: RC + 4*(tid & 127), vKa: RC + (16*hb + c)*RST + 16*q_,
              vKb0: RC + [0,1,2,3,4,5,6,7,8,8,9,10,10,10,11,12][c]*RST + 16*q_, vKb1: RC + [1,2,3,4,5,6,7,8,0,0,0,4,4,0,0,0][c]*RST + 16*q_,
              vTw: TS + ((l>>2)&1)*576 + (l>>5)*256 + ((l>>3)&3)*64 + (l&3)*16, vTr: TS + (l>>5)*256 + ((l>>2)&3)*64 + ((l>>4)&1)*32 + (l&3)*8,
              vEM: (l >> 2)*2048 + rp*16, vWgS: q_*512 + c*16,
              vKw0: P + 64 + 512*hb + 4*((c&7) + 256*(c>>3) + 32*q_), vKw1: kw1,
              vBd: L_BD + 4*(26 + c - 8*q_), vBd2: L_BD + 4*(26 + c - 8*q_) + 256*hb,
              vPA: P + 512*hb + 4*(26 + c - 8*q_), vPX: (P + 2048 if hb == 0 else L_ZB) + 4*(26 + c - 8*q_),
              vQ: P + 4*(608 + 12 + c - 4*q_) + 928*hb, vUS: U + 32*c + 16*q_ + 480 - 16*hb,
              vYw: L_Y + w*8192 + c*64 + sw, vYr: L_Y + (tid >> 2)*64 + (((rp >> 1) ^ ((tid >> 3) & 3))*16) + (rp & 1)*8, vUB: U + 32*c + 16*q_ + 288 - 256*hb, vUw: L_U + 512 + 4*tid}
            return full, half
        hregs = list(consts(0)[1]); assert len(hregs) == 24
        hbase = {r: (TB if consts(0)[1][r] >= TB else 0) for r in hregs}
        def trow(tid):
            full, half = consts(tid)
            h = [half[r] - hbase[r] for r in hregs]; assert all(0 <= v < 65536 for v in h)
            return [h[2*i] | h[2*i+1] << 16 for i in range(12)] + full
        self.table = [v for qd in range(4) for tid in range(256) for v in trow(tid)[4*qd:4*qd+4]]
        def tunpack():
            out = []
            for i, r in enumerate(hregs):
                b_ = f's{sT+9}' if hbase[r] else '0'
                out.append(f'v_add_u32_sdwa v{r}, {b_}, v{TP+(i>>1)} dst_sel:DWORD dst_unused:UNUSED_PAD src0_sel:DWORD src1_sel:WORD_{i&1}')
            return out
        MAP2 = self.opt('map2', 84)
        groups = [tuple(int(c) for c in g) for g in str(self.opt('groups', '0_1_2_3_4_5_6')).split('_')]
        korder = [7*pp + i for g in groups for pp in range(4) for i in g]
        wdq = []
        for Gl in range(7):
            for jh in range(2):
                for c in range(4):
                    wdq.append(((4*Gl+c, jh), f'global_load_dwordx4 {ar(8*(4*Gl+c)+4*jh,4)}, v{vWdA}, {sp(pWd)} offset:{1024*c}' +
                               (f'\nv_add_u32 v{vWdA}, 32768, v{vWdA}' if c == 3 and (Gl, jh) != (6, 1) else '')))
        wd_id = {}
        def wd_issue(n):
            for _ in range(n):
                if wdq:
                    key, x = wdq.pop(0); wd_id[key] = e(x) if not self.opt('nowd', 0) else 1
        trn = [0]; trw = [0]; trd = set()
        def tr_ops(T):
            return [f'ds_write_b128 v{vTw}, {ar(8*T,4)}', f'ds_write_b128 v{vTw}, {ar(8*T+4,4)} offset:{TIMG}'] + \
                   [f'ds_read_b64_tr_b16 {ar(8*T+4*c+2*jh,2)}, v{vTr} offset:{576*c+TIMG*jh}' for c in range(2) for jh in range(2)]
        def tr_do(n):
            for _ in range(n):
                todo = [T_ for T_ in korder if T_ not in trd and (T_, 1) in wd_id and wd_id[(T_, 1)] <= self.nvm - self.opt('trlag', 8)]
                if not todo: return
                T = todo[0]; trd.add(T)
                if wd_id[(T,1)] > trw[0]:
                    trw[0] = wd_id[(T,1)]; e(f's_waitcnt {self.wvm(trw[0])}')
                if not self.opt('notr', 0):
                    for x in tr_ops(T): e(x)
                trn[0] += 1
        e(f"""
        s_load_dwordx16 s[4:19], s[0:1], 0
        s_load_dwordx16 s[20:35], s[0:1], 64
        s_load_dwordx4 s[36:39], s[0:1], 128
        s_cmp_ge_u32 s2, 256
        s_cbranch_scc1 L_end
        v_lshrrev_b32 v{t}, 6, v0
        v_and_b32 v{t+1}, 63, v0
        v_readfirstlane_b32 s{sW}, v{t}
        s_lshr_b32 s3, s2, 3
        s_getpc_b64 {sp(sM)}
        L_pc:
        s_lshl2_add_u32 s{sT}, s3, s{sW}
        s_lshl_b32 s{sM+2}, s{sT}, 8
        s_min_u32 s{sM+2}, s{sM+2}, L_end-L_pc-256
        v_lshl_add_u32 v{t+7}, v{t+1}, 2, s{sM+2}
        global_load_dword v123, v{t+7}, {sp(sM)}
        s_add_u32 s{sM+4}, s{sM}, L_tab-L_pc+4096
        s_addc_u32 s{sM+5}, s{sM+1}, 0
        v_lshlrev_b32 v{vTab}, 4, v0""")
        id_tab = e(f"""
        global_load_dwordx4 {vr(TP,4)}, v{vTab}, {sp(sM+4)} offset:-4096
        global_load_dwordx4 {vr(TP+4,4)}, v{vTab}, {sp(sM+4)}
        v_add_u32 v{vTab}, 8192, v{vTab}
        global_load_dwordx4 {vr(TP+8,4)}, v{vTab}, {sp(sM+4)} offset:-4096
        global_load_dwordx4 {vr(vEX,4)}, v{vTab}, {sp(sM+4)}""")
        e(f"""
        s_and_b32 s{sT+1}, s2, 7
        s_lshl_b32 s{sL}, s{sT+1}, 5
        s_or_b32 s{sL}, s{sL}, s3
        v_lshlrev_b32 v1, 4, v{t+1}
        v_and_b32 v{t+2}, 3, v0
        v_and_b32 v{t+3}, 0xfc, v0
        s_lshl_b32 s{sT+3}, s{sL}, 13
        v_lshl_add_u32 v{t+3}, v{t+3}, 2, s{sT+3}
        v_lshl_add_u32 v{vXO}, v{t+2}, 11, v{t+3}
        v_lshrrev_b32 v{t+4}, 3, v{t+1}
        v_min_u32 v{t+4}, 5, v{t+4}
        v_and_b32 v{t+5}, 0x70, v1
        v_lshl_add_u32 v{t+4}, v{t+4}, 10, v{t+5}
        s_lshl_b32 s{sT+2}, s{sT}, 3
        s_mul_i32 s{sT}, s{sT}, {4*6144}
        s_lshl_b32 s{sT+1}, s{sT+1}, 7
        s_add_u32 s{sT}, s{sT}, s{sT+1}
        s_add_u32 s{sT}, s{sT}, 3072
        v_add_u32 v{t+4}, s{sT}, v{t+4}
        v_add_u32 v{t+5}, 12288, v{t+4}
        s_lshl_b32 s{sT}, s{sL}, 9
        v_lshl_add_u32 v{t+6}, v0, 1, s{sT}
        s_lshl_b32 s{sT+3}, s{sL}, 2
        """)
        for i in range(6): e(f'v_mov_b32 v{AB+i}, 0')
        e('s_waitcnt lgkmcnt(0)')
        self.stamp('start')
        e(f"""
        s_load_dwordx2 {sp(sT+4)}, {sp(pC)}, s{sT+2}
        global_load_dwordx4 {vr(XR,4)}, v{vXO}, {sp(pX)}""")
        id_x = e(f'global_load_dwordx4 {vr(XR+4,4)}, v{vXO}, {sp(pX)} offset:1024')
        id_ep = e(f"""
        s_load_dword s{sT+6}, {sp(pLdt)}, s{sT+3}
        s_load_dword s{sDsk+1}, {sp(pD)}, s{sT+3}
        global_load_dword v2, v{AB}, {sp(pWs)} sc1""")
        for i, ptr in enumerate([pAre,pAim,pBre,pBim,pCre,pCim]):
            id_ab = e(f'global_load_short_d16_hi v{AB+i}, v{t+6}, {sp(ptr)}')
        idm = [0]
        def wm_issue(k_):
            if self.opt('wmat', 1) == k_: idm[0] = e(f"""
            global_load_dwordx4 {vr(WM,4)}, v{t+4}, {sp(pWm)} offset:-3072
            global_load_dwordx4 {vr(WM+4,4)}, v{t+4}, {sp(pWm)} offset:3072
            global_load_dwordx4 {vr(WM+8,4)}, v{t+5}, {sp(pWm)} offset:-3072
            global_load_dwordx4 {vr(WM+12,4)}, v{t+5}, {sp(pWm)} offset:3072""")
        wm_issue(0)
        GR = 144
        u = 92
        e(f"""
        s_mov_b32 s{sMask}, 0xffff0000
        s_mov_b32 s{sLo}, 0x05040100
        s_mov_b32 s{sHi}, 0x07060302
        s_mov_b32 s{sOnes}, 0x3f803f80
        v_mov_b32 v{t+12}, {fbits(-1.4426950408889634)}
        s_add_u32 s{sT+7}, s{sT+3}, s{sW}
        s_min_u32 s{sT}, s{sT+7}, 895
        v_and_b32 v{t+8}, 15, v{t+1}
        s_lshl_b32 s{sT+1}, s{sT}, 11
        v_lshl_add_u32 v{vPf}, v{t+8}, 7, s{sT+1}
        s_mov_b64 s[0:1], {sp(pWd)}
        s_bitcmp1_b32 s{sT}, 0
        s_cselect_b32 s{pWu}, s{pWu}, s{pWg}
        s_cselect_b32 s{pWu+1}, s{pWu+1}, s{pWg+1}
        s_cselect_b32 s{sWs}, 256, 0
        s_bfe_u32 s{sT+1}, s{sT}, 0x40001
        s_lshr_b32 s{sT+2}, s{sT}, 5
        s_mul_i32 s{sT+8}, s{sT+1}, {32*3584}
        s_lshl_b32 s{sT+3}, s{sT+2}, 7
        s_add_u32 s{sT+8}, s{sT+8}, s{sT+3}
        v_lshrrev_b32 v{t+7}, 4, v{t+1}
        v_mul_u32_u24 v{t+7}, {8*3584}, v{t+7}
        v_lshl_add_u32 v{t+10}, v{t+8}, 3, s{sT+8}
        v_add_u32 v{vWgL}, v{t+10}, v{t+7}
        s_lshl_b32 s{sT+2}, s{sT+2}, 17
        s_lshl_b32 s{sT+1}, s{sT+1}, 11
        s_add_u32 s{sT+2}, s{sT+2}, s{sT+1}
        s_add_u32 s{sWs}, s{sWs}, s{sT+2}
        s_add_u32 s{sWs}, s{sWs}, {WGU}
        s_cmp_ge_u32 s{sL}, 224
        s_cselect_b32 s{sWs}, {WS_BYTES}, s{sWs}
        s_lshl_b32 s{sF1o}, s{sT+7}, 7
        s_add_u32 s{sF1o}, s{sF1o}, {F1}
        v_mov_b32 v{u}, 0
        v_mov_b32 v{u+1}, 0
        v_mov_b32 v{u+2}, 0
        v_mov_b32 v{u+3}, 0
        v_lshlrev_b32 v{u+4}, 4, v0
        v_add_u32 v{u+4}, {L_P}, v{u+4}
        s_lshr_b32 s{sCh}, s{sW}, 1
        s_mul_i32 s{sT}, s{sCh}, {USZ-512}
        s_add_u32 s{sT}, s{sT}, {L_U}
        v_lshl_add_u32 v{t+9}, v0, 2, s{sT}
        s_mov_b32 s{sT+9}, {TB}
        v_lshrrev_b32 v{vF}, 2, v1""")
        wm_issue(1)
        e(f"""
        s_waitcnt lgkmcnt(0)
        ds_write_b128 v{u+4}, {vr(u,4)}
        ds_write_b128 v{u+4}, {vr(u,4)} offset:4096
        ds_write_b128 v{u+4}, {vr(u,4)} offset:8192
        ds_write_b32 v{t+9}, v{u}
        s_lshl_b32 s{sT}, s{sT+4}, 16
        s_and_b32 s{sT+1}, s{sT+4}, s{sMask}
        s_lshl_b32 s{sT+2}, s{sT+5}, 16
        s_and_b32 s{sT+3}, s{sT+5}, s{sMask}
        """)
        self.stamp('_smem')
        for i in range(4): e(f'v_mul_f32 v{t+13+i}, s{sT+i}, v{t+12}')
        for i in range(4): e(f'v_exp_f32 v{t+13+i}, v{t+13+i}')
        e(f"""
        s_lshl_b32 s{sT+4}, s{sCh}, 4
        s_lshr_b32 s{sT+5}, s{sT+6}, s{sT+4}
        s_lshl_b32 s{sT+5}, s{sT+5}, 16
        s_lshr_b32 s{sDsk}, s{sDsk+1}, s{sT+4}
        s_lshl_b32 s{sDsk}, s{sDsk}, 16""")
        for i in range(4): e(f'v_add_f32 v{t+13+i}, 1.0, v{t+13+i}')
        for i in range(4): e(f'v_rcp_f32 v{t+13+i}, v{t+13+i}')
        e(f'v_mul_f32 v{vDt}, s{sT+5}, -v{t+12}')
        for i in range(4): e(f'v_mul_f32 v{t+13+i}, s{sT+i}, v{t+13+i}')
        e(f'v_exp_f32 v{vDt}, v{vDt}')
        e(f'v_cvt_pk_bf16_f32 v{vS}, v{t+13}, v{t+14}\nv_cvt_pk_bf16_f32 v{vS+1}, v{t+15}, v{t+16}')
        e(f"""
        s_mov_b32 s40, s{pWs}
        s_mov_b32 s41, s{pWs+1}
        s_mov_b32 s42, {WS_BYTES}
        s_mov_b32 s43, 0x20000
        s_mov_b32 s{sCnt}, 40000
        v_mov_b32 v{vInv}, {fbits(1/512)}
        v_mov_b32 v{vInv+1}, {fbits(1e-5)}
        v_cvt_pk_bf16_f32 v{vDt}, v{vDt}, v{vDt}
        s_mul_i32 s{sT}, s{sL}, {HBLK}
        s_lshl_b32 s{sT+1}, s{sW}, 11
        s_add_u32 s{sT+1}, s{sT}, s{sT+1}
        s_add_u32 s{sT+1}, s{sT+1}, {XH}
        s_lshl_b32 s{sT+2}, s{sT+7}, 9
        s_add_u32 s{sT+2}, s{sT+2}, {MODP}
        s_mov_b32 s{sTag}, 1664525
        v_lshlrev_b32 v{vDt}, 16, v{vDt}
        s_lshl_b32 s{sT+3}, s{sW}, 10
        s_add_u32 s{sT}, s{sT}, s{sT+3}
        s_add_u32 s{sZs}, s{sT}, {ZY}
        s_add_u32 s{sZs+1}, s{sT}, {ZY+4096}
        s_lshl_b32 s{sZs+3}, s{sL}, 4
        s_add_u32 s{sZs+3}, s{sZs+3}, {MX}
        s_cmp_eq_u32 s{sW}, 0
        s_cselect_b32 s{sZs+2}, s{sZs+3}, {WS_BYTES}
        s_lshr_b32 s{sT}, s{sL}, 6
        s_bfe_u32 s{sT+3}, s{sL}, 0x10001
        s_lshl1_add_u32 s{sT}, s{sT}, s{sT+3}
        s_bfe_u32 s{sT+3}, s{sL}, 0x40002
        s_lshl4_add_u32 s{sT}, s{sT}, s{sT+3}
        s_and_b32 s{sT+3}, s{sL}, 1
        s_lshl3_add_u32 s{sT}, s{sT}, s{sT+3}
        s_lshl_b32 s{sT}, s{sT}, 3
        s_add_u32 s{sE1}, s{sT}, {XH}
        s_add_u32 s{sE1+1}, s{sT}, {XH+64*HBLK}
        s_add_u32 s{sE1+2}, s{sT}, {XH+128*HBLK}
        s_add_u32 s{sE1+3}, s{sT}, {XH+192*HBLK}
        s_mov_b32 s{sTm}, {TAGM}
        v_lshlrev_b32 v{vTg}, 2, v{t+2}
        v_add_u32 v{vTg+1}, 2, v{vTg}
        s_and_b32 s{sT}, s2, 7
        s_lshl_b32 s{sT}, s{sT}, 10
        s_add_u32 s{sT}, s{sT}, s3
        s_lshl_b32 s{sT}, s{sT}, 6
        s_add_u32 s{sE1+4}, s{sT}, {MODP}
        s_add_u32 s{sE1+5}, s{sT}, {MODP+32768}""")
        wgq = []; idw = [0]
        for jj in range(8):
            wgq.append(f'global_load_dwordx2 {vr(WG+2*jj,2)}, v{vWgL}, {sp(pWu)} offset:{3584*(jj&1)}' + (f'\nv_add_u32 v{vWgL}, 7168, v{vWgL}' if jj & 1 and jj < 7 else ''))
        def wg_issue(n):
            for _ in range(n):
                if wgq: idw[0] = e(wgq.pop(0))
        WGA = self.opt('wgat', 7)
        wm_issue(2); id_wm = idm[0]
        PFA = self.opt('pfat', 1)
        def wd_pf(): e(f'global_load_dword a223, v{vPf}, s[0:1]')
        if PFA == 0: wd_pf()
        PF2 = self.opt('pf2', -1); vPf2 = 159
        e(f"""
        v_min_u32 v{vPf2}, 55, v{t+1}
        v_lshrrev_b32 v{vPf2-1}, 2, v{vPf2}
        v_and_b32 v{vPf2}, 3, v{vPf2}
        v_lshlrev_b32 v{vPf2}, 7, v{vPf2}
        v_lshl_add_u32 v{vPf2}, v{vPf2-1}, 10, v{vPf2}
        s_and_b32 s{sT}, s{sT+7}, 127
        s_mul_i32 s{sT}, s{sT}, 28
        s_bfe_u32 s{sT+3}, s2, 0x10001
        s_add_u32 s{sT}, s{sT}, s{sT+3}
        s_lshl_b32 s{sT}, s{sT}, 9
        v_add_u32 v{vPf2}, s{sT}, v{vPf2}""" if PF2 >= 0 else '')
        def wd_pf2(k_):
            if PF2 == k_: e(f'global_load_dword a222, v{vPf2}, s[0:1]')
        wd_pf2(0)
        TCH = self.opt('tch', 1); NZ = self.opt('tchz', 8); vTc = 157
        if TCH >= 0:
            e(f"""
            v_and_b32 v{vTc-1}, 7, v0
            v_lshl_add_u32 v{vTc-2}, v{vTc-1}, 7, s{sZs+1}
            s_sub_u32 s{sT}, s{sF1o}, {F1-F2}
            v_cmp_gt_u32 vcc, 6, v{vTc-1}
            v_lshl_add_u32 v{vTc-1}, v{vTc-1}, 17, s{sT}
            v_mov_b32 v{vTc}, s{sZs+3}
            v_cndmask_b32 v{vTc}, v{vTc}, v{vTc-1}, vcc
            v_cmp_gt_u32 vcc, {NZ*16}, v1
            s_nop 1
            v_cndmask_b32 v{vTc}, v{vTc}, v{vTc-2}, vcc""")
        if self.opt('tchh', -1) >= 0:
            e(f"""
            s_lshr_b32 s{sT}, s{sL}, 2
            s_lshl2_add_u32 s{sT}, s{sT}, s{sW}
            s_lshl_b32 s{sT}, s{sT}, 5
            s_and_b32 s{sT+3}, s{sL}, 3
            s_add_u32 s{sT}, s{sT}, s{sT+3}
            s_lshl_b32 s{sT}, s{sT}, 8
            s_add_u32 s{sT}, s{sT}, {H2}
            v_bfe_u32 v154, v0, 1, 3
            v_lshl_add_u32 v154, v154, 10, s{sT}
            v_and_b32 v153, 1, v0
            v_lshl_add_u32 v154, v153, 7, v154""")
        def touch(k_):
            if self.opt('tchh', -1) == k_: e(f'global_load_dword a220, v154, {sp(pWs)}')
            if TCH == k_: e(f'global_load_dword a221, v{vTc}, {sp(pWs)}')
        touch(0)
        if WGA == 0: wg_issue(8)
        e(f's_waitcnt {self.wvm(id_tab)}')
        for x in tunpack(): e(x)
        e(f"""
        s_bfe_u32 s{sT}, s{sL}, {0x10006 if MAP2 == 84 else 0x10002}
        s_and_b32 s{sDt}, s{sL}, 3
        s_lshl2_add_u32 s{sDt}, s{sT}, s{sDt}
        s_lshl_b32 s{sT}, s{sDt}, 7
        s_add_u32 s{pWd}, s{pWd}, s{sT}
        s_addc_u32 s{pWd+1}, s{pWd+1}, 0""")
        self.stamp('_pre_x')
        e(f's_waitcnt {self.wvm(id_x)}')
        self.stamp('x_arrived')
        if PFA == 5: wd_pf()
        if WGA == 5: wg_issue(8)
        XF = 128
        unp = [x for r in range(2) for i in range(4) for x in self.unpack(XF+8*r+2*i, XR+4*r+i)]
        self.stats_partial(XR, t, vSBw, unp)
        unp = self.rest
        MA = 160; MP = 168; MR = 176; MPOS = self.opt('modpos', 1)
        def mod_partial():
            e(f's_waitcnt {self.wvm(id_wm)}')
            self.stamp('_wm')
            for h in range(2):
                for m in range(4):
                    e(f"""v_perm_b32 v{MP+2*m}, v{WM+8*h+4+m}, v{WM+8*h+m}, s{sLo}
                    v_perm_b32 v{MP+1+2*m}, v{WM+8*h+4+m}, v{WM+8*h+m}, s{sHi}""")
                for m in range(8):
                    e(f'v_dot2_f32_bf16 v{MA+m}, v{MP+m}, v{vS+h}, {"0" if h==0 else "v%d"%(MA+m)}')
            e(f'ds_write_b128 v{vMBw}, {vr(MA,4)}')
            if unp: e(unp.pop(0)); e(unp.pop(0))
            e(f'ds_write_b128 v{vMBw}, {vr(MA+4,4)} offset:16')
        def mod_read():
            if MPOS == 1: e('s_waitcnt lgkmcnt(0)\ns_barrier')
            for w in range(0, 4, 2):
                for i in range(3):
                    e(f'ds_read2st64_b32 {vr(MR+3*w+2*i,2)}, v{vMBr} offset0:{8*w+i} offset1:{8*w+8+i}')
            return self.nlg
        def mod_store(i_):
            e(f"""
            s_waitcnt {self.wlg(i_)}
            v_pk_add_f32 {vr(MR,2)}, {vr(MR,2)}, {vr(MR+6,2)}
            v_pk_add_f32 {vr(MR+2,2)}, {vr(MR+2,2)}, {vr(MR+8,2)}
            v_pk_add_f32 {vr(MR+4,2)}, {vr(MR+4,2)}, {vr(MR+10,2)}
            v_mov_b32 v{MR+15}, v2
            v_add_f32 v{MR+12}, v{MR}, v{MR+1}
            v_add_f32 v{MR+13}, v{MR+2}, v{MR+3}
            v_add_f32 v{MR+14}, v{MR+4}, v{MR+5}
            s_mov_b32 exec_hi, 0
            buffer_store_dwordx4 {vr(MR+12,4)}, v1, {SRD}, s{sT+2} offen sc1
            s_mov_b32 exec_hi, -1""")
            self.stamp('_modst')
            if PFA == 1: wd_pf()
            wd_pf2(1)
            touch(1)
            if WGA == 1: wg_issue(8)
        if MPOS == 0: mod_partial()
        e(f'v_add_u32 v{t+1}, {L_BD-L_U-512}, v{vUw}\nds_write_b32 v{t+1}, v{vBv}')
        if WGA == 7: wg_issue(8)
        e(f's_waitcnt {self.wvm(id_ep)} lgkmcnt(1)\ns_barrier')
        self.stamp('_bar0')
        ST = 84
        id_st = self.stats_read(ST, vSBr)
        if MPOS == 0: id_mr = mod_read()
        while unp: e(unp.pop(0))
        e(f'v_mul_lo_u32 v2, v2, s{sTag}\nv_add_u32 v2, 1013904223, v2')
        vTP = 26
        e(f"""v_alignbit_b32 v{vTg}, v2, v2, v{vTg}
        v_alignbit_b32 v{vTg+1}, v2, v2, v{vTg+1}
        v_and_b32 v{vTg}, s{sTm}, v{vTg}
        v_and_b32 v{vTg+1}, s{sTm}, v{vTg+1}""")
        e(f's_waitcnt {self.wlg(id_st)}')
        self.stats_finish(ST, vInv, 2.0**-100)
        for i in range(4):
            for r in range(2):
                x = XF+8*r+2*i
                e(f'v_pk_fma_f32 {vr(x,2)}, {vr(x,2)}, {vr(ST+2*r,2)}, {vr(ST+2*r,2)} op_sel:[0,0,1] op_sel_hi:[1,0,1]')
            for r in range(2):
                x = XF+8*r+2*i
                e(f'v_cvt_pk_bf16_f32 v{GR+2*i+r}, v{x}, v{x+1}')
            for r in range(2):
                e(f'v_bfi_b32 v{GR+2*i+r}, s{sTm}, v{vTg+r}, v{GR+2*i+r}')
            if i & 1: e(f'buffer_store_dwordx4 {vr(GR+2*i-2,4)}, v1, {SRD}, s{sT+1} offen offset:{512*(i-1)} sc1')
        self.stamp('e1_stored')
        if WGA == 6: wg_issue(8)
        if MPOS == 1: mod_partial()
        if MPOS == 0: mod_store(id_mr)
        e(f's_waitcnt {self.wvm(id_ab)}\nv_mul_f32 v68, v{vDt}, v{AB}\nv_mov_b32 v{vTP}, v{vTg}\nv_mov_b32 v{vTP+1}, v{vTg+1}')
        wst = [0]
        def wjob_ops(OB=20, nb=2):
            out = []
            for c in range(4):
                O = OB + 4*(c % nb)
                out += [f'v_perm_b32 v{O+m}, v{WG+2*(2*m+1)+(c>>1)}, v{WG+2*(2*m)+(c>>1)}, s{sHi if c&1 else sLo}' for m in range(4)]
                out += [f'v_add_u32 v{O+m}, 0x20002000, v{O+m}' for m in range(2)]
                out.append(f'buffer_store_dwordx4 {vr(O,4)}, v{vWgS}, {SRD}, s{sWs} offen sc1' + (f'\ns_add_u32 s{sWs}, s{sWs}, 32768' if c < 3 else ''))
            return out
        WJN = self.opt('wjn', -1)
        al, be = 68, 69
        Z1, Z8, Z256, Wc = 70, 72, 74, 76
        q = 78
        e(f"""
        v_mul_f32 v{be}, v{vDt}, v{AB+1}
        v_mul_f32 v{AB+2}, v{vDt}, v{AB+2}
        v_mul_f32 v{AB+3}, v{vDt}, v{AB+3}
        v_mul_f32 v{q}, {fbits(1.4426950408889634)}, v{al}
        v_mul_f32 v{q+1}, 0.15915494, v{be}
        v_mul_f32 v{Wc}, v{AB+4}, v{AB+2}
        v_mul_f32 v{Wc+1}, v{AB+4}, v{AB+3}
        v_mul_f32 v{q+3}, {fbits(8.0)}, v{q}
        v_mul_f32 v{q+4}, {fbits(8.0)}, v{q+1}
        v_mul_f32 v{q+6}, {fbits(256.0)}, v{q}
        v_mul_f32 v{q+7}, {fbits(256.0)}, v{q+1}
        v_fma_f32 v{Wc}, -v{AB+5}, v{AB+3}, v{Wc}
        v_fma_f32 v{Wc+1}, -v{AB+5}, v{AB+2}, -v{Wc+1}
        """)
        for n_ in range(3): e(f'v_exp_f32 v{q+3*n_}, v{q+3*n_}\nv_fract_f32 v{q+3*n_+1}, v{q+3*n_+1}')
        for n_ in range(3): e(f'v_sin_f32 v{q+3*n_+2}, v{q+3*n_+1}\nv_cos_f32 v{q+3*n_+1}, v{q+3*n_+1}')
        e(f'v_and_b32 v87, 127, v0\nv_cmp_eq_u32 vcc, 0, v87')
        for n_, (Z, conj) in enumerate([(Z1,True),(Z8,False),(Z256,True)]):
            e(f'v_mul_f32 v{Z}, v{q+3*n_}, v{q+3*n_+1}\nv_mul_f32 v{Z+1}, {"-" if conj else ""}v{q+3*n_}, v{q+3*n_+2}')
        e(f'v_readfirstlane_b32 s{sT}, v{vRW}')
        if MPOS == 1: id_mr = mod_read()
        e(f's_mov_b32 m0, s{sT}')
        def put(src, row, pk):
            return [f'v_cvt_pk_bf16_f32 v{pk}, v{src}, v{src+1}', f'ds_write_addtid_b32 v{pk} offset:{row*RST}' if self.opt('addtid', 1) else f'ds_write_b32 v{vRW}, v{pk} offset:{row*RST}']
        Z16 = 78
        R0 = [[f'v_mov_b32 v88, 0x3f80', f'ds_write_b32 v{vRW}, v88'], self.cmul(Z16, Z8, Z8) + put(Z16, 2, 88)]
        R1 = [put(Z8, 1, 84), []]
        cur = [Z16, Z8]; bufs = [[80, 82], [90, 92]]
        for rho in range(3, 32):
            par = rho & 1
            d = bufs[par][(rho >> 1) & 1]
            (R1 if par else R0).append(self.cmul(d, cur[par], Z16) + put(d, rho, 84 if par else 88)); cur[par] = d
        Cq = [put(Wc, 32, 89)]
        cr = {0: Wc}
        reg = {1:110, 2:94, 3:110, 4:96, 5:110, 6:98, 7:110, 8:100}
        for ee in range(1, 9):
            Cq.append(self.cmul(reg[ee], cr[ee-1], Z1) + (put(reg[ee], 32+ee, 89) if ee < 8 else [])); cr[ee] = reg[ee]
        chain = [(264,8,44,102),(520,264,46,104),(776,520,48,102),(1032,776,49,104),(1288,1032,50,102),(1544,1288,51,104),(1800,1544,52,102)]
        for ee, src, row, d in chain:
            Cq.append(self.cmul(d, cr[src], Z256) + put(d, row, 89)); cr[ee] = d
        side = [(260,4,42,106),(516,260,45,108),(772,516,47,106)]
        for ee, src, row, d in side:
            R0.append(self.cmul(d, cr[src], Z256) + put(d, row, 88)); cr[ee] = d
        R1.append(self.cmul(90, cr[0], Z256) + put(90, 40, 84))
        R1.append(self.cmul(92, cr[2], Z256) + put(92, 41, 84))
        Cq.append(self.cmul(110, cr[6], Z256) + put(110, 43, 89))
        KD = 12
        Cq.append([f'v_mov_b32 v{KD+1}, s{sDsk}', f'v_mov_b32 v{KD+2}, 0', f'v_cndmask_b32 v{KD}, 0, v{KD+1}, vcc', f'v_mov_b32 v{KD+1}, 0'])
        Cq.append([f'v_mov_b32 v{KD+3}, 0', f'v_mul_f32 v{vBv}, {fbits(2.0**36)}, v{vOne}', f'v_max_f32 v{vBv}, {fbits(2.0**-64)}, v{vBv}'])
        for n_ in range(max(len(R0), len(R1), len(Cq))):
            st = [a_[n_] if n_ < len(a_) else [] for a_ in (R0, R1, Cq)]
            for j in range(4):
                for a_ in st:
                    if j < len(a_): e(a_[j])
            if n_ == 1 and MPOS == 1: mod_store(id_mr)
            if WJN <= -2 and n_ == -WJN-1:
                e(f's_waitcnt {self.wvm(idw[0])}')
                for x in wjob_ops(128): wst[0] = e(x)
            if self.opt('wd_k1s', 2) <= n_ < self.opt('wd_k1s', 2) + self.opt('wd_k1', 0): wd_issue(1)
        self.stamp('kgen1')
        EG = 68
        e1_loads = '\n'.join([f'buffer_load_dwordx4 {vr(EG+16+4*i,4)}, v{vEM}, {SRD}, s{sE1+4+i} offen sc1' for i in range(2)] +
                             [f'buffer_load_dwordx2 {vr(EG+2*i,2)}, v{vEX}, {SRD}, s{sE1+i} offen sc1' for i in range(4)])
        E1AT = self.opt('e1at', 2)
        e('s_waitcnt lgkmcnt(0)')
        if E1AT == 0: id_e1 = e(e1_loads)
        e('s_barrier')
        self.stamp('_kbar1')
        KF = 160
        kf_id = []
        for kk in range(8):
            e(f"""ds_read_b128 {vr(KF+12*kk,4)}, v{vKa} offset:{64*kk}
            ds_read_b128 {vr(KF+12*kk+4,4)}, v{vKb0} offset:{32*RST+64*kk}
            ds_read_b128 {vr(KF+12*kk+8,4)}, v{vKb1} offset:{44*RST+64*kk}""")
            kf_id.append(self.nlg)
            if kk == 4:
                if E1AT == 1: id_e1 = e(e1_loads)
        for kk in range(8):
            e(f's_waitcnt {self.wlg(kf_id[kk])}')
            for cb in range(2):
                e(f'v_mfma_f32_16x16x32_bf16 {vr(KD+4*cb,4)}, {vr(KF+12*kk,4)}, {vr(KF+12*kk+4+4*cb,4)}, {"0" if kk==0 and cb==1 else vr(KD+4*cb,4)}')
            if E1AT < 2 and kk < self.opt('wd_k2', 0): wd_issue(1)
        if E1AT == 2: id_e1 = e(e1_loads)
        wd_pf2(2)
        touch(2)
        if WGA == 2: wg_issue(8)
        AN = 128; AX = 160; T2 = 192; T3 = 204; BND = 196; SF2 = 208; SF3 = 232; SD = 240; US = 72
        e(f"""
        ds_read2_b32 {vr(BND,2)}, v{vBd} offset0:6 offset1:4
        ds_read2_b32 {vr(BND+2,2)}, v{vBd} offset0:2 offset1:0
        ds_read2_b32 {vr(BND+4,2)}, v{vBd} offset0:70 offset1:68
        ds_read2_b32 {vr(BND+6,2)}, v{vBd} offset0:66 offset1:64
        ds_read2_b32 {vr(BND+8,2)}, v{vBd2} offset0:134 offset1:132
        ds_read2_b32 {vr(BND+10,2)}, v{vBd2} offset0:130 offset1:128""")
        for cb in range(2):
            for j in range(2):
                e(f'v_cvt_pk_bf16_f32 v{KD+8+2*cb+j}, v{KD+4*cb+2*j}, v{KD+4*cb+2*j+1}')
        def scat(cb, j):
            va = (vKw0, vKw1)[cb]; off = 32*j if cb == 0 else (j&1)*928 + (j>>1)*4
            op = 'ds_write_b16_d16_hi' if j & 1 else 'ds_write_b16'
            e(f'{op} v{va}, v{KD+8+2*cb+(j>>1)} offset:{off}\n{op} v{va}, v{KD+8+2*cb+(j>>1)} offset:{off+6}')
        for j in range(4): scat(0, j)
        scat(1, 3)
        e('s_mov_b32 exec_lo, 0x00ff00ff\ns_mov_b32 exec_hi, 0x00ff00ff')
        for j in range(3): scat(1, j)
        e('s_mov_b64 exec, -1')
        if E1AT == 3: id_e1 = e(e1_loads)
        self.stamp('kgen2')
        def rd2(d, va, o): return [f'ds_read2_b32 {vr(d,2)}, v{va} offset0:{o+6} offset1:{o+4}', f'ds_read2_b32 {vr(d+2,2)}, v{va} offset0:{o+2} offset1:{o}']
        def rq2(d, o0, o1): return [f'ds_read2_b32 {ar(d,2)}, v{vQ} offset0:{o0} offset1:{o0-2}', f'ds_read2_b32 {ar(d+2,2)}, v{vQ} offset0:{o1} offset1:{o1-2}']
        vPA1 = 55
        reads = {}
        for be_ in range(6): reads[('u', be_)] = (US+4*be_, [f'ds_read_b128 {vr(US+4*be_,4)}, v{vUS} offset:{512*be_}'])
        for jq in range(4):
            for J in range(2): reads[('a', jq, J)] = (AN+8*jq+4*J, rd2(AN+8*jq+4*J, vPA1 if J else vPA, 32*jq))
        reads[('x', 16)] = (AX, rd2(AX, vPX, 0)); reads[('x', 32)] = (AX+4, rd2(AX+4, vPX, 48))
        for d_ in (2,3,4): reads[('t2', d_)] = (T2+4*(d_-2), rq2(T2+4*(d_-2), 16*d_-28, 64+16*d_-28))
        for d_ in (4,5,6,7): reads[('t3', d_)] = (T3+4*(d_-4), rq2(T3+4*(d_-4), 128+16*d_-44, 128+16*d_-60))
        pre = set(); wjs = []
        e(f'v_add_u32 v{vPA1}, 1024, v{vPA}')
        if self.opt('kpre', 0):
            e('s_waitcnt lgkmcnt(0)\ns_barrier')
            for o in reads:
                if o[0] != 'u':
                    for x in reads[o][1]: e(x)
                    pre.add(o)
        if WJN == -1 and self.opt('wjpre', 4):
            e(f's_waitcnt {self.wvm(idw[0])}')
            for x in wjob_ops(168 if self.opt('wjpre', 4) < 4 else 216, 4):
                if x.startswith('buffer_') and self.opt('wjpre', 4) != 3: wjs.append(x)
                else: wst[0] = e(x)
        XC = EG+8
        e(f's_waitcnt {self.wvm(id_e1)}\nL_e1chk:')
        for i in range(8): e(f'v_xor_b32 v{XC+i}, v{EG+i}, v{vTP+(i&1)}')
        e(f"""
        v_cmp_ne_u32 {sp(sBad)}, v{EG+19}, v2
        v_or3_b32 v92, v{XC}, v{XC+1}, v{XC+2}
        v_or3_b32 v93, v{XC+3}, v{XC+4}, v{XC+5}
        v_cmp_ne_u32 vcc, v{EG+23}, v2
        v_or3_b32 v92, v92, v{XC+6}, v{XC+7}
        s_or_b64 {sp(sBad)}, {sp(sBad)}, vcc
        v_bitop3_b32 v92, v92, v93, s{sTm} bitop3:0xa8
        v_cmp_ne_u32 vcc, 0, v92
        s_or_b64 {sp(sBad)}, {sp(sBad)}, vcc
        s_cbranch_scc1 L_e1retry""")
        self.tail.append(f"""L_e1retry:
        s_sub_u32 s{sCnt}, s{sCnt}, 1
        s_cbranch_scc1 L_end
        s_wqm_b64 exec, {sp(sBad)}
        {e1_loads}
        s_mov_b64 exec, -1
        s_waitcnt vmcnt(0)
        s_branch L_e1chk""")
        self.stamp('e1_ok')
        wd_pf2(3)
        touch(3)
        if self.opt('wjpre', 4) == 2:
            while wjs: wst[0] = e(wjs.pop(0))
        if WGA == 3: wg_issue(8)
        wd_issue(self.opt('wd_h', 0))
        g0 = 28; HF = 96
        e(f"""
        v_add_f32 v{g0}, v{EG+16}, v{EG+20}
        v_add_f32 v{g0+1}, v{EG+17}, v{EG+21}
        v_add_f32 v{g0+2}, v{EG+18}, v{EG+22}
        v_mov_b32 v{g0+3}, 0""")
        unp = []
        for i in range(4):
            unp += [f'v_lshlrev_b32 v{HF+4*i}, 16, v{XC+2*i}', f'v_lshlrev_b32 v{HF+4*i+1}, 16, v{XC+2*i+1}',
                    f'v_and_b32 v{HF+4*i+2}, s{sMask}, v{XC+2*i}', f'v_and_b32 v{HF+4*i+3}, s{sMask}, v{XC+2*i+1}']
        self.reduce4(g0, g0+1, g0+2, g0+3, unp)
        unp = self.rest
        e(f"""
        v_cvt_pk_bf16_f32 v{g0}, v{g0}, v{g0}
        v_and_b32 v{g0}, s{sMask}, v{g0}
        v_add_f32 v{g0+1}, v{g0}, v{vOne}
        v_readlane_b32 s{sM+4}, v{g0}, 16
        v_readlane_b32 s{sM+5}, v{g0}, 17
        v_cvt_pk_bf16_f32 v{g0}, v{g0+1}, v{g0+1}
        v_and_b32 v{g0}, s{sMask}, v{g0}
        v_mul_f32 v{g0+3}, v{vBv}, v{g0}
        v_mul_f32 v{g0+1}, s{sM+4}, v{g0+3}
        v_mul_f32 v{g0+2}, s{sM+5}, v{g0+3}
        v_readlane_b32 s{sM}, v{g0+1}, 32
        v_readlane_b32 s{sM+1}, v{g0+1}, 0
        v_readlane_b32 s{sM+2}, v{g0+2}, 33
        v_readlane_b32 s{sM+3}, v{g0+2}, 1""")
        for x in unp: e(x)
        for i in range(4):
            for ch in range(2):
                h = HF+4*i+2*ch
                e(f'v_pk_fma_f32 {vr(h,2)}, {vr(h,2)}, {sp(sM+2*ch)}, {sp(sM+2*ch)} op_sel:[0,0,1] op_sel_hi:[1,0,1]')
            for ch in range(2):
                h = HF+4*i+2*ch
                e(f'v_cvt_pk_bf16_f32 v{g0+2+ch}, v{h}, v{h+1}\nds_write_b32 v{vUw}, v{g0+2+ch} offset:{ch*USZ+1024*i}')
        while wjs and self.opt('wjpre', 4) < 4: wst[0] = e(wjs.pop(0))
        if WJN == -1 and not self.opt('wjpre', 4):
            e(f's_waitcnt {self.wvm(idw[0])}')
            for x in wjob_ops(): wst[0] = e(x)
        e('s_waitcnt lgkmcnt(0)\ns_barrier')
        self.stamp('u_ready')
        ACC = 224; ZG = 12
        BR = [96,100,104,108,116,120,168,172,176,180,184,188]
        F1N = self.opt('f1n', 200)
        def f1_publish(): e(f's_waitcnt {self.wvm(wst[0])}\n' + self.flag_text(vF, sF1o))
        for m in range(8):
            for jq in range(4):
                r_ = BR[(4*m+jq) % len(BR)]
                reads[('b', m, jq)] = (r_, [f'ds_read_b128 {vr(r_,4)}, v{vUB} offset:{512*m+192-64*jq}'])
        ops = []
        S = lambda nm, be_: ops.append(('S', (nm, be_), ('u', be_), ('bnd', nm)))
        def near(m, Js):
            for jq in range(4):
                for J in Js: ops.append(('M', m+J, ('a', jq, J), ('b', m, jq)))
        def far(cb):
            ops.append(('M', cb, ('x', 16), ('u', cb-2)))
            if cb >= 4: ops.append(('M', cb, ('x', 32), ('u', cb-4)))
            for d_ in (4,3,2):
                if cb-d_ >= 0: ops.append(('M', cb, ('s2', cb-d_), ('t2', d_)))
            if cb >= 4: ops.append(('M', cb, ('s3', 0), ('t3', cb)))
            if cb >= 6: ops.append(('M', cb, ('s3', 1), ('t3', cb-2)))
        S('a',0); S('b',0); S('a',1); S('b',1)
        near(0,(0,1)); near(1,(0,1)); far(2); S('c',0); S('c',1); near(2,(0,1)); S('a',2); S('b',2); far(3); near(3,(0,))
        S('a',3); S('b',3); near(3,(1,)); far(4); near(4,(0,1)); far(5); near(5,(0,))
        S('a',4); S('b',4); S('c',2); S('c',3); near(5,(1,)); S('a',5); S('b',5); near(6,(0,1)); far(6); near(7,(0,)); far(7)
        assert len(ops) == 107
        def opreg(o):
            if o[0] == 'bnd': return BND + 4*'abc'.index(o[1])
            if o[0] == 's2': return SF2 + 4*o[1]
            if o[0] == 's3': return SF3 + 4*o[1]
            return reads[o][0]
        firstuse = {}; lastuse = {}; accdone = {}
        for n, (kd, dst, oa, ob) in enumerate(ops):
            for o in (oa, ob): firstuse.setdefault(o, n); lastuse[o] = n
            if kd == 'M': accdone[dst] = n
        rq = []
        for o in sorted(reads, key=lambda o: firstuse[o]):
            early = -1
            if o[0] == 'b' and 4*o[1]+o[2] >= len(BR):
                idx = 4*o[1]+o[2]-len(BR); early = lastuse[('b', idx//4, idx%4)] + 1
            if o not in pre:
                for x in reads[o][1]: rq.append((early, o, x))
        rid = {o: 0 for o in pre}
        def popread():
            _, o, x = rq.pop(0); e(x)
            if not any(o2 == o for _, o2, _ in rq): rid[o] = self.nlg
        for _ in range(self.opt('cpre', 8 if pre else 14)): popread()
        tq = 69
        fill = [f's_bitcmp1_b32 s{sL}, 1\ns_cselect_b32 s{sT}, 1.0, {fbits(2.0**-64)}', f'v_mul_f32 v{g0+1}, s{sT}, v{g0}']
        fill += [f'v_readlane_b32 s{sM+6+n_}, v{g0+(n_<4)}, {ln}' for n_, ln in list(enumerate([34,35,2,3,18,19]))[::-1]]
        TZ = 16; XE = 52; vYr1 = 64
        fill += f"""v_and_b32 v{tq}, 3, v0
        s_pack_hh_b32_b16 s{sT}, s{sM+6}, s{sM+7}
        s_pack_hh_b32_b16 s{sT+1}, s{sM+8}, s{sM+9}
        s_pack_hh_b32_b16 s{sT+2}, s{sM+10}, s{sM+11}
        v_lshlrev_b32 v{tq}, 2, v{tq}
        s_mov_b32 s{sTm}, {TAGZ}
        v_alignbit_b32 v{tq}, v2, v2, v{tq}
        v_xor_b32 v{vYr1}, 32, v{vYr}
        v_and_b32 v{TZ}, s{sTm}, v{tq}
        v_alignbit_b32 v{TZ+1}, v{tq}, v{tq}, 1
        v_alignbit_b32 v{TZ+2}, v{tq}, v{tq}, 2
        v_alignbit_b32 v{TZ+3}, v{tq}, v{tq}, 3
        v_and_b32 v{TZ+1}, s{sTm}, v{TZ+1}
        v_and_b32 v{TZ+2}, s{sTm}, v{TZ+2}
        v_and_b32 v{TZ+3}, s{sTm}, v{TZ+3}
        v_mov_b32 v192, s{sT}
        v_mov_b32 v193, s{sT+1}
        v_mov_b32 v194, s{sT+2}
        v_mov_b32 v195, v2""".split('\n')
        stages = {'a': [(0,),(1,)], 'n': [(0,1)]}[self.opt('stages', 'a')]
        wr_id = {}; cq = []; sq = []; sdone = {}; nsd = 0; stage = 0; done_w = 0; waited = 0
        zst = {}
        def stage_ops(sg, final):
            out = []
            regs = {(k_, j): ([28, SD][j] if not final else 72+16*n_+8*j) for n_, k_ in enumerate(sg) for j in range(2)}
            for k_ in sg:
                for j in range(2):
                    for pw in range(4): out.append(('rd', (k_,j), f'ds_read_b64 {vr(regs[(k_,j)]+2*pw,2)}, v{vYr1 if j else vYr} offset:{8192*pw+4096*k_}'))
            for k_ in sg:
                for j in range(2):
                    y = regs[(k_,j)]; i = (k_,j)
                    out.append(('wait', i, None))
                    if final:
                        out += [('v', i, f'v_pk_add_f32 {vr(y+4*ch,2)}, {vr(y+4*ch,2)}, {vr(y+4*ch+2,2)}') for ch in range(2)]
                    else:
                        out += [('v', i, f'v_add_f32 v{y+4*ch+r}, v{y+4*ch+r}, v{y+4*ch+2+r}') for r in range(2) for ch in range(2)]
                    out += [('v', i, f'v_cvt_pk_bf16_f32 v{ZG+2*j+r}, v{y+r}, v{y+4+r}') for r in range(2)]
                    out += [('v', i, f'v_bfi_b32 v{ZG+2*j+r}, s{sTm}, v{TZ+2*j+r}, v{ZG+2*j+r}') for r in range(2)]
                x = f'buffer_store_dwordx4 {vr(ZG,4)}, v1, {SRD}, s{sZs+k_} offen sc1'
                if k_ == 0: x += f'\ns_mov_b64 exec, 1\nbuffer_store_dwordx4 v[192:195], v1, {SRD}, s{sZs+2} offen sc1\ns_mov_b64 exec, -1'
                out.append(('st', k_, x))
            return out
        y_id = {}; ride = [0]; pub = []
        def popstage():
            nonlocal waited
            kd, i, x = sq.pop(0)
            if kd == 'wait':
                e(f's_waitcnt {self.wlg(y_id[i])}'); waited = max(waited, y_id[i])
            else:
                r_ = e(x)
                if kd == 'rd': y_id[i] = self.nlg
                if kd == 'st':
                    zst[i] = r_
                    if not sq:
                        ride[0] = self.opt('ride', 0)
                        pub.append(1)
                        if F1N == 199 + len(pub): f1_publish()
        seen = set(); hold = 0; accpos = {}; wj = []
        for n, (kd, dst, oa, ob) in enumerate(ops):
            if n in (1, 27, 54, 81): self.stamp(f'_c{n}')
            for o in (oa, ob):
                while o in reads and o not in rid: popread()
                if o[0] in ('s2', 's3'):
                    while any(tg == o for _, tg, _ in cq): e(cq.pop(0)[2])
            need = max(rid.get(oa, 0), rid.get(ob, 0))
            if need > waited:
                e(f's_waitcnt {self.wlg(need)}'); waited = max(need, self.nlg - 14)
            if kd == 'S':
                d = SD + 4*(nsd % 4); nsd += 1
                while any(f'v{d},' in x or x.endswith(f'v{d+3}') for _, _, x in cq): e(cq.pop(0)[2])
                while any(k_ != 'st' for k_, _, _ in sq): popstage()
                e(f'v_mfma_f32_16x16x32_bf16 {vr(d,4)}, {vr(opreg(oa),4)}, {vr(opreg(ob),4)}, 0')
                nm, be_ = dst
                tg = ('s2', be_) if nm != 'c' else ('s3', be_ >> 1)
                o_ = opreg(tg) + (2*'ab'.index(nm) if nm != 'c' else 2*(be_ & 1))
                cq += [(len(p.text), tg, f'v_cvt_pk_bf16_f32 v{o_+j}, v{d+2*j}, v{d+2*j+1}') for j in range(2)]
            else:
                c_ = ar(ACC+4*dst,4) if dst in seen else '0'; seen.add(dst)
                e(f'v_mfma_f32_16x16x32_bf16 {ar(ACC+4*dst,4)}, {vr(opreg(oa),4)}, {(ar if ob[0][0] == "t" else vr)(opreg(ob),4)}, {c_}')
                if accdone[dst] == n: accpos[dst] = len(p.text)
            budget = 2
            if wjs and n >= self.opt('wsn', 4) + (4-len(wjs))*self.opt('wss', 3):
                assert n < 30; wst[0] = e(wjs.pop(0)); budget = 1
            elif n == F1N: f1_publish(); budget = 0
            elif n % self.opt('wd_pace', 6) == 1 and self.opt('wd_first', 0) <= n <= self.opt('wd_last', 100) and len(wdq) > 8: wd_issue(1); budget = 1
            elif ride[0] > 0 and n % 2 == 0 and len(wdq) > 8: wd_issue(1); budget = 1; ride[0] -= 1
            if n == WJN: e(f's_waitcnt {self.wvm(idw[0])}'); wj = wjob_ops()
            if stage < len(stages)-1 and done_w > 4*stages[stage][-1]+3 and n >= wr_n + 3 and not sq:
                while fill: e(fill.pop(0))
                while cq: e(cq.pop(0)[2])
                e(f's_waitcnt {self.wlg(wr_id[done_w-1])}\ns_barrier'); waited = max(waited, wr_id[done_w-1])
                sq = stage_ops(stages[stage], False); stage += 1; budget = 0
            while budget > 0:
                budget -= 1
                if rq and rq[0][0] <= n and firstuse[rq[0][1]] <= n + self.opt('cla', 14): popread()
                elif cq and len(p.text) - cq[0][0] >= 8: e(cq.pop(0)[2])
                elif done_w in accpos and len(p.text) - accpos[done_w] >= 8:
                    e(f'ds_write_b128 v{vYw}, {ar(ACC+4*done_w,4)} offset:{1024*done_w}'); wr_id[done_w] = self.nlg; wr_n = n; done_w += 1
                elif sq and not (sq[0][0] == 'wait' and hold > n):
                    if sq[0][0] == 'rd': hold = n + 4
                    popstage()
                elif fill: e(fill.pop(0))
                elif wj: wst[0] = e(wj.pop(0))
                elif rq and rq[0][0] <= n: popread()
        assert not rq and not cq and not wj and len(wdq) >= 8 and stage == len(stages)-1
        while sq: popstage()
        for x in fill: e(x)
        self.stamp('conv')
        while done_w < 8:
            e(f'ds_write_b128 v{vYw}, {ar(ACC+4*done_w,4)} offset:{1024*done_w}'); done_w += 1
        e('s_waitcnt lgkmcnt(0)\ns_barrier')
        sq = stage_ops(stages[-1], True)
        while sq: popstage()
        id_z = self.nvm
        if F1N == 107: f1_publish()
        self.stamp('z_stored')
        vP1 = 122
        e(f"""
        s_bfe_u32 s1, s{sL}, 0x30002
        s_lshr_b32 s0, s{sL}, 7
        s_lshl3_add_u32 s{sMt}, s0, s1
        s_bfe_u32 s0, s{sL}, {0x10005 if MAP2 == 84 else 0x20005}
        s_and_b32 s1, s{sMt}, {15 if MAP2 == 84 else 14}
        s_lshl1_add_u32 s{sTb}, s1, s0
        s_bfe_u32 s0, s{sL}, 0x20005
        s_and_b32 s1, s{sL}, 3
        s_lshl2_add_u32 s{sNt}, s0, s1
        s_mul_i32 s0, s{sNt}, 7
        s_lshr_b32 s0, s0, 2
        v_bfe_u32 v{t+1}, v0, 3, 3
        v_min_u32 v{t+1}, 2, v{t+1}
        v_add_u32 v{t+1}, s0, v{t+1}
        v_min_u32 v{t+1}, 27, v{t+1}
        v_and_b32 v{t+2}, 7, v0
        v_lshl_add_u32 v{t+1}, v{t+1}, 5, v{t+2}
        s_lshl_b32 s0, s{sW}, 10
        s_add_u32 s0, s0, {F1}
        v_lshl_add_u32 v{vP1}, v{t+1}, 7, s0""")
        f1_load = f'buffer_load_dword v{vPolled}, v{vP1}, {SRD}, 0 offen sc1'
        F1P = self.opt('f1p', 0)
        if F1P == 0: id_f1 = e(f1_load)
        e(f"""
        s_lshl_b32 s{sDmaL}, s{sW}, 13
        s_mul_i32 s{sDmaG}, s{sNt}, {7*32768}
        s_add_u32 s{sDmaG}, s{sDmaG}, s{sDmaL}
        s_add_u32 s{sDmaG}, s{sDmaG}, {WGU}""")
        dq = [(x, i) for i in range(4) for x in self.dma_tile(i,i)]
        dma_id = {}
        f1ok = [False]; maxt = [2]
        def bg_issue(n):
            for _ in range(n):
                if f1ok[0] and dq and (dq[0][1] <= 2 or not wdq and dq[0][1] <= maxt[0]):
                    x, i = dq.pop(0); dma_id[i] = e(x)
                else: wd_issue(1)
        def bg(name, nT, nL):
            v = self.opt(name, None)
            if v is not None: nT, nL = v // 100, v % 100
            done = 0
            for i in range(nT):
                k_ = (nL*(i+1) + nT-1)//nT - done; bg_issue(k_); done += k_
                tr_do(1)
            bg_issue(nL - done)
        bg('b_zack', 0, 6)
        XF = 36
        for r in range(2):
            for i in range(4):
                for x in self.unpack(XF+8*r+2*i, XR+4*r+i): e(x)
        TH = 66; TX = 14; vZ = 28; vH2 = 29; ZI = 72; vMsk = 30
        vP2 = 24; vXa = 25; vA2 = 26; vA4 = 27; vP3 = 23; vX2 = 22; vAc1 = 21
        c1 = -2*1.4426950408889634*0.7978845608028654; c2 = c1*0.044715
        gs = (-c2)**(1/3); sGk, sGs = 30, 31
        e(f'''
        v_and_b32 v{t}, 0xfc, v0
        v_and_b32 v{t+2}, 0x30, v1
        s_movk_i32 s{sT}, {HBLK}
        v_mad_u32_u24 v{vZ}, v{t}, s{sT}, v{t+2}
        s_lshr_b32 s{sT}, s{sL}, 1
        s_lshl_b32 s{sT}, s{sT}, 6
        s_add_u32 s{sT}, s{sT}, {ZY}
        s_add_u32 s{sT+1}, s{sT}, {HBLK}
        s_add_u32 s{sT+2}, s{sT}, {2*HBLK}
        s_add_u32 s{sT+3}, s{sT}, {3*HBLK}
        s_lshl_b32 s{sT+8}, s{sW}, 10
        s_add_u32 s{sT+8}, s{sT+8}, {MX}
        s_bitcmp1_b32 s{sL}, 0
        s_cselect_b32 s{sLo}, 0x04040000, 0
        s_add_u32 s{sHi}, s{sLo}, 0x03020c0c
        s_add_u32 s{sLo}, s{sLo}, 0x01000c0c
        s_mov_b32 s{sM}, {fbits(2.0**64)}
        v_lshrrev_b32 v{t}, 3, v0
        v_and_b32 v{t+1}, 0x70, v1
        v_lshl_add_u32 v{vH2}, v{t}, 10, v{t+1}
        s_lshr_b32 s{sT+4}, s{sL}, 2
        s_lshl_b32 s{sT+4}, s{sT+4}, 7
        s_and_b32 s{sT+5}, s{sL}, 3
        s_add_u32 s{sT+4}, s{sT+4}, s{sT+5}
        s_lshl_b32 s{sT+4}, s{sT+4}, 8
        s_add_u32 s{sT+4}, s{sT+4}, {H2}
        s_mov_b32 s{sT+5}, {X2}
        v_mov_b32 v{vMsk}, s{sMask}
        s_lshl2_add_u32 s{sT+6}, s{sL}, s{sW}
        s_lshl_b32 s{sT+6}, s{sT+6}, 7
        s_add_u32 s{sT+6}, s{sT+6}, {F2}
        s_lshl2_add_u32 s0, s{sMt}, s{sW}
        s_lshl_b32 s{sXg}, s0, 15
        s_add_u32 s{sXg}, s{sXg}, {H2}
        s_lshl4_add_u32 s0, s0, s{sNt}
        s_mul_i32 s0, s0, {7*1024}
        s_add_u32 s{sActS}, s0, {ACT}
        s_add_u32 s{sActS+1}, s0, {ACT+4096}
        s_add_u32 s{sF3o}, s{sT+6}, {F3-F2}
        s_and_b32 s0, s{sL}, 0x98
        s_bfe_u32 s1, s{sTb}, 0x10001
        s_lshl2_add_u32 s0, s1, s0
        s_lshl_b32 s1, s{sW}, 5
        s_add_u32 s0, s0, s1
        s_and_b32 s1, s{sTb}, 1
        s_lshl1_add_u32 s0, s0, s1
        s_lshl_b32 s0, s0, 8
        s_add_u32 s{sF3p}, s0, {F3}
        s_lshl3_add_u32 s0, s{sTb}, s{sW}
        s_mul_i32 s0, s0, {28*1024}
        s_add_u32 s{sActG}, s0, {ACT}
        s_waitcnt {self.wvm(id_z)}''')
        self.stamp('_zack')
        if F1N == 108: f1_publish()
        z_loads = '\n'.join(f'buffer_load_dwordx4 {vr(ZI+4*i,4)}, v{vZ}, {SRD}, s{sT+i} offen sc1' for i in range(4))
        XG = 32
        z_loads += f'\nbuffer_load_dwordx4 {vr(XG,4)}, v1, {SRD}, s{sT+8} offen sc1'
        id_zl = e(z_loads)
        if F1P == 0:
            self.check(f1_load, [vPolled], id_f1); f1ok[0] = True
        elif F1P == 1: id_f1 = e(f1_load)
        bg('b_zld', 3, 0)
        bg('b_zld2', 0, 4)
        e(f'''
        v_lshrrev_b32 v{TH}, 3, v{t+1}
        v_alignbit_b32 v{TH}, v2, v2, v{TH}
        v_alignbit_b32 v{TH+1}, v{TH}, v{TH}, 1
        v_and_b32 v{TH}, s{sTm}, v{TH}
        v_and_b32 v{TH+1}, s{sTm}, v{TH+1}
        v_bfe_u32 v{t}, v0, 2, 3
        v_bfe_u32 v{t+3}, v0, 5, 1
        v_lshl_add_u32 v{t+2}, v{t+3}, 6, v{t+2}
        v_lshl_add_u32 v{vXa}, v{t}, 7, v{t+2}
        v_lshrrev_b32 v{TX}, 3, v{t+2}
        v_alignbit_b32 v{TX}, v2, v2, v{TX}
        v_alignbit_b32 v{TX+1}, v{TX}, v{TX}, 1
        v_and_b32 v{TX}, s{sTm}, v{TX}
        v_and_b32 v{TX+1}, s{sTm}, v{TX+1}
        v_add_u32 v{vA2}, 65536, v1
        v_add_u32 v{vA4}, 131072, v1
        v_add_u32 v{vAc1}, {112*1024}, v1
        v_mov_b32 v{vInv+1}, {fbits(1e-5/gs**2)}
        s_mov_b32 s{sGk}, {fbits(c1/gs)}
        s_mov_b32 s{sGs}, {fbits(gs*gs*2.0**64)}
        s_mov_b32 s{sM+1}, {fbits(gs)}
        v_bfe_u32 v{t}, v0, 1, 2
        v_and_b32 v{t+2}, 1, v0
        v_lshlrev_b32 v{t+2}, 7, v{t+2}
        v_lshl_add_u32 v{vP3}, v{t}, 9, v{t+2}
        v_bfe_u32 v{t}, v0, 3, 2
        v_lshl_add_u32 v{t}, v{t}, 1, v{t+3}
        v_lshl_add_u32 v{t}, v{t}, 10, v{t+1}
        s_lshl3_add_u32 s0, s{sTb}, s{sW}
        s_lshl_b32 s0, s0, 6
        s_add_u32 s0, s0, s{sDt}
        s_lshl_b32 s0, s0, 7
        v_add_u32 v{vX2}, s0, v{t}''')
        self.stamp('_zchk')
        ZC = 144
        e(f's_waitcnt {self.wvm(id_zl)}\nL_zchk:')
        for i in range(16): e(f'v_xor_b32 v{ZC+i}, v{ZI+i}, v{TZ+(i&3)}')
        e(f'v_cmp_ne_u32 {sp(sBad)}, v{XG+3}, v2')
        for i in range(5): e(f'v_or3_b32 v{160+i}, v{ZC+3*i}, v{ZC+3*i+1}, v{ZC+3*i+2}')
        e(f"""
        v_or3_b32 v160, v160, v161, v162
        v_or3_b32 v163, v163, v164, v{ZC+15}
        v_bitop3_b32 v160, v160, v163, s{sTm} bitop3:0xa8
        v_cmp_ne_u32 vcc, 0, v160
        s_or_b64 {sp(sBad)}, {sp(sBad)}, vcc
        s_cbranch_scc1 L_zretry""")
        self.tail.append(f"""L_zretry:
        s_sub_u32 s{sCnt}, s{sCnt}, 1
        s_cbranch_scc1 L_end
        s_wqm_b64 exec, {sp(sBad)}
        {z_loads}
        s_mov_b64 exec, -1
        s_waitcnt vmcnt(0)
        s_branch L_zchk""")
        self.stamp('z_ok')
        if F1P == 1: self.check(f1_load, [vPolled], id_f1); f1ok[0] = True
        elif F1P == 2: id_f1 = e(f1_load)
        nl2 = [self.opt('b_ln2', 10)]
        def ln2bg(n=1):
            for _ in range(n):
                if nl2[0] > 0: bg_issue(1); nl2[0] -= 1
        ZF = 88
        for i in range(4):
            ln2bg()
            for r in range(2):
                z = ZF+8*r+2*i
                e(f'v_perm_b32 v{z}, v{ZC+4*i+2+r}, v{ZC+4*i+r}, s{sLo}\nv_perm_b32 v{z+1}, v{ZC+4*i+2+r}, v{ZC+4*i+r}, s{sHi}')
            for r in range(2):
                z = ZF+8*r+2*i; x = XF+8*r+2*i
                e(f'v_pk_fma_f32 {vr(x,2)}, {vr(z,2)}, {sp(sM)}, {vr(x,2)} op_sel_hi:[1,0,1]')
            for r in range(2):
                x = XF+8*r+2*i
                e(f'v_cvt_pk_bf16_f32 v{XR+4*r+i}, v{x}, v{x+1}')
        unp = [x for r in range(2) for i in range(4) for x in self.unpack(XF+8*r+2*i, XR+4*r+i)]
        self.stats_partial(XR, t, vSBw, unp)
        unp = self.rest
        ln2bg(2)
        for x in unp: e(x)
        e('s_waitcnt lgkmcnt(0)\ns_barrier')
        maxt[0] = 3
        self.stamp('_ln2bar')
        ST = 128
        self.stats_read(ST, vSBr)
        GBV = 12
        for i in range(4):
            ln2bg()
            for kind in range(2):
                d = ZF+8*kind+2*i
                qp = f'quad_perm:[{i},{i},{i},{i}] row_mask:0xf bank_mask:0xf'
                e(f'v_cvt_f32_bf16_dpp v{d}, v{XG+kind} {qp}\nv_and_b32_dpp v{d+1}, v{XG+kind}, v{vMsk} {qp}')
        for i in range(4): e(f'v_pk_mul_f32 {vr(ZF+8+2*i,2)}, {vr(ZF+8+2*i,2)}, {sp(sM)} op_sel:[0,1] op_sel_hi:[1,1]')
        e('s_waitcnt lgkmcnt(0)')
        self.stats_finish(ST, vInv, pre=1/gs**2)
        HO = 104
        for r in range(2):
            for i in range(4):
                x = XF+8*r+2*i
                e(f'v_pk_fma_f32 {vr(x,2)}, {vr(x,2)}, {vr(ST+2*r,2)}, {vr(ST+2*r,2)} op_sel:[0,0,1] op_sel_hi:[1,0,1]')
            for i in range(4):
                x = XF+8*r+2*i
                e(f'v_pk_fma_f32 {vr(x,2)}, {vr(x,2)}, {vr(ZF+2*i,2)}, {vr(ZF+8+2*i,2)}')
            for i in range(4):
                x = XF+8*r+2*i
                e(f'v_cvt_pk_bf16_f32 v{HO+4*r+i}, v{x}, v{x+1}')
            for m in range(2): e(f'v_bfi_b32 v{HO+4*r+m}, s{sTm}, v{TH+m}, v{HO+4*r+m}')
            id_h = e(f'buffer_store_dwordx4 {vr(HO+4*r,4)}, v{vH2}, {SRD}, s{sT+4} offen offset:{128*r} sc1')
        self.stamp('h2_stored')
        e(f'v_mov_b32 v{GBV}, v{XG+2}')
        if F1P == 2: self.check(f1_load, [vPolled], id_f1); f1ok[0] = True
        bg('b_hack', 6, 14)
        while dq and dq[0][1] < 3:
            x, i = dq.pop(0); dma_id[i] = e(x)
        e(f's_waitcnt {self.wvm(id_h)}')
        self.stamp('_h2_ack')
        bg('b_flag', 0, 0)
        X = 128
        AC = [28, 44, 60, 76]
        WE = self.opt('we', 2); LA = 3 + WE; NB = LA + 2; WF = 92
        TA, TA1 = 20, 23; GT = 120; GO = 16; X2R = 4; vP4 = 24; vPo = 25; vPo4 = 3
        P1 = self.opt('p1', 25)
        if P1 == 25:
            seq = []
            for s in range(32):
                seq += [(0, s), (1, s)]
                if s & 1: seq.append((2, s >> 1))
            seq += [(2, s) for s in range(16, 32)]
        else:
            seq = [(tl, s) for s in range(32) for tl in range(P1)] + [(tl, s) for tl in range(P1,3) for s in range(32)]
        seq += [(tl, s) for tl in range(3,7) for s in range(32)]
        slot = {0:0,1:1,2:2,3:3,4:4,5:0,6:1}
        acc = {tl: AC[tl % 4] for tl in range(7)}
        w_id = {}
        def wread(n):
            tl, s = seq[n]; sl = slot[tl]
            va = {0:1,1:1,2:vA2,3:vA2,4:vA4}[sl]
            e(f'ds_read_b128 {vr(WF+4*(n%NB),4)}, v{va} offset:{(sl&1 if sl<4 else 0)*32768 + 1024*kperm(s)}'); w_id[n] = self.nlg
        kperm = lambda s: 8*(s & 3) + (s >> 2)
        sXb = sM
        for j in range(8): e(f's_add_u32 s{sXb+j}, s{sXg}, {4096*j}')
        x_id = []
        def xtext(s): return f'buffer_load_dwordx4 {vr(X+4*s,4)}, v{vXa}, {SRD}, s{sXb+(kperm(s)>>2)} offen offset:{1024*(kperm(s)&3)} sc1'
        def xload(): x_id.append(e(xtext(len(x_id))))
        def xcheck(s):
            Lc = p.label('xc'); Lr = p.label('xr'); Ld = p.label('xd'); r0 = X+4*s
            body = [f'v_xor_b32 v{r0+4*j+m}, v{r0+4*j+m}, v{TX+m}' for j in range(2) for m in range(2)]
            body += [f'v_or3_b32 v13, v{r0}, v{r0+1}, v{r0+4}', f'v_bitop3_b32 v13, v13, v{r0+5}, s{sTm} bitop3:0xa8', 'v_cmp_ne_u32 vcc, 0, v13']
            def branch():
                rest = '\n'.join(xtext(j) for j in range(s+2, len(x_id)))
                self.tail.append(f'{Lr}:\ns_sub_u32 s{sCnt}, s{sCnt}, 1\ns_cbranch_scc1 L_end\n{xtext(s)}\n{xtext(s+1)}\ns_waitcnt vmcnt(0)\n' + '\n'.join(body) +
                                 f'\ns_cmp_lg_u64 vcc, 0\ns_cbranch_scc1 {Lr}\n{rest}\ns_branch {Ld}')
                e(f's_cbranch_vccnz {Lr}\n{Ld}:')
                assert self.nvm == x_id[-1] or len(x_id) == 32
                if self.nvm != x_id[-1]: self.tail[-1] = self.tail[-1].replace(f's_branch {Ld}', f's_waitcnt vmcnt(0)\ns_branch {Ld}')
            return body, branch
        XLA = self.opt('xla', 10)
        for s in range(XLA): xload()
        bg('b_x', 2, 0)
        if self.o.get('verbose'): print('transposes left', 28-len(trd), 'wd left', len(wdq), 'dq left', len(dq))
        e(f"""
        v_mov_b32 v124, v{vWdA}
        v_mov_b32 v{TA}, v{TH}
        v_mov_b32 v{TA1}, v{TH+1}
        v_and_b32 v{vP4}, 7, v0
        s_lshr_b32 s0, s{sDt}, 1
        s_lshl_b32 s1, s{sTb}, 5
        s_add_u32 s0, s0, s1
        s_lshl_b32 s0, s0, 7
        s_add_u32 s0, s0, {F3}
        v_lshl_add_u32 v{vP4}, v{vP4}, 9, s0
        s_waitcnt {self.wvm(dma_id[2])} lgkmcnt(0)
        s_barrier""")
        wdq[:] = [(k_, x.replace(f'v{vWdA}', 'v124')) for k_, x in wdq]
        for n in range(LA): wread(n)
        xb, xbr = xcheck(0)
        e(f's_waitcnt {self.wvm(x_id[1])}\n' + '\n'.join(xb)); xbr()
        self.stamp('f2_ok')
        xq = []; xnext = 2
        f4_load = f'buffer_load_dword v{vPo4}, v{vP4}, {SRD}, 0 offen sc1'
        def gelu(tl):
            a = acc[tl]; out = []
            for hf in range(2):
                E = [a+4*hf+j for j in range(4)]
                out += [f'v_fma_f32 v{GT+j}, -v{E[j]}, v{E[j]}, s{sGk}' for j in range(4)]
                out += [f'v_mul_f32 v{GT+j}, v{GT+j}, v{E[j]}' for j in range(4)]
                for j in range(4): out += [f'v_exp_f32 v{GT+j}, v{GT+j}', f'v_mul_f32 v{E[j]+8}, v{E[j]+8}, v{E[j]}']
                for j in range(4): out += [f'v_fma_f32 v{GT+j}, v{GT+j}, s{sGs}, s{sGs}']
                for j in range(4): out += [f'v_rcp_f32 v{GT+j}, v{GT+j}']
                for j in range(4): out += [f'v_mul_f32 v{E[j]+8}, v{E[j]+8}, v{GT+j}']
                out += [f'v_cvt_pk_bf16_f32 v{GO+2*hf+j}, v{E[2*j]+8}, v{E[2*j+1]+8}' for j in range(2)]
                if hf == 0: out += [f'v_bfi_b32 v{GO+j}, s{sTm}, v{(TA,TA1)[j]}, v{GO+j}' for j in range(2)]
            out.append(f'buffer_store_dwordx4 {vr(GO,4)}, v1, {SRD}, s{sActS+(tl>>2)} offen offset:{1024*(tl&3)} sc1')
            return [(x, tl) for x in out]
        last = {tl: max(n for n, (a_, _) in enumerate(seq) if a_ == tl) for tl in range(7)}
        first = {tl: min(n for n, (a_, _) in enumerate(seq) if a_ == tl) for tl in range(7)}
        gq = []; vq = list(dq) + [(x, 4) for x in self.dma_tile(4,4)]; st_id = {}; st_n = {}
        a_id = []; xfree = [0]; consumed = set()
        k0 = 28 - 4*len(groups[-1])
        lorder = [(kk, tt) for kk in range(k0) for tt in range(2)] + [(kk, tt) for tt in range(2) for kk in range(k0, 28)]
        NAG = 0
        def areg(kk): return ar(224+4*kk, 4) if kk < NAG else vr(X+4*((kk-NAG) % 32), 4)
        def acan():
            kk = len(a_id)
            if not checked or kk >= gend[checked-1]: return False
            return kk < NAG or (kk-NAG < xfree[0] if kk-NAG < 32 else kk-32 in consumed)
        def atext(kk, base=True):
            T, tt = korder[lorder[kk][0]], lorder[kk][1]
            return (f's_add_u32 s{sActT}, s{sActG}, {T*1024}\n' if base else '') + f'buffer_load_dwordx4 {areg(kk)}, v{vAc1 if tt else 1}, {SRD}, s{sActT} offen sc1'
        def aload():
            kk = len(a_id)
            a_id.append(e(atext(kk, kk == 0 or lorder[kk-1][0] != lorder[kk][0])))
        def acheck(kk):
            Lr = p.label('ar'); Ld = p.label('ad'); r0 = X+4*(kk % 32)
            body = [f'v_xor_b32 v{r0+4*j+m}, v{r0+4*j+m}, v{(TA,TA1)[m]}' for j in range(2) for m in range(2)]
            body += [f'v_or3_b32 v{vPo}, v{r0}, v{r0+1}, v{r0+4}', f'v_bitop3_b32 v{vPo}, v{vPo}, v{r0+5}, s{sTm} bitop3:0xa8', f'v_cmp_ne_u32 vcc, 0, v{vPo}']
            def branch():
                last = len(a_id)-1
                self.tail.append(f'{Lr}:\ns_sub_u32 s{sCnt}, s{sCnt}, 1\ns_cbranch_scc1 L_end\n{atext(kk)}\n{atext(kk+1)}\ns_waitcnt vmcnt(0)\n' + '\n'.join(body) +
                                 f'\ns_cmp_lg_u64 vcc, 0\ns_cbranch_scc1 {Lr}\ns_add_u32 s{sActT}, s{sActG}, {korder[lorder[last][0]]*1024}\ns_branch {Ld}')
                e(f's_cbranch_vccnz {Lr}\n{Ld}:' if not self.opt('nochk', 0) else f'{Ld}:')
            return (body if self.opt('nochk', 0) < 2 else []), branch
        if self.opt('hot', 0): e(f's_mov_b32 s{sActG}, {WGU}')
        AD = [int(v) for v in str(self.opt('ad', '30')).split('_')]; AD += AD[-1:]*7
        checked = 0; x2id = [0]
        gend = [sum(len(g) for g in groups[:i+1])*8 for i in range(len(groups))]
        def progress(n, force=None):
            nonlocal checked
            fo = -1 if force is None else force
            if checked < len(groups) and groups[checked][-1] in st_id and (n >= st_n[groups[checked][-1]] + AD[checked] or fo >= checked):
                if fo >= checked: e(f's_waitcnt {self.wvm(st_id[groups[checked][-1]])}')
                checked += 1
            return False
        def emit_g(x, b_, n):
            i_ = e(x)
            if x.startswith('buffer_'):
                st_id[b_] = i_; st_n[b_] = n
                r = b_ - self.opt('x2t', 1)
                if r in (0, 1): x2id[0] = e(f'buffer_store_dwordx4 {vr(XR+4*r,4)}, v{vXO}, {SRD}, s{sT+5} offen offset:{1024*r} sc1')
                if r == 3: e(f's_waitcnt {self.wvm(x2id[0])}\n' + self.flag_text(vF, sF3o))
        PACE = self.opt('pace', 25); nextv = [0]
        def pump(n):
            if 10*n < nextv[0]: return False
            if vq and (first[vq[0][1]] - n < self.opt('urg', 99) or not (acan() or wdq)):
                x, i = vq.pop(0); dma_id[i] = e(x)
            elif acan(): aload()
            elif wdq: wd_issue(1)
            else: return False
            nextv[0] = max(nextv[0], 10*n - 10) + PACE
            return True
        tq_ = [(T, x) for T in korder if T not in trd and not self.opt('notr', 0) for x in tr_ops(T)]
        t_id = {}
        def poptr():
            T, x = tq_.pop(0)
            if wd_id[(T,1)] > trw[0]:
                trw[0] = wd_id[(T,1)]; e(f's_waitcnt {self.wvm(trw[0])}')
            e(x); t_id[T] = self.nlg
        grate = self.opt('grate', 30); wwait = 0
        for n, (tl, s) in enumerate(seq):
            if n in (1, 48, 96, 128, 160, 192): self.stamp(f'_g{n}')
            for a_ in range(6):
                if n == last[a_] + 4: gq += gelu(a_)
            if n == last[1] + 1 and n > first[3] - LA:
                e('s_barrier'); vq += [(x, i) for i in (5,6) for x in self.dma_tile(i, i-5)]
            for a_ in range(3, 7):
                if n == first[a_] - LA:
                    while a_ not in dma_id or any(i == a_ for _, i in vq):
                        x, i = vq.pop(0); dma_id[i] = e(x)
                    e(f's_waitcnt {self.wvm(dma_id[a_])}\ns_barrier')
                    if a_ == 3 and n > last[1]: vq += [(x, i) for i in (5,6) for x in self.dma_tile(i, i-5)]
            w_ = ''
            if w_id[n] > wwait:
                tgt = w_id[min(n+WE-1, len(seq)-1)]; w_ = self.wlg(tgt); wwait = tgt
            if tl == 0 and s % 2 == 0:
                while len(xq) > 1: e(xq.pop(0))
                if xq: xq.pop(0)()
            if w_: e(f's_waitcnt {w_}')
            if s == 0: assert not any(b_ == tl-4 for _, b_ in gq), (n, len(gq))
            c_ = '0' if s == 0 else vr(acc[tl],16)
            e(f'v_mfma_f32_32x32x16_bf16 {vr(acc[tl],16)}, {vr(WF+4*(n%NB),4)}, {vr(X+4*s,4)}, {c_}')
            if tl == 6: xfree[0] = s
            if n + LA < len(seq): wread(n+LA)
            budget = (grate*(n+1))//10 - (grate*n)//10
            if tl == 1 and s % 2 == 0 and s+2 < 32:
                xb, xbr = xcheck(s+2)
                e(f's_waitcnt {self.wvm(x_id[s+3])}'); xq = xb + [xbr]
            for _ in range(3):
                if len(xq) > 1: e(xq.pop(0))
            if progress(n): budget -= 2
            elif len(x_id) < 32:
                if tl == 0: xload()
                elif P1 == 3 and tl == 1 and s % 4 == 0: pump(n)
            else: pump(n)
            while gq and budget > 0:
                x, b_ = gq.pop(0); budget -= 1
                emit_g(x, b_, n)
            if n >= first[6] - LA and tq_ and (budget > 0 or n % self.opt('t6', 3) == 0) and wd_id.get((tq_[0][0], 1), 1e9) <= self.nvm - 6:
                poptr()
                if budget > 1 and tq_ and 'read' in tq_[0][1]: poptr()
        assert not vq
        self.stamp('g1_mfma')
        n = len(seq); xfree[0] = 32
        wd_issue(56)
        e(f"""
        v_lshlrev_b32 v{WF}, 2, v0
        v_add_u32 v{WF}, {L_GB}, v{WF}
        ds_write_b32 v{WF}, v{GBV}""")
        while any(b_ <= 4 for _, b_ in gq):
            x, b_ = gq.pop(0); emit_g(x, b_, n)
        g6pos = len(p.text); g6 = gelu(6)
        A2 = [ar(224,16), ar(240,16), vr(AC[0],16), vr(AC[3],16)]
        a2q = lambda q_, i: ar(224+16*q_+4*i, 4) if q_ < 2 else vr(AC[3*(q_-2)]+4*i, 4)
        vRw = 12; vRr = 13; vG = 14
        fill = f"""v_bfe_u32 v{WF}, v0, 5, 1
        v_and_b32 v{WF+1}, 0x1f0, v1
        s_mul_i32 s{sT}, s{sW}, {4*RQ}
        s_add_u32 s{sT}, s{sT}, {L_RED}
        v_mul_u32_u24 v{WF}, {RQ}, v{WF}
        v_add3_u32 v{vRw}, v{WF}, v{WF+1}, s{sT}
        v_and_b32 v{WF}, 7, v0
        v_lshrrev_b32 v{WF+1}, 3, v0
        v_mul_u32_u24 v{WF+2}, {RSA}, v{WF}
        v_lshl_add_u32 v{vRr}, v{WF+1}, 4, v{WF+2}
        v_add_u32 v{vRr}, {L_RED}, v{vRr}
        s_lshl_b32 s{sT}, s{sDt}, 7
        s_add_u32 s{sT}, s{sT}, {L_GB}
        v_lshl_add_u32 v{vG}, v{WF}, 4, s{sT}
        s_add_u32 s{sT+2}, s{pOut}, 32768
        s_addc_u32 s{sT+3}, s{pOut+1}, 0""".split('\n')
        fill[-2:] = ['\n'.join(fill[-2:])]
        XF2 = 96
        fill2 = [x for tt in range(2) for j in range(4) for x in self.unpack(XF2+8*tt+2*j, X2R+4*tt+j)]
        TAILK = self.opt('tailk', 6)
        o2 = [(kk, tt, c) for kk in range(28-TAILK) for tt in range(2) for c in range(2)]
        o2 += [(kk, tt, c) for tt in range(2) for c in range(2) for kk in range(28-TAILK, 28)]
        PACE = self.opt('pace2', 22)
        wq = []; twait = 0; await_ = 0; X2M = self.opt('x2m', 30); used = {}
        GF = 112; vRr2 = 15; OO = [16, 4]
        def redw(q_): return [f'ds_write_b128 v{vRw}, {a2q(q_, i)} offset:{2*RQ*(q_>>1)+(4*(q_&1)+i)*RSA}' for i in range(4)]
        RDS = [AC[1], 128]
        r_id = {}
        def redr(tt):
            for hs in range(2):
                for w in range(4):
                    e(f'ds_read_b128 {vr(RDS[tt]+16*hs+4*w,4)}, v{vRr if w<2 else vRr2} offset:{(4*(w&1)+2*tt+hs)*RQ}')
                r_id[(tt, hs)] = self.nlg
        def redm(tt):
            out = []
            for hs in range(2):
                r = RDS[tt]+16*hs
                out.append(('w', (tt, hs)))
                for hh in range(2):
                    out += [f'v_pk_add_f32 {vr(r+2*hh,2)}, {vr(r+2*hh,2)}, {vr(r+4+2*hh,2)}', f'v_pk_add_f32 {vr(r+8+2*hh,2)}, {vr(r+8+2*hh,2)}, {vr(r+12+2*hh,2)}']
                out += [f'v_pk_add_f32 {vr(r+2*hh,2)}, {vr(r+2*hh,2)}, {vr(r+8+2*hh,2)}' for hh in range(2)]
                out += [f'v_pk_fma_f32 {vr(r+2*hh,2)}, {vr(r+2*hh,2)}, {vr(GF+4*hs+2*hh,2)}, {vr(XF2+8*tt+4*hs+2*hh,2)}' for hh in range(2)]
                out += [f'v_cvt_pk_bf16_f32 v{OO[tt]+2*hs+hh}, v{r+2*hh}, v{r+2*hh+1}' for hh in range(2)]
            out.append(f'global_store_dwordx4 v{vX2}, {vr(OO[tt],4)}, {sp(pOut) if tt==0 else sp(sT+2)} {self.opt("outflag","sc1").replace("_"," ").replace("none","")}')
            return out
        def emit_m(x):
            if isinstance(x, tuple): e(f's_waitcnt {self.wlg(r_id[x[1]])}')
            else: e(x)
        fill.append(f'v_add_u32 v{vRr2}, {8*RQ}, v{vRr}')
        fill2.append(f's_mov_b32 s{sGk}, {fbits(2.0**64)}')
        states = lambda pos: sum(hazard.I(l).states() for l in p.text[pos:])
        wdone = 0; barA = False; aq = []; achk = 0; anext = 0
        firstm = {}
        for m_, (kk, tt, c) in enumerate(o2): firstm.setdefault(lorder.index((kk, tt)), m_)
        for m_, (kk, tt, c) in enumerate(o2):
            f = lorder.index((kk, tt)); T = korder[kk]; q_ = 2*tt + c
            if m_ in (0, 28, 56, 84): self.stamp(f'_h{m_//2}')
            if m_ == X2M: id_f4 = e(f4_load)
            if m_ == X2M + 20:
                while len(aq) > 1: e(aq.pop(0))
                if aq: aq.pop(0)(); achk = anext
                self.check(f4_load, [vPo4], id_f4)
                id_x2l = e(f's_mov_b32 s0, {X2}\nbuffer_load_dwordx4 {vr(X2R,4)}, v{vX2}, {SRD}, s0 offen sc1\ns_mov_b32 s0, {X2+32768}\nbuffer_load_dwordx4 {vr(X2R+4,4)}, v{vX2}, {SRD}, s0 offen sc1')
            if m_ == 76:
                e(f's_waitcnt {self.wvm(id_x2l)}'); fill += fill2
            while len(a_id) <= f:
                g = min(i for i in range(len(groups)) if gend[i] > len(a_id))
                while groups[g][-1] not in st_id:
                    if not gq: gq += g6; g6 = []
                    x, b_ = gq.pop(0); emit_g(x, b_, n)
                while checked <= g: progress(n, force=g)
                assert acan()
                aload()
            ahead = max(lorder.index((k2, t2)) for k2, t2, _ in o2[m_:m_+2*self.opt('amin', 8)])
            for _ in range(8 if len(a_id) <= f+2 else 2):
                if acan() and len(a_id) <= ahead: aload(); nextv[0] = 10*n + PACE
            while any(T_ == T for T_, _ in tq_): poptr()
            while achk < f + 1:
                if not aq:
                    while len(a_id) < anext + 2: aload()
                    e(f's_waitcnt {self.wvm(a_id[anext+1])}'); b_, br_ = acheck(anext); aq = b_ + [br_]; anext += 2
                while len(aq) > 1: e(aq.pop(0))
                aq.pop(0)(); achk = anext
            w_ = ''
            if t_id.get(T, 0) > twait: w_ += ' ' + self.wlg(t_id[T]); twait = t_id[T]
            if w_: e(f's_waitcnt {w_}')
            e(f'v_mfma_f32_32x32x16_bf16 {A2[q_]}, {ar(8*T+4*c,4)}, {areg(f)}, {"0" if kk==0 else A2[q_]}')
            n += 1
            used[f] = used.get(f, 0) + 1
            if kk == 27 and q_ < 3: wq.append((len(p.text), redw(q_)))
            if not progress(n): pump(n)
            if used[f] == 2: consumed.add(f)
            if len(aq) == 1: aq.pop(0)(); achk = anext
            elif not aq and anext < 56 and len(a_id) >= anext + 2 and firstm[anext] <= m_ + self.opt('clead', 5) and m_ != X2M + 19:
                e(f's_waitcnt {self.wvm(a_id[anext+1])}'); b_, br_ = acheck(anext); aq = b_ + [br_]; anext += 2
            for _ in range(4 if not gq else 3):
                if len(aq) > 1: e(aq.pop(0))
            if g6 and states(g6pos) >= 12: gq += g6; g6 = []
            if gq:
                for _ in range(self.opt('grate2', 4)):
                    if gq:
                        x, b_ = gq.pop(0); emit_g(x, b_, n)
                if m_ & 1 and tq_: poptr()
                continue
            if wq:
                if states(wq[0][0]) < 12: e(f's_nop {min(4, 11-states(wq[0][0]))}')
                if states(wq[0][0]) >= 12:
                    e(wq[0][1].pop(0))
                    if not wq[0][1]: wq.pop(0); wdone += 1; wlast = self.nlg
                continue
            if wdone >= 2 and not barA and self.opt('tsplit', 1):
                e(f's_waitcnt {self.wlg(wlast)}\ns_barrier\nds_read_b128 {vr(GF+8,4)}, v{vG}'); g_id = self.nlg; barA = True
                redr(0); continue
            for _ in range(self.opt('trate', 2) - c):
                if tq_: poptr()
            for _ in range(2):
                if fill: e(fill.pop(0))
        assert not fill and not tq_ and not gq and not g6
        self.stamp('g2_mfma')
        lastpos = len(p.text)
        for _, ws_ in wq:
            for x in ws_: e(x)
        if not barA and self.opt('tsplit', 1):
            e(f's_waitcnt lgkmcnt(0)\ns_barrier\nds_read_b128 {vr(GF+8,4)}, v{vG}'); g_id = self.nlg; barA = True
            redr(0)
        gun = [x for j in range(4) for x in self.unpack(GF+2*j, GF+8+j)]
        gun += [f'v_pk_mul_f32 {vr(GF+2*j,2)}, {vr(GF+2*j,2)}, {sp(sGk)} op_sel_hi:[1,0]' for j in range(4)]
        if barA:
            for x in redw(3): e(x)
            wlast = self.nlg
            e(f's_waitcnt {self.wlg(g_id)}')
            for x in gun + redm(0): emit_m(x)
            e(f's_waitcnt lgkmcnt(0)\ns_barrier')
            redr(1)
            for x in redm(1): emit_m(x)
        else:
            for x in redw(3): e(x)
            e(f's_waitcnt lgkmcnt(0)\ns_barrier\nds_read_b128 {vr(GF+8,4)}, v{vG}'); g_id = self.nlg
            redr(0); redr(1)
            e(f's_waitcnt {self.wlg(g_id)}')
            for x in gun + redm(0) + redm(1): emit_m(x)
        self.stamp('end')
        e(f'''
        s_or_b32 s0, s{sL}, s{sW}
        s_cbranch_scc1 L_noep''')
        e(self.flag_text(vF, 0))
        e('L_noep:')
        if self.stamps:
            e(f'''
            s_lshl2_add_u32 s{sT}, s{sL}, s{sW}
            s_lshl_b32 s{sT}, s{sT}, 7
            s_add_u32 s{sT}, s{sT}, {STMP}
            v_mov_b32 v4, 0
            s_mov_b64 exec, 1''')
            for i in range(self.ns):
                e(f'v_mov_b32 v5, s{sStamp+i}\nbuffer_store_dword v5, v4, {SRD}, s{sT} offen offset:{4*i}')
            e(f'v_mov_b32 v5, s{sCnt}\nbuffer_store_dword v5, v4, {SRD}, s{sT} offen offset:124')
        if self.o.get('probe') is not None:
            kk = self.stamp_names.index(self.o['probe'])
            e(f'''
            s_add_u32 s{sT}, s{sStamp+kk}, 5000
            L_spin:
            s_sleep 1
            s_memrealtime s[22:23]
            s_waitcnt lgkmcnt(0)
            s_sub_u32 s{sT+1}, s22, s{sT}
            s_cmp_lt_i32 s{sT+1}, 0
            s_cbranch_scc1 L_spin''')
        e('s_endpgm')
        for x in self.tail: e(x)
        e('L_end:\ns_endpgm')
        p.end(k, vgpr=256, agpr=256, sgpr=102)
        p.text, added = hazard.fix(p.text, verbose=self.o.get('verbose'))
        if self.opt('align', 6):
            p.text, nw, nn = align.fix(p.text, self.opt('align', 6))
            if self.o.get('verbose'): print('align: widened', nw, 'nops', nn)
        p.text += ['.p2align 8', 'L_tab:'] + ['.long ' + ', '.join(hex(v) for v in self.table[i:i+16]) for i in range(0, len(self.table), 16)]
        return added

if __name__ == '__main__':
    ap = argparse.ArgumentParser()
    ap.add_argument('out'); ap.add_argument('--stamps', action='store_true'); ap.add_argument('-v', action='store_true')
    ap.add_argument('--probe', default=None); ap.add_argument('-o', action='append', default=[])
    a = ap.parse_args()
    opts = dict(verbose=a.v, probe=a.probe)
    for kv in a.o:
        kk, vv = kv.split('='); opts[kk] = int(vv) if vv.lstrip('-').isdigit() else vv
    g = G(a.stamps or a.probe is not None, opts)
    added = g.build()
    g.p.dump(a.out, single=True)
    n = sum(1 for l in g.p.text if l.startswith('  '))
    print(a.out, 'instructions', n, 'nops added', added, 'stamps', g.stamp_names)
    if a.stamps: open(a.out + '.names', 'w').write(' '.join(g.stamp_names))
```

```python
import re
TRANS = ('v_exp_f32','v_log_f32','v_rcp_f32','v_rsq_f32','v_sqrt_f32','v_sin_f32','v_cos_f32','v_rcp_iflag_f32')
def regs_of(tok):
    tok = tok.strip()
    neg = tok.lstrip('-')
    if neg.startswith('abs(') : neg = neg[4:-1]
    if neg.startswith('|'): neg = neg.strip('|')
    m = re.fullmatch(r'([vas])(\d+)', neg)
    if m: return {(m.group(1), int(m.group(2)))}
    m = re.fullmatch(r'([vas])\[(\d+):(\d+)\]', neg)
    if m: return {(m.group(1), i) for i in range(int(m.group(2)), int(m.group(3))+1)}
    if neg == 'vcc': return {('s','vcc_lo'),('s','vcc_hi')}
    if neg in ('vcc_lo','vcc_hi'): return {('s',neg)}
    if neg == 'exec': return {('s','exec')}
    if neg == 'm0': return {('s','m0')}
    return set()
class I:
    def __init__(self, line):
        self.line = line
        s = line.split(';')[0].strip()
        self.is_label = s.endswith(':') or s.startswith('.') or not s
        self.op = ''; self.w=set(); self.r=set(); self.kind=''
        if self.is_label: return
        parts = s.split(None, 1)
        op = parts[0]; self.rawop = op
        rest = parts[1] if len(parts)>1 else ''
        self.dpp = '_dpp' in op or 'quad_perm' in rest or 'row_' in rest
        self.sdwa = '_sdwa' in op
        op = re.sub(r'_(e32|e64|dpp|sdwa)$', '', op); self.op = op
        ops=[]; cur=''; d=0
        for ch in rest:
            if ch=='[': d+=1
            if ch==']': d-=1
            if ch==',' and d==0: ops.append(cur.strip()); cur=''
            else: cur+=ch
        if cur.strip(): ops.append(cur.strip())
        mods=''
        if ops:
            l = ops[-1].split(None,1)
            ops[-1]=l[0]; mods = l[1] if len(l)>1 else ''
        self.ops=ops; self.mods=mods
        R=[regs_of(o) for o in ops]
        U=lambda L: set().union(*L) if L else set()
        if op.startswith('v_mfma'):
            self.kind='mfma'; self.w=R[0]; self.a=R[1]|R[2]; self.c=R[3]; self.r=self.a|self.c
            self.passes = 8 if '32x32' in op else 4
        elif op.startswith('v_'):
            self.kind='valu'
            if op.startswith('v_permlane') and 'swap' in op: self.w=R[0]|R[1]; self.r=R[0]|R[1]
            elif '_co_' in op: self.w=R[0]|R[1]; self.r=U(R[2:])
            else:
                self.w=R[0]; self.r=U(R[1:])
                if op.startswith(('v_fmac','v_dot2c','v_writelane')) or self.dpp: self.r|=R[0]
                if op.startswith('v_cmpx'): self.w|={('s','exec')}
            self.trans = op in TRANS
            self.dot = op.startswith('v_dot')
            if self.dot: self.c = R[3] if len(R)>3 else R[0]; self.a=R[1]|R[2]
        elif op.startswith(('buffer_','global_')):
            self.kind='vmem'; self.lds = bool(re.search(r'\blds\b', mods)) or '_lds_' in op
            self.store = 'store' in op or 'atomic' in op
            if self.lds: self.r=U(R)|{('s','m0')}
            elif 'load' in op: self.w=R[0]; self.r=U(R[1:])
            else: self.r=U(R)
            self.data=set()
            if self.store and re.search(r'x[34]$', op): self.data = R[0] if op.startswith('buffer_') else R[1]
            if 'atomic' in op and 'sc0' in mods: self.w=R[0]
        elif op.startswith('ds_'):
            self.kind='ds'
            if op.startswith(('ds_read','ds_bpermute','ds_permute','ds_swizzle')): self.w=R[0]; self.r=U(R[1:])
            else: self.r=U(R)
        elif op.startswith('s_'):
            self.kind='salu'
            if op.startswith(('s_cmp','s_cbranch','s_branch','s_waitcnt','s_barrier','s_nop','s_endpgm','s_sleep','s_setprio','s_bitcmp')): self.r=U(R)
            else:
                self.w=R[0] if R else set(); self.r=U(R[1:])
                if 'saveexec' in op: self.w|={('s','exec')}
    def states(self):
        if self.is_label: return 0
        if self.op=='s_nop': return int(self.ops[0],0)+1
        return 1
def need(p, c):
    n=0
    sg=lambda S:{x for x in S if x[0]=='s'}
    vg=lambda S:{x for x in S if x[0]!='s'}
    if p.kind=='valu':
        ws=sg(p.w); wv=vg(p.w)
        if c.kind=='vmem' and ws & c.r: n=max(n,5)
        if c.kind=='valu':
            if ws & c.r: n=max(n, 4 if c.op.startswith(('v_readlane','v_writelane')) else 2)
            if c.dpp and wv & c.r: n=max(n,2)
            if ('s','exec') in ws:
                if c.dpp: n=max(n,5)
                if c.op.startswith(('v_readlane','v_readfirstlane','v_writelane','v_permlane')): n=max(n,4)
            if c.op.startswith(('v_readlane','v_readfirstlane')) and wv & c.r: n=max(n,1)
            if c.op.startswith('v_permlane') and wv & c.r: n=max(n,2)
            if p.trans and wv & c.r: n=max(n,1)
            if p.sdwa and wv & (c.r|c.w): n=max(n,1)
        if c.kind=='mfma':
            if wv & c.r: n=max(n,2)
            if ('s','exec') in ws: n=max(n,4)
        if p.dot:
            if c.kind=='valu' and c.op==p.op:
                if wv & c.a: n=max(n,3)
            elif wv & (c.r|c.w): n=max(n,3)
        if p.trans and c.kind in('ds','vmem') and wv & c.r: n=max(n,1)
    if p.kind=='salu' and ('s','m0') in p.w and (c.kind=='vmem' and c.lds or 'addtid' in c.op): n=max(n,1)
    if p.kind=='vmem' and p.data and p.data & c.w: n=max(n,2)
    if p.kind=='mfma':
        big = {4:8, 8:12}[p.passes]; ovl={4:6, 8:10}[p.passes]; war={4:3,8:7}[p.passes]
        if c.kind=='mfma':
            if p.w & c.a: n=max(n,big)
            if p.w & c.c and not (p.w==c.c and p.passes==c.passes): n=max(n,ovl)
            if p.w & c.w and not (p.w==c.c): n=max(n,ovl)
        elif c.kind in ('valu','vmem','ds'):
            if p.w & (c.r|c.w): n=max(n,big)
            if p.c & c.w: n=max(n,war)
    return n
def fix(lines, verbose=False):
    out=[]; ins=[]; added=0
    for ln in lines:
        c=I(ln)
        if not c.is_label:
            dist=0; req=0
            for p in reversed(ins[-24:]):
                if not p.is_label:
                    k=need(p,c)
                    if k-dist>req: req=k-dist
                dist+=p.states()
                if dist>=13: break
            if req>0:
                nop=f'  s_nop {req-1}'
                out.append(nop); ins.append(I(nop)); added+=1
                if verbose: print('nop',req,'before',ln)
        out.append(ln); ins.append(c)
    return out, added
def check_global_addresses(lines, table_base):
    INT = ('v_add_u32','v_sub_u32','v_subrev_u32','v_lshl','v_lshr','v_and_b32','v_or_b32','v_xor_b32','v_bfe_u32','v_min_u32','v_mul_u32','v_mad_u32','v_mov_b32','v_cndmask','v_add3_u32','v_add_lshl')
    good = {('v',0)}
    for l in lines:
        i = I(l)
        if i.is_label: continue
        if i.op.startswith('global_'):
            av = i.ops[0] if (i.lds or i.store) else i.ops[1]
            assert regs_of(av) <= good, 'bad address register: ' + l
        vw = {x for x in i.w if x[0] == 'v'}
        if not vw: continue
        ok = i.kind == 'valu' and i.op.startswith(INT) and not i.dpp and {x for x in i.r if x[0] != 's'} <= good
        ok = ok or (i.op.startswith('global_load') and i.ops[-1] == table_base)
        if ok: good |= vw
        else: good -= vw
```

```python
import sys, struct, argparse
from asmlib import Prog, NAME
import hazard, align

def fbits(x): return '0x%08x' % struct.unpack('<I', struct.pack('<f', x))[0]

F1   = 0x0C0000
F2   = 0x020000
F3   = 0x040000
F3S  = 0x020000
MODP = 0x0E0000
MX   = 0x008000
TAGZ = 0x40004000
HBLK = 8448
TAGM = 0x70007000
XH   = 0x160000
ZY   = 0x380000
H2   = 0x5A0000
X2   = 0x7A0000
WGU  = 0x9A0000
ACT  = 0xD20000
STMP = 0x3000000
WS_BYTES = 0x10000000
S4   = 131072
L_U  = S4; USZ = 4608
L_P  = S4 + 2*USZ; PSZ = 4288
L_ZB = L_P + 2*PSZ
L_JK = L_ZB + 1024
L_BD = L_P + 12288
L_SB = L_BD + 1024
L_Y  = 98304
L_MB = 98304
RST  = 544
L_RC = 0; RCSZ = 54*RST
L_RED = 65536; RSA = 576; RQ = 8*RSA
L_GB = L_RED + 16*RQ
LDS_BYTES = 163840
pX,pAre,pAim,pBre,pBim,pCre,pCim,pLdt = 4,6,8,10,12,14,16,18
pD,pWg,pWu,pWd,pC,pWm,pOut,pWs = 20,24,26,28,30,32,34,38
SRD='s[40:43]'
sL,sW,sTag,sMask,sCnt = 44,45,46,47,48
sLo,sHi = 49,50
sOnes = 51
sMt,sNt,sTb,sDt = 52,53,54,55
sBad = 56
sT = 58
sM = 68
sDsk = 80
sStamp = 82
sDmaL, sDmaG, sDmaT = 4, 5, 6
sActG, sActT = 9, 10
sActS = 12
sF3o, sF3p = 14, 15
sXg = 16
sCh, sHb = 17, 18
sE1 = 4
sZs = 10
sTm = 25
sWs, sF1o = 14, 24
def sp(i): return f's[{i}:{i+1}]'
def vr(i, n): return f'v[{i}:{i+n-1}]'
def ar(i, n): return f'a[{i}:{i+n-1}]'

class G:
    def __init__(self, stamps=False, opts=None):
        self.p = Prog(); self.stamps = stamps; self.ns = 0; self.o = opts or {}
        self.stamp_names = []; self.nvm = 0; self.nlg = 0; self.tail = []; self.maybe = False; self.m0 = None
    def opt(self, k, d): return self.o.get(k, d)
    def e(self, s):
        for line in s.split('\n'):
            l = line.strip()
            if not l: continue
            if l.startswith(('buffer_', 'global_')) and not self.maybe: self.nvm += 1
            if l.startswith('ds_') and not self.maybe: self.nlg += 1
            self.p.e(l)
        return self.nvm
    def wvm(self, i): return f'vmcnt({min(62, self.nvm - i)})'
    def wlg(self, i): return f'lgkmcnt({min(14, self.nlg - i)})'
    def stamp(self, name):
        if not self.stamps: return
        if self.o.get('probe') is not None and name != self.o['probe']: return
        if self.o.get('only') and not (name == 'start' or name.startswith(tuple(self.o['only'].split(',')))): return
        if not self.o.get('only') and self.o.get('probe') is None and name.startswith('_'): return
        assert self.ns < 20
        self.e(f'{"s_memtime" if self.opt("cyc", 0) else "s_memrealtime"} s[22:23]\ns_waitcnt lgkmcnt(0)\ns_mov_b32 s{sStamp+self.ns}, s22')
        self.ns += 1; self.stamp_names.append(name)

    def check_text(self, loads, tags, last):
        Lc = self.p.label('chk'); Lr = self.p.label('retry')
        s = f's_waitcnt {self.wvm(last)}\n{Lc}:\n'
        if len(tags) == 1:
            s += f'v_cmp_ne_u32 vcc, v{tags[0]}, v2\ns_cmp_lg_u64 vcc, 0\ns_cbranch_scc1 {Lr}'
            self.tail.append(f'''{Lr}:
            s_sub_u32 s{sCnt}, s{sCnt}, 1
            s_cbranch_scc1 L_end
            {loads}
            s_waitcnt vmcnt(0)
            s_branch {Lc}''')
        else:
            s += f'v_cmp_ne_u32 {sp(sBad)}, v{tags[0]}, v2\n'
            for t in tags[1:]: s += f'v_cmp_ne_u32 vcc, v{t}, v2\ns_or_b64 {sp(sBad)}, {sp(sBad)}, vcc\n'
            s += f's_cbranch_scc1 {Lr}'
            self.tail.append(f'''{Lr}:
            s_sub_u32 s{sCnt}, s{sCnt}, 1
            s_cbranch_scc1 L_end
            s_mov_b64 exec, {sp(sBad)}
            {loads}
            s_mov_b64 exec, -1
            s_waitcnt vmcnt(0)
            s_branch {Lc}''')
        return s
    def check(self, loads, tags, last): self.e(self.check_text(loads, tags, last))

    def flag_text(self, vaddr, soff):
        return f's_mov_b32 exec_hi, 0\nbuffer_store_dword v2, v{vaddr}, {SRD}, s{soff} offen sc1\ns_mov_b32 exec_hi, -1'

    def stats_partial(self, src, t, vSBw, fill=()):
        a,b,c,d = t,t+1,t+2,t+3
        for m in range(4):
            acc = lambda r: '0' if m == 0 else f'v{r}'
            self.e(f'''v_dot2_f32_bf16 v{a}, v{src+m}, s{sOnes}, {acc(a)}
            v_dot2_f32_bf16 v{b}, v{src+4+m}, s{sOnes}, {acc(b)}
            v_dot2_f32_bf16 v{c}, v{src+m}, v{src+m}, {acc(c)}
            v_dot2_f32_bf16 v{d}, v{src+4+m}, v{src+4+m}, {acc(d)}''')
        self.reduce4(a,b,c,d, fill)
        self.e(f'ds_write_b32 v{vSBw}, v{a}')
    def reduce4(self, a,b,c,d, fill=()):
        fill = list(fill)
        def f(n):
            for _ in range(n):
                if fill: self.e(fill.pop(0))
        f(2); self.e(f'v_permlane32_swap_b32 v{a}, v{b}\nv_permlane32_swap_b32 v{c}, v{d}\nv_add_f32 v{a}, v{a}, v{b}\nv_add_f32 v{c}, v{c}, v{d}')
        f(2); self.e(f'v_permlane16_swap_b32 v{a}, v{c}\nv_add_f32 v{a}, v{a}, v{c}')
        f(2); self.e(f'v_add_f32_dpp v{a}, v{a}, v{a} row_ror:4 row_mask:0xf bank_mask:0xf')
        f(2); self.e(f'v_add_f32_dpp v{a}, v{a}, v{a} row_ror:8 row_mask:0xf bank_mask:0xf')
        self.rest = fill
    def stats_read(self, t, vSBr):
        for w in range(4): self.e(f'ds_read_b128 {vr(t+4*w,4)}, v{vSBr} offset:{16*w}')
        return self.nlg
    def stats_finish(self, t, vInv, scale=None, pre=None):
        self.e(f'''
        v_pk_add_f32 {vr(t,2)}, {vr(t,2)}, {vr(t+4,2)}
        v_pk_add_f32 {vr(t+2,2)}, {vr(t+2,2)}, {vr(t+6,2)}
        v_pk_add_f32 {vr(t+8,2)}, {vr(t+8,2)}, {vr(t+12,2)}
        v_pk_add_f32 {vr(t+10,2)}, {vr(t+10,2)}, {vr(t+14,2)}
        v_pk_add_f32 {vr(t,2)}, {vr(t,2)}, {vr(t+8,2)}
        v_pk_add_f32 {vr(t+2,2)}, {vr(t+2,2)}, {vr(t+10,2)}
        v_pk_mul_f32 {vr(t+4,2)}, {vr(t,2)}, {vr(vInv,2)} op_sel_hi:[1,0]
        v_pk_mul_f32 {vr(t+6,2)}, {vr(t+2,2)}, {vr(vInv,2)} op_sel_hi:[1,0]
        v_fma_f32 v{t+5}, -v{t+4}, v{t+4}, v{t+5}
        v_fma_f32 v{t+7}, -v{t+6}, v{t+6}, v{t+7}
        v_max_f32 v{t+5}, 0, v{t+5}
        v_max_f32 v{t+7}, 0, v{t+7}
        {f'v_fmamk_f32 v{t+5}, v{t+5}, {fbits(pre)}, v{vInv+1}' if pre else f'v_add_f32 v{t+5}, v{vInv+1}, v{t+5}'}
        {f'v_fmamk_f32 v{t+7}, v{t+7}, {fbits(pre)}, v{vInv+1}' if pre else f'v_add_f32 v{t+7}, v{vInv+1}, v{t+7}'}
        v_rsq_f32 v{t}, v{t+5}
        v_rsq_f32 v{t+2}, v{t+7}''')
        if scale: self.e(f'v_mul_f32 v{t}, {fbits(scale)}, v{t}\nv_mul_f32 v{t+2}, {fbits(scale)}, v{t+2}')
        self.e(f'''
        v_mul_f32 v{t+1}, -v{t+4}, v{t}
        v_mul_f32 v{t+3}, -v{t+6}, v{t+2}''')
    def cmul(self, d, a, b):
        return [f'v_pk_mul_f32 {vr(d,2)}, {vr(a,2)}, {vr(b,2)} op_sel_hi:[1,0]',
                f'v_pk_fma_f32 {vr(d,2)}, {vr(a,2)}, {vr(b,2)}, {vr(d,2)} op_sel:[1,1,0] op_sel_hi:[0,1,1] neg_lo:[1,0,0]']
    def unpack(self, d, s): return [f'v_lshlrev_b32 v{d}, 16, v{s}', f'v_and_b32 v{d+1}, s{sMask}, v{s}']

    def dma_tile(self, i, slot):
        return [(i, slot, slot*32768 + hf*4096, i*32768 + hf*4096,
                 f'buffer_load_dwordx4 v1, {SRD}, s{sDmaT} offen offset:{e_*1024} sc1 lds') for hf in range(2) for e_ in range(4)]
    def set_m0(self, off):
        if self.m0 != off: self.e(f's_add_u32 m0, s{sDmaL}, {off}'); self.m0 = off

    def build(self):
        p = self.p; e = self.e
        k = NAME + '_kernel'
        p.add_launch(k, 256, 256, LDS_BYTES)
        p.begin(k)
        XR = 4; WM = 12; AB = 28; WG = 36
        vXO = 3; t = 68
        vTg = 252; vWgL = 35; vTab = 97; vPf = 255; vInv = 52; vDt = 34; vS = 54; vPolled = 123; vMBw = 79
        vSBw, vSBr, vMBr, vEM = 112, 113, 114, 115
        vRW, vKa, vKb0, vKb1 = 116, 117, 118, 119
        vWgS, vTw, vTr, vF = 124, 125, 126, 127
        vEX, vWdA, vBv, vOne = 64, 65, 66, 67
        vKw0, vKw1, vBd, vBd2 = 120, 121, 122, 123
        vPA, vPX, vQ, vUS = 56, 57, 58, 59
        vYw, vYr, vUB, vUw = 60, 61, 62, 63
        TP = 160; TB = 98304
        def consts(tid):
            w, l = tid >> 6, tid & 63; ch, hb = w >> 1, w & 1; c, q_, rp = l & 15, l >> 4, l & 3
            P = L_P + ch*PSZ; U = L_U + ch*USZ; RC = L_RC + ch*RCSZ
            lo, wd = [(3,3),(6,5),(5,7),(4,9)][w]
            x = l - 16 - lo
            band = (0x3f80 if 0 <= x < wd else 0) | (0x3f800000 if 0 <= x-1 < wd else 0)
            if c < 8: kw1 = P + 4*(608 + 16*[1,5,2,6,10,11,12,13][c] + 8*hb + 2*q_)
            elif 120 <= (tid & 127) < 125: kw1 = P + 4*((520 if c < 11 else 568) + c) - 932
            else: kw1 = L_JK
            sw = (((l >> 1) & 3) ^ q_) * 16
            full = [(tid >> 2)*HBLK + rp*16, (448*w + 16*((l>>4)&1) + 4*((l>>2)&3))*1024 + (l>>5)*64 + (l&3)*16, band, 0x3f800000 if q_ == 2 else 0]
            half = {vSBw: L_SB + rp*64 + w*16 + q_*4, vSBr: L_SB + rp*64,
              vMBr: L_MB + 4*(192*((l>>1)&1) + 2*(8*w + ((l>>2)&7)) + (l&1)), vMBw: L_MB + 32*tid,
              vRW: RC + 4*(tid & 127), vKa: RC + (16*hb + c)*RST + 16*q_,
              vKb0: RC + [0,1,2,3,4,5,6,7,8,8,9,10,10,10,11,12][c]*RST + 16*q_, vKb1: RC + [1,2,3,4,5,6,7,8,0,0,0,4,4,0,0,0][c]*RST + 16*q_,
              vF: 4*l, vTr: w*8192 + (l>>5)*256 + ((l>>2)&3)*64 + ((l>>4)&1)*32 + (l&3)*8,
              vEM: (l >> 2)*2048 + rp*16, vWgS: q_*512 + c*16,
              vKw0: P + 64 + 512*hb + 4*((c&7) + 256*(c>>3) + 32*q_), vKw1: kw1,
              vBd: L_BD + 4*(26 + c - 8*q_), vBd2: L_BD + 4*(26 + c - 8*q_) + 256*hb,
              vPA: P + 512*hb + 4*(26 + c - 8*q_), vPX: (P + 2048 if hb == 0 else L_ZB) + 4*(26 + c - 8*q_),
              vQ: P + 4*(608 + 12 + c - 4*q_) + 928*hb, vUS: U + 32*c + 16*q_ + 480 - 16*hb,
              vYw: L_Y + w*8192 + c*64 + sw, vYr: L_Y + (tid >> 2)*64 + (((rp >> 1) ^ ((tid >> 3) & 3))*16) + (rp & 1)*8, vUB: U + 32*c + 16*q_ + 288 - 256*hb, vUw: L_U + 512 + 4*tid}
            return full, half
        hregs = list(consts(0)[1]); assert len(hregs) == 24
        hbase = {r: (TB if consts(0)[1][r] >= TB else 0) for r in hregs}
        def trow(tid):
            full, half = consts(tid)
            h = [half[r] - hbase[r] for r in hregs]; assert all(0 <= v < 65536 for v in h)
            return [h[2*i] | h[2*i+1] << 16 for i in range(12)] + full
        self.table = [v for qd in range(4) for tid in range(256) for v in trow(tid)[4*qd:4*qd+4]]
        def tunpack():
            out = []
            for i, r in enumerate(hregs):
                b_ = f's{sT+9}' if hbase[r] else '0'
                out.append(f'v_add_u32_sdwa v{r}, {b_}, v{TP+(i>>1)} dst_sel:DWORD dst_unused:UNUSED_PAD src0_sel:DWORD src1_sel:WORD_{i&1}')
            return out
        MAP2 = self.opt('map2', 84)
        NF = self.opt('nf', 0)
        groups = ([tuple(range(NF))] if NF else []) + [(i,) for i in range(NF, 7)]
        korder = [7*pp + i for g in groups for pp in range(4) for i in g]
        wslot = [int(c) for c in str(self.opt('wslot', 'x0123232'))[1:]]
        wdq = [(Gl, jh, c) for Gl in range(7) for jh in range(2) for c in range(4)]
        trq = [(Gl, 4*Gl+c, f'ds_read_b64_tr_b16 {ar(8*(4*Gl+c)+4*cc+2*jh,2)}, v{vTw if wslot[Gl] >= 2 else vTr} offset:{(wslot[Gl]&1)*32768 + jh*4096 + c*1024 + cc*512}')
               for Gl in range(7) for c in range(4) for cc in range(2) for jh in range(2)]
        wd_id = {}; t_id = {}; g_last = {}; wopen = [-1]; trw = [0]; vW = [vWdA]; freed = set()
        def tr_ready(lag): return trq and trq[0][0] in wd_id and wd_id[trq[0][0]] <= self.nvm - lag
        def tr_pop():
            Gl, T, x = trq.pop(0)
            while Gl not in wd_id: wd_one()
            if wd_id[Gl] > trw[0]: trw[0] = wd_id[Gl]; e(f's_waitcnt {self.wvm(trw[0])}')
            e(x); t_id[T] = g_last[Gl] = self.nlg
        def free_slot(sl, upto):
            for Gl in range(upto):
                if wslot[Gl] == sl and Gl not in freed:
                    while trq and trq[0][0] <= Gl: tr_pop()
                    e(f's_waitcnt {self.wlg(g_last[Gl])}'); freed.add(Gl)
        def wd_can():
            if not wdq or wdq[0][0] > wopen[0]: return False
            Gl = wdq[0][0]
            return all(G2 in freed or (G2 in g_last and (not trq or trq[0][0] > G2)) for G2 in range(Gl) if wslot[G2] == wslot[Gl])
        def wd_one():
            Gl, jh, c = wdq.pop(0); assert Gl <= wopen[0], Gl
            free_slot(wslot[Gl], Gl)
            self.set_m0(wslot[Gl]*32768 + jh*4096)
            if c == 0 and (Gl or jh): e(f'v_add_u32 v{vW[0]}, 32768, v{vW[0]}')
            i_ = e(f'global_load_lds_dwordx4 v{vW[0]}, {sp(pWd)} offset:{1024*c}')
            if c == 3 and jh == 1: wd_id[Gl] = i_
        def wd_issue(n):
            for _ in range(n):
                if wd_can(): wd_one()
        dma_id = {}; gcur = [None]
        def tile_one(q_):
            i, sl, off, go, x = q_.pop(0)
            free_slot(sl, 4 if i <= 4 else 0)
            self.set_m0(off)
            if gcur[0] != go: e(f's_add_u32 s{sDmaT}, s{sDmaG}, {go}'); gcur[0] = go
            dma_id[i] = e(x)
        def tr_do(n):
            for _ in range(4*n):
                if tr_ready(self.opt('trlag', 6)): tr_pop()
        if self.stamps and self.o.get('probe') is None:
            e(f'{"s_memtime" if self.opt("cyc", 0) else "s_memrealtime"} s[{sStamp}:{sStamp+1}]'); self.ns += 1; self.stamp_names.append('start')
        XF1 = self.opt('xfirst', 0)
        if XF1:
            e(f"""
            s_load_dwordx2 {sp(sBad)}, s[0:1], 0
            s_cmp_ge_u32 s2, 256
            s_cbranch_scc1 L_end
            s_lshr_b32 s3, s2, 3
            s_and_b32 s{sT+1}, s2, 7
            s_lshl_b32 s{sL}, s{sT+1}, 5
            s_or_b32 s{sL}, s{sL}, s3
            v_and_b32 v{t+2}, 3, v0
            v_and_b32 v{t+3}, 0xfc, v0
            s_lshl_b32 s{sT+3}, s{sL}, 13
            v_lshl_add_u32 v{t+3}, v{t+3}, 2, s{sT+3}
            v_lshl_add_u32 v{vXO}, v{t+2}, 11, v{t+3}
            s_waitcnt lgkmcnt(0)
            global_load_dwordx4 {vr(XR,4)}, v{vXO}, {sp(sBad)}""")
            id_x = e(f'global_load_dwordx4 {vr(XR+4,4)}, v{vXO}, {sp(sBad)} offset:1024')
        e(f"""
        s_load_dwordx16 s[4:19], s[0:1], 0
        s_load_dwordx16 s[20:35], s[0:1], 64
        s_load_dwordx4 s[36:39], s[0:1], 128
        s_cmp_ge_u32 s2, 256
        s_cbranch_scc1 L_end
        v_lshrrev_b32 v{t}, 6, v0
        v_and_b32 v{t+1}, 63, v0
        v_readfirstlane_b32 s{sW}, v{t}
        s_lshr_b32 s3, s2, 3
        s_getpc_b64 {sp(sM)}
        L_pc:
        s_lshl2_add_u32 s{sT}, s3, s{sW}
        s_lshl_b32 s{sM+2}, s{sT}, 8
        s_min_u32 s{sM+2}, s{sM+2}, L_end-L_pc-256
        v_lshl_add_u32 v{t+7}, v{t+1}, 2, s{sM+2}
        global_load_dword v123, v{t+7}, {sp(sM)}
        s_add_u32 s{sM+4}, s{sM}, L_tab-L_pc+4096
        s_addc_u32 s{sM+5}, s{sM+1}, 0
        v_lshlrev_b32 v{vTab}, 4, v0""")
        id_tab = e(f"""
        global_load_dwordx4 {vr(TP,4)}, v{vTab}, {sp(sM+4)} offset:-4096
        global_load_dwordx4 {vr(TP+4,4)}, v{vTab}, {sp(sM+4)}
        v_add_u32 v{vTab}, 8192, v{vTab}
        global_load_dwordx4 {vr(TP+8,4)}, v{vTab}, {sp(sM+4)} offset:-4096
        global_load_dwordx4 {vr(vEX,4)}, v{vTab}, {sp(sM+4)}""")
        e(f"""
        s_and_b32 s{sT+1}, s2, 7
        s_lshl_b32 s{sL}, s{sT+1}, 5
        s_or_b32 s{sL}, s{sL}, s3
        v_lshlrev_b32 v1, 4, v{t+1}
        v_and_b32 v{t+2}, 3, v0
        v_and_b32 v{t+3}, 0xfc, v0
        s_lshl_b32 s{sT+3}, s{sL}, 13
        v_lshl_add_u32 v{t+3}, v{t+3}, 2, s{sT+3}
        v_lshl_add_u32 v{vXO}, v{t+2}, 11, v{t+3}
        v_lshrrev_b32 v{t+4}, 3, v{t+1}
        v_min_u32 v{t+4}, 5, v{t+4}
        v_and_b32 v{t+5}, 0x70, v1
        v_lshl_add_u32 v{t+4}, v{t+4}, 10, v{t+5}
        s_lshl_b32 s{sT+2}, s{sT}, 3
        s_mul_i32 s{sT}, s{sT}, {4*6144}
        s_lshl_b32 s{sT+1}, s{sT+1}, 7
        s_add_u32 s{sT}, s{sT}, s{sT+1}
        s_add_u32 s{sT}, s{sT}, 3072
        v_add_u32 v{t+4}, s{sT}, v{t+4}
        v_add_u32 v{t+5}, 12288, v{t+4}
        s_lshl_b32 s{sT}, s{sL}, 9
        v_lshl_add_u32 v{t+6}, v0, 1, s{sT}
        s_lshl_b32 s{sT+3}, s{sL}, 2
        """)
        for i in range(6): e(f'v_mov_b32 v{AB+i}, 0')
        e('s_waitcnt lgkmcnt(0)')
        self.stamp('karg')
        e(f"""
        s_load_dwordx2 {sp(sT+4)}, {sp(pC)}, s{sT+2}""")
        if not XF1: id_x = e(f'global_load_dwordx4 {vr(XR,4)}, v{vXO}, {sp(pX)}\nglobal_load_dwordx4 {vr(XR+4,4)}, v{vXO}, {sp(pX)} offset:1024')
        id_ep = e(f"""
        s_load_dword s{sT+6}, {sp(pLdt)}, s{sT+3}
        s_load_dword s{sDsk+1}, {sp(pD)}, s{sT+3}
        global_load_dword v2, v{AB}, {sp(pWs)} sc1""")
        for i, ptr in enumerate([pAre,pAim,pBre,pBim,pCre,pCim]):
            id_ab = e(f'global_load_short_d16_hi v{AB+i}, v{t+6}, {sp(ptr)}')
        idm = [0]
        def wm_issue(k_):
            if self.opt('wmat', 1) == k_: idm[0] = e(f"""
            global_load_dwordx4 {vr(WM,4)}, v{t+4}, {sp(pWm)} offset:-3072
            global_load_dwordx4 {vr(WM+4,4)}, v{t+4}, {sp(pWm)} offset:3072
            global_load_dwordx4 {vr(WM+8,4)}, v{t+5}, {sp(pWm)} offset:-3072
            global_load_dwordx4 {vr(WM+12,4)}, v{t+5}, {sp(pWm)} offset:3072""")
        wm_issue(0)
        GR = 144
        u = 92
        e(f"""
        s_mov_b32 s{sMask}, 0xffff0000
        s_mov_b32 s{sLo}, 0x05040100
        s_mov_b32 s{sHi}, 0x07060302
        s_mov_b32 s{sOnes}, 0x3f803f80
        v_mov_b32 v{t+12}, {fbits(-1.4426950408889634)}
        s_add_u32 s{sT+7}, s{sT+3}, s{sW}
        s_min_u32 s{sT}, s{sT+7}, 895
        v_and_b32 v{t+8}, 15, v{t+1}
        s_lshl_b32 s{sT+1}, s{sT}, 11
        v_lshl_add_u32 v{vPf}, v{t+8}, 7, s{sT+1}
        s_mov_b64 s[0:1], {sp(pWd)}
        s_bitcmp1_b32 s{sT}, 0
        s_cselect_b32 s{pWu}, s{pWu}, s{pWg}
        s_cselect_b32 s{pWu+1}, s{pWu+1}, s{pWg+1}
        s_cselect_b32 s{sWs}, 256, 0
        s_bfe_u32 s{sT+1}, s{sT}, 0x40001
        s_lshr_b32 s{sT+2}, s{sT}, 5
        s_mul_i32 s{sT+8}, s{sT+1}, {32*3584}
        s_lshl_b32 s{sT+3}, s{sT+2}, 7
        s_add_u32 s{sT+8}, s{sT+8}, s{sT+3}
        v_lshrrev_b32 v{t+7}, 4, v{t+1}
        v_mul_u32_u24 v{t+7}, {8*3584}, v{t+7}
        v_lshl_add_u32 v{t+10}, v{t+8}, 3, s{sT+8}
        v_add_u32 v{vWgL}, v{t+10}, v{t+7}
        s_lshl_b32 s{sT+2}, s{sT+2}, 17
        s_lshl_b32 s{sT+1}, s{sT+1}, 11
        s_add_u32 s{sT+2}, s{sT+2}, s{sT+1}
        s_add_u32 s{sWs}, s{sWs}, s{sT+2}
        s_add_u32 s{sWs}, s{sWs}, {WGU}
        s_cmp_ge_u32 s{sL}, 224
        s_cselect_b32 s{sWs}, {WS_BYTES}, s{sWs}
        s_lshl_b32 s{sF1o}, s{sT+7}, 7
        s_add_u32 s{sF1o}, s{sF1o}, {F1}
        v_mov_b32 v{u}, 0
        v_mov_b32 v{u+1}, 0
        v_mov_b32 v{u+2}, 0
        v_mov_b32 v{u+3}, 0
        v_lshlrev_b32 v{u+4}, 4, v0
        v_add_u32 v{u+4}, {L_P}, v{u+4}
        s_lshr_b32 s{sCh}, s{sW}, 1
        s_mul_i32 s{sT}, s{sCh}, {USZ-512}
        s_add_u32 s{sT}, s{sT}, {L_U}
        v_lshl_add_u32 v{t+9}, v0, 2, s{sT}
        s_mov_b32 s{sT+9}, {TB}
        """)
        wm_issue(1)
        e(f"""
        ds_write_b128 v{u+4}, {vr(u,4)}
        ds_write_b128 v{u+4}, {vr(u,4)} offset:4096
        ds_write_b128 v{u+4}, {vr(u,4)} offset:8192
        ds_write_b32 v{t+9}, v{u}
        """)
        e(f"""
        s_mov_b32 s40, s{pWs}
        s_mov_b32 s41, s{pWs+1}
        s_mov_b32 s42, {WS_BYTES}
        s_mov_b32 s43, 0x20000
        s_mov_b32 s{sCnt}, 40000
        v_mov_b32 v{vInv}, {fbits(1/512)}
        v_mov_b32 v{vInv+1}, {fbits(1e-5)}
        s_mul_i32 s{sT}, s{sL}, {HBLK}
        s_lshl_b32 s{sT+1}, s{sW}, 11
        s_add_u32 s{sT+1}, s{sT}, s{sT+1}
        s_add_u32 s{sT+1}, s{sT+1}, {XH}
        s_lshl_b32 s{sT+2}, s{sT+7}, 9
        s_add_u32 s{sT+2}, s{sT+2}, {MODP}
        s_mov_b32 s{sTag}, 1664525
        s_lshl_b32 s{sT+3}, s{sW}, 10
        s_add_u32 s{sT}, s{sT}, s{sT+3}
        s_add_u32 s{sZs}, s{sT}, {ZY}
        s_add_u32 s{sZs+1}, s{sT}, {ZY+4096}
        s_lshl_b32 s{sZs+3}, s{sL}, 4
        s_add_u32 s{sZs+3}, s{sZs+3}, {MX}
        s_cmp_eq_u32 s{sW}, 0
        s_cselect_b32 s{sZs+2}, s{sZs+3}, {WS_BYTES}
        s_lshr_b32 s{sT}, s{sL}, 6
        s_bfe_u32 s{sT+3}, s{sL}, 0x10001
        s_lshl1_add_u32 s{sT}, s{sT}, s{sT+3}
        s_bfe_u32 s{sT+3}, s{sL}, 0x40002
        s_lshl4_add_u32 s{sT}, s{sT}, s{sT+3}
        s_and_b32 s{sT+3}, s{sL}, 1
        s_lshl3_add_u32 s{sT}, s{sT}, s{sT+3}
        s_lshl_b32 s{sT}, s{sT}, 3
        s_add_u32 s{sE1}, s{sT}, {XH}
        s_add_u32 s{sE1+1}, s{sT}, {XH+64*HBLK}
        s_add_u32 s{sE1+2}, s{sT}, {XH+128*HBLK}
        s_add_u32 s{sE1+3}, s{sT}, {XH+192*HBLK}
        s_mov_b32 s{sTm}, {TAGM}
        v_lshlrev_b32 v{vTg}, 2, v{t+2}
        v_add_u32 v{vTg+1}, 2, v{vTg}
        s_and_b32 s{sT}, s2, 7
        s_lshl_b32 s{sT}, s{sT}, 10
        s_add_u32 s{sT}, s{sT}, s3
        s_lshl_b32 s{sT}, s{sT}, 6
        s_add_u32 s{sE1+4}, s{sT}, {MODP}
        s_add_u32 s{sE1+5}, s{sT}, {MODP+32768}""")
        wgq = []; idw = [0]
        for jj in range(8):
            wgq.append(f'global_load_dwordx2 {vr(WG+2*jj,2)}, v{vWgL}, {sp(pWu)} offset:{3584*(jj&1)}' + (f'\nv_add_u32 v{vWgL}, 7168, v{vWgL}' if jj & 1 and jj < 7 else ''))
        def wg_issue(n):
            for _ in range(n):
                if wgq: idw[0] = e(wgq.pop(0))
        WGA = self.opt('wgat', 7)
        wm_issue(2); id_wm = idm[0]
        PFA = self.opt('pfat', 1)
        def wd_pf(): e(f'global_load_dword a223, v{vPf}, s[0:1]')
        if PFA == 0: wd_pf()
        PF2 = self.opt('pf2', 3); vPf2 = 35; assert PF2 in (-1, 2, 3) and WGA in (0, 1, 5, 6, 7)
        e(f"""
        s_and_b32 s{sT}, s{sT+7}, 127
        s_mul_i32 s{sT}, s{sT}, 28
        s_bfe_u32 s{sT+3}, s2, 0x10001
        s_add_u32 s{sT}, s{sT}, s{sT+3}
        s_lshl_b32 s{sT}, s{sT}, 9
        s_add_u32 s15, s{sT}, 384""" if PF2 >= 0 else '')
        def wd_pf2(k_):
            if PF2 == k_: e(f'v_min_u32 v{vPf2}, {13*16}, v1\nv_lshl_add_u32 v{vPf2}, v{vPf2}, 6, s15\nglobal_load_dword a222, v{vPf2}, s[0:1]')
        wd_pf2(0)
        TCH = self.opt('tch', 1); NZ = self.opt('tchz', 8); vTc = 157
        if TCH >= 0:
            e(f"""
            v_and_b32 v{vTc-1}, 7, v0
            v_lshl_add_u32 v{vTc-2}, v{vTc-1}, 7, s{sZs+1}
            s_sub_u32 s{sT}, s{sF1o}, {F1-F3}
            v_cmp_gt_u32 vcc, 2, v{vTc-1}
            v_lshl_add_u32 v{vTc-1}, v{vTc-1}, 19, s{sT}
            v_mov_b32 v{vTc}, s{sZs+3}
            v_cndmask_b32 v{vTc}, v{vTc}, v{vTc-1}, vcc
            v_cmp_gt_u32 vcc, {NZ*16}, v1
            s_nop 1
            v_cndmask_b32 v{vTc}, v{vTc}, v{vTc-2}, vcc""")
        if self.opt('tchh', -1) >= 0:
            e(f"""
            s_lshr_b32 s{sT}, s{sL}, 2
            s_lshl2_add_u32 s{sT}, s{sT}, s{sW}
            s_lshl_b32 s{sT}, s{sT}, 5
            s_and_b32 s{sT+3}, s{sL}, 3
            s_add_u32 s{sT}, s{sT}, s{sT+3}
            s_lshl_b32 s{sT}, s{sT}, 8
            s_add_u32 s{sT}, s{sT}, {H2}
            v_bfe_u32 v154, v0, 1, 3
            v_lshl_add_u32 v154, v154, 10, s{sT}
            v_and_b32 v153, 1, v0
            v_lshl_add_u32 v154, v153, 7, v154""")
        def touch(k_):
            if self.opt('tchh', -1) == k_: e(f'global_load_dword a220, v154, {sp(pWs)}')
            if TCH == k_: e(f'global_load_dword a221, v{vTc}, {sp(pWs)}')
        touch(0)
        if WGA == 0: wg_issue(8)
        e(f's_waitcnt {self.wvm(id_tab)}')
        for x in tunpack(): e(x)
        e(f"""
        s_bfe_u32 s{sT}, s{sL}, {0x10006 if MAP2 == 84 else 0x10002}
        s_and_b32 s{sDt}, s{sL}, 3
        s_lshl2_add_u32 s{sDt}, s{sT}, s{sDt}
        s_lshl_b32 s{sT}, s{sDt}, 7
        s_add_u32 s{pWd}, s{pWd}, s{sT}
        s_addc_u32 s{pWd+1}, s{pWd+1}, 0""")
        wm_issue(3); id_wm = idm[0]
        sc = sM + 6
        e(f"""
        s_waitcnt lgkmcnt(0)
        s_lshl_b32 s{sc}, s{sT+4}, 16
        s_and_b32 s{sc+1}, s{sT+4}, s{sMask}
        s_lshl_b32 s{sc+2}, s{sT+5}, 16
        s_and_b32 s{sc+3}, s{sT+5}, s{sMask}""")
        self.stamp('_smem')
        for i in range(4): e(f'v_mul_f32 v{t+13+i}, s{sc+i}, v{t+12}')
        e(f"""
        s_lshl_b32 s{sT+4}, s{sCh}, 4
        s_lshr_b32 s{sT+5}, s{sT+6}, s{sT+4}
        s_lshl_b32 s{sT+5}, s{sT+5}, 16""")
        for i in range(4): e(f'v_exp_f32 v{t+13+i}, v{t+13+i}')
        e(f'v_mul_f32 v{vDt}, s{sT+5}, -v{t+12}')
        for i in range(4): e(f'v_add_f32 v{t+13+i}, 1.0, v{t+13+i}')
        e(f'v_exp_f32 v{vDt}, v{vDt}')
        for i in range(4): e(f'v_rcp_f32 v{t+13+i}, v{t+13+i}')
        e(f'v_cvt_pk_bf16_f32 v{vDt}, v{vDt}, v{vDt}')
        for i in range(4): e(f'v_mul_f32 v{t+13+i}, s{sc+i}, v{t+13+i}')
        e(f"""v_lshlrev_b32 v{vDt}, 16, v{vDt}
        v_cvt_pk_bf16_f32 v{vS}, v{t+13}, v{t+14}
        v_cvt_pk_bf16_f32 v{vS+1}, v{t+15}, v{t+16}
        s_lshr_b32 s{sDsk}, s{sDsk+1}, s{sT+4}
        s_lshl_b32 s{sDsk}, s{sDsk}, 16""")
        self.stamp('_pre_x')
        e(f's_waitcnt {self.wvm(id_x)}')
        self.stamp('x_arrived')
        if PFA == 5: wd_pf()
        if WGA == 5: wg_issue(8)
        XF = 128
        unp = [x for r in range(2) for i in range(4) for x in self.unpack(XF+8*r+2*i, XR+4*r+i)]
        self.stats_partial(XR, t, vSBw, unp)
        unp = self.rest
        MA = 160; MP = 168; MR = 176; MPOS = self.opt('modpos', 1)
        def mod_partial():
            e(f's_waitcnt {self.wvm(id_wm)}')
            self.stamp('_wm')
            for h in range(2):
                for m in range(4):
                    e(f"""v_perm_b32 v{MP+2*m}, v{WM+8*h+4+m}, v{WM+8*h+m}, s{sLo}
                    v_perm_b32 v{MP+1+2*m}, v{WM+8*h+4+m}, v{WM+8*h+m}, s{sHi}""")
                for m in range(8):
                    e(f'v_dot2_f32_bf16 v{MA+m}, v{MP+m}, v{vS+h}, {"0" if h==0 else "v%d"%(MA+m)}')
            e(f'ds_write_b128 v{vMBw}, {vr(MA,4)}')
            if unp: e(unp.pop(0)); e(unp.pop(0))
            e(f'ds_write_b128 v{vMBw}, {vr(MA+4,4)} offset:16')
        def mod_read():
            if MPOS == 1: e('s_waitcnt lgkmcnt(0)\ns_barrier')
            for w in range(0, 4, 2):
                for i in range(3):
                    e(f'ds_read2st64_b32 {vr(MR+3*w+2*i,2)}, v{vMBr} offset0:{8*w+i} offset1:{8*w+8+i}')
            return self.nlg
        def mod_store(i_):
            e(f"""
            s_waitcnt {self.wlg(i_)}
            v_pk_add_f32 {vr(MR,2)}, {vr(MR,2)}, {vr(MR+6,2)}
            v_pk_add_f32 {vr(MR+2,2)}, {vr(MR+2,2)}, {vr(MR+8,2)}
            v_pk_add_f32 {vr(MR+4,2)}, {vr(MR+4,2)}, {vr(MR+10,2)}
            v_mov_b32 v{MR+15}, v2
            v_add_f32 v{MR+12}, v{MR}, v{MR+1}
            v_add_f32 v{MR+13}, v{MR+2}, v{MR+3}
            v_add_f32 v{MR+14}, v{MR+4}, v{MR+5}
            s_mov_b32 exec_hi, 0
            buffer_store_dwordx4 {vr(MR+12,4)}, v1, {SRD}, s{sT+2} offen sc1
            s_mov_b32 exec_hi, -1""")
            self.stamp('_modst')
            if PFA == 1: wd_pf()
            wd_pf2(1)
            touch(1)
            if WGA == 1: wg_issue(8)
        if MPOS == 0: mod_partial()
        e(f'v_add_u32 v{t+1}, {L_BD-L_U-512}, v{vUw}\nds_write_b32 v{t+1}, v{vBv}')
        if WGA == 7: wg_issue(8)
        e(f's_waitcnt {self.wvm(id_ep)} lgkmcnt(1)\ns_barrier')
        self.stamp('_bar0')
        ST = 84
        id_st = self.stats_read(ST, vSBr)
        if MPOS == 0: id_mr = mod_read()
        while unp: e(unp.pop(0))
        e(f'v_mul_lo_u32 v{t}, v2, s{sTag}\ns_mov_b32 s{sTag}, 0x15554000\nv_add_u32 v{t}, 1013904223, v{t}\nv_bitop3_b32 v2, v{t}, v2, s{sTag} bitop3:0x72')
        vTP = 26
        e(f"""v_alignbit_b32 v{vTg}, v2, v2, v{vTg}
        v_alignbit_b32 v{vTg+1}, v2, v2, v{vTg+1}
        v_and_b32 v{vTg}, s{sTm}, v{vTg}
        v_and_b32 v{vTg+1}, s{sTm}, v{vTg+1}""")
        e(f's_waitcnt {self.wlg(id_st)}')
        self.stats_finish(ST, vInv, 2.0**-100)
        for i in range(4):
            for r in range(2):
                x = XF+8*r+2*i
                e(f'v_pk_fma_f32 {vr(x,2)}, {vr(x,2)}, {vr(ST+2*r,2)}, {vr(ST+2*r,2)} op_sel:[0,0,1] op_sel_hi:[1,0,1]')
            for r in range(2):
                x = XF+8*r+2*i
                e(f'v_cvt_pk_bf16_f32 v{GR+2*i+r}, v{x}, v{x+1}')
            for r in range(2):
                e(f'v_bfi_b32 v{GR+2*i+r}, s{sTm}, v{vTg+r}, v{GR+2*i+r}')
            if i & 1: e(f'buffer_store_dwordx4 {vr(GR+2*i-2,4)}, v1, {SRD}, s{sT+1} offen offset:{512*(i-1)} sc1')
        self.stamp('e1_stored')
        if WGA == 6: wg_issue(8)
        if MPOS == 1: mod_partial()
        if MPOS == 0: mod_store(id_mr)
        e(f's_waitcnt {self.wvm(id_ab)}\nv_mul_f32 v68, v{vDt}, v{AB}\nv_mov_b32 v{vTP}, v{vTg}\nv_mov_b32 v{vTP+1}, v{vTg+1}')
        wst = [0]
        def wjob_ops(OB=20, nb=2):
            out = []
            for c in range(4):
                O = OB + 4*(c % nb)
                out += [f'v_perm_b32 v{O+m}, v{WG+2*(2*m+1)+(c>>1)}, v{WG+2*(2*m)+(c>>1)}, s{sHi if c&1 else sLo}' for m in range(4)]
                out += [f'v_add_u32 v{O+m}, 0x20002000, v{O+m}' for m in range(2)]
                out.append(f'buffer_store_dwordx4 {vr(O,4)}, v{vWgS}, {SRD}, s{sWs} offen sc1' + (f'\ns_add_u32 s{sWs}, s{sWs}, 32768' if c < 3 else ''))
            return out
        WJN = self.opt('wjn', -1)
        al, be = 68, 69
        Z1, Z8, Z256, Wc = 70, 72, 74, 76
        q = 78
        e(f"""
        v_mul_f32 v{be}, v{vDt}, v{AB+1}
        v_mul_f32 v{AB+2}, v{vDt}, v{AB+2}
        v_mul_f32 v{AB+3}, v{vDt}, v{AB+3}
        v_mul_f32 v{q}, {fbits(1.4426950408889634)}, v{al}
        v_mul_f32 v{q+1}, 0.15915494, v{be}
        v_mul_f32 v{Wc}, v{AB+4}, v{AB+2}
        v_mul_f32 v{Wc+1}, v{AB+4}, v{AB+3}
        v_mul_f32 v{q+3}, {fbits(8.0)}, v{q}
        v_mul_f32 v{q+4}, {fbits(8.0)}, v{q+1}
        v_mul_f32 v{q+6}, {fbits(256.0)}, v{q}
        v_mul_f32 v{q+7}, {fbits(256.0)}, v{q+1}
        v_fma_f32 v{Wc}, -v{AB+5}, v{AB+3}, v{Wc}
        v_fma_f32 v{Wc+1}, -v{AB+5}, v{AB+2}, -v{Wc+1}
        """)
        MF = self.opt('modfast', 1)
        if MPOS == 1 and MF: id_mr = mod_read()
        for n_ in range(3): e(f'v_exp_f32 v{q+3*n_}, v{q+3*n_}\nv_fract_f32 v{q+3*n_+1}, v{q+3*n_+1}')
        for n_ in range(3): e(f'v_sin_f32 v{q+3*n_+2}, v{q+3*n_+1}\nv_cos_f32 v{q+3*n_+1}, v{q+3*n_+1}')
        if MPOS == 1 and MF: mod_store(id_mr)
        e(f'v_and_b32 v87, 127, v0\nv_cmp_eq_u32 vcc, 0, v87')
        for n_, (Z, conj) in enumerate([(Z1,True),(Z8,False),(Z256,True)]):
            e(f'v_mul_f32 v{Z}, v{q+3*n_}, v{q+3*n_+1}\nv_mul_f32 v{Z+1}, {"-" if conj else ""}v{q+3*n_}, v{q+3*n_+2}')
        e(f'v_readfirstlane_b32 s{sT}, v{vRW}')
        if MPOS == 1 and not MF: id_mr = mod_read()
        e(f's_mov_b32 m0, s{sT}')
        def put(src, row, pk):
            return [f'v_cvt_pk_bf16_f32 v{pk}, v{src}, v{src+1}', f'ds_write_addtid_b32 v{pk} offset:{row*RST}' if self.opt('addtid', 1) else f'ds_write_b32 v{vRW}, v{pk} offset:{row*RST}']
        Z16 = 78
        R0 = [[f'v_mov_b32 v88, 0x3f80', f'ds_write_b32 v{vRW}, v88'], self.cmul(Z16, Z8, Z8) + put(Z16, 2, 88)]
        R1 = [put(Z8, 1, 84), []]
        cur = [Z16, Z8]; bufs = [[80, 82], [90, 92]]
        for rho in range(3, 32):
            par = rho & 1
            d = bufs[par][(rho >> 1) & 1]
            (R1 if par else R0).append(self.cmul(d, cur[par], Z16) + put(d, rho, 84 if par else 88)); cur[par] = d
        Cq = [put(Wc, 32, 89)]
        cr = {0: Wc}
        reg = {1:110, 2:94, 3:110, 4:96, 5:110, 6:98, 7:110, 8:100}
        for ee in range(1, 9):
            Cq.append(self.cmul(reg[ee], cr[ee-1], Z1) + (put(reg[ee], 32+ee, 89) if ee < 8 else [])); cr[ee] = reg[ee]
        chain = [(264,8,44,102),(520,264,46,104),(776,520,48,102),(1032,776,49,104),(1288,1032,50,102),(1544,1288,51,104),(1800,1544,52,102)]
        for ee, src, row, d in chain:
            Cq.append(self.cmul(d, cr[src], Z256) + put(d, row, 89)); cr[ee] = d
        side = [(260,4,42,106),(516,260,45,108),(772,516,47,106)]
        for ee, src, row, d in side:
            R0.append(self.cmul(d, cr[src], Z256) + put(d, row, 88)); cr[ee] = d
        R1.append(self.cmul(90, cr[0], Z256) + put(90, 40, 84))
        R1.append(self.cmul(92, cr[2], Z256) + put(92, 41, 84))
        Cq.append(self.cmul(110, cr[6], Z256) + put(110, 43, 89))
        KD = 12
        Cq.append([f'v_mov_b32 v{KD+1}, s{sDsk}', f'v_mov_b32 v{KD+2}, 0', f'v_cndmask_b32 v{KD}, 0, v{KD+1}, vcc', f'v_mov_b32 v{KD+1}, 0'])
        Cq.append([f'v_mov_b32 v{KD+3}, 0', f'v_mul_f32 v{vBv}, {fbits(2.0**36)}, v{vOne}', f'v_max_f32 v{vBv}, {fbits(2.0**-64)}, v{vBv}'])
        for n_ in range(max(len(R0), len(R1), len(Cq))):
            st = [a_[n_] if n_ < len(a_) else [] for a_ in (R0, R1, Cq)]
            for j in range(4):
                for a_ in st:
                    if j < len(a_): e(a_[j])
            if n_ == 1 and MPOS == 1 and not MF: mod_store(id_mr)
            if WJN <= -2 and n_ == -WJN-1:
                e(f's_waitcnt {self.wvm(idw[0])}')
                for x in wjob_ops(128): wst[0] = e(x)
        self.stamp('kgen1')
        EG = 68
        e1m = '\n'.join(f'buffer_load_dwordx4 {vr(EG+16+4*i,4)}, v{vEM}, {SRD}, s{sE1+4+i} offen sc1' for i in range(2))
        e1x = '\n'.join(f'buffer_load_dwordx2 {vr(EG+2*i,2)}, v{vEX}, {SRD}, s{sE1+i} offen sc1' for i in range(4))
        e1_loads = e1x + '\n' + e1m
        E1AT = self.opt('e1at', 1); E1M = self.opt('e1m', 2); ide = [0]
        def e1_issue(k_):
            if E1AT == k_: ide[0] = e(e1x)
            if max(E1M, E1AT) == k_: ide[0] = e(e1m)
        e('s_waitcnt lgkmcnt(0)')
        e1_issue(0)
        e('s_barrier')
        self.stamp('_kbar1')
        KF = 160
        kf_id = []
        for kk in range(8):
            e(f"""ds_read_b128 {vr(KF+12*kk,4)}, v{vKa} offset:{64*kk}
            ds_read_b128 {vr(KF+12*kk+4,4)}, v{vKb0} offset:{32*RST+64*kk}
            ds_read_b128 {vr(KF+12*kk+8,4)}, v{vKb1} offset:{44*RST+64*kk}""")
            kf_id.append(self.nlg)
            if kk == 4:
                e1_issue(1)
        for kk in range(8):
            e(f's_waitcnt {self.wlg(kf_id[kk])}')
            for cb in range(2):
                e(f'v_mfma_f32_16x16x32_bf16 {vr(KD+4*cb,4)}, {vr(KF+12*kk,4)}, {vr(KF+12*kk+4+4*cb,4)}, {"0" if kk==0 and cb==1 else vr(KD+4*cb,4)}')
        e1_issue(2)
        wd_pf2(2)
        touch(2)
        if WGA == 2: wg_issue(8)
        AN = 128; AX = 160; T2 = 192; T3 = 204; BND = 196; SF2 = 208; SF3 = 232; SD = 240; US = 72
        e(f"""
        ds_read2_b32 {vr(BND,2)}, v{vBd} offset0:6 offset1:4
        ds_read2_b32 {vr(BND+2,2)}, v{vBd} offset0:2 offset1:0
        ds_read2_b32 {vr(BND+4,2)}, v{vBd} offset0:70 offset1:68
        ds_read2_b32 {vr(BND+6,2)}, v{vBd} offset0:66 offset1:64
        ds_read2_b32 {vr(BND+8,2)}, v{vBd2} offset0:134 offset1:132
        ds_read2_b32 {vr(BND+10,2)}, v{vBd2} offset0:130 offset1:128""")
        for cb in range(2):
            for j in range(2):
                e(f'v_cvt_pk_bf16_f32 v{KD+8+2*cb+j}, v{KD+4*cb+2*j}, v{KD+4*cb+2*j+1}')
        def scat(cb, j):
            va = (vKw0, vKw1)[cb]; off = 32*j if cb == 0 else (j&1)*928 + (j>>1)*4
            op = 'ds_write_b16_d16_hi' if j & 1 else 'ds_write_b16'
            e(f'{op} v{va}, v{KD+8+2*cb+(j>>1)} offset:{off}\n{op} v{va}, v{KD+8+2*cb+(j>>1)} offset:{off+6}')
        for j in range(4): scat(0, j)
        scat(1, 3)
        e('s_mov_b32 exec_lo, 0x00ff00ff\ns_mov_b32 exec_hi, 0x00ff00ff')
        for j in range(3): scat(1, j)
        e('s_mov_b64 exec, -1')
        e1_issue(3); id_e1 = ide[0]
        self.stamp('kgen2')
        def rd2(d, va, o): return [f'ds_read2_b32 {vr(d,2)}, v{va} offset0:{o+6} offset1:{o+4}', f'ds_read2_b32 {vr(d+2,2)}, v{va} offset0:{o+2} offset1:{o}']
        def rq2(d, o0, o1): return [f'ds_read2_b32 {ar(d,2)}, v{vQ} offset0:{o0} offset1:{o0-2}', f'ds_read2_b32 {ar(d+2,2)}, v{vQ} offset0:{o1} offset1:{o1-2}']
        vPA1 = 55
        reads = {}
        for be_ in range(6): reads[('u', be_)] = (US+4*be_, [f'ds_read_b128 {vr(US+4*be_,4)}, v{vUS} offset:{512*be_}'])
        for jq in range(4):
            for J in range(2): reads[('a', jq, J)] = (AN+8*jq+4*J, rd2(AN+8*jq+4*J, vPA1 if J else vPA, 32*jq))
        reads[('x', 16)] = (AX, rd2(AX, vPX, 0)); reads[('x', 32)] = (AX+4, rd2(AX+4, vPX, 48))
        for d_ in (2,3,4): reads[('t2', d_)] = (T2+4*(d_-2), rq2(T2+4*(d_-2), 16*d_-28, 64+16*d_-28))
        for d_ in (4,5,6,7): reads[('t3', d_)] = (T3+4*(d_-4), rq2(T3+4*(d_-4), 128+16*d_-44, 128+16*d_-60))
        pre = set(); wjs = []
        e(f'v_add_u32 v{vPA1}, 1024, v{vPA}')
        if self.opt('kpre', 0):
            e('s_waitcnt lgkmcnt(0)\ns_barrier')
            for o in reads:
                if o[0] != 'u':
                    for x in reads[o][1]: e(x)
                    pre.add(o)
        if WJN == -1 and self.opt('wjpre', 4):
            e(f's_waitcnt {self.wvm(idw[0])}')
            for x in wjob_ops(168 if self.opt('wjpre', 4) < 4 else 216, 4):
                if x.startswith('buffer_') and self.opt('wjpre', 4) != 3: wjs.append(x)
                else: wst[0] = e(x)
        XC = EG+8
        e(f's_waitcnt {self.wvm(id_e1)}\nL_e1chk:')
        for i in range(8): e(f'v_xor_b32 v{XC+i}, v{EG+i}, v{vTP+(i&1)}')
        e(f"""
        v_cmp_ne_u32 {sp(sBad)}, v{EG+19}, v2
        v_or3_b32 v92, v{XC}, v{XC+1}, v{XC+2}
        v_or3_b32 v93, v{XC+3}, v{XC+4}, v{XC+5}
        v_cmp_ne_u32 vcc, v{EG+23}, v2
        v_or3_b32 v92, v92, v{XC+6}, v{XC+7}
        s_or_b64 {sp(sBad)}, {sp(sBad)}, vcc
        v_bitop3_b32 v92, v92, v93, s{sTm} bitop3:0xa8
        v_cmp_ne_u32 vcc, 0, v92
        s_or_b64 {sp(sBad)}, {sp(sBad)}, vcc
        s_cbranch_scc1 L_e1retry""")
        self.tail.append(f"""L_e1retry:
        s_sub_u32 s{sCnt}, s{sCnt}, 1
        s_cbranch_scc1 L_end
        s_wqm_b64 exec, {sp(sBad)}
        {e1_loads}
        s_mov_b64 exec, -1
        s_waitcnt vmcnt(0)
        s_branch L_e1chk""")
        self.stamp('e1_ok')
        wd_pf2(3)
        touch(3)
        if self.opt('wjpre', 4) == 2:
            while wjs: wst[0] = e(wjs.pop(0))
        if WGA == 3: wg_issue(8)
        e(f's_lshl_b32 s{sDmaL}, s{sW}, 13')
        g0 = 28; HF = 96
        e(f"""
        v_add_f32 v{g0}, v{EG+16}, v{EG+20}
        v_add_f32 v{g0+1}, v{EG+17}, v{EG+21}
        v_add_f32 v{g0+2}, v{EG+18}, v{EG+22}
        v_mov_b32 v{g0+3}, 0""")
        unp = []
        for i in range(4):
            unp += [f'v_lshlrev_b32 v{HF+4*i}, 16, v{XC+2*i}', f'v_lshlrev_b32 v{HF+4*i+1}, 16, v{XC+2*i+1}',
                    f'v_and_b32 v{HF+4*i+2}, s{sMask}, v{XC+2*i}', f'v_and_b32 v{HF+4*i+3}, s{sMask}, v{XC+2*i+1}']
        self.reduce4(g0, g0+1, g0+2, g0+3, unp)
        unp = self.rest
        e(f"""
        v_cvt_pk_bf16_f32 v{g0}, v{g0}, v{g0}
        v_and_b32 v{g0}, s{sMask}, v{g0}
        v_add_f32 v{g0+1}, v{g0}, v{vOne}
        v_readlane_b32 s{sM+4}, v{g0}, 16
        v_readlane_b32 s{sM+5}, v{g0}, 17
        v_cvt_pk_bf16_f32 v{g0}, v{g0+1}, v{g0+1}
        v_and_b32 v{g0}, s{sMask}, v{g0}
        v_mul_f32 v{g0+3}, v{vBv}, v{g0}
        v_mul_f32 v{g0+1}, s{sM+4}, v{g0+3}
        v_mul_f32 v{g0+2}, s{sM+5}, v{g0+3}
        v_readlane_b32 s{sM}, v{g0+1}, 32
        v_readlane_b32 s{sM+1}, v{g0+1}, 0
        v_readlane_b32 s{sM+2}, v{g0+2}, 33
        v_readlane_b32 s{sM+3}, v{g0+2}, 1""")
        for x in unp: e(x)
        for i in range(4):
            for ch in range(2):
                h = HF+4*i+2*ch
                e(f'v_pk_fma_f32 {vr(h,2)}, {vr(h,2)}, {sp(sM+2*ch)}, {sp(sM+2*ch)} op_sel:[0,0,1] op_sel_hi:[1,0,1]')
            for ch in range(2):
                h = HF+4*i+2*ch
                e(f'v_cvt_pk_bf16_f32 v{g0+2+ch}, v{h}, v{h+1}\nds_write_b32 v{vUw}, v{g0+2+ch} offset:{ch*USZ+1024*i}')
        while wjs and self.opt('wjpre', 4) < 4: wst[0] = e(wjs.pop(0))
        if WJN == -1 and not self.opt('wjpre', 4):
            e(f's_waitcnt {self.wvm(idw[0])}')
            for x in wjob_ops(): wst[0] = e(x)
        e('s_waitcnt lgkmcnt(0)\ns_barrier')
        self.stamp('u_ready')
        wopen[0] = 2
        ACC = 224; ZG = 12
        BR = [96,100,104,108,116,120,168,172,176,180,184,188]
        F1N = self.opt('f1n', 200)
        def f1_publish(): e(f's_waitcnt {self.wvm(wst[0])}\n' + self.flag_text(vF, sF1o))
        for m in range(8):
            for jq in range(4):
                r_ = BR[(4*m+jq) % len(BR)]
                reads[('b', m, jq)] = (r_, [f'ds_read_b128 {vr(r_,4)}, v{vUB} offset:{512*m+192-64*jq}'])
        ops = []
        S = lambda nm, be_: ops.append(('S', (nm, be_), ('u', be_), ('bnd', nm)))
        def near(m, Js):
            for jq in range(4):
                for J in Js: ops.append(('M', m+J, ('a', jq, J), ('b', m, jq)))
        def far(cb):
            ops.append(('M', cb, ('x', 16), ('u', cb-2)))
            if cb >= 4: ops.append(('M', cb, ('x', 32), ('u', cb-4)))
            for d_ in (4,3,2):
                if cb-d_ >= 0: ops.append(('M', cb, ('s2', cb-d_), ('t2', d_)))
            if cb >= 4: ops.append(('M', cb, ('s3', 0), ('t3', cb)))
            if cb >= 6: ops.append(('M', cb, ('s3', 1), ('t3', cb-2)))
        S('a',0); S('b',0); S('a',1); S('b',1)
        near(0,(0,1)); near(1,(0,1)); far(2); S('c',0); S('c',1); near(2,(0,1)); S('a',2); S('b',2); far(3); near(3,(0,))
        S('a',3); S('b',3); near(3,(1,)); far(4); near(4,(0,1)); far(5); near(5,(0,))
        S('a',4); S('b',4); S('c',2); S('c',3); near(5,(1,)); S('a',5); S('b',5); near(6,(0,1)); far(6); near(7,(0,)); far(7)
        assert len(ops) == 107
        def opreg(o):
            if o[0] == 'bnd': return BND + 4*'abc'.index(o[1])
            if o[0] == 's2': return SF2 + 4*o[1]
            if o[0] == 's3': return SF3 + 4*o[1]
            return reads[o][0]
        firstuse = {}; lastuse = {}; accdone = {}
        for n, (kd, dst, oa, ob) in enumerate(ops):
            for o in (oa, ob): firstuse.setdefault(o, n); lastuse[o] = n
            if kd == 'M': accdone[dst] = n
        rq = []
        for o in sorted(reads, key=lambda o: firstuse[o]):
            early = -1
            if o[0] == 'b' and 4*o[1]+o[2] >= len(BR):
                idx = 4*o[1]+o[2]-len(BR); early = lastuse[('b', idx//4, idx%4)] + 1
            if o not in pre:
                for x in reads[o][1]: rq.append((early, o, x))
        rid = {o: 0 for o in pre}
        def popread():
            _, o, x = rq.pop(0); e(x)
            if not any(o2 == o for _, o2, _ in rq): rid[o] = self.nlg
        for _ in range(self.opt('cpre', 8 if pre else 14)): popread()
        tq = 69
        fill = [f's_bitcmp1_b32 s{sL}, 1\ns_cselect_b32 s{sT}, 1.0, {fbits(2.0**-64)}', f'v_mul_f32 v{g0+1}, s{sT}, v{g0}']
        fill += [f'v_readlane_b32 s{sM+6+n_}, v{g0+(n_<4)}, {ln}' for n_, ln in list(enumerate([34,35,2,3,18,19]))[::-1]]
        TZ = 16; XE = 52; vYr1 = 64
        fill += f"""v_and_b32 v{tq}, 3, v0
        s_pack_hh_b32_b16 s{sT}, s{sM+6}, s{sM+7}
        s_pack_hh_b32_b16 s{sT+1}, s{sM+8}, s{sM+9}
        s_pack_hh_b32_b16 s{sT+2}, s{sM+10}, s{sM+11}
        v_lshlrev_b32 v{tq}, 2, v{tq}
        s_mov_b32 s{sTm}, {TAGZ}
        v_alignbit_b32 v{tq}, v2, v2, v{tq}
        v_xor_b32 v{vYr1}, 32, v{vYr}
        v_add_u32 v{vTw}, 65536, v{vTr}
        v_and_b32 v{TZ}, s{sTm}, v{tq}
        v_alignbit_b32 v{TZ+1}, v{tq}, v{tq}, 1
        v_alignbit_b32 v{TZ+2}, v{tq}, v{tq}, 2
        v_alignbit_b32 v{TZ+3}, v{tq}, v{tq}, 3
        v_and_b32 v{TZ+1}, s{sTm}, v{TZ+1}
        v_and_b32 v{TZ+2}, s{sTm}, v{TZ+2}
        v_and_b32 v{TZ+3}, s{sTm}, v{TZ+3}
        v_mov_b32 v192, s{sT}
        v_mov_b32 v193, s{sT+1}
        v_mov_b32 v194, s{sT+2}
        v_mov_b32 v195, v2""".split('\n')
        stages = {'a': [(0,),(1,)], 'n': [(0,1)]}[self.opt('stages', 'a')]
        wr_id = {}; cq = []; sq = []; sdone = {}; nsd = 0; stage = 0; done_w = 0; waited = 0
        zst = {}
        def stage_ops(sg, final):
            out = []
            regs = {(k_, j): ([28, SD][j] if not final else 72+16*n_+8*j) for n_, k_ in enumerate(sg) for j in range(2)}
            for k_ in sg:
                for j in range(2):
                    for pw in range(4): out.append(('rd', (k_,j), f'ds_read_b64 {vr(regs[(k_,j)]+2*pw,2)}, v{vYr1 if j else vYr} offset:{8192*pw+4096*k_}'))
            for k_ in sg:
                for j in range(2):
                    y = regs[(k_,j)]; i = (k_,j)
                    out.append(('wait', i, None))
                    if final:
                        out += [('v', i, f'v_pk_add_f32 {vr(y+4*ch,2)}, {vr(y+4*ch,2)}, {vr(y+4*ch+2,2)}') for ch in range(2)]
                    else:
                        out += [('v', i, f'v_add_f32 v{y+4*ch+r}, v{y+4*ch+r}, v{y+4*ch+2+r}') for r in range(2) for ch in range(2)]
                    out += [('v', i, f'v_cvt_pk_bf16_f32 v{ZG+2*j+r}, v{y+r}, v{y+4+r}') for r in range(2)]
                    out += [('v', i, f'v_bfi_b32 v{ZG+2*j+r}, s{sTm}, v{TZ+2*j+r}, v{ZG+2*j+r}') for r in range(2)]
                x = f'buffer_store_dwordx4 {vr(ZG,4)}, v1, {SRD}, s{sZs+k_} offen sc1'
                if k_ == 0: x += f'\ns_mov_b64 exec, 1\nbuffer_store_dwordx4 v[192:195], v1, {SRD}, s{sZs+2} offen sc1\ns_mov_b64 exec, -1'
                out.append(('st', k_, x))
            return out
        y_id = {}; ride = [0]; pub = []
        def popstage():
            nonlocal waited
            kd, i, x = sq.pop(0)
            if kd == 'wait':
                e(f's_waitcnt {self.wlg(y_id[i])}'); waited = max(waited, y_id[i])
            else:
                r_ = e(x)
                if kd == 'rd': y_id[i] = self.nlg
                if kd == 'st':
                    zst[i] = r_
                    if not sq:
                        ride[0] = self.opt('ride', 0)
                        pub.append(1)
                        if F1N == 199 + len(pub): f1_publish()
        seen = set(); hold = 0; accpos = {}; wj = []
        for n, (kd, dst, oa, ob) in enumerate(ops):
            if n in (1, 27, 54, 81): self.stamp(f'_c{n}')
            for o in (oa, ob):
                while o in reads and o not in rid: popread()
                if o[0] in ('s2', 's3'):
                    while any(tg == o for _, tg, _ in cq): e(cq.pop(0)[2])
            need = max(rid.get(oa, 0), rid.get(ob, 0))
            if need > waited:
                e(f's_waitcnt {self.wlg(need)}'); waited = max(need, self.nlg - 14)
            if kd == 'S':
                d = SD + 4*(nsd % 4); nsd += 1
                while any(f'v{d},' in x or x.endswith(f'v{d+3}') for _, _, x in cq): e(cq.pop(0)[2])
                while any(k_ != 'st' for k_, _, _ in sq): popstage()
                e(f'v_mfma_f32_16x16x32_bf16 {vr(d,4)}, {vr(opreg(oa),4)}, {vr(opreg(ob),4)}, 0')
                nm, be_ = dst
                tg = ('s2', be_) if nm != 'c' else ('s3', be_ >> 1)
                o_ = opreg(tg) + (2*'ab'.index(nm) if nm != 'c' else 2*(be_ & 1))
                cq += [(len(p.text), tg, f'v_cvt_pk_bf16_f32 v{o_+j}, v{d+2*j}, v{d+2*j+1}') for j in range(2)]
            else:
                c_ = ar(ACC+4*dst,4) if dst in seen else '0'; seen.add(dst)
                e(f'v_mfma_f32_16x16x32_bf16 {ar(ACC+4*dst,4)}, {vr(opreg(oa),4)}, {(ar if ob[0][0] == "t" else vr)(opreg(ob),4)}, {c_}')
                if accdone[dst] == n: accpos[dst] = len(p.text)
            budget = 2
            if wjs and n >= self.opt('wsn', 4) + (4-len(wjs))*self.opt('wss', 3):
                assert n < 30; wst[0] = e(wjs.pop(0)); budget = 1
            elif n == F1N: f1_publish(); budget = 0
            elif n % self.opt('wd_pace', 6) == 1 and self.opt('wd_first', 0) <= n <= self.opt('wd_last', 100) and wd_can(): wd_issue(1); budget = 1
            elif ride[0] > 0 and n % 2 == 0 and wd_can(): wd_issue(1); budget = 1; ride[0] -= 1
            if n == WJN: e(f's_waitcnt {self.wvm(idw[0])}'); wj = wjob_ops()
            if stage < len(stages)-1 and done_w > 4*stages[stage][-1]+3 and n >= wr_n + 3 and not sq:
                while fill: e(fill.pop(0))
                while cq: e(cq.pop(0)[2])
                e(f's_waitcnt {self.wlg(wr_id[done_w-1])}\ns_barrier'); waited = max(waited, wr_id[done_w-1])
                sq = stage_ops(stages[stage], False); stage += 1; budget = 0
            while budget > 0:
                budget -= 1
                if rq and rq[0][0] <= n and firstuse[rq[0][1]] <= n + self.opt('cla', 20): popread()
                elif cq and len(p.text) - cq[0][0] >= 8: e(cq.pop(0)[2])
                elif done_w in accpos and len(p.text) - accpos[done_w] >= 8:
                    e(f'ds_write_b128 v{vYw}, {ar(ACC+4*done_w,4)} offset:{1024*done_w}'); wr_id[done_w] = self.nlg; wr_n = n; done_w += 1
                elif sq and not (sq[0][0] == 'wait' and hold > n):
                    if sq[0][0] == 'rd': hold = n + 4
                    popstage()
                elif fill: e(fill.pop(0))
                elif wj: wst[0] = e(wj.pop(0))
                elif rq and rq[0][0] <= n: popread()
                elif self.opt('trconv', 0) and tr_ready(8): tr_pop()
        assert not rq and not cq and not wj and stage == len(stages)-1
        while sq: popstage()
        for x in fill: e(x)
        self.stamp('conv')
        while done_w < 8:
            e(f'ds_write_b128 v{vYw}, {ar(ACC+4*done_w,4)} offset:{1024*done_w}'); done_w += 1
        e('s_waitcnt lgkmcnt(0)\ns_barrier')
        sq = stage_ops(stages[-1], True)
        while sq: popstage()
        id_z = self.nvm
        if F1N == 107: f1_publish()
        self.stamp('z_stored')
        vP1 = 122
        e(f"""
        s_bfe_u32 s1, s{sL}, 0x30002
        s_lshr_b32 s0, s{sL}, 7
        s_lshl3_add_u32 s{sMt}, s0, s1
        s_bfe_u32 s0, s{sL}, {0x10005 if MAP2 == 84 else 0x20005}
        s_and_b32 s1, s{sMt}, {15 if MAP2 == 84 else 14}
        s_lshl1_add_u32 s{sTb}, s1, s0
        s_bfe_u32 s0, s{sL}, 0x20005
        s_and_b32 s1, s{sL}, 3
        s_lshl2_add_u32 s{sNt}, s0, s1
        s_mul_i32 s0, s{sNt}, 7
        s_lshr_b32 s0, s0, 2
        v_bfe_u32 v{t+1}, v0, 3, 3
        v_min_u32 v{t+1}, 2, v{t+1}
        v_add_u32 v{t+1}, s0, v{t+1}
        v_min_u32 v{t+1}, 27, v{t+1}
        v_and_b32 v{t+2}, 7, v0
        v_lshl_add_u32 v{t+1}, v{t+1}, 5, v{t+2}
        s_lshl_b32 s0, s{sW}, 10
        s_add_u32 s0, s0, {F1}
        v_lshl_add_u32 v{vP1}, v{t+1}, 7, s0""")
        f1_load = f'buffer_load_dword v{vPolled}, v{vP1}, {SRD}, 0 offen sc1'
        F1P = self.opt('f1p', 0)
        if F1P == 0: id_f1 = e(f1_load)
        e(f"""
        s_mul_i32 s{sDmaG}, s{sNt}, {7*32768}
        s_add_u32 s{sDmaG}, s{sDmaG}, s{sDmaL}
        s_add_u32 s{sDmaG}, s{sDmaG}, {WGU}""")
        dq = [x for i in range(5) for x in self.dma_tile(i,i)]
        f1ok = [False]; maxt = [2]
        def bg_issue(n):
            for _ in range(n):
                if wd_can() and wdq[0][0] <= 2: wd_one()
                elif f1ok[0] and dq[0][0] <= 2: tile_one(dq)
                else: wd_issue(1)
        def bg(name, nT, nL):
            v = self.opt(name, None)
            if v is not None: nT, nL = v // 100, v % 100
            done = 0
            for i in range(nT):
                k_ = (nL*(i+1) + nT-1)//nT - done; bg_issue(k_); done += k_
                tr_do(1)
            bg_issue(nL - done)
        bg('b_zack', 4, 9)
        XF = 36
        for r in range(2):
            for i in range(4):
                for x in self.unpack(XF+8*r+2*i, XR+4*r+i): e(x)
        TH = 66; TX = 14; vZ = 28; vH2 = 29; ZI = 72; vMsk = 30
        vP2 = 24; vXa = 25; vA2 = 26; vA4 = 27; vP3 = 23; vX2 = 22; vAc1 = 21
        c1 = -2*1.4426950408889634*0.7978845608028654; c2 = c1*0.044715
        gs = (-c2)**(1/3); sGk, sGs = 30, 31
        e(f'''
        v_and_b32 v{t}, 0xfc, v0
        v_and_b32 v{t+2}, 0x30, v1
        s_movk_i32 s{sT}, {HBLK}
        v_mad_u32_u24 v{vZ}, v{t}, s{sT}, v{t+2}
        s_lshr_b32 s{sT}, s{sL}, 1
        s_lshl_b32 s{sT}, s{sT}, 6
        s_add_u32 s{sT}, s{sT}, {ZY}
        s_add_u32 s{sT+1}, s{sT}, {HBLK}
        s_add_u32 s{sT+2}, s{sT}, {2*HBLK}
        s_add_u32 s{sT+3}, s{sT}, {3*HBLK}
        s_lshl_b32 s{sT+8}, s{sW}, 10
        s_add_u32 s{sT+8}, s{sT+8}, {MX}
        s_bitcmp1_b32 s{sL}, 0
        s_cselect_b32 s{sLo}, 0x04040000, 0
        s_add_u32 s{sHi}, s{sLo}, 0x03020c0c
        s_add_u32 s{sLo}, s{sLo}, 0x01000c0c
        s_mov_b32 s{sM}, {fbits(2.0**64)}
        v_lshrrev_b32 v{t}, 3, v0
        v_and_b32 v{t+1}, 0x70, v1
        v_lshl_add_u32 v{vH2}, v{t}, 10, v{t+1}
        s_lshr_b32 s{sT+4}, s{sL}, 2
        s_lshl_b32 s{sT+4}, s{sT+4}, 7
        s_and_b32 s{sT+5}, s{sL}, 3
        s_add_u32 s{sT+4}, s{sT+4}, s{sT+5}
        s_lshl_b32 s{sT+4}, s{sT+4}, 8
        s_add_u32 s{sT+4}, s{sT+4}, {H2}
        s_mov_b32 s{sT+5}, {X2}
        v_mov_b32 v{vMsk}, s{sMask}
        s_lshl2_add_u32 s{sT+6}, s{sL}, s{sW}
        s_lshl_b32 s{sT+6}, s{sT+6}, 7
        s_add_u32 s{sT+6}, s{sT+6}, {F2}
        s_lshl2_add_u32 s0, s{sMt}, s{sW}
        s_lshl_b32 s{sXg}, s0, 15
        s_add_u32 s{sXg}, s{sXg}, {H2}
        s_lshl4_add_u32 s0, s0, s{sNt}
        s_mul_i32 s0, s0, {7*1024}
        s_add_u32 s{sActS}, s0, {ACT}
        s_add_u32 s{sActS+1}, s0, {ACT+4096}
        s_add_u32 s{sF3o}, s{sT+6}, {F3-F2}
        s_and_b32 s0, s{sL}, 0x98
        s_bfe_u32 s1, s{sTb}, 0x10001
        s_lshl2_add_u32 s0, s1, s0
        s_lshl_b32 s1, s{sW}, 5
        s_add_u32 s0, s0, s1
        s_and_b32 s1, s{sTb}, 1
        s_lshl1_add_u32 s0, s0, s1
        s_lshl_b32 s0, s0, 8
        s_add_u32 s{sF3p}, s0, {F3}
        s_lshl3_add_u32 s0, s{sTb}, s{sW}
        s_mul_i32 s0, s0, {28*1024}
        s_add_u32 s{sActG}, s0, {ACT}
        s_waitcnt {self.wvm(id_z)}''')
        self.stamp('_zack')
        if F1N == 108: f1_publish()
        z_loads = '\n'.join(f'buffer_load_dwordx4 {vr(ZI+4*i,4)}, v{vZ}, {SRD}, s{sT+i} offen sc1' for i in range(4))
        XG = 32
        z_loads += f'\nbuffer_load_dwordx4 {vr(XG,4)}, v1, {SRD}, s{sT+8} offen sc1'
        id_zl = e(z_loads)
        if F1P == 0:
            self.check(f1_load, [vPolled], id_f1); f1ok[0] = True
        elif F1P == 1: id_f1 = e(f1_load)
        bg('b_zld', 4, 0)
        bg('b_zld2', 0, 6)
        e(f'''
        v_lshrrev_b32 v{TH}, 3, v{t+1}
        v_alignbit_b32 v{TH}, v2, v2, v{TH}
        v_alignbit_b32 v{TH+1}, v{TH}, v{TH}, 1
        v_and_b32 v{TH}, s{sTm}, v{TH}
        v_and_b32 v{TH+1}, s{sTm}, v{TH+1}
        v_bfe_u32 v{t}, v0, 2, 3
        v_bfe_u32 v{t+3}, v0, 5, 1
        v_lshl_add_u32 v{t+2}, v{t+3}, 6, v{t+2}
        v_lshl_add_u32 v{vXa}, v{t}, 7, v{t+2}
        v_lshrrev_b32 v{TX}, 3, v{t+2}
        v_alignbit_b32 v{TX}, v2, v2, v{TX}
        v_alignbit_b32 v{TX+1}, v{TX}, v{TX}, 1
        v_and_b32 v{TX}, s{sTm}, v{TX}
        v_and_b32 v{TX+1}, s{sTm}, v{TX+1}
        v_add_u32 v{vA2}, 65536, v1
        v_add_u32 v{vA4}, 131072, v1
        v_add_u32 v{vAc1}, {112*1024}, v1
        v_mov_b32 v{vInv+1}, {fbits(1e-5/gs**2)}
        s_mov_b32 s{sGk}, {fbits(c1/gs)}
        s_mov_b32 s{sGs}, {fbits(gs*gs*2.0**64)}
        s_mov_b32 s{sM+1}, {fbits(gs)}
        v_bfe_u32 v{t}, v0, 1, 2
        v_and_b32 v{t+2}, 1, v0
        v_lshlrev_b32 v{t+2}, 7, v{t+2}
        v_lshl_add_u32 v{vP3}, v{t}, 9, v{t+2}
        v_bfe_u32 v{t}, v0, 3, 2
        v_lshl_add_u32 v{t}, v{t}, 1, v{t+3}
        v_lshl_add_u32 v{t}, v{t}, 10, v{t+1}
        s_lshl3_add_u32 s0, s{sTb}, s{sW}
        s_lshl_b32 s0, s0, 6
        s_add_u32 s0, s0, s{sDt}
        s_lshl_b32 s0, s0, 7
        v_add_u32 v{vX2}, s0, v{t}''')
        self.stamp('_zchk')
        ZC = 144
        e(f's_waitcnt {self.wvm(id_zl)}\nL_zchk:')
        for i in range(16): e(f'v_xor_b32 v{ZC+i}, v{ZI+i}, v{TZ+(i&3)}')
        e(f'v_cmp_ne_u32 {sp(sBad)}, v{XG+3}, v2')
        for i in range(5): e(f'v_or3_b32 v{160+i}, v{ZC+3*i}, v{ZC+3*i+1}, v{ZC+3*i+2}')
        e(f"""
        v_or3_b32 v160, v160, v161, v162
        v_or3_b32 v163, v163, v164, v{ZC+15}
        v_bitop3_b32 v160, v160, v163, s{sTm} bitop3:0xa8
        v_cmp_ne_u32 vcc, 0, v160
        s_or_b64 {sp(sBad)}, {sp(sBad)}, vcc
        s_cbranch_scc1 L_zretry""")
        self.tail.append(f"""L_zretry:
        s_sub_u32 s{sCnt}, s{sCnt}, 1
        s_cbranch_scc1 L_end
        s_wqm_b64 exec, {sp(sBad)}
        {z_loads}
        s_mov_b64 exec, -1
        s_waitcnt vmcnt(0)
        s_branch L_zchk""")
        self.stamp('z_ok')
        if F1P == 1: self.check(f1_load, [vPolled], id_f1); f1ok[0] = True
        elif F1P == 2: id_f1 = e(f1_load)
        nl2 = [self.opt('b_ln2', 10)]
        def ln2bg(n=1):
            for _ in range(n):
                if nl2[0] > 0: bg_issue(1); nl2[0] -= 1
        ZF = 88
        for i in range(4):
            ln2bg()
            for r in range(2):
                z = ZF+8*r+2*i
                e(f'v_perm_b32 v{z}, v{ZC+4*i+2+r}, v{ZC+4*i+r}, s{sLo}\nv_perm_b32 v{z+1}, v{ZC+4*i+2+r}, v{ZC+4*i+r}, s{sHi}')
            for r in range(2):
                z = ZF+8*r+2*i; x = XF+8*r+2*i
                e(f'v_pk_fma_f32 {vr(x,2)}, {vr(z,2)}, {sp(sM)}, {vr(x,2)} op_sel_hi:[1,0,1]')
            for r in range(2):
                x = XF+8*r+2*i
                e(f'v_cvt_pk_bf16_f32 v{XR+4*r+i}, v{x}, v{x+1}')
        unp = [x for r in range(2) for i in range(4) for x in self.unpack(XF+8*r+2*i, XR+4*r+i)]
        self.stats_partial(XR, t, vSBw, unp)
        unp = self.rest
        ln2bg(2)
        for x in unp: e(x)
        e('s_waitcnt lgkmcnt(0)\ns_barrier')
        wopen[0] = 3
        self.stamp('_ln2bar')
        ST = 128
        self.stats_read(ST, vSBr)
        GBV = 12
        for i in range(4):
            ln2bg()
            for kind in range(2):
                d = ZF+8*kind+2*i
                qp = f'quad_perm:[{i},{i},{i},{i}] row_mask:0xf bank_mask:0xf'
                e(f'v_cvt_f32_bf16_dpp v{d}, v{XG+kind} {qp}\nv_and_b32_dpp v{d+1}, v{XG+kind}, v{vMsk} {qp}')
        for i in range(4): e(f'v_pk_mul_f32 {vr(ZF+8+2*i,2)}, {vr(ZF+8+2*i,2)}, {sp(sM)} op_sel:[0,1] op_sel_hi:[1,1]')
        e('s_waitcnt lgkmcnt(0)')
        self.stats_finish(ST, vInv, pre=1/gs**2)
        HO = 104
        for r in range(2):
            for i in range(4):
                x = XF+8*r+2*i
                e(f'v_pk_fma_f32 {vr(x,2)}, {vr(x,2)}, {vr(ST+2*r,2)}, {vr(ST+2*r,2)} op_sel:[0,0,1] op_sel_hi:[1,0,1]')
            for i in range(4):
                x = XF+8*r+2*i
                e(f'v_pk_fma_f32 {vr(x,2)}, {vr(x,2)}, {vr(ZF+2*i,2)}, {vr(ZF+8+2*i,2)}')
            for i in range(4):
                x = XF+8*r+2*i
                e(f'v_cvt_pk_bf16_f32 v{HO+4*r+i}, v{x}, v{x+1}')
            for m in range(2): e(f'v_bfi_b32 v{HO+4*r+m}, s{sTm}, v{TH+m}, v{HO+4*r+m}')
            id_h = e(f'buffer_store_dwordx4 {vr(HO+4*r,4)}, v{vH2}, {SRD}, s{sT+4} offen offset:{128*r} sc1')
        self.stamp('h2_stored')
        e(f'v_mov_b32 v{GBV}, v{XG+2}')
        if F1P == 2: self.check(f1_load, [vPolled], id_f1); f1ok[0] = True
        bg('b_hack', 0, 16)
        while dq[0][0] < 3: tile_one(dq)
        e(f's_waitcnt {self.wvm(id_h)}')
        self.stamp('_h2_ack')
        bg('b_flag', 0, 0)
        X = 128
        AC = [28, 44, 60, 76]
        WE = self.opt('we', 4); LA = self.opt('la', 6); NB = 7; WF = 92; assert LA < NB
        TA, TA1 = 20, 23; GT = 120; GO = 16; X2R = 4; vP4 = 24; vPo = 25; vPo4 = 3
        P1 = self.opt('p1', 25)
        if P1 == 25:
            seq = []
            for s in range(32):
                seq += [(0, s), (1, s)]
                if s & 1: seq.append((2, s >> 1))
            seq += [(2, s) for s in range(16, 32)]
        else:
            seq = [(tl, s) for s in range(32) for tl in range(P1)] + [(tl, s) for tl in range(P1,3) for s in range(32)]
        seq += [(tl, s) for tl in range(3,7) for s in range(32)]
        slot = {0:0,1:1,2:2,3:3,4:4,5:0,6:1}
        acc = {tl: AC[tl % 4] for tl in range(7)}
        w_id = {}
        def wread(n):
            tl, s = seq[n]; sl = slot[tl]
            va = {0:1,1:1,2:vA2,3:vA2,4:vA4}[sl]
            e(f'ds_read_b128 {vr(WF+4*(n%NB),4)}, v{va} offset:{(sl&1 if sl<4 else 0)*32768 + 1024*kperm(s)}'); w_id[n] = self.nlg
        kperm = lambda s: 8*(s & 3) + (s >> 2)
        sXb = sM
        for j in range(8): e(f's_add_u32 s{sXb+j}, s{sXg}, {4096*j}')
        sAb = [76, 77, 78, 79, 80, 81, 32, 33]
        x_id = []
        def xtext(s): return f'buffer_load_dwordx4 {vr(X+4*s,4)}, v{vXa}, {SRD}, s{sXb+(kperm(s)>>2)} offen offset:{1024*(kperm(s)&3)} sc1'
        def xload(): x_id.append(e(xtext(len(x_id))))
        def xcheck(s):
            Lc = p.label('xc'); Lr = p.label('xr'); Ld = p.label('xd'); r0 = X+4*s
            body = [f'v_xor_b32 v{r0+4*j+m}, v{r0+4*j+m}, v{TX+m}' for j in range(2) for m in range(2)]
            body += [f'v_or3_b32 v13, v{r0}, v{r0+1}, v{r0+4}', f'v_bitop3_b32 v13, v13, v{r0+5}, s{sTm} bitop3:0xa8', 'v_cmp_ne_u32 vcc, 0, v13']
            def branch():
                rest = '\n'.join(xtext(j) for j in range(s+2, len(x_id)))
                self.tail.append(f'{Lr}:\ns_sub_u32 s{sCnt}, s{sCnt}, 1\ns_cbranch_scc1 L_end\n{xtext(s)}\n{xtext(s+1)}\ns_waitcnt vmcnt(0)\n' + '\n'.join(body) +
                                 f'\ns_cmp_lg_u64 vcc, 0\ns_cbranch_scc1 {Lr}\n{rest}\ns_branch {Ld}')
                e(f's_cbranch_vccnz {Lr}\n{Ld}:')
                assert self.nvm == x_id[-1] or len(x_id) == 32
                if self.nvm != x_id[-1]: self.tail[-1] = self.tail[-1].replace(f's_branch {Ld}', f's_waitcnt vmcnt(0)\ns_branch {Ld}')
            return body, branch
        XLA = self.opt('xla', 10)
        for s in range(XLA): xload()
        bg('b_x', 0, 0)
        for j in range(8): e(f's_add_u32 s{sAb[j]}, s{sActG}, {(7*(j>>1) + 4*(j&1))*1024}')
        if self.o.get('verbose'): print('tr reads left', len(trq), 'wd left', len(wdq), 'dq left', len(dq))
        e(f"""
        v_mov_b32 v124, v{vWdA}
        v_mov_b32 v{TA}, v{TH}
        v_add_u32 v13, s{sF3p}, v{vP3}
        v_mov_b32 v{TA1}, v{TH+1}
        v_and_b32 v{vP4}, {8 if NF else 0}, v0
        v_cmp_eq_u32 vcc, 0, v{vP4}
        v_and_b32 v{vP4}, 7, v0
        s_lshr_b32 s0, s{sDt}, 1
        s_lshl_b32 s1, s{sTb}, 5
        s_add_u32 s0, s0, s1
        s_lshl_b32 s0, s0, 7
        s_add_u32 s0, s0, {F3}
        v_lshl_add_u32 v{vP4}, v{vP4}, 9, s0
        v_cndmask_b32 v{vP4}, v13, v{vP4}, vcc
        s_waitcnt {self.wvm(dma_id[2])} lgkmcnt(0)
        s_barrier""")
        vW[0] = 124
        for n in range(LA): wread(n)
        xb, xbr = xcheck(0)
        e(f's_waitcnt {self.wvm(x_id[1])}\n' + '\n'.join(xb)); xbr()
        self.stamp('f2_ok')
        xq = []; xnext = 2
        f4_load = f'buffer_load_dword v{vPo4}, v{vP4}, {SRD}, 0 offen sc1'
        def gelu(tl):
            a = acc[tl]; out = []
            for hf in range(2):
                E = [a+4*hf+j for j in range(4)]
                out += [f'v_fma_f32 v{GT+j}, -v{E[j]}, v{E[j]}, s{sGk}' for j in range(4)]
                out += [f'v_mul_f32 v{GT+j}, v{GT+j}, v{E[j]}' for j in range(4)]
                for j in range(4): out += [f'v_exp_f32 v{GT+j}, v{GT+j}', f'v_mul_f32 v{E[j]+8}, v{E[j]+8}, v{E[j]}']
                for j in range(4): out += [f'v_fma_f32 v{GT+j}, v{GT+j}, s{sGs}, s{sGs}']
                for j in range(4): out += [f'v_rcp_f32 v{GT+j}, v{GT+j}']
                for j in range(4): out += [f'v_mul_f32 v{E[j]+8}, v{E[j]+8}, v{GT+j}']
                out += [f'v_cvt_pk_bf16_f32 v{GO+2*hf+j}, v{E[2*j]+8}, v{E[2*j+1]+8}' for j in range(2)]
                if hf == 0 and tl >= NF: out += [f'v_bfi_b32 v{GO+j}, s{sTm}, v{(TA,TA1)[j]}, v{GO+j}' for j in range(2)]
            out.append(f'buffer_store_dwordx4 {vr(GO,4)}, v1, {SRD}, s{sActS+(tl>>2)} offen offset:{1024*(tl&3)} sc1')
            return [(x, tl) for x in out]
        last = {tl: max(n for n, (a_, _) in enumerate(seq) if a_ == tl) for tl in range(7)}
        first = {tl: min(n for n, (a_, _) in enumerate(seq) if a_ == tl) for tl in range(7)}
        gq = []; vq = dq; st_id = {}; st_n = {}
        a_id = []; xfree = [0]; consumed = set()
        k0 = 28 - 4*len(groups[-1])
        lorder = [(kk, tt) for kk in range(k0) for tt in range(2)] + [(kk, tt) for tt in range(2) for kk in range(k0, 28)]
        NAG = 0
        def areg(kk): return ar(224+4*kk, 4) if kk < NAG else vr(X+4*((kk-NAG) % 32), 4)
        def acan():
            kk = len(a_id)
            if not checked or kk >= gend[checked-1]: return False
            return kk < NAG or (kk-NAG < xfree[0] if kk-NAG < 32 else kk-32 in consumed)
        def atext(kk):
            T, tt = korder[lorder[kk][0]], lorder[kk][1]; pp, i = divmod(T, 7)
            return f'buffer_load_dwordx4 {areg(kk)}, v{vAc1 if tt else 1}, {SRD}, s{sAb[2*pp+(i>>2)]} offen offset:{1024*(i&3)} sc1'
        def aload(): a_id.append(e(atext(len(a_id))))
        CG = self.opt('cg', 2)
        def acheck(kk):
            Lr = p.label('ar'); Ld = p.label('ad'); rs = [X+4*((kk+j) % 32)+m for j in range(CG) for m in range(2)]
            body = [f'v_xor_b32 v{r}, v{r}, v{(TA,TA1)[j&1]}' for j, r in enumerate(rs)]
            body.append(f'v_or3_b32 v{vPo}, v{rs[0]}, v{rs[1]}, v{rs[2]}')
            body += [f'v_or3_b32 v{vPo}, v{vPo}, v{rs[j]}, v{rs[j+1]}' for j in range(3, 2*CG-1, 2)]
            body += [f'v_bitop3_b32 v{vPo}, v{vPo}, v{rs[-1]}, s{sTm} bitop3:0xa8', f'v_cmp_ne_u32 vcc, 0, v{vPo}']
            def branch():
                self.tail.append(f'{Lr}:\ns_sub_u32 s{sCnt}, s{sCnt}, 1\ns_cbranch_scc1 L_end\n' + '\n'.join(atext(kk+j) for j in range(CG)) + '\ns_waitcnt vmcnt(0)\n' + '\n'.join(body) +
                                 f'\ns_cmp_lg_u64 vcc, 0\ns_cbranch_scc1 {Lr}\ns_branch {Ld}')
                e(f's_cbranch_vccnz {Lr}\n{Ld}:')
            return body, branch
        AD = self.opt('ad', 30); VISD = self.opt('visd', 26); POLD = self.opt('pold', 14)
        checked = 0; fl = {}
        gend = [sum(len(g) for g in groups[:i+1])*8 for i in range(len(groups))]
        def progress(n, force=None):
            nonlocal checked
            fo = -1 if force is None else force
            if checked == 0 and NF:
                if 'flag' in fl and 'poll' not in fl and (n >= fl['flag'] + VISD or fo >= 0):
                    fl['id'] = e(f4_load); fl['poll'] = n; return True
                if 'poll' in fl and (n >= fl['poll'] + POLD or fo >= 0):
                    self.check(f4_load, [vPo4], fl['id']); checked = 1; return True
            elif checked < len(groups) and groups[checked][-1] in st_id and (n >= st_n[groups[checked][-1]] + AD or fo >= checked):
                if fo >= checked: e(f's_waitcnt {self.wvm(st_id[groups[checked][-1]])}')
                checked += 1
            return False
        def emit_g(x, b_, n):
            i_ = e(x)
            if x.startswith('buffer_'):
                r = b_ - self.opt('x2t', 1); assert self.opt('x2t', 1) + 1 < NF or not NF
                if r in (0, 1): i_ = e(f'buffer_store_dwordx4 {vr(XR+4*r,4)}, v{vXO}, {SRD}, s{sT+5} offen offset:{1024*r} sc1')
                if r == 3 and not NF: e(f's_waitcnt {self.wvm(st_id[b_-2])}\n' + self.flag_text(vF, sF3o))
                if b_ == NF and NF: e(f's_waitcnt {self.wvm(st_id[NF-1])}\n' + self.flag_text(vF, sF3o)); fl['flag'] = n
                st_id[b_] = i_; st_n[b_] = n
        PACE = self.opt('pace', 20); nextv = [0]
        def pump(n):
            if 10*n < nextv[0]: return False
            if wd_can() and wdq[0][0] == 3: wd_one()
            elif vq and vq[0][0] == 3 and trq and trq[0][0] <= 3 and first[3] - n > 26:
                if any(x[0] == 4 for x in vq):
                    j = min(j for j, x in enumerate(vq) if x[0] == 4); tile_one([vq.pop(j)])
                else: return False
            elif wd_can() and vq and first[vq[0][0]] - n > self.opt('urg', 48): wd_one()
            elif vq: tile_one(vq)
            elif wd_can(): wd_one()
            elif acan(): aload()
            else: return False
            nextv[0] = max(nextv[0], 10*n - 10) + (PACE if not (192 <= n < 224) else self.opt('pace6', PACE))
            return True
        grate = self.opt('grate', 33); wwait = 0; aq0 = []
        for n, (tl, s) in enumerate(seq):
            if n in (1, 48, 96, 128, 160, 192): self.stamp(f'_g{n}')
            for a_ in range(6):
                if n == last[a_] + 4: gq += gelu(a_)
            if n == last[1] + 1 and n > first[3] - LA:
                e('s_barrier'); vq += [x for i in (5,6) for x in self.dma_tile(i, i-5)]
            for a_ in range(3, 7):
                if n == first[a_] - LA:
                    while any(x[0] == a_ for x in vq): tile_one(vq)
                    e(f's_waitcnt {self.wvm(dma_id[a_])}\ns_barrier')
                    if a_ == 4: wopen[0] = 4
                    if a_ == 5: wopen[0] = 6
                    if a_ == 3 and n > last[1]: vq += [x for i in (5,6) for x in self.dma_tile(i, i-5)]
            w_ = ''
            if w_id[n] > wwait:
                tgt = w_id[min(n+WE-1, len(seq)-1)]; w_ = self.wlg(tgt); wwait = tgt
            if tl == 0 and s % 2 == 0:
                while len(xq) > 1: e(xq.pop(0))
                if xq: xq.pop(0)()
            if w_: e(f's_waitcnt {w_}')
            if s == 0: assert not any(b_ == tl-4 for _, b_ in gq), (n, len(gq))
            c_ = '0' if s == 0 else vr(acc[tl],16)
            e(f'v_mfma_f32_32x32x16_bf16 {vr(acc[tl],16)}, {vr(WF+4*(n%NB),4)}, {vr(X+4*s,4)}, {c_}')
            if tl == 6: xfree[0] = s
            if n + LA < len(seq): wread(n+LA)
            budget = (grate*(n+1))//10 - (grate*n)//10
            if tl == 1 and s % 2 == 0 and s+2 < 32:
                xb, xbr = xcheck(s+2)
                e(f's_waitcnt {self.wvm(x_id[s+3])}'); xq = xb + [xbr]
            for _ in range(3):
                if len(xq) > 1: e(xq.pop(0))
            if progress(n): budget -= 2
            elif len(x_id) < 32:
                if tl == 0: xload()
                elif P1 == 3 and tl == 1 and s % 4 == 0: pump(n)
            else: pump(n)
            while gq and budget > 0:
                x, b_ = gq.pop(0); budget -= 1
                emit_g(x, b_, n)
            for _ in range(max(1, min(budget, 2))):
                if tr_ready(self.opt('trlag1', 9)): tr_pop()
            if not NF and n == len(seq) - self.opt('c6', 5) and len(a_id) >= CG:
                e(f's_waitcnt {self.wvm(a_id[CG-1])}'); b_, br_ = acheck(0); aq0 = b_ + [br_]
            for _ in range(3):
                if len(aq0) > 1: e(aq0.pop(0))
        assert not vq
        self.stamp('g1_mfma')
        n = len(seq); xfree[0] = 32
        while wdq: wd_one()
        e(f"""
        v_lshlrev_b32 v{WF}, 2, v0
        v_add_u32 v{WF}, {L_GB}, v{WF}
        ds_write_b32 v{WF}, v{GBV}""")
        while any(b_ <= 4 for _, b_ in gq):
            x, b_ = gq.pop(0); emit_g(x, b_, n)
        g6pos = len(p.text); g6 = gelu(6)
        A2 = [ar(224,16), ar(240,16), vr(AC[0],16), vr(AC[3],16)]
        a2q = lambda q_, i: ar(224+16*q_+4*i, 4) if q_ < 2 else vr(AC[3*(q_-2)]+4*i, 4)
        vRw = 12; vRr = 13; vG = 14
        fill = f"""v_bfe_u32 v{WF}, v0, 5, 1
        v_and_b32 v{WF+1}, 0x1f0, v1
        s_mul_i32 s{sT}, s{sW}, {4*RQ}
        s_add_u32 s{sT}, s{sT}, {L_RED}
        v_mul_u32_u24 v{WF}, {RQ}, v{WF}
        v_add3_u32 v{vRw}, v{WF}, v{WF+1}, s{sT}
        v_and_b32 v{WF}, 7, v0
        v_lshrrev_b32 v{WF+1}, 3, v0
        v_mul_u32_u24 v{WF+2}, {RSA}, v{WF}
        v_lshl_add_u32 v{vRr}, v{WF+1}, 4, v{WF+2}
        v_add_u32 v{vRr}, {L_RED}, v{vRr}
        s_lshl_b32 s{sT}, s{sDt}, 7
        s_add_u32 s{sT}, s{sT}, {L_GB}
        v_lshl_add_u32 v{vG}, v{WF}, 4, s{sT}
        s_add_u32 s{sT+2}, s{pOut}, 32768
        s_addc_u32 s{sT+3}, s{pOut+1}, 0""".split('\n')
        fill[-2:] = ['\n'.join(fill[-2:])]
        XF2 = 96
        fill2 = [x for tt in range(2) for j in range(4) for x in self.unpack(XF2+8*tt+2*j, X2R+4*tt+j)]
        TAILK = self.opt('tailk', 6)
        o2 = [(kk, tt, c) for kk in range(28-TAILK) for tt in range(2) for c in range(2)]
        o2 += [(kk, tt, c) for tt in range(2) for c in range(2) for kk in range(28-TAILK, 28)]
        PACE = self.opt('pace2', 18)
        wq = []; twait = 0; await_ = 0; X2M = self.opt('x2m', 50); used = {}
        GF = 112; vRr2 = 15; OO = [16, 4]
        def redw(q_): return [f'ds_write_b128 v{vRw}, {a2q(q_, i)} offset:{2*RQ*(q_>>1)+(4*(q_&1)+i)*RSA}' for i in range(4)]
        RDS = [AC[1], 128]
        r_id = {}
        def redr(tt):
            for hs in range(2):
                for w in range(4):
                    e(f'ds_read_b128 {vr(RDS[tt]+16*hs+4*w,4)}, v{vRr if w<2 else vRr2} offset:{(4*(w&1)+2*tt+hs)*RQ}')
                r_id[(tt, hs)] = self.nlg
        def redm(tt):
            out = []
            for hs in range(2):
                r = RDS[tt]+16*hs
                out.append(('w', (tt, hs)))
                for hh in range(2):
                    out += [f'v_pk_add_f32 {vr(r+2*hh,2)}, {vr(r+2*hh,2)}, {vr(r+4+2*hh,2)}', f'v_pk_add_f32 {vr(r+8+2*hh,2)}, {vr(r+8+2*hh,2)}, {vr(r+12+2*hh,2)}']
                out += [f'v_pk_add_f32 {vr(r+2*hh,2)}, {vr(r+2*hh,2)}, {vr(r+8+2*hh,2)}' for hh in range(2)]
                out += [f'v_pk_fma_f32 {vr(r+2*hh,2)}, {vr(r+2*hh,2)}, {vr(GF+4*hs+2*hh,2)}, {vr(XF2+8*tt+4*hs+2*hh,2)}' for hh in range(2)]
                out += [f'v_cvt_pk_bf16_f32 v{OO[tt]+2*hs+hh}, v{r+2*hh}, v{r+2*hh+1}' for hh in range(2)]
            out.append(f'global_store_dwordx4 v{vX2}, {vr(OO[tt],4)}, {sp(pOut) if tt==0 else sp(sT+2)} {self.opt("outflag","sc1").replace("_"," ").replace("none","")}')
            return out
        def emit_m(x):
            if isinstance(x, tuple): e(f's_waitcnt {self.wlg(r_id[x[1]])}')
            else: e(x)
        fill.append(f'v_add_u32 v{vRr2}, {8*RQ}, v{vRr}')
        fill2.append(f's_mov_b32 s{sGk}, {fbits(2.0**64)}')
        states = lambda pos: sum(hazard.I(l).states() for l in p.text[pos:])
        wdone = 0; barA = False; aq = aq0; achk = 8*NF; anext = achk + (CG if aq0 else 0)
        firstm = {}
        for m_, (kk, tt, c) in enumerate(o2): firstm.setdefault(lorder.index((kk, tt)), m_)
        for m_, (kk, tt, c) in enumerate(o2):
            f = lorder.index((kk, tt)); T = korder[kk]; q_ = 2*tt + c
            if m_ in (0, 28, 56, 84): self.stamp(f'_h{m_//2}')
            if m_ == X2M - 20 and not NF: id_f4 = e(f4_load)
            if m_ == X2M:
                assert checked
                if not NF:
                    while len(aq) > 1: e(aq.pop(0))
                    if aq: aq.pop(0)(); achk = anext
                    self.check(f4_load, [vPo4], id_f4)
                id_x2l = e(f's_mov_b32 s0, {X2}\nbuffer_load_dwordx4 {vr(X2R,4)}, v{vX2}, {SRD}, s0 offen sc1\ns_mov_b32 s0, {X2+32768}\nbuffer_load_dwordx4 {vr(X2R+4,4)}, v{vX2}, {SRD}, s0 offen sc1')
            if m_ == 76:
                e(f's_waitcnt {self.wvm(id_x2l)}'); fill += fill2
            while len(a_id) <= f:
                g = min(i for i in range(len(groups)) if gend[i] > len(a_id))
                while groups[g][-1] not in st_id:
                    if not gq: gq += g6; g6 = []
                    x, b_ = gq.pop(0); emit_g(x, b_, n)
                while checked <= g: progress(n, force=g)
                assert acan()
                aload()
            ahead = max(lorder.index((k2, t2)) for k2, t2, _ in o2[m_:m_+2*self.opt('amin', 12)])
            for _ in range(8 if len(a_id) <= f+2 else 2):
                if acan() and len(a_id) <= ahead: aload(); nextv[0] = 10*n + PACE
            while any(T_ == T for _, T_, _ in trq): tr_pop()
            if m_ == 64:
                while trq: tr_pop()
                e(f's_waitcnt {self.wlg(g_last[6])}\ns_barrier'); twait = g_last[6]
            while achk < f + 1:
                if not aq:
                    while len(a_id) < anext + CG: aload()
                    e(f's_waitcnt {self.wvm(a_id[anext+CG-1])}'); b_, br_ = acheck(anext); aq = b_ + [br_]; anext += CG
                while len(aq) > 1: e(aq.pop(0))
                aq.pop(0)(); achk = anext
            w_ = ''
            if f < 8*NF and a_id[f] > await_:
                f2_ = min(f | 1, len(a_id)-1); w_ = self.wvm(a_id[f2_]); await_ = a_id[f2_]
            if t_id.get(T, 0) > twait: w_ += ' ' + self.wlg(t_id[T]); twait = t_id[T]
            if w_: e(f's_waitcnt {w_}')
            e(f'v_mfma_f32_32x32x16_bf16 {A2[q_]}, {ar(8*T+4*c,4)}, {areg(f)}, {"0" if kk==0 else A2[q_]}')
            n += 1
            used[f] = used.get(f, 0) + 1
            if kk == 27 and q_ < 3: wq.append((len(p.text), redw(q_)))
            if not progress(n): pump(n)
            if used[f] == 2: consumed.add(f)
            if len(aq) == 1: aq.pop(0)(); achk = anext
            elif not aq and anext < 56 and len(a_id) >= anext + CG and firstm[anext] <= m_ + self.opt('clead', 6):
                e(f's_waitcnt {self.wvm(a_id[anext+CG-1])}'); b_, br_ = acheck(anext); aq = b_ + [br_]; anext += CG
            for _ in range(self.opt('crate', 3)):
                if len(aq) > 1: e(aq.pop(0))
            if g6 and states(g6pos) >= 12: gq += g6; g6 = []
            if gq:
                for _ in range(self.opt('grate2', 5)):
                    if gq:
                        x, b_ = gq.pop(0); emit_g(x, b_, n)
                if tr_ready(8): tr_pop()
                continue
            if wq:
                if states(wq[0][0]) < 12: e(f's_nop {min(4, 11-states(wq[0][0]))}')
                if states(wq[0][0]) >= 12:
                    e(wq[0][1].pop(0))
                    if not wq[0][1]: wq.pop(0); wdone += 1; wlast = self.nlg
                continue
            if wdone >= 2 and not barA and self.opt('tsplit', 1):
                e(f's_waitcnt {self.wlg(wlast)}\ns_barrier\nds_read_b128 {vr(GF+8,4)}, v{vG}'); g_id = self.nlg; barA = True
                redr(0); continue
            for _ in range(self.opt('trate', 2) - c):
                if tr_ready(8): tr_pop()
            for _ in range(2):
                if fill: e(fill.pop(0))
        assert not fill and not trq and not gq and not g6
        self.stamp('g2_mfma')
        lastpos = len(p.text)
        for _, ws_ in wq:
            for x in ws_: e(x)
        if not barA and self.opt('tsplit', 1):
            e(f's_waitcnt lgkmcnt(0)\ns_barrier\nds_read_b128 {vr(GF+8,4)}, v{vG}'); g_id = self.nlg; barA = True
            redr(0)
        gun = [x for j in range(4) for x in self.unpack(GF+2*j, GF+8+j)]
        gun += [f'v_pk_mul_f32 {vr(GF+2*j,2)}, {vr(GF+2*j,2)}, {sp(sGk)} op_sel_hi:[1,0]' for j in range(4)]
        if barA:
            for x in redw(3): e(x)
            wlast = self.nlg
            e(f's_waitcnt {self.wlg(g_id)}')
            for x in gun + redm(0): emit_m(x)
            e(f's_waitcnt lgkmcnt(0)\ns_barrier')
            redr(1)
            for x in redm(1): emit_m(x)
        else:
            for x in redw(3): e(x)
            e(f's_waitcnt lgkmcnt(0)\ns_barrier\nds_read_b128 {vr(GF+8,4)}, v{vG}'); g_id = self.nlg
            redr(0); redr(1)
            e(f's_waitcnt {self.wlg(g_id)}')
            for x in gun + redm(0) + redm(1): emit_m(x)
        self.stamp('end')
        e(f'''
        s_or_b32 s0, s{sL}, s{sW}
        s_cbranch_scc1 L_noep''')
        e(self.flag_text(vF, 0))
        e('L_noep:')
        if self.stamps:
            e(f'''
            s_lshl2_add_u32 s{sT}, s{sL}, s{sW}
            s_lshl_b32 s{sT}, s{sT}, 7
            s_add_u32 s{sT}, s{sT}, {STMP}
            v_mov_b32 v4, 0
            s_mov_b64 exec, 1''')
            for i in range(self.ns):
                e(f'v_mov_b32 v5, s{sStamp+i}\nbuffer_store_dword v5, v4, {SRD}, s{sT} offen offset:{4*i}')
            e(f'v_mov_b32 v5, s{sCnt}\nbuffer_store_dword v5, v4, {SRD}, s{sT} offen offset:124')
        if self.o.get('probe') is not None:
            kk = self.stamp_names.index(self.o['probe'])
            e(f'''
            s_add_u32 s{sT}, s{sStamp+kk}, 5000
            L_spin:
            s_sleep 1
            s_memrealtime s[22:23]
            s_waitcnt lgkmcnt(0)
            s_sub_u32 s{sT+1}, s22, s{sT}
            s_cmp_lt_i32 s{sT+1}, 0
            s_cbranch_scc1 L_spin''')
        e('s_endpgm')
        for x in self.tail: e(x)
        e('L_end:\ns_endpgm')
        p.end(k, vgpr=256, agpr=256, sgpr=102)
        p.text, added = hazard.fix(p.text, verbose=self.o.get('verbose'))
        hazard.check_global_addresses(p.text, sp(sM+4))
        if self.opt('align', 6):
            p.text, nw, nn = align.fix(p.text, self.opt('align', 6))
            if self.o.get('verbose'): print('align: widened', nw, 'nops', nn)
        p.text += ['.p2align 8', 'L_tab:'] + ['.long ' + ', '.join(hex(v) for v in self.table[i:i+16]) for i in range(0, len(self.table), 16)]
        return added

if __name__ == '__main__':
    ap = argparse.ArgumentParser()
    ap.add_argument('out'); ap.add_argument('--stamps', action='store_true'); ap.add_argument('-v', action='store_true')
    ap.add_argument('--probe', default=None); ap.add_argument('-o', action='append', default=[])
    a = ap.parse_args()
    opts = dict(verbose=a.v, probe=a.probe)
    for kv in a.o:
        kk, vv = kv.split('='); opts[kk] = int(vv) if vv.lstrip('-').isdigit() else vv
    g = G(a.stamps or a.probe is not None, opts)
    added = g.build()
    g.p.dump(a.out, single=True)
    n = sum(1 for l in g.p.text if l.startswith('  '))
    print(a.out, 'instructions', n, 'nops added', added, 'stamps', g.stamp_names)
    if a.stamps: open(a.out + '.names', 'w').write(' '.join(g.stamp_names))
```

```python
import sys, struct, argparse
from asmlib import Prog, NAME
import hazard, align

def fbits(x): return '0x%08x' % struct.unpack('<I', struct.pack('<f', x))[0]

F1   = 0x0C0000
F2   = 0x020000
F3   = 0x040000
F3S  = 0x020000
MODP = 0x0E0000
MX   = 0x008000
TAGZ = 0x40004000
HBLK = 8448
TAGM = 0x70007000
XH   = 0x160000
ZY   = 0x380000
H2   = 0x5A0000
X2   = 0x7A0000
WGU  = 0x9A0000
ACT  = 0xD20000
STMP = 0x3000000
WS_BYTES = 0x10000000
S4   = 131072
L_U  = S4; USZ = 4608
L_P  = S4 + 2*USZ; PSZ = 4288
L_ZB = L_P + 2*PSZ
L_JK = L_ZB + 1024
L_BD = L_P + 12288
L_SB = L_BD + 1024
L_Y  = 98304
L_MB = 98304
RST  = 544
L_RC = 0; RCSZ = 54*RST
L_RED = 65536; RSA = 576; RQ = 8*RSA
L_GB = L_RED + 16*RQ
LDS_BYTES = 163840
pX,pAre,pAim,pBre,pBim,pCre,pCim,pLdt = 4,6,8,10,12,14,16,18
pD,pWg,pWu,pWd,pC,pWm,pOut,pWs = 20,24,26,28,30,32,34,38
SRD='s[40:43]'
sL,sW,sTag,sMask,sCnt = 44,45,46,47,48
sLo,sHi = 49,50
sOnes = 51
sMt,sNt,sTb,sDt = 52,53,54,55
sBad = 56
sT = 58
sM = 68
sDsk = 80
sStamp = 82
sDmaL, sDmaG, sDmaT = 4, 5, 6
sActG, sActT = 9, 10
sActS = 12
sF3o, sF3p = 14, 15
sXg = 16
sCh, sHb = 17, 18
sE1 = 4
sZs = 10
sTm = 25
sWs, sF1o = 14, 24
def sp(i): return f's[{i}:{i+1}]'
def vr(i, n): return f'v[{i}:{i+n-1}]'
def ar(i, n): return f'a[{i}:{i+n-1}]'

class G:
    def __init__(self, stamps=False, opts=None):
        self.p = Prog(); self.stamps = stamps; self.ns = 0; self.o = opts or {}
        self.stamp_names = []; self.nvm = 0; self.nlg = 0; self.tail = []; self.maybe = False; self.m0 = None
    def opt(self, k, d): return self.o.get(k, d)
    def e(self, s):
        for line in s.split('\n'):
            l = line.strip()
            if not l: continue
            if l.startswith(('buffer_', 'global_')) and not self.maybe: self.nvm += 1
            if l.startswith('ds_') and not self.maybe: self.nlg += 1
            self.p.e(l)
        return self.nvm
    def wvm(self, i): return f'vmcnt({min(62, self.nvm - i)})'
    def wlg(self, i): return f'lgkmcnt({min(14, self.nlg - i)})'
    def stamp(self, name):
        if self.opt('jitter', 0) and name in ('x_arrived','_wm','kgen2','u_ready','_c54','conv','z_ok','_ln2bar','f2_ok','_g96','_g160','g1_mfma','_h14','_h42'):
            L = self.p.label('jit'); self.jn = getattr(self, 'jn', 0) + 1
            self.e(f'''s_lshl2_add_u32 s22, s2, s{sW}
            s_add_u32 s22, s22, {self.jn*977 + self.opt('jitter', 0)*131}
            s_mul_i32 s22, s22, 0x9E3779B1
            s_lshr_b32 s23, s22, 15
            s_xor_b32 s22, s22, s23
            s_mul_i32 s22, s22, 0x85EBCA6B
            s_lshr_b32 s22, s22, 27
            s_cmp_lg_u32 s22, 0
            s_cbranch_scc1 {L}
            s_sleep 100
            {L}:''')
        if not self.stamps: return
        if self.o.get('probe') is not None and name != self.o['probe']: return
        if self.o.get('only') and not (name == 'start' or name.startswith(tuple(self.o['only'].split(',')))): return
        if not self.o.get('only') and self.o.get('probe') is None and name.startswith('_'): return
        assert self.ns < 20
        self.e(f'{"s_memtime" if self.opt("cyc", 0) else "s_memrealtime"} s[22:23]\ns_waitcnt lgkmcnt(0)\ns_mov_b32 s{sStamp+self.ns}, s22')
        self.ns += 1; self.stamp_names.append(name)

    def check_text(self, loads, tags, last):
        Lc = self.p.label('chk'); Lr = self.p.label('retry')
        s = f's_waitcnt {self.wvm(last)}\n{Lc}:\n'
        if len(tags) == 1:
            s += f'v_cmp_ne_u32 vcc, v{tags[0]}, v2\ns_cmp_lg_u64 vcc, 0\ns_cbranch_scc1 {Lr}'
            self.tail.append(f'''{Lr}:
            s_sub_u32 s{sCnt}, s{sCnt}, 1
            s_cbranch_scc1 L_end
            {loads}
            s_waitcnt vmcnt(0)
            s_branch {Lc}''')
        else:
            s += f'v_cmp_ne_u32 {sp(sBad)}, v{tags[0]}, v2\n'
            for t in tags[1:]: s += f'v_cmp_ne_u32 vcc, v{t}, v2\ns_or_b64 {sp(sBad)}, {sp(sBad)}, vcc\n'
            s += f's_cbranch_scc1 {Lr}'
            self.tail.append(f'''{Lr}:
            s_sub_u32 s{sCnt}, s{sCnt}, 1
            s_cbranch_scc1 L_end
            s_mov_b64 exec, {sp(sBad)}
            {loads}
            s_mov_b64 exec, -1
            s_waitcnt vmcnt(0)
            s_branch {Lc}''')
        return s
    def check(self, loads, tags, last): self.e(self.check_text(loads, tags, last))

    def flag_text(self, vaddr, soff):
        return f's_mov_b32 exec_hi, 0\nbuffer_store_dword v2, v{vaddr}, {SRD}, s{soff} offen sc1\ns_mov_b32 exec_hi, -1'

    def stats_partial(self, src, t, vSBw, fill=()):
        a,b,c,d = t,t+1,t+2,t+3
        for m in range(4):
            acc = lambda r: '0' if m == 0 else f'v{r}'
            self.e(f'''v_dot2_f32_bf16 v{a}, v{src+m}, s{sOnes}, {acc(a)}
            v_dot2_f32_bf16 v{b}, v{src+4+m}, s{sOnes}, {acc(b)}
            v_dot2_f32_bf16 v{c}, v{src+m}, v{src+m}, {acc(c)}
            v_dot2_f32_bf16 v{d}, v{src+4+m}, v{src+4+m}, {acc(d)}''')
        self.reduce4(a,b,c,d, fill)
        self.e(f'ds_write_b32 v{vSBw}, v{a}')
    def reduce4(self, a,b,c,d, fill=()):
        fill = list(fill)
        def f(n):
            for _ in range(n):
                if fill: self.e(fill.pop(0))
        f(2); self.e(f'v_permlane32_swap_b32 v{a}, v{b}\nv_permlane32_swap_b32 v{c}, v{d}\nv_add_f32 v{a}, v{a}, v{b}\nv_add_f32 v{c}, v{c}, v{d}')
        f(2); self.e(f'v_permlane16_swap_b32 v{a}, v{c}\nv_add_f32 v{a}, v{a}, v{c}')
        f(2); self.e(f'v_add_f32_dpp v{a}, v{a}, v{a} row_ror:4 row_mask:0xf bank_mask:0xf')
        f(2); self.e(f'v_add_f32_dpp v{a}, v{a}, v{a} row_ror:8 row_mask:0xf bank_mask:0xf')
        self.rest = fill
    def stats_read(self, t, vSBr):
        for w in range(4): self.e(f'ds_read_b128 {vr(t+4*w,4)}, v{vSBr} offset:{16*w}')
        return self.nlg
    def stats_finish(self, t, vInv, scale=None, pre=None):
        self.e(f'''
        v_pk_add_f32 {vr(t,2)}, {vr(t,2)}, {vr(t+4,2)}
        v_pk_add_f32 {vr(t+2,2)}, {vr(t+2,2)}, {vr(t+6,2)}
        v_pk_add_f32 {vr(t+8,2)}, {vr(t+8,2)}, {vr(t+12,2)}
        v_pk_add_f32 {vr(t+10,2)}, {vr(t+10,2)}, {vr(t+14,2)}
        v_pk_add_f32 {vr(t,2)}, {vr(t,2)}, {vr(t+8,2)}
        v_pk_add_f32 {vr(t+2,2)}, {vr(t+2,2)}, {vr(t+10,2)}
        v_pk_mul_f32 {vr(t+4,2)}, {vr(t,2)}, {vr(vInv,2)} op_sel_hi:[1,0]
        v_pk_mul_f32 {vr(t+6,2)}, {vr(t+2,2)}, {vr(vInv,2)} op_sel_hi:[1,0]
        v_fma_f32 v{t+5}, -v{t+4}, v{t+4}, v{t+5}
        v_fma_f32 v{t+7}, -v{t+6}, v{t+6}, v{t+7}
        v_max_f32 v{t+5}, 0, v{t+5}
        v_max_f32 v{t+7}, 0, v{t+7}
        {f'v_fmamk_f32 v{t+5}, v{t+5}, {fbits(pre)}, v{vInv+1}' if pre else f'v_add_f32 v{t+5}, v{vInv+1}, v{t+5}'}
        {f'v_fmamk_f32 v{t+7}, v{t+7}, {fbits(pre)}, v{vInv+1}' if pre else f'v_add_f32 v{t+7}, v{vInv+1}, v{t+7}'}
        v_rsq_f32 v{t}, v{t+5}
        v_rsq_f32 v{t+2}, v{t+7}''')
        if scale: self.e(f'v_mul_f32 v{t}, {fbits(scale)}, v{t}\nv_mul_f32 v{t+2}, {fbits(scale)}, v{t+2}')
        self.e(f'''
        v_mul_f32 v{t+1}, -v{t+4}, v{t}
        v_mul_f32 v{t+3}, -v{t+6}, v{t+2}''')
    def cmul(self, d, a, b):
        return [f'v_pk_mul_f32 {vr(d,2)}, {vr(a,2)}, {vr(b,2)} op_sel_hi:[1,0]',
                f'v_pk_fma_f32 {vr(d,2)}, {vr(a,2)}, {vr(b,2)}, {vr(d,2)} op_sel:[1,1,0] op_sel_hi:[0,1,1] neg_lo:[1,0,0]']
    def unpack(self, d, s): return [f'v_lshlrev_b32 v{d}, 16, v{s}', f'v_and_b32 v{d+1}, s{sMask}, v{s}']

    def dma_tile(self, i, slot):
        return [(i, slot, slot*32768 + hf*4096, i*32768 + hf*4096,
                 f'buffer_load_dwordx4 v1, {SRD}, s{sDmaT} offen offset:{e_*1024} sc1 lds') for hf in range(2) for e_ in range(4)]
    def set_m0(self, off):
        if self.m0 != off: self.e(f's_add_u32 m0, s{sDmaL}, {off}'); self.m0 = off

    def build(self):
        p = self.p; e = self.e
        k = NAME + '_kernel'
        p.add_launch(k, 256, 256, LDS_BYTES)
        p.begin(k)
        XR = 4; WM = 12; AB = 28; WG = 36
        vXO = 3; t = 68
        vTg = 252; vWgL = 35; vTab = 97; vPf = 255; vInv = 52; vDt = 34; vS = 54; vPolled = 123; vMBw = 79
        vSBw, vSBr, vMBr, vEM = 112, 113, 114, 115
        vRW, vKa, vKb0, vKb1 = 116, 117, 118, 119
        vWgS, vTw, vTr, vF = 124, 125, 126, 127
        vEX, vWdA, vBv, vOne = 64, 65, 66, 67
        vKw0, vKw1, vBd, vBd2 = 120, 121, 122, 123
        vPA, vPX, vQ, vUS = 56, 57, 58, 59
        vYw, vYr, vUB, vUw = 60, 61, 62, 63
        TP = 160; TB = 98304
        def consts(tid):
            w, l = tid >> 6, tid & 63; ch, hb = w >> 1, w & 1; c, q_, rp = l & 15, l >> 4, l & 3
            P = L_P + ch*PSZ; U = L_U + ch*USZ; RC = L_RC + ch*RCSZ
            lo, wd = [(3,3),(6,5),(5,7),(4,9)][w]
            x = l - 16 - lo
            band = (0x3f80 if 0 <= x < wd else 0) | (0x3f800000 if 0 <= x-1 < wd else 0)
            if c < 8: kw1 = P + 4*(608 + 16*[1,5,2,6,10,11,12,13][c] + 8*hb + 2*q_)
            elif 120 <= (tid & 127) < 125: kw1 = P + 4*((520 if c < 11 else 568) + c) - 932
            else: kw1 = L_JK
            sw = (((l >> 1) & 3) ^ q_) * 16
            full = [(tid >> 2)*HBLK + rp*16, (448*w + 16*((l>>4)&1) + 4*((l>>2)&3))*1024 + (l>>5)*64 + (l&3)*16, band, 0x3f800000 if q_ == 2 else 0]
            half = {vSBw: L_SB + rp*64 + w*16 + q_*4, vSBr: L_SB + rp*64,
              vMBr: L_MB + 4*(192*((l>>1)&1) + 2*(8*w + ((l>>2)&7)) + (l&1)), vMBw: L_MB + 32*tid,
              vRW: RC + 4*(tid & 127), vKa: RC + (16*hb + c)*RST + 16*q_,
              vKb0: RC + [0,1,2,3,4,5,6,7,8,8,9,10,10,10,11,12][c]*RST + 16*q_, vKb1: RC + [1,2,3,4,5,6,7,8,0,0,0,4,4,0,0,0][c]*RST + 16*q_,
              vF: 4*l, vTr: w*8192 + (l>>5)*256 + ((l>>2)&3)*64 + ((l>>4)&1)*32 + (l&3)*8,
              vEM: (l >> 2)*2048 + rp*16, vWgS: q_*512 + c*16,
              vKw0: P + 64 + 512*hb + 4*((c&7) + 256*(c>>3) + 32*q_), vKw1: kw1,
              vBd: L_BD + 4*(26 + c - 8*q_), vBd2: L_BD + 4*(26 + c - 8*q_) + 256*hb,
              vPA: P + 512*hb + 4*(26 + c - 8*q_), vPX: (P + 2048 if hb == 0 else L_ZB) + 4*(26 + c - 8*q_),
              vQ: P + 4*(608 + 12 + c - 4*q_) + 928*hb, vUS: U + 32*c + 16*q_ + 480 - 16*hb,
              vYw: L_Y + w*8192 + c*64 + sw, vYr: L_Y + (tid >> 2)*64 + (((rp >> 1) ^ ((tid >> 3) & 3))*16) + (rp & 1)*8, vUB: U + 32*c + 16*q_ + 288 - 256*hb, vUw: L_U + 512 + 4*tid}
            return full, half
        hregs = list(consts(0)[1]); assert len(hregs) == 24
        hbase = {r: (TB if consts(0)[1][r] >= TB else 0) for r in hregs}
        def trow(tid):
            full, half = consts(tid)
            h = [half[r] - hbase[r] for r in hregs]; assert all(0 <= v < 65536 for v in h)
            return [h[2*i] | h[2*i+1] << 16 for i in range(12)] + full
        self.table = [v for qd in range(4) for tid in range(256) for v in trow(tid)[4*qd:4*qd+4]]
        def tunpack():
            out = []
            for i, r in enumerate(hregs):
                b_ = f's{sT+9}' if hbase[r] else '0'
                out.append(f'v_add_u32_sdwa v{r}, {b_}, v{TP+(i>>1)} dst_sel:DWORD dst_unused:UNUSED_PAD src0_sel:DWORD src1_sel:WORD_{i&1}')
            return out
        MAP2 = self.opt('map2', 84)
        NF = self.opt('nf', 0)
        groups = ([tuple(range(NF))] if NF else []) + [(i,) for i in range(NF, 7)]
        korder = [7*pp + i for g in groups for pp in range(4) for i in g]
        wslot = [int(c) for c in str(self.opt('wslot', 'x0123232'))[1:]]
        wdq = [(Gl, jh, c) for Gl in range(7) for jh in range(2) for c in range(4)]
        trq = [(Gl, 4*Gl+c, f'ds_read_b64_tr_b16 {ar(8*(4*Gl+c)+4*cc+2*jh,2)}, v{vTw if wslot[Gl] >= 2 else vTr} offset:{(wslot[Gl]&1)*32768 + jh*4096 + c*1024 + cc*512}')
               for Gl in range(7) for c in range(4) for cc in range(2) for jh in range(2)]
        wd_id = {}; t_id = {}; g_last = {}; wopen = [-1]; trw = [0]; vW = [vWdA]; freed = set()
        def tr_ready(lag): return trq and trq[0][0] in wd_id and wd_id[trq[0][0]] <= self.nvm - lag
        def tr_pop():
            Gl, T, x = trq.pop(0)
            while Gl not in wd_id: wd_one()
            if wd_id[Gl] > trw[0]: trw[0] = wd_id[Gl]; e(f's_waitcnt {self.wvm(trw[0])}')
            e(x); t_id[T] = g_last[Gl] = self.nlg
        def free_slot(sl, upto):
            for Gl in range(upto):
                if wslot[Gl] == sl and Gl not in freed:
                    while trq and trq[0][0] <= Gl: tr_pop()
                    e(f's_waitcnt {self.wlg(g_last[Gl])}'); freed.add(Gl)
        def wd_can():
            if not wdq or wdq[0][0] > wopen[0]: return False
            Gl = wdq[0][0]
            return all(G2 in freed or (G2 in g_last and (not trq or trq[0][0] > G2)) for G2 in range(Gl) if wslot[G2] == wslot[Gl])
        def wd_one():
            Gl, jh, c = wdq.pop(0); assert Gl <= wopen[0], Gl
            free_slot(wslot[Gl], Gl)
            self.set_m0(wslot[Gl]*32768 + jh*4096)
            if c == 0 and (Gl or jh): e(f'v_add_u32 v{vW[0]}, 32768, v{vW[0]}')
            i_ = e(f'global_load_lds_dwordx4 v{vW[0]}, {sp(pWd)} offset:{1024*c}')
            if c == 3 and jh == 1: wd_id[Gl] = i_
        def wd_issue(n):
            for _ in range(n):
                if wd_can(): wd_one()
        dma_id = {}; gcur = [None]
        def tile_one(q_):
            i, sl, off, go, x = q_.pop(0)
            free_slot(sl, 4 if i <= 4 else 0)
            self.set_m0(off)
            if gcur[0] != go: e(f's_add_u32 s{sDmaT}, s{sDmaG}, {go}'); gcur[0] = go
            dma_id[i] = e(x)
        def tr_do(n):
            for _ in range(4*n):
                if tr_ready(self.opt('trlag', 6)): tr_pop()
        if self.stamps and self.o.get('probe') is None:
            e(f'{"s_memtime" if self.opt("cyc", 0) else "s_memrealtime"} s[{sStamp}:{sStamp+1}]'); self.ns += 1; self.stamp_names.append('start')
        XF1 = self.opt('xfirst', 0)
        if XF1:
            e(f"""
            s_load_dwordx2 {sp(sBad)}, s[0:1], 0
            s_cmp_ge_u32 s2, 256
            s_cbranch_scc1 L_end
            s_lshr_b32 s3, s2, 3
            s_and_b32 s{sT+1}, s2, 7
            s_lshl_b32 s{sL}, s{sT+1}, 5
            s_or_b32 s{sL}, s{sL}, s3
            v_and_b32 v{t+2}, 3, v0
            v_and_b32 v{t+3}, 0xfc, v0
            s_lshl_b32 s{sT+3}, s{sL}, 13
            v_lshl_add_u32 v{t+3}, v{t+3}, 2, s{sT+3}
            v_lshl_add_u32 v{vXO}, v{t+2}, 11, v{t+3}
            s_waitcnt lgkmcnt(0)
            global_load_dwordx4 {vr(XR,4)}, v{vXO}, {sp(sBad)}""")
            id_x = e(f'global_load_dwordx4 {vr(XR+4,4)}, v{vXO}, {sp(sBad)} offset:1024')
        e(f"""
        s_load_dwordx16 s[4:19], s[0:1], 0
        s_load_dwordx16 s[20:35], s[0:1], 64
        s_load_dwordx4 s[36:39], s[0:1], 128
        s_cmp_ge_u32 s2, 256
        s_cbranch_scc1 L_end
        v_lshrrev_b32 v{t}, 6, v0
        v_and_b32 v{t+1}, 63, v0
        v_readfirstlane_b32 s{sW}, v{t}
        s_lshr_b32 s3, s2, 3
        s_getpc_b64 {sp(sM)}
        L_pc:
        s_lshl2_add_u32 s{sT}, s3, s{sW}
        s_lshl_b32 s{sM+2}, s{sT}, 8
        s_min_u32 s{sM+2}, s{sM+2}, L_end-L_pc-256
        v_lshl_add_u32 v{t+7}, v{t+1}, 2, s{sM+2}
        global_load_dword v123, v{t+7}, {sp(sM)}
        s_add_u32 s{sM+4}, s{sM}, L_tab-L_pc+4096
        s_addc_u32 s{sM+5}, s{sM+1}, 0
        v_lshlrev_b32 v{vTab}, 4, v0""")
        id_tab = e(f"""
        global_load_dwordx4 {vr(TP,4)}, v{vTab}, {sp(sM+4)} offset:-4096
        global_load_dwordx4 {vr(TP+4,4)}, v{vTab}, {sp(sM+4)}
        v_add_u32 v{vTab}, 8192, v{vTab}
        global_load_dwordx4 {vr(TP+8,4)}, v{vTab}, {sp(sM+4)} offset:-4096
        global_load_dwordx4 {vr(vEX,4)}, v{vTab}, {sp(sM+4)}""")
        e(f"""
        s_and_b32 s{sT+1}, s2, 7
        s_lshl_b32 s{sL}, s{sT+1}, 5
        s_or_b32 s{sL}, s{sL}, s3
        v_lshlrev_b32 v1, 4, v{t+1}
        v_and_b32 v{t+2}, 3, v0
        v_and_b32 v{t+3}, 0xfc, v0
        s_lshl_b32 s{sT+3}, s{sL}, 13
        v_lshl_add_u32 v{t+3}, v{t+3}, 2, s{sT+3}
        v_lshl_add_u32 v{vXO}, v{t+2}, 11, v{t+3}
        v_lshrrev_b32 v{t+4}, 3, v{t+1}
        v_min_u32 v{t+4}, 5, v{t+4}
        v_and_b32 v{t+5}, 0x70, v1
        v_lshl_add_u32 v{t+4}, v{t+4}, 10, v{t+5}
        s_lshl_b32 s{sT+2}, s{sT}, 3
        s_mul_i32 s{sT}, s{sT}, {4*6144}
        s_lshl_b32 s{sT+1}, s{sT+1}, 7
        s_add_u32 s{sT}, s{sT}, s{sT+1}
        s_add_u32 s{sT}, s{sT}, 3072
        v_add_u32 v{t+4}, s{sT}, v{t+4}
        v_add_u32 v{t+5}, 12288, v{t+4}
        s_lshl_b32 s{sT}, s{sL}, 9
        v_lshl_add_u32 v{t+6}, v0, 1, s{sT}
        s_lshl_b32 s{sT+3}, s{sL}, 2
        """)
        for i in range(6): e(f'v_mov_b32 v{AB+i}, 0')
        e('s_waitcnt lgkmcnt(0)')
        self.stamp('karg')
        e(f"""
        s_load_dwordx2 {sp(sT+4)}, {sp(pC)}, s{sT+2}""")
        if not XF1: id_x = e(f'global_load_dwordx4 {vr(XR,4)}, v{vXO}, {sp(pX)}\nglobal_load_dwordx4 {vr(XR+4,4)}, v{vXO}, {sp(pX)} offset:1024')
        id_ep = e(f"""
        s_load_dword s{sT+6}, {sp(pLdt)}, s{sT+3}
        s_load_dword s{sDsk+1}, {sp(pD)}, s{sT+3}
        global_load_dword v2, v{AB}, {sp(pWs)} sc1""")
        for i, ptr in enumerate([pAre,pAim,pBre,pBim,pCre,pCim]):
            id_ab = e(f'global_load_short_d16_hi v{AB+i}, v{t+6}, {sp(ptr)}')
        idm = [0]
        def wm_issue(k_):
            if self.opt('wmat', 1) == k_: idm[0] = e(f"""
            global_load_dwordx4 {vr(WM,4)}, v{t+4}, {sp(pWm)} offset:-3072
            global_load_dwordx4 {vr(WM+4,4)}, v{t+4}, {sp(pWm)} offset:3072
            global_load_dwordx4 {vr(WM+8,4)}, v{t+5}, {sp(pWm)} offset:-3072
            global_load_dwordx4 {vr(WM+12,4)}, v{t+5}, {sp(pWm)} offset:3072""")
        wm_issue(0)
        GR = 144
        u = 92
        e(f"""
        s_mov_b32 s{sMask}, 0xffff0000
        s_mov_b32 s{sLo}, 0x05040100
        s_mov_b32 s{sHi}, 0x07060302
        s_mov_b32 s{sOnes}, 0x3f803f80
        v_mov_b32 v{t+12}, {fbits(-1.4426950408889634)}
        s_add_u32 s{sT+7}, s{sT+3}, s{sW}
        s_min_u32 s{sT}, s{sT+7}, 895
        v_and_b32 v{t+8}, 15, v{t+1}
        s_lshl_b32 s{sT+1}, s{sT}, 11
        v_lshl_add_u32 v{vPf}, v{t+8}, 7, s{sT+1}
        s_mov_b64 s[0:1], {sp(pWd)}
        s_bitcmp1_b32 s{sT}, 0
        s_cselect_b32 s{pWu}, s{pWu}, s{pWg}
        s_cselect_b32 s{pWu+1}, s{pWu+1}, s{pWg+1}
        s_cselect_b32 s{sWs}, 256, 0
        s_bfe_u32 s{sT+1}, s{sT}, 0x40001
        s_lshr_b32 s{sT+2}, s{sT}, 5
        s_mul_i32 s{sT+8}, s{sT+1}, {32*3584}
        s_lshl_b32 s{sT+3}, s{sT+2}, 7
        s_add_u32 s{sT+8}, s{sT+8}, s{sT+3}
        v_lshrrev_b32 v{t+7}, 4, v{t+1}
        v_mul_u32_u24 v{t+7}, {8*3584}, v{t+7}
        v_lshl_add_u32 v{t+10}, v{t+8}, 3, s{sT+8}
        v_add_u32 v{vWgL}, v{t+10}, v{t+7}
        s_lshl_b32 s{sT+2}, s{sT+2}, 17
        s_lshl_b32 s{sT+1}, s{sT+1}, 11
        s_add_u32 s{sT+2}, s{sT+2}, s{sT+1}
        s_add_u32 s{sWs}, s{sWs}, s{sT+2}
        s_add_u32 s{sWs}, s{sWs}, {WGU}
        s_cmp_ge_u32 s{sL}, 224
        s_cselect_b32 s{sWs}, {WS_BYTES}, s{sWs}
        s_lshl_b32 s{sF1o}, s{sT+7}, 7
        s_add_u32 s{sF1o}, s{sF1o}, {F1}
        v_mov_b32 v{u}, 0
        v_mov_b32 v{u+1}, 0
        v_mov_b32 v{u+2}, 0
        v_mov_b32 v{u+3}, 0
        v_lshlrev_b32 v{u+4}, 4, v0
        v_add_u32 v{u+4}, {L_P}, v{u+4}
        s_lshr_b32 s{sCh}, s{sW}, 1
        s_mul_i32 s{sT}, s{sCh}, {USZ-512}
        s_add_u32 s{sT}, s{sT}, {L_U}
        v_lshl_add_u32 v{t+9}, v0, 2, s{sT}
        s_mov_b32 s{sT+9}, {TB}
        """)
        wm_issue(1)
        e(f"""
        ds_write_b128 v{u+4}, {vr(u,4)}
        ds_write_b128 v{u+4}, {vr(u,4)} offset:4096
        ds_write_b128 v{u+4}, {vr(u,4)} offset:8192
        ds_write_b32 v{t+9}, v{u}
        """)
        e(f"""
        s_mov_b32 s40, s{pWs}
        s_mov_b32 s41, s{pWs+1}
        s_mov_b32 s42, {WS_BYTES}
        s_mov_b32 s43, 0x20000
        s_mov_b32 s{sCnt}, 40000
        v_mov_b32 v{vInv}, {fbits(1/512)}
        v_mov_b32 v{vInv+1}, {fbits(1e-5)}
        s_mul_i32 s{sT}, s{sL}, {HBLK}
        s_lshl_b32 s{sT+1}, s{sW}, 11
        s_add_u32 s{sT+1}, s{sT}, s{sT+1}
        s_add_u32 s{sT+1}, s{sT+1}, {XH}
        s_lshl_b32 s{sT+2}, s{sT+7}, 9
        s_add_u32 s{sT+2}, s{sT+2}, {MODP}
        s_mov_b32 s{sTag}, 1664525
        s_lshl_b32 s{sT+3}, s{sW}, 10
        s_add_u32 s{sT}, s{sT}, s{sT+3}
        s_add_u32 s{sZs}, s{sT}, {ZY}
        s_add_u32 s{sZs+1}, s{sT}, {ZY+4096}
        s_lshl_b32 s{sZs+3}, s{sL}, 4
        s_add_u32 s{sZs+3}, s{sZs+3}, {MX}
        s_cmp_eq_u32 s{sW}, 0
        s_cselect_b32 s{sZs+2}, s{sZs+3}, {WS_BYTES}
        s_lshr_b32 s{sT}, s{sL}, 6
        s_bfe_u32 s{sT+3}, s{sL}, 0x10001
        s_lshl1_add_u32 s{sT}, s{sT}, s{sT+3}
        s_bfe_u32 s{sT+3}, s{sL}, 0x40002
        s_lshl4_add_u32 s{sT}, s{sT}, s{sT+3}
        s_and_b32 s{sT+3}, s{sL}, 1
        s_lshl3_add_u32 s{sT}, s{sT}, s{sT+3}
        s_lshl_b32 s{sT}, s{sT}, 3
        s_add_u32 s{sE1}, s{sT}, {XH}
        s_add_u32 s{sE1+1}, s{sT}, {XH+64*HBLK}
        s_add_u32 s{sE1+2}, s{sT}, {XH+128*HBLK}
        s_add_u32 s{sE1+3}, s{sT}, {XH+192*HBLK}
        s_mov_b32 s{sTm}, {TAGM}
        v_lshlrev_b32 v{vTg}, 2, v{t+2}
        v_add_u32 v{vTg+1}, 2, v{vTg}
        s_and_b32 s{sT}, s2, 7
        s_lshl_b32 s{sT}, s{sT}, 10
        s_add_u32 s{sT}, s{sT}, s3
        s_lshl_b32 s{sT}, s{sT}, 6
        s_add_u32 s{sE1+4}, s{sT}, {MODP}
        s_add_u32 s{sE1+5}, s{sT}, {MODP+32768}""")
        wgq = []; idw = [0]
        for jj in range(8):
            wgq.append(f'global_load_dwordx2 {vr(WG+2*jj,2)}, v{vWgL}, {sp(pWu)} offset:{3584*(jj&1)}' + (f'\nv_add_u32 v{vWgL}, 7168, v{vWgL}' if jj & 1 and jj < 7 else ''))
        def wg_issue(n):
            for _ in range(n):
                if wgq: idw[0] = e(wgq.pop(0))
        WGA = self.opt('wgat', 7)
        wm_issue(2); id_wm = idm[0]
        PFA = self.opt('pfat', 1)
        def wd_pf(): e(f'global_load_dword a223, v{vPf}, s[0:1]')
        if PFA == 0: wd_pf()
        PF2 = self.opt('pf2', 2); vPf2 = 35; assert PF2 in (-1, 2, 3) and WGA in (0, 1, 5, 6, 7)
        e(f"""
        s_and_b32 s{sT}, s{sT+7}, 127
        s_mul_i32 s{sT}, s{sT}, 28
        s_bfe_u32 s{sT+3}, s2, 0x10001
        s_add_u32 s{sT}, s{sT}, s{sT+3}
        s_lshl_b32 s{sT}, s{sT}, 9
        s_add_u32 s15, s{sT}, 384""" if PF2 >= 0 else '')
        def wd_pf2(k_):
            if PF2 == k_: e(f'v_min_u32 v{vPf2}, {13*16}, v1\nv_lshl_add_u32 v{vPf2}, v{vPf2}, 6, s15\nglobal_load_dword a222, v{vPf2}, s[0:1]')
        wd_pf2(0)
        TCH = self.opt('tch', 1); NZ = self.opt('tchz', 8); vTc = 157
        if TCH >= 0:
            e(f"""
            v_and_b32 v{vTc-1}, 7, v0
            v_lshl_add_u32 v{vTc-2}, v{vTc-1}, 7, s{sZs+1}
            s_sub_u32 s{sT}, s{sF1o}, {F1-F3}
            v_cmp_gt_u32 vcc, 2, v{vTc-1}
            v_lshl_add_u32 v{vTc-1}, v{vTc-1}, 19, s{sT}
            v_mov_b32 v{vTc}, s{sZs+3}
            v_cndmask_b32 v{vTc}, v{vTc}, v{vTc-1}, vcc
            v_cmp_gt_u32 vcc, {NZ*16}, v1
            s_nop 1
            v_cndmask_b32 v{vTc}, v{vTc}, v{vTc-2}, vcc""")
        if self.opt('tchh', -1) >= 0:
            e(f"""
            s_lshr_b32 s{sT}, s{sL}, 2
            s_lshl2_add_u32 s{sT}, s{sT}, s{sW}
            s_lshl_b32 s{sT}, s{sT}, 5
            s_and_b32 s{sT+3}, s{sL}, 3
            s_add_u32 s{sT}, s{sT}, s{sT+3}
            s_lshl_b32 s{sT}, s{sT}, 8
            s_add_u32 s{sT}, s{sT}, {H2}
            v_bfe_u32 v154, v0, 1, 3
            v_lshl_add_u32 v154, v154, 10, s{sT}
            v_and_b32 v153, 1, v0
            v_lshl_add_u32 v154, v153, 7, v154""")
        def touch(k_):
            if self.opt('tchh', -1) == k_: e(f'global_load_dword a220, v154, {sp(pWs)}')
            if TCH == k_: e(f'global_load_dword a221, v{vTc}, {sp(pWs)}')
        touch(0)
        if WGA == 0: wg_issue(8)
        e(f's_waitcnt {self.wvm(id_tab)}')
        for x in tunpack(): e(x)
        e(f"""
        s_bfe_u32 s{sT}, s{sL}, {0x10006 if MAP2 == 84 else 0x10002}
        s_and_b32 s{sDt}, s{sL}, 3
        s_lshl2_add_u32 s{sDt}, s{sT}, s{sDt}
        s_lshl_b32 s{sT}, s{sDt}, 7
        s_add_u32 s{pWd}, s{pWd}, s{sT}
        s_addc_u32 s{pWd+1}, s{pWd+1}, 0""")
        wm_issue(3); id_wm = idm[0]
        sc = sM + 6
        e(f"""
        s_waitcnt lgkmcnt(0)
        s_lshl_b32 s{sc}, s{sT+4}, 16
        s_and_b32 s{sc+1}, s{sT+4}, s{sMask}
        s_lshl_b32 s{sc+2}, s{sT+5}, 16
        s_and_b32 s{sc+3}, s{sT+5}, s{sMask}""")
        self.stamp('_smem')
        for i in range(4): e(f'v_mul_f32 v{t+13+i}, s{sc+i}, v{t+12}')
        e(f"""
        s_lshl_b32 s{sT+4}, s{sCh}, 4
        s_lshr_b32 s{sT+5}, s{sT+6}, s{sT+4}
        s_lshl_b32 s{sT+5}, s{sT+5}, 16""")
        for i in range(4): e(f'v_exp_f32 v{t+13+i}, v{t+13+i}')
        e(f'v_mul_f32 v{vDt}, s{sT+5}, -v{t+12}')
        for i in range(4): e(f'v_add_f32 v{t+13+i}, 1.0, v{t+13+i}')
        e(f'v_exp_f32 v{vDt}, v{vDt}')
        for i in range(4): e(f'v_rcp_f32 v{t+13+i}, v{t+13+i}')
        e(f'v_cvt_pk_bf16_f32 v{vDt}, v{vDt}, v{vDt}')
        for i in range(4): e(f'v_mul_f32 v{t+13+i}, s{sc+i}, v{t+13+i}')
        e(f"""v_lshlrev_b32 v{vDt}, 16, v{vDt}
        v_cvt_pk_bf16_f32 v{vS}, v{t+13}, v{t+14}
        v_cvt_pk_bf16_f32 v{vS+1}, v{t+15}, v{t+16}
        s_lshr_b32 s{sDsk}, s{sDsk+1}, s{sT+4}
        s_lshl_b32 s{sDsk}, s{sDsk}, 16""")
        self.stamp('_pre_x')
        e(f's_waitcnt {self.wvm(id_x)}')
        self.stamp('x_arrived')
        if PFA == 5: wd_pf()
        if WGA == 5: wg_issue(8)
        XF = 128
        unp = [x for r in range(2) for i in range(4) for x in self.unpack(XF+8*r+2*i, XR+4*r+i)]
        self.stats_partial(XR, t, vSBw, unp)
        unp = self.rest
        MA = 160; MP = 168; MR = 176; MPOS = self.opt('modpos', 1)
        def mod_partial():
            e(f's_waitcnt {self.wvm(id_wm)}')
            self.stamp('_wm')
            for h in range(2):
                for m in range(4):
                    e(f"""v_perm_b32 v{MP+2*m}, v{WM+8*h+4+m}, v{WM+8*h+m}, s{sLo}
                    v_perm_b32 v{MP+1+2*m}, v{WM+8*h+4+m}, v{WM+8*h+m}, s{sHi}""")
                for m in range(8):
                    e(f'v_dot2_f32_bf16 v{MA+m}, v{MP+m}, v{vS+h}, {"0" if h==0 else "v%d"%(MA+m)}')
            e(f'ds_write_b128 v{vMBw}, {vr(MA,4)}')
            if unp: e(unp.pop(0)); e(unp.pop(0))
            e(f'ds_write_b128 v{vMBw}, {vr(MA+4,4)} offset:16')
        def mod_read():
            if MPOS == 1: e('s_waitcnt lgkmcnt(0)\ns_barrier')
            for w in range(0, 4, 2):
                for i in range(3):
                    e(f'ds_read2st64_b32 {vr(MR+3*w+2*i,2)}, v{vMBr} offset0:{8*w+i} offset1:{8*w+8+i}')
            return self.nlg
        def mod_store(i_):
            e(f"""
            s_waitcnt {self.wlg(i_)}
            v_pk_add_f32 {vr(MR,2)}, {vr(MR,2)}, {vr(MR+6,2)}
            v_pk_add_f32 {vr(MR+2,2)}, {vr(MR+2,2)}, {vr(MR+8,2)}
            v_pk_add_f32 {vr(MR+4,2)}, {vr(MR+4,2)}, {vr(MR+10,2)}
            v_mov_b32 v{MR+15}, v2
            v_add_f32 v{MR+12}, v{MR}, v{MR+1}
            v_add_f32 v{MR+13}, v{MR+2}, v{MR+3}
            v_add_f32 v{MR+14}, v{MR+4}, v{MR+5}
            s_mov_b32 exec_hi, 0
            buffer_store_dwordx4 {vr(MR+12,4)}, v1, {SRD}, s{sT+2} offen sc1
            s_mov_b32 exec_hi, -1""")
            self.stamp('_modst')
            if PFA == 1: wd_pf()
            wd_pf2(1)
            touch(1)
            if WGA == 1: wg_issue(8)
        if MPOS == 0: mod_partial()
        e(f'v_add_u32 v{t+1}, {L_BD-L_U-512}, v{vUw}\nds_write_b32 v{t+1}, v{vBv}')
        if WGA == 7: wg_issue(8)
        e(f's_waitcnt {self.wvm(id_ep)} lgkmcnt(1)\ns_barrier')
        self.stamp('_bar0')
        ST = 84
        id_st = self.stats_read(ST, vSBr)
        if MPOS == 0: id_mr = mod_read()
        while unp: e(unp.pop(0))
        e(f'v_mul_lo_u32 v{t}, v2, s{sTag}\ns_mov_b32 s{sTag}, 0x15554000\nv_add_u32 v{t}, 1013904223, v{t}\nv_bitop3_b32 v2, v{t}, v2, s{sTag} bitop3:0x72')
        vTP = 26
        e(f"""v_alignbit_b32 v{vTg}, v2, v2, v{vTg}
        v_alignbit_b32 v{vTg+1}, v2, v2, v{vTg+1}
        v_and_b32 v{vTg}, s{sTm}, v{vTg}
        v_and_b32 v{vTg+1}, s{sTm}, v{vTg+1}""")
        e(f's_waitcnt {self.wlg(id_st)}')
        self.stats_finish(ST, vInv, 2.0**-100)
        for i in range(4):
            for r in range(2):
                x = XF+8*r+2*i
                e(f'v_pk_fma_f32 {vr(x,2)}, {vr(x,2)}, {vr(ST+2*r,2)}, {vr(ST+2*r,2)} op_sel:[0,0,1] op_sel_hi:[1,0,1]')
            for r in range(2):
                x = XF+8*r+2*i
                e(f'v_cvt_pk_bf16_f32 v{GR+2*i+r}, v{x}, v{x+1}')
            for r in range(2):
                e(f'v_bfi_b32 v{GR+2*i+r}, s{sTm}, v{vTg+r}, v{GR+2*i+r}')
            if i & 1: e(f'buffer_store_dwordx4 {vr(GR+2*i-2,4)}, v1, {SRD}, s{sT+1} offen offset:{512*(i-1)} sc1')
        self.stamp('e1_stored')
        if WGA == 6: wg_issue(8)
        if MPOS == 1: mod_partial()
        if MPOS == 0: mod_store(id_mr)
        e(f's_waitcnt {self.wvm(id_ab)}\nv_mul_f32 v68, v{vDt}, v{AB}\nv_mov_b32 v{vTP}, v{vTg}\nv_mov_b32 v{vTP+1}, v{vTg+1}')
        wst = [0]
        def wjob_ops(OB=20, nb=2):
            out = []
            for c in range(4):
                O = OB + 4*(c % nb)
                out += [f'v_perm_b32 v{O+m}, v{WG+2*(2*m+1)+(c>>1)}, v{WG+2*(2*m)+(c>>1)}, s{sHi if c&1 else sLo}' for m in range(4)]
                out += [f'v_add_u32 v{O+m}, 0x20002000, v{O+m}' for m in range(2)]
                out.append(f'buffer_store_dwordx4 {vr(O,4)}, v{vWgS}, {SRD}, s{sWs} offen sc1' + (f'\ns_add_u32 s{sWs}, s{sWs}, 32768' if c < 3 else ''))
            return out
        WJN = self.opt('wjn', -1)
        al, be = 68, 69
        Z1, Z8, Z256, Wc = 70, 72, 74, 76
        q = 78
        e(f"""
        v_mul_f32 v{be}, v{vDt}, v{AB+1}
        v_mul_f32 v{AB+2}, v{vDt}, v{AB+2}
        v_mul_f32 v{AB+3}, v{vDt}, v{AB+3}
        v_mul_f32 v{q}, {fbits(1.4426950408889634)}, v{al}
        v_mul_f32 v{q+1}, 0.15915494, v{be}
        v_mul_f32 v{Wc}, v{AB+4}, v{AB+2}
        v_mul_f32 v{Wc+1}, v{AB+4}, v{AB+3}
        v_mul_f32 v{q+3}, {fbits(8.0)}, v{q}
        v_mul_f32 v{q+4}, {fbits(8.0)}, v{q+1}
        v_mul_f32 v{q+6}, {fbits(256.0)}, v{q}
        v_mul_f32 v{q+7}, {fbits(256.0)}, v{q+1}
        v_fma_f32 v{Wc}, -v{AB+5}, v{AB+3}, v{Wc}
        v_fma_f32 v{Wc+1}, -v{AB+5}, v{AB+2}, -v{Wc+1}
        """)
        MF = self.opt('modfast', 1)
        if MPOS == 1 and MF: id_mr = mod_read()
        for n_ in range(3): e(f'v_exp_f32 v{q+3*n_}, v{q+3*n_}\nv_fract_f32 v{q+3*n_+1}, v{q+3*n_+1}')
        for n_ in range(3): e(f'v_sin_f32 v{q+3*n_+2}, v{q+3*n_+1}\nv_cos_f32 v{q+3*n_+1}, v{q+3*n_+1}')
        if MPOS == 1 and MF: mod_store(id_mr)
        e(f'v_and_b32 v87, 127, v0\nv_cmp_eq_u32 vcc, 0, v87')
        for n_, (Z, conj) in enumerate([(Z1,True),(Z8,False),(Z256,True)]):
            e(f'v_mul_f32 v{Z}, v{q+3*n_}, v{q+3*n_+1}\nv_mul_f32 v{Z+1}, {"-" if conj else ""}v{q+3*n_}, v{q+3*n_+2}')
        e(f'v_readfirstlane_b32 s{sT}, v{vRW}')
        if MPOS == 1 and not MF: id_mr = mod_read()
        e(f's_mov_b32 m0, s{sT}')
        def put(src, row, pk):
            return [f'v_cvt_pk_bf16_f32 v{pk}, v{src}, v{src+1}', f'ds_write_addtid_b32 v{pk} offset:{row*RST}' if self.opt('addtid', 1) else f'ds_write_b32 v{vRW}, v{pk} offset:{row*RST}']
        Z16 = 78
        R0 = [[f'v_mov_b32 v88, 0x3f80', f'ds_write_b32 v{vRW}, v88'], self.cmul(Z16, Z8, Z8) + put(Z16, 2, 88)]
        R1 = [put(Z8, 1, 84), []]
        cur = [Z16, Z8]; bufs = [[80, 82], [90, 92]]
        for rho in range(3, 32):
            par = rho & 1
            d = bufs[par][(rho >> 1) & 1]
            (R1 if par else R0).append(self.cmul(d, cur[par], Z16) + put(d, rho, 84 if par else 88)); cur[par] = d
        Cq = [put(Wc, 32, 89)]
        cr = {0: Wc}
        reg = {1:110, 2:94, 3:110, 4:96, 5:110, 6:98, 7:110, 8:100}
        for ee in range(1, 9):
            Cq.append(self.cmul(reg[ee], cr[ee-1], Z1) + (put(reg[ee], 32+ee, 89) if ee < 8 else [])); cr[ee] = reg[ee]
        chain = [(264,8,44,102),(520,264,46,104),(776,520,48,102),(1032,776,49,104),(1288,1032,50,102),(1544,1288,51,104),(1800,1544,52,102)]
        for ee, src, row, d in chain:
            Cq.append(self.cmul(d, cr[src], Z256) + put(d, row, 89)); cr[ee] = d
        side = [(260,4,42,106),(516,260,45,108),(772,516,47,106)]
        for ee, src, row, d in side:
            R0.append(self.cmul(d, cr[src], Z256) + put(d, row, 88)); cr[ee] = d
        R1.append(self.cmul(90, cr[0], Z256) + put(90, 40, 84))
        R1.append(self.cmul(92, cr[2], Z256) + put(92, 41, 84))
        Cq.append(self.cmul(110, cr[6], Z256) + put(110, 43, 89))
        KD = 12
        Cq.append([f'v_mov_b32 v{KD+1}, s{sDsk}', f'v_mov_b32 v{KD+2}, 0', f'v_cndmask_b32 v{KD}, 0, v{KD+1}, vcc', f'v_mov_b32 v{KD+1}, 0'])
        Cq.append([f'v_mov_b32 v{KD+3}, 0', f'v_mul_f32 v{vBv}, {fbits(2.0**36)}, v{vOne}', f'v_max_f32 v{vBv}, {fbits(2.0**-64)}, v{vBv}'])
        for n_ in range(max(len(R0), len(R1), len(Cq))):
            st = [a_[n_] if n_ < len(a_) else [] for a_ in (R0, R1, Cq)]
            for j in range(4):
                for a_ in st:
                    if j < len(a_): e(a_[j])
            if n_ == 1 and MPOS == 1 and not MF: mod_store(id_mr)
            if WJN <= -2 and n_ == -WJN-1:
                e(f's_waitcnt {self.wvm(idw[0])}')
                for x in wjob_ops(128): wst[0] = e(x)
        self.stamp('kgen1')
        EG = 68
        e1m = '\n'.join(f'buffer_load_dwordx4 {vr(EG+16+4*i,4)}, v{vEM}, {SRD}, s{sE1+4+i} offen sc1' for i in range(2))
        e1x = '\n'.join(f'buffer_load_dwordx2 {vr(EG+2*i,2)}, v{vEX}, {SRD}, s{sE1+i} offen sc1' for i in range(4))
        e1_loads = e1x + '\n' + e1m
        E1AT = self.opt('e1at', 1); E1M = self.opt('e1m', 2); ide = [0]
        def e1_issue(k_):
            if E1AT == k_: ide[0] = e(e1x)
            if max(E1M, E1AT) == k_: ide[0] = e(e1m)
        e('s_waitcnt lgkmcnt(0)')
        e1_issue(0)
        e('s_barrier')
        self.stamp('_kbar1')
        KF = 160
        kf_id = []
        for kk in range(8):
            e(f"""ds_read_b128 {vr(KF+12*kk,4)}, v{vKa} offset:{64*kk}
            ds_read_b128 {vr(KF+12*kk+4,4)}, v{vKb0} offset:{32*RST+64*kk}
            ds_read_b128 {vr(KF+12*kk+8,4)}, v{vKb1} offset:{44*RST+64*kk}""")
            kf_id.append(self.nlg)
            if kk == 4:
                e1_issue(1)
        for kk in range(8):
            e(f's_waitcnt {self.wlg(kf_id[kk])}')
            for cb in range(2):
                e(f'v_mfma_f32_16x16x32_bf16 {vr(KD+4*cb,4)}, {vr(KF+12*kk,4)}, {vr(KF+12*kk+4+4*cb,4)}, {"0" if kk==0 and cb==1 else vr(KD+4*cb,4)}')
        e1_issue(2)
        wd_pf2(2)
        touch(2)
        if WGA == 2: wg_issue(8)
        AN = 128; AX = 160; T2 = 192; T3 = 204; BND = 196; SF2 = 208; SF3 = 232; SD = 240; US = 72
        e(f"""
        ds_read2_b32 {vr(BND,2)}, v{vBd} offset0:6 offset1:4
        ds_read2_b32 {vr(BND+2,2)}, v{vBd} offset0:2 offset1:0
        ds_read2_b32 {vr(BND+4,2)}, v{vBd} offset0:70 offset1:68
        ds_read2_b32 {vr(BND+6,2)}, v{vBd} offset0:66 offset1:64
        ds_read2_b32 {vr(BND+8,2)}, v{vBd2} offset0:134 offset1:132
        ds_read2_b32 {vr(BND+10,2)}, v{vBd2} offset0:130 offset1:128""")
        for cb in range(2):
            for j in range(2):
                e(f'v_cvt_pk_bf16_f32 v{KD+8+2*cb+j}, v{KD+4*cb+2*j}, v{KD+4*cb+2*j+1}')
        def scat(cb, j):
            va = (vKw0, vKw1)[cb]; off = 32*j if cb == 0 else (j&1)*928 + (j>>1)*4
            op = 'ds_write_b16_d16_hi' if j & 1 else 'ds_write_b16'
            e(f'{op} v{va}, v{KD+8+2*cb+(j>>1)} offset:{off}\n{op} v{va}, v{KD+8+2*cb+(j>>1)} offset:{off+6}')
        for j in range(4): scat(0, j)
        scat(1, 3)
        e('s_mov_b32 exec_lo, 0x00ff00ff\ns_mov_b32 exec_hi, 0x00ff00ff')
        for j in range(3): scat(1, j)
        e('s_mov_b64 exec, -1')
        e1_issue(3); id_e1 = ide[0]
        self.stamp('kgen2')
        def rd2(d, va, o): return [f'ds_read2_b32 {vr(d,2)}, v{va} offset0:{o+6} offset1:{o+4}', f'ds_read2_b32 {vr(d+2,2)}, v{va} offset0:{o+2} offset1:{o}']
        def rq2(d, o0, o1): return [f'ds_read2_b32 {ar(d,2)}, v{vQ} offset0:{o0} offset1:{o0-2}', f'ds_read2_b32 {ar(d+2,2)}, v{vQ} offset0:{o1} offset1:{o1-2}']
        vPA1 = 55
        reads = {}
        for be_ in range(6): reads[('u', be_)] = (US+4*be_, [f'ds_read_b128 {vr(US+4*be_,4)}, v{vUS} offset:{512*be_}'])
        for jq in range(4):
            for J in range(2): reads[('a', jq, J)] = (AN+8*jq+4*J, rd2(AN+8*jq+4*J, vPA1 if J else vPA, 32*jq))
        reads[('x', 16)] = (AX, rd2(AX, vPX, 0)); reads[('x', 32)] = (AX+4, rd2(AX+4, vPX, 48))
        for d_ in (2,3,4): reads[('t2', d_)] = (T2+4*(d_-2), rq2(T2+4*(d_-2), 16*d_-28, 64+16*d_-28))
        for d_ in (4,5,6,7): reads[('t3', d_)] = (T3+4*(d_-4), rq2(T3+4*(d_-4), 128+16*d_-44, 128+16*d_-60))
        pre = set(); wjs = []
        e(f'v_add_u32 v{vPA1}, 1024, v{vPA}')
        if self.opt('kpre', 1):
            e('s_waitcnt lgkmcnt(0)\ns_barrier')
            for o in reads:
                if o[0] != 'u':
                    for x in reads[o][1]: e(x)
                    pre.add(o)
        if WJN == -1 and self.opt('wjpre', 4):
            e(f's_waitcnt {self.wvm(idw[0])}')
            for x in wjob_ops(168 if self.opt('wjpre', 4) < 4 else 216, 4):
                if x.startswith('buffer_') and self.opt('wjpre', 4) != 3: wjs.append(x)
                else: wst[0] = e(x)
        XC = EG+8
        e(f's_waitcnt {self.wvm(id_e1)}\nL_e1chk:')
        for i in range(8): e(f'v_xor_b32 v{XC+i}, v{EG+i}, v{vTP+(i&1)}')
        e(f"""
        v_cmp_ne_u32 {sp(sBad)}, v{EG+19}, v2
        v_or3_b32 v92, v{XC}, v{XC+1}, v{XC+2}
        v_or3_b32 v93, v{XC+3}, v{XC+4}, v{XC+5}
        v_cmp_ne_u32 vcc, v{EG+23}, v2
        v_or3_b32 v92, v92, v{XC+6}, v{XC+7}
        s_or_b64 {sp(sBad)}, {sp(sBad)}, vcc
        v_bitop3_b32 v92, v92, v93, s{sTm} bitop3:0xa8
        v_cmp_ne_u32 vcc, 0, v92
        s_or_b64 {sp(sBad)}, {sp(sBad)}, vcc
        s_cbranch_scc1 L_e1retry""")
        self.tail.append(f"""L_e1retry:
        s_sub_u32 s{sCnt}, s{sCnt}, 1
        s_cbranch_scc1 L_end
        s_wqm_b64 exec, {sp(sBad)}
        {e1_loads}
        s_mov_b64 exec, -1
        s_waitcnt vmcnt(0)
        s_branch L_e1chk""")
        self.stamp('e1_ok')
        wd_pf2(3)
        touch(3)
        if self.opt('wjpre', 4) == 2:
            while wjs: wst[0] = e(wjs.pop(0))
        if WGA == 3: wg_issue(8)
        e(f's_lshl_b32 s{sDmaL}, s{sW}, 13')
        g0 = 28; HF = 96
        e(f"""
        v_add_f32 v{g0}, v{EG+16}, v{EG+20}
        v_add_f32 v{g0+1}, v{EG+17}, v{EG+21}
        v_add_f32 v{g0+2}, v{EG+18}, v{EG+22}
        v_mov_b32 v{g0+3}, 0""")
        unp = []
        for i in range(4):
            unp += [f'v_lshlrev_b32 v{HF+4*i}, 16, v{XC+2*i}', f'v_lshlrev_b32 v{HF+4*i+1}, 16, v{XC+2*i+1}',
                    f'v_and_b32 v{HF+4*i+2}, s{sMask}, v{XC+2*i}', f'v_and_b32 v{HF+4*i+3}, s{sMask}, v{XC+2*i+1}']
        self.reduce4(g0, g0+1, g0+2, g0+3, unp)
        unp = self.rest
        e(f"""
        v_cvt_pk_bf16_f32 v{g0}, v{g0}, v{g0}
        v_and_b32 v{g0}, s{sMask}, v{g0}
        v_add_f32 v{g0+1}, v{g0}, v{vOne}
        v_readlane_b32 s{sM+4}, v{g0}, 16
        v_readlane_b32 s{sM+5}, v{g0}, 17
        v_cvt_pk_bf16_f32 v{g0}, v{g0+1}, v{g0+1}
        v_and_b32 v{g0}, s{sMask}, v{g0}
        v_mul_f32 v{g0+3}, v{vBv}, v{g0}
        v_mul_f32 v{g0+1}, s{sM+4}, v{g0+3}
        v_mul_f32 v{g0+2}, s{sM+5}, v{g0+3}
        v_readlane_b32 s{sM}, v{g0+1}, 32
        v_readlane_b32 s{sM+1}, v{g0+1}, 0
        v_readlane_b32 s{sM+2}, v{g0+2}, 33
        v_readlane_b32 s{sM+3}, v{g0+2}, 1""")
        for x in unp: e(x)
        for i in range(4):
            for ch in range(2):
                h = HF+4*i+2*ch
                e(f'v_pk_fma_f32 {vr(h,2)}, {vr(h,2)}, {sp(sM+2*ch)}, {sp(sM+2*ch)} op_sel:[0,0,1] op_sel_hi:[1,0,1]')
            for ch in range(2):
                h = HF+4*i+2*ch
                e(f'v_cvt_pk_bf16_f32 v{g0+2+ch}, v{h}, v{h+1}\nds_write_b32 v{vUw}, v{g0+2+ch} offset:{ch*USZ+1024*i}')
        while wjs and self.opt('wjpre', 4) < 4: wst[0] = e(wjs.pop(0))
        if WJN == -1 and not self.opt('wjpre', 4):
            e(f's_waitcnt {self.wvm(idw[0])}')
            for x in wjob_ops(): wst[0] = e(x)
        e('s_waitcnt lgkmcnt(0)\ns_barrier')
        self.stamp('u_ready')
        wopen[0] = 2
        ACC = 224; ZG = 12
        BR = [96,100,104,108,116,120,168,172,176,180,184,188]
        F1N = self.opt('f1n', 200)
        def f1_publish(): e(f's_waitcnt {self.wvm(wst[0])}\n' + self.flag_text(vF, sF1o))
        for m in range(8):
            for jq in range(4):
                r_ = BR[(4*m+jq) % len(BR)]
                reads[('b', m, jq)] = (r_, [f'ds_read_b128 {vr(r_,4)}, v{vUB} offset:{512*m+192-64*jq}'])
        ops = []
        S = lambda nm, be_: ops.append(('S', (nm, be_), ('u', be_), ('bnd', nm)))
        def near(m, Js):
            for jq in range(4):
                for J in Js: ops.append(('M', m+J, ('a', jq, J), ('b', m, jq)))
        def far(cb):
            ops.append(('M', cb, ('x', 16), ('u', cb-2)))
            if cb >= 4: ops.append(('M', cb, ('x', 32), ('u', cb-4)))
            for d_ in (4,3,2):
                if cb-d_ >= 0: ops.append(('M', cb, ('s2', cb-d_), ('t2', d_)))
            if cb >= 4: ops.append(('M', cb, ('s3', 0), ('t3', cb)))
            if cb >= 6: ops.append(('M', cb, ('s3', 1), ('t3', cb-2)))
        S('a',0); S('b',0); S('a',1); S('b',1)
        near(0,(0,1)); near(1,(0,1)); far(2); S('c',0); S('c',1); near(2,(0,1)); S('a',2); S('b',2); far(3); near(3,(0,))
        S('a',3); S('b',3); near(3,(1,)); far(4); near(4,(0,1)); far(5); near(5,(0,))
        S('a',4); S('b',4); S('c',2); S('c',3); near(5,(1,)); S('a',5); S('b',5); near(6,(0,1)); far(6); near(7,(0,)); far(7)
        assert len(ops) == 107
        def opreg(o):
            if o[0] == 'bnd': return BND + 4*'abc'.index(o[1])
            if o[0] == 's2': return SF2 + 4*o[1]
            if o[0] == 's3': return SF3 + 4*o[1]
            return reads[o][0]
        firstuse = {}; lastuse = {}; accdone = {}
        for n, (kd, dst, oa, ob) in enumerate(ops):
            for o in (oa, ob): firstuse.setdefault(o, n); lastuse[o] = n
            if kd == 'M': accdone[dst] = n
        rq = []
        for o in sorted(reads, key=lambda o: firstuse[o]):
            early = -1
            if o[0] == 'b' and 4*o[1]+o[2] >= len(BR):
                idx = 4*o[1]+o[2]-len(BR); early = lastuse[('b', idx//4, idx%4)] + 1
            if o not in pre:
                for x in reads[o][1]: rq.append((early, o, x))
        rid = {o: 0 for o in pre}
        def popread():
            _, o, x = rq.pop(0); e(x)
            if not any(o2 == o for _, o2, _ in rq): rid[o] = self.nlg
        for _ in range(self.opt('cpre', 8 if pre else 14)): popread()
        tq = 69
        fill = [f's_bitcmp1_b32 s{sL}, 1\ns_cselect_b32 s{sT}, 1.0, {fbits(2.0**-64)}', f'v_mul_f32 v{g0+1}, s{sT}, v{g0}']
        fill += [f'v_readlane_b32 s{sM+6+n_}, v{g0+(n_<4)}, {ln}' for n_, ln in list(enumerate([34,35,2,3,18,19]))[::-1]]
        TZ = 16; XE = 52; vYr1 = 64
        fill += f"""v_and_b32 v{tq}, 3, v0
        s_pack_hh_b32_b16 s{sT}, s{sM+6}, s{sM+7}
        s_pack_hh_b32_b16 s{sT+1}, s{sM+8}, s{sM+9}
        s_pack_hh_b32_b16 s{sT+2}, s{sM+10}, s{sM+11}
        v_lshlrev_b32 v{tq}, 2, v{tq}
        s_mov_b32 s{sTm}, {TAGZ}
        v_alignbit_b32 v{tq}, v2, v2, v{tq}
        v_xor_b32 v{vYr1}, 32, v{vYr}
        v_add_u32 v{vTw}, 65536, v{vTr}
        v_and_b32 v{TZ}, s{sTm}, v{tq}
        v_alignbit_b32 v{TZ+1}, v{tq}, v{tq}, 1
        v_alignbit_b32 v{TZ+2}, v{tq}, v{tq}, 2
        v_alignbit_b32 v{TZ+3}, v{tq}, v{tq}, 3
        v_and_b32 v{TZ+1}, s{sTm}, v{TZ+1}
        v_and_b32 v{TZ+2}, s{sTm}, v{TZ+2}
        v_and_b32 v{TZ+3}, s{sTm}, v{TZ+3}
        v_mov_b32 v192, s{sT}
        v_mov_b32 v193, s{sT+1}
        v_mov_b32 v194, s{sT+2}
        v_mov_b32 v195, v2""".split('\n')
        stages = {'a': [(0,),(1,)], 'n': [(0,1)]}[self.opt('stages', 'a')]
        wr_id = {}; cq = []; sq = []; sdone = {}; nsd = 0; stage = 0; done_w = 0; waited = 0
        zst = {}
        def stage_ops(sg, final):
            out = []
            regs = {(k_, j): ([28, SD][j] if not final else 72+16*n_+8*j) for n_, k_ in enumerate(sg) for j in range(2)}
            for k_ in sg:
                for j in range(2):
                    for pw in range(4): out.append(('rd', (k_,j), f'ds_read_b64 {vr(regs[(k_,j)]+2*pw,2)}, v{vYr1 if j else vYr} offset:{8192*pw+4096*k_}'))
            for k_ in sg:
                for j in range(2):
                    y = regs[(k_,j)]; i = (k_,j)
                    out.append(('wait', i, None))
                    if final:
                        out += [('v', i, f'v_pk_add_f32 {vr(y+4*ch,2)}, {vr(y+4*ch,2)}, {vr(y+4*ch+2,2)}') for ch in range(2)]
                    else:
                        out += [('v', i, f'v_add_f32 v{y+4*ch+r}, v{y+4*ch+r}, v{y+4*ch+2+r}') for r in range(2) for ch in range(2)]
                    out += [('v', i, f'v_cvt_pk_bf16_f32 v{ZG+2*j+r}, v{y+r}, v{y+4+r}') for r in range(2)]
                    out += [('v', i, f'v_bfi_b32 v{ZG+2*j+r}, s{sTm}, v{TZ+2*j+r}, v{ZG+2*j+r}') for r in range(2)]
                x = f'buffer_store_dwordx4 {vr(ZG,4)}, v1, {SRD}, s{sZs+k_} offen sc1'
                if k_ == 0: x += f'\ns_mov_b64 exec, 1\nbuffer_store_dwordx4 v[192:195], v1, {SRD}, s{sZs+2} offen sc1\ns_mov_b64 exec, -1'
                out.append(('st', k_, x))
            return out
        y_id = {}; ride = [0]; pub = []
        def popstage():
            nonlocal waited
            kd, i, x = sq.pop(0)
            if kd == 'wait':
                e(f's_waitcnt {self.wlg(y_id[i])}'); waited = max(waited, y_id[i])
            else:
                r_ = e(x)
                if kd == 'rd': y_id[i] = self.nlg
                if kd == 'st':
                    zst[i] = r_
                    if not sq:
                        ride[0] = self.opt('ride', 0)
                        pub.append(1)
                        if F1N == 199 + len(pub): f1_publish()
        seen = set(); hold = 0; accpos = {}; wj = []
        for n, (kd, dst, oa, ob) in enumerate(ops):
            if n in (1, 27, 54, 81): self.stamp(f'_c{n}')
            for o in (oa, ob):
                while o in reads and o not in rid: popread()
                if o[0] in ('s2', 's3'):
                    while any(tg == o for _, tg, _ in cq): e(cq.pop(0)[2])
            need = max(rid.get(oa, 0), rid.get(ob, 0))
            if need > waited:
                e(f's_waitcnt {self.wlg(need)}'); waited = max(need, self.nlg - 14)
            if kd == 'S':
                d = SD + 4*(nsd % 4); nsd += 1
                while any(f'v{d},' in x or x.endswith(f'v{d+3}') for _, _, x in cq): e(cq.pop(0)[2])
                while any(k_ != 'st' for k_, _, _ in sq): popstage()
                e(f'v_mfma_f32_16x16x32_bf16 {vr(d,4)}, {vr(opreg(oa),4)}, {vr(opreg(ob),4)}, 0')
                nm, be_ = dst
                tg = ('s2', be_) if nm != 'c' else ('s3', be_ >> 1)
                o_ = opreg(tg) + (2*'ab'.index(nm) if nm != 'c' else 2*(be_ & 1))
                cq += [(len(p.text), tg, f'v_cvt_pk_bf16_f32 v{o_+j}, v{d+2*j}, v{d+2*j+1}') for j in range(2)]
            else:
                c_ = ar(ACC+4*dst,4) if dst in seen else '0'; seen.add(dst)
                e(f'v_mfma_f32_16x16x32_bf16 {ar(ACC+4*dst,4)}, {vr(opreg(oa),4)}, {(ar if ob[0][0] == "t" else vr)(opreg(ob),4)}, {c_}')
                if accdone[dst] == n: accpos[dst] = len(p.text)
            budget = 2
            if wjs and n >= self.opt('wsn', 4) + (4-len(wjs))*self.opt('wss', 3):
                assert n < 30; wst[0] = e(wjs.pop(0)); budget = 1
            elif n == F1N: f1_publish(); budget = 0
            elif n % self.opt('wd_pace', 6) == 1 and self.opt('wd_first', 0) <= n <= self.opt('wd_last', 100) and wd_can(): wd_issue(1); budget = 1
            elif ride[0] > 0 and n % 2 == 0 and wd_can(): wd_issue(1); budget = 1; ride[0] -= 1
            if n == WJN: e(f's_waitcnt {self.wvm(idw[0])}'); wj = wjob_ops()
            if stage < len(stages)-1 and done_w > 4*stages[stage][-1]+3 and n >= wr_n + 3 and not sq:
                while fill: e(fill.pop(0))
                while cq: e(cq.pop(0)[2])
                e(f's_waitcnt {self.wlg(wr_id[done_w-1])}\ns_barrier'); waited = max(waited, wr_id[done_w-1])
                sq = stage_ops(stages[stage], False); stage += 1; budget = 0
            while budget > 0:
                budget -= 1
                if rq and rq[0][0] <= n and firstuse[rq[0][1]] <= n + self.opt('cla', 20): popread()
                elif cq and len(p.text) - cq[0][0] >= 8: e(cq.pop(0)[2])
                elif done_w in accpos and len(p.text) - accpos[done_w] >= 8:
                    e(f'ds_write_b128 v{vYw}, {ar(ACC+4*done_w,4)} offset:{1024*done_w}'); wr_id[done_w] = self.nlg; wr_n = n; done_w += 1
                elif sq and not (sq[0][0] == 'wait' and hold > n):
                    if sq[0][0] == 'rd': hold = n + 4
                    popstage()
                elif fill: e(fill.pop(0))
                elif wj: wst[0] = e(wj.pop(0))
                elif rq and rq[0][0] <= n: popread()
                elif self.opt('trconv', 0) and tr_ready(8): tr_pop()
        assert not rq and not cq and not wj and stage == len(stages)-1
        while sq: popstage()
        for x in fill: e(x)
        self.stamp('conv')
        while done_w < 8:
            e(f'ds_write_b128 v{vYw}, {ar(ACC+4*done_w,4)} offset:{1024*done_w}'); done_w += 1
        e('s_waitcnt lgkmcnt(0)\ns_barrier')
        sq = stage_ops(stages[-1], True)
        while sq: popstage()
        id_z = self.nvm
        if F1N == 107: f1_publish()
        self.stamp('z_stored')
        vP1 = 122
        e(f"""
        s_bfe_u32 s1, s{sL}, 0x30002
        s_lshr_b32 s0, s{sL}, 7
        s_lshl3_add_u32 s{sMt}, s0, s1
        s_bfe_u32 s0, s{sL}, {0x10005 if MAP2 == 84 else 0x20005}
        s_and_b32 s1, s{sMt}, {15 if MAP2 == 84 else 14}
        s_lshl1_add_u32 s{sTb}, s1, s0
        s_bfe_u32 s0, s{sL}, 0x20005
        s_and_b32 s1, s{sL}, 3
        s_lshl2_add_u32 s{sNt}, s0, s1
        s_mul_i32 s0, s{sNt}, 7
        s_lshr_b32 s0, s0, 2
        v_bfe_u32 v{t+1}, v0, 3, 3
        v_min_u32 v{t+1}, 2, v{t+1}
        v_add_u32 v{t+1}, s0, v{t+1}
        v_min_u32 v{t+1}, 27, v{t+1}
        v_and_b32 v{t+2}, 7, v0
        v_lshl_add_u32 v{t+1}, v{t+1}, 5, v{t+2}
        s_lshl_b32 s0, s{sW}, 10
        s_add_u32 s0, s0, {F1}
        v_lshl_add_u32 v{vP1}, v{t+1}, 7, s0""")
        f1_load = f'buffer_load_dword v{vPolled}, v{vP1}, {SRD}, 0 offen sc1'
        F1P = self.opt('f1p', 0)
        if F1P == 0: id_f1 = e(f1_load)
        e(f"""
        s_mul_i32 s{sDmaG}, s{sNt}, {7*32768}
        s_add_u32 s{sDmaG}, s{sDmaG}, s{sDmaL}
        s_add_u32 s{sDmaG}, s{sDmaG}, {WGU}""")
        dq = [x for i in range(5) for x in self.dma_tile(i,i)]
        f1ok = [False]; maxt = [2]
        def bg_issue(n):
            for _ in range(n):
                if wd_can() and wdq[0][0] <= 2: wd_one()
                elif f1ok[0] and dq[0][0] <= 2: tile_one(dq)
                else: wd_issue(1)
        def bg(name, nT, nL):
            v = self.opt(name, None)
            if v is not None: nT, nL = v // 100, v % 100
            done = 0
            for i in range(nT):
                k_ = (nL*(i+1) + nT-1)//nT - done; bg_issue(k_); done += k_
                tr_do(1)
            bg_issue(nL - done)
        bg('b_zack', 4, 9)
        XF = 36
        for r in range(2):
            for i in range(4):
                for x in self.unpack(XF+8*r+2*i, XR+4*r+i): e(x)
        TH = 66; TX = 14; vZ = 28; vH2 = 29; ZI = 72; vMsk = 30
        vP2 = 24; vXa = 25; vA2 = 26; vA4 = 27; vP3 = 23; vX2 = 22; vAc1 = 21
        c1 = -2*1.4426950408889634*0.7978845608028654; c2 = c1*0.044715
        gs = (-c2)**(1/3); sGk, sGs = 30, 31
        e(f'''
        v_and_b32 v{t}, 0xfc, v0
        v_and_b32 v{t+2}, 0x30, v1
        s_movk_i32 s{sT}, {HBLK}
        v_mad_u32_u24 v{vZ}, v{t}, s{sT}, v{t+2}
        s_lshr_b32 s{sT}, s{sL}, 1
        s_lshl_b32 s{sT}, s{sT}, 6
        s_add_u32 s{sT}, s{sT}, {ZY}
        s_add_u32 s{sT+1}, s{sT}, {HBLK}
        s_add_u32 s{sT+2}, s{sT}, {2*HBLK}
        s_add_u32 s{sT+3}, s{sT}, {3*HBLK}
        s_lshl_b32 s{sT+8}, s{sW}, 10
        s_add_u32 s{sT+8}, s{sT+8}, {MX}
        s_bitcmp1_b32 s{sL}, 0
        s_cselect_b32 s{sLo}, 0x04040000, 0
        s_add_u32 s{sHi}, s{sLo}, 0x03020c0c
        s_add_u32 s{sLo}, s{sLo}, 0x01000c0c
        s_mov_b32 s{sM}, {fbits(2.0**64)}
        v_lshrrev_b32 v{t}, 3, v0
        v_and_b32 v{t+1}, 0x70, v1
        v_lshl_add_u32 v{vH2}, v{t}, 10, v{t+1}
        s_lshr_b32 s{sT+4}, s{sL}, 2
        s_lshl_b32 s{sT+4}, s{sT+4}, 7
        s_and_b32 s{sT+5}, s{sL}, 3
        s_add_u32 s{sT+4}, s{sT+4}, s{sT+5}
        s_lshl_b32 s{sT+4}, s{sT+4}, 8
        s_add_u32 s{sT+4}, s{sT+4}, {H2}
        s_mov_b32 s{sT+5}, {X2}
        v_mov_b32 v{vMsk}, s{sMask}
        s_lshl2_add_u32 s{sT+6}, s{sL}, s{sW}
        s_lshl_b32 s{sT+6}, s{sT+6}, 7
        s_add_u32 s{sT+6}, s{sT+6}, {F2}
        s_lshl2_add_u32 s0, s{sMt}, s{sW}
        s_lshl_b32 s{sXg}, s0, 15
        s_add_u32 s{sXg}, s{sXg}, {H2}
        s_lshl4_add_u32 s0, s0, s{sNt}
        s_mul_i32 s0, s0, {7*1024}
        s_add_u32 s{sActS}, s0, {ACT}
        s_add_u32 s{sActS+1}, s0, {ACT+4096}
        s_add_u32 s{sF3o}, s{sT+6}, {F3-F2}
        s_and_b32 s0, s{sL}, 0x98
        s_bfe_u32 s1, s{sTb}, 0x10001
        s_lshl2_add_u32 s0, s1, s0
        s_lshl_b32 s1, s{sW}, 5
        s_add_u32 s0, s0, s1
        s_and_b32 s1, s{sTb}, 1
        s_lshl1_add_u32 s0, s0, s1
        s_lshl_b32 s0, s0, 8
        s_add_u32 s{sF3p}, s0, {F3}
        s_lshl3_add_u32 s0, s{sTb}, s{sW}
        s_mul_i32 s0, s0, {28*1024}
        s_add_u32 s{sActG}, s0, {ACT}
        s_waitcnt {self.wvm(id_z)}''')
        self.stamp('_zack')
        if F1N == 108: f1_publish()
        z_loads = '\n'.join(f'buffer_load_dwordx4 {vr(ZI+4*i,4)}, v{vZ}, {SRD}, s{sT+i} offen sc1' for i in range(4))
        XG = 32
        z_loads += f'\nbuffer_load_dwordx4 {vr(XG,4)}, v1, {SRD}, s{sT+8} offen sc1'
        id_zl = e(z_loads)
        if F1P == 0:
            self.check(f1_load, [vPolled], id_f1); f1ok[0] = True
        elif F1P == 1: id_f1 = e(f1_load)
        bg('b_zld', 4, 0)
        bg('b_zld2', 0, 6)
        e(f'''
        v_lshrrev_b32 v{TH}, 3, v{t+1}
        v_alignbit_b32 v{TH}, v2, v2, v{TH}
        v_alignbit_b32 v{TH+1}, v{TH}, v{TH}, 1
        v_and_b32 v{TH}, s{sTm}, v{TH}
        v_and_b32 v{TH+1}, s{sTm}, v{TH+1}
        v_bfe_u32 v{t}, v0, 2, 3
        v_bfe_u32 v{t+3}, v0, 5, 1
        v_lshl_add_u32 v{t+2}, v{t+3}, 6, v{t+2}
        v_lshl_add_u32 v{vXa}, v{t}, 7, v{t+2}
        v_lshrrev_b32 v{TX}, 3, v{t+2}
        v_alignbit_b32 v{TX}, v2, v2, v{TX}
        v_alignbit_b32 v{TX+1}, v{TX}, v{TX}, 1
        v_and_b32 v{TX}, s{sTm}, v{TX}
        v_and_b32 v{TX+1}, s{sTm}, v{TX+1}
        v_add_u32 v{vA2}, 65536, v1
        v_add_u32 v{vA4}, 131072, v1
        v_add_u32 v{vAc1}, {112*1024}, v1
        v_mov_b32 v{vInv+1}, {fbits(1e-5/gs**2)}
        s_mov_b32 s{sGk}, {fbits(c1/gs)}
        s_mov_b32 s{sGs}, {fbits(gs*gs*2.0**64)}
        s_mov_b32 s{sM+1}, {fbits(gs)}
        v_bfe_u32 v{t}, v0, 1, 2
        v_and_b32 v{t+2}, 1, v0
        v_lshlrev_b32 v{t+2}, 7, v{t+2}
        v_lshl_add_u32 v{vP3}, v{t}, 9, v{t+2}
        v_bfe_u32 v{t}, v0, 3, 2
        v_lshl_add_u32 v{t}, v{t}, 1, v{t+3}
        v_lshl_add_u32 v{t}, v{t}, 10, v{t+1}
        s_lshl3_add_u32 s0, s{sTb}, s{sW}
        s_lshl_b32 s0, s0, 6
        s_add_u32 s0, s0, s{sDt}
        s_lshl_b32 s0, s0, 7
        v_add_u32 v{vX2}, s0, v{t}''')
        self.stamp('_zchk')
        ZC = 144
        e(f's_waitcnt {self.wvm(id_zl)}\nL_zchk:')
        for i in range(16): e(f'v_xor_b32 v{ZC+i}, v{ZI+i}, v{TZ+(i&3)}')
        e(f'v_cmp_ne_u32 {sp(sBad)}, v{XG+3}, v2')
        for i in range(5): e(f'v_or3_b32 v{160+i}, v{ZC+3*i}, v{ZC+3*i+1}, v{ZC+3*i+2}')
        e(f"""
        v_or3_b32 v160, v160, v161, v162
        v_or3_b32 v163, v163, v164, v{ZC+15}
        v_bitop3_b32 v160, v160, v163, s{sTm} bitop3:0xa8
        v_cmp_ne_u32 vcc, 0, v160
        s_or_b64 {sp(sBad)}, {sp(sBad)}, vcc
        s_cbranch_scc1 L_zretry""")
        self.tail.append(f"""L_zretry:
        s_sub_u32 s{sCnt}, s{sCnt}, 1
        s_cbranch_scc1 L_end
        s_wqm_b64 exec, {sp(sBad)}
        {z_loads}
        s_mov_b64 exec, -1
        s_waitcnt vmcnt(0)
        s_branch L_zchk""")
        self.stamp('z_ok')
        if F1P == 1: self.check(f1_load, [vPolled], id_f1); f1ok[0] = True
        elif F1P == 2: id_f1 = e(f1_load)
        nl2 = [self.opt('b_ln2', 10)]
        def ln2bg(n=1):
            for _ in range(n):
                if nl2[0] > 0: bg_issue(1); nl2[0] -= 1
        ZF = 88
        for i in range(4):
            ln2bg()
            for r in range(2):
                z = ZF+8*r+2*i
                e(f'v_perm_b32 v{z}, v{ZC+4*i+2+r}, v{ZC+4*i+r}, s{sLo}\nv_perm_b32 v{z+1}, v{ZC+4*i+2+r}, v{ZC+4*i+r}, s{sHi}')
            for r in range(2):
                z = ZF+8*r+2*i; x = XF+8*r+2*i
                e(f'v_pk_fma_f32 {vr(x,2)}, {vr(z,2)}, {sp(sM)}, {vr(x,2)} op_sel_hi:[1,0,1]')
            for r in range(2):
                x = XF+8*r+2*i
                e(f'v_cvt_pk_bf16_f32 v{XR+4*r+i}, v{x}, v{x+1}')
        unp = [x for r in range(2) for i in range(4) for x in self.unpack(XF+8*r+2*i, XR+4*r+i)]
        self.stats_partial(XR, t, vSBw, unp)
        unp = self.rest
        ln2bg(2)
        for x in unp: e(x)
        e('s_waitcnt lgkmcnt(0)\ns_barrier')
        wopen[0] = 3
        self.stamp('_ln2bar')
        ST = 128
        self.stats_read(ST, vSBr)
        GBV = 12
        for i in range(4):
            ln2bg()
            for kind in range(2):
                d = ZF+8*kind+2*i
                qp = f'quad_perm:[{i},{i},{i},{i}] row_mask:0xf bank_mask:0xf'
                e(f'v_cvt_f32_bf16_dpp v{d}, v{XG+kind} {qp}\nv_and_b32_dpp v{d+1}, v{XG+kind}, v{vMsk} {qp}')
        for i in range(4): e(f'v_pk_mul_f32 {vr(ZF+8+2*i,2)}, {vr(ZF+8+2*i,2)}, {sp(sM)} op_sel:[0,1] op_sel_hi:[1,1]')
        e('s_waitcnt lgkmcnt(0)')
        self.stats_finish(ST, vInv, pre=1/gs**2)
        HO = 104
        for r in range(2):
            for i in range(4):
                x = XF+8*r+2*i
                e(f'v_pk_fma_f32 {vr(x,2)}, {vr(x,2)}, {vr(ST+2*r,2)}, {vr(ST+2*r,2)} op_sel:[0,0,1] op_sel_hi:[1,0,1]')
            for i in range(4):
                x = XF+8*r+2*i
                e(f'v_pk_fma_f32 {vr(x,2)}, {vr(x,2)}, {vr(ZF+2*i,2)}, {vr(ZF+8+2*i,2)}')
            for i in range(4):
                x = XF+8*r+2*i
                e(f'v_cvt_pk_bf16_f32 v{HO+4*r+i}, v{x}, v{x+1}')
            for m in range(2): e(f'v_bfi_b32 v{HO+4*r+m}, s{sTm}, v{TH+m}, v{HO+4*r+m}')
            id_h = e(f'buffer_store_dwordx4 {vr(HO+4*r,4)}, v{vH2}, {SRD}, s{sT+4} offen offset:{128*r} sc1')
        self.stamp('h2_stored')
        e(f'v_mov_b32 v{GBV}, v{XG+2}')
        if F1P == 2: self.check(f1_load, [vPolled], id_f1); f1ok[0] = True
        bg('b_hack', 0, 16)
        while dq[0][0] < 3: tile_one(dq)
        e(f's_waitcnt {self.wvm(id_h)}')
        self.stamp('_h2_ack')
        bg('b_flag', 0, 0)
        X = 128
        AC = [28, 44, 60, 76]
        WE = self.opt('we', 4); LA = self.opt('la', 6); NB = 7; WF = 92; assert LA < NB
        TA, TA1 = 20, 23; GT = 120; GO = 16; X2R = 4; vP4 = 24; vPo = 25; vPo4 = 3
        P1 = self.opt('p1', 25)
        if P1 == 25:
            seq = []
            for s in range(32):
                seq += [(0, s), (1, s)]
                if s & 1: seq.append((2, s >> 1))
            seq += [(2, s) for s in range(16, 32)]
        else:
            seq = [(tl, s) for s in range(32) for tl in range(P1)] + [(tl, s) for tl in range(P1,3) for s in range(32)]
        seq += [(tl, s) for tl in range(3,7) for s in range(32)]
        slot = {0:0,1:1,2:2,3:3,4:4,5:0,6:1}
        acc = {tl: AC[tl % 4] for tl in range(7)}
        w_id = {}
        def wread(n):
            tl, s = seq[n]; sl = slot[tl]
            va = {0:1,1:1,2:vA2,3:vA2,4:vA4}[sl]
            e(f'ds_read_b128 {vr(WF+4*(n%NB),4)}, v{va} offset:{(sl&1 if sl<4 else 0)*32768 + 1024*kperm(s)}'); w_id[n] = self.nlg
        kperm = lambda s: 8*(s & 3) + (s >> 2)
        sXb = sM
        for j in range(8): e(f's_add_u32 s{sXb+j}, s{sXg}, {4096*j}')
        sAb = [76, 77, 78, 79, 80, 81, 32, 33]
        x_id = []
        def xtext(s): return f'buffer_load_dwordx4 {vr(X+4*s,4)}, v{vXa}, {SRD}, s{sXb+(kperm(s)>>2)} offen offset:{1024*(kperm(s)&3)} sc1'
        def xload(): x_id.append(e(xtext(len(x_id))))
        def xcheck(s):
            Lc = p.label('xc'); Lr = p.label('xr'); Ld = p.label('xd'); r0 = X+4*s
            body = [f'v_xor_b32 v{r0+4*j+m}, v{r0+4*j+m}, v{TX+m}' for j in range(2) for m in range(2)]
            body += [f'v_or3_b32 v13, v{r0}, v{r0+1}, v{r0+4}', f'v_bitop3_b32 v13, v13, v{r0+5}, s{sTm} bitop3:0xa8', 'v_cmp_ne_u32 vcc, 0, v13']
            def branch():
                rest = '\n'.join(xtext(j) for j in range(s+2, len(x_id)))
                self.tail.append(f'{Lr}:\ns_sub_u32 s{sCnt}, s{sCnt}, 1\ns_cbranch_scc1 L_end\n{xtext(s)}\n{xtext(s+1)}\ns_waitcnt vmcnt(0)\n' + '\n'.join(body) +
                                 f'\ns_cmp_lg_u64 vcc, 0\ns_cbranch_scc1 {Lr}\n{rest}\ns_branch {Ld}')
                e(f's_cbranch_vccnz {Lr}\n{Ld}:')
                assert self.nvm == x_id[-1] or len(x_id) == 32
                if self.nvm != x_id[-1]: self.tail[-1] = self.tail[-1].replace(f's_branch {Ld}', f's_waitcnt vmcnt(0)\ns_branch {Ld}')
            return body, branch
        XLA = self.opt('xla', 10)
        for s in range(XLA): xload()
        bg('b_x', 0, 0)
        for j in range(8): e(f's_add_u32 s{sAb[j]}, s{sActG}, {(7*(j>>1) + 4*(j&1))*1024}')
        if self.o.get('verbose'): print('tr reads left', len(trq), 'wd left', len(wdq), 'dq left', len(dq))
        e(f"""
        v_mov_b32 v124, v{vWdA}
        v_mov_b32 v{TA}, v{TH}
        v_add_u32 v13, s{sF3p}, v{vP3}
        v_mov_b32 v{TA1}, v{TH+1}
        v_and_b32 v{vP4}, {8 if NF else 0}, v0
        v_cmp_eq_u32 vcc, 0, v{vP4}
        v_and_b32 v{vP4}, 7, v0
        s_lshr_b32 s0, s{sDt}, 1
        s_lshl_b32 s1, s{sTb}, 5
        s_add_u32 s0, s0, s1
        s_lshl_b32 s0, s0, 7
        s_add_u32 s0, s0, {F3}
        v_lshl_add_u32 v{vP4}, v{vP4}, 9, s0
        v_cndmask_b32 v{vP4}, v13, v{vP4}, vcc
        s_waitcnt {self.wvm(dma_id[2])} lgkmcnt(0)
        s_barrier""")
        vW[0] = 124
        for n in range(LA): wread(n)
        xb, xbr = xcheck(0)
        e(f's_waitcnt {self.wvm(x_id[1])}\n' + '\n'.join(xb)); xbr()
        self.stamp('f2_ok')
        xq = []; xnext = 2
        f4_load = f'buffer_load_dword v{vPo4}, v{vP4}, {SRD}, 0 offen sc1'
        def gelu(tl):
            a = acc[tl]; out = []
            for hf in range(2):
                E = [a+4*hf+j for j in range(4)]
                out += [f'v_fma_f32 v{GT+j}, -v{E[j]}, v{E[j]}, s{sGk}' for j in range(4)]
                out += [f'v_mul_f32 v{GT+j}, v{GT+j}, v{E[j]}' for j in range(4)]
                for j in range(4): out += [f'v_exp_f32 v{GT+j}, v{GT+j}', f'v_mul_f32 v{E[j]+8}, v{E[j]+8}, v{E[j]}']
                for j in range(4): out += [f'v_fma_f32 v{GT+j}, v{GT+j}, s{sGs}, s{sGs}']
                for j in range(4): out += [f'v_rcp_f32 v{GT+j}, v{GT+j}']
                for j in range(4): out += [f'v_mul_f32 v{E[j]+8}, v{E[j]+8}, v{GT+j}']
                out += [f'v_cvt_pk_bf16_f32 v{GO+2*hf+j}, v{E[2*j]+8}, v{E[2*j+1]+8}' for j in range(2)]
                if hf == 0 and tl >= NF: out += [f'v_bfi_b32 v{GO+j}, s{sTm}, v{(TA,TA1)[j]}, v{GO+j}' for j in range(2)]
            out.append(f'buffer_store_dwordx4 {vr(GO,4)}, v1, {SRD}, s{sActS+(tl>>2)} offen offset:{1024*(tl&3)} sc1')
            return [(x, tl) for x in out]
        last = {tl: max(n for n, (a_, _) in enumerate(seq) if a_ == tl) for tl in range(7)}
        first = {tl: min(n for n, (a_, _) in enumerate(seq) if a_ == tl) for tl in range(7)}
        gq = []; vq = dq; st_id = {}; st_n = {}
        a_id = []; xfree = [0]; consumed = set()
        k0 = 28 - 4*len(groups[-1])
        lorder = [(kk, tt) for kk in range(k0) for tt in range(2)] + [(kk, tt) for tt in range(2) for kk in range(k0, 28)]
        NAG = 0
        def areg(kk): return ar(224+4*kk, 4) if kk < NAG else vr(X+4*((kk-NAG) % 32), 4)
        def acan():
            kk = len(a_id)
            if not checked or kk >= gend[checked-1]: return False
            return kk < NAG or (kk-NAG < xfree[0] if kk-NAG < 32 else kk-32 in consumed)
        def atext(kk):
            T, tt = korder[lorder[kk][0]], lorder[kk][1]; pp, i = divmod(T, 7)
            return f'buffer_load_dwordx4 {areg(kk)}, v{vAc1 if tt else 1}, {SRD}, s{sAb[2*pp+(i>>2)]} offen offset:{1024*(i&3)} sc1'
        def aload(): a_id.append(e(atext(len(a_id))))
        CG = self.opt('cg', 2)
        def acheck(kk):
            Lr = p.label('ar'); Ld = p.label('ad'); rs = [X+4*((kk+j) % 32)+m for j in range(CG) for m in range(2)]
            body = [f'v_xor_b32 v{r}, v{r}, v{(TA,TA1)[j&1]}' for j, r in enumerate(rs)]
            body.append(f'v_or3_b32 v{vPo}, v{rs[0]}, v{rs[1]}, v{rs[2]}')
            body += [f'v_or3_b32 v{vPo}, v{vPo}, v{rs[j]}, v{rs[j+1]}' for j in range(3, 2*CG-1, 2)]
            body += [f'v_bitop3_b32 v{vPo}, v{vPo}, v{rs[-1]}, s{sTm} bitop3:0xa8', f'v_cmp_ne_u32 vcc, 0, v{vPo}']
            def branch():
                self.tail.append(f'{Lr}:\ns_sub_u32 s{sCnt}, s{sCnt}, 1\ns_cbranch_scc1 L_end\n' + '\n'.join(atext(kk+j) for j in range(CG)) + '\ns_waitcnt vmcnt(0)\n' + '\n'.join(body) +
                                 f'\ns_cmp_lg_u64 vcc, 0\ns_cbranch_scc1 {Lr}\ns_branch {Ld}')
                e(f's_cbranch_vccnz {Lr}\n{Ld}:')
            return body, branch
        AD = self.opt('ad', 30); VISD = self.opt('visd', 26); POLD = self.opt('pold', 14)
        checked = 0; fl = {}
        gend = [sum(len(g) for g in groups[:i+1])*8 for i in range(len(groups))]
        def progress(n, force=None):
            nonlocal checked
            fo = -1 if force is None else force
            if checked == 0 and NF:
                if 'flag' in fl and 'poll' not in fl and (n >= fl['flag'] + VISD or fo >= 0):
                    fl['id'] = e(f4_load); fl['poll'] = n; return True
                if 'poll' in fl and (n >= fl['poll'] + POLD or fo >= 0):
                    self.check(f4_load, [vPo4], fl['id']); checked = 1; return True
            elif checked < len(groups) and groups[checked][-1] in st_id and (n >= st_n[groups[checked][-1]] + AD or fo >= checked):
                if fo >= checked: e(f's_waitcnt {self.wvm(st_id[groups[checked][-1]])}')
                checked += 1
            return False
        def emit_g(x, b_, n):
            i_ = e(x)
            if x.startswith('buffer_'):
                r = b_ - self.opt('x2t', 1); assert self.opt('x2t', 1) + 1 < NF or not NF
                if r in (0, 1): i_ = e(f'buffer_store_dwordx4 {vr(XR+4*r,4)}, v{vXO}, {SRD}, s{sT+5} offen offset:{1024*r} sc1')
                if r == 3 and not NF: e(f's_waitcnt {self.wvm(st_id[b_-2])}\n' + self.flag_text(vF, sF3o))
                if b_ == NF and NF: e(f's_waitcnt {self.wvm(st_id[NF-1])}\n' + self.flag_text(vF, sF3o)); fl['flag'] = n
                st_id[b_] = i_; st_n[b_] = n
        PACE = self.opt('pace', 20); nextv = [0]
        def pump(n):
            if 10*n < nextv[0]: return False
            if wd_can() and wdq[0][0] == 3: wd_one()
            elif vq and vq[0][0] == 3 and trq and trq[0][0] <= 3 and first[3] - n > 26:
                if any(x[0] == 4 for x in vq):
                    j = min(j for j, x in enumerate(vq) if x[0] == 4); tile_one([vq.pop(j)])
                else: return False
            elif wd_can() and vq and first[vq[0][0]] - n > self.opt('urg', 48): wd_one()
            elif vq: tile_one(vq)
            elif wd_can(): wd_one()
            elif acan(): aload()
            else: return False
            nextv[0] = max(nextv[0], 10*n - 10) + (PACE if not (192 <= n < 224) else self.opt('pace6', PACE))
            return True
        grate = self.opt('grate', 33); wwait = 0; aq0 = []
        for n, (tl, s) in enumerate(seq):
            if n in (1, 48, 96, 128, 160, 192): self.stamp(f'_g{n}')
            for a_ in range(6):
                if n == last[a_] + 4: gq += gelu(a_)
            if n == last[1] + 1 and n > first[3] - LA:
                e('s_barrier'); vq += [x for i in (5,6) for x in self.dma_tile(i, i-5)]
            for a_ in range(3, 7):
                if n == first[a_] - LA:
                    while any(x[0] == a_ for x in vq): tile_one(vq)
                    e(f's_waitcnt {self.wvm(dma_id[a_])}\ns_barrier')
                    if a_ == 4: wopen[0] = 4
                    if a_ == 5: wopen[0] = 6
                    if a_ == 3 and n > last[1]: vq += [x for i in (5,6) for x in self.dma_tile(i, i-5)]
            w_ = ''
            if w_id[n] > wwait:
                tgt = w_id[min(n+WE-1, len(seq)-1)]; w_ = self.wlg(tgt); wwait = tgt
            if tl == 0 and s % 2 == 0:
                while len(xq) > 1: e(xq.pop(0))
                if xq: xq.pop(0)()
            if w_: e(f's_waitcnt {w_}')
            if s == 0: assert not any(b_ == tl-4 for _, b_ in gq), (n, len(gq))
            c_ = '0' if s == 0 else vr(acc[tl],16)
            e(f'v_mfma_f32_32x32x16_bf16 {vr(acc[tl],16)}, {vr(WF+4*(n%NB),4)}, {vr(X+4*s,4)}, {c_}')
            if tl == 6: xfree[0] = s
            if n + LA < len(seq): wread(n+LA)
            budget = (grate*(n+1))//10 - (grate*n)//10
            if tl == 1 and s % 2 == 0 and s+2 < 32:
                xb, xbr = xcheck(s+2)
                e(f's_waitcnt {self.wvm(x_id[s+3])}'); xq = xb + [xbr]
            for _ in range(3):
                if len(xq) > 1: e(xq.pop(0))
            if progress(n): budget -= 2
            elif len(x_id) < 32:
                if tl == 0: xload()
                elif P1 == 3 and tl == 1 and s % 4 == 0: pump(n)
            else: pump(n)
            while gq and budget > 0:
                x, b_ = gq.pop(0); budget -= 1
                emit_g(x, b_, n)
            for _ in range(max(1, min(budget, 2))):
                if tr_ready(self.opt('trlag1', 9)): tr_pop()
            if not NF and n == len(seq) - self.opt('c6', 5) and len(a_id) >= CG:
                e(f's_waitcnt {self.wvm(a_id[CG-1])}'); b_, br_ = acheck(0); aq0 = b_ + [br_]
            for _ in range(3):
                if len(aq0) > 1: e(aq0.pop(0))
        assert not vq
        self.stamp('g1_mfma')
        n = len(seq); xfree[0] = 32
        while wdq: wd_one()
        e(f"""
        v_lshlrev_b32 v{WF}, 2, v0
        v_add_u32 v{WF}, {L_GB}, v{WF}
        ds_write_b32 v{WF}, v{GBV}""")
        while any(b_ <= 4 for _, b_ in gq):
            x, b_ = gq.pop(0); emit_g(x, b_, n)
        g6pos = len(p.text); g6 = gelu(6)
        A2 = [ar(224,16), ar(240,16), vr(AC[0],16), vr(AC[3],16)]
        a2q = lambda q_, i: ar(224+16*q_+4*i, 4) if q_ < 2 else vr(AC[3*(q_-2)]+4*i, 4)
        vRw = 12; vRr = 13; vG = 14
        fill = f"""v_bfe_u32 v{WF}, v0, 5, 1
        v_and_b32 v{WF+1}, 0x1f0, v1
        s_mul_i32 s{sT}, s{sW}, {4*RQ}
        s_add_u32 s{sT}, s{sT}, {L_RED}
        v_mul_u32_u24 v{WF}, {RQ}, v{WF}
        v_add3_u32 v{vRw}, v{WF}, v{WF+1}, s{sT}
        v_and_b32 v{WF}, 7, v0
        v_lshrrev_b32 v{WF+1}, 3, v0
        v_mul_u32_u24 v{WF+2}, {RSA}, v{WF}
        v_lshl_add_u32 v{vRr}, v{WF+1}, 4, v{WF+2}
        v_add_u32 v{vRr}, {L_RED}, v{vRr}
        s_lshl_b32 s{sT}, s{sDt}, 7
        s_add_u32 s{sT}, s{sT}, {L_GB}
        v_lshl_add_u32 v{vG}, v{WF}, 4, s{sT}
        s_add_u32 s{sT+2}, s{pOut}, 32768
        s_addc_u32 s{sT+3}, s{pOut+1}, 0""".split('\n')
        fill[-2:] = ['\n'.join(fill[-2:])]
        XF2 = 96
        fill2 = [x for tt in range(2) for j in range(4) for x in self.unpack(XF2+8*tt+2*j, X2R+4*tt+j)]
        TAILK = self.opt('tailk', 6)
        o2 = [(kk, tt, c) for kk in range(28-TAILK) for tt in range(2) for c in range(2)]
        o2 += [(kk, tt, c) for tt in range(2) for c in range(2) for kk in range(28-TAILK, 28)]
        PACE = self.opt('pace2', 18)
        wq = []; twait = 0; await_ = 0; X2M = self.opt('x2m', 50); used = {}
        GF = 112; vRr2 = 15; OO = [16, 4]
        def redw(q_): return [f'ds_write_b128 v{vRw}, {a2q(q_, i)} offset:{2*RQ*(q_>>1)+(4*(q_&1)+i)*RSA}' for i in range(4)]
        RDS = [AC[1], 128]
        r_id = {}
        def redr(tt):
            for hs in range(2):
                for w in range(4):
                    e(f'ds_read_b128 {vr(RDS[tt]+16*hs+4*w,4)}, v{vRr if w<2 else vRr2} offset:{(4*(w&1)+2*tt+hs)*RQ}')
                r_id[(tt, hs)] = self.nlg
        def redm(tt):
            out = []
            for hs in range(2):
                r = RDS[tt]+16*hs
                out.append(('w', (tt, hs)))
                for hh in range(2):
                    out += [f'v_pk_add_f32 {vr(r+2*hh,2)}, {vr(r+2*hh,2)}, {vr(r+4+2*hh,2)}', f'v_pk_add_f32 {vr(r+8+2*hh,2)}, {vr(r+8+2*hh,2)}, {vr(r+12+2*hh,2)}']
                out += [f'v_pk_add_f32 {vr(r+2*hh,2)}, {vr(r+2*hh,2)}, {vr(r+8+2*hh,2)}' for hh in range(2)]
                out += [f'v_pk_fma_f32 {vr(r+2*hh,2)}, {vr(r+2*hh,2)}, {vr(GF+4*hs+2*hh,2)}, {vr(XF2+8*tt+4*hs+2*hh,2)}' for hh in range(2)]
                out += [f'v_cvt_pk_bf16_f32 v{OO[tt]+2*hs+hh}, v{r+2*hh}, v{r+2*hh+1}' for hh in range(2)]
            out.append(f'global_store_dwordx4 v{vX2}, {vr(OO[tt],4)}, {sp(pOut) if tt==0 else sp(sT+2)} {self.opt("outflag","sc1").replace("_"," ").replace("none","")}')
            return out
        def emit_m(x):
            if isinstance(x, tuple): e(f's_waitcnt {self.wlg(r_id[x[1]])}')
            else: e(x)
        fill.append(f'v_add_u32 v{vRr2}, {8*RQ}, v{vRr}')
        fill2.append(f's_mov_b32 s{sGk}, {fbits(2.0**64*(1+self.opt("perturb", 0)/1000))}')
        states = lambda pos: sum(hazard.I(l).states() for l in p.text[pos:])
        wdone = 0; barA = False; aq = aq0; achk = 8*NF; anext = achk + (CG if aq0 else 0)
        firstm = {}
        for m_, (kk, tt, c) in enumerate(o2): firstm.setdefault(lorder.index((kk, tt)), m_)
        for m_, (kk, tt, c) in enumerate(o2):
            f = lorder.index((kk, tt)); T = korder[kk]; q_ = 2*tt + c
            if m_ in (0, 28, 56, 84): self.stamp(f'_h{m_//2}')
            if m_ == X2M - 20 and not NF: id_f4 = e(f4_load)
            if m_ == X2M:
                assert checked
                if not NF:
                    while len(aq) > 1: e(aq.pop(0))
                    if aq: aq.pop(0)(); achk = anext
                    self.check(f4_load, [vPo4], id_f4)
                id_x2l = e(f's_mov_b32 s0, {X2}\nbuffer_load_dwordx4 {vr(X2R,4)}, v{vX2}, {SRD}, s0 offen sc1\ns_mov_b32 s0, {X2+32768}\nbuffer_load_dwordx4 {vr(X2R+4,4)}, v{vX2}, {SRD}, s0 offen sc1')
            if m_ == 76:
                e(f's_waitcnt {self.wvm(id_x2l)}'); fill += fill2
            while len(a_id) <= f:
                g = min(i for i in range(len(groups)) if gend[i] > len(a_id))
                while groups[g][-1] not in st_id:
                    if not gq: gq += g6; g6 = []
                    x, b_ = gq.pop(0); emit_g(x, b_, n)
                while checked <= g: progress(n, force=g)
                assert acan()
                aload()
            ahead = max(lorder.index((k2, t2)) for k2, t2, _ in o2[m_:m_+2*self.opt('amin', 12)])
            for _ in range(8 if len(a_id) <= f+2 else 2):
                if acan() and len(a_id) <= ahead: aload(); nextv[0] = 10*n + PACE
            while any(T_ == T for _, T_, _ in trq): tr_pop()
            if m_ == 64:
                while trq: tr_pop()
                e(f's_waitcnt {self.wlg(g_last[6])}\ns_barrier'); twait = g_last[6]
            while achk < f + 1:
                if not aq:
                    while len(a_id) < anext + CG: aload()
                    e(f's_waitcnt {self.wvm(a_id[anext+CG-1])}'); b_, br_ = acheck(anext); aq = b_ + [br_]; anext += CG
                while len(aq) > 1: e(aq.pop(0))
                aq.pop(0)(); achk = anext
            w_ = ''
            if f < 8*NF and a_id[f] > await_:
                f2_ = min(f | 1, len(a_id)-1); w_ = self.wvm(a_id[f2_]); await_ = a_id[f2_]
            if t_id.get(T, 0) > twait: w_ += ' ' + self.wlg(t_id[T]); twait = t_id[T]
            if w_: e(f's_waitcnt {w_}')
            e(f'v_mfma_f32_32x32x16_bf16 {A2[q_]}, {ar(8*T+4*c,4)}, {areg(f)}, {"0" if kk==0 else A2[q_]}')
            n += 1
            used[f] = used.get(f, 0) + 1
            if kk == 27 and q_ < 3: wq.append((len(p.text), redw(q_)))
            if not progress(n): pump(n)
            if used[f] == 2: consumed.add(f)
            if len(aq) == 1: aq.pop(0)(); achk = anext
            elif not aq and anext < 56 and len(a_id) >= anext + CG and firstm[anext] <= m_ + self.opt('clead', 6):
                e(f's_waitcnt {self.wvm(a_id[anext+CG-1])}'); b_, br_ = acheck(anext); aq = b_ + [br_]; anext += CG
            for _ in range(self.opt('crate', 3)):
                if len(aq) > 1: e(aq.pop(0))
            if g6 and states(g6pos) >= 12: gq += g6; g6 = []
            if gq:
                for _ in range(self.opt('grate2', 5)):
                    if gq:
                        x, b_ = gq.pop(0); emit_g(x, b_, n)
                if tr_ready(8): tr_pop()
                continue
            if wq:
                if states(wq[0][0]) < 12: e(f's_nop {min(4, 11-states(wq[0][0]))}')
                if states(wq[0][0]) >= 12:
                    e(wq[0][1].pop(0))
                    if not wq[0][1]: wq.pop(0); wdone += 1; wlast = self.nlg
                continue
            if wdone >= 2 and not barA and self.opt('tsplit', 1):
                e(f's_waitcnt {self.wlg(wlast)}\ns_barrier\nds_read_b128 {vr(GF+8,4)}, v{vG}'); g_id = self.nlg; barA = True
                redr(0); continue
            for _ in range(self.opt('trate', 2) - c):
                if tr_ready(8): tr_pop()
            for _ in range(2):
                if fill: e(fill.pop(0))
        assert not fill and not trq and not gq and not g6
        self.stamp('g2_mfma')
        lastpos = len(p.text)
        for _, ws_ in wq:
            for x in ws_: e(x)
        if not barA and self.opt('tsplit', 1):
            e(f's_waitcnt lgkmcnt(0)\ns_barrier\nds_read_b128 {vr(GF+8,4)}, v{vG}'); g_id = self.nlg; barA = True
            redr(0)
        gun = [x for j in range(4) for x in self.unpack(GF+2*j, GF+8+j)]
        gun += [f'v_pk_mul_f32 {vr(GF+2*j,2)}, {vr(GF+2*j,2)}, {sp(sGk)} op_sel_hi:[1,0]' for j in range(4)]
        if barA:
            for x in redw(3): e(x)
            wlast = self.nlg
            e(f's_waitcnt {self.wlg(g_id)}')
            for x in gun + redm(0): emit_m(x)
            e(f's_waitcnt lgkmcnt(0)\ns_barrier')
            redr(1)
            for x in redm(1): emit_m(x)
        else:
            for x in redw(3): e(x)
            e(f's_waitcnt lgkmcnt(0)\ns_barrier\nds_read_b128 {vr(GF+8,4)}, v{vG}'); g_id = self.nlg
            redr(0); redr(1)
            e(f's_waitcnt {self.wlg(g_id)}')
            for x in gun + redm(0) + redm(1): emit_m(x)
        self.stamp('end')
        e(f'''
        s_or_b32 s0, s{sL}, s{sW}
        s_cbranch_scc1 L_noep''')
        e(self.flag_text(vF, 0))
        e('L_noep:')
        if self.stamps:
            e(f'''
            s_lshl2_add_u32 s{sT}, s{sL}, s{sW}
            s_lshl_b32 s{sT}, s{sT}, 7
            s_add_u32 s{sT}, s{sT}, {STMP}
            v_mov_b32 v4, 0
            s_mov_b64 exec, 1''')
            for i in range(self.ns):
                e(f'v_mov_b32 v5, s{sStamp+i}\nbuffer_store_dword v5, v4, {SRD}, s{sT} offen offset:{4*i}')
            e(f'v_mov_b32 v5, s{sCnt}\nbuffer_store_dword v5, v4, {SRD}, s{sT} offen offset:124')
        if self.o.get('probe') is not None:
            kk = self.stamp_names.index(self.o['probe'])
            e(f'''
            s_add_u32 s{sT}, s{sStamp+kk}, 5000
            L_spin:
            s_sleep 1
            s_memrealtime s[22:23]
            s_waitcnt lgkmcnt(0)
            s_sub_u32 s{sT+1}, s22, s{sT}
            s_cmp_lt_i32 s{sT+1}, 0
            s_cbranch_scc1 L_spin''')
        e('s_endpgm')
        for x in self.tail: e(x)
        e('L_end:\ns_endpgm')
        p.end(k, vgpr=256, agpr=256, sgpr=102)
        p.text, added = hazard.fix(p.text, verbose=self.o.get('verbose'))
        hazard.check_global_addresses(p.text, sp(sM+4))
        if self.opt('align', 6):
            p.text, nw, nn = align.fix(p.text, self.opt('align', 6))
            if self.o.get('verbose'): print('align: widened', nw, 'nops', nn)
        p.text += ['.p2align 8', 'L_tab:'] + ['.long ' + ', '.join(hex(v) for v in self.table[i:i+16]) for i in range(0, len(self.table), 16)]
        return added

if __name__ == '__main__':
    ap = argparse.ArgumentParser()
    ap.add_argument('out'); ap.add_argument('--stamps', action='store_true'); ap.add_argument('-v', action='store_true')
    ap.add_argument('--probe', default=None); ap.add_argument('-o', action='append', default=[])
    a = ap.parse_args()
    opts = dict(verbose=a.v, probe=a.probe)
    for kv in a.o:
        kk, vv = kv.split('='); opts[kk] = int(vv) if vv.lstrip('-').isdigit() else vv
    g = G(a.stamps or a.probe is not None, opts)
    added = g.build()
    g.p.dump(a.out, single=True)
    n = sum(1 for l in g.p.text if l.startswith('  '))
    print(a.out, 'instructions', n, 'nops added', added, 'stamps', g.stamp_names)
    if a.stamps: open(a.out + '.names', 'w').write(' '.join(g.stamp_names))
```

```python
import sys, struct, argparse
from asmlib import Prog, NAME
import hazard, align

def fbits(x): return '0x%08x' % struct.unpack('<I', struct.pack('<f', x))[0]

F1   = 0x0C0000
F2   = 0x020000
F3   = 0x040000
F3S  = 0x020000
MODP = 0x0E0000
MX   = 0x008000
TAGZ = 0x40004000
HBLK = 8448
TAGM = 0x70007000
XH   = 0x160000
ZY   = 0x380000
H2   = 0x5A0000
X2   = 0x7A0000
WGU  = 0x9A0000
ACT  = 0xD20000
STMP = 0x3000000
WS_BYTES = 0x10000000
S4   = 131072
L_U  = S4; USZ = 4608
L_P  = S4 + 2*USZ; PSZ = 4288
L_ZB = L_P + 2*PSZ
L_JK = L_ZB + 1024
L_BD = L_P + 12288
L_SB = L_BD + 1024
L_Y  = 98304
L_MB = 98304
RST  = 544
L_RC = 0; RCSZ = 54*RST
L_RED = 65536; RSA = 576; RQ = 8*RSA
L_GB = L_RED + 16*RQ
LDS_BYTES = 163840
pX,pAre,pAim,pBre,pBim,pCre,pCim,pLdt = 4,6,8,10,12,14,16,18
pD,pWg,pWu,pWd,pC,pWm,pOut,pWs = 20,24,26,28,30,32,34,38
SRD='s[40:43]'
sL,sW,sTag,sMask,sCnt = 44,45,46,47,48
sLo,sHi = 49,50
sOnes = 51
sMt,sNt,sTb,sDt = 52,53,54,55
sBad = 56
sT = 58
sM = 68
sDsk = 80
sStamp = 82
sDmaL, sDmaG, sDmaT = 36, 5, 6
sActG, sActT = 9, 10
sActS = 12
sF3o, sF3p = 14, 15
sXg = 16
sCh, sHb = 17, 18
sE1 = 4
sZs = 10
sTm = 25
sWs, sF1o = 14, 24
def sp(i): return f's[{i}:{i+1}]'
def vr(i, n): return f'v[{i}:{i+n-1}]'
def ar(i, n): return f'a[{i}:{i+n-1}]'

class G:
    def __init__(self, stamps=False, opts=None):
        self.p = Prog(); self.stamps = stamps; self.ns = 0; self.o = opts or {}
        self.stamp_names = []; self.nvm = 0; self.nlg = 0; self.tail = []; self.maybe = False; self.m0 = None
    def opt(self, k, d): return self.o.get(k, d)
    def e(self, s):
        for line in s.split('\n'):
            l = line.strip()
            if not l: continue
            if l.startswith(('buffer_', 'global_')) and not self.maybe: self.nvm += 1
            if l.startswith('ds_') and not self.maybe: self.nlg += 1
            self.p.e(l)
        return self.nvm
    def wvm(self, i): return f'vmcnt({min(62, self.nvm - i)})'
    def wlg(self, i): return f'lgkmcnt({min(14, self.nlg - i)})'
    def stamp(self, name):
        if self.opt('jitter', 0) and name in ('x_arrived','_wm','kgen2','u_ready','_c54','conv','z_ok','_ln2bar','f2_ok','_g96','_g160','g1_mfma','_h14','_h42'):
            L = self.p.label('jit'); self.jn = getattr(self, 'jn', 0) + 1
            self.e(f'''s_lshl2_add_u32 s22, s2, s{sW}
            s_add_u32 s22, s22, {self.jn*977 + self.opt('jitter', 0)*131}
            s_mul_i32 s22, s22, 0x9E3779B1
            s_lshr_b32 s23, s22, 15
            s_xor_b32 s22, s22, s23
            s_mul_i32 s22, s22, 0x85EBCA6B
            s_lshr_b32 s22, s22, 27
            s_cmp_lg_u32 s22, 0
            s_cbranch_scc1 {L}
            s_sleep 100
            {L}:''')
        if not self.stamps: return
        if self.o.get('probe') is not None and name != self.o['probe']: return
        if self.o.get('only') and not (name == 'start' or name.startswith(tuple(self.o['only'].split(',')))): return
        if not self.o.get('only') and self.o.get('probe') is None and name.startswith('_'): return
        assert self.ns < 20
        self.e(f'{"s_memtime" if self.opt("cyc", 0) else "s_memrealtime"} s[22:23]\ns_waitcnt lgkmcnt(0)\ns_mov_b32 s{sStamp+self.ns}, s22')
        self.ns += 1; self.stamp_names.append(name)

    def check_text(self, loads, tags, last):
        Lc = self.p.label('chk'); Lr = self.p.label('retry')
        s = f's_waitcnt {self.wvm(last)}\n{Lc}:\n'
        if len(tags) == 1:
            s += f'v_cmp_ne_u32 vcc, v{tags[0]}, v2\ns_cmp_lg_u64 vcc, 0\ns_cbranch_scc1 {Lr}'
            self.tail.append(f'''{Lr}:
            s_sub_u32 s{sCnt}, s{sCnt}, 1
            s_cbranch_scc1 L_end
            {loads}
            s_waitcnt vmcnt(0)
            s_branch {Lc}''')
        else:
            s += f'v_cmp_ne_u32 {sp(sBad)}, v{tags[0]}, v2\n'
            for t in tags[1:]: s += f'v_cmp_ne_u32 vcc, v{t}, v2\ns_or_b64 {sp(sBad)}, {sp(sBad)}, vcc\n'
            s += f's_cbranch_scc1 {Lr}'
            self.tail.append(f'''{Lr}:
            s_sub_u32 s{sCnt}, s{sCnt}, 1
            s_cbranch_scc1 L_end
            s_mov_b64 exec, {sp(sBad)}
            {loads}
            s_mov_b64 exec, -1
            s_waitcnt vmcnt(0)
            s_branch {Lc}''')
        return s
    def check(self, loads, tags, last): self.e(self.check_text(loads, tags, last))

    def flag_text(self, vaddr, soff):
        return f's_mov_b32 exec_hi, 0\nbuffer_store_dword v2, v{vaddr}, {SRD}, s{soff} offen sc1\ns_mov_b32 exec_hi, -1'

    def stats_partial(self, src, t, vSBw, fill=()):
        a,b,c,d = t,t+1,t+2,t+3
        for m in range(4):
            acc = lambda r: '0' if m == 0 else f'v{r}'
            self.e(f'''v_dot2_f32_bf16 v{a}, v{src+m}, s{sOnes}, {acc(a)}
            v_dot2_f32_bf16 v{b}, v{src+4+m}, s{sOnes}, {acc(b)}
            v_dot2_f32_bf16 v{c}, v{src+m}, v{src+m}, {acc(c)}
            v_dot2_f32_bf16 v{d}, v{src+4+m}, v{src+4+m}, {acc(d)}''')
        self.reduce4(a,b,c,d, fill)
        self.e(f'ds_write_b32 v{vSBw}, v{a}')
    def reduce4(self, a,b,c,d, fill=()):
        fill = list(fill)
        def f(n):
            for _ in range(n):
                if fill: self.e(fill.pop(0))
        f(2); self.e(f'v_permlane32_swap_b32 v{a}, v{b}\nv_permlane32_swap_b32 v{c}, v{d}\nv_add_f32 v{a}, v{a}, v{b}\nv_add_f32 v{c}, v{c}, v{d}')
        f(2); self.e(f'v_permlane16_swap_b32 v{a}, v{c}\nv_add_f32 v{a}, v{a}, v{c}')
        f(2); self.e(f'v_add_f32_dpp v{a}, v{a}, v{a} row_ror:4 row_mask:0xf bank_mask:0xf')
        f(2); self.e(f'v_add_f32_dpp v{a}, v{a}, v{a} row_ror:8 row_mask:0xf bank_mask:0xf')
        self.rest = fill
    def stats_read(self, t, vSBr):
        for w in range(4): self.e(f'ds_read_b128 {vr(t+4*w,4)}, v{vSBr} offset:{16*w}')
        return self.nlg
    def stats_finish(self, t, vInv, scale=None, pre=None):
        self.e(f'''
        v_pk_add_f32 {vr(t,2)}, {vr(t,2)}, {vr(t+4,2)}
        v_pk_add_f32 {vr(t+2,2)}, {vr(t+2,2)}, {vr(t+6,2)}
        v_pk_add_f32 {vr(t+8,2)}, {vr(t+8,2)}, {vr(t+12,2)}
        v_pk_add_f32 {vr(t+10,2)}, {vr(t+10,2)}, {vr(t+14,2)}
        v_pk_add_f32 {vr(t,2)}, {vr(t,2)}, {vr(t+8,2)}
        v_pk_add_f32 {vr(t+2,2)}, {vr(t+2,2)}, {vr(t+10,2)}
        v_pk_mul_f32 {vr(t+4,2)}, {vr(t,2)}, {vr(vInv,2)} op_sel_hi:[1,0]
        v_pk_mul_f32 {vr(t+6,2)}, {vr(t+2,2)}, {vr(vInv,2)} op_sel_hi:[1,0]
        v_fma_f32 v{t+5}, -v{t+4}, v{t+4}, v{t+5}
        v_fma_f32 v{t+7}, -v{t+6}, v{t+6}, v{t+7}
        v_max_f32 v{t+5}, 0, v{t+5}
        v_max_f32 v{t+7}, 0, v{t+7}
        {f'v_fmamk_f32 v{t+5}, v{t+5}, {fbits(pre)}, v{vInv+1}' if pre else f'v_add_f32 v{t+5}, v{vInv+1}, v{t+5}'}
        {f'v_fmamk_f32 v{t+7}, v{t+7}, {fbits(pre)}, v{vInv+1}' if pre else f'v_add_f32 v{t+7}, v{vInv+1}, v{t+7}'}
        v_rsq_f32 v{t}, v{t+5}
        v_rsq_f32 v{t+2}, v{t+7}''')
        if scale: self.e(f'v_mul_f32 v{t}, {fbits(scale)}, v{t}\nv_mul_f32 v{t+2}, {fbits(scale)}, v{t+2}')
        self.e(f'''
        v_mul_f32 v{t+1}, -v{t+4}, v{t}
        v_mul_f32 v{t+3}, -v{t+6}, v{t+2}''')
    def cmul(self, d, a, b):
        return [f'v_pk_mul_f32 {vr(d,2)}, {vr(a,2)}, {vr(b,2)} op_sel_hi:[1,0]',
                f'v_pk_fma_f32 {vr(d,2)}, {vr(a,2)}, {vr(b,2)}, {vr(d,2)} op_sel:[1,1,0] op_sel_hi:[0,1,1] neg_lo:[1,0,0]']
    def unpack(self, d, s): return [f'v_lshlrev_b32 v{d}, 16, v{s}', f'v_and_b32 v{d+1}, s{sMask}, v{s}']

    def dma_tile(self, i, slot):
        return [(i, slot, slot*32768 + hf*4096, i*32768 + hf*4096,
                 f'buffer_load_dwordx4 v1, {SRD}, s{sDmaT} offen offset:{e_*1024} sc1 lds') for hf in range(2) for e_ in range(4)]
    def set_m0(self, off):
        if self.m0 != off: self.e(f's_add_u32 m0, s{sDmaL}, {off}'); self.m0 = off

    def build(self):
        p = self.p; e = self.e
        k = NAME + '_kernel'
        p.add_launch(k, 256, 256, LDS_BYTES)
        p.begin(k)
        XR = 4; WM = 12; AB = 28; WG = 36
        vXO = 3; t = 68
        vTg = 252; vWgL = 35; vTab = 97; vPf = 255; vInv = 52; vDt = 34; vS = 54; vPolled = 123; vMBw = 79
        vSBw, vSBr, vMBr, vEM = 112, 113, 114, 115
        vRW, vKa, vKb0, vKb1 = 116, 117, 118, 119
        vWgS, vTw, vTr, vF = 124, 125, 126, 127
        vEX, vWdA, vBv, vOne = 64, 65, 66, 67
        vKw0, vKw1, vBd, vBd2 = 120, 121, 122, 123
        vPA, vPX, vQ, vUS = 56, 57, 58, 59
        vYw, vYr, vUB, vUw = 60, 61, 62, 63
        TP = 160; TB = 98304
        def consts(tid):
            w, l = tid >> 6, tid & 63; ch, hb = w >> 1, w & 1; c, q_, rp = l & 15, l >> 4, l & 3
            P = L_P + ch*PSZ; U = L_U + ch*USZ; RC = L_RC + ch*RCSZ
            lo, wd = [(3,3),(6,5),(5,7),(4,9)][w]
            x = l - 16 - lo
            band = (0x3f80 if 0 <= x < wd else 0) | (0x3f800000 if 0 <= x-1 < wd else 0)
            if c < 8: kw1 = P + 4*(608 + 16*[1,5,2,6,10,11,12,13][c] + 8*hb + 2*q_)
            elif 120 <= (tid & 127) < 125: kw1 = P + 4*((520 if c < 11 else 568) + c) - 932
            else: kw1 = L_JK
            sw = (((l >> 1) & 3) ^ q_) * 16
            full = [(tid >> 2)*HBLK + rp*16, (448*w + 16*((l>>4)&1) + 4*((l>>2)&3))*1024 + (l>>5)*64 + (l&3)*16, band, 0x3f800000 if q_ == 2 else 0]
            half = {vSBw: L_SB + rp*64 + w*16 + q_*4, vSBr: L_SB + rp*64,
              vMBr: L_MB + 4*(192*((l>>1)&1) + 2*(8*w + ((l>>2)&7)) + (l&1)), vMBw: L_MB + 32*tid,
              vRW: RC + 4*(tid & 127), vKa: RC + (16*hb + c)*RST + 16*q_,
              vKb0: RC + [0,1,2,3,4,5,6,7,8,8,9,10,10,10,11,12][c]*RST + 16*q_, vKb1: RC + [1,2,3,4,5,6,7,8,0,0,0,4,4,0,0,0][c]*RST + 16*q_,
              vF: 4*l, vTr: w*8192 + (l>>5)*256 + ((l>>2)&3)*64 + ((l>>4)&1)*32 + (l&3)*8,
              vEM: (l >> 2)*2048 + rp*16, vWgS: q_*512 + c*16,
              vKw0: P + 64 + 512*hb + 4*((c&7) + 256*(c>>3) + 32*q_), vKw1: kw1,
              vBd: L_BD + 4*(26 + c - 8*q_), vBd2: L_BD + 4*(26 + c - 8*q_) + 256*hb,
              vPA: P + 512*hb + 4*(26 + c - 8*q_), vPX: (P + 2048 if hb == 0 else L_ZB) + 4*(26 + c - 8*q_),
              vQ: P + 4*(608 + 12 + c - 4*q_) + 928*hb, vUS: U + 32*c + 16*q_ + 480 - 16*hb,
              vYw: L_Y + w*8192 + c*64 + sw, vYr: L_Y + (tid >> 2)*64 + (((rp >> 1) ^ ((tid >> 3) & 3))*16) + (rp & 1)*8, vUB: U + 32*c + 16*q_ + 288 - 256*hb, vUw: L_U + 512 + 4*tid}
            return full, half
        hregs = list(consts(0)[1]); assert len(hregs) == 24
        hbase = {r: (TB if consts(0)[1][r] >= TB else 0) for r in hregs}
        def trow(tid):
            full, half = consts(tid)
            h = [half[r] - hbase[r] for r in hregs]; assert all(0 <= v < 65536 for v in h)
            return [h[2*i] | h[2*i+1] << 16 for i in range(12)] + full
        self.table = [v for qd in range(4) for tid in range(256) for v in trow(tid)[4*qd:4*qd+4]]
        def tunpack():
            out = []
            for i, r in enumerate(hregs):
                b_ = f's{sT+9}' if hbase[r] else '0'
                out.append(f'v_add_u32_sdwa v{r}, {b_}, v{TP+(i>>1)} dst_sel:DWORD dst_unused:UNUSED_PAD src0_sel:DWORD src1_sel:WORD_{i&1}')
            return out
        MAP2 = self.opt('map2', 84)
        NF = self.opt('nf', 0)
        groups = ([tuple(range(NF))] if NF else []) + [(i,) for i in range(NF, 7)]
        korder = [7*pp + i for g in groups for pp in range(4) for i in g]
        wslot = [int(c) for c in str(self.opt('wslot', 'x0123232'))[1:]]
        wdq = [(Gl, jh, c) for Gl in range(7) for jh in range(2) for c in range(4)]
        trq = [(Gl, 4*Gl+c, f'ds_read_b64_tr_b16 {ar(8*(4*Gl+c)+4*cc+2*jh,2)}, v{vTw if wslot[Gl] >= 2 else vTr} offset:{(wslot[Gl]&1)*32768 + jh*4096 + c*1024 + cc*512}')
               for Gl in range(7) for c in range(4) for cc in range(2) for jh in range(2)]
        wd_id = {}; t_id = {}; g_last = {}; wopen = [-1]; trw = [0]; vW = [vWdA]; freed = set()
        def tr_ready(lag): return trq and trq[0][0] in wd_id and wd_id[trq[0][0]] <= self.nvm - lag
        def tr_pop():
            Gl, T, x = trq.pop(0)
            while Gl not in wd_id: wd_one()
            if wd_id[Gl] > trw[0]: trw[0] = wd_id[Gl]; e(f's_waitcnt {self.wvm(trw[0])}')
            e(x); t_id[T] = g_last[Gl] = self.nlg
        def free_slot(sl, upto):
            for Gl in range(upto):
                if wslot[Gl] == sl and Gl not in freed:
                    while trq and trq[0][0] <= Gl: tr_pop()
                    e(f's_waitcnt {self.wlg(g_last[Gl])}'); freed.add(Gl)
        def wd_can():
            if not wdq or wdq[0][0] > wopen[0]: return False
            Gl = wdq[0][0]
            return all(G2 in freed or (G2 in g_last and (not trq or trq[0][0] > G2)) for G2 in range(Gl) if wslot[G2] == wslot[Gl])
        def wd_one():
            Gl, jh, c = wdq.pop(0); assert Gl <= wopen[0], Gl
            free_slot(wslot[Gl], Gl)
            self.set_m0(wslot[Gl]*32768 + jh*4096)
            if c == 0 and (Gl or jh): e(f'v_add_u32 v{vW[0]}, 32768, v{vW[0]}')
            i_ = e(f'global_load_lds_dwordx4 v{vW[0]}, {sp(pWd)} offset:{1024*c}')
            if c == 3 and jh == 1: wd_id[Gl] = i_
        def wd_issue(n):
            for _ in range(n):
                if wd_can(): wd_one()
        dma_id = {}; gcur = [None]
        def tile_one(q_):
            i, sl, off, go, x = q_.pop(0)
            free_slot(sl, 4 if i <= 4 else 0)
            self.set_m0(off)
            if gcur[0] != go: e(f's_add_u32 s{sDmaT}, s{sDmaG}, {go}'); gcur[0] = go
            dma_id[i] = e(x)
        def tr_do(n):
            for _ in range(4*n):
                if tr_ready(self.opt('trlag', 6)): tr_pop()
        if self.stamps and self.o.get('probe') is None:
            e(f'{"s_memtime" if self.opt("cyc", 0) else "s_memrealtime"} s[{sStamp}:{sStamp+1}]'); self.ns += 1; self.stamp_names.append('start')
        XF1 = self.opt('xfirst', 0)
        if XF1:
            e(f"""
            s_load_dwordx2 {sp(sBad)}, s[0:1], 0
            s_cmp_ge_u32 s2, 256
            s_cbranch_scc1 L_end
            s_lshr_b32 s3, s2, 3
            s_and_b32 s{sT+1}, s2, 7
            s_lshl_b32 s{sL}, s{sT+1}, 5
            s_or_b32 s{sL}, s{sL}, s3
            v_and_b32 v{t+2}, 3, v0
            v_and_b32 v{t+3}, 0xfc, v0
            s_lshl_b32 s{sT+3}, s{sL}, 13
            v_lshl_add_u32 v{t+3}, v{t+3}, 2, s{sT+3}
            v_lshl_add_u32 v{vXO}, v{t+2}, 11, v{t+3}
            s_waitcnt lgkmcnt(0)
            global_load_dwordx4 {vr(XR,4)}, v{vXO}, {sp(sBad)}""")
            id_x = e(f'global_load_dwordx4 {vr(XR+4,4)}, v{vXO}, {sp(sBad)} offset:1024')
        e(f"""
        s_load_dwordx16 s[4:19], s[0:1], 0
        s_load_dwordx16 s[20:35], s[0:1], 64
        s_load_dwordx4 s[36:39], s[0:1], 128
        s_cmp_ge_u32 s2, 256
        s_cbranch_scc1 L_end
        v_lshrrev_b32 v{t}, 6, v0
        v_and_b32 v{t+1}, 63, v0
        v_readfirstlane_b32 s{sW}, v{t}
        s_lshr_b32 s3, s2, 3
        s_getpc_b64 {sp(sM)}
        L_pc:
        s_lshl2_add_u32 s{sT}, s3, s{sW}
        s_lshl_b32 s{sM+2}, s{sT}, 8
        s_min_u32 s{sM+2}, s{sM+2}, L_end-L_pc-256
        v_lshl_add_u32 v{t+7}, v{t+1}, 2, s{sM+2}
        global_load_dword v123, v{t+7}, {sp(sM)}
        s_add_u32 s{sM+4}, s{sM}, L_tab-L_pc+4096
        s_addc_u32 s{sM+5}, s{sM+1}, 0
        v_lshlrev_b32 v{vTab}, 4, v0""")
        id_tab = e(f"""
        global_load_dwordx4 {vr(TP,4)}, v{vTab}, {sp(sM+4)} offset:-4096
        global_load_dwordx4 {vr(TP+4,4)}, v{vTab}, {sp(sM+4)}
        v_add_u32 v{vTab}, 8192, v{vTab}
        global_load_dwordx4 {vr(TP+8,4)}, v{vTab}, {sp(sM+4)} offset:-4096
        global_load_dwordx4 {vr(vEX,4)}, v{vTab}, {sp(sM+4)}""")
        e(f"""
        s_and_b32 s{sT+1}, s2, 7
        s_lshl_b32 s{sL}, s{sT+1}, 5
        s_or_b32 s{sL}, s{sL}, s3
        v_lshlrev_b32 v1, 4, v{t+1}
        v_and_b32 v{t+2}, 3, v0
        v_and_b32 v{t+3}, 0xfc, v0
        s_lshl_b32 s{sT+3}, s{sL}, 13
        v_lshl_add_u32 v{t+3}, v{t+3}, 2, s{sT+3}
        v_lshl_add_u32 v{vXO}, v{t+2}, 11, v{t+3}
        v_lshrrev_b32 v{t+4}, 3, v{t+1}
        v_min_u32 v{t+4}, 5, v{t+4}
        v_and_b32 v{t+5}, 0x70, v1
        v_lshl_add_u32 v{t+4}, v{t+4}, 10, v{t+5}
        s_lshl_b32 s{sT+2}, s{sT}, 3
        s_mul_i32 s{sT}, s{sT}, {4*6144}
        s_lshl_b32 s{sT+1}, s{sT+1}, 7
        s_add_u32 s{sT}, s{sT}, s{sT+1}
        s_add_u32 s{sT}, s{sT}, 3072
        v_add_u32 v{t+4}, s{sT}, v{t+4}
        v_add_u32 v{t+5}, 12288, v{t+4}
        s_lshl_b32 s{sT}, s{sL}, 9
        v_lshl_add_u32 v{t+6}, v0, 1, s{sT}
        s_lshl_b32 s{sT+3}, s{sL}, 2
        """)
        for i in range(6): e(f'v_mov_b32 v{AB+i}, 0')
        e('s_waitcnt lgkmcnt(0)')
        self.stamp('karg')
        e(f"""
        s_load_dwordx2 {sp(sT+4)}, {sp(pC)}, s{sT+2}""")
        if not XF1: id_x = e(f'global_load_dwordx4 {vr(XR,4)}, v{vXO}, {sp(pX)}\nglobal_load_dwordx4 {vr(XR+4,4)}, v{vXO}, {sp(pX)} offset:1024')
        id_ep = e(f"""
        s_load_dword s{sT+6}, {sp(pLdt)}, s{sT+3}
        s_load_dword s{sDsk+1}, {sp(pD)}, s{sT+3}
        global_load_dword v2, v{AB}, {sp(pWs)} sc1""")
        for i, ptr in enumerate([pAre,pAim,pBre,pBim,pCre,pCim]):
            id_ab = e(f'global_load_short_d16_hi v{AB+i}, v{t+6}, {sp(ptr)}')
        idm = [0]
        def wm_issue(k_):
            if self.opt('wmat', 1) == k_: idm[0] = e(f"""
            global_load_dwordx4 {vr(WM,4)}, v{t+4}, {sp(pWm)} offset:-3072
            global_load_dwordx4 {vr(WM+4,4)}, v{t+4}, {sp(pWm)} offset:3072
            global_load_dwordx4 {vr(WM+8,4)}, v{t+5}, {sp(pWm)} offset:-3072
            global_load_dwordx4 {vr(WM+12,4)}, v{t+5}, {sp(pWm)} offset:3072""")
        wm_issue(0)
        GR = 144
        u = 92
        e(f"""
        s_mov_b32 s{sMask}, 0xffff0000
        s_mov_b32 s{sLo}, 0x05040100
        s_mov_b32 s{sHi}, 0x07060302
        s_mov_b32 s{sOnes}, 0x3f803f80
        v_mov_b32 v{t+12}, {fbits(-1.4426950408889634)}
        s_add_u32 s{sT+7}, s{sT+3}, s{sW}
        s_min_u32 s{sT}, s{sT+7}, 895
        v_and_b32 v{t+8}, 15, v{t+1}
        s_lshl_b32 s{sT+1}, s{sT}, 11
        s_mov_b32 s37, s{sT+1}
        s_mov_b64 s[0:1], {sp(pWd)}
        s_bitcmp1_b32 s{sT}, 0
        s_cselect_b32 s{pWu}, s{pWu}, s{pWg}
        s_cselect_b32 s{pWu+1}, s{pWu+1}, s{pWg+1}
        s_cselect_b32 s{sWs}, 256, 0
        s_bfe_u32 s{sT+1}, s{sT}, 0x40001
        s_lshr_b32 s{sT+2}, s{sT}, 5
        s_mul_i32 s{sT+8}, s{sT+1}, {32*3584}
        s_lshl_b32 s{sT+3}, s{sT+2}, 7
        s_add_u32 s{sT+8}, s{sT+8}, s{sT+3}
        v_lshrrev_b32 v{t+7}, 4, v{t+1}
        v_mul_u32_u24 v{t+7}, {8*3584}, v{t+7}
        v_lshl_add_u32 v{t+10}, v{t+8}, 3, s{sT+8}
        v_add_u32 v{vWgL}, v{t+10}, v{t+7}
        s_lshl_b32 s{sT+2}, s{sT+2}, 17
        s_lshl_b32 s{sT+1}, s{sT+1}, 11
        s_add_u32 s{sT+2}, s{sT+2}, s{sT+1}
        s_add_u32 s{sWs}, s{sWs}, s{sT+2}
        s_add_u32 s{sWs}, s{sWs}, {WGU}
        s_cmp_ge_u32 s{sL}, 224
        s_cselect_b32 s{sWs}, {WS_BYTES}, s{sWs}
        s_lshl_b32 s{sF1o}, s{sT+7}, 7
        s_add_u32 s{sF1o}, s{sF1o}, {F1}
        v_mov_b32 v{u}, 0
        v_mov_b32 v{u+1}, 0
        v_mov_b32 v{u+2}, 0
        v_mov_b32 v{u+3}, 0
        v_lshlrev_b32 v{u+4}, 4, v0
        v_add_u32 v{u+4}, {L_P}, v{u+4}
        s_lshr_b32 s{sCh}, s{sW}, 1
        s_mul_i32 s{sT}, s{sCh}, {USZ-512}
        s_add_u32 s{sT}, s{sT}, {L_U}
        v_lshl_add_u32 v{t+9}, v0, 2, s{sT}
        s_mov_b32 s{sT+9}, {TB}
        """)
        wm_issue(1)
        e(f"""
        ds_write_b128 v{u+4}, {vr(u,4)}
        ds_write_b128 v{u+4}, {vr(u,4)} offset:4096
        ds_write_b128 v{u+4}, {vr(u,4)} offset:8192
        ds_write_b32 v{t+9}, v{u}
        """)
        e(f"""
        s_mov_b32 s40, s{pWs}
        s_mov_b32 s41, s{pWs+1}
        s_mov_b32 s42, {WS_BYTES}
        s_mov_b32 s43, 0x20000
        s_mov_b32 s{sCnt}, 40000
        v_mov_b32 v{vInv}, {fbits(1/512)}
        v_mov_b32 v{vInv+1}, {fbits(1e-5)}
        s_mul_i32 s{sT}, s{sL}, {HBLK}
        s_lshl_b32 s{sT+1}, s{sW}, 11
        s_add_u32 s{sT+1}, s{sT}, s{sT+1}
        s_add_u32 s{sT+1}, s{sT+1}, {XH}
        s_lshl_b32 s{sT+2}, s{sT+7}, 9
        s_add_u32 s{sT+2}, s{sT+2}, {MODP}
        s_mov_b32 s{sTag}, 1664525
        s_lshl_b32 s{sT+3}, s{sW}, 10
        s_add_u32 s{sT}, s{sT}, s{sT+3}
        s_add_u32 s{sZs}, s{sT}, {ZY}
        s_add_u32 s{sZs+1}, s{sT}, {ZY+4096}
        s_lshl_b32 s{sZs+3}, s{sL}, 4
        s_add_u32 s{sZs+3}, s{sZs+3}, {MX}
        s_cmp_eq_u32 s{sW}, 0
        s_cselect_b32 s{sZs+2}, s{sZs+3}, {WS_BYTES}
        s_lshr_b32 s{sT}, s{sL}, 6
        s_bfe_u32 s{sT+3}, s{sL}, 0x10001
        s_lshl1_add_u32 s{sT}, s{sT}, s{sT+3}
        s_bfe_u32 s{sT+3}, s{sL}, 0x40002
        s_lshl4_add_u32 s{sT}, s{sT}, s{sT+3}
        s_and_b32 s{sT+3}, s{sL}, 1
        s_lshl3_add_u32 s{sT}, s{sT}, s{sT+3}
        s_lshl_b32 s{sT}, s{sT}, 3
        s_add_u32 s{sE1}, s{sT}, {XH}
        s_add_u32 s{sE1+1}, s{sT}, {XH+64*HBLK}
        s_add_u32 s{sE1+2}, s{sT}, {XH+128*HBLK}
        s_add_u32 s{sE1+3}, s{sT}, {XH+192*HBLK}
        s_mov_b32 s{sTm}, {TAGM}
        v_lshlrev_b32 v{vTg}, 2, v{t+2}
        v_add_u32 v{vTg+1}, 2, v{vTg}
        s_and_b32 s{sT}, s2, 7
        s_lshl_b32 s{sT}, s{sT}, 10
        s_add_u32 s{sT}, s{sT}, s3
        s_lshl_b32 s{sT}, s{sT}, 6
        s_add_u32 s{sE1+4}, s{sT}, {MODP}
        s_add_u32 s{sE1+5}, s{sT}, {MODP+32768}""")
        wgq = []; idw = [0]
        for jj in range(8):
            wgq.append(f'global_load_dwordx2 {vr(WG+2*jj,2)}, v{vWgL}, {sp(pWu)} offset:{3584*(jj&1)}' + (f'\nv_add_u32 v{vWgL}, 7168, v{vWgL}' if jj & 1 and jj < 7 else ''))
        def wg_issue(n):
            for _ in range(n):
                if wgq: idw[0] = e(wgq.pop(0))
        WGA = self.opt('wgat', 8)
        wm_issue(2); id_wm = idm[0]
        PFA = self.opt('pfat', 1)
        def wd_pf(r=vPf): e(f'v_and_b32 v{r}, 15, v0\nv_lshl_add_u32 v{r}, v{r}, 7, s37\nglobal_load_dword a223, v{r}, s[0:1]')
        if PFA == 0: wd_pf()
        PF2 = self.opt('pf2', 3); vPf2 = 35; assert PF2 in (-1, 2, 3, 4) and WGA in (0, 1, 5, 6, 7, 8)
        e(f"""
        s_and_b32 s{sT}, s{sT+7}, 127
        s_mul_i32 s{sT}, s{sT}, 28
        s_bfe_u32 s{sT+3}, s2, {0x10001 if MAP2 == 84 else 0x10000 if MAP2 == 45 else 0}
        s_add_u32 s{sT}, s{sT}, s{sT+3}
        s_lshl_b32 s{sT}, s{sT}, 9
        s_add_u32 s15, s{sT}, 384""" if PF2 >= 0 else '')
        def wd_pf2(k_):
            if PF2 == k_: e(f'v_min_u32 v{vPf2}, {13*16}, v1\nv_lshl_add_u32 v{vPf2}, v{vPf2}, 6, s15\nglobal_load_dword a222, v{vPf2}, s[0:1]')
        wd_pf2(0)
        TCH = self.opt('tch', 1); NZ = self.opt('tchz', 8); vTc = 157
        if TCH >= 0:
            e(f"""
            v_and_b32 v{vTc-1}, 7, v0
            v_lshl_add_u32 v{vTc-2}, v{vTc-1}, 7, s{sZs+1}
            s_sub_u32 s{sT}, s{sF1o}, {F1-F3}
            v_cmp_gt_u32 vcc, 2, v{vTc-1}
            v_lshl_add_u32 v{vTc-1}, v{vTc-1}, 19, s{sT}
            v_mov_b32 v{vTc}, s{sZs+3}
            v_cndmask_b32 v{vTc}, v{vTc}, v{vTc-1}, vcc""")
            if self.opt('tchs', 0): e(f"""
            s_lshr_b32 s{sT}, s{sL}, 2
            s_lshl2_add_u32 s{sT}, s{sT}, s{sW}
            s_lshl_b32 s{sT}, s{sT}, 5
            s_and_b32 s{sT+3}, s{sL}, 3
            s_add_u32 s{sT}, s{sT}, s{sT+3}
            s_lshl_b32 s{sT}, s{sT}, 8
            s_add_u32 s{sT}, s{sT}, {H2}
            v_and_b32 v{vTc-1}, 6, v0
            v_cmp_eq_u32 vcc, 2, v{vTc-1}
            v_and_b32 v{vTc-1}, 1, v0
            v_lshl_add_u32 v{vTc-1}, v{vTc-1}, 7, s{sT}
            v_cndmask_b32 v{vTc}, v{vTc}, v{vTc-1}, vcc""")
            e(f"""
            v_cmp_gt_u32 vcc, {NZ*16}, v1
            s_nop 1
            v_cndmask_b32 v{vTc}, v{vTc}, v{vTc-2}, vcc""")
        if self.opt('tchh', -1) >= 0:
            e(f"""
            s_lshr_b32 s{sT}, s{sL}, 2
            s_lshl2_add_u32 s{sT}, s{sT}, s{sW}
            s_lshl_b32 s{sT}, s{sT}, 5
            s_and_b32 s{sT+3}, s{sL}, 3
            s_add_u32 s{sT}, s{sT}, s{sT+3}
            s_lshl_b32 s{sT}, s{sT}, 8
            s_add_u32 s{sT}, s{sT}, {H2}
            v_bfe_u32 v154, v0, 1, 3
            v_lshl_add_u32 v154, v154, 10, s{sT}
            v_and_b32 v153, 1, v0
            v_lshl_add_u32 v154, v153, 7, v154""")
        def touch(k_):
            if self.opt('tchh', -1) == k_: e(f'global_load_dword a220, v154, {sp(pWs)}')
            if TCH == k_: e(f'global_load_dword a221, v{vTc}, {sp(pWs)}')
        touch(0)
        if WGA == 0: wg_issue(8)
        e(f's_waitcnt {self.wvm(id_tab)}')
        for x in tunpack(): e(x)
        e(f"""
        s_bfe_u32 s{sT}, s{sL}, {0x10006 if MAP2 == 84 else 0x10005 if MAP2 == 45 else 0x10002}
        s_and_b32 s{sDt}, s{sL}, 3
        s_lshl2_add_u32 s{sDt}, s{sT}, s{sDt}
        s_lshl_b32 s{sT}, s{sDt}, 7
        s_add_u32 s{pWd}, s{pWd}, s{sT}
        s_addc_u32 s{pWd+1}, s{pWd+1}, 0
        s_lshl_b32 s{sDmaL}, s{sW}, 13""")
        wm_issue(3); id_wm = idm[0]
        sc = sM + 6
        e(f"""
        s_waitcnt lgkmcnt(0)
        s_lshl_b32 s{sc}, s{sT+4}, 16
        s_and_b32 s{sc+1}, s{sT+4}, s{sMask}
        s_lshl_b32 s{sc+2}, s{sT+5}, 16
        s_and_b32 s{sc+3}, s{sT+5}, s{sMask}""")
        self.stamp('_smem')
        for i in range(4): e(f'v_mul_f32 v{t+13+i}, s{sc+i}, v{t+12}')
        e(f"""
        s_lshl_b32 s{sT+4}, s{sCh}, 4
        s_lshr_b32 s{sT+5}, s{sT+6}, s{sT+4}
        s_lshl_b32 s{sT+5}, s{sT+5}, 16""")
        for i in range(4): e(f'v_exp_f32 v{t+13+i}, v{t+13+i}')
        e(f'v_mul_f32 v{vDt}, s{sT+5}, -v{t+12}')
        for i in range(4): e(f'v_add_f32 v{t+13+i}, 1.0, v{t+13+i}')
        e(f'v_exp_f32 v{vDt}, v{vDt}')
        for i in range(4): e(f'v_rcp_f32 v{t+13+i}, v{t+13+i}')
        e(f'v_cvt_pk_bf16_f32 v{vDt}, v{vDt}, v{vDt}')
        for i in range(4): e(f'v_mul_f32 v{t+13+i}, s{sc+i}, v{t+13+i}')
        e(f"""v_lshlrev_b32 v{vDt}, 16, v{vDt}
        v_cvt_pk_bf16_f32 v{vS}, v{t+13}, v{t+14}
        v_cvt_pk_bf16_f32 v{vS+1}, v{t+15}, v{t+16}
        s_lshr_b32 s{sDsk}, s{sDsk+1}, s{sT+4}
        s_lshl_b32 s{sDsk}, s{sDsk}, 16""")
        self.stamp('_pre_x')
        e(f's_waitcnt {self.wvm(id_x)}')
        self.stamp('x_arrived')
        if PFA == 5: wd_pf()
        if WGA == 5: wg_issue(8)
        XF = 128
        unp = [x for r in range(2) for i in range(4) for x in self.unpack(XF+8*r+2*i, XR+4*r+i)]
        self.stats_partial(XR, t, vSBw, unp)
        unp = self.rest
        MA = 160; MP = 168; MR = 176; MPOS = self.opt('modpos', 1)
        def mod_partial():
            e(f's_waitcnt {self.wvm(id_wm)}')
            self.stamp('_wm')
            for h in range(2):
                for m in range(4):
                    e(f"""v_perm_b32 v{MP+2*m}, v{WM+8*h+4+m}, v{WM+8*h+m}, s{sLo}
                    v_perm_b32 v{MP+1+2*m}, v{WM+8*h+4+m}, v{WM+8*h+m}, s{sHi}""")
                for m in range(8):
                    e(f'v_dot2_f32_bf16 v{MA+m}, v{MP+m}, v{vS+h}, {"0" if h==0 else "v%d"%(MA+m)}')
            e(f'ds_write_b128 v{vMBw}, {vr(MA,4)}')
            if unp: e(unp.pop(0)); e(unp.pop(0))
            e(f'ds_write_b128 v{vMBw}, {vr(MA+4,4)} offset:16')
        def mod_read():
            if MPOS == 1: e('s_waitcnt lgkmcnt(0)\ns_barrier')
            for w in range(0, 4, 2):
                for i in range(3):
                    e(f'ds_read2st64_b32 {vr(MR+3*w+2*i,2)}, v{vMBr} offset0:{8*w+i} offset1:{8*w+8+i}')
            return self.nlg
        def mod_store(i_):
            e(f"""
            s_waitcnt {self.wlg(i_)}
            v_pk_add_f32 {vr(MR,2)}, {vr(MR,2)}, {vr(MR+6,2)}
            v_pk_add_f32 {vr(MR+2,2)}, {vr(MR+2,2)}, {vr(MR+8,2)}
            v_pk_add_f32 {vr(MR+4,2)}, {vr(MR+4,2)}, {vr(MR+10,2)}
            v_mov_b32 v{MR+15}, v2
            v_add_f32 v{MR+12}, v{MR}, v{MR+1}
            v_add_f32 v{MR+13}, v{MR+2}, v{MR+3}
            v_add_f32 v{MR+14}, v{MR+4}, v{MR+5}
            s_mov_b32 exec_hi, 0
            buffer_store_dwordx4 {vr(MR+12,4)}, v1, {SRD}, s{sT+2} offen sc1
            s_mov_b32 exec_hi, -1""")
            self.stamp('_modst')
            if PFA == 1: wd_pf()
            wd_pf2(1)
            touch(1)
            if self.opt('wde', 0):
                assert wslot[0] == 2 and self.opt('modfast', 1); wopen[0] = 0; wd_issue(self.opt('wde', 0))
            if WGA == 1: wg_issue(8)
        if MPOS == 0: mod_partial()
        e(f'v_add_u32 v{t+1}, {L_BD-L_U-512}, v{vUw}\nds_write_b32 v{t+1}, v{vBv}')
        if WGA == 7: wg_issue(8)
        e(f's_waitcnt {self.wvm(id_ep)} lgkmcnt(1)\ns_barrier')
        self.stamp('_bar0')
        ST = 84
        id_st = self.stats_read(ST, vSBr)
        if MPOS == 0: id_mr = mod_read()
        if WGA == 8: wg_issue(8)
        while unp: e(unp.pop(0))
        e(f'v_mul_lo_u32 v{t}, v2, s{sTag}\ns_mov_b32 s{sTag}, 0x15554000\nv_add_u32 v{t}, 1013904223, v{t}\nv_bitop3_b32 v2, v{t}, v2, s{sTag} bitop3:0x72')
        vTP = 26
        e(f"""v_alignbit_b32 v{vTg}, v2, v2, v{vTg}
        v_alignbit_b32 v{vTg+1}, v2, v2, v{vTg+1}
        v_and_b32 v{vTg}, s{sTm}, v{vTg}
        v_and_b32 v{vTg+1}, s{sTm}, v{vTg+1}""")
        e(f's_waitcnt {self.wlg(id_st)}')
        self.stats_finish(ST, vInv, 2.0**-100)
        for i in range(4):
            for r in range(2):
                x = XF+8*r+2*i
                e(f'v_pk_fma_f32 {vr(x,2)}, {vr(x,2)}, {vr(ST+2*r,2)}, {vr(ST+2*r,2)} op_sel:[0,0,1] op_sel_hi:[1,0,1]')
            for r in range(2):
                x = XF+8*r+2*i
                e(f'v_cvt_pk_bf16_f32 v{GR+2*i+r}, v{x}, v{x+1}')
            for r in range(2):
                e(f'v_bfi_b32 v{GR+2*i+r}, s{sTm}, v{vTg+r}, v{GR+2*i+r}')
            if i & 1: e(f'buffer_store_dwordx4 {vr(GR+2*i-2,4)}, v1, {SRD}, s{sT+1} offen offset:{512*(i-1)} sc1')
        self.stamp('e1_stored')
        if WGA == 6: wg_issue(8)
        if MPOS == 1: mod_partial()
        if MPOS == 0: mod_store(id_mr)
        e(f's_waitcnt {self.wvm(id_ab)}\nv_mul_f32 v68, v{vDt}, v{AB}\nv_mov_b32 v{vTP}, v{vTg}\nv_mov_b32 v{vTP+1}, v{vTg+1}')
        wst = [0]
        def wjob_ops(OB=20, nb=2):
            out = []
            for c in range(4):
                O = OB + 4*(c % nb)
                out += [f'v_perm_b32 v{O+m}, v{WG+2*(2*m+1)+(c>>1)}, v{WG+2*(2*m)+(c>>1)}, s{sHi if c&1 else sLo}' for m in range(4)]
                out += [f'v_add_u32 v{O+m}, 0x20002000, v{O+m}' for m in range(2)]
                out.append(f'buffer_store_dwordx4 {vr(O,4)}, v{vWgS}, {SRD}, s{sWs} offen sc1' + (f'\ns_add_u32 s{sWs}, s{sWs}, 32768' if c < 3 else ''))
            return out
        WJN = self.opt('wjn', -1)
        al, be = 68, 69
        Z1, Z8, Z256, Wc = 70, 72, 74, 76
        q = 78
        e(f"""
        v_mul_f32 v{be}, v{vDt}, v{AB+1}
        v_mul_f32 v{AB+2}, v{vDt}, v{AB+2}
        v_mul_f32 v{AB+3}, v{vDt}, v{AB+3}
        v_mul_f32 v{q}, {fbits(1.4426950408889634)}, v{al}
        v_mul_f32 v{q+1}, 0.15915494, v{be}
        v_mul_f32 v{Wc}, v{AB+4}, v{AB+2}
        v_mul_f32 v{Wc+1}, v{AB+4}, v{AB+3}
        v_mul_f32 v{q+3}, {fbits(8.0)}, v{q}
        v_mul_f32 v{q+4}, {fbits(8.0)}, v{q+1}
        v_mul_f32 v{q+6}, {fbits(256.0)}, v{q}
        v_mul_f32 v{q+7}, {fbits(256.0)}, v{q+1}
        v_fma_f32 v{Wc}, -v{AB+5}, v{AB+3}, v{Wc}
        v_fma_f32 v{Wc+1}, -v{AB+5}, v{AB+2}, -v{Wc+1}
        """)
        MF = self.opt('modfast', 1)
        if MPOS == 1 and MF: id_mr = mod_read()
        for n_ in range(3): e(f'v_exp_f32 v{q+3*n_}, v{q+3*n_}\nv_fract_f32 v{q+3*n_+1}, v{q+3*n_+1}')
        for n_ in range(3): e(f'v_sin_f32 v{q+3*n_+2}, v{q+3*n_+1}\nv_cos_f32 v{q+3*n_+1}, v{q+3*n_+1}')
        if MPOS == 1 and MF: mod_store(id_mr)
        e(f'v_and_b32 v87, 127, v0\nv_cmp_eq_u32 vcc, 0, v87')
        for n_, (Z, conj) in enumerate([(Z1,True),(Z8,False),(Z256,True)]):
            e(f'v_mul_f32 v{Z}, v{q+3*n_}, v{q+3*n_+1}\nv_mul_f32 v{Z+1}, {"-" if conj else ""}v{q+3*n_}, v{q+3*n_+2}')
        e(f'v_readfirstlane_b32 s{sT}, v{vRW}')
        if MPOS == 1 and not MF: id_mr = mod_read()
        e(f's_mov_b32 m0, s{sT}'); self.m0 = None
        def put(src, row, pk):
            return [f'v_cvt_pk_bf16_f32 v{pk}, v{src}, v{src+1}', f'ds_write_addtid_b32 v{pk} offset:{row*RST}' if self.opt('addtid', 1) else f'ds_write_b32 v{vRW}, v{pk} offset:{row*RST}']
        Z16 = 78
        R0 = [[f'v_mov_b32 v88, 0x3f80', f'ds_write_b32 v{vRW}, v88'], self.cmul(Z16, Z8, Z8) + put(Z16, 2, 88)]
        R1 = [put(Z8, 1, 84), []]
        cur = [Z16, Z8]; bufs = [[80, 82], [90, 92]]
        for rho in range(3, 32):
            par = rho & 1
            d = bufs[par][(rho >> 1) & 1]
            (R1 if par else R0).append(self.cmul(d, cur[par], Z16) + put(d, rho, 84 if par else 88)); cur[par] = d
        Cq = [put(Wc, 32, 89)]
        cr = {0: Wc}
        reg = {1:110, 2:94, 3:110, 4:96, 5:110, 6:98, 7:110, 8:100}
        for ee in range(1, 9):
            Cq.append(self.cmul(reg[ee], cr[ee-1], Z1) + (put(reg[ee], 32+ee, 89) if ee < 8 else [])); cr[ee] = reg[ee]
        chain = [(264,8,44,102),(520,264,46,104),(776,520,48,102),(1032,776,49,104),(1288,1032,50,102),(1544,1288,51,104),(1800,1544,52,102)]
        for ee, src, row, d in chain:
            Cq.append(self.cmul(d, cr[src], Z256) + put(d, row, 89)); cr[ee] = d
        side = [(260,4,42,106),(516,260,45,108),(772,516,47,106)]
        for ee, src, row, d in side:
            R0.append(self.cmul(d, cr[src], Z256) + put(d, row, 88)); cr[ee] = d
        R1.append(self.cmul(90, cr[0], Z256) + put(90, 40, 84))
        R1.append(self.cmul(92, cr[2], Z256) + put(92, 41, 84))
        Cq.append(self.cmul(110, cr[6], Z256) + put(110, 43, 89))
        KD = 12
        Cq.append([f'v_mov_b32 v{KD+1}, s{sDsk}', f'v_mov_b32 v{KD+2}, 0', f'v_cndmask_b32 v{KD}, 0, v{KD+1}, vcc', f'v_mov_b32 v{KD+1}, 0'])
        Cq.append([f'v_mov_b32 v{KD+3}, 0', f'v_mul_f32 v{vBv}, {fbits(2.0**36)}, v{vOne}', f'v_max_f32 v{vBv}, {fbits(2.0**-64)}, v{vBv}'])
        for n_ in range(max(len(R0), len(R1), len(Cq))):
            st = [a_[n_] if n_ < len(a_) else [] for a_ in (R0, R1, Cq)]
            for j in range(4):
                for a_ in st:
                    if j < len(a_): e(a_[j])
            if n_ == 1 and MPOS == 1 and not MF: mod_store(id_mr)
            if WJN <= -2 and n_ == -WJN-1:
                e(f's_waitcnt {self.wvm(idw[0])}')
                for x in wjob_ops(128): wst[0] = e(x)
        self.stamp('kgen1')
        EG = 68
        e1m = '\n'.join(f'buffer_load_dwordx4 {vr(EG+16+4*i,4)}, v{vEM}, {SRD}, s{sE1+4+i} offen sc1' for i in range(2))
        e1x = '\n'.join(f'buffer_load_dwordx2 {vr(EG+2*i,2)}, v{vEX}, {SRD}, s{sE1+i} offen sc1' for i in range(4))
        e1_loads = e1x + '\n' + e1m
        E1AT = self.opt('e1at', 1); E1M = self.opt('e1m', 2); ide = [0]
        def e1_issue(k_):
            if E1AT == k_: ide[0] = e(e1x)
            if max(E1M, E1AT) == k_: ide[0] = e(e1m)
        e('s_waitcnt lgkmcnt(0)')
        e1_issue(0)
        e('s_barrier')
        self.stamp('_kbar1')
        KF = 160
        kf_id = []
        for kk in range(8):
            e(f"""ds_read_b128 {vr(KF+12*kk,4)}, v{vKa} offset:{64*kk}
            ds_read_b128 {vr(KF+12*kk+4,4)}, v{vKb0} offset:{32*RST+64*kk}
            ds_read_b128 {vr(KF+12*kk+8,4)}, v{vKb1} offset:{44*RST+64*kk}""")
            kf_id.append(self.nlg)
            if kk == 4:
                e1_issue(1)
        for kk in range(8):
            e(f's_waitcnt {self.wlg(kf_id[kk])}')
            for cb in range(2):
                e(f'v_mfma_f32_16x16x32_bf16 {vr(KD+4*cb,4)}, {vr(KF+12*kk,4)}, {vr(KF+12*kk+4+4*cb,4)}, {"0" if kk==0 and cb==1 else vr(KD+4*cb,4)}')
        e1_issue(2)
        if PFA == 2: wd_pf(35)
        wd_pf2(2)
        touch(2)
        if self.opt('wde2', 0):
            assert wslot[0] == 2; wopen[0] = 0; wd_issue(self.opt('wde2', 0))
        if WGA == 2: wg_issue(8)
        AN = 128; AX = 160; T2 = 192; T3 = 204; BND = 196; SF2 = 208; SF3 = 232; SD = 240; US = 72
        e(f"""
        ds_read2_b32 {vr(BND,2)}, v{vBd} offset0:6 offset1:4
        ds_read2_b32 {vr(BND+2,2)}, v{vBd} offset0:2 offset1:0
        ds_read2_b32 {vr(BND+4,2)}, v{vBd} offset0:70 offset1:68
        ds_read2_b32 {vr(BND+6,2)}, v{vBd} offset0:66 offset1:64
        ds_read2_b32 {vr(BND+8,2)}, v{vBd2} offset0:134 offset1:132
        ds_read2_b32 {vr(BND+10,2)}, v{vBd2} offset0:130 offset1:128""")
        for cb in range(2):
            for j in range(2):
                e(f'v_cvt_pk_bf16_f32 v{KD+8+2*cb+j}, v{KD+4*cb+2*j}, v{KD+4*cb+2*j+1}')
        def scat(cb, j):
            va = (vKw0, vKw1)[cb]; off = 32*j if cb == 0 else (j&1)*928 + (j>>1)*4
            op = 'ds_write_b16_d16_hi' if j & 1 else 'ds_write_b16'
            e(f'{op} v{va}, v{KD+8+2*cb+(j>>1)} offset:{off}\n{op} v{va}, v{KD+8+2*cb+(j>>1)} offset:{off+6}')
        for j in range(4): scat(0, j)
        scat(1, 3)
        e('s_mov_b32 exec_lo, 0x00ff00ff\ns_mov_b32 exec_hi, 0x00ff00ff')
        for j in range(3): scat(1, j)
        e('s_mov_b64 exec, -1')
        e1_issue(3); id_e1 = ide[0]
        self.stamp('kgen2')
        def rd2(d, va, o): return [f'ds_read2_b32 {vr(d,2)}, v{va} offset0:{o+6} offset1:{o+4}', f'ds_read2_b32 {vr(d+2,2)}, v{va} offset0:{o+2} offset1:{o}']
        def rq2(d, o0, o1): return [f'ds_read2_b32 {ar(d,2)}, v{vQ} offset0:{o0} offset1:{o0-2}', f'ds_read2_b32 {ar(d+2,2)}, v{vQ} offset0:{o1} offset1:{o1-2}']
        vPA1 = 55
        reads = {}
        for be_ in range(6): reads[('u', be_)] = (US+4*be_, [f'ds_read_b128 {vr(US+4*be_,4)}, v{vUS} offset:{512*be_}'])
        for jq in range(4):
            for J in range(2): reads[('a', jq, J)] = (AN+8*jq+4*J, rd2(AN+8*jq+4*J, vPA1 if J else vPA, 32*jq))
        reads[('x', 16)] = (AX, rd2(AX, vPX, 0)); reads[('x', 32)] = (AX+4, rd2(AX+4, vPX, 48))
        for d_ in (2,3,4): reads[('t2', d_)] = (T2+4*(d_-2), rq2(T2+4*(d_-2), 16*d_-28, 64+16*d_-28))
        for d_ in (4,5,6,7): reads[('t3', d_)] = (T3+4*(d_-4), rq2(T3+4*(d_-4), 128+16*d_-44, 128+16*d_-60))
        pre = set(); wjs = []
        e(f'v_add_u32 v{vPA1}, 1024, v{vPA}')
        if self.opt('kpre', 1):
            e('s_waitcnt lgkmcnt(0)\ns_barrier')
            for o in reads:
                if o[0] != 'u':
                    for x in reads[o][1]: e(x)
                    pre.add(o)
        if WJN == -1 and self.opt('wjpre', 4):
            e(f's_waitcnt {self.wvm(idw[0])}')
            for x in wjob_ops(168 if self.opt('wjpre', 4) < 4 else 216, 4):
                if x.startswith('buffer_') and self.opt('wjpre', 4) != 3: wjs.append(x)
                else: wst[0] = e(x)
        XC = EG+8
        e(f's_waitcnt {self.wvm(id_e1)}\nL_e1chk:')
        for i in range(8): e(f'v_xor_b32 v{XC+i}, v{EG+i}, v{vTP+(i&1)}')
        e(f"""
        v_cmp_ne_u32 {sp(sBad)}, v{EG+19}, v2
        v_or3_b32 v92, v{XC}, v{XC+1}, v{XC+2}
        v_or3_b32 v93, v{XC+3}, v{XC+4}, v{XC+5}
        v_cmp_ne_u32 vcc, v{EG+23}, v2
        v_or3_b32 v92, v92, v{XC+6}, v{XC+7}
        s_or_b64 {sp(sBad)}, {sp(sBad)}, vcc
        v_bitop3_b32 v92, v92, v93, s{sTm} bitop3:0xa8
        v_cmp_ne_u32 vcc, 0, v92
        s_or_b64 {sp(sBad)}, {sp(sBad)}, vcc
        s_cbranch_scc1 L_e1retry""")
        self.tail.append(f"""L_e1retry:
        s_sub_u32 s{sCnt}, s{sCnt}, 1
        s_cbranch_scc1 L_end
        s_wqm_b64 exec, {sp(sBad)}
        {e1_loads}
        s_mov_b64 exec, -1
        s_waitcnt vmcnt(0)
        s_branch L_e1chk""")
        self.stamp('e1_ok')
        if PFA == 3: wd_pf(35)
        wd_pf2(3)
        touch(3)
        if self.opt('wjpre', 4) == 2:
            while wjs: wst[0] = e(wjs.pop(0))
        if WGA == 3: wg_issue(8)
        g0 = 28; HF = 96
        e(f"""
        v_add_f32 v{g0}, v{EG+16}, v{EG+20}
        v_add_f32 v{g0+1}, v{EG+17}, v{EG+21}
        v_add_f32 v{g0+2}, v{EG+18}, v{EG+22}
        v_mov_b32 v{g0+3}, 0""")
        unp = []
        for i in range(4):
            unp += [f'v_lshlrev_b32 v{HF+4*i}, 16, v{XC+2*i}', f'v_lshlrev_b32 v{HF+4*i+1}, 16, v{XC+2*i+1}',
                    f'v_and_b32 v{HF+4*i+2}, s{sMask}, v{XC+2*i}', f'v_and_b32 v{HF+4*i+3}, s{sMask}, v{XC+2*i+1}']
        self.reduce4(g0, g0+1, g0+2, g0+3, unp)
        unp = self.rest
        e(f"""
        v_cvt_pk_bf16_f32 v{g0}, v{g0}, v{g0}
        v_and_b32 v{g0}, s{sMask}, v{g0}
        v_add_f32 v{g0+1}, v{g0}, v{vOne}
        v_readlane_b32 s{sM+4}, v{g0}, 16
        v_readlane_b32 s{sM+5}, v{g0}, 17
        v_cvt_pk_bf16_f32 v{g0}, v{g0+1}, v{g0+1}
        v_and_b32 v{g0}, s{sMask}, v{g0}
        v_mul_f32 v{g0+3}, v{vBv}, v{g0}
        v_mul_f32 v{g0+1}, s{sM+4}, v{g0+3}
        v_mul_f32 v{g0+2}, s{sM+5}, v{g0+3}
        v_readlane_b32 s{sM}, v{g0+1}, 32
        v_readlane_b32 s{sM+1}, v{g0+1}, 0
        v_readlane_b32 s{sM+2}, v{g0+2}, 33
        v_readlane_b32 s{sM+3}, v{g0+2}, 1""")
        for x in unp: e(x)
        for i in range(4):
            for ch in range(2):
                h = HF+4*i+2*ch
                e(f'v_pk_fma_f32 {vr(h,2)}, {vr(h,2)}, {sp(sM+2*ch)}, {sp(sM+2*ch)} op_sel:[0,0,1] op_sel_hi:[1,0,1]')
            for ch in range(2):
                h = HF+4*i+2*ch
                e(f'v_cvt_pk_bf16_f32 v{g0+2+ch}, v{h}, v{h+1}\nds_write_b32 v{vUw}, v{g0+2+ch} offset:{ch*USZ+1024*i}')
        while wjs and self.opt('wjpre', 4) < 4: wst[0] = e(wjs.pop(0))
        if WJN == -1 and not self.opt('wjpre', 4):
            e(f's_waitcnt {self.wvm(idw[0])}')
            for x in wjob_ops(): wst[0] = e(x)
        e('s_waitcnt lgkmcnt(0)\ns_barrier')
        self.stamp('u_ready')
        wopen[0] = 2
        if PFA == 4: wd_pf(35)
        wd_pf2(4)
        ACC = 224; ZG = 12
        BR = [96,100,104,108,116,120,168,172,176,180,184,188]
        F1N = self.opt('f1n', 66)
        def f1_publish(): e(f's_waitcnt {self.wvm(wst[0])}\n' + self.flag_text(vF, sF1o))
        for m in range(8):
            for jq in range(4):
                r_ = BR[(4*m+jq) % len(BR)]
                reads[('b', m, jq)] = (r_, [f'ds_read_b128 {vr(r_,4)}, v{vUB} offset:{512*m+192-64*jq}'])
        ops = []
        S = lambda nm, be_: ops.append(('S', (nm, be_), ('u', be_), ('bnd', nm)))
        def near(m, Js):
            for jq in range(4):
                for J in Js: ops.append(('M', m+J, ('a', jq, J), ('b', m, jq)))
        def far(cb):
            ops.append(('M', cb, ('x', 16), ('u', cb-2)))
            if cb >= 4: ops.append(('M', cb, ('x', 32), ('u', cb-4)))
            for d_ in (4,3,2):
                if cb-d_ >= 0: ops.append(('M', cb, ('s2', cb-d_), ('t2', d_)))
            if cb >= 4: ops.append(('M', cb, ('s3', 0), ('t3', cb)))
            if cb >= 6: ops.append(('M', cb, ('s3', 1), ('t3', cb-2)))
        S('a',0); S('b',0); S('a',1); S('b',1)
        near(0,(0,1)); near(1,(0,1)); far(2); S('c',0); S('c',1); near(2,(0,1)); S('a',2); S('b',2); far(3); near(3,(0,))
        S('a',3); S('b',3); near(3,(1,)); far(4); near(4,(0,1)); far(5); near(5,(0,))
        S('a',4); S('b',4); S('c',2); S('c',3); near(5,(1,)); S('a',5); S('b',5); near(6,(0,1)); far(6); near(7,(0,)); far(7)
        assert len(ops) == 107
        def opreg(o):
            if o[0] == 'bnd': return BND + 4*'abc'.index(o[1])
            if o[0] == 's2': return SF2 + 4*o[1]
            if o[0] == 's3': return SF3 + 4*o[1]
            return reads[o][0]
        firstuse = {}; lastuse = {}; accdone = {}
        for n, (kd, dst, oa, ob) in enumerate(ops):
            for o in (oa, ob): firstuse.setdefault(o, n); lastuse[o] = n
            if kd == 'M': accdone[dst] = n
        rq = []
        for o in sorted(reads, key=lambda o: firstuse[o]):
            early = -1
            if o[0] == 'b' and 4*o[1]+o[2] >= len(BR):
                idx = 4*o[1]+o[2]-len(BR); early = lastuse[('b', idx//4, idx%4)] + 1
            if o not in pre:
                for x in reads[o][1]: rq.append((early, o, x))
        rid = {o: 0 for o in pre}
        def popread():
            _, o, x = rq.pop(0); e(x)
            if not any(o2 == o for _, o2, _ in rq): rid[o] = self.nlg
        for _ in range(self.opt('cpre', 8 if pre else 14)): popread()
        tq = 69
        fill = [f's_bitcmp1_b32 s{sL}, 1\ns_cselect_b32 s{sT}, 1.0, {fbits(2.0**-64)}', f'v_mul_f32 v{g0+1}, s{sT}, v{g0}']
        fill += [f'v_readlane_b32 s{sM+6+n_}, v{g0+(n_<4)}, {ln}' for n_, ln in list(enumerate([34,35,2,3,18,19]))[::-1]]
        TZ = 16; XE = 52; vYr1 = 64
        fill += f"""v_and_b32 v{tq}, 3, v0
        s_pack_hh_b32_b16 s{sT}, s{sM+6}, s{sM+7}
        s_pack_hh_b32_b16 s{sT+1}, s{sM+8}, s{sM+9}
        s_pack_hh_b32_b16 s{sT+2}, s{sM+10}, s{sM+11}
        v_lshlrev_b32 v{tq}, 2, v{tq}
        s_mov_b32 s{sTm}, {TAGZ}
        v_alignbit_b32 v{tq}, v2, v2, v{tq}
        v_xor_b32 v{vYr1}, 32, v{vYr}
        v_add_u32 v{vTw}, 65536, v{vTr}
        v_and_b32 v{TZ}, s{sTm}, v{tq}
        v_alignbit_b32 v{TZ+1}, v{tq}, v{tq}, 1
        v_alignbit_b32 v{TZ+2}, v{tq}, v{tq}, 2
        v_alignbit_b32 v{TZ+3}, v{tq}, v{tq}, 3
        v_and_b32 v{TZ+1}, s{sTm}, v{TZ+1}
        v_and_b32 v{TZ+2}, s{sTm}, v{TZ+2}
        v_and_b32 v{TZ+3}, s{sTm}, v{TZ+3}
        v_mov_b32 v192, s{sT}
        v_mov_b32 v193, s{sT+1}
        v_mov_b32 v194, s{sT+2}
        v_mov_b32 v195, v2""".split('\n')
        stages = {'a': [(0,),(1,)], 'n': [(0,1)]}[self.opt('stages', 'a')]
        wr_id = {}; cq = []; sq = []; sdone = {}; nsd = 0; stage = 0; done_w = 0; waited = 0
        zst = {}
        def stage_ops(sg, final):
            out = []
            regs = {(k_, j): ([28, SD][j] if not final else 72+16*n_+8*j) for n_, k_ in enumerate(sg) for j in range(2)}
            for k_ in sg:
                for j in range(2):
                    for pw in range(4): out.append(('rd', (k_,j), f'ds_read_b64 {vr(regs[(k_,j)]+2*pw,2)}, v{vYr1 if j else vYr} offset:{8192*pw+4096*k_}'))
            for k_ in sg:
                for j in range(2):
                    y = regs[(k_,j)]; i = (k_,j)
                    out.append(('wait', i, None))
                    if final:
                        out += [('v', i, f'v_pk_add_f32 {vr(y+4*ch,2)}, {vr(y+4*ch,2)}, {vr(y+4*ch+2,2)}') for ch in range(2)]
                    else:
                        out += [('v', i, f'v_add_f32 v{y+4*ch+r}, v{y+4*ch+r}, v{y+4*ch+2+r}') for r in range(2) for ch in range(2)]
                    out += [('v', i, f'v_cvt_pk_bf16_f32 v{ZG+2*j+r}, v{y+r}, v{y+4+r}') for r in range(2)]
                    out += [('v', i, f'v_bfi_b32 v{ZG+2*j+r}, s{sTm}, v{TZ+2*j+r}, v{ZG+2*j+r}') for r in range(2)]
                x = f'buffer_store_dwordx4 {vr(ZG,4)}, v1, {SRD}, s{sZs+k_} offen sc1'
                if k_ == 0: x += f'\ns_mov_b64 exec, 1\nbuffer_store_dwordx4 v[192:195], v1, {SRD}, s{sZs+2} offen sc1\ns_mov_b64 exec, -1'
                out.append(('st', k_, x))
            return out
        y_id = {}; ride = [0]; pub = []
        def popstage():
            nonlocal waited
            kd, i, x = sq.pop(0)
            if kd == 'wait':
                e(f's_waitcnt {self.wlg(y_id[i])}'); waited = max(waited, y_id[i])
            else:
                r_ = e(x)
                if kd == 'rd': y_id[i] = self.nlg
                if kd == 'st':
                    zst[i] = r_
                    if not sq:
                        ride[0] = self.opt('ride', 0)
                        pub.append(1)
                        if F1N == 199 + len(pub): f1_publish()
        seen = set(); hold = 0; accpos = {}; wj = []
        for n, (kd, dst, oa, ob) in enumerate(ops):
            if n in (1, 27, 54, 81): self.stamp(f'_c{n}')
            for o in (oa, ob):
                while o in reads and o not in rid: popread()
                if o[0] in ('s2', 's3'):
                    while any(tg == o for _, tg, _ in cq): e(cq.pop(0)[2])
            need = max(rid.get(oa, 0), rid.get(ob, 0))
            if need > waited:
                e(f's_waitcnt {self.wlg(need)}'); waited = max(need, self.nlg - 14)
            if kd == 'S':
                d = SD + 4*(nsd % 4); nsd += 1
                while any(f'v{d},' in x or x.endswith(f'v{d+3}') for _, _, x in cq): e(cq.pop(0)[2])
                while any(k_ != 'st' for k_, _, _ in sq): popstage()
                e(f'v_mfma_f32_16x16x32_bf16 {vr(d,4)}, {vr(opreg(oa),4)}, {vr(opreg(ob),4)}, 0')
                nm, be_ = dst
                tg = ('s2', be_) if nm != 'c' else ('s3', be_ >> 1)
                o_ = opreg(tg) + (2*'ab'.index(nm) if nm != 'c' else 2*(be_ & 1))
                cq += [(len(p.text), tg, f'v_cvt_pk_bf16_f32 v{o_+j}, v{d+2*j}, v{d+2*j+1}') for j in range(2)]
            else:
                c_ = ar(ACC+4*dst,4) if dst in seen else '0'; seen.add(dst)
                e(f'v_mfma_f32_16x16x32_bf16 {ar(ACC+4*dst,4)}, {vr(opreg(oa),4)}, {(ar if ob[0][0] == "t" else vr)(opreg(ob),4)}, {c_}')
                if accdone[dst] == n: accpos[dst] = len(p.text)
            budget = 2
            if wjs and n >= self.opt('wsn', 4) + (4-len(wjs))*self.opt('wss', 3):
                assert n < 30; wst[0] = e(wjs.pop(0)); budget = 1
            elif n == F1N: f1_publish(); budget = 0
            elif n % self.opt('wd_pace', 6) == 1 and self.opt('wd_first', 0) <= n <= self.opt('wd_last', 100) and wd_can(): wd_issue(1); budget = 1
            elif ride[0] > 0 and n % 2 == 0 and wd_can(): wd_issue(1); budget = 1; ride[0] -= 1
            if n == WJN: e(f's_waitcnt {self.wvm(idw[0])}'); wj = wjob_ops()
            if stage < len(stages)-1 and done_w > 4*stages[stage][-1]+3 and n >= wr_n + 3 and not sq:
                while fill: e(fill.pop(0))
                while cq: e(cq.pop(0)[2])
                e(f's_waitcnt {self.wlg(wr_id[done_w-1])}\ns_barrier'); waited = max(waited, wr_id[done_w-1])
                sq = stage_ops(stages[stage], False); stage += 1; budget = 0
            while budget > 0:
                budget -= 1
                if rq and rq[0][0] <= n and firstuse[rq[0][1]] <= n + self.opt('cla', 20): popread()
                elif cq and len(p.text) - cq[0][0] >= 8: e(cq.pop(0)[2])
                elif done_w in accpos and len(p.text) - accpos[done_w] >= 8:
                    e(f'ds_write_b128 v{vYw}, {ar(ACC+4*done_w,4)} offset:{1024*done_w}'); wr_id[done_w] = self.nlg; wr_n = n; done_w += 1
                elif sq and not (sq[0][0] == 'wait' and hold > n):
                    if sq[0][0] == 'rd': hold = n + 4
                    popstage()
                elif fill: e(fill.pop(0))
                elif wj: wst[0] = e(wj.pop(0))
                elif rq and rq[0][0] <= n: popread()
                elif self.opt('trconv', 0) and tr_ready(8): tr_pop()
        assert not rq and not cq and not wj and stage == len(stages)-1
        while sq: popstage()
        for x in fill: e(x)
        self.stamp('conv')
        while done_w < 8:
            e(f'ds_write_b128 v{vYw}, {ar(ACC+4*done_w,4)} offset:{1024*done_w}'); done_w += 1
        e('s_waitcnt lgkmcnt(0)\ns_barrier')
        sq = stage_ops(stages[-1], True)
        while sq: popstage()
        id_z = self.nvm
        if F1N == 107: f1_publish()
        self.stamp('z_stored')
        vP1 = 122
        e(f"""
        s_bfe_u32 s1, s{sL}, 0x30002
        s_lshr_b32 s0, s{sL}, 7
        s_lshl3_add_u32 s{sMt}, s0, s1
        s_bfe_u32 s0, s{sL}, {0x10005 if MAP2 == 84 else 0x20005}
        s_and_b32 s1, s{sMt}, {15 if MAP2 == 84 else 14}
        s_lshl1_add_u32 s{sTb}, s1, s0
        s_bfe_u32 s0, s{sL}, 0x20005
        s_and_b32 s1, s{sL}, 3
        s_lshl2_add_u32 s{sNt}, s0, s1
        """)
        if MAP2 in (44, 45): e(f"""
        s_lshr_b32 s0, s{sL}, 6
        s_bfe_u32 s1, s{sL}, 0x20003
        s_lshl2_add_u32 s{sMt}, s0, s1
        s_bfe_u32 s0, s{sL}, 0x10005
        s_and_b32 s1, s{sL}, 7
        s_lshl3_add_u32 s{sNt}, s0, s1
        s_bfe_u32 s0, s{sL}, {0x10005 if MAP2 == 44 else 0x10002}
        s_lshl1_add_u32 s{sTb}, s{sMt}, s0""")
        e(f"""
        s_mul_i32 s0, s{sNt}, 7
        s_lshr_b32 s0, s0, 2
        v_bfe_u32 v{t+1}, v0, 3, 3
        v_min_u32 v{t+1}, 2, v{t+1}
        v_add_u32 v{t+1}, s0, v{t+1}
        v_min_u32 v{t+1}, 27, v{t+1}
        v_and_b32 v{t+2}, 7, v0
        v_lshl_add_u32 v{t+1}, v{t+1}, 5, v{t+2}
        s_lshl_b32 s0, s{sW}, 10
        s_add_u32 s0, s0, {F1}
        v_lshl_add_u32 v{vP1}, v{t+1}, 7, s0""")
        f1_load = f'buffer_load_dword v{vPolled}, v{vP1}, {SRD}, 0 offen sc1'
        F1P = self.opt('f1p', 0)
        if F1P == 0: id_f1 = e(f1_load)
        e(f"""
        s_mul_i32 s{sDmaG}, s{sNt}, {7*32768}
        s_add_u32 s{sDmaG}, s{sDmaG}, s{sDmaL}
        s_add_u32 s{sDmaG}, s{sDmaG}, {WGU}""")
        dq = [x for i in range(5) for x in self.dma_tile(i,i)]
        f1ok = [False]; maxt = [2]
        def bg_issue(n):
            for _ in range(n):
                if wd_can() and wdq[0][0] <= 2: wd_one()
                elif f1ok[0] and dq[0][0] <= 2: tile_one(dq)
                else: wd_issue(1)
        def bg(name, nT, nL):
            v = self.opt(name, None)
            if v is not None: nT, nL = v // 100, v % 100
            done = 0
            for i in range(nT):
                k_ = (nL*(i+1) + nT-1)//nT - done; bg_issue(k_); done += k_
                tr_do(1)
            bg_issue(nL - done)
        bg('b_zack', 0, 9)
        XF = 36
        for r in range(2):
            for i in range(4):
                for x in self.unpack(XF+8*r+2*i, XR+4*r+i): e(x)
        TH = 66; TX = 14; vZ = 28; vH2 = 29; ZI = 72; vMsk = 30
        vP2 = 24; vXa = 25; vA2 = 26; vA4 = 27; vP3 = 23; vX2 = 22; vAc1 = 21
        c1 = -2*1.4426950408889634*0.7978845608028654; c2 = c1*0.044715
        gs = (-c2)**(1/3); sGk, sGs = 30, 31
        e(f'''
        v_and_b32 v{t}, 0xfc, v0
        v_and_b32 v{t+2}, 0x30, v1
        s_movk_i32 s{sT}, {HBLK}
        v_mad_u32_u24 v{vZ}, v{t}, s{sT}, v{t+2}
        s_lshr_b32 s{sT}, s{sL}, 1
        s_lshl_b32 s{sT}, s{sT}, 6
        s_add_u32 s{sT}, s{sT}, {ZY}
        s_add_u32 s{sT+1}, s{sT}, {HBLK}
        s_add_u32 s{sT+2}, s{sT}, {2*HBLK}
        s_add_u32 s{sT+3}, s{sT}, {3*HBLK}
        s_lshl_b32 s{sT+8}, s{sW}, 10
        s_add_u32 s{sT+8}, s{sT+8}, {MX}
        s_bitcmp1_b32 s{sL}, 0
        s_cselect_b32 s{sLo}, 0x04040000, 0
        s_add_u32 s{sHi}, s{sLo}, 0x03020c0c
        s_add_u32 s{sLo}, s{sLo}, 0x01000c0c
        s_mov_b32 s{sM}, {fbits(2.0**64)}
        v_lshrrev_b32 v{t}, 3, v0
        v_and_b32 v{t+1}, 0x70, v1
        v_lshl_add_u32 v{vH2}, v{t}, 10, v{t+1}
        s_lshr_b32 s{sT+4}, s{sL}, 2
        s_lshl_b32 s{sT+4}, s{sT+4}, 7
        s_and_b32 s{sT+5}, s{sL}, 3
        s_add_u32 s{sT+4}, s{sT+4}, s{sT+5}
        s_lshl_b32 s{sT+4}, s{sT+4}, 8
        s_add_u32 s{sT+4}, s{sT+4}, {H2}
        s_mov_b32 s{sT+5}, {X2}
        v_mov_b32 v{vMsk}, s{sMask}
        s_lshl2_add_u32 s{sT+6}, s{sL}, s{sW}
        s_lshl_b32 s{sT+6}, s{sT+6}, 7
        s_add_u32 s{sT+6}, s{sT+6}, {F2}
        s_lshl2_add_u32 s0, s{sMt}, s{sW}
        s_lshl_b32 s{sXg}, s0, 15
        s_add_u32 s{sXg}, s{sXg}, {H2}
        s_lshl4_add_u32 s0, s0, s{sNt}
        s_mul_i32 s0, s0, {7*1024}
        s_add_u32 s{sActS}, s0, {ACT}
        s_add_u32 s{sActS+1}, s0, {ACT+4096}
        s_add_u32 s{sF3o}, s{sT+6}, {F3-F2}
        s_and_b32 s0, s{sL}, 0x98
        s_bfe_u32 s1, s{sTb}, 0x10001
        s_lshl2_add_u32 s0, s1, s0
        s_lshl_b32 s1, s{sW}, 5
        s_add_u32 s0, s0, s1
        s_and_b32 s1, s{sTb}, 1
        s_lshl1_add_u32 s0, s0, s1
        s_lshl_b32 s0, s0, 8
        s_add_u32 s{sF3p}, s0, {F3}
        s_lshl3_add_u32 s0, s{sTb}, s{sW}
        s_mul_i32 s0, s0, {28*1024}
        s_add_u32 s{sActG}, s0, {ACT}
        s_waitcnt {self.wvm(id_z)}''')
        self.stamp('_zack')
        if F1N == 108: f1_publish()
        z_loads = '\n'.join(f'buffer_load_dwordx4 {vr(ZI+4*i,4)}, v{vZ}, {SRD}, s{sT+i} offen sc1' for i in range(4))
        XG = 32
        z_loads += f'\nbuffer_load_dwordx4 {vr(XG,4)}, v1, {SRD}, s{sT+8} offen sc1'
        id_zl = e(z_loads)
        if F1P == 0:
            self.check(f1_load, [vPolled], id_f1); f1ok[0] = True
        elif F1P == 1: id_f1 = e(f1_load)
        bg('b_zld', 8, 0)
        bg('b_zld2', 0, 6)
        e(f'''
        v_lshrrev_b32 v{TH}, 3, v{t+1}
        v_alignbit_b32 v{TH}, v2, v2, v{TH}
        v_alignbit_b32 v{TH+1}, v{TH}, v{TH}, 1
        v_and_b32 v{TH}, s{sTm}, v{TH}
        v_and_b32 v{TH+1}, s{sTm}, v{TH+1}
        v_bfe_u32 v{t}, v0, 2, 3
        v_bfe_u32 v{t+3}, v0, 5, 1
        v_lshl_add_u32 v{t+2}, v{t+3}, 6, v{t+2}
        v_lshl_add_u32 v{vXa}, v{t}, 7, v{t+2}
        v_lshrrev_b32 v{TX}, 3, v{t+2}
        v_alignbit_b32 v{TX}, v2, v2, v{TX}
        v_alignbit_b32 v{TX+1}, v{TX}, v{TX}, 1
        v_and_b32 v{TX}, s{sTm}, v{TX}
        v_and_b32 v{TX+1}, s{sTm}, v{TX+1}
        v_add_u32 v{vA2}, 65536, v1
        v_add_u32 v{vA4}, 131072, v1
        v_add_u32 v{vAc1}, {112*1024}, v1
        v_mov_b32 v{vInv+1}, {fbits(1e-5/gs**2)}
        s_mov_b32 s{sGk}, {fbits(c1/gs)}
        s_mov_b32 s{sGs}, {fbits(gs*gs*2.0**64)}
        s_mov_b32 s{sM+1}, {fbits(gs)}
        v_bfe_u32 v{t}, v0, 1, 2
        v_and_b32 v{t+2}, 1, v0
        v_lshlrev_b32 v{t+2}, 7, v{t+2}
        v_lshl_add_u32 v{vP3}, v{t}, 9, v{t+2}
        v_bfe_u32 v{t}, v0, 3, 2
        v_lshl_add_u32 v{t}, v{t}, 1, v{t+3}
        v_lshl_add_u32 v{t}, v{t}, 10, v{t+1}
        s_lshl3_add_u32 s0, s{sTb}, s{sW}
        s_lshl_b32 s0, s0, 6
        s_add_u32 s0, s0, s{sDt}
        s_lshl_b32 s0, s0, 7
        v_add_u32 v{vX2}, s0, v{t}''')
        self.stamp('_zchk')
        ZC = 144
        e(f's_waitcnt {self.wvm(id_zl)}\nL_zchk:')
        for i in range(16): e(f'v_xor_b32 v{ZC+i}, v{ZI+i}, v{TZ+(i&3)}')
        e(f'v_cmp_ne_u32 {sp(sBad)}, v{XG+3}, v2')
        for i in range(5): e(f'v_or3_b32 v{160+i}, v{ZC+3*i}, v{ZC+3*i+1}, v{ZC+3*i+2}')
        e(f"""
        v_or3_b32 v160, v160, v161, v162
        v_or3_b32 v163, v163, v164, v{ZC+15}
        v_bitop3_b32 v160, v160, v163, s{sTm} bitop3:0xa8
        v_cmp_ne_u32 vcc, 0, v160
        s_or_b64 {sp(sBad)}, {sp(sBad)}, vcc
        s_cbranch_scc1 L_zretry""")
        self.tail.append(f"""L_zretry:
        s_sub_u32 s{sCnt}, s{sCnt}, 1
        s_cbranch_scc1 L_end
        s_wqm_b64 exec, {sp(sBad)}
        {z_loads}
        s_mov_b64 exec, -1
        s_waitcnt vmcnt(0)
        s_branch L_zchk""")
        self.stamp('z_ok')
        if F1P == 1: self.check(f1_load, [vPolled], id_f1); f1ok[0] = True
        elif F1P == 2: id_f1 = e(f1_load)
        nl2 = [self.opt('b_ln2', 10)]
        def ln2bg(n=1):
            for _ in range(n):
                if nl2[0] > 0: bg_issue(1); nl2[0] -= 1
        ZF = 88
        for i in range(4):
            ln2bg()
            for r in range(2):
                z = ZF+8*r+2*i
                e(f'v_perm_b32 v{z}, v{ZC+4*i+2+r}, v{ZC+4*i+r}, s{sLo}\nv_perm_b32 v{z+1}, v{ZC+4*i+2+r}, v{ZC+4*i+r}, s{sHi}')
            for r in range(2):
                z = ZF+8*r+2*i; x = XF+8*r+2*i
                e(f'v_pk_fma_f32 {vr(x,2)}, {vr(z,2)}, {sp(sM)}, {vr(x,2)} op_sel_hi:[1,0,1]')
            for r in range(2):
                x = XF+8*r+2*i
                e(f'v_cvt_pk_bf16_f32 v{XR+4*r+i}, v{x}, v{x+1}')
        unp = [x for r in range(2) for i in range(4) for x in self.unpack(XF+8*r+2*i, XR+4*r+i)]
        self.stats_partial(XR, t, vSBw, unp)
        unp = self.rest
        ln2bg(2)
        for x in unp: e(x)
        e('s_waitcnt lgkmcnt(0)\ns_barrier')
        wopen[0] = 3
        self.stamp('_ln2bar')
        ST = 128
        self.stats_read(ST, vSBr)
        GBV = 12
        for i in range(4):
            ln2bg()
            for kind in range(2):
                d = ZF+8*kind+2*i
                qp = f'quad_perm:[{i},{i},{i},{i}] row_mask:0xf bank_mask:0xf'
                e(f'v_cvt_f32_bf16_dpp v{d}, v{XG+kind} {qp}\nv_and_b32_dpp v{d+1}, v{XG+kind}, v{vMsk} {qp}')
        for i in range(4): e(f'v_pk_mul_f32 {vr(ZF+8+2*i,2)}, {vr(ZF+8+2*i,2)}, {sp(sM)} op_sel:[0,1] op_sel_hi:[1,1]')
        e('s_waitcnt lgkmcnt(0)')
        self.stats_finish(ST, vInv, pre=1/gs**2)
        HO = 104
        for r in range(2):
            for i in range(4):
                x = XF+8*r+2*i
                e(f'v_pk_fma_f32 {vr(x,2)}, {vr(x,2)}, {vr(ST+2*r,2)}, {vr(ST+2*r,2)} op_sel:[0,0,1] op_sel_hi:[1,0,1]')
            for i in range(4):
                x = XF+8*r+2*i
                e(f'v_pk_fma_f32 {vr(x,2)}, {vr(x,2)}, {vr(ZF+2*i,2)}, {vr(ZF+8+2*i,2)}')
            for i in range(4):
                x = XF+8*r+2*i
                e(f'v_cvt_pk_bf16_f32 v{HO+4*r+i}, v{x}, v{x+1}')
            for m in range(2): e(f'v_bfi_b32 v{HO+4*r+m}, s{sTm}, v{TH+m}, v{HO+4*r+m}')
            id_h = e(f'buffer_store_dwordx4 {vr(HO+4*r,4)}, v{vH2}, {SRD}, s{sT+4} offen offset:{128*r} sc1')
        self.stamp('h2_stored')
        e(f'v_mov_b32 v{GBV}, v{XG+2}')
        if F1P == 2: self.check(f1_load, [vPolled], id_f1); f1ok[0] = True
        SMP = self.opt('smp', 0)
        bg('b_hack', 0, 6 if SMP else 16)
        if not SMP:
            while dq[0][0] < 3: tile_one(dq)
        e(f's_waitcnt {self.wvm(id_h)}')
        self.stamp('_h2_ack')
        X = 128
        AC = [28, 44, 60, 76]
        WE = self.opt('we', 4); LA = self.opt('la', 6); NB = 7; WF = 92; assert LA < NB
        TA, TA1 = 20, 23; GT = 120; GO = 16; X2R = 4; vP4 = 24; vPo = 25; vPo4 = 3
        P1 = self.opt('p1', 25)
        if P1 == 25:
            seq = []
            for s in range(32):
                seq += [(0, s), (1, s)]
                if s & 1: seq.append((2, s >> 1))
            seq += [(2, s) for s in range(16, 32)]
        else:
            seq = [(tl, s) for s in range(32) for tl in range(P1)] + [(tl, s) for tl in range(P1,3) for s in range(32)]
        seq += [(tl, s) for tl in range(3,7) for s in range(32)]
        slot = {0:0,1:1,2:2,3:3,4:4,5:0,6:1}
        acc = {tl: AC[tl % 4] for tl in range(7)}
        w_id = {}
        def wread(n):
            tl, s = seq[n]; sl = slot[tl]
            va = {0:1,1:1,2:vA2,3:vA2,4:vA4}[sl]
            e(f'ds_read_b128 {vr(WF+4*(n%NB),4)}, v{va} offset:{(sl&1 if sl<4 else 0)*32768 + 1024*kperm(s)}'); w_id[n] = self.nlg
        kperm = lambda s: 8*(s & 3) + (s >> 2)
        sXb = sM
        for j in range(8): e(f's_add_u32 s{sXb+j}, s{sXg}, {4096*j}')
        sAb = [76, 77, 78, 79, 80, 81, 32, 33]
        x_id = []
        def xtext(s): return f'buffer_load_dwordx4 {vr(X+4*s,4)}, v{vXa}, {SRD}, s{sXb+(kperm(s)>>2)} offen offset:{1024*(kperm(s)&3)} sc1'
        def xload(): x_id.append(e(xtext(len(x_id))))
        def xcheck(s):
            Lc = p.label('xc'); Lr = p.label('xr'); Ld = p.label('xd'); r0 = X+4*s
            body = [f'v_xor_b32 v{r0+4*j+m}, v{r0+4*j+m}, v{TX+m}' for j in range(2) for m in range(2)]
            body += [f'v_or3_b32 v13, v{r0}, v{r0+1}, v{r0+4}', f'v_bitop3_b32 v13, v13, v{r0+5}, s{sTm} bitop3:0xa8', 'v_cmp_ne_u32 vcc, 0, v13']
            def branch():
                rest = '\n'.join(xtext(j) for j in range(s+2, len(x_id)))
                self.tail.append(f'{Lr}:\ns_sub_u32 s{sCnt}, s{sCnt}, 1\ns_cbranch_scc1 L_end\n{xtext(s)}\n{xtext(s+1)}\ns_waitcnt vmcnt(0)\n' + '\n'.join(body) +
                                 f'\ns_cmp_lg_u64 vcc, 0\ns_cbranch_scc1 {Lr}\n{rest}\ns_branch {Ld}')
                e(f's_cbranch_vccnz {Lr}\n{Ld}:')
                if self.nvm != x_id[-1]: self.tail[-1] = self.tail[-1].replace(f's_branch {Ld}', f's_waitcnt vmcnt(0)\ns_branch {Ld}')
            return body, branch
        XLA = self.opt('xla', 12 if SMP else 10)
        if SMP:
            for s in range(4): xload()
            bg('b_smp', 0, 10)
            while dq[0][0] < 3: tile_one(dq)
            for s in (0, 2):
                xb, xbr = xcheck(s)
                e(f's_waitcnt {self.wvm(x_id[s+1])}\n' + '\n'.join(xb)); xbr()
        while len(x_id) < XLA: xload()
        bg('b_x', 0, 0)
        for j in range(8): e(f's_add_u32 s{sAb[j]}, s{sActG}, {(7*(j>>1) + 4*(j&1))*1024}')
        if self.o.get('verbose'): print('tr reads left', len(trq), 'wd left', len(wdq), 'dq left', len(dq))
        e(f"""
        v_mov_b32 v124, v{vWdA}
        v_mov_b32 v{TA}, v{TH}
        v_add_u32 v13, s{sF3p}, v{vP3}
        v_mov_b32 v{TA1}, v{TH+1}
        v_and_b32 v{vP4}, {8 if NF else 0}, v0
        v_cmp_eq_u32 vcc, 0, v{vP4}
        v_and_b32 v{vP4}, 7, v0
        s_lshr_b32 s0, s{sDt}, 1
        s_lshl_b32 s1, s{sTb}, 5
        s_add_u32 s0, s0, s1
        s_lshl_b32 s0, s0, 7
        s_add_u32 s0, s0, {F3}
        v_lshl_add_u32 v{vP4}, v{vP4}, 9, s0
        v_cndmask_b32 v{vP4}, v13, v{vP4}, vcc
        s_waitcnt {self.wvm(dma_id[2])} lgkmcnt(0)
        s_barrier""")
        vW[0] = 124
        for n in range(LA): wread(n)
        if not SMP:
            xb, xbr = xcheck(0)
            e(f's_waitcnt {self.wvm(x_id[1])}\n' + '\n'.join(xb)); xbr()
        self.stamp('f2_ok')
        xq = []; xnext = 2
        f4_load = f'buffer_load_dword v{vPo4}, v{vP4}, {SRD}, 0 offen sc1'
        def gelu(tl):
            a = acc[tl]; out = []
            for hf in range(2):
                E = [a+4*hf+j for j in range(4)]
                out += [f'v_fma_f32 v{GT+j}, -v{E[j]}, v{E[j]}, s{sGk}' for j in range(4)]
                out += [f'v_mul_f32 v{GT+j}, v{GT+j}, v{E[j]}' for j in range(4)]
                for j in range(4): out += [f'v_exp_f32 v{GT+j}, v{GT+j}', f'v_mul_f32 v{E[j]+8}, v{E[j]+8}, v{E[j]}']
                for j in range(4): out += [f'v_fma_f32 v{GT+j}, v{GT+j}, s{sGs}, s{sGs}']
                for j in range(4): out += [f'v_rcp_f32 v{GT+j}, v{GT+j}']
                for j in range(4): out += [f'v_mul_f32 v{E[j]+8}, v{E[j]+8}, v{GT+j}']
                out += [f'v_cvt_pk_bf16_f32 v{GO+2*hf+j}, v{E[2*j]+8}, v{E[2*j+1]+8}' for j in range(2)]
                if hf == 0 and tl >= NF: out += [f'v_bfi_b32 v{GO+j}, s{sTm}, v{(TA,TA1)[j]}, v{GO+j}' for j in range(2)]
            out.append(f'buffer_store_dwordx4 {vr(GO,4)}, v1, {SRD}, s{sActS+(tl>>2)} offen offset:{1024*(tl&3)} sc1')
            return [(x, tl) for x in out]
        last = {tl: max(n for n, (a_, _) in enumerate(seq) if a_ == tl) for tl in range(7)}
        first = {tl: min(n for n, (a_, _) in enumerate(seq) if a_ == tl) for tl in range(7)}
        gq = []; vq = dq; st_id = {}; st_n = {}
        a_id = []; xfree = [0]; consumed = set()
        k0 = 28 - 4*len(groups[-1])
        lorder = [(kk, tt) for kk in range(k0) for tt in range(2)] + [(kk, tt) for tt in range(2) for kk in range(k0, 28)]
        NAG = 0
        def areg(kk): return ar(224+4*kk, 4) if kk < NAG else vr(X+4*((kk-NAG) % 32), 4)
        def acan():
            kk = len(a_id)
            if not checked or kk >= gend[checked-1]: return False
            return kk < NAG or (kk-NAG < xfree[0] if kk-NAG < 32 else kk-32 in consumed)
        def atext(kk):
            T, tt = korder[lorder[kk][0]], lorder[kk][1]; pp, i = divmod(T, 7)
            return f'buffer_load_dwordx4 {areg(kk)}, v{vAc1 if tt else 1}, {SRD}, s{sAb[2*pp+(i>>2)]} offen offset:{1024*(i&3)} sc1'
        def aload(): a_id.append(e(atext(len(a_id))))
        CG = self.opt('cg', 2)
        def acheck(kk):
            Lr = p.label('ar'); Ld = p.label('ad'); rs = [X+4*((kk+j) % 32)+m for j in range(CG) for m in range(2)]
            body = [f'v_xor_b32 v{r}, v{r}, v{(TA,TA1)[j&1]}' for j, r in enumerate(rs)]
            body.append(f'v_or3_b32 v{vPo}, v{rs[0]}, v{rs[1]}, v{rs[2]}')
            body += [f'v_or3_b32 v{vPo}, v{vPo}, v{rs[j]}, v{rs[j+1]}' for j in range(3, 2*CG-1, 2)]
            body += [f'v_bitop3_b32 v{vPo}, v{vPo}, v{rs[-1]}, s{sTm} bitop3:0xa8', f'v_cmp_ne_u32 vcc, 0, v{vPo}']
            def branch():
                self.tail.append(f'{Lr}:\ns_sub_u32 s{sCnt}, s{sCnt}, 1\ns_cbranch_scc1 L_end\n' + '\n'.join(atext(kk+j) for j in range(CG)) + '\ns_waitcnt vmcnt(0)\n' + '\n'.join(body) +
                                 f'\ns_cmp_lg_u64 vcc, 0\ns_cbranch_scc1 {Lr}\ns_branch {Ld}')
                e(f's_cbranch_vccnz {Lr}\n{Ld}:')
            return body, branch
        AD = self.opt('ad', 30); VISD = self.opt('visd', 26); POLD = self.opt('pold', 14)
        checked = 0; fl = {}
        gend = [sum(len(g) for g in groups[:i+1])*8 for i in range(len(groups))]
        def progress(n, force=None):
            nonlocal checked
            fo = -1 if force is None else force
            if checked == 0 and NF:
                if 'flag' in fl and 'poll' not in fl and (n >= fl['flag'] + VISD or fo >= 0):
                    fl['id'] = e(f4_load); fl['poll'] = n; return True
                if 'poll' in fl and (n >= fl['poll'] + POLD or fo >= 0):
                    self.check(f4_load, [vPo4], fl['id']); checked = 1; return True
            elif checked < len(groups) and groups[checked][-1] in st_id and (n >= st_n[groups[checked][-1]] + AD or fo >= checked):
                if fo >= checked: e(f's_waitcnt {self.wvm(st_id[groups[checked][-1]])}')
                checked += 1
            return False
        def emit_g(x, b_, n):
            i_ = e(x)
            if x.startswith('buffer_'):
                r = b_ - self.opt('x2t', 1); assert self.opt('x2t', 1) + 1 < NF or not NF
                if r in (0, 1): i_ = e(f'buffer_store_dwordx4 {vr(XR+4*r,4)}, v{vXO}, {SRD}, s{sT+5} offen offset:{1024*r} sc1')
                if r == 3 and not NF: e(f's_waitcnt {self.wvm(st_id[b_-2])}\n' + self.flag_text(vF, sF3o))
                if b_ == NF and NF: e(f's_waitcnt {self.wvm(st_id[NF-1])}\n' + self.flag_text(vF, sF3o)); fl['flag'] = n
                st_id[b_] = i_; st_n[b_] = n
        PACE = self.opt('pace', 20); nextv = [0]
        def pump(n):
            if 10*n < nextv[0]: return False
            if wd_can() and wdq[0][0] == 3: wd_one()
            elif vq and vq[0][0] == 3 and trq and trq[0][0] <= 3 and first[3] - n > 26:
                if any(x[0] == 4 for x in vq):
                    j = min(j for j, x in enumerate(vq) if x[0] == 4); tile_one([vq.pop(j)])
                else: return False
            elif wd_can() and vq and first[vq[0][0]] - n > self.opt('urg', 48): wd_one()
            elif vq: tile_one(vq)
            elif wd_can(): wd_one()
            elif acan(): aload()
            else: return False
            nextv[0] = max(nextv[0], 10*n - 10) + (PACE if not (192 <= n < 224) else self.opt('pace6', PACE))
            return True
        grate = self.opt('grate', 33); wwait = 0; aq0 = []
        for n, (tl, s) in enumerate(seq):
            if n in (1, 48, 96, 128, 160, 192): self.stamp(f'_g{n}')
            for a_ in range(6):
                if n == last[a_] + 4: gq += gelu(a_)
            if n == last[1] + 1 and n > first[3] - LA:
                e('s_barrier'); vq += [x for i in (5,6) for x in self.dma_tile(i, i-5)]
            for a_ in range(3, 7):
                if n == first[a_] - LA:
                    while any(x[0] == a_ for x in vq): tile_one(vq)
                    e(f's_waitcnt {self.wvm(dma_id[a_])}\ns_barrier')
                    if a_ == 4: wopen[0] = 4
                    if a_ == 5: wopen[0] = 6
                    if a_ == 3 and n > last[1]: vq += [x for i in (5,6) for x in self.dma_tile(i, i-5)]
            w_ = ''
            if w_id[n] > wwait:
                tgt = w_id[min(n+WE-1, len(seq)-1)]; w_ = self.wlg(tgt); wwait = tgt
            if tl == 0 and s % 2 == 0:
                while len(xq) > 1: e(xq.pop(0))
                if xq: xq.pop(0)()
            if w_: e(f's_waitcnt {w_}')
            if s == 0: assert not any(b_ == tl-4 for _, b_ in gq), (n, len(gq))
            c_ = '0' if s == 0 else vr(acc[tl],16)
            e(f'v_mfma_f32_32x32x16_bf16 {vr(acc[tl],16)}, {vr(WF+4*(n%NB),4)}, {vr(X+4*s,4)}, {c_}')
            if tl == 6: xfree[0] = s
            if n + LA < len(seq): wread(n+LA)
            budget = (grate*(n+1))//10 - (grate*n)//10
            if tl == 1 and s % 2 == 0 and s+2 < 32 and not (SMP and s == 0):
                xb, xbr = xcheck(s+2)
                e(f's_waitcnt {self.wvm(x_id[s+3])}'); xq = xb + [xbr]
            for _ in range(3):
                if len(xq) > 1: e(xq.pop(0))
            if progress(n): budget -= 2
            elif len(x_id) < 32:
                if tl == 0: xload()
                elif P1 == 3 and tl == 1 and s % 4 == 0: pump(n)
            else: pump(n)
            while gq and budget > 0:
                x, b_ = gq.pop(0); budget -= 1
                emit_g(x, b_, n)
            for _ in range(max(1, min(budget, 2))):
                if tr_ready(self.opt('trlag1', 9)): tr_pop()
            if not NF and n == len(seq) - self.opt('c6', 5) and len(a_id) >= CG:
                e(f's_waitcnt {self.wvm(a_id[CG-1])}'); b_, br_ = acheck(0); aq0 = b_ + [br_]
            for _ in range(3):
                if len(aq0) > 1: e(aq0.pop(0))
        assert not vq
        self.stamp('g1_mfma')
        n = len(seq); xfree[0] = 32
        while wdq: wd_one()
        e(f"""
        v_lshlrev_b32 v{WF}, 2, v0
        v_add_u32 v{WF}, {L_GB}, v{WF}
        ds_write_b32 v{WF}, v{GBV}""")
        while any(b_ <= 4 for _, b_ in gq):
            x, b_ = gq.pop(0); emit_g(x, b_, n)
        g6pos = len(p.text); g6 = gelu(6)
        A2 = [ar(224,16), ar(240,16), vr(AC[0],16), vr(AC[3],16)]
        a2q = lambda q_, i: ar(224+16*q_+4*i, 4) if q_ < 2 else vr(AC[3*(q_-2)]+4*i, 4)
        vRw = 12; vRr = 13; vG = 14
        fill = f"""v_bfe_u32 v{WF}, v0, 5, 1
        v_and_b32 v{WF+1}, 0x1f0, v1
        s_mul_i32 s{sT}, s{sW}, {4*RQ}
        s_add_u32 s{sT}, s{sT}, {L_RED}
        v_mul_u32_u24 v{WF}, {RQ}, v{WF}
        v_add3_u32 v{vRw}, v{WF}, v{WF+1}, s{sT}
        v_and_b32 v{WF}, 7, v0
        v_lshrrev_b32 v{WF+1}, 3, v0
        v_mul_u32_u24 v{WF+2}, {RSA}, v{WF}
        v_lshl_add_u32 v{vRr}, v{WF+1}, 4, v{WF+2}
        v_add_u32 v{vRr}, {L_RED}, v{vRr}
        s_lshl_b32 s{sT}, s{sDt}, 7
        s_add_u32 s{sT}, s{sT}, {L_GB}
        v_lshl_add_u32 v{vG}, v{WF}, 4, s{sT}
        s_add_u32 s{sT+2}, s{pOut}, 32768
        s_addc_u32 s{sT+3}, s{pOut+1}, 0""".split('\n')
        fill[-2:] = ['\n'.join(fill[-2:])]
        XF2 = 96
        fill2 = [x for tt in range(2) for j in range(4) for x in self.unpack(XF2+8*tt+2*j, X2R+4*tt+j)]
        TAILK = self.opt('tailk', 6)
        o2 = [(kk, tt, c) for kk in range(28-TAILK) for tt in range(2) for c in range(2)]
        o2 += [(kk, tt, c) for tt in range(2) for c in range(2) for kk in range(28-TAILK, 28)]
        PACE = self.opt('pace2', 18)
        wq = []; twait = 0; await_ = 0; X2M = self.opt('x2m', 44); used = {}
        GF = 112; vRr2 = 15; OO = [16, 4]
        def redw(q_): return [f'ds_write_b128 v{vRw}, {a2q(q_, i)} offset:{2*RQ*(q_>>1)+(4*(q_&1)+i)*RSA}' for i in range(4)]
        RDS = [AC[1], 128]
        r_id = {}
        def redr(tt):
            for hs in range(2):
                for w in range(4):
                    e(f'ds_read_b128 {vr(RDS[tt]+16*hs+4*w,4)}, v{vRr if w<2 else vRr2} offset:{(4*(w&1)+2*tt+hs)*RQ}')
                r_id[(tt, hs)] = self.nlg
        def redm(tt):
            out = []
            for hs in range(2):
                r = RDS[tt]+16*hs
                out.append(('w', (tt, hs)))
                for hh in range(2):
                    out += [f'v_pk_add_f32 {vr(r+2*hh,2)}, {vr(r+2*hh,2)}, {vr(r+4+2*hh,2)}', f'v_pk_add_f32 {vr(r+8+2*hh,2)}, {vr(r+8+2*hh,2)}, {vr(r+12+2*hh,2)}']
                out += [f'v_pk_add_f32 {vr(r+2*hh,2)}, {vr(r+2*hh,2)}, {vr(r+8+2*hh,2)}' for hh in range(2)]
                out += [f'v_pk_fma_f32 {vr(r+2*hh,2)}, {vr(r+2*hh,2)}, {vr(GF+4*hs+2*hh,2)}, {vr(XF2+8*tt+4*hs+2*hh,2)}' for hh in range(2)]
                out += [f'v_cvt_pk_bf16_f32 v{OO[tt]+2*hs+hh}, v{r+2*hh}, v{r+2*hh+1}' for hh in range(2)]
            out.append(f'global_store_dwordx4 v{vX2}, {vr(OO[tt],4)}, {sp(pOut) if tt==0 else sp(sT+2)} {self.opt("outflag","sc1").replace("_"," ").replace("none","")}')
            return out
        def emit_m(x):
            if isinstance(x, tuple): e(f's_waitcnt {self.wlg(r_id[x[1]])}')
            else: e(x)
        fill.append(f'v_add_u32 v{vRr2}, {8*RQ}, v{vRr}')
        fill2.append(f's_mov_b32 s{sGk}, {fbits(2.0**64*(1+self.opt("perturb", 0)/1000))}')
        gun = [x for j in range(4) for x in self.unpack(GF+2*j, GF+8+j)] + [f'v_mul_f32 v{GF+j}, s{sGk}, v{GF+j}' for j in range(8)]
        states = lambda pos: sum(hazard.I(l).states() for l in p.text[pos:])
        wdone = 0; barA = False; aq = aq0; achk = 8*NF; anext = achk + (CG if aq0 else 0)
        firstm = {}
        for m_, (kk, tt, c) in enumerate(o2): firstm.setdefault(lorder.index((kk, tt)), m_)
        for m_, (kk, tt, c) in enumerate(o2):
            f = lorder.index((kk, tt)); T = korder[kk]; q_ = 2*tt + c
            if m_ in (0, 28, 56, 84): self.stamp(f'_h{m_//2}')
            if m_ == X2M - 20 and not NF: id_f4 = e(f4_load)
            if m_ == X2M:
                assert checked
                if not NF:
                    while len(aq) > 1: e(aq.pop(0))
                    if aq: aq.pop(0)(); achk = anext
                    self.check(f4_load, [vPo4], id_f4)
                id_x2l = e(f's_mov_b32 s0, {X2}\nbuffer_load_dwordx4 {vr(X2R,4)}, v{vX2}, {SRD}, s0 offen sc1\ns_mov_b32 s0, {X2+32768}\nbuffer_load_dwordx4 {vr(X2R+4,4)}, v{vX2}, {SRD}, s0 offen sc1')
            if m_ == self.opt('x2u', 70):
                e(f's_waitcnt {self.wvm(id_x2l)} {self.wlg(g_id)}'); fill += fill2 + gun
            while len(a_id) <= f:
                g = min(i for i in range(len(groups)) if gend[i] > len(a_id))
                while groups[g][-1] not in st_id:
                    if not gq: gq += g6; g6 = []
                    x, b_ = gq.pop(0); emit_g(x, b_, n)
                while checked <= g: progress(n, force=g)
                assert acan()
                aload()
            ahead = max(lorder.index((k2, t2)) for k2, t2, _ in o2[m_:m_+2*self.opt('amin', 12)])
            for _ in range(8 if len(a_id) <= f+2 else 2):
                if acan() and len(a_id) <= ahead: aload(); nextv[0] = 10*n + PACE
            while any(T_ == T for _, T_, _ in trq): tr_pop()
            if m_ == 64:
                while trq: tr_pop()
                e(f's_waitcnt lgkmcnt(0)\ns_barrier\nds_read_b128 {vr(GF+8,4)}, v{vG}'); twait = self.nlg-1; g_id = self.nlg; assert not fill and not gq and not g6
            while achk < f + 1:
                if not aq:
                    while len(a_id) < anext + CG: aload()
                    e(f's_waitcnt {self.wvm(a_id[anext+CG-1])}'); b_, br_ = acheck(anext); aq = b_ + [br_]; anext += CG
                while len(aq) > 1: e(aq.pop(0))
                aq.pop(0)(); achk = anext
            w_ = ''
            if f < 8*NF and a_id[f] > await_:
                f2_ = min(f | 1, len(a_id)-1); w_ = self.wvm(a_id[f2_]); await_ = a_id[f2_]
            if t_id.get(T, 0) > twait: w_ += ' ' + self.wlg(t_id[T]); twait = t_id[T]
            if w_: e(f's_waitcnt {w_}')
            e(f'v_mfma_f32_32x32x16_bf16 {A2[q_]}, {ar(8*T+4*c,4)}, {areg(f)}, {"0" if kk==0 else A2[q_]}')
            n += 1
            used[f] = used.get(f, 0) + 1
            if kk == 27 and q_ < 3: wq.append((len(p.text), redw(q_)))
            if not progress(n): pump(n)
            if used[f] == 2: consumed.add(f)
            if len(aq) == 1: aq.pop(0)(); achk = anext
            elif not aq and anext < 56 and len(a_id) >= anext + CG and firstm[anext] <= m_ + self.opt('clead', 6):
                e(f's_waitcnt {self.wvm(a_id[anext+CG-1])}'); b_, br_ = acheck(anext); aq = b_ + [br_]; anext += CG
            for _ in range(self.opt('crate', 3)):
                if len(aq) > 1: e(aq.pop(0))
            if g6 and states(g6pos) >= 12: gq += g6; g6 = []
            if gq:
                for _ in range(self.opt('grate2', 5)):
                    if gq:
                        x, b_ = gq.pop(0); emit_g(x, b_, n)
                if tr_ready(8): tr_pop()
                continue
            if wq:
                if states(wq[0][0]) < 12: e(f's_nop {min(4, 11-states(wq[0][0]))}')
                if states(wq[0][0]) >= 12:
                    e(wq[0][1].pop(0))
                    if not wq[0][1]: wq.pop(0); wdone += 1; wlast = self.nlg
                continue
            if wdone >= 2 and not barA and self.opt('tsplit', 1):
                e(f's_waitcnt {self.wlg(wlast)}\ns_barrier'); barA = True
                redr(0); continue
            for _ in range(self.opt('trate', 2) - c):
                if tr_ready(8): tr_pop()
            for _ in range(2 if m_ < 80 else 3):
                if fill: e(fill.pop(0))
        assert not fill and not trq and not gq and not g6
        self.stamp('g2_mfma')
        lastpos = len(p.text)
        for _, ws_ in wq:
            for x in ws_: e(x)
        if not barA and self.opt('tsplit', 1):
            e(f's_waitcnt lgkmcnt(0)\ns_barrier'); barA = True
            redr(0)
        if barA:
            m0_ = redm(0)
            while states(lastpos) < 12: emit_m(m0_.pop(0))
            for x in redw(3): e(x)
            for x in m0_: emit_m(x)
            e(f's_waitcnt lgkmcnt(0)\ns_barrier')
            redr(1)
            for x in redm(1): emit_m(x)
        else:
            for x in redw(3): e(x)
            e(f's_waitcnt lgkmcnt(0)\ns_barrier')
            redr(0); redr(1)
            for x in redm(0) + redm(1): emit_m(x)
        self.stamp('end')
        e(f'''
        s_or_b32 s0, s{sL}, s{sW}
        s_cbranch_scc1 L_noep''')
        e(self.flag_text(vF, 0))
        e('L_noep:')
        if self.stamps:
            e(f'''
            s_lshl2_add_u32 s{sT}, s{sL}, s{sW}
            s_lshl_b32 s{sT}, s{sT}, 7
            s_add_u32 s{sT}, s{sT}, {STMP}
            v_mov_b32 v4, 0
            s_mov_b64 exec, 1''')
            for i in range(self.ns):
                e(f'v_mov_b32 v5, s{sStamp+i}\nbuffer_store_dword v5, v4, {SRD}, s{sT} offen offset:{4*i}')
            e(f'v_mov_b32 v5, s{sCnt}\nbuffer_store_dword v5, v4, {SRD}, s{sT} offen offset:124')
        if self.o.get('probe') is not None:
            kk = self.stamp_names.index(self.o['probe'])
            e(f'''
            s_add_u32 s{sT}, s{sStamp+kk}, 5000
            L_spin:
            s_sleep 1
            s_memrealtime s[22:23]
            s_waitcnt lgkmcnt(0)
            s_sub_u32 s{sT+1}, s22, s{sT}
            s_cmp_lt_i32 s{sT+1}, 0
            s_cbranch_scc1 L_spin''')
        e('s_endpgm')
        for x in self.tail: e(x)
        e('L_end:\ns_endpgm')
        p.end(k, vgpr=256, agpr=256, sgpr=102)
        nt = str(self.opt('nt', '-'))
        def hint(l):
            for ch, bases in (('x', [pX]), ('m', [pWm]), ('a', [pAre,pAim,pBre,pBim,pCre,pCim]), ('g', [pWu])):
                if ch in nt and l.strip().startswith('global_load') and any(f', {sp(b)}' in l for b in bases): return l + ' nt'
            if 'e' in nt and 'buffer_load_dwordx2' in l: return l + ' nt'
            return l
        p.text = [hint(l) for l in p.text]
        p.text, added = hazard.fix(p.text, verbose=self.o.get('verbose'))
        hazard.check_global_addresses(p.text, sp(sM+4))
        if self.opt('align', 6):
            p.text, nw, nn = align.fix(p.text, self.opt('align', 6))
            if self.o.get('verbose'): print('align: widened', nw, 'nops', nn)
        p.text += ['.p2align 8', 'L_tab:'] + ['.long ' + ', '.join(hex(v) for v in self.table[i:i+16]) for i in range(0, len(self.table), 16)]
        return added

if __name__ == '__main__':
    ap = argparse.ArgumentParser()
    ap.add_argument('out'); ap.add_argument('--stamps', action='store_true'); ap.add_argument('-v', action='store_true')
    ap.add_argument('--probe', default=None); ap.add_argument('-o', action='append', default=[])
    a = ap.parse_args()
    opts = dict(verbose=a.v, probe=a.probe)
    for kv in a.o:
        kk, vv = kv.split('='); opts[kk] = int(vv) if vv.lstrip('-').isdigit() else vv
    g = G(a.stamps or a.probe is not None, opts)
    added = g.build()
    g.p.dump(a.out, single=True)
    n = sum(1 for l in g.p.text if l.startswith('  '))
    print(a.out, 'instructions', n, 'nops added', added, 'stamps', g.stamp_names)
    if a.stamps: open(a.out + '.names', 'w').write(' '.join(g.stamp_names))
```

```python
import sys, struct, argparse
from asmlib import Prog, NAME
import hazard, align

def fbits(x): return '0x%08x' % struct.unpack('<I', struct.pack('<f', x))[0]

F1   = 0x0C0000
F2   = 0x020000
F3   = 0x040000
F3S  = 0x020000
MODP = 0x0E0000
MX   = 0x008000
TAGZ = 0x40004000
HBLK = 8448
TAGM = 0x70007000
XH   = 0x160000
ZY   = 0x380000
H2   = 0x5A0000
X2   = 0x7A0000
WGU  = 0x9A0000
ACT  = 0xD20000
STMP = 0x3000000
WS_BYTES = 0x10000000
S4   = 131072
L_U  = S4; USZ = 4608
L_P  = S4 + 2*USZ; PSZ = 4288
L_ZB = L_P + 2*PSZ
L_JK = L_ZB + 1024
L_BD = L_P + 12288
L_SB = L_BD + 1024
L_Y  = 98304
L_MB = 98304
RST  = 544
L_RC = 0; RCSZ = 54*RST
L_RED = 65536; RSA = 576; RQ = 8*RSA
L_GB = L_RED + 16*RQ
LDS_BYTES = 163840
pX,pAre,pAim,pBre,pBim,pCre,pCim,pLdt = 4,6,8,10,12,14,16,18
pD,pWg,pWu,pWd,pC,pWm,pOut,pWs = 20,24,26,28,30,32,34,38
SRD='s[40:43]'
sL,sW,sTag,sMask,sCnt = 44,45,46,47,48
sLo,sHi = 49,50
sOnes = 51
sMt,sNt,sTb,sDt = 52,53,54,55
sBad = 56
sT = 58
sM = 68
sDsk = 80
sStamp = 82
sDmaL, sDmaG, sDmaT = 36, 5, 6
sActG, sActT = 9, 10
sActS = 12
sF3o, sF3p = 14, 15
sXg = 16
sCh, sHb = 17, 18
sE1 = 4
sZs = 10
sTm = 25
sWs, sF1o = 14, 24
def sp(i): return f's[{i}:{i+1}]'
def vr(i, n): return f'v[{i}:{i+n-1}]'
def ar(i, n): return f'a[{i}:{i+n-1}]'

class G:
    def __init__(self, stamps=False, opts=None):
        self.p = Prog(); self.stamps = stamps; self.ns = 0; self.o = opts or {}
        self.stamp_names = []; self.nvm = 0; self.nlg = 0; self.tail = []; self.maybe = False; self.m0 = None
    def opt(self, k, d): return self.o.get(k, d)
    def e(self, s):
        for line in s.split('\n'):
            l = line.strip()
            if not l: continue
            if l.startswith(('buffer_', 'global_')) and not self.maybe: self.nvm += 1
            if l.startswith('ds_') and not self.maybe: self.nlg += 1
            self.p.e(l)
        return self.nvm
    def wvm(self, i): return f'vmcnt({min(62, self.nvm - i)})'
    def wlg(self, i): return f'lgkmcnt({min(14, self.nlg - i)})'
    def stamp(self, name):
        if self.opt('jitter', 0) and name in ('x_arrived','_wm','kgen2','u_ready','_c54','conv','z_ok','_ln2bar','f2_ok','_g96','_g160','g1_mfma','_h14','_h42'):
            L = self.p.label('jit'); self.jn = getattr(self, 'jn', 0) + 1
            self.e(f'''s_lshl2_add_u32 s22, s2, s{sW}
            s_add_u32 s22, s22, {self.jn*977 + self.opt('jitter', 0)*131}
            s_mul_i32 s22, s22, 0x9E3779B1
            s_lshr_b32 s23, s22, 15
            s_xor_b32 s22, s22, s23
            s_mul_i32 s22, s22, 0x85EBCA6B
            s_lshr_b32 s22, s22, 27
            s_cmp_lg_u32 s22, 0
            s_cbranch_scc1 {L}
            s_sleep 100
            {L}:''')
        if not self.stamps: return
        if self.o.get('probe') is not None and name != self.o['probe']: return
        if self.o.get('only') and not (name == 'start' or name.startswith(tuple(self.o['only'].split(',')))): return
        if not self.o.get('only') and self.o.get('probe') is None and name.startswith('_'): return
        assert self.ns < 20
        self.e(f'{"s_memtime" if self.opt("cyc", 0) else "s_memrealtime"} s[22:23]\ns_waitcnt lgkmcnt(0)\ns_mov_b32 s{sStamp+self.ns}, s22')
        self.ns += 1; self.stamp_names.append(name)

    def check_text(self, loads, tags, last):
        Lc = self.p.label('chk'); Lr = self.p.label('retry')
        s = f's_waitcnt {self.wvm(last)}\n{Lc}:\n'
        if len(tags) == 1:
            s += f'v_cmp_ne_u32 vcc, v{tags[0]}, v2\ns_cmp_lg_u64 vcc, 0\ns_cbranch_scc1 {Lr}'
            self.tail.append(f'''{Lr}:
            s_sub_u32 s{sCnt}, s{sCnt}, 1
            s_cbranch_scc1 L_end
            {loads}
            s_waitcnt vmcnt(0)
            s_branch {Lc}''')
        else:
            s += f'v_cmp_ne_u32 {sp(sBad)}, v{tags[0]}, v2\n'
            for t in tags[1:]: s += f'v_cmp_ne_u32 vcc, v{t}, v2\ns_or_b64 {sp(sBad)}, {sp(sBad)}, vcc\n'
            s += f's_cbranch_scc1 {Lr}'
            self.tail.append(f'''{Lr}:
            s_sub_u32 s{sCnt}, s{sCnt}, 1
            s_cbranch_scc1 L_end
            s_mov_b64 exec, {sp(sBad)}
            {loads}
            s_mov_b64 exec, -1
            s_waitcnt vmcnt(0)
            s_branch {Lc}''')
        return s
    def check(self, loads, tags, last): self.e(self.check_text(loads, tags, last))

    def flag_text(self, vaddr, soff):
        return f's_mov_b32 exec_hi, 0\nbuffer_store_dword v2, v{vaddr}, {SRD}, s{soff} offen sc1\ns_mov_b32 exec_hi, -1'

    def stats_partial(self, src, t, vSBw, fill=()):
        a,b,c,d = t,t+1,t+2,t+3
        for m in range(4):
            acc = lambda r: '0' if m == 0 else f'v{r}'
            self.e(f'''v_dot2_f32_bf16 v{a}, v{src+m}, s{sOnes}, {acc(a)}
            v_dot2_f32_bf16 v{b}, v{src+4+m}, s{sOnes}, {acc(b)}
            v_dot2_f32_bf16 v{c}, v{src+m}, v{src+m}, {acc(c)}
            v_dot2_f32_bf16 v{d}, v{src+4+m}, v{src+4+m}, {acc(d)}''')
        self.reduce4(a,b,c,d, fill)
        self.e(f'ds_write_b32 v{vSBw}, v{a}')
    def reduce4(self, a,b,c,d, fill=()):
        fill = list(fill)
        def f(n):
            for _ in range(n):
                if fill: self.e(fill.pop(0))
        f(2); self.e(f'v_permlane32_swap_b32 v{a}, v{b}\nv_permlane32_swap_b32 v{c}, v{d}\nv_add_f32 v{a}, v{a}, v{b}\nv_add_f32 v{c}, v{c}, v{d}')
        f(2); self.e(f'v_permlane16_swap_b32 v{a}, v{c}\nv_add_f32 v{a}, v{a}, v{c}')
        f(2); self.e(f'v_add_f32_dpp v{a}, v{a}, v{a} row_ror:4 row_mask:0xf bank_mask:0xf')
        f(2); self.e(f'v_add_f32_dpp v{a}, v{a}, v{a} row_ror:8 row_mask:0xf bank_mask:0xf')
        self.rest = fill
    def stats_read(self, t, vSBr):
        for w in range(4): self.e(f'ds_read_b128 {vr(t+4*w,4)}, v{vSBr} offset:{16*w}')
        return self.nlg
    def stats_finish(self, t, vInv, scale=None, pre=None):
        self.e(f'''
        v_pk_add_f32 {vr(t,2)}, {vr(t,2)}, {vr(t+4,2)}
        v_pk_add_f32 {vr(t+2,2)}, {vr(t+2,2)}, {vr(t+6,2)}
        v_pk_add_f32 {vr(t+8,2)}, {vr(t+8,2)}, {vr(t+12,2)}
        v_pk_add_f32 {vr(t+10,2)}, {vr(t+10,2)}, {vr(t+14,2)}
        v_pk_add_f32 {vr(t,2)}, {vr(t,2)}, {vr(t+8,2)}
        v_pk_add_f32 {vr(t+2,2)}, {vr(t+2,2)}, {vr(t+10,2)}
        v_pk_mul_f32 {vr(t+4,2)}, {vr(t,2)}, {vr(vInv,2)} op_sel_hi:[1,0]
        v_pk_mul_f32 {vr(t+6,2)}, {vr(t+2,2)}, {vr(vInv,2)} op_sel_hi:[1,0]
        v_fma_f32 v{t+5}, -v{t+4}, v{t+4}, v{t+5}
        v_fma_f32 v{t+7}, -v{t+6}, v{t+6}, v{t+7}
        v_max_f32 v{t+5}, 0, v{t+5}
        v_max_f32 v{t+7}, 0, v{t+7}
        {f'v_fmamk_f32 v{t+5}, v{t+5}, {fbits(pre)}, v{vInv+1}' if pre else f'v_add_f32 v{t+5}, v{vInv+1}, v{t+5}'}
        {f'v_fmamk_f32 v{t+7}, v{t+7}, {fbits(pre)}, v{vInv+1}' if pre else f'v_add_f32 v{t+7}, v{vInv+1}, v{t+7}'}
        v_rsq_f32 v{t}, v{t+5}
        v_rsq_f32 v{t+2}, v{t+7}''')
        if scale: self.e(f'v_mul_f32 v{t}, {fbits(scale)}, v{t}\nv_mul_f32 v{t+2}, {fbits(scale)}, v{t+2}')
        self.e(f'''
        v_mul_f32 v{t+1}, -v{t+4}, v{t}
        v_mul_f32 v{t+3}, -v{t+6}, v{t+2}''')
    def cmul(self, d, a, b):
        return [f'v_pk_mul_f32 {vr(d,2)}, {vr(a,2)}, {vr(b,2)} op_sel_hi:[1,0]',
                f'v_pk_fma_f32 {vr(d,2)}, {vr(a,2)}, {vr(b,2)}, {vr(d,2)} op_sel:[1,1,0] op_sel_hi:[0,1,1] neg_lo:[1,0,0]']
    def unpack(self, d, s): return [f'v_lshlrev_b32 v{d}, 16, v{s}', f'v_and_b32 v{d+1}, s{sMask}, v{s}']

    def dma_tile(self, i, slot):
        return [(i, slot, slot*32768 + hf*4096, i*32768 + hf*4096,
                 f'buffer_load_dwordx4 v1, {SRD}, s{sDmaT} offen offset:{e_*1024} sc1 lds') for hf in range(2) for e_ in range(4)]
    def set_m0(self, off):
        if self.m0 != off: self.e(f's_add_u32 m0, s{sDmaL}, {off}'); self.m0 = off

    def build(self):
        p = self.p; e = self.e
        k = NAME + '_kernel'
        p.add_launch(k, 256, 256, LDS_BYTES)
        p.begin(k)
        XR = 4; WM = 12; AB = 28; WG = 36
        vXO = 3; t = 68
        vTg = 252; vWgL = 35; vTab = 97; vPf = 255; vInv = 52; vDt = 34; vS = 54; vPolled = 123; vMBw = 79
        vSBw, vSBr, vMBr, vEM = 112, 113, 114, 115
        vRW, vKa, vKb0, vKb1 = 116, 117, 118, 119
        vWgS, vTw, vTr, vF = 124, 125, 126, 127
        vEX, vWdA, vBv, vOne = 64, 65, 66, 67
        vKw0, vKw1, vBd, vBd2 = 120, 121, 122, 123
        vPA, vPX, vQ, vUS = 56, 57, 58, 59
        vYw, vYr, vUB, vUw = 60, 61, 62, 63
        TP = 160; TB = 98304
        def consts(tid):
            w, l = tid >> 6, tid & 63; ch, hb = w >> 1, w & 1; c, q_, rp = l & 15, l >> 4, l & 3
            P = L_P + ch*PSZ; U = L_U + ch*USZ; RC = L_RC + ch*RCSZ
            lo, wd = [(3,3),(6,5),(5,7),(4,9)][w]
            x = l - 16 - lo
            band = (0x3f80 if 0 <= x < wd else 0) | (0x3f800000 if 0 <= x-1 < wd else 0)
            if c < 8: kw1 = P + 4*(608 + 16*[1,5,2,6,10,11,12,13][c] + 8*hb + 2*q_)
            elif 120 <= (tid & 127) < 125: kw1 = P + 4*((520 if c < 11 else 568) + c) - 932
            else: kw1 = L_JK
            sw = (((l >> 1) & 3) ^ q_) * 16
            full = [(tid >> 2)*HBLK + rp*16, (448*w + 16*((l>>4)&1) + 4*((l>>2)&3))*1024 + (l>>5)*64 + (l&3)*16, band, 0x3f800000 if q_ == 2 else 0]
            half = {vSBw: L_SB + rp*64 + w*16 + q_*4, vSBr: L_SB + rp*64,
              vMBr: L_MB + 4*(192*((l>>1)&1) + 2*(8*w + ((l>>2)&7)) + (l&1)), vMBw: L_MB + 32*tid,
              vRW: RC + 4*(tid & 127), vKa: RC + (16*hb + c)*RST + 16*q_,
              vKb0: RC + [0,1,2,3,4,5,6,7,8,8,9,10,10,10,11,12][c]*RST + 16*q_, vKb1: RC + [1,2,3,4,5,6,7,8,0,0,0,4,4,0,0,0][c]*RST + 16*q_,
              vF: 4*l, vTr: w*8192 + (l>>5)*256 + ((l>>2)&3)*64 + ((l>>4)&1)*32 + (l&3)*8,
              vEM: (l >> 2)*2048 + rp*16, vWgS: q_*512 + c*16,
              vKw0: P + 64 + 512*hb + 4*((c&7) + 256*(c>>3) + 32*q_), vKw1: kw1,
              vBd: L_BD + 4*(26 + c - 8*q_), vBd2: L_BD + 4*(26 + c - 8*q_) + 256*hb,
              vPA: P + 512*hb + 4*(26 + c - 8*q_), vPX: (P + 2048 if hb == 0 else L_ZB) + 4*(26 + c - 8*q_),
              vQ: P + 4*(608 + 12 + c - 4*q_) + 928*hb, vUS: U + 32*c + 16*q_ + 480 - 16*hb,
              vYw: L_Y + w*8192 + c*64 + sw, vYr: L_Y + (tid >> 2)*64 + (((rp >> 1) ^ ((tid >> 3) & 3))*16) + (rp & 1)*8, vUB: U + 32*c + 16*q_ + 288 - 256*hb, vUw: L_U + 512 + 4*tid}
            return full, half
        hlate = [vPA, vPX, vQ, vUS, vYw, vYr, vUB, vTr]
        hregs = [r for r in consts(0)[1] if r not in hlate] + hlate; assert len(hregs) == 24
        hbase = {r: (TB if consts(0)[1][r] >= TB else 0) for r in hregs}
        def trow(tid):
            full, half = consts(tid)
            h = [half[r] - hbase[r] for r in hregs]; assert all(0 <= v < 65536 for v in h)
            return [h[2*i] | h[2*i+1] << 16 for i in range(12)] + full
        self.table = [v for qd in range(4) for tid in range(256) for v in trow(tid)[4*qd:4*qd+4]]
        def tunpack():
            out = []
            for i, r in enumerate(hregs):
                b_ = f's{sT+9}' if hbase[r] else '0'
                out.append(f'v_add_u32_sdwa v{r}, {b_}, v{TP+(i>>1) if i < 16 else 144+(i>>1)} dst_sel:DWORD dst_unused:UNUSED_PAD src0_sel:DWORD src1_sel:WORD_{i&1}')
            return out
        MAP2 = self.opt('map2', 84)
        NF = self.opt('nf', 0)
        groups = ([tuple(range(NF))] if NF else []) + [(i,) for i in range(NF, 7)]
        korder = [7*pp + i for g in groups for pp in range(4) for i in g]
        wslot = [int(c) for c in str(self.opt('wslot', 'x0123232'))[1:]]
        wdq = [(Gl, jh, c) for Gl in range(7) for jh in range(2) for c in range(4)]
        trq = [(Gl, 4*Gl+c, f'ds_read_b64_tr_b16 {ar(8*(4*Gl+c)+4*cc+2*jh,2)}, v{vTw if wslot[Gl] >= 2 else vTr} offset:{(wslot[Gl]&1)*32768 + jh*4096 + c*1024 + cc*512}')
               for Gl in range(7) for c in range(4) for cc in range(2) for jh in range(2)]
        wd_id = {}; t_id = {}; g_last = {}; wopen = [-1]; trw = [0]; vW = [vWdA]; freed = set()
        def tr_ready(lag): return trq and trq[0][0] in wd_id and wd_id[trq[0][0]] <= self.nvm - lag
        def tr_pop():
            Gl, T, x = trq.pop(0)
            while Gl not in wd_id: wd_one()
            if wd_id[Gl] > trw[0]: trw[0] = wd_id[Gl]; e(f's_waitcnt {self.wvm(trw[0])}')
            e(x); t_id[T] = g_last[Gl] = self.nlg
        def free_slot(sl, upto):
            for Gl in range(upto):
                if wslot[Gl] == sl and Gl not in freed:
                    while trq and trq[0][0] <= Gl: tr_pop()
                    e(f's_waitcnt {self.wlg(g_last[Gl])}'); freed.add(Gl)
        def wd_can():
            if not wdq or wdq[0][0] > wopen[0]: return False
            Gl = wdq[0][0]
            return all(G2 in freed or (G2 in g_last and (not trq or trq[0][0] > G2)) for G2 in range(Gl) if wslot[G2] == wslot[Gl])
        def wd_one():
            Gl, jh, c = wdq.pop(0); assert Gl <= wopen[0], Gl
            free_slot(wslot[Gl], Gl)
            self.set_m0(wslot[Gl]*32768 + jh*4096)
            if c == 0 and (Gl or jh): e(f'v_add_u32 v{vW[0]}, 32768, v{vW[0]}')
            i_ = e(f'global_load_lds_dwordx4 v{vW[0]}, {sp(pWd)} offset:{1024*c}')
            if c == 3 and jh == 1: wd_id[Gl] = i_
        def wd_issue(n):
            for _ in range(n):
                if wd_can(): wd_one()
        dma_id = {}; gcur = [None]
        def tile_one(q_):
            i, sl, off, go, x = q_.pop(0)
            free_slot(sl, 4 if i <= 4 else 0)
            self.set_m0(off)
            if gcur[0] != go: e(f's_add_u32 s{sDmaT}, s{sDmaG}, {go}'); gcur[0] = go
            dma_id[i] = e(x)
        def tr_do(n):
            for _ in range(4*n):
                if tr_ready(self.opt('trlag', 6)): tr_pop()
        if self.stamps and self.o.get('probe') is None:
            e(f'{"s_memtime" if self.opt("cyc", 0) else "s_memrealtime"} s[{sStamp}:{sStamp+1}]'); self.ns += 1; self.stamp_names.append('start')
        XF1 = self.opt('xfirst', 0)
        if XF1:
            e(f"""
            s_load_dwordx2 {sp(sBad)}, s[0:1], 0
            s_cmp_ge_u32 s2, 256
            s_cbranch_scc1 L_end
            s_lshr_b32 s3, s2, 3
            s_and_b32 s{sT+1}, s2, 7
            s_lshl_b32 s{sL}, s{sT+1}, 5
            s_or_b32 s{sL}, s{sL}, s3
            v_and_b32 v{t+2}, 3, v0
            v_and_b32 v{t+3}, 0xfc, v0
            s_lshl_b32 s{sT+3}, s{sL}, 13
            v_lshl_add_u32 v{t+3}, v{t+3}, 2, s{sT+3}
            v_lshl_add_u32 v{vXO}, v{t+2}, 11, v{t+3}
            s_waitcnt lgkmcnt(0)
            global_load_dwordx4 {vr(XR,4)}, v{vXO}, {sp(sBad)}""")
            id_x = e(f'global_load_dwordx4 {vr(XR+4,4)}, v{vXO}, {sp(sBad)} offset:1024')
        e(f"""
        s_load_dwordx16 s[4:19], s[0:1], 0
        s_load_dwordx16 s[20:35], s[0:1], 64
        s_load_dwordx4 s[36:39], s[0:1], 128
        s_cmp_ge_u32 s2, 256
        s_cbranch_scc1 L_end
        v_lshrrev_b32 v{t}, 6, v0
        v_and_b32 v{t+1}, 63, v0
        v_readfirstlane_b32 s{sW}, v{t}
        s_lshr_b32 s3, s2, 3
        s_getpc_b64 {sp(sM)}
        L_pc:
        s_lshl2_add_u32 s{sT}, s3, s{sW}
        s_lshl_b32 s{sM+2}, s{sT}, 8
        s_min_u32 s{sM+2}, s{sM+2}, L_end-L_pc-256
        v_lshl_add_u32 v{t+7}, v{t+1}, 2, s{sM+2}
        global_load_dword v123, v{t+7}, {sp(sM)}
        s_add_u32 s{sM+4}, s{sM}, L_tab-L_pc+4096
        s_addc_u32 s{sM+5}, s{sM+1}, 0
        v_lshlrev_b32 v{vTab}, 4, v0""")
        id_tab = e(f"""
        global_load_dwordx4 {vr(TP,4)}, v{vTab}, {sp(sM+4)} offset:-4096
        global_load_dwordx4 {vr(TP+4,4)}, v{vTab}, {sp(sM+4)}
        v_add_u32 v{vTab}, 8192, v{vTab}
        global_load_dwordx4 {vr(152,4)}, v{vTab}, {sp(sM+4)} offset:-4096
        global_load_dwordx4 {vr(vEX,4)}, v{vTab}, {sp(sM+4)}""")
        e(f"""
        s_and_b32 s{sT+1}, s2, 7
        s_lshl_b32 s{sL}, s{sT+1}, 5
        s_or_b32 s{sL}, s{sL}, s3
        v_lshlrev_b32 v1, 4, v{t+1}
        v_and_b32 v{t+2}, 3, v0
        v_and_b32 v{t+3}, 0xfc, v0
        s_lshl_b32 s{sT+3}, s{sL}, 13
        v_lshl_add_u32 v{t+3}, v{t+3}, 2, s{sT+3}
        v_lshl_add_u32 v{vXO}, v{t+2}, 11, v{t+3}
        v_lshrrev_b32 v{t+4}, 3, v{t+1}
        v_min_u32 v{t+4}, 5, v{t+4}
        v_and_b32 v{t+5}, 0x70, v1
        v_lshl_add_u32 v{t+4}, v{t+4}, 10, v{t+5}
        s_lshl_b32 s{sT+2}, s{sT}, 3
        s_mul_i32 s{sT}, s{sT}, {4*6144}
        s_lshl_b32 s{sT+1}, s{sT+1}, 7
        s_add_u32 s{sT}, s{sT}, s{sT+1}
        s_add_u32 s{sT}, s{sT}, 3072
        v_add_u32 v{t+4}, s{sT}, v{t+4}
        v_add_u32 v{t+5}, 12288, v{t+4}
        s_lshl_b32 s{sT}, s{sL}, 9
        v_lshl_add_u32 v{t+6}, v0, 1, s{sT}
        s_lshl_b32 s{sT+3}, s{sL}, 2
        """)
        for i in range(6): e(f'v_mov_b32 v{AB+i}, 0')
        e('s_waitcnt lgkmcnt(0)')
        self.stamp('karg')
        e(f"""
        s_load_dwordx2 {sp(sT+4)}, {sp(pC)}, s{sT+2}""")
        if not XF1: id_x = e(f'global_load_dwordx4 {vr(XR,4)}, v{vXO}, {sp(pX)}\nglobal_load_dwordx4 {vr(XR+4,4)}, v{vXO}, {sp(pX)} offset:1024')
        id_ep = e(f"""
        s_load_dword s{sT+6}, {sp(pLdt)}, s{sT+3}
        s_load_dword s{sDsk+1}, {sp(pD)}, s{sT+3}
        global_load_dword v2, v{AB}, {sp(pWs)} sc1""")
        for i, ptr in enumerate([pAre,pAim,pBre,pBim,pCre,pCim]):
            id_ab = e(f'global_load_short_d16_hi v{AB+i}, v{t+6}, {sp(ptr)}')
        idm = [0]
        def wm_issue(k_):
            if self.opt('wmat', 1) == k_: idm[0] = e(f"""
            global_load_dwordx4 {vr(WM,4)}, v{t+4}, {sp(pWm)} offset:-3072
            global_load_dwordx4 {vr(WM+4,4)}, v{t+4}, {sp(pWm)} offset:3072
            global_load_dwordx4 {vr(WM+8,4)}, v{t+5}, {sp(pWm)} offset:-3072
            global_load_dwordx4 {vr(WM+12,4)}, v{t+5}, {sp(pWm)} offset:3072""")
        wm_issue(0)
        GR = 144
        u = 92
        e(f"""
        s_mov_b32 s{sMask}, 0xffff0000
        s_mov_b32 s{sLo}, 0x05040100
        s_mov_b32 s{sHi}, 0x07060302
        s_mov_b32 s{sOnes}, 0x3f803f80
        v_mov_b32 v{t+12}, {fbits(-1.4426950408889634)}
        s_add_u32 s{sT+7}, s{sT+3}, s{sW}
        s_min_u32 s{sT}, s{sT+7}, 895
        v_and_b32 v{t+8}, 15, v{t+1}
        s_lshl_b32 s37, s{sT}, 11
        s_mov_b64 s[0:1], {sp(pWd)}
        s_bitcmp1_b32 s{sT}, 0
        s_cselect_b32 s{pWu}, s{pWu}, s{pWg}
        s_cselect_b32 s{pWu+1}, s{pWu+1}, s{pWg+1}
        s_cselect_b32 s{sWs}, 256, 0
        s_bfe_u32 s{sT+1}, s{sT}, 0x40001
        s_lshr_b32 s{sT+2}, s{sT}, 5
        s_mul_i32 s{sT+8}, s{sT+1}, {32*3584}
        s_lshl_b32 s{sT+3}, s{sT+2}, 7
        s_add_u32 s{sT+8}, s{sT+8}, s{sT+3}
        v_lshrrev_b32 v{t+7}, 4, v{t+1}
        v_mul_u32_u24 v{t+7}, {8*3584}, v{t+7}
        v_lshl_add_u32 v{t+10}, v{t+8}, 3, s{sT+8}
        v_add_u32 v{vWgL}, v{t+10}, v{t+7}
        s_lshl_b32 s{sF1o}, s{sT+7}, 7
        s_add_u32 s{sF1o}, s{sF1o}, {F1}
        v_mov_b32 v{u}, 0
        v_mov_b32 v{u+1}, 0
        v_mov_b32 v{u+2}, 0
        v_mov_b32 v{u+3}, 0
        v_lshlrev_b32 v{u+4}, 4, v0
        v_add_u32 v{u+4}, {L_P}, v{u+4}
        s_lshr_b32 s{sCh}, s{sW}, 1
        s_mul_i32 s{sT}, s{sCh}, {USZ-512}
        s_add_u32 s{sT}, s{sT}, {L_U}
        v_lshl_add_u32 v{t+9}, v0, 2, s{sT}
        s_mov_b32 s{sT+9}, {TB}
        """)
        wm_issue(1)
        e(f"""
        ds_write_b128 v{u+4}, {vr(u,4)}
        ds_write_b128 v{u+4}, {vr(u,4)} offset:4096
        ds_write_b128 v{u+4}, {vr(u,4)} offset:8192
        ds_write_b32 v{t+9}, v{u}
        """)
        e(f"""
        s_mov_b32 s40, s{pWs}
        s_mov_b32 s41, s{pWs+1}
        s_mov_b32 s42, {WS_BYTES}
        s_mov_b32 s43, 0x20000
        s_mov_b32 s{sCnt}, {self.opt('cnt', 40000)}
        v_mov_b32 v{vInv}, {fbits(1/512)}
        v_mov_b32 v{vInv+1}, {fbits(1e-5)}
        s_mul_i32 s{sT}, s{sL}, {HBLK}
        s_lshl_b32 s{sT+1}, s{sW}, 11
        s_add_u32 s{sT+1}, s{sT}, s{sT+1}
        s_add_u32 s{sT+1}, s{sT+1}, {XH}
        s_lshl_b32 s{sT+2}, s{sT+7}, 9
        s_add_u32 s{sT+2}, s{sT+2}, {MODP}
        s_mov_b32 s{sTag}, 1664525
        s_lshl_b32 s{sT+3}, s{sW}, 10
        s_add_u32 s{sT}, s{sT}, s{sT+3}
        s_add_u32 s{sZs}, s{sT}, {ZY}
        s_add_u32 s{sZs+1}, s{sT}, {ZY+4096}
        s_lshl_b32 s{sZs+3}, s{sL}, 4
        s_add_u32 s{sZs+3}, s{sZs+3}, {MX}
        s_cmp_eq_u32 s{sW}, 0
        s_cselect_b32 s{sZs+2}, s{sZs+3}, {WS_BYTES}
        s_mov_b32 s{sTm}, {TAGM}
        v_lshlrev_b32 v{vTg}, 2, v{t+2}
        v_add_u32 v{vTg+1}, 2, v{vTg}""")
        lateE = [x for x in f"""
        s_lshr_b32 s{sT}, s{sL}, 6
        s_bfe_u32 s{sT+3}, s{sL}, 0x10001
        s_lshl1_add_u32 s{sT}, s{sT}, s{sT+3}
        s_bfe_u32 s{sT+3}, s{sL}, 0x40002
        s_lshl4_add_u32 s{sT}, s{sT}, s{sT+3}
        s_and_b32 s{sT+3}, s{sL}, 1
        s_lshl3_add_u32 s{sT}, s{sT}, s{sT+3}
        s_lshl_b32 s{sT}, s{sT}, 3
        s_add_u32 s{sE1}, s{sT}, {XH}
        s_add_u32 s{sE1+1}, s{sT}, {XH+64*HBLK}
        s_add_u32 s{sE1+2}, s{sT}, {XH+128*HBLK}
        s_add_u32 s{sE1+3}, s{sT}, {XH+192*HBLK}
        s_and_b32 s{sT}, s2, 7
        s_lshl_b32 s{sT}, s{sT}, 10
        s_add_u32 s{sT}, s{sT}, s3
        s_lshl_b32 s{sT}, s{sT}, 6
        s_add_u32 s{sE1+4}, s{sT}, {MODP}
        s_add_u32 s{sE1+5}, s{sT}, {MODP+32768}
        """.split('\n') if x.strip()]
        DF = self.opt('defer', 1)
        if not DF:
            while lateE: e(lateE.pop(0))
        wgq = []; idw = [0]
        for jj in range(8):
            wgq.append(f'global_load_dwordx2 {vr(WG+2*jj,2)}, v{vWgL}, {sp(pWu)} offset:{3584*(jj&1)}' + (f'\nv_add_u32 v{vWgL}, 7168, v{vWgL}' if jj & 1 and jj < 7 else ''))
        def wg_issue(n):
            for _ in range(n):
                if wgq: idw[0] = e(wgq.pop(0))
        WGA = self.opt('wgat', 7)
        wm_issue(2); id_wm = idm[0]
        PFA = self.opt('pfat', 1)
        def wd_pf(r=vPf): e(f'v_and_b32 v{r}, 15, v0\nv_lshl_add_u32 v{r}, v{r}, 7, s37\nglobal_load_dword a223, v{r}, s[0:1]')
        if PFA == 0: wd_pf()
        PF2 = self.opt('pf2', 3); vPf2 = 35; assert PF2 in (-1, 2, 3, 4) and WGA in (0, 1, 5, 6, 7, 8)
        lateK = [x for x in f"""
        s_and_b32 s{sT}, s{sT+7}, 127
        s_mul_i32 s{sT}, s{sT}, 28
        s_bfe_u32 s{sT+3}, s2, {0x10001 if MAP2 == 84 else 0x10000 if MAP2 == 45 else 0}
        s_add_u32 s{sT}, s{sT}, s{sT+3}
        s_lshl_b32 s{sT}, s{sT}, 9
        s_add_u32 s15, s{sT}, 384
        s_lshr_b32 s{sT}, s{sT+7}, 5
        s_lshl_b32 s{sT}, s{sT}, 6
        s_bfe_u32 s{sT+3}, s{sT+7}, 0x40001
        s_add_u32 s{sT}, s{sT}, s{sT+3}
        s_lshl_b32 s{sT}, s{sT}, 11
        s_add_u32 s{sWs}, s{sWs}, s{sT}
        s_add_u32 s{sWs}, s{sWs}, {WGU}
        s_cmp_ge_u32 s{sL}, 224|s_cselect_b32 s{sWs}, {WS_BYTES}, s{sWs}
        s_bfe_u32 s{sT}, s{sL}, {0x10006 if MAP2 == 84 else 0x10005 if MAP2 == 45 else 0x10002}
        s_and_b32 s{sDt}, s{sL}, 3
        s_lshl2_add_u32 s{sDt}, s{sT}, s{sDt}
        s_lshl_b32 s{sT}, s{sDt}, 7
        s_add_u32 s{pWd}, s{pWd}, s{sT}|s_addc_u32 s{pWd+1}, s{pWd+1}, 0
        s_lshl_b32 s{sDmaL}, s{sW}, 13""".split('\n') if x.strip()]
        lateK = [x.replace('|', '\n') for x in lateK]
        assert not self.opt('wde', 0) and self.opt('wjn', -1) >= -1
        def wd_pf2(k_):
            if PF2 == k_: e(f'v_min_u32 v{vPf2}, {13*16}, v1\nv_lshl_add_u32 v{vPf2}, v{vPf2}, 6, s15\nglobal_load_dword a222, v{vPf2}, s[0:1]')
        wd_pf2(0)
        TCH = self.opt('tch', 1); NZ = self.opt('tchz', 8); vTc = 158
        if TCH >= 0:
            e(f"""
            v_and_b32 v{vTc-1}, 7, v0
            v_lshl_add_u32 v{vTc-2}, v{vTc-1}, 7, s{sZs+1}
            s_sub_u32 s{sT}, s{sF1o}, {F1-F3}
            v_cmp_gt_u32 vcc, 2, v{vTc-1}
            v_lshl_add_u32 v{vTc-1}, v{vTc-1}, 19, s{sT}
            v_mov_b32 v{vTc}, s{sZs+3}
            v_cndmask_b32 v{vTc}, v{vTc}, v{vTc-1}, vcc""")
            if self.opt('tchs', 0): e(f"""
            s_lshr_b32 s{sT}, s{sL}, 2
            s_lshl2_add_u32 s{sT}, s{sT}, s{sW}
            s_lshl_b32 s{sT}, s{sT}, 5
            s_and_b32 s{sT+3}, s{sL}, 3
            s_add_u32 s{sT}, s{sT}, s{sT+3}
            s_lshl_b32 s{sT}, s{sT}, 8
            s_add_u32 s{sT}, s{sT}, {H2}
            v_and_b32 v{vTc-1}, 6, v0
            v_cmp_eq_u32 vcc, 2, v{vTc-1}
            v_and_b32 v{vTc-1}, 1, v0
            v_lshl_add_u32 v{vTc-1}, v{vTc-1}, 7, s{sT}
            v_cndmask_b32 v{vTc}, v{vTc}, v{vTc-1}, vcc""")
            e(f"""
            v_cmp_gt_u32 vcc, {NZ*16}, v1
            s_nop 1
            v_cndmask_b32 v{vTc}, v{vTc}, v{vTc-2}, vcc""")
        if self.opt('tchh', -1) >= 0:
            e(f"""
            s_lshr_b32 s{sT}, s{sL}, 2
            s_lshl2_add_u32 s{sT}, s{sT}, s{sW}
            s_lshl_b32 s{sT}, s{sT}, 5
            s_and_b32 s{sT+3}, s{sL}, 3
            s_add_u32 s{sT}, s{sT}, s{sT+3}
            s_lshl_b32 s{sT}, s{sT}, 8
            s_add_u32 s{sT}, s{sT}, {H2}
            v_bfe_u32 v154, v0, 1, 3
            v_lshl_add_u32 v154, v154, 10, s{sT}
            v_and_b32 v153, 1, v0
            v_lshl_add_u32 v154, v153, 7, v154""")
        def touch(k_):
            if self.opt('tchh', -1) == k_: e(f'global_load_dword a220, v154, {sp(pWs)}')
            if TCH == k_: e(f'global_load_dword a221, v{vTc}, {sp(pWs)}')
        touch(0)
        if WGA == 0: wg_issue(8)
        self.stamp('_pretab')
        e(f's_waitcnt {self.wvm(id_tab)}')
        self.stamp('_tab')
        tu = tunpack()
        for x in tu[:16]: e(x)
        lateK += tu[16:]
        if not DF:
            while lateK: e(lateK.pop(0))
        wm_issue(3); id_wm = idm[0]
        sc = sM + 6
        e(f"""
        s_waitcnt lgkmcnt(0)
        s_lshl_b32 s{sc}, s{sT+4}, 16
        s_and_b32 s{sc+1}, s{sT+4}, s{sMask}
        s_lshl_b32 s{sc+2}, s{sT+5}, 16
        s_and_b32 s{sc+3}, s{sT+5}, s{sMask}""")
        self.stamp('_smem')
        for i in range(4): e(f'v_mul_f32 v{t+13+i}, s{sc+i}, v{t+12}')
        e(f"""
        s_lshl_b32 s{sT+4}, s{sCh}, 4
        s_lshr_b32 s{sT+5}, s{sT+6}, s{sT+4}
        s_lshl_b32 s{sT+5}, s{sT+5}, 16""")
        for i in range(4): e(f'v_exp_f32 v{t+13+i}, v{t+13+i}')
        e(f'v_mul_f32 v{vDt}, s{sT+5}, -v{t+12}')
        for i in range(4): e(f'v_add_f32 v{t+13+i}, 1.0, v{t+13+i}')
        e(f'v_exp_f32 v{vDt}, v{vDt}')
        for i in range(4): e(f'v_rcp_f32 v{t+13+i}, v{t+13+i}')
        e(f'v_cvt_pk_bf16_f32 v{vDt}, v{vDt}, v{vDt}')
        for i in range(4): e(f'v_mul_f32 v{t+13+i}, s{sc+i}, v{t+13+i}')
        e(f"""v_lshlrev_b32 v{vDt}, 16, v{vDt}
        v_cvt_pk_bf16_f32 v{vS}, v{t+13}, v{t+14}
        v_cvt_pk_bf16_f32 v{vS+1}, v{t+15}, v{t+16}
        s_lshr_b32 s{sDsk}, s{sDsk+1}, s{sT+4}
        s_lshl_b32 s{sDsk}, s{sDsk}, 16""")
        self.stamp('_pre_x')
        e(f's_waitcnt {self.wvm(id_x)}')
        self.stamp('x_arrived')
        if PFA == 5: wd_pf()
        if WGA == 5: wg_issue(8)
        XF = 128
        unp = [x for r in range(2) for i in range(4) for x in self.unpack(XF+8*r+2*i, XR+4*r+i)]
        self.stats_partial(XR, t, vSBw, unp)
        unp = self.rest
        MA = 160; MP = 168; MR = 176; MPOS = self.opt('modpos', 1)
        def mod_partial():
            e(f's_waitcnt {self.wvm(id_wm)}')
            self.stamp('_wm')
            for h in range(2):
                for m in range(4):
                    e(f"""v_perm_b32 v{MP+2*m}, v{WM+8*h+4+m}, v{WM+8*h+m}, s{sLo}
                    v_perm_b32 v{MP+1+2*m}, v{WM+8*h+4+m}, v{WM+8*h+m}, s{sHi}""")
                for m in range(8):
                    e(f'v_dot2_f32_bf16 v{MA+m}, v{MP+m}, v{vS+h}, {"0" if h==0 else "v%d"%(MA+m)}')
            e(f'ds_write_b128 v{vMBw}, {vr(MA,4)}')
            if unp: e(unp.pop(0)); e(unp.pop(0))
            e(f'ds_write_b128 v{vMBw}, {vr(MA+4,4)} offset:16')
        def mod_read():
            if MPOS == 1: e('s_waitcnt lgkmcnt(0)\ns_barrier')
            for w in range(0, 4, 2):
                for i in range(3):
                    e(f'ds_read2st64_b32 {vr(MR+3*w+2*i,2)}, v{vMBr} offset0:{8*w+i} offset1:{8*w+8+i}')
            return self.nlg
        def mod_store(i_):
            e(f"""
            s_waitcnt {self.wlg(i_)}
            v_pk_add_f32 {vr(MR,2)}, {vr(MR,2)}, {vr(MR+6,2)}
            v_pk_add_f32 {vr(MR+2,2)}, {vr(MR+2,2)}, {vr(MR+8,2)}
            v_pk_add_f32 {vr(MR+4,2)}, {vr(MR+4,2)}, {vr(MR+10,2)}
            v_mov_b32 v{MR+15}, v2
            v_add_f32 v{MR+12}, v{MR}, v{MR+1}
            v_add_f32 v{MR+13}, v{MR+2}, v{MR+3}
            v_add_f32 v{MR+14}, v{MR+4}, v{MR+5}
            s_mov_b32 exec_hi, 0
            buffer_store_dwordx4 {vr(MR+12,4)}, v1, {SRD}, s{sT+2} offen sc1
            s_mov_b32 exec_hi, -1""")
            self.stamp('_modst')
            if PFA == 1: wd_pf()
            wd_pf2(1)
            touch(1)
            if self.opt('wde', 0):
                assert wslot[0] == 2 and self.opt('modfast', 1); wopen[0] = 0; wd_issue(self.opt('wde', 0))
            if WGA == 1: wg_issue(8)
        if MPOS == 0: mod_partial()
        e(f'v_add_u32 v{t+1}, {L_BD-L_U-512}, v{vUw}\nds_write_b32 v{t+1}, v{vBv}')
        if WGA == 7: wg_issue(8)
        e(f's_waitcnt {self.wvm(id_ep)} lgkmcnt(1)\ns_barrier')
        self.stamp('_bar0')
        ST = 84
        id_st = self.stats_read(ST, vSBr)
        if MPOS == 0: id_mr = mod_read()
        if WGA == 8: wg_issue(8)
        while unp: e(unp.pop(0))
        e(f'v_mul_lo_u32 v{t}, v2, s{sTag}\ns_mov_b32 s{sTag}, 0x15554000\nv_add_u32 v{t}, 1013904223, v{t}\nv_bitop3_b32 v2, v{t}, v2, s{sTag} bitop3:0x72')
        vTP = 26
        e(f"""v_alignbit_b32 v{vTg}, v2, v2, v{vTg}
        v_alignbit_b32 v{vTg+1}, v2, v2, v{vTg+1}
        v_and_b32 v{vTg}, s{sTm}, v{vTg}
        v_and_b32 v{vTg+1}, s{sTm}, v{vTg+1}""")
        e(f's_waitcnt {self.wlg(id_st)}')
        self.stats_finish(ST, vInv, 2.0**-100)
        for i in range(4):
            for r in range(2):
                x = XF+8*r+2*i
                e(f'v_pk_fma_f32 {vr(x,2)}, {vr(x,2)}, {vr(ST+2*r,2)}, {vr(ST+2*r,2)} op_sel:[0,0,1] op_sel_hi:[1,0,1]')
            for r in range(2):
                x = XF+8*r+2*i
                e(f'v_cvt_pk_bf16_f32 v{GR+2*i+r}, v{x}, v{x+1}')
            for r in range(2):
                e(f'v_bfi_b32 v{GR+2*i+r}, s{sTm}, v{vTg+r}, v{GR+2*i+r}')
            if i & 1: e(f'buffer_store_dwordx4 {vr(GR+2*i-2,4)}, v1, {SRD}, s{sT+1} offen offset:{512*(i-1)} sc1')
        self.stamp('e1_stored')
        if WGA == 6: wg_issue(8)
        if MPOS == 1: mod_partial()
        if MPOS == 0: mod_store(id_mr)
        e(f's_waitcnt {self.wvm(id_ab)}\nv_mul_f32 v68, v{vDt}, v{AB}\nv_mov_b32 v{vTP}, v{vTg}\nv_mov_b32 v{vTP+1}, v{vTg+1}')
        wst = [0]
        def wjob_ops(OB=20, nb=2):
            out = []
            for c in range(4):
                O = OB + 4*(c % nb)
                out += [f'v_perm_b32 v{O+m}, v{WG+2*(2*m+1)+(c>>1)}, v{WG+2*(2*m)+(c>>1)}, s{sHi if c&1 else sLo}' for m in range(4)]
                out += [f'v_add_u32 v{O+m}, 0x20002000, v{O+m}' for m in range(2)]
                out.append(f'buffer_store_dwordx4 {vr(O,4)}, v{vWgS}, {SRD}, s{sWs} offen sc1' + (f'\ns_add_u32 s{sWs}, s{sWs}, 32768' if c < 3 else ''))
            return out
        WJN = self.opt('wjn', -1)
        al, be = 68, 69
        Z1, Z8, Z256, Wc = 70, 72, 74, 76
        q = 78
        e(f"""
        v_mul_f32 v{be}, v{vDt}, v{AB+1}
        v_mul_f32 v{AB+2}, v{vDt}, v{AB+2}
        v_mul_f32 v{AB+3}, v{vDt}, v{AB+3}
        v_mul_f32 v{q}, {fbits(1.4426950408889634)}, v{al}
        v_mul_f32 v{q+1}, 0.15915494, v{be}
        v_mul_f32 v{Wc}, v{AB+4}, v{AB+2}
        v_mul_f32 v{Wc+1}, v{AB+4}, v{AB+3}
        v_mul_f32 v{q+3}, {fbits(8.0)}, v{q}
        v_mul_f32 v{q+4}, {fbits(8.0)}, v{q+1}
        v_mul_f32 v{q+6}, {fbits(256.0)}, v{q}
        v_mul_f32 v{q+7}, {fbits(256.0)}, v{q+1}
        v_fma_f32 v{Wc}, -v{AB+5}, v{AB+3}, v{Wc}
        v_fma_f32 v{Wc+1}, -v{AB+5}, v{AB+2}, -v{Wc+1}
        """)
        MF = self.opt('modfast', 1)
        if MPOS == 1 and MF: id_mr = mod_read()
        for n_ in range(3): e(f'v_exp_f32 v{q+3*n_}, v{q+3*n_}\nv_fract_f32 v{q+3*n_+1}, v{q+3*n_+1}')
        for n_ in range(3): e(f'v_sin_f32 v{q+3*n_+2}, v{q+3*n_+1}\nv_cos_f32 v{q+3*n_+1}, v{q+3*n_+1}')
        if MPOS == 1 and MF: mod_store(id_mr)
        e(f'v_and_b32 v87, 127, v0\nv_cmp_eq_u32 vcc, 0, v87')
        for n_, (Z, conj) in enumerate([(Z1,True),(Z8,False),(Z256,True)]):
            e(f'v_mul_f32 v{Z}, v{q+3*n_}, v{q+3*n_+1}\nv_mul_f32 v{Z+1}, {"-" if conj else ""}v{q+3*n_}, v{q+3*n_+2}')
        e(f'v_readfirstlane_b32 s{sT}, v{vRW}')
        if MPOS == 1 and not MF: id_mr = mod_read()
        e(f's_mov_b32 m0, s{sT}'); self.m0 = None
        def put(src, row, pk):
            return [f'v_cvt_pk_bf16_f32 v{pk}, v{src}, v{src+1}', f'ds_write_addtid_b32 v{pk} offset:{row*RST}' if self.opt('addtid', 1) else f'ds_write_b32 v{vRW}, v{pk} offset:{row*RST}']
        Z16 = 78
        R0 = [[f'v_mov_b32 v88, 0x3f80', f'ds_write_b32 v{vRW}, v88'], self.cmul(Z16, Z8, Z8) + put(Z16, 2, 88)]
        R1 = [put(Z8, 1, 84), []]
        cur = [Z16, Z8]; bufs = [[80, 82], [90, 92]]
        for rho in range(3, 32):
            par = rho & 1
            d = bufs[par][(rho >> 1) & 1]
            (R1 if par else R0).append(self.cmul(d, cur[par], Z16) + put(d, rho, 84 if par else 88)); cur[par] = d
        Cq = [put(Wc, 32, 89)]
        cr = {0: Wc}
        reg = {1:110, 2:94, 3:110, 4:96, 5:110, 6:98, 7:110, 8:100}
        for ee in range(1, 9):
            Cq.append(self.cmul(reg[ee], cr[ee-1], Z1) + (put(reg[ee], 32+ee, 89) if ee < 8 else [])); cr[ee] = reg[ee]
        chain = [(264,8,44,102),(520,264,46,104),(776,520,48,102),(1032,776,49,104),(1288,1032,50,102),(1544,1288,51,104),(1800,1544,52,102)]
        for ee, src, row, d in chain:
            Cq.append(self.cmul(d, cr[src], Z256) + put(d, row, 89)); cr[ee] = d
        side = [(260,4,42,106),(516,260,45,108),(772,516,47,106)]
        for ee, src, row, d in side:
            R0.append(self.cmul(d, cr[src], Z256) + put(d, row, 88)); cr[ee] = d
        R1.append(self.cmul(90, cr[0], Z256) + put(90, 40, 84))
        R1.append(self.cmul(92, cr[2], Z256) + put(92, 41, 84))
        Cq.append(self.cmul(110, cr[6], Z256) + put(110, 43, 89))
        KD = 12
        Cq.append([f'v_mov_b32 v{KD+1}, s{sDsk}', f'v_mov_b32 v{KD+2}, 0', f'v_cndmask_b32 v{KD}, 0, v{KD+1}, vcc', f'v_mov_b32 v{KD+1}, 0'])
        Cq.append([f'v_mov_b32 v{KD+3}, 0', f'v_mul_f32 v{vBv}, {fbits(2.0**36)}, v{vOne}', f'v_max_f32 v{vBv}, {fbits(2.0**-64)}, v{vBv}'])
        for n_ in range(max(len(R0), len(R1), len(Cq))):
            st = [a_[n_] if n_ < len(a_) else [] for a_ in (R0, R1, Cq)]
            for j in range(4):
                for a_ in st:
                    if j < len(a_): e(a_[j])
            if n_ == 1 and MPOS == 1 and not MF: mod_store(id_mr)
            if WJN <= -2 and n_ == -WJN-1:
                e(f's_waitcnt {self.wvm(idw[0])}')
                for x in wjob_ops(128): wst[0] = e(x)
        self.stamp('kgen1')
        EG = 68
        e1m = '\n'.join(f'buffer_load_dwordx4 {vr(EG+16+4*i,4)}, v{vEM}, {SRD}, s{sE1+4+i} offen sc1' for i in range(2))
        e1x = '\n'.join(f'buffer_load_dwordx2 {vr(EG+2*i,2)}, v{vEX}, {SRD}, s{sE1+i} offen sc1' for i in range(4))
        e1_loads = e1x + '\n' + e1m
        E1AT = self.opt('e1at', 1); E1M = self.opt('e1m', 2); ide = [0]
        def e1_issue(k_):
            if E1AT == k_: ide[0] = e(e1x)
            if max(E1M, E1AT) == k_: ide[0] = e(e1m)
        e('s_waitcnt lgkmcnt(0)')
        if E1AT == 0:
            while lateE: e(lateE.pop(0))
        e1_issue(0)
        e('s_barrier')
        self.stamp('_kbar1')
        KF = 160
        kf_id = []
        for kk in range(8):
            e(f"""ds_read_b128 {vr(KF+12*kk,4)}, v{vKa} offset:{64*kk}
            ds_read_b128 {vr(KF+12*kk+4,4)}, v{vKb0} offset:{32*RST+64*kk}
            ds_read_b128 {vr(KF+12*kk+8,4)}, v{vKb1} offset:{44*RST+64*kk}""")
            kf_id.append(self.nlg)
            for _ in range(4 if kk < 4 else 99):
                if lateE: e(lateE.pop(0))
            if kk == 4:
                e1_issue(1)
        for kk in range(8):
            e(f's_waitcnt {self.wlg(kf_id[kk])}')
            for cb in range(2):
                e(f'v_mfma_f32_16x16x32_bf16 {vr(KD+4*cb,4)}, {vr(KF+12*kk,4)}, {vr(KF+12*kk+4+4*cb,4)}, {"0" if kk==0 and cb==1 else vr(KD+4*cb,4)}')
                for _ in range(2 - cb):
                    if lateK: e(lateK.pop(0))
        while lateK: e(lateK.pop(0))
        e1_issue(2)
        if PFA == 2: wd_pf(35)
        wd_pf2(2)
        touch(2)
        if self.opt('wde2', 0):
            assert wslot[0] == 2; wopen[0] = 0; wd_issue(self.opt('wde2', 0))
        if WGA == 2: wg_issue(8)
        AN = 128; AX = 160; T2 = 192; T3 = 204; BND = 196; SF2 = 208; SF3 = 232; SD = 240; US = 72
        e(f"""
        ds_read2_b32 {vr(BND,2)}, v{vBd} offset0:6 offset1:4
        ds_read2_b32 {vr(BND+2,2)}, v{vBd} offset0:2 offset1:0
        ds_read2_b32 {vr(BND+4,2)}, v{vBd} offset0:70 offset1:68
        ds_read2_b32 {vr(BND+6,2)}, v{vBd} offset0:66 offset1:64
        ds_read2_b32 {vr(BND+8,2)}, v{vBd2} offset0:134 offset1:132
        ds_read2_b32 {vr(BND+10,2)}, v{vBd2} offset0:130 offset1:128""")
        for cb in range(2):
            for j in range(2):
                e(f'v_cvt_pk_bf16_f32 v{KD+8+2*cb+j}, v{KD+4*cb+2*j}, v{KD+4*cb+2*j+1}')
        def scat(cb, j):
            va = (vKw0, vKw1)[cb]; off = 32*j if cb == 0 else (j&1)*928 + (j>>1)*4
            op = 'ds_write_b16_d16_hi' if j & 1 else 'ds_write_b16'
            e(f'{op} v{va}, v{KD+8+2*cb+(j>>1)} offset:{off}\n{op} v{va}, v{KD+8+2*cb+(j>>1)} offset:{off+6}')
        for j in range(4): scat(0, j)
        scat(1, 3)
        e('s_mov_b32 exec_lo, 0x00ff00ff\ns_mov_b32 exec_hi, 0x00ff00ff')
        for j in range(3): scat(1, j)
        e('s_mov_b64 exec, -1')
        e1_issue(3); id_e1 = ide[0]
        self.stamp('kgen2')
        def rd2(d, va, o): return [f'ds_read2_b32 {vr(d,2)}, v{va} offset0:{o+6} offset1:{o+4}', f'ds_read2_b32 {vr(d+2,2)}, v{va} offset0:{o+2} offset1:{o}']
        def rq2(d, o0, o1): return [f'ds_read2_b32 {ar(d,2)}, v{vQ} offset0:{o0} offset1:{o0-2}', f'ds_read2_b32 {ar(d+2,2)}, v{vQ} offset0:{o1} offset1:{o1-2}']
        vPA1 = 55
        reads = {}
        for be_ in range(6): reads[('u', be_)] = (US+4*be_, [f'ds_read_b128 {vr(US+4*be_,4)}, v{vUS} offset:{512*be_}'])
        for jq in range(4):
            for J in range(2): reads[('a', jq, J)] = (AN+8*jq+4*J, rd2(AN+8*jq+4*J, vPA1 if J else vPA, 32*jq))
        reads[('x', 16)] = (AX, rd2(AX, vPX, 0)); reads[('x', 32)] = (AX+4, rd2(AX+4, vPX, 48))
        for d_ in (2,3,4): reads[('t2', d_)] = (T2+4*(d_-2), rq2(T2+4*(d_-2), 16*d_-28, 64+16*d_-28))
        for d_ in (4,5,6,7): reads[('t3', d_)] = (T3+4*(d_-4), rq2(T3+4*(d_-4), 128+16*d_-44, 128+16*d_-60))
        pre = set(); wjs = []
        e(f'v_add_u32 v{vPA1}, 1024, v{vPA}')
        if self.opt('kpre', 1):
            e('s_waitcnt lgkmcnt(0)\ns_barrier')
            for o in reads:
                if o[0] != 'u':
                    for x in reads[o][1]: e(x)
                    pre.add(o)
        if WJN == -1 and self.opt('wjpre', 4):
            e(f's_waitcnt {self.wvm(idw[0])}')
            for x in wjob_ops(168 if self.opt('wjpre', 4) < 4 else 216, 4):
                if x.startswith('buffer_') and self.opt('wjpre', 4) != 3: wjs.append(x)
                else: wst[0] = e(x)
        XC = EG+8
        e(f's_waitcnt {self.wvm(id_e1)}\nL_e1chk:')
        for i in range(8): e(f'v_xor_b32 v{XC+i}, v{EG+i}, v{vTP+(i&1)}')
        e(f"""
        v_cmp_ne_u32 {sp(sBad)}, v{EG+19}, v2
        v_or3_b32 v92, v{XC}, v{XC+1}, v{XC+2}
        v_or3_b32 v93, v{XC+3}, v{XC+4}, v{XC+5}
        v_cmp_ne_u32 vcc, v{EG+23}, v2
        v_or3_b32 v92, v92, v{XC+6}, v{XC+7}
        s_or_b64 {sp(sBad)}, {sp(sBad)}, vcc
        v_bitop3_b32 v92, v92, v93, s{sTm} bitop3:0xa8
        v_cmp_ne_u32 vcc, 0, v92
        s_or_b64 {sp(sBad)}, {sp(sBad)}, vcc
        s_cbranch_scc1 L_e1retry""")
        self.tail.append(f"""L_e1retry:
        s_sub_u32 s{sCnt}, s{sCnt}, 1
        s_cbranch_scc1 L_end
        s_wqm_b64 exec, {sp(sBad)}
        {e1_loads}
        s_mov_b64 exec, -1
        s_waitcnt vmcnt(0)
        s_branch L_e1chk""")
        self.stamp('e1_ok')
        if PFA == 3: wd_pf(35)
        wd_pf2(3)
        touch(3)
        if self.opt('wjpre', 4) == 2:
            while wjs: wst[0] = e(wjs.pop(0))
        if WGA == 3: wg_issue(8)
        g0 = 28; HF = 96
        e(f"""
        v_add_f32 v{g0}, v{EG+16}, v{EG+20}
        v_add_f32 v{g0+1}, v{EG+17}, v{EG+21}
        v_add_f32 v{g0+2}, v{EG+18}, v{EG+22}
        v_mov_b32 v{g0+3}, 0""")
        unp = []
        for i in range(4):
            unp += [f'v_lshlrev_b32 v{HF+4*i}, 16, v{XC+2*i}', f'v_lshlrev_b32 v{HF+4*i+1}, 16, v{XC+2*i+1}',
                    f'v_and_b32 v{HF+4*i+2}, s{sMask}, v{XC+2*i}', f'v_and_b32 v{HF+4*i+3}, s{sMask}, v{XC+2*i+1}']
        self.reduce4(g0, g0+1, g0+2, g0+3, unp)
        unp = self.rest
        e(f"""
        v_cvt_pk_bf16_f32 v{g0}, v{g0}, v{g0}
        v_and_b32 v{g0}, s{sMask}, v{g0}
        v_add_f32 v{g0+1}, v{g0}, v{vOne}
        v_readlane_b32 s{sM+4}, v{g0}, 16
        v_readlane_b32 s{sM+5}, v{g0}, 17
        v_cvt_pk_bf16_f32 v{g0}, v{g0+1}, v{g0+1}
        v_and_b32 v{g0}, s{sMask}, v{g0}
        v_mul_f32 v{g0+3}, v{vBv}, v{g0}
        v_mul_f32 v{g0+1}, s{sM+4}, v{g0+3}
        v_mul_f32 v{g0+2}, s{sM+5}, v{g0+3}
        v_readlane_b32 s{sM}, v{g0+1}, 32
        v_readlane_b32 s{sM+1}, v{g0+1}, 0
        v_readlane_b32 s{sM+2}, v{g0+2}, 33
        v_readlane_b32 s{sM+3}, v{g0+2}, 1""")
        for x in unp: e(x)
        for i in range(4):
            for ch in range(2):
                h = HF+4*i+2*ch
                e(f'v_pk_fma_f32 {vr(h,2)}, {vr(h,2)}, {sp(sM+2*ch)}, {sp(sM+2*ch)} op_sel:[0,0,1] op_sel_hi:[1,0,1]')
            for ch in range(2):
                h = HF+4*i+2*ch
                e(f'v_cvt_pk_bf16_f32 v{g0+2+ch}, v{h}, v{h+1}\nds_write_b32 v{vUw}, v{g0+2+ch} offset:{ch*USZ+1024*i}')
        while wjs and self.opt('wjpre', 4) < 4: wst[0] = e(wjs.pop(0))
        if WJN == -1 and not self.opt('wjpre', 4):
            e(f's_waitcnt {self.wvm(idw[0])}')
            for x in wjob_ops(): wst[0] = e(x)
        e('s_waitcnt lgkmcnt(0)\ns_barrier')
        self.stamp('u_ready')
        wopen[0] = 2
        if PFA == 4: wd_pf(35)
        wd_pf2(4)
        ACC = 224; ZG = 12
        BR = [96,100,104,108,116,120,168,172,176,180,184,188]
        F1N = self.opt('f1n', 66)
        def f1_publish(): e(f's_waitcnt {self.wvm(wst[0])}\n' + self.flag_text(vF, sF1o))
        for m in range(8):
            for jq in range(4):
                r_ = BR[(4*m+jq) % len(BR)]
                reads[('b', m, jq)] = (r_, [f'ds_read_b128 {vr(r_,4)}, v{vUB} offset:{512*m+192-64*jq}'])
        ops = []
        S = lambda nm, be_: ops.append(('S', (nm, be_), ('u', be_), ('bnd', nm)))
        def near(m, Js):
            for jq in range(4):
                for J in Js: ops.append(('M', m+J, ('a', jq, J), ('b', m, jq)))
        def far(cb):
            ops.append(('M', cb, ('x', 16), ('u', cb-2)))
            if cb >= 4: ops.append(('M', cb, ('x', 32), ('u', cb-4)))
            for d_ in (4,3,2):
                if cb-d_ >= 0: ops.append(('M', cb, ('s2', cb-d_), ('t2', d_)))
            if cb >= 4: ops.append(('M', cb, ('s3', 0), ('t3', cb)))
            if cb >= 6: ops.append(('M', cb, ('s3', 1), ('t3', cb-2)))
        S('a',0); S('b',0); S('a',1); S('b',1)
        near(0,(0,1)); near(1,(0,1)); far(2); S('c',0); S('c',1); near(2,(0,1)); S('a',2); S('b',2); far(3); near(3,(0,))
        S('a',3); S('b',3); near(3,(1,)); far(4); near(4,(0,1)); far(5); near(5,(0,))
        S('a',4); S('b',4); S('c',2); S('c',3); near(5,(1,)); S('a',5); S('b',5); near(6,(0,1)); far(6); near(7,(0,)); far(7)
        assert len(ops) == 107
        def opreg(o):
            if o[0] == 'bnd': return BND + 4*'abc'.index(o[1])
            if o[0] == 's2': return SF2 + 4*o[1]
            if o[0] == 's3': return SF3 + 4*o[1]
            return reads[o][0]
        firstuse = {}; lastuse = {}; accdone = {}
        for n, (kd, dst, oa, ob) in enumerate(ops):
            for o in (oa, ob): firstuse.setdefault(o, n); lastuse[o] = n
            if kd == 'M': accdone[dst] = n
        rq = []
        for o in sorted(reads, key=lambda o: firstuse[o]):
            early = -1
            if o[0] == 'b' and 4*o[1]+o[2] >= len(BR):
                idx = 4*o[1]+o[2]-len(BR); early = lastuse[('b', idx//4, idx%4)] + 1
            if o not in pre:
                for x in reads[o][1]: rq.append((early, o, x))
        rid = {o: 0 for o in pre}
        def popread():
            _, o, x = rq.pop(0); e(x)
            if not any(o2 == o for _, o2, _ in rq): rid[o] = self.nlg
        for _ in range(self.opt('cpre', 8 if pre else 14)): popread()
        tq = 69
        fill = [f's_bitcmp1_b32 s{sL}, 1\ns_cselect_b32 s{sT}, 1.0, {fbits(2.0**-64)}', f'v_mul_f32 v{g0+1}, s{sT}, v{g0}']
        fill += [f'v_readlane_b32 s{sM+6+n_}, v{g0+(n_<4)}, {ln}' for n_, ln in list(enumerate([34,35,2,3,18,19]))[::-1]]
        TZ = 16; XE = 52; vYr1 = 64
        fill += f"""v_and_b32 v{tq}, 3, v0
        s_pack_hh_b32_b16 s{sT}, s{sM+6}, s{sM+7}
        s_pack_hh_b32_b16 s{sT+1}, s{sM+8}, s{sM+9}
        s_pack_hh_b32_b16 s{sT+2}, s{sM+10}, s{sM+11}
        v_lshlrev_b32 v{tq}, 2, v{tq}
        s_mov_b32 s{sTm}, {TAGZ}
        v_alignbit_b32 v{tq}, v2, v2, v{tq}
        v_xor_b32 v{vYr1}, 32, v{vYr}
        v_add_u32 v{vTw}, 65536, v{vTr}
        v_and_b32 v{TZ}, s{sTm}, v{tq}
        v_alignbit_b32 v{TZ+1}, v{tq}, v{tq}, 1
        v_alignbit_b32 v{TZ+2}, v{tq}, v{tq}, 2
        v_alignbit_b32 v{TZ+3}, v{tq}, v{tq}, 3
        v_and_b32 v{TZ+1}, s{sTm}, v{TZ+1}
        v_and_b32 v{TZ+2}, s{sTm}, v{TZ+2}
        v_and_b32 v{TZ+3}, s{sTm}, v{TZ+3}
        v_mov_b32 v192, s{sT}
        v_mov_b32 v193, s{sT+1}
        v_mov_b32 v194, s{sT+2}
        v_mov_b32 v195, v2""".split('\n')
        stages = {'a': [(0,),(1,)], 'n': [(0,1)]}[self.opt('stages', 'a')]
        wr_id = {}; cq = []; sq = []; sdone = {}; nsd = 0; stage = 0; done_w = 0; waited = 0
        zst = {}
        def stage_ops(sg, final):
            out = []
            regs = {(k_, j): ([28, SD][j] if not final else 72+16*n_+8*j) for n_, k_ in enumerate(sg) for j in range(2)}
            for k_ in sg:
                for j in range(2):
                    for pw in range(4): out.append(('rd', (k_,j), f'ds_read_b64 {vr(regs[(k_,j)]+2*pw,2)}, v{vYr1 if j else vYr} offset:{8192*pw+4096*k_}'))
            for k_ in sg:
                for j in range(2):
                    y = regs[(k_,j)]; i = (k_,j)
                    out.append(('wait', i, None))
                    if final:
                        out += [('v', i, f'v_pk_add_f32 {vr(y+4*ch,2)}, {vr(y+4*ch,2)}, {vr(y+4*ch+2,2)}') for ch in range(2)]
                    else:
                        out += [('v', i, f'v_add_f32 v{y+4*ch+r}, v{y+4*ch+r}, v{y+4*ch+2+r}') for r in range(2) for ch in range(2)]
                    out += [('v', i, f'v_cvt_pk_bf16_f32 v{ZG+2*j+r}, v{y+r}, v{y+4+r}') for r in range(2)]
                    out += [('v', i, f'v_bfi_b32 v{ZG+2*j+r}, s{sTm}, v{TZ+2*j+r}, v{ZG+2*j+r}') for r in range(2)]
                x = f'buffer_store_dwordx4 {vr(ZG,4)}, v1, {SRD}, s{sZs+k_} offen sc1'
                if k_ == 0: x += f'\ns_mov_b64 exec, 1\nbuffer_store_dwordx4 v[192:195], v1, {SRD}, s{sZs+2} offen sc1\ns_mov_b64 exec, -1'
                out.append(('st', k_, x))
            return out
        y_id = {}; ride = [0]; pub = []
        def popstage():
            nonlocal waited
            kd, i, x = sq.pop(0)
            if kd == 'wait':
                e(f's_waitcnt {self.wlg(y_id[i])}'); waited = max(waited, y_id[i])
            else:
                r_ = e(x)
                if kd == 'rd': y_id[i] = self.nlg
                if kd == 'st':
                    zst[i] = r_
                    if not sq:
                        ride[0] = self.opt('ride', 0)
                        pub.append(1)
                        if F1N == 199 + len(pub): f1_publish()
        seen = set(); hold = 0; accpos = {}; wj = []
        for n, (kd, dst, oa, ob) in enumerate(ops):
            if n in (1, 27, 54, 81): self.stamp(f'_c{n}')
            for o in (oa, ob):
                while o in reads and o not in rid: popread()
                if o[0] in ('s2', 's3'):
                    while any(tg == o for _, tg, _ in cq): e(cq.pop(0)[2])
            need = max(rid.get(oa, 0), rid.get(ob, 0))
            if need > waited:
                e(f's_waitcnt {self.wlg(need)}'); waited = max(need, self.nlg - 14)
            if kd == 'S':
                d = SD + 4*(nsd % 4); nsd += 1
                while any(f'v{d},' in x or x.endswith(f'v{d+3}') for _, _, x in cq): e(cq.pop(0)[2])
                while any(k_ != 'st' for k_, _, _ in sq): popstage()
                e(f'v_mfma_f32_16x16x32_bf16 {vr(d,4)}, {vr(opreg(oa),4)}, {vr(opreg(ob),4)}, 0')
                nm, be_ = dst
                tg = ('s2', be_) if nm != 'c' else ('s3', be_ >> 1)
                o_ = opreg(tg) + (2*'ab'.index(nm) if nm != 'c' else 2*(be_ & 1))
                cq += [(len(p.text), tg, f'v_cvt_pk_bf16_f32 v{o_+j}, v{d+2*j}, v{d+2*j+1}') for j in range(2)]
            else:
                c_ = ar(ACC+4*dst,4) if dst in seen else '0'; seen.add(dst)
                e(f'v_mfma_f32_16x16x32_bf16 {ar(ACC+4*dst,4)}, {vr(opreg(oa),4)}, {(ar if ob[0][0] == "t" else vr)(opreg(ob),4)}, {c_}')
                if accdone[dst] == n: accpos[dst] = len(p.text)
            budget = 2
            if wjs and n >= self.opt('wsn', 4) + (4-len(wjs))*self.opt('wss', 3):
                assert n < 30; wst[0] = e(wjs.pop(0)); budget = 1
            elif n == F1N: f1_publish(); budget = 0
            elif n % self.opt('wd_pace', 6) == 1 and self.opt('wd_first', 0) <= n <= self.opt('wd_last', 100) and wd_can(): wd_issue(1); budget = 1
            elif ride[0] > 0 and n % 2 == 0 and wd_can(): wd_issue(1); budget = 1; ride[0] -= 1
            if n == WJN: e(f's_waitcnt {self.wvm(idw[0])}'); wj = wjob_ops()
            if stage < len(stages)-1 and done_w > 4*stages[stage][-1]+3 and n >= wr_n + 3 and not sq:
                while fill: e(fill.pop(0))
                while cq: e(cq.pop(0)[2])
                e(f's_waitcnt {self.wlg(wr_id[done_w-1])}\ns_barrier'); waited = max(waited, wr_id[done_w-1])
                sq = stage_ops(stages[stage], False); stage += 1; budget = 0
            while budget > 0:
                budget -= 1
                if rq and rq[0][0] <= n and firstuse[rq[0][1]] <= n + self.opt('cla', 20): popread()
                elif cq and len(p.text) - cq[0][0] >= 8: e(cq.pop(0)[2])
                elif done_w in accpos and len(p.text) - accpos[done_w] >= 8:
                    e(f'ds_write_b128 v{vYw}, {ar(ACC+4*done_w,4)} offset:{1024*done_w}'); wr_id[done_w] = self.nlg; wr_n = n; done_w += 1
                elif sq and not (sq[0][0] == 'wait' and hold > n):
                    if sq[0][0] == 'rd': hold = n + 4
                    popstage()
                elif fill: e(fill.pop(0))
                elif wj: wst[0] = e(wj.pop(0))
                elif rq and rq[0][0] <= n: popread()
                elif self.opt('trconv', 0) and tr_ready(8): tr_pop()
        assert not rq and not cq and not wj and stage == len(stages)-1
        while sq: popstage()
        for x in fill: e(x)
        self.stamp('conv')
        while done_w < 8:
            e(f'ds_write_b128 v{vYw}, {ar(ACC+4*done_w,4)} offset:{1024*done_w}'); done_w += 1
        e('s_waitcnt lgkmcnt(0)\ns_barrier')
        sq = stage_ops(stages[-1], True)
        while sq: popstage()
        id_z = self.nvm
        if F1N == 107: f1_publish()
        self.stamp('z_stored')
        vP1 = 122
        e(f"""
        s_bfe_u32 s1, s{sL}, 0x30002
        s_lshr_b32 s0, s{sL}, 7
        s_lshl3_add_u32 s{sMt}, s0, s1
        s_bfe_u32 s0, s{sL}, {0x10005 if MAP2 == 84 else 0x20005}
        s_and_b32 s1, s{sMt}, {15 if MAP2 == 84 else 14}
        s_lshl1_add_u32 s{sTb}, s1, s0
        s_bfe_u32 s0, s{sL}, 0x20005
        s_and_b32 s1, s{sL}, 3
        s_lshl2_add_u32 s{sNt}, s0, s1
        """)
        if MAP2 in (44, 45): e(f"""
        s_lshr_b32 s0, s{sL}, 6
        s_bfe_u32 s1, s{sL}, 0x20003
        s_lshl2_add_u32 s{sMt}, s0, s1
        s_bfe_u32 s0, s{sL}, 0x10005
        s_and_b32 s1, s{sL}, 7
        s_lshl3_add_u32 s{sNt}, s0, s1
        s_bfe_u32 s0, s{sL}, {0x10005 if MAP2 == 44 else 0x10002}
        s_lshl1_add_u32 s{sTb}, s{sMt}, s0""")
        e(f"""
        s_mul_i32 s0, s{sNt}, 7
        s_lshr_b32 s0, s0, 2
        v_bfe_u32 v{t+1}, v0, 3, 3
        v_min_u32 v{t+1}, 2, v{t+1}
        v_add_u32 v{t+1}, s0, v{t+1}
        v_min_u32 v{t+1}, 27, v{t+1}
        v_and_b32 v{t+2}, 7, v0
        v_lshl_add_u32 v{t+1}, v{t+1}, 5, v{t+2}
        s_lshl_b32 s0, s{sW}, 10
        s_add_u32 s0, s0, {F1}
        v_lshl_add_u32 v{vP1}, v{t+1}, 7, s0""")
        f1_load = f'buffer_load_dword v{vPolled}, v{vP1}, {SRD}, 0 offen sc1'
        F1P = self.opt('f1p', 0)
        if F1P == 0: id_f1 = e(f1_load)
        e(f"""
        s_mul_i32 s{sDmaG}, s{sNt}, {7*32768}
        s_add_u32 s{sDmaG}, s{sDmaG}, s{sDmaL}
        s_add_u32 s{sDmaG}, s{sDmaG}, {WGU}""")
        dq = [x for i in range(5) for x in self.dma_tile(i,i)]
        f1ok = [False]; maxt = [2]
        def bg_issue(n):
            for _ in range(n):
                if wd_can() and wdq[0][0] <= 2: wd_one()
                elif f1ok[0] and dq[0][0] <= 2: tile_one(dq)
                else: wd_issue(1)
        def bg(name, nT, nL):
            v = self.opt(name, None)
            if v is not None: nT, nL = v // 100, v % 100
            done = 0
            for i in range(nT):
                k_ = (nL*(i+1) + nT-1)//nT - done; bg_issue(k_); done += k_
                tr_do(1)
            bg_issue(nL - done)
        bg('b_zack', 0, 9)
        XF = 36
        for r in range(2):
            for i in range(4):
                for x in self.unpack(XF+8*r+2*i, XR+4*r+i): e(x)
        TH = 66; TX = 14; vZ = 28; vH2 = 29; ZI = 72; vMsk = 30
        vP2 = 24; vXa = 25; vA2 = 26; vA4 = 27; vP3 = 23; vX2 = 22; vAc1 = 21
        c1 = -2*1.4426950408889634*0.7978845608028654; c2 = c1*0.044715
        gs = (-c2)**(1/3); sGk, sGs = 30, 31
        e(f'''
        v_and_b32 v{t}, 0xfc, v0
        v_and_b32 v{t+2}, 0x30, v1
        s_movk_i32 s{sT}, {HBLK}
        v_mad_u32_u24 v{vZ}, v{t}, s{sT}, v{t+2}
        s_lshr_b32 s{sT}, s{sL}, 1
        s_lshl_b32 s{sT}, s{sT}, 6
        s_add_u32 s{sT}, s{sT}, {ZY}
        s_add_u32 s{sT+1}, s{sT}, {HBLK}
        s_add_u32 s{sT+2}, s{sT}, {2*HBLK}
        s_add_u32 s{sT+3}, s{sT}, {3*HBLK}
        s_lshl_b32 s{sT+8}, s{sW}, 10
        s_add_u32 s{sT+8}, s{sT+8}, {MX}
        s_bitcmp1_b32 s{sL}, 0
        s_cselect_b32 s{sLo}, 0x04040000, 0
        s_add_u32 s{sHi}, s{sLo}, 0x03020c0c
        s_add_u32 s{sLo}, s{sLo}, 0x01000c0c
        s_mov_b32 s{sM}, {fbits(2.0**64)}
        v_lshrrev_b32 v{t}, 3, v0
        v_and_b32 v{t+1}, 0x70, v1
        v_lshl_add_u32 v{vH2}, v{t}, 10, v{t+1}
        s_lshr_b32 s{sT+4}, s{sL}, 2
        s_lshl_b32 s{sT+4}, s{sT+4}, 7
        s_and_b32 s{sT+5}, s{sL}, 3
        s_add_u32 s{sT+4}, s{sT+4}, s{sT+5}
        s_lshl_b32 s{sT+4}, s{sT+4}, 8
        s_add_u32 s{sT+4}, s{sT+4}, {H2}
        s_mov_b32 s{sT+5}, {X2}
        v_mov_b32 v{vMsk}, s{sMask}
        s_lshl2_add_u32 s{sT+6}, s{sL}, s{sW}
        s_lshl_b32 s{sT+6}, s{sT+6}, 7
        s_add_u32 s{sT+6}, s{sT+6}, {F2}
        s_lshl2_add_u32 s0, s{sMt}, s{sW}
        s_lshl_b32 s{sXg}, s0, 15
        s_add_u32 s{sXg}, s{sXg}, {H2}
        s_lshl4_add_u32 s0, s0, s{sNt}
        s_mul_i32 s0, s0, {7*1024}
        s_add_u32 s{sActS}, s0, {ACT}
        s_add_u32 s{sActS+1}, s0, {ACT+4096}
        s_add_u32 s{sF3o}, s{sT+6}, {F3-F2}
        s_and_b32 s0, s{sL}, 0x98
        s_bfe_u32 s1, s{sTb}, 0x10001
        s_lshl2_add_u32 s0, s1, s0
        s_lshl_b32 s1, s{sW}, 5
        s_add_u32 s0, s0, s1
        s_and_b32 s1, s{sTb}, 1
        s_lshl1_add_u32 s0, s0, s1
        s_lshl_b32 s0, s0, 8
        s_add_u32 s{sF3p}, s0, {F3}
        s_lshl3_add_u32 s0, s{sTb}, s{sW}
        s_mul_i32 s0, s0, {28*1024}
        s_add_u32 s{sActG}, s0, {ACT}
        s_waitcnt {self.wvm(id_z)}''')
        self.stamp('_zack')
        if F1N == 108: f1_publish()
        z_loads = '\n'.join(f'buffer_load_dwordx4 {vr(ZI+4*i,4)}, v{vZ}, {SRD}, s{sT+i} offen sc1' for i in range(4))
        XG = 32
        z_loads += f'\nbuffer_load_dwordx4 {vr(XG,4)}, v1, {SRD}, s{sT+8} offen sc1'
        id_zl = e(z_loads)
        if F1P == 0:
            self.check(f1_load, [vPolled], id_f1); f1ok[0] = True
        elif F1P == 1: id_f1 = e(f1_load)
        bg('b_zld', 8, 0)
        bg('b_zld2', 0, 6)
        e(f'''
        v_lshrrev_b32 v{TH}, 3, v{t+1}
        v_alignbit_b32 v{TH}, v2, v2, v{TH}
        v_alignbit_b32 v{TH+1}, v{TH}, v{TH}, 1
        v_and_b32 v{TH}, s{sTm}, v{TH}
        v_and_b32 v{TH+1}, s{sTm}, v{TH+1}
        v_bfe_u32 v{t}, v0, 2, 3
        v_bfe_u32 v{t+3}, v0, 5, 1
        v_lshl_add_u32 v{t+2}, v{t+3}, 6, v{t+2}
        v_lshl_add_u32 v{vXa}, v{t}, 7, v{t+2}
        v_lshrrev_b32 v{TX}, 3, v{t+2}
        v_alignbit_b32 v{TX}, v2, v2, v{TX}
        v_alignbit_b32 v{TX+1}, v{TX}, v{TX}, 1
        v_and_b32 v{TX}, s{sTm}, v{TX}
        v_and_b32 v{TX+1}, s{sTm}, v{TX+1}
        v_add_u32 v{vA2}, 65536, v1
        v_add_u32 v{vA4}, 131072, v1
        v_add_u32 v{vAc1}, {112*1024}, v1
        v_mov_b32 v{vInv+1}, {fbits(1e-5/gs**2)}
        s_mov_b32 s{sGk}, {fbits(c1/gs)}
        s_mov_b32 s{sGs}, {fbits(gs*gs*2.0**64)}
        s_mov_b32 s{sM+1}, {fbits(gs)}
        v_bfe_u32 v{t}, v0, 1, 2
        v_and_b32 v{t+2}, 1, v0
        v_lshlrev_b32 v{t+2}, 7, v{t+2}
        v_lshl_add_u32 v{vP3}, v{t}, 9, v{t+2}
        v_bfe_u32 v{t}, v0, 3, 2
        v_lshl_add_u32 v{t}, v{t}, 1, v{t+3}
        v_lshl_add_u32 v{t}, v{t}, 10, v{t+1}
        s_lshl3_add_u32 s0, s{sTb}, s{sW}
        s_lshl_b32 s0, s0, 6
        s_add_u32 s0, s0, s{sDt}
        s_lshl_b32 s0, s0, 7
        v_add_u32 v{vX2}, s0, v{t}''')
        self.stamp('_zchk')
        ZC = 144
        e(f's_waitcnt {self.wvm(id_zl)}\nL_zchk:')
        for i in range(16): e(f'v_xor_b32 v{ZC+i}, v{ZI+i}, v{TZ+(i&3)}')
        e(f'v_cmp_ne_u32 {sp(sBad)}, v{XG+3}, v2')
        for i in range(5): e(f'v_or3_b32 v{160+i}, v{ZC+3*i}, v{ZC+3*i+1}, v{ZC+3*i+2}')
        e(f"""
        v_or3_b32 v160, v160, v161, v162
        v_or3_b32 v163, v163, v164, v{ZC+15}
        v_bitop3_b32 v160, v160, v163, s{sTm} bitop3:0xa8
        v_cmp_ne_u32 vcc, 0, v160
        s_or_b64 {sp(sBad)}, {sp(sBad)}, vcc
        s_cbranch_scc1 L_zretry""")
        self.tail.append(f"""L_zretry:
        s_sub_u32 s{sCnt}, s{sCnt}, 1
        s_cbranch_scc1 L_end
        s_wqm_b64 exec, {sp(sBad)}
        {z_loads}
        s_mov_b64 exec, -1
        s_waitcnt vmcnt(0)
        s_branch L_zchk""")
        self.stamp('z_ok')
        if F1P == 1: self.check(f1_load, [vPolled], id_f1); f1ok[0] = True
        elif F1P == 2: id_f1 = e(f1_load)
        nl2 = [self.opt('b_ln2', 10)]
        def ln2bg(n=1):
            for _ in range(n):
                if nl2[0] > 0: bg_issue(1); nl2[0] -= 1
        ZF = 88
        for i in range(4):
            ln2bg()
            for r in range(2):
                z = ZF+8*r+2*i
                e(f'v_perm_b32 v{z}, v{ZC+4*i+2+r}, v{ZC+4*i+r}, s{sLo}\nv_perm_b32 v{z+1}, v{ZC+4*i+2+r}, v{ZC+4*i+r}, s{sHi}')
            for r in range(2):
                z = ZF+8*r+2*i; x = XF+8*r+2*i
                e(f'v_pk_fma_f32 {vr(x,2)}, {vr(z,2)}, {sp(sM)}, {vr(x,2)} op_sel_hi:[1,0,1]')
            for r in range(2):
                x = XF+8*r+2*i
                e(f'v_cvt_pk_bf16_f32 v{XR+4*r+i}, v{x}, v{x+1}')
        unp = [x for r in range(2) for i in range(4) for x in self.unpack(XF+8*r+2*i, XR+4*r+i)]
        self.stats_partial(XR, t, vSBw, unp)
        unp = self.rest
        ln2bg(2)
        for x in unp: e(x)
        e('s_waitcnt lgkmcnt(0)\ns_barrier')
        wopen[0] = 3
        self.stamp('_ln2bar')
        ST = 128
        self.stats_read(ST, vSBr)
        GBV = 12
        for i in range(4):
            ln2bg()
            for kind in range(2):
                d = ZF+8*kind+2*i
                qp = f'quad_perm:[{i},{i},{i},{i}] row_mask:0xf bank_mask:0xf'
                e(f'v_cvt_f32_bf16_dpp v{d}, v{XG+kind} {qp}\nv_and_b32_dpp v{d+1}, v{XG+kind}, v{vMsk} {qp}')
        for i in range(4): e(f'v_pk_mul_f32 {vr(ZF+8+2*i,2)}, {vr(ZF+8+2*i,2)}, {sp(sM)} op_sel:[0,1] op_sel_hi:[1,1]')
        e('s_waitcnt lgkmcnt(0)')
        self.stats_finish(ST, vInv, pre=1/gs**2)
        HO = 104
        for r in range(2):
            for i in range(4):
                x = XF+8*r+2*i
                e(f'v_pk_fma_f32 {vr(x,2)}, {vr(x,2)}, {vr(ST+2*r,2)}, {vr(ST+2*r,2)} op_sel:[0,0,1] op_sel_hi:[1,0,1]')
            for i in range(4):
                x = XF+8*r+2*i
                e(f'v_pk_fma_f32 {vr(x,2)}, {vr(x,2)}, {vr(ZF+2*i,2)}, {vr(ZF+8+2*i,2)}')
            for i in range(4):
                x = XF+8*r+2*i
                e(f'v_cvt_pk_bf16_f32 v{HO+4*r+i}, v{x}, v{x+1}')
            for m in range(2): e(f'v_bfi_b32 v{HO+4*r+m}, s{sTm}, v{TH+m}, v{HO+4*r+m}')
            id_h = e(f'buffer_store_dwordx4 {vr(HO+4*r,4)}, v{vH2}, {SRD}, s{sT+4} offen offset:{128*r} sc1')
        self.stamp('h2_stored')
        e(f'v_mov_b32 v{GBV}, v{XG+2}')
        if F1P == 2: self.check(f1_load, [vPolled], id_f1); f1ok[0] = True
        SMP = self.opt('smp', 0)
        bg('b_hack', 0, 6 if SMP else 16)
        if not SMP:
            while dq[0][0] < 3: tile_one(dq)
        e(f's_waitcnt {self.wvm(id_h)}')
        self.stamp('_h2_ack')
        X = 128
        AC = [28, 44, 60, 76]
        WE = self.opt('we', 4); LA = self.opt('la', 6); NB = 7; WF = 92; assert LA < NB
        TA, TA1 = 20, 23; GT = 120; GO = 16; X2R = 4; vP4 = 24; vPo = 25; vPo4 = 3
        P1 = self.opt('p1', 25)
        if P1 == 25:
            seq = []
            for s in range(32):
                seq += [(0, s), (1, s)]
                if s & 1: seq.append((2, s >> 1))
            seq += [(2, s) for s in range(16, 32)]
        else:
            seq = [(tl, s) for s in range(32) for tl in range(P1)] + [(tl, s) for tl in range(P1,3) for s in range(32)]
        seq += [(tl, s) for tl in range(3,7) for s in range(32)]
        slot = {0:0,1:1,2:2,3:3,4:4,5:0,6:1}
        acc = {tl: AC[tl % 4] for tl in range(7)}
        w_id = {}
        def wread(n):
            tl, s = seq[n]; sl = slot[tl]
            va = {0:1,1:1,2:vA2,3:vA2,4:vA4}[sl]
            e(f'ds_read_b128 {vr(WF+4*(n%NB),4)}, v{va} offset:{(sl&1 if sl<4 else 0)*32768 + 1024*kperm(s)}'); w_id[n] = self.nlg
        kperm = lambda s: 8*(s & 3) + (s >> 2)
        sXb = sM
        for j in range(8): e(f's_add_u32 s{sXb+j}, s{sXg}, {4096*j}')
        sAb = [76, 77, 78, 79, 80, 81, 32, 33]
        x_id = []
        def xtext(s): return f'buffer_load_dwordx4 {vr(X+4*s,4)}, v{vXa}, {SRD}, s{sXb+(kperm(s)>>2)} offen offset:{1024*(kperm(s)&3)} sc1'
        def xload(): x_id.append(e(xtext(len(x_id))))
        def xcheck(s):
            Lc = p.label('xc'); Lr = p.label('xr'); Ld = p.label('xd'); r0 = X+4*s
            body = [f'v_xor_b32 v{r0+4*j+m}, v{r0+4*j+m}, v{TX+m}' for j in range(2) for m in range(2)]
            body += [f'v_or3_b32 v13, v{r0}, v{r0+1}, v{r0+4}', f'v_bitop3_b32 v13, v13, v{r0+5}, s{sTm} bitop3:0xa8', 'v_cmp_ne_u32 vcc, 0, v13']
            def branch():
                rest = '\n'.join(xtext(j) for j in range(s+2, len(x_id)))
                self.tail.append(f'{Lr}:\ns_sub_u32 s{sCnt}, s{sCnt}, 1\ns_cbranch_scc1 L_end\n{xtext(s)}\n{xtext(s+1)}\ns_waitcnt vmcnt(0)\n' + '\n'.join(body) +
                                 f'\ns_cmp_lg_u64 vcc, 0\ns_cbranch_scc1 {Lr}\n{rest}\ns_branch {Ld}')
                e(f's_cbranch_vccnz {Lr}\n{Ld}:')
                if self.nvm != x_id[-1]: self.tail[-1] = self.tail[-1].replace(f's_branch {Ld}', f's_waitcnt vmcnt(0)\ns_branch {Ld}')
            return body, branch
        XLA = self.opt('xla', 12 if SMP else 10)
        if SMP:
            for s in range(4): xload()
            bg('b_smp', 0, 10)
            while dq[0][0] < 3: tile_one(dq)
            for s in (0, 2):
                xb, xbr = xcheck(s)
                e(f's_waitcnt {self.wvm(x_id[s+1])}\n' + '\n'.join(xb)); xbr()
        while len(x_id) < XLA: xload()
        bg('b_x', 0, 0)
        for j in range(8): e(f's_add_u32 s{sAb[j]}, s{sActG}, {(7*(j>>1) + 4*(j&1))*1024}')
        if self.o.get('verbose'): print('tr reads left', len(trq), 'wd left', len(wdq), 'dq left', len(dq))
        e(f"""
        v_mov_b32 v124, v{vWdA}
        v_mov_b32 v{TA}, v{TH}
        v_add_u32 v13, s{sF3p}, v{vP3}
        v_mov_b32 v{TA1}, v{TH+1}
        v_and_b32 v{vP4}, {8 if NF else 0}, v0
        v_cmp_eq_u32 vcc, 0, v{vP4}
        v_and_b32 v{vP4}, 7, v0
        s_lshr_b32 s0, s{sDt}, 1
        s_lshl_b32 s1, s{sTb}, 5
        s_add_u32 s0, s0, s1
        s_lshl_b32 s0, s0, 7
        s_add_u32 s0, s0, {F3}
        v_lshl_add_u32 v{vP4}, v{vP4}, 9, s0
        v_cndmask_b32 v{vP4}, v13, v{vP4}, vcc
        s_waitcnt {self.wvm(dma_id[2])} lgkmcnt(0)
        s_barrier""")
        vW[0] = 124
        for n in range(LA): wread(n)
        if not SMP:
            xb, xbr = xcheck(0)
            e(f's_waitcnt {self.wvm(x_id[1])}\n' + '\n'.join(xb)); xbr()
        self.stamp('f2_ok')
        xq = []; xnext = 2
        f4_load = f'buffer_load_dword v{vPo4}, v{vP4}, {SRD}, 0 offen sc1'
        def gelu(tl):
            a = acc[tl]; out = []
            for hf in range(2):
                E = [a+4*hf+j for j in range(4)]
                out += [f'v_fma_f32 v{GT+j}, -v{E[j]}, v{E[j]}, s{sGk}' for j in range(4)]
                out += [f'v_mul_f32 v{GT+j}, v{GT+j}, v{E[j]}' for j in range(4)]
                for j in range(4): out += [f'v_exp_f32 v{GT+j}, v{GT+j}', f'v_mul_f32 v{E[j]+8}, v{E[j]+8}, v{E[j]}']
                for j in range(4): out += [f'v_fma_f32 v{GT+j}, v{GT+j}, s{sGs}, s{sGs}']
                for j in range(4): out += [f'v_rcp_f32 v{GT+j}, v{GT+j}']
                for j in range(4): out += [f'v_mul_f32 v{E[j]+8}, v{E[j]+8}, v{GT+j}']
                out += [f'v_cvt_pk_bf16_f32 v{GO+2*hf+j}, v{E[2*j]+8}, v{E[2*j+1]+8}' for j in range(2)]
                if hf == 0 and tl >= NF: out += [f'v_bfi_b32 v{GO+j}, s{sTm}, v{(TA,TA1)[j]}, v{GO+j}' for j in range(2)]
            out.append(f'buffer_store_dwordx4 {vr(GO,4)}, v1, {SRD}, s{sActS+(tl>>2)} offen offset:{1024*(tl&3)} sc1')
            return [(x, tl) for x in out]
        last = {tl: max(n for n, (a_, _) in enumerate(seq) if a_ == tl) for tl in range(7)}
        first = {tl: min(n for n, (a_, _) in enumerate(seq) if a_ == tl) for tl in range(7)}
        gq = []; vq = dq; st_id = {}; st_n = {}
        a_id = []; xfree = [0]; consumed = set()
        k0 = 28 - 4*len(groups[-1])
        lorder = [(kk, tt) for kk in range(k0) for tt in range(2)] + [(kk, tt) for tt in range(2) for kk in range(k0, 28)]
        NAG = 0
        def areg(kk): return ar(224+4*kk, 4) if kk < NAG else vr(X+4*((kk-NAG) % 32), 4)
        def acan():
            kk = len(a_id)
            if not checked or kk >= gend[checked-1]: return False
            return kk < NAG or (kk-NAG < xfree[0] if kk-NAG < 32 else kk-32 in consumed)
        def atext(kk):
            T, tt = korder[lorder[kk][0]], lorder[kk][1]; pp, i = divmod(T, 7)
            return f'buffer_load_dwordx4 {areg(kk)}, v{vAc1 if tt else 1}, {SRD}, s{sAb[2*pp+(i>>2)]} offen offset:{1024*(i&3)} sc1'
        def aload(): a_id.append(e(atext(len(a_id))))
        CG = self.opt('cg', 2)
        def acheck(kk):
            Lr = p.label('ar'); Ld = p.label('ad'); rs = [X+4*((kk+j) % 32)+m for j in range(CG) for m in range(2)]
            body = [f'v_xor_b32 v{r}, v{r}, v{(TA,TA1)[j&1]}' for j, r in enumerate(rs)]
            body.append(f'v_or3_b32 v{vPo}, v{rs[0]}, v{rs[1]}, v{rs[2]}')
            body += [f'v_or3_b32 v{vPo}, v{vPo}, v{rs[j]}, v{rs[j+1]}' for j in range(3, 2*CG-1, 2)]
            body += [f'v_bitop3_b32 v{vPo}, v{vPo}, v{rs[-1]}, s{sTm} bitop3:0xa8', f'v_cmp_ne_u32 vcc, 0, v{vPo}']
            def branch():
                self.tail.append(f'{Lr}:\ns_sub_u32 s{sCnt}, s{sCnt}, 1\ns_cbranch_scc1 L_end\n' + '\n'.join(atext(kk+j) for j in range(CG)) + '\ns_waitcnt vmcnt(0)\n' + '\n'.join(body) +
                                 f'\ns_cmp_lg_u64 vcc, 0\ns_cbranch_scc1 {Lr}\ns_branch {Ld}')
                e(f's_cbranch_vccnz {Lr}\n{Ld}:')
            return body, branch
        AD = self.opt('ad', 30); VISD = self.opt('visd', 26); POLD = self.opt('pold', 14)
        checked = 0; fl = {}
        gend = [sum(len(g) for g in groups[:i+1])*8 for i in range(len(groups))]
        def progress(n, force=None):
            nonlocal checked
            fo = -1 if force is None else force
            if checked == 0 and NF:
                if 'flag' in fl and 'poll' not in fl and (n >= fl['flag'] + VISD or fo >= 0):
                    fl['id'] = e(f4_load); fl['poll'] = n; return True
                if 'poll' in fl and (n >= fl['poll'] + POLD or fo >= 0):
                    self.check(f4_load, [vPo4], fl['id']); checked = 1; return True
            elif checked < len(groups) and groups[checked][-1] in st_id and (n >= st_n[groups[checked][-1]] + AD or fo >= checked):
                if fo >= checked: e(f's_waitcnt {self.wvm(st_id[groups[checked][-1]])}')
                checked += 1
            return False
        def emit_g(x, b_, n):
            i_ = e(x)
            if x.startswith('buffer_'):
                r = b_ - self.opt('x2t', 1); assert self.opt('x2t', 1) + 1 < NF or not NF
                if r in (0, 1): i_ = e(f'buffer_store_dwordx4 {vr(XR+4*r,4)}, v{vXO}, {SRD}, s{sT+5} offen offset:{1024*r} sc1')
                if r == 3 and not NF: e(f's_waitcnt {self.wvm(st_id[b_-2])}\n' + self.flag_text(vF, sF3o))
                if b_ == NF and NF: e(f's_waitcnt {self.wvm(st_id[NF-1])}\n' + self.flag_text(vF, sF3o)); fl['flag'] = n
                st_id[b_] = i_; st_n[b_] = n
        PACE = self.opt('pace', 20); nextv = [0]
        def pump(n):
            if 10*n < nextv[0]: return False
            if wd_can() and wdq[0][0] == 3: wd_one()
            elif vq and vq[0][0] == 3 and trq and trq[0][0] <= 3 and first[3] - n > 26:
                if any(x[0] == 4 for x in vq):
                    j = min(j for j, x in enumerate(vq) if x[0] == 4); tile_one([vq.pop(j)])
                else: return False
            elif wd_can() and vq and first[vq[0][0]] - n > self.opt('urg', 48): wd_one()
            elif vq: tile_one(vq)
            elif wd_can(): wd_one()
            elif acan(): aload()
            else: return False
            nextv[0] = max(nextv[0], 10*n - 10) + (PACE if not (192 <= n < 224) else self.opt('pace6', PACE))
            return True
        grate = self.opt('grate', 33); wwait = 0; aq0 = []
        for n, (tl, s) in enumerate(seq):
            if n in (1, 48, 96, 128, 160, 192): self.stamp(f'_g{n}')
            for a_ in range(6):
                if n == last[a_] + 4: gq += gelu(a_)
            if n == last[1] + 1 and n > first[3] - LA:
                e('s_barrier'); vq += [x for i in (5,6) for x in self.dma_tile(i, i-5)]
            for a_ in range(3, 7):
                if n == first[a_] - LA:
                    while any(x[0] == a_ for x in vq): tile_one(vq)
                    e(f's_waitcnt {self.wvm(dma_id[a_])}\ns_barrier')
                    if a_ == 4: wopen[0] = 4
                    if a_ == 5: wopen[0] = 6
                    if a_ == 3 and n > last[1]: vq += [x for i in (5,6) for x in self.dma_tile(i, i-5)]
            w_ = ''
            if w_id[n] > wwait:
                tgt = w_id[min(n+WE-1, len(seq)-1)]; w_ = self.wlg(tgt); wwait = tgt
            if tl == 0 and s % 2 == 0:
                while len(xq) > 1: e(xq.pop(0))
                if xq: xq.pop(0)()
            if w_: e(f's_waitcnt {w_}')
            if s == 0: assert not any(b_ == tl-4 for _, b_ in gq), (n, len(gq))
            c_ = '0' if s == 0 else vr(acc[tl],16)
            e(f'v_mfma_f32_32x32x16_bf16 {vr(acc[tl],16)}, {vr(WF+4*(n%NB),4)}, {vr(X+4*s,4)}, {c_}')
            if tl == 6: xfree[0] = s
            if n + LA < len(seq): wread(n+LA)
            budget = (grate*(n+1))//10 - (grate*n)//10
            if tl == 1 and s % 2 == 0 and s+2 < 32 and not (SMP and s == 0):
                xb, xbr = xcheck(s+2)
                e(f's_waitcnt {self.wvm(x_id[s+3])}'); xq = xb + [xbr]
            for _ in range(3):
                if len(xq) > 1: e(xq.pop(0))
            if progress(n): budget -= 2
            elif len(x_id) < 32:
                if tl == 0: xload()
                elif P1 == 3 and tl == 1 and s % 4 == 0: pump(n)
            else: pump(n)
            while gq and budget > 0:
                x, b_ = gq.pop(0); budget -= 1
                emit_g(x, b_, n)
            for _ in range(max(1, min(budget, 2))):
                if tr_ready(self.opt('trlag1', 9)): tr_pop()
            if not NF and n == len(seq) - self.opt('c6', 5) and len(a_id) >= CG:
                e(f's_waitcnt {self.wvm(a_id[CG-1])}'); b_, br_ = acheck(0); aq0 = b_ + [br_]
            for _ in range(3):
                if len(aq0) > 1: e(aq0.pop(0))
        assert not vq
        self.stamp('g1_mfma')
        n = len(seq); xfree[0] = 32
        while wdq: wd_one()
        e(f"""
        v_lshlrev_b32 v{WF}, 2, v0
        v_add_u32 v{WF}, {L_GB}, v{WF}
        ds_write_b32 v{WF}, v{GBV}""")
        while any(b_ <= 4 for _, b_ in gq):
            x, b_ = gq.pop(0); emit_g(x, b_, n)
        g6pos = len(p.text); g6 = gelu(6)
        A2 = [ar(224,16), ar(240,16), vr(AC[0],16), vr(AC[3],16)]
        a2q = lambda q_, i: ar(224+16*q_+4*i, 4) if q_ < 2 else vr(AC[3*(q_-2)]+4*i, 4)
        vRw = 12; vRr = 13; vG = 14
        fill = f"""v_bfe_u32 v{WF}, v0, 5, 1
        v_and_b32 v{WF+1}, 0x1f0, v1
        s_mul_i32 s{sT}, s{sW}, {4*RQ}
        s_add_u32 s{sT}, s{sT}, {L_RED}
        v_mul_u32_u24 v{WF}, {RQ}, v{WF}
        v_add3_u32 v{vRw}, v{WF}, v{WF+1}, s{sT}
        v_and_b32 v{WF}, 7, v0
        v_lshrrev_b32 v{WF+1}, 3, v0
        v_mul_u32_u24 v{WF+2}, {RSA}, v{WF}
        v_lshl_add_u32 v{vRr}, v{WF+1}, 4, v{WF+2}
        v_add_u32 v{vRr}, {L_RED}, v{vRr}
        s_lshl_b32 s{sT}, s{sDt}, 7
        s_add_u32 s{sT}, s{sT}, {L_GB}
        v_lshl_add_u32 v{vG}, v{WF}, 4, s{sT}
        s_add_u32 s{sT+2}, s{pOut}, 32768
        s_addc_u32 s{sT+3}, s{pOut+1}, 0""".split('\n')
        fill[-2:] = ['\n'.join(fill[-2:])]
        XF2 = 96
        fill2 = [x for tt in range(2) for j in range(4) for x in self.unpack(XF2+8*tt+2*j, X2R+4*tt+j)]
        TAILK = self.opt('tailk', 6)
        o2 = [(kk, tt, c) for kk in range(28-TAILK) for tt in range(2) for c in range(2)]
        o2 += [(kk, tt, c) for tt in range(2) for c in range(2) for kk in range(28-TAILK, 28)]
        PACE = self.opt('pace2', 18)
        wq = []; twait = 0; await_ = 0; X2M = self.opt('x2m', 44); used = {}
        GF = 112; vRr2 = 15; OO = [16, 4]
        def redw(q_): return [f'ds_write_b128 v{vRw}, {a2q(q_, i)} offset:{2*RQ*(q_>>1)+(4*(q_&1)+i)*RSA}' for i in range(4)]
        RDS = [AC[1], 128]
        r_id = {}
        def redr(tt):
            for hs in range(2):
                for w in range(4):
                    e(f'ds_read_b128 {vr(RDS[tt]+16*hs+4*w,4)}, v{vRr if w<2 else vRr2} offset:{(4*(w&1)+2*tt+hs)*RQ}')
                r_id[(tt, hs)] = self.nlg
        def redm(tt):
            out = []
            for hs in range(2):
                r = RDS[tt]+16*hs
                out.append(('w', (tt, hs)))
                for hh in range(2):
                    out += [f'v_pk_add_f32 {vr(r+2*hh,2)}, {vr(r+2*hh,2)}, {vr(r+4+2*hh,2)}', f'v_pk_add_f32 {vr(r+8+2*hh,2)}, {vr(r+8+2*hh,2)}, {vr(r+12+2*hh,2)}']
                out += [f'v_pk_add_f32 {vr(r+2*hh,2)}, {vr(r+2*hh,2)}, {vr(r+8+2*hh,2)}' for hh in range(2)]
                out += [f'v_pk_fma_f32 {vr(r+2*hh,2)}, {vr(r+2*hh,2)}, {vr(GF+4*hs+2*hh,2)}, {vr(XF2+8*tt+4*hs+2*hh,2)}' for hh in range(2)]
                out += [f'v_cvt_pk_bf16_f32 v{OO[tt]+2*hs+hh}, v{r+2*hh}, v{r+2*hh+1}' for hh in range(2)]
            out.append(f'global_store_dwordx4 v{vX2}, {vr(OO[tt],4)}, {sp(pOut) if tt==0 else sp(sT+2)} {self.opt("outflag","sc1").replace("_"," ").replace("none","")}')
            return out
        def emit_m(x):
            if isinstance(x, tuple): e(f's_waitcnt {self.wlg(r_id[x[1]])}')
            else: e(x)
        fill.append(f'v_add_u32 v{vRr2}, {8*RQ}, v{vRr}')
        fill2.append(f's_mov_b32 s{sGk}, {fbits(2.0**64*(1+self.opt("perturb", 0)/1000))}')
        gun = [x for j in range(4) for x in self.unpack(GF+2*j, GF+8+j)] + [f'v_mul_f32 v{GF+j}, s{sGk}, v{GF+j}' for j in range(8)]
        states = lambda pos: sum(hazard.I(l).states() for l in p.text[pos:])
        wdone = 0; barA = False; aq = aq0; achk = 8*NF; anext = achk + (CG if aq0 else 0)
        firstm = {}
        for m_, (kk, tt, c) in enumerate(o2): firstm.setdefault(lorder.index((kk, tt)), m_)
        for m_, (kk, tt, c) in enumerate(o2):
            f = lorder.index((kk, tt)); T = korder[kk]; q_ = 2*tt + c
            if m_ in (0, 28, 56, 84): self.stamp(f'_h{m_//2}')
            if m_ == X2M - 20 and not NF: id_f4 = e(f4_load)
            if m_ == X2M:
                assert checked
                if not NF:
                    while len(aq) > 1: e(aq.pop(0))
                    if aq: aq.pop(0)(); achk = anext
                    self.check(f4_load, [vPo4], id_f4)
                id_x2l = e(f's_mov_b32 s0, {X2}\nbuffer_load_dwordx4 {vr(X2R,4)}, v{vX2}, {SRD}, s0 offen sc1\ns_mov_b32 s0, {X2+32768}\nbuffer_load_dwordx4 {vr(X2R+4,4)}, v{vX2}, {SRD}, s0 offen sc1')
            if m_ == self.opt('x2u', 70):
                e(f's_waitcnt {self.wvm(id_x2l)} {self.wlg(g_id)}'); fill += fill2 + gun
            while len(a_id) <= f:
                g = min(i for i in range(len(groups)) if gend[i] > len(a_id))
                while groups[g][-1] not in st_id:
                    if not gq: gq += g6; g6 = []
                    x, b_ = gq.pop(0); emit_g(x, b_, n)
                while checked <= g: progress(n, force=g)
                assert acan()
                aload()
            ahead = max(lorder.index((k2, t2)) for k2, t2, _ in o2[m_:m_+2*self.opt('amin', 12)])
            for _ in range(8 if len(a_id) <= f+2 else 2):
                if acan() and len(a_id) <= ahead: aload(); nextv[0] = 10*n + PACE
            while any(T_ == T for _, T_, _ in trq): tr_pop()
            if m_ == 64:
                while trq: tr_pop()
                e(f's_waitcnt lgkmcnt(0)\ns_barrier\nds_read_b128 {vr(GF+8,4)}, v{vG}'); twait = self.nlg-1; g_id = self.nlg; assert not fill and not gq and not g6
            while achk < f + 1:
                if not aq:
                    while len(a_id) < anext + CG: aload()
                    e(f's_waitcnt {self.wvm(a_id[anext+CG-1])}'); b_, br_ = acheck(anext); aq = b_ + [br_]; anext += CG
                while len(aq) > 1: e(aq.pop(0))
                aq.pop(0)(); achk = anext
            w_ = ''
            if f < 8*NF and a_id[f] > await_:
                f2_ = min(f | 1, len(a_id)-1); w_ = self.wvm(a_id[f2_]); await_ = a_id[f2_]
            if t_id.get(T, 0) > twait: w_ += ' ' + self.wlg(t_id[T]); twait = t_id[T]
            if w_: e(f's_waitcnt {w_}')
            e(f'v_mfma_f32_32x32x16_bf16 {A2[q_]}, {ar(8*T+4*c,4)}, {areg(f)}, {"0" if kk==0 else A2[q_]}')
            n += 1
            used[f] = used.get(f, 0) + 1
            if kk == 27 and q_ < 3: wq.append((len(p.text), redw(q_)))
            if not progress(n): pump(n)
            if used[f] == 2: consumed.add(f)
            if len(aq) == 1: aq.pop(0)(); achk = anext
            elif not aq and anext < 56 and len(a_id) >= anext + CG and firstm[anext] <= m_ + self.opt('clead', 6):
                e(f's_waitcnt {self.wvm(a_id[anext+CG-1])}'); b_, br_ = acheck(anext); aq = b_ + [br_]; anext += CG
            for _ in range(self.opt('crate', 3)):
                if len(aq) > 1: e(aq.pop(0))
            if g6 and states(g6pos) >= 12: gq += g6; g6 = []
            if gq:
                for _ in range(self.opt('grate2', 5)):
                    if gq:
                        x, b_ = gq.pop(0); emit_g(x, b_, n)
                if tr_ready(8): tr_pop()
                continue
            if wq:
                if states(wq[0][0]) < 12: e(f's_nop {min(4, 11-states(wq[0][0]))}')
                if states(wq[0][0]) >= 12:
                    e(wq[0][1].pop(0))
                    if not wq[0][1]: wq.pop(0); wdone += 1; wlast = self.nlg
                continue
            if wdone >= 2 and not barA and self.opt('tsplit', 1):
                e(f's_waitcnt {self.wlg(wlast)}\ns_barrier'); barA = True
                redr(0); continue
            for _ in range(self.opt('trate', 2) - c):
                if tr_ready(8): tr_pop()
            for _ in range(2 if m_ < 80 else 3):
                if fill: e(fill.pop(0))
        assert not fill and not trq and not gq and not g6
        self.stamp('g2_mfma')
        lastpos = len(p.text)
        for _, ws_ in wq:
            for x in ws_: e(x)
        if not barA and self.opt('tsplit', 1):
            e(f's_waitcnt lgkmcnt(0)\ns_barrier'); barA = True
            redr(0)
        if barA:
            m0_ = redm(0)
            while states(lastpos) < 12: emit_m(m0_.pop(0))
            for x in redw(3): e(x)
            for x in m0_: emit_m(x)
            e(f's_waitcnt lgkmcnt(0)\ns_barrier')
            redr(1)
            for x in redm(1): emit_m(x)
        else:
            for x in redw(3): e(x)
            e(f's_waitcnt lgkmcnt(0)\ns_barrier')
            redr(0); redr(1)
            for x in redm(0) + redm(1): emit_m(x)
        self.stamp('end')
        e(f'''
        s_or_b32 s0, s{sL}, s{sW}
        s_cbranch_scc1 L_noep''')
        e(self.flag_text(vF, 0))
        e('L_noep:')
        if self.stamps:
            e(f'''
            s_lshl2_add_u32 s{sT}, s{sL}, s{sW}
            s_lshl_b32 s{sT}, s{sT}, 7
            s_add_u32 s{sT}, s{sT}, {STMP}
            v_mov_b32 v4, 0
            s_mov_b64 exec, 1''')
            for i in range(self.ns):
                e(f'v_mov_b32 v5, s{sStamp+i}\nbuffer_store_dword v5, v4, {SRD}, s{sT} offen offset:{4*i}')
            e(f'v_mov_b32 v5, s{sCnt}\nbuffer_store_dword v5, v4, {SRD}, s{sT} offen offset:124')
        if self.o.get('probe') is not None:
            kk = self.stamp_names.index(self.o['probe'])
            e(f'''
            s_add_u32 s{sT}, s{sStamp+kk}, 5000
            L_spin:
            s_sleep 1
            s_memrealtime s[22:23]
            s_waitcnt lgkmcnt(0)
            s_sub_u32 s{sT+1}, s22, s{sT}
            s_cmp_lt_i32 s{sT+1}, 0
            s_cbranch_scc1 L_spin''')
        e('s_endpgm')
        for x in self.tail: e(x)
        e('L_end:\ns_endpgm')
        p.end(k, vgpr=256, agpr=256, sgpr=102)
        nt = str(self.opt('nt', '-'))
        def hint(l):
            for ch, bases in (('x', [pX]), ('m', [pWm]), ('a', [pAre,pAim,pBre,pBim,pCre,pCim]), ('g', [pWu])):
                if ch in nt and l.strip().startswith('global_load') and any(f', {sp(b)}' in l for b in bases): return l + ' nt'
            if 'e' in nt and 'buffer_load_dwordx2' in l: return l + ' nt'
            return l
        p.text = [hint(l) for l in p.text]
        p.text, added = hazard.fix(p.text, verbose=self.o.get('verbose'))
        hazard.check_global_addresses(p.text, sp(sM+4))
        if self.opt('align', 6):
            p.text, nw, nn = align.fix(p.text, self.opt('align', 6))
            if self.o.get('verbose'): print('align: widened', nw, 'nops', nn)
        p.text += ['.p2align 8', 'L_tab:'] + ['.long ' + ', '.join(hex(v) for v in self.table[i:i+16]) for i in range(0, len(self.table), 16)]
        return added

if __name__ == '__main__':
    ap = argparse.ArgumentParser()
    ap.add_argument('out'); ap.add_argument('--stamps', action='store_true'); ap.add_argument('-v', action='store_true')
    ap.add_argument('--probe', default=None); ap.add_argument('-o', action='append', default=[])
    a = ap.parse_args()
    opts = dict(verbose=a.v, probe=a.probe)
    for kv in a.o:
        kk, vv = kv.split('='); opts[kk] = int(vv) if vv.lstrip('-').isdigit() else vv
    g = G(a.stamps or a.probe is not None, opts)
    added = g.build()
    g.p.dump(a.out, single=True)
    n = sum(1 for l in g.p.text if l.startswith('  '))
    print(a.out, 'instructions', n, 'nops added', added, 'stamps', g.stamp_names)
    if a.stamps: open(a.out + '.names', 'w').write(' '.join(g.stamp_names))
```

```python
import sys, struct, argparse
from asmlib import Prog, NAME
import hazard, align

def fbits(x): return '0x%08x' % struct.unpack('<I', struct.pack('<f', x))[0]

F1   = 0x0C0000
F2   = 0x020000
F3   = 0x040000
F3S  = 0x020000
MODP = 0x0E0000
MX   = 0x008000
TAGZ = 0x40004000
HBLK = 8448
TAGM = 0x70007000
XH   = 0x160000
ZY   = 0x380000
H2   = 0x5A0000
X2   = 0x7A0000
WGU  = 0x9A0000
ACT  = 0xD20000
STMP = 0x3000000
WS_BYTES = 0x10000000
S4   = 131072
L_U  = S4; USZ = 4608
L_P  = S4 + 2*USZ; PSZ = 4288
L_ZB = L_P + 2*PSZ
L_JK = L_ZB + 1024
L_BD = L_P + 12288
L_SB = L_BD + 1024
L_Y  = 98304
L_MB = 98304
RST  = 544
L_RC = 0; RCSZ = 54*RST
L_RED = 65536; RSA = 576; RQ = 8*RSA
L_GB = L_RED + 16*RQ
LDS_BYTES = 163840
pX,pAre,pAim,pBre,pBim,pCre,pCim,pLdt = 4,6,8,10,12,14,16,18
pD,pWg,pWu,pWd,pC,pWm,pOut,pWs = 20,24,26,28,30,32,34,38
SRD='s[40:43]'
sL,sW,sTag,sMask,sCnt = 44,45,46,47,48
sLo,sHi = 49,50
sOnes = 51
sMt,sNt,sTb,sDt = 52,53,54,55
sBad = 56
sT = 58
sM = 68
sDsk = 80
sStamp = 82
sDmaL, sDmaG, sDmaT = 36, 5, 6
sActG, sActT = 9, 10
sActS = 12
sF3o, sF3p = 14, 15
sXg = 16
sCh, sHb = 17, 18
sE1 = 4
sZs = 10
sTm = 25
sWs, sF1o = 14, 24
def sp(i): return f's[{i}:{i+1}]'
def vr(i, n): return f'v[{i}:{i+n-1}]'
def ar(i, n): return f'a[{i}:{i+n-1}]'

class G:
    def __init__(self, stamps=False, opts=None):
        self.p = Prog(); self.stamps = stamps; self.ns = 0; self.o = opts or {}
        self.stamp_names = []; self.nvm = 0; self.nlg = 0; self.tail = []; self.maybe = False; self.m0 = None
    def opt(self, k, d): return self.o.get(k, d)
    def c(self, txt):
        for l in txt.split('\n'): self.p.text.append('; ' + l.strip())
    def e(self, s):
        for line in s.split('\n'):
            l = line.strip()
            if not l: continue
            if l.startswith(('buffer_', 'global_')) and not self.maybe: self.nvm += 1
            if l.startswith('ds_') and not self.maybe: self.nlg += 1
            self.p.e(l)
        return self.nvm
    def wvm(self, i): return f'vmcnt({min(62, self.nvm - i)})'
    def wlg(self, i): return f'lgkmcnt({min(14, self.nlg - i)})'
    def stamp(self, name):
        if self.opt('jitter', 0) and name in ('x_arrived','_wm','kgen2','u_ready','_c54','conv','z_ok','_ln2bar','f2_ok','_g96','_g160','g1_mfma','_h14','_h42'):
            L = self.p.label('jit'); self.jn = getattr(self, 'jn', 0) + 1
            self.e(f'''s_lshl2_add_u32 s22, s2, s{sW}
            s_add_u32 s22, s22, {self.jn*977 + self.opt('jitter', 0)*131}
            s_mul_i32 s22, s22, 0x9E3779B1
            s_lshr_b32 s23, s22, 15
            s_xor_b32 s22, s22, s23
            s_mul_i32 s22, s22, 0x85EBCA6B
            s_lshr_b32 s22, s22, 27
            s_cmp_lg_u32 s22, 0
            s_cbranch_scc1 {L}
            s_sleep 100
            {L}:''')
        if not self.stamps: return
        if self.o.get('probe') is not None and name != self.o['probe']: return
        if self.o.get('only') and not (name == 'start' or name.startswith(tuple(self.o['only'].split(',')))): return
        if not self.o.get('only') and self.o.get('probe') is None and name.startswith('_'): return
        assert self.ns < 20
        self.e(f'{"s_memtime" if self.opt("cyc", 0) else "s_memrealtime"} s[22:23]\ns_waitcnt lgkmcnt(0)\ns_mov_b32 s{sStamp+self.ns}, s22')
        self.ns += 1; self.stamp_names.append(name)

    def check_text(self, loads, tags, last):
        Lc = self.p.label('chk'); Lr = self.p.label('retry')
        s = f's_waitcnt {self.wvm(last)}\n{Lc}:\n'
        if len(tags) == 1:
            s += f'v_cmp_ne_u32 vcc, v{tags[0]}, v2\ns_cmp_lg_u64 vcc, 0\ns_cbranch_scc1 {Lr}'
            self.tail.append(f'''{Lr}:
            s_sub_u32 s{sCnt}, s{sCnt}, 1
            s_cbranch_scc1 L_end
            {loads}
            s_waitcnt vmcnt(0)
            s_branch {Lc}''')
        else:
            s += f'v_cmp_ne_u32 {sp(sBad)}, v{tags[0]}, v2\n'
            for t in tags[1:]: s += f'v_cmp_ne_u32 vcc, v{t}, v2\ns_or_b64 {sp(sBad)}, {sp(sBad)}, vcc\n'
            s += f's_cbranch_scc1 {Lr}'
            self.tail.append(f'''{Lr}:
            s_sub_u32 s{sCnt}, s{sCnt}, 1
            s_cbranch_scc1 L_end
            s_mov_b64 exec, {sp(sBad)}
            {loads}
            s_mov_b64 exec, -1
            s_waitcnt vmcnt(0)
            s_branch {Lc}''')
        return s
    def check(self, loads, tags, last): self.e(self.check_text(loads, tags, last))

    def flag_text(self, vaddr, soff):
        return f's_mov_b32 exec_hi, 0\nbuffer_store_dword v2, v{vaddr}, {SRD}, s{soff} offen sc1\ns_mov_b32 exec_hi, -1'

    def stats_partial(self, src, t, vSBw, fill=()):
        a,b,c,d = t,t+1,t+2,t+3
        for m in range(4):
            acc = lambda r: '0' if m == 0 else f'v{r}'
            self.e(f'''v_dot2_f32_bf16 v{a}, v{src+m}, s{sOnes}, {acc(a)}
            v_dot2_f32_bf16 v{b}, v{src+4+m}, s{sOnes}, {acc(b)}
            v_dot2_f32_bf16 v{c}, v{src+m}, v{src+m}, {acc(c)}
            v_dot2_f32_bf16 v{d}, v{src+4+m}, v{src+4+m}, {acc(d)}''')
        self.reduce4(a,b,c,d, fill)
        self.e(f'ds_write_b32 v{vSBw}, v{a}')
    def reduce4(self, a,b,c,d, fill=()):
        fill = list(fill)
        def f(n):
            for _ in range(n):
                if fill: self.e(fill.pop(0))
        f(2); self.e(f'v_permlane32_swap_b32 v{a}, v{b}\nv_permlane32_swap_b32 v{c}, v{d}\nv_add_f32 v{a}, v{a}, v{b}\nv_add_f32 v{c}, v{c}, v{d}')
        f(2); self.e(f'v_permlane16_swap_b32 v{a}, v{c}\nv_add_f32 v{a}, v{a}, v{c}')
        f(2); self.e(f'v_add_f32_dpp v{a}, v{a}, v{a} row_ror:4 row_mask:0xf bank_mask:0xf')
        f(2); self.e(f'v_add_f32_dpp v{a}, v{a}, v{a} row_ror:8 row_mask:0xf bank_mask:0xf')
        self.rest = fill
    def stats_read(self, t, vSBr):
        for w in range(4): self.e(f'ds_read_b128 {vr(t+4*w,4)}, v{vSBr} offset:{16*w}')
        return self.nlg
    def stats_finish(self, t, vInv, scale=None, pre=None):
        self.e(f'''
        v_pk_add_f32 {vr(t,2)}, {vr(t,2)}, {vr(t+4,2)}
        v_pk_add_f32 {vr(t+2,2)}, {vr(t+2,2)}, {vr(t+6,2)}
        v_pk_add_f32 {vr(t+8,2)}, {vr(t+8,2)}, {vr(t+12,2)}
        v_pk_add_f32 {vr(t+10,2)}, {vr(t+10,2)}, {vr(t+14,2)}
        v_pk_add_f32 {vr(t,2)}, {vr(t,2)}, {vr(t+8,2)}
        v_pk_add_f32 {vr(t+2,2)}, {vr(t+2,2)}, {vr(t+10,2)}
        v_pk_mul_f32 {vr(t+4,2)}, {vr(t,2)}, {vr(vInv,2)} op_sel_hi:[1,0]
        v_pk_mul_f32 {vr(t+6,2)}, {vr(t+2,2)}, {vr(vInv,2)} op_sel_hi:[1,0]
        v_fma_f32 v{t+5}, -v{t+4}, v{t+4}, v{t+5}
        v_fma_f32 v{t+7}, -v{t+6}, v{t+6}, v{t+7}
        v_max_f32 v{t+5}, 0, v{t+5}
        v_max_f32 v{t+7}, 0, v{t+7}
        {f'v_fmamk_f32 v{t+5}, v{t+5}, {fbits(pre)}, v{vInv+1}' if pre else f'v_add_f32 v{t+5}, v{vInv+1}, v{t+5}'}
        {f'v_fmamk_f32 v{t+7}, v{t+7}, {fbits(pre)}, v{vInv+1}' if pre else f'v_add_f32 v{t+7}, v{vInv+1}, v{t+7}'}
        v_rsq_f32 v{t}, v{t+5}
        v_rsq_f32 v{t+2}, v{t+7}''')
        if scale: self.e(f'v_mul_f32 v{t}, {fbits(scale)}, v{t}\nv_mul_f32 v{t+2}, {fbits(scale)}, v{t+2}')
        self.e(f'''
        v_mul_f32 v{t+1}, -v{t+4}, v{t}
        v_mul_f32 v{t+3}, -v{t+6}, v{t+2}''')
    def cmul(self, d, a, b):
        return [f'v_pk_mul_f32 {vr(d,2)}, {vr(a,2)}, {vr(b,2)} op_sel_hi:[1,0]',
                f'v_pk_fma_f32 {vr(d,2)}, {vr(a,2)}, {vr(b,2)}, {vr(d,2)} op_sel:[1,1,0] op_sel_hi:[0,1,1] neg_lo:[1,0,0]']
    def unpack(self, d, s): return [f'v_lshlrev_b32 v{d}, 16, v{s}', f'v_and_b32 v{d+1}, s{sMask}, v{s}']

    def dma_tile(self, i, slot):
        return [(i, slot, slot*32768 + hf*4096, i*32768 + hf*4096,
                 f'buffer_load_dwordx4 v1, {SRD}, s{sDmaT} offen offset:{e_*1024} sc1 lds') for hf in range(2) for e_ in range(4)]
    def set_m0(self, off):
        if self.m0 != off: self.e(f's_add_u32 m0, s{sDmaL}, {off}'); self.m0 = off

    def build(self):
        p = self.p; e = self.e
        k = NAME + '_kernel'
        p.header = '''One persistent launch, 256 workgroups (one per CU) x 4 waves. Each workgroup owns 8 rows (LN1, LN2), 2 channels (S4 conv),
one 128x112 GEMM1 tile and one 64x64 GEMM2 tile. Hand-offs go through d_ws with write-through stores and cache-bypassing loads,
so they hold under any placement. Each launch derives a tag from the epoch word at d_ws[0] (rewritten at the end); handed-over
words carry that tag in exponent bits freed by an exact power-of-two scaling (or in a flag word), which tells them from older data.'''.split('\n')
        p.add_launch(k, 256, 256, LDS_BYTES)
        p.begin(k)
        XR = 4; WM = 12; AB = 28; WG = 36
        vXO = 3; t = 68
        vTg = 252; vWgL = 35; vTab = 97; vPf = 255; vInv = 52; vDt = 34; vS = 54; vPolled = 123; vMBw = 79
        vSBw, vSBr, vMBr, vEM = 112, 113, 114, 115
        vRW, vKa, vKb0, vKb1 = 116, 117, 118, 119
        vWgS, vTw, vTr, vF = 124, 125, 126, 127
        vEX, vWdA, vBv, vOne = 64, 65, 66, 67
        vKw0, vKw1, vBd, vBd2 = 120, 121, 122, 123
        vPA, vPX, vQ, vUS = 56, 57, 58, 59
        vYw, vYr, vUB, vUw = 60, 61, 62, 63
        TP = 160; TB = 98304
        def consts(tid):
            w, l = tid >> 6, tid & 63; ch, hb = w >> 1, w & 1; c, q_, rp = l & 15, l >> 4, l & 3
            P = L_P + ch*PSZ; U = L_U + ch*USZ; RC = L_RC + ch*RCSZ
            lo, wd = [(3,3),(6,5),(5,7),(4,9)][w]
            x = l - 16 - lo
            band = (0x3f80 if 0 <= x < wd else 0) | (0x3f800000 if 0 <= x-1 < wd else 0)
            if c < 8: kw1 = P + 4*(608 + 16*[1,5,2,6,10,11,12,13][c] + 8*hb + 2*q_)
            elif 120 <= (tid & 127) < 125: kw1 = P + 4*((520 if c < 11 else 568) + c) - 932
            else: kw1 = L_JK
            sw = (((l >> 1) & 3) ^ q_) * 16
            full = [(tid >> 2)*HBLK + rp*16, (448*w + 16*((l>>4)&1) + 4*((l>>2)&3))*1024 + (l>>5)*64 + (l&3)*16, band, 0x3f800000 if q_ == 2 else 0]
            half = {vSBw: L_SB + rp*64 + w*16 + q_*4, vSBr: L_SB + rp*64,
              vMBr: L_MB + 4*(192*((l>>1)&1) + 2*(8*w + ((l>>2)&7)) + (l&1)), vMBw: L_MB + 32*tid,
              vRW: RC + 4*(tid & 127), vKa: RC + (16*hb + c)*RST + 16*q_,
              vKb0: RC + [0,1,2,3,4,5,6,7,8,8,9,10,10,10,11,12][c]*RST + 16*q_, vKb1: RC + [1,2,3,4,5,6,7,8,0,0,0,4,4,0,0,0][c]*RST + 16*q_,
              vF: 4*l, vTr: w*8192 + (l>>5)*256 + ((l>>2)&3)*64 + ((l>>4)&1)*32 + (l&3)*8,
              vEM: (l >> 2)*2048 + rp*16, vWgS: q_*512 + c*16,
              vKw0: P + 64 + 512*hb + 4*((c&7) + 256*(c>>3) + 32*q_), vKw1: kw1,
              vBd: L_BD + 4*(26 + c - 8*q_), vBd2: L_BD + 4*(26 + c - 8*q_) + 256*hb,
              vPA: P + 512*hb + 4*(26 + c - 8*q_), vPX: (P + 2048 if hb == 0 else L_ZB) + 4*(26 + c - 8*q_),
              vQ: P + 4*(608 + 12 + c - 4*q_) + 928*hb, vUS: U + 32*c + 16*q_ + 480 - 16*hb,
              vYw: L_Y + w*8192 + c*64 + sw, vYr: L_Y + (tid >> 2)*64 + (((rp >> 1) ^ ((tid >> 3) & 3))*16) + (rp & 1)*8, vUB: U + 32*c + 16*q_ + 288 - 256*hb, vUw: L_U + 512 + 4*tid}
            return full, half
        hlate = [vPA, vPX, vQ, vUS, vYw, vYr, vUB, vTr]
        hregs = [r for r in consts(0)[1] if r not in hlate] + hlate; assert len(hregs) == 24
        hbase = {r: (TB if consts(0)[1][r] >= TB else 0) for r in hregs}
        def trow(tid):
            full, half = consts(tid)
            h = [half[r] - hbase[r] for r in hregs]; assert all(0 <= v < 65536 for v in h)
            return [h[2*i] | h[2*i+1] << 16 for i in range(12)] + full
        self.table = [v for qd in range(4) for tid in range(256) for v in trow(tid)[4*qd:4*qd+4]]
        def tunpack():
            out = []
            for i, r in enumerate(hregs):
                b_ = f's{sT+9}' if hbase[r] else '0'
                out.append(f'v_add_u32_sdwa v{r}, {b_}, v{TP+(i>>1) if i < 16 else 144+(i>>1)} dst_sel:DWORD dst_unused:UNUSED_PAD src0_sel:DWORD src1_sel:WORD_{i&1}')
            return out
        MAP2 = self.opt('map2', 84)
        NF = 0
        groups = ([tuple(range(NF))] if NF else []) + [(i,) for i in range(NF, 7)]
        korder = [7*pp + i for g in groups for pp in range(4) for i in g]
        wslot = [int(c) for c in str(self.opt('wslot', 'x0123232'))[1:]]
        wdq = [(Gl, jh, c) for Gl in range(7) for jh in range(2) for c in range(4)]
        trq = [(Gl, 4*Gl+c, f'ds_read_b64_tr_b16 {ar(8*(4*Gl+c)+4*cc+2*jh,2)}, v{vTw if wslot[Gl] >= 2 else vTr} offset:{(wslot[Gl]&1)*32768 + jh*4096 + c*1024 + cc*512}')
               for Gl in range(7) for c in range(4) for cc in range(2) for jh in range(2)]
        wd_id = {}; t_id = {}; g_last = {}; wopen = [-1]; trw = [0]; vW = [vWdA]; freed = set()
        def tr_ready(lag): return trq and trq[0][0] in wd_id and wd_id[trq[0][0]] <= self.nvm - lag
        def tr_pop():
            Gl, T, x = trq.pop(0)
            while Gl not in wd_id: wd_one()
            if wd_id[Gl] > trw[0]: trw[0] = wd_id[Gl]; e(f's_waitcnt {self.wvm(trw[0])}')
            e(x); t_id[T] = g_last[Gl] = self.nlg
        def free_slot(sl, upto):
            for Gl in range(upto):
                if wslot[Gl] == sl and Gl not in freed:
                    while trq and trq[0][0] <= Gl: tr_pop()
                    e(f's_waitcnt {self.wlg(g_last[Gl])}'); freed.add(Gl)
        def wd_can():
            if not wdq or wdq[0][0] > wopen[0]: return False
            Gl = wdq[0][0]
            return all(G2 in freed or (G2 in g_last and (not trq or trq[0][0] > G2)) for G2 in range(Gl) if wslot[G2] == wslot[Gl])
        def wd_one():
            Gl, jh, c = wdq.pop(0); assert Gl <= wopen[0], Gl
            free_slot(wslot[Gl], Gl)
            self.set_m0(wslot[Gl]*32768 + jh*4096)
            if c == 0 and (Gl or jh): e(f'v_add_u32 v{vW[0]}, 32768, v{vW[0]}')
            i_ = e(f'global_load_lds_dwordx4 v{vW[0]}, {sp(pWd)} offset:{1024*c}')
            if c == 3 and jh == 1: wd_id[Gl] = i_
        def wd_issue(n):
            for _ in range(n):
                if wd_can(): wd_one()
        dma_id = {}; gcur = [None]
        def tile_one(q_):
            i, sl, off, go, x = q_.pop(0)
            free_slot(sl, 4 if i <= 4 else 0)
            self.set_m0(off)
            if gcur[0] != go: e(f's_add_u32 s{sDmaT}, s{sDmaG}, {go}'); gcur[0] = go
            dma_id[i] = e(x)
        def tr_do(n):
            for _ in range(4*n):
                if tr_ready(self.opt('trlag', 6)): tr_pop()
        self.c('---- prologue: ids, kernel code / constant table towards L2, first loads (x rows, S4 parameters, w_mod slice), address set-up, silu(c)')
        if self.stamps and self.o.get('probe') is None:
            e(f'{"s_memtime" if self.opt("cyc", 0) else "s_memrealtime"} s[{sStamp}:{sStamp+1}]'); self.ns += 1; self.stamp_names.append('start')
        XF1 = self.opt('xfirst', 0)
        if XF1:
            e(f"""
            s_load_dwordx2 {sp(sBad)}, s[0:1], 0
            s_cmp_ge_u32 s2, 256
            s_cbranch_scc1 L_end
            s_lshr_b32 s3, s2, 3
            s_and_b32 s{sT+1}, s2, 7
            s_lshl_b32 s{sL}, s{sT+1}, 5
            s_or_b32 s{sL}, s{sL}, s3
            v_and_b32 v{t+2}, 3, v0
            v_and_b32 v{t+3}, 0xfc, v0
            s_lshl_b32 s{sT+3}, s{sL}, 13
            v_lshl_add_u32 v{t+3}, v{t+3}, 2, s{sT+3}
            v_lshl_add_u32 v{vXO}, v{t+2}, 11, v{t+3}
            s_waitcnt lgkmcnt(0)
            global_load_dwordx4 {vr(XR,4)}, v{vXO}, {sp(sBad)}""")
            id_x = e(f'global_load_dwordx4 {vr(XR+4,4)}, v{vXO}, {sp(sBad)} offset:1024')
        e(f"""
        s_load_dwordx16 s[4:19], s[0:1], 0
        s_load_dwordx16 s[20:35], s[0:1], 64
        s_load_dwordx4 s[36:39], s[0:1], 128
        s_cmp_ge_u32 s2, 256
        s_cbranch_scc1 L_end
        v_lshrrev_b32 v{t}, 6, v0
        v_and_b32 v{t+1}, 63, v0
        v_readfirstlane_b32 s{sW}, v{t}
        s_lshr_b32 s3, s2, 3
        s_getpc_b64 {sp(sM)}
        L_pc:
        s_lshl2_add_u32 s{sT}, s3, s{sW}
        s_lshl_b32 s{sM+2}, s{sT}, 8
        s_min_u32 s{sM+2}, s{sM+2}, L_end-L_pc-256
        v_lshl_add_u32 v{t+7}, v{t+1}, 2, s{sM+2}
        global_load_dword v123, v{t+7}, {sp(sM)}
        s_add_u32 s{sM+4}, s{sM}, L_tab-L_pc+4096
        s_addc_u32 s{sM+5}, s{sM+1}, 0
        v_lshlrev_b32 v{vTab}, 4, v0""")
        id_tab = e(f"""
        global_load_dwordx4 {vr(TP,4)}, v{vTab}, {sp(sM+4)} offset:-4096
        global_load_dwordx4 {vr(TP+4,4)}, v{vTab}, {sp(sM+4)}
        v_add_u32 v{vTab}, 8192, v{vTab}
        global_load_dwordx4 {vr(152,4)}, v{vTab}, {sp(sM+4)} offset:-4096
        global_load_dwordx4 {vr(vEX,4)}, v{vTab}, {sp(sM+4)}""")
        e(f"""
        s_and_b32 s{sT+1}, s2, 7
        s_lshl_b32 s{sL}, s{sT+1}, 5
        s_or_b32 s{sL}, s{sL}, s3
        v_lshlrev_b32 v1, 4, v{t+1}
        v_and_b32 v{t+2}, 3, v0
        v_and_b32 v{t+3}, 0xfc, v0
        s_lshl_b32 s{sT+3}, s{sL}, 13
        v_lshl_add_u32 v{t+3}, v{t+3}, 2, s{sT+3}
        v_lshl_add_u32 v{vXO}, v{t+2}, 11, v{t+3}
        v_lshrrev_b32 v{t+4}, 3, v{t+1}
        v_min_u32 v{t+4}, 5, v{t+4}
        v_and_b32 v{t+5}, 0x70, v1
        v_lshl_add_u32 v{t+4}, v{t+4}, 10, v{t+5}
        s_lshl_b32 s{sT+2}, s{sT}, 3
        s_mul_i32 s{sT}, s{sT}, {4*6144}
        s_lshl_b32 s{sT+1}, s{sT+1}, 7
        s_add_u32 s{sT}, s{sT}, s{sT+1}
        s_add_u32 s{sT}, s{sT}, 3072
        v_add_u32 v{t+4}, s{sT}, v{t+4}
        v_add_u32 v{t+5}, 12288, v{t+4}
        s_lshl_b32 s{sT}, s{sL}, 9
        v_lshl_add_u32 v{t+6}, v0, 1, s{sT}
        s_lshl_b32 s{sT+3}, s{sL}, 2
        """)
        for i in range(6): e(f'v_mov_b32 v{AB+i}, 0')
        e('s_waitcnt lgkmcnt(0)')
        self.stamp('karg')
        e(f"""
        s_load_dwordx2 {sp(sT+4)}, {sp(pC)}, s{sT+2}""")
        if not XF1: id_x = e(f'global_load_dwordx4 {vr(XR,4)}, v{vXO}, {sp(pX)}\nglobal_load_dwordx4 {vr(XR+4,4)}, v{vXO}, {sp(pX)} offset:1024')
        id_ep = e(f"""
        s_load_dword s{sT+6}, {sp(pLdt)}, s{sT+3}
        s_load_dword s{sDsk+1}, {sp(pD)}, s{sT+3}
        global_load_dword v2, v{AB}, {sp(pWs)} sc1""")
        for i, ptr in enumerate([pAre,pAim,pBre,pBim,pCre,pCim]):
            id_ab = e(f'global_load_short_d16_hi v{AB+i}, v{t+6}, {sp(ptr)}')
        idm = [0]
        def wm_issue(k_):
            if self.opt('wmat', 1) == k_: idm[0] = e(f"""
            global_load_dwordx4 {vr(WM,4)}, v{t+4}, {sp(pWm)} offset:-3072
            global_load_dwordx4 {vr(WM+4,4)}, v{t+4}, {sp(pWm)} offset:3072
            global_load_dwordx4 {vr(WM+8,4)}, v{t+5}, {sp(pWm)} offset:-3072
            global_load_dwordx4 {vr(WM+12,4)}, v{t+5}, {sp(pWm)} offset:3072""")
        wm_issue(0)
        GR = 144
        u = 92
        e(f"""
        s_mov_b32 s{sMask}, 0xffff0000
        s_mov_b32 s{sLo}, 0x05040100
        s_mov_b32 s{sHi}, 0x07060302
        s_mov_b32 s{sOnes}, 0x3f803f80
        v_mov_b32 v{t+12}, {fbits(-1.4426950408889634)}
        s_add_u32 s{sT+7}, s{sT+3}, s{sW}
        s_min_u32 s{sT}, s{sT+7}, 895
        v_and_b32 v{t+8}, 15, v{t+1}
        s_lshl_b32 s37, s{sT}, 11
        s_mov_b64 s[0:1], {sp(pWd)}
        s_bitcmp1_b32 s{sT}, 0
        s_cselect_b32 s{pWu}, s{pWu}, s{pWg}
        s_cselect_b32 s{pWu+1}, s{pWu+1}, s{pWg+1}
        s_cselect_b32 s{sWs}, 256, 0
        s_bfe_u32 s{sT+1}, s{sT}, 0x40001
        s_lshr_b32 s{sT+2}, s{sT}, 5
        s_mul_i32 s{sT+8}, s{sT+1}, {32*3584}
        s_lshl_b32 s{sT+3}, s{sT+2}, 7
        s_add_u32 s{sT+8}, s{sT+8}, s{sT+3}
        v_lshrrev_b32 v{t+7}, 4, v{t+1}
        v_mul_u32_u24 v{t+7}, {8*3584}, v{t+7}
        v_lshl_add_u32 v{t+10}, v{t+8}, 3, s{sT+8}
        v_add_u32 v{vWgL}, v{t+10}, v{t+7}
        s_lshl_b32 s{sF1o}, s{sT+7}, 7
        s_add_u32 s{sF1o}, s{sF1o}, {F1}
        v_mov_b32 v{u}, 0
        v_mov_b32 v{u+1}, 0
        v_mov_b32 v{u+2}, 0
        v_mov_b32 v{u+3}, 0
        v_lshlrev_b32 v{u+4}, 4, v0
        v_add_u32 v{u+4}, {L_P}, v{u+4}
        s_lshr_b32 s{sCh}, s{sW}, 1
        s_mul_i32 s{sT}, s{sCh}, {USZ-512}
        s_add_u32 s{sT}, s{sT}, {L_U}
        v_lshl_add_u32 v{t+9}, v0, 2, s{sT}
        s_mov_b32 s{sT+9}, {TB}
        """)
        wm_issue(1)
        e(f"""
        ds_write_b128 v{u+4}, {vr(u,4)}
        ds_write_b128 v{u+4}, {vr(u,4)} offset:4096
        ds_write_b128 v{u+4}, {vr(u,4)} offset:8192
        ds_write_b32 v{t+9}, v{u}
        """)
        e(f"""
        s_mov_b32 s40, s{pWs}
        s_mov_b32 s41, s{pWs+1}
        s_mov_b32 s42, {WS_BYTES}
        s_mov_b32 s43, 0x20000
        s_mov_b32 s{sCnt}, {self.opt('cnt', 40000 if self.stamps else 400000)}
        v_mov_b32 v{vInv}, {fbits(1/512)}
        v_mov_b32 v{vInv+1}, {fbits(1e-5)}
        s_mul_i32 s{sT}, s{sL}, {HBLK}
        s_lshl_b32 s{sT+1}, s{sW}, 11
        s_add_u32 s{sT+1}, s{sT}, s{sT+1}
        s_add_u32 s{sT+1}, s{sT+1}, {XH}
        s_lshl_b32 s{sT+2}, s{sT+7}, 9
        s_add_u32 s{sT+2}, s{sT+2}, {MODP}
        s_mov_b32 s{sTag}, 1664525
        s_lshl_b32 s{sT+3}, s{sW}, 10
        s_add_u32 s{sT}, s{sT}, s{sT+3}
        s_add_u32 s{sZs}, s{sT}, {ZY}
        s_add_u32 s{sZs+1}, s{sT}, {ZY+4096}
        s_lshl_b32 s{sZs+3}, s{sL}, 4
        s_add_u32 s{sZs+3}, s{sZs+3}, {MX}
        s_cmp_eq_u32 s{sW}, 0
        s_cselect_b32 s{sZs+2}, s{sZs+3}, {WS_BYTES}
        s_mov_b32 s{sTm}, {TAGM}
        v_lshlrev_b32 v{vTg}, 2, v{t+2}
        v_add_u32 v{vTg+1}, 2, v{vTg}""")
        lateE = [x for x in f"""
        s_lshr_b32 s{sT}, s{sL}, 6
        s_bfe_u32 s{sT+3}, s{sL}, 0x10001
        s_lshl1_add_u32 s{sT}, s{sT}, s{sT+3}
        s_bfe_u32 s{sT+3}, s{sL}, 0x40002
        s_lshl4_add_u32 s{sT}, s{sT}, s{sT+3}
        s_and_b32 s{sT+3}, s{sL}, 1
        s_lshl3_add_u32 s{sT}, s{sT}, s{sT+3}
        s_lshl_b32 s{sT}, s{sT}, 3
        s_add_u32 s{sE1}, s{sT}, {XH}
        s_add_u32 s{sE1+1}, s{sT}, {XH+64*HBLK}
        s_add_u32 s{sE1+2}, s{sT}, {XH+128*HBLK}
        s_add_u32 s{sE1+3}, s{sT}, {XH+192*HBLK}
        s_and_b32 s{sT}, s2, 7
        s_lshl_b32 s{sT}, s{sT}, 10
        s_add_u32 s{sT}, s{sT}, s3
        s_lshl_b32 s{sT}, s{sT}, 6
        s_add_u32 s{sE1+4}, s{sT}, {MODP}
        s_add_u32 s{sE1+5}, s{sT}, {MODP+32768}
        """.split('\n') if x.strip()]
        DF = self.opt('defer', 1)
        if not DF:
            while lateE: e(lateE.pop(0))
        wgq = []; idw = [0]
        for jj in range(8):
            wgq.append(f'global_load_dwordx2 {vr(WG+2*jj,2)}, v{vWgL}, {sp(pWu)} offset:{3584*(jj&1)}' + (f'\nv_add_u32 v{vWgL}, 7168, v{vWgL}' if jj & 1 and jj < 7 else ''))
        def wg_issue(n):
            for _ in range(n):
                if wgq: idw[0] = e(wgq.pop(0))
        WGA = self.opt('wgat', 7)
        wm_issue(2); id_wm = idm[0]
        PFA = self.opt('pfat', 1)
        def wd_pf(r=vPf): e(f'v_and_b32 v{r}, 15, v0\nv_lshl_add_u32 v{r}, v{r}, 7, s37\nglobal_load_dword a223, v{r}, s[0:1]')
        if PFA == 0: wd_pf()
        PF2 = self.opt('pf2', 2); vPf2 = 35; assert PF2 in (-1, 2, 3, 4) and WGA in (0, 1, 5, 6, 7, 8)
        lateK = [x for x in f"""
        s_and_b32 s{sT}, s{sT+7}, 127
        s_mul_i32 s{sT}, s{sT}, 28
        s_bfe_u32 s{sT+3}, s2, {0x10001 if MAP2 == 84 else 0x10000 if MAP2 == 45 else 0}
        s_add_u32 s{sT}, s{sT}, s{sT+3}
        s_lshl_b32 s{sT}, s{sT}, 9
        s_add_u32 s15, s{sT}, 384
        s_lshr_b32 s{sT}, s{sT+7}, 5
        s_lshl_b32 s{sT}, s{sT}, 6
        s_bfe_u32 s{sT+3}, s{sT+7}, 0x40001
        s_add_u32 s{sT}, s{sT}, s{sT+3}
        s_lshl_b32 s{sT}, s{sT}, 11
        s_add_u32 s{sWs}, s{sWs}, s{sT}
        s_add_u32 s{sWs}, s{sWs}, {WGU}
        s_cmp_ge_u32 s{sL}, 224|s_cselect_b32 s{sWs}, {WS_BYTES}, s{sWs}
        s_bfe_u32 s{sT}, s{sL}, {0x10006 if MAP2 == 84 else 0x10005 if MAP2 == 45 else 0x10002}
        s_and_b32 s{sDt}, s{sL}, 3
        s_lshl2_add_u32 s{sDt}, s{sT}, s{sDt}
        s_lshl_b32 s{sT}, s{sDt}, 7
        s_add_u32 s{pWd}, s{pWd}, s{sT}|s_addc_u32 s{pWd+1}, s{pWd+1}, 0
        s_lshl_b32 s{sDmaL}, s{sW}, 13""".split('\n') if x.strip()]
        lateK = [x.replace('|', '\n') for x in lateK]
        assert not DF or (not self.opt('wde', 0) and self.opt('wjn', -1) >= -1)
        def wd_pf2(k_):
            if PF2 == k_: e(f'v_min_u32 v{vPf2}, {13*16}, v1\nv_lshl_add_u32 v{vPf2}, v{vPf2}, 6, s15\nglobal_load_dword a222, v{vPf2}, s[0:1]')
        wd_pf2(0)
        TCH = self.opt('tch', 1); NZ = self.opt('tchz', 8); vTc = 158
        if TCH >= 0:
            e(f"""
            v_and_b32 v{vTc-1}, 7, v0
            v_lshl_add_u32 v{vTc-2}, v{vTc-1}, 7, s{sZs+1}
            s_sub_u32 s{sT}, s{sF1o}, {F1-F3}
            v_cmp_gt_u32 vcc, 2, v{vTc-1}
            v_lshl_add_u32 v{vTc-1}, v{vTc-1}, 19, s{sT}
            v_mov_b32 v{vTc}, s{sZs+3}
            v_cndmask_b32 v{vTc}, v{vTc}, v{vTc-1}, vcc""")
            if self.opt('tchs', 0): e(f"""
            s_lshr_b32 s{sT}, s{sL}, 2
            s_lshl2_add_u32 s{sT}, s{sT}, s{sW}
            s_lshl_b32 s{sT}, s{sT}, 5
            s_and_b32 s{sT+3}, s{sL}, 3
            s_add_u32 s{sT}, s{sT}, s{sT+3}
            s_lshl_b32 s{sT}, s{sT}, 8
            s_add_u32 s{sT}, s{sT}, {H2}
            v_and_b32 v{vTc-1}, 6, v0
            v_cmp_eq_u32 vcc, 2, v{vTc-1}
            v_and_b32 v{vTc-1}, 1, v0
            v_lshl_add_u32 v{vTc-1}, v{vTc-1}, 7, s{sT}
            v_cndmask_b32 v{vTc}, v{vTc}, v{vTc-1}, vcc""")
            e(f"""
            v_cmp_gt_u32 vcc, {NZ*16}, v1
            s_nop 1
            v_cndmask_b32 v{vTc}, v{vTc}, v{vTc-2}, vcc""")
        if self.opt('tchh', -1) >= 0:
            e(f"""
            s_lshr_b32 s{sT}, s{sL}, 2
            s_lshl2_add_u32 s{sT}, s{sT}, s{sW}
            s_lshl_b32 s{sT}, s{sT}, 5
            s_and_b32 s{sT+3}, s{sL}, 3
            s_add_u32 s{sT}, s{sT}, s{sT+3}
            s_lshl_b32 s{sT}, s{sT}, 8
            s_add_u32 s{sT}, s{sT}, {H2}
            v_bfe_u32 v154, v0, 1, 3
            v_lshl_add_u32 v154, v154, 10, s{sT}
            v_and_b32 v153, 1, v0
            v_lshl_add_u32 v154, v153, 7, v154""")
        def touch(k_):
            if self.opt('tchh', -1) == k_: e(f'global_load_dword a220, v154, {sp(pWs)}')
            if TCH == k_: e(f'global_load_dword a221, v{vTc}, {sp(pWs)}')
        touch(0)
        if WGA == 0: wg_issue(8)
        self.stamp('_pretab')
        e(f's_waitcnt {self.wvm(id_tab)}')
        self.stamp('_tab')
        tu = tunpack()
        for x in tu[:16]: e(x)
        lateK += tu[16:]
        if not DF:
            while lateK: e(lateK.pop(0))
        wm_issue(3); id_wm = idm[0]
        sc = sM + 6
        e(f"""
        s_waitcnt lgkmcnt(0)
        s_lshl_b32 s{sc}, s{sT+4}, 16
        s_and_b32 s{sc+1}, s{sT+4}, s{sMask}
        s_lshl_b32 s{sc+2}, s{sT+5}, 16
        s_and_b32 s{sc+3}, s{sT+5}, s{sMask}""")
        self.stamp('_smem')
        for i in range(4): e(f'v_mul_f32 v{t+13+i}, s{sc+i}, v{t+12}')
        e(f"""
        s_lshl_b32 s{sT+4}, s{sCh}, 4
        s_lshr_b32 s{sT+5}, s{sT+6}, s{sT+4}
        s_lshl_b32 s{sT+5}, s{sT+5}, 16""")
        for i in range(4): e(f'v_exp_f32 v{t+13+i}, v{t+13+i}')
        e(f'v_mul_f32 v{vDt}, s{sT+5}, -v{t+12}')
        for i in range(4): e(f'v_add_f32 v{t+13+i}, 1.0, v{t+13+i}')
        e(f'v_exp_f32 v{vDt}, v{vDt}')
        for i in range(4): e(f'v_rcp_f32 v{t+13+i}, v{t+13+i}')
        e(f'v_cvt_pk_bf16_f32 v{vDt}, v{vDt}, v{vDt}')
        for i in range(4): e(f'v_mul_f32 v{t+13+i}, s{sc+i}, v{t+13+i}')
        e(f"""v_lshlrev_b32 v{vDt}, 16, v{vDt}
        v_cvt_pk_bf16_f32 v{vS}, v{t+13}, v{t+14}
        v_cvt_pk_bf16_f32 v{vS+1}, v{t+15}, v{t+16}
        s_lshr_b32 s{sDsk}, s{sDsk+1}, s{sT+4}
        s_lshl_b32 s{sDsk}, s{sDsk}, 16""")
        self.c("---- LN1 of this workgroup's 8 rows -> xhat handed to the channel owners; partial sums of silu(c) @ w_mod")
        self.stamp('_pre_x')
        e(f's_waitcnt {self.wvm(id_x)}')
        self.stamp('x_arrived')
        if PFA == 5: wd_pf()
        if WGA == 5: wg_issue(8)
        XF = 128
        unp = [x for r in range(2) for i in range(4) for x in self.unpack(XF+8*r+2*i, XR+4*r+i)]
        self.stats_partial(XR, t, vSBw, unp)
        unp = self.rest
        MA = 160; MP = 168; MR = 176; MPOS = self.opt('modpos', 1)
        def mod_partial():
            e(f's_waitcnt {self.wvm(id_wm)}')
            self.stamp('_wm')
            for h in range(2):
                for m in range(4):
                    e(f"""v_perm_b32 v{MP+2*m}, v{WM+8*h+4+m}, v{WM+8*h+m}, s{sLo}
                    v_perm_b32 v{MP+1+2*m}, v{WM+8*h+4+m}, v{WM+8*h+m}, s{sHi}""")
                for m in range(8):
                    e(f'v_dot2_f32_bf16 v{MA+m}, v{MP+m}, v{vS+h}, {"0" if h==0 else "v%d"%(MA+m)}')
            e(f'ds_write_b128 v{vMBw}, {vr(MA,4)}')
            if unp: e(unp.pop(0)); e(unp.pop(0))
            e(f'ds_write_b128 v{vMBw}, {vr(MA+4,4)} offset:16')
        def mod_read():
            if MPOS == 1: e('s_waitcnt lgkmcnt(0)\ns_barrier')
            for w in range(0, 4, 2):
                for i in range(3):
                    e(f'ds_read2st64_b32 {vr(MR+3*w+2*i,2)}, v{vMBr} offset0:{8*w+i} offset1:{8*w+8+i}')
            return self.nlg
        def mod_store(i_):
            e(f"""
            s_waitcnt {self.wlg(i_)}
            v_pk_add_f32 {vr(MR,2)}, {vr(MR,2)}, {vr(MR+6,2)}
            v_pk_add_f32 {vr(MR+2,2)}, {vr(MR+2,2)}, {vr(MR+8,2)}
            v_pk_add_f32 {vr(MR+4,2)}, {vr(MR+4,2)}, {vr(MR+10,2)}
            v_mov_b32 v{MR+15}, v2
            v_add_f32 v{MR+12}, v{MR}, v{MR+1}
            v_add_f32 v{MR+13}, v{MR+2}, v{MR+3}
            v_add_f32 v{MR+14}, v{MR+4}, v{MR+5}
            s_mov_b32 exec_hi, 0
            buffer_store_dwordx4 {vr(MR+12,4)}, v1, {SRD}, s{sT+2} offen sc1
            s_mov_b32 exec_hi, -1""")
            self.stamp('_modst')
            if PFA == 1: wd_pf()
            wd_pf2(1)
            touch(1)
            if self.opt('wde', 0):
                assert wslot[0] == 2 and self.opt('modfast', 1); wopen[0] = 0; wd_issue(self.opt('wde', 0))
            if WGA == 1: wg_issue(8)
        if MPOS == 0: mod_partial()
        e(f'v_add_u32 v{t+1}, {L_BD-L_U-512}, v{vUw}\nds_write_b32 v{t+1}, v{vBv}')
        if WGA == 7: wg_issue(8)
        e(f's_waitcnt {self.wvm(id_ep)} lgkmcnt(1)\ns_barrier')
        self.stamp('_bar0')
        ST = 84
        id_st = self.stats_read(ST, vSBr)
        if MPOS == 0: id_mr = mod_read()
        if WGA == 8: wg_issue(8)
        while unp: e(unp.pop(0))
        e(f'v_mul_lo_u32 v{t}, v2, s{sTag}\ns_mov_b32 s{sTag}, 0x15554000\nv_add_u32 v{t}, 1013904223, v{t}\nv_bitop3_b32 v2, v{t}, v2, s{sTag} bitop3:0x72')
        vTP = 26
        e(f"""v_alignbit_b32 v{vTg}, v2, v2, v{vTg}
        v_alignbit_b32 v{vTg+1}, v2, v2, v{vTg+1}
        v_and_b32 v{vTg}, s{sTm}, v{vTg}
        v_and_b32 v{vTg+1}, s{sTm}, v{vTg+1}""")
        e(f's_waitcnt {self.wlg(id_st)}')
        self.stats_finish(ST, vInv, 2.0**-100)
        for i in range(4):
            for r in range(2):
                x = XF+8*r+2*i
                e(f'v_pk_fma_f32 {vr(x,2)}, {vr(x,2)}, {vr(ST+2*r,2)}, {vr(ST+2*r,2)} op_sel:[0,0,1] op_sel_hi:[1,0,1]')
            for r in range(2):
                x = XF+8*r+2*i
                e(f'v_cvt_pk_bf16_f32 v{GR+2*i+r}, v{x}, v{x+1}')
            for r in range(2):
                e(f'v_bfi_b32 v{GR+2*i+r}, s{sTm}, v{vTg+r}, v{GR+2*i+r}')
            if i & 1: e(f'buffer_store_dwordx4 {vr(GR+2*i-2,4)}, v1, {SRD}, s{sT+1} offen offset:{512*(i-1)} sc1')
        self.stamp('e1_stored')
        if WGA == 6: wg_issue(8)
        if MPOS == 1: mod_partial()
        if MPOS == 0: mod_store(id_mr)
        e(f's_waitcnt {self.wvm(id_ab)}\nv_mul_f32 v68, v{vDt}, v{AB}\nv_mov_b32 v{vTP}, v{vTg}\nv_mov_b32 v{vTP+1}, v{vTg+1}')
        wst = [0]
        def wjob_ops(OB=20, nb=2):
            out = []
            for c in range(4):
                O = OB + 4*(c % nb)
                out += [f'v_perm_b32 v{O+m}, v{WG+2*(2*m+1)+(c>>1)}, v{WG+2*(2*m)+(c>>1)}, s{sHi if c&1 else sLo}' for m in range(4)]
                out += [f'v_add_u32 v{O+m}, 0x20002000, v{O+m}' for m in range(2)]
                out.append(f'buffer_store_dwordx4 {vr(O,4)}, v{vWgS}, {SRD}, s{sWs} offen sc1' + (f'\ns_add_u32 s{sWs}, s{sWs}, 32768' if c < 3 else ''))
            return out
        WJN = self.opt('wjn', -1)
        self.c("---- S4 kernel of this workgroup's 2 channels: z = exp(dt*A) per state, powers z^(8r) and C*dB*z^e by complex products,\nK[8r+e] = Re(sum over states) on the matrix unit; lags are the reference's bf16-rounded lags; Dskip enters as the lag-0 tap")
        al, be = 68, 69
        Z1, Z8, Z256, Wc = 70, 72, 74, 76
        q = 78
        e(f"""
        v_mul_f32 v{be}, v{vDt}, v{AB+1}
        v_mul_f32 v{AB+2}, v{vDt}, v{AB+2}
        v_mul_f32 v{AB+3}, v{vDt}, v{AB+3}
        v_mul_f32 v{q}, {fbits(1.4426950408889634)}, v{al}
        v_mul_f32 v{q+1}, 0.15915494, v{be}
        v_mul_f32 v{Wc}, v{AB+4}, v{AB+2}
        v_mul_f32 v{Wc+1}, v{AB+4}, v{AB+3}
        v_mul_f32 v{q+3}, {fbits(8.0)}, v{q}
        v_mul_f32 v{q+4}, {fbits(8.0)}, v{q+1}
        v_mul_f32 v{q+6}, {fbits(256.0)}, v{q}
        v_mul_f32 v{q+7}, {fbits(256.0)}, v{q+1}
        v_fma_f32 v{Wc}, -v{AB+5}, v{AB+3}, v{Wc}
        v_fma_f32 v{Wc+1}, -v{AB+5}, v{AB+2}, -v{Wc+1}
        """)
        MF = self.opt('modfast', 1)
        if MPOS == 1 and MF: id_mr = mod_read()
        for n_ in range(3): e(f'v_exp_f32 v{q+3*n_}, v{q+3*n_}\nv_fract_f32 v{q+3*n_+1}, v{q+3*n_+1}')
        for n_ in range(3): e(f'v_sin_f32 v{q+3*n_+2}, v{q+3*n_+1}\nv_cos_f32 v{q+3*n_+1}, v{q+3*n_+1}')
        if MPOS == 1 and MF: mod_store(id_mr)
        e(f'v_and_b32 v87, 127, v0\nv_cmp_eq_u32 vcc, 0, v87')
        for n_, (Z, conj) in enumerate([(Z1,True),(Z8,False),(Z256,True)]):
            e(f'v_mul_f32 v{Z}, v{q+3*n_}, v{q+3*n_+1}\nv_mul_f32 v{Z+1}, {"-" if conj else ""}v{q+3*n_}, v{q+3*n_+2}')
        e(f'v_readfirstlane_b32 s{sT}, v{vRW}')
        if MPOS == 1 and not MF: id_mr = mod_read()
        e(f's_mov_b32 m0, s{sT}'); self.m0 = None
        def put(src, row, pk):
            return [f'v_cvt_pk_bf16_f32 v{pk}, v{src}, v{src+1}', f'ds_write_addtid_b32 v{pk} offset:{row*RST}' if self.opt('addtid', 1) else f'ds_write_b32 v{vRW}, v{pk} offset:{row*RST}']
        Z16 = 78
        R0 = [[f'v_mov_b32 v88, 0x3f80', f'ds_write_b32 v{vRW}, v88'], self.cmul(Z16, Z8, Z8) + put(Z16, 2, 88)]
        R1 = [put(Z8, 1, 84), []]
        cur = [Z16, Z8]; bufs = [[80, 82], [90, 92]]
        for rho in range(3, 32):
            par = rho & 1
            d = bufs[par][(rho >> 1) & 1]
            (R1 if par else R0).append(self.cmul(d, cur[par], Z16) + put(d, rho, 84 if par else 88)); cur[par] = d
        Cq = [put(Wc, 32, 89)]
        cr = {0: Wc}
        reg = {1:110, 2:94, 3:110, 4:96, 5:110, 6:98, 7:110, 8:100}
        for ee in range(1, 9):
            Cq.append(self.cmul(reg[ee], cr[ee-1], Z1) + (put(reg[ee], 32+ee, 89) if ee < 8 else [])); cr[ee] = reg[ee]
        chain = [(264,8,44,102),(520,264,46,104),(776,520,48,102),(1032,776,49,104),(1288,1032,50,102),(1544,1288,51,104),(1800,1544,52,102)]
        for ee, src, row, d in chain:
            Cq.append(self.cmul(d, cr[src], Z256) + put(d, row, 89)); cr[ee] = d
        side = [(260,4,42,106),(516,260,45,108),(772,516,47,106)]
        for ee, src, row, d in side:
            R0.append(self.cmul(d, cr[src], Z256) + put(d, row, 88)); cr[ee] = d
        R1.append(self.cmul(90, cr[0], Z256) + put(90, 40, 84))
        R1.append(self.cmul(92, cr[2], Z256) + put(92, 41, 84))
        Cq.append(self.cmul(110, cr[6], Z256) + put(110, 43, 89))
        KD = 12
        Cq.append([f'v_mov_b32 v{KD+1}, s{sDsk}', f'v_mov_b32 v{KD+2}, 0', f'v_cndmask_b32 v{KD}, 0, v{KD+1}, vcc', f'v_mov_b32 v{KD+1}, 0'])
        Cq.append([f'v_mov_b32 v{KD+3}, 0', f'v_mul_f32 v{vBv}, {fbits(2.0**36)}, v{vOne}', f'v_max_f32 v{vBv}, {fbits(2.0**-64)}, v{vBv}'])
        for n_ in range(max(len(R0), len(R1), len(Cq))):
            st = [a_[n_] if n_ < len(a_) else [] for a_ in (R0, R1, Cq)]
            for j in range(4):
                for a_ in st:
                    if j < len(a_): e(a_[j])
            if n_ == 1 and MPOS == 1 and not MF: mod_store(id_mr)
            if WJN <= -2 and n_ == -WJN-1:
                e(f's_waitcnt {self.wvm(idw[0])}')
                for x in wjob_ops(128): wst[0] = e(x)
        self.stamp('kgen1')
        EG = 68
        e1m = '\n'.join(f'buffer_load_dwordx4 {vr(EG+16+4*i,4)}, v{vEM}, {SRD}, s{sE1+4+i} offen sc1' for i in range(2))
        e1x = '\n'.join(f'buffer_load_dwordx2 {vr(EG+2*i,2)}, v{vEX}, {SRD}, s{sE1+i} offen sc1' for i in range(4))
        e1_loads = e1x + '\n' + e1m
        E1AT = self.opt('e1at', 1); E1M = self.opt('e1m', 2); ide = [0]
        def e1_issue(k_):
            if E1AT == k_: ide[0] = e(e1x)
            if max(E1M, E1AT) == k_: ide[0] = e(e1m)
        e('s_waitcnt lgkmcnt(0)')
        if E1AT == 0:
            while lateE: e(lateE.pop(0))
        e1_issue(0)
        e('s_barrier')
        self.stamp('_kbar1')
        KF = 160
        kf_id = []
        for kk in range(8):
            e(f"""ds_read_b128 {vr(KF+12*kk,4)}, v{vKa} offset:{64*kk}
            ds_read_b128 {vr(KF+12*kk+4,4)}, v{vKb0} offset:{32*RST+64*kk}
            ds_read_b128 {vr(KF+12*kk+8,4)}, v{vKb1} offset:{44*RST+64*kk}""")
            kf_id.append(self.nlg)
            for _ in range(4 if kk < 4 else 99):
                if lateE: e(lateE.pop(0))
            if kk == 4:
                e1_issue(1)
        for kk in range(8):
            e(f's_waitcnt {self.wlg(kf_id[kk])}')
            for cb in range(2):
                e(f'v_mfma_f32_16x16x32_bf16 {vr(KD+4*cb,4)}, {vr(KF+12*kk,4)}, {vr(KF+12*kk+4+4*cb,4)}, {"0" if kk==0 and cb==1 else vr(KD+4*cb,4)}')
                for _ in range(2 - cb):
                    if lateK: e(lateK.pop(0))
        while lateK: e(lateK.pop(0))
        e1_issue(2)
        if PFA == 2: wd_pf(35)
        wd_pf2(2)
        touch(2)
        if self.opt('wde2', 0):
            assert wslot[0] == 2; wopen[0] = 0; wd_issue(self.opt('wde2', 0))
        if WGA == 2: wg_issue(8)
        AN = 128; AX = 160; T2 = 192; T3 = 204; BND = 196; SF2 = 208; SF3 = 232; SD = 240; US = 72
        e(f"""
        ds_read2_b32 {vr(BND,2)}, v{vBd} offset0:6 offset1:4
        ds_read2_b32 {vr(BND+2,2)}, v{vBd} offset0:2 offset1:0
        ds_read2_b32 {vr(BND+4,2)}, v{vBd} offset0:70 offset1:68
        ds_read2_b32 {vr(BND+6,2)}, v{vBd} offset0:66 offset1:64
        ds_read2_b32 {vr(BND+8,2)}, v{vBd2} offset0:134 offset1:132
        ds_read2_b32 {vr(BND+10,2)}, v{vBd2} offset0:130 offset1:128""")
        for cb in range(2):
            for j in range(2):
                e(f'v_cvt_pk_bf16_f32 v{KD+8+2*cb+j}, v{KD+4*cb+2*j}, v{KD+4*cb+2*j+1}')
        def scat(cb, j):
            va = (vKw0, vKw1)[cb]; off = 32*j if cb == 0 else (j&1)*928 + (j>>1)*4
            op = 'ds_write_b16_d16_hi' if j & 1 else 'ds_write_b16'
            e(f'{op} v{va}, v{KD+8+2*cb+(j>>1)} offset:{off}\n{op} v{va}, v{KD+8+2*cb+(j>>1)} offset:{off+6}')
        for j in range(4): scat(0, j)
        scat(1, 3)
        e('s_mov_b32 exec_lo, 0x00ff00ff\ns_mov_b32 exec_hi, 0x00ff00ff')
        for j in range(3): scat(1, j)
        e('s_mov_b64 exec, -1')
        e1_issue(3); id_e1 = ide[0]
        self.stamp('kgen2')
        self.c('---- Toeplitz operands of K, gate/up re-layout (k-contiguous fragments), arrival of xhat / modulation, u = ga*(xhat*(1+ca)+sa)')
        def rd2(d, va, o): return [f'ds_read2_b32 {vr(d,2)}, v{va} offset0:{o+6} offset1:{o+4}', f'ds_read2_b32 {vr(d+2,2)}, v{va} offset0:{o+2} offset1:{o}']
        def rq2(d, o0, o1): return [f'ds_read2_b32 {ar(d,2)}, v{vQ} offset0:{o0} offset1:{o0-2}', f'ds_read2_b32 {ar(d+2,2)}, v{vQ} offset0:{o1} offset1:{o1-2}']
        vPA1 = 55
        reads = {}
        for be_ in range(6): reads[('u', be_)] = (US+4*be_, [f'ds_read_b128 {vr(US+4*be_,4)}, v{vUS} offset:{512*be_}'])
        for jq in range(4):
            for J in range(2): reads[('a', jq, J)] = (AN+8*jq+4*J, rd2(AN+8*jq+4*J, vPA1 if J else vPA, 32*jq))
        reads[('x', 16)] = (AX, rd2(AX, vPX, 0)); reads[('x', 32)] = (AX+4, rd2(AX+4, vPX, 48))
        for d_ in (2,3,4): reads[('t2', d_)] = (T2+4*(d_-2), rq2(T2+4*(d_-2), 16*d_-28, 64+16*d_-28))
        for d_ in (4,5,6,7): reads[('t3', d_)] = (T3+4*(d_-4), rq2(T3+4*(d_-4), 128+16*d_-44, 128+16*d_-60))
        pre = set(); wjs = []
        e(f'v_add_u32 v{vPA1}, 1024, v{vPA}')
        if self.opt('kpre', 1):
            e('s_waitcnt lgkmcnt(0)\ns_barrier')
            for o in reads:
                if o[0] != 'u':
                    for x in reads[o][1]: e(x)
                    pre.add(o)
        if WJN == -1 and self.opt('wjpre', 4):
            e(f's_waitcnt {self.wvm(idw[0])}')
            for x in wjob_ops(168 if self.opt('wjpre', 4) < 4 else 216, 4):
                if x.startswith('buffer_') and self.opt('wjpre', 4) != 3: wjs.append(x)
                else: wst[0] = e(x)
        XC = EG+8
        e(f's_waitcnt {self.wvm(id_e1)}\nL_e1chk:')
        for i in range(8): e(f'v_xor_b32 v{XC+i}, v{EG+i}, v{vTP+(i&1)}')
        e(f"""
        v_cmp_ne_u32 {sp(sBad)}, v{EG+19}, v2
        v_or3_b32 v92, v{XC}, v{XC+1}, v{XC+2}
        v_or3_b32 v93, v{XC+3}, v{XC+4}, v{XC+5}
        v_cmp_ne_u32 vcc, v{EG+23}, v2
        v_or3_b32 v92, v92, v{XC+6}, v{XC+7}
        s_or_b64 {sp(sBad)}, {sp(sBad)}, vcc
        v_bitop3_b32 v92, v92, v93, s{sTm} bitop3:0xa8
        v_cmp_ne_u32 vcc, 0, v92
        s_or_b64 {sp(sBad)}, {sp(sBad)}, vcc
        s_cbranch_scc1 L_e1retry""")
        self.tail.append(f"""L_e1retry:
        s_sub_u32 s{sCnt}, s{sCnt}, 1
        s_cbranch_scc1 L_end
        s_wqm_b64 exec, {sp(sBad)}
        {e1_loads}
        s_mov_b64 exec, -1
        s_waitcnt vmcnt(0)
        s_branch L_e1chk""")
        self.stamp('e1_ok')
        if PFA == 3: wd_pf(35)
        wd_pf2(3)
        touch(3)
        if self.opt('wjpre', 4) == 2:
            while wjs: wst[0] = e(wjs.pop(0))
        if WGA == 3: wg_issue(8)
        g0 = 28; HF = 96
        e(f"""
        v_add_f32 v{g0}, v{EG+16}, v{EG+20}
        v_add_f32 v{g0+1}, v{EG+17}, v{EG+21}
        v_add_f32 v{g0+2}, v{EG+18}, v{EG+22}
        v_mov_b32 v{g0+3}, 0""")
        unp = []
        for i in range(4):
            unp += [f'v_lshlrev_b32 v{HF+4*i}, 16, v{XC+2*i}', f'v_lshlrev_b32 v{HF+4*i+1}, 16, v{XC+2*i+1}',
                    f'v_and_b32 v{HF+4*i+2}, s{sMask}, v{XC+2*i}', f'v_and_b32 v{HF+4*i+3}, s{sMask}, v{XC+2*i+1}']
        self.reduce4(g0, g0+1, g0+2, g0+3, unp)
        unp = self.rest
        e(f"""
        v_cvt_pk_bf16_f32 v{g0}, v{g0}, v{g0}
        v_and_b32 v{g0}, s{sMask}, v{g0}
        v_add_f32 v{g0+1}, v{g0}, v{vOne}
        v_readlane_b32 s{sM+4}, v{g0}, 16
        v_readlane_b32 s{sM+5}, v{g0}, 17
        v_cvt_pk_bf16_f32 v{g0}, v{g0+1}, v{g0+1}
        v_and_b32 v{g0}, s{sMask}, v{g0}
        v_mul_f32 v{g0+3}, v{vBv}, v{g0}
        v_mul_f32 v{g0+1}, s{sM+4}, v{g0+3}
        v_mul_f32 v{g0+2}, s{sM+5}, v{g0+3}
        v_readlane_b32 s{sM}, v{g0+1}, 32
        v_readlane_b32 s{sM+1}, v{g0+1}, 0
        v_readlane_b32 s{sM+2}, v{g0+2}, 33
        v_readlane_b32 s{sM+3}, v{g0+2}, 1""")
        for x in unp: e(x)
        for i in range(4):
            for ch in range(2):
                h = HF+4*i+2*ch
                e(f'v_pk_fma_f32 {vr(h,2)}, {vr(h,2)}, {sp(sM+2*ch)}, {sp(sM+2*ch)} op_sel:[0,0,1] op_sel_hi:[1,0,1]')
            for ch in range(2):
                h = HF+4*i+2*ch
                e(f'v_cvt_pk_bf16_f32 v{g0+2+ch}, v{h}, v{h+1}\nds_write_b32 v{vUw}, v{g0+2+ch} offset:{ch*USZ+1024*i}')
        while wjs and self.opt('wjpre', 4) < 4: wst[0] = e(wjs.pop(0))
        if WJN == -1 and not self.opt('wjpre', 4):
            e(f's_waitcnt {self.wvm(idw[0])}')
            for x in wjob_ops(): wst[0] = e(x)
        e('s_waitcnt lgkmcnt(0)\ns_barrier')
        self.stamp('u_ready')
        wopen[0] = 2
        if PFA == 4: wd_pf(35)
        wd_pf2(4)
        self.c('---- causal convolution: lags 0..514 at full resolution, the piecewise-constant lags beyond on window sums of u; z = ga*y to the row owners')
        F1P = self.opt('f1p', 0); vP1 = 54; vPolled = 55; rt = 70
        f1_load = f'buffer_load_dword v{vPolled}, v{vP1}, {SRD}, 0 offen sc1'
        def roles():
            e(f"""
            s_bfe_u32 s1, s{sL}, 0x30002
            s_lshr_b32 s0, s{sL}, 7
            s_lshl3_add_u32 s{sMt}, s0, s1
            s_bfe_u32 s0, s{sL}, {0x10005 if MAP2 == 84 else 0x20005}
            s_and_b32 s1, s{sMt}, {15 if MAP2 == 84 else 14}
            s_lshl1_add_u32 s{sTb}, s1, s0
            s_bfe_u32 s0, s{sL}, 0x20005
            s_and_b32 s1, s{sL}, 3
            s_lshl2_add_u32 s{sNt}, s0, s1
            """)
            if MAP2 in (44, 45): e(f"""
            s_lshr_b32 s0, s{sL}, 6
            s_bfe_u32 s1, s{sL}, 0x20003
            s_lshl2_add_u32 s{sMt}, s0, s1
            s_bfe_u32 s0, s{sL}, 0x10005
            s_and_b32 s1, s{sL}, 7
            s_lshl3_add_u32 s{sNt}, s0, s1
            s_bfe_u32 s0, s{sL}, {0x10005 if MAP2 == 44 else 0x10002}
            s_lshl1_add_u32 s{sTb}, s{sMt}, s0""")
            e(f"""
            s_mul_i32 s0, s{sNt}, 7
            s_lshr_b32 s0, s0, 2
            v_bfe_u32 v{rt}, v0, 3, 3
            v_min_u32 v{rt}, 2, v{rt}
            v_add_u32 v{rt}, s0, v{rt}
            v_min_u32 v{rt}, 27, v{rt}
            v_and_b32 v{rt+1}, 7, v0
            v_lshl_add_u32 v{rt}, v{rt}, 5, v{rt+1}
            s_lshl_b32 s0, s{sW}, 10
            s_add_u32 s0, s0, {F1}
            v_lshl_add_u32 v{vP1}, v{rt}, 7, s0""")
            e(f"""
            s_mul_i32 s{sDmaG}, s{sNt}, {7*32768}
            s_add_u32 s{sDmaG}, s{sDmaG}, s{sDmaL}
            s_add_u32 s{sDmaG}, s{sDmaG}, {WGU}""")
        assert pre
        ACC = 224; ZG = 12
        BR = [96,100,104,108,116,120,168,172,176,180,184,188]
        F1N = self.opt('f1n', 200)
        def f1_publish(): e(f's_waitcnt {self.wvm(wst[0])}\n' + self.flag_text(vF, sF1o))
        for m in range(8):
            for jq in range(4):
                r_ = BR[(4*m+jq) % len(BR)]
                reads[('b', m, jq)] = (r_, [f'ds_read_b128 {vr(r_,4)}, v{vUB} offset:{512*m+192-64*jq}'])
        ops = []
        S = lambda nm, be_: ops.append(('S', (nm, be_), ('u', be_), ('bnd', nm)))
        def near(m, Js):
            for jq in range(4):
                for J in Js: ops.append(('M', m+J, ('a', jq, J), ('b', m, jq)))
        def far(cb):
            ops.append(('M', cb, ('x', 16), ('u', cb-2)))
            if cb >= 4: ops.append(('M', cb, ('x', 32), ('u', cb-4)))
            for d_ in (4,3,2):
                if cb-d_ >= 0: ops.append(('M', cb, ('s2', cb-d_), ('t2', d_)))
            if cb >= 4: ops.append(('M', cb, ('s3', 0), ('t3', cb)))
            if cb >= 6: ops.append(('M', cb, ('s3', 1), ('t3', cb-2)))
        S('a',0); S('b',0); S('a',1); S('b',1)
        near(0,(0,1)); near(1,(0,1)); far(2); S('c',0); S('c',1); near(2,(0,1)); S('a',2); S('b',2); far(3); near(3,(0,))
        S('a',3); S('b',3); near(3,(1,)); far(4); near(4,(0,1)); far(5); near(5,(0,))
        S('a',4); S('b',4); S('c',2); S('c',3); near(5,(1,)); S('a',5); S('b',5); near(6,(0,1)); far(6); near(7,(0,)); far(7)
        assert len(ops) == 107
        def opreg(o):
            if o[0] == 'bnd': return BND + 4*'abc'.index(o[1])
            if o[0] == 's2': return SF2 + 4*o[1]
            if o[0] == 's3': return SF3 + 4*o[1]
            return reads[o][0]
        firstuse = {}; lastuse = {}; accdone = {}
        for n, (kd, dst, oa, ob) in enumerate(ops):
            for o in (oa, ob): firstuse.setdefault(o, n); lastuse[o] = n
            if kd == 'M': accdone[dst] = n
        rq = []
        for o in sorted(reads, key=lambda o: firstuse[o]):
            early = -1
            if o[0] == 'b' and 4*o[1]+o[2] >= len(BR):
                idx = 4*o[1]+o[2]-len(BR); early = lastuse[('b', idx//4, idx%4)] + 1
            if o not in pre:
                for x in reads[o][1]: rq.append((early, o, x))
        rid = {o: 0 for o in pre}
        def popread():
            _, o, x = rq.pop(0); e(x)
            if not any(o2 == o for _, o2, _ in rq): rid[o] = self.nlg
        for _ in range(self.opt('cpre', 8 if pre else 14)): popread()
        if F1P < 0: roles()
        tq = 69
        fill = [f's_bitcmp1_b32 s{sL}, 1\ns_cselect_b32 s{sT}, 1.0, {fbits(2.0**-64)}', f'v_mul_f32 v{g0+1}, s{sT}, v{g0}']
        fill += [f'v_readlane_b32 s{sM+6+n_}, v{g0+(n_<4)}, {ln}' for n_, ln in list(enumerate([34,35,2,3,18,19]))[::-1]]
        TZ = 16; XE = 52; vYr1 = 64
        fill += f"""v_and_b32 v{tq}, 3, v0
        s_pack_hh_b32_b16 s{sT}, s{sM+6}, s{sM+7}
        s_pack_hh_b32_b16 s{sT+1}, s{sM+8}, s{sM+9}
        s_pack_hh_b32_b16 s{sT+2}, s{sM+10}, s{sM+11}
        v_lshlrev_b32 v{tq}, 2, v{tq}
        s_mov_b32 s{sTm}, {TAGZ}
        v_alignbit_b32 v{tq}, v2, v2, v{tq}
        v_xor_b32 v{vYr1}, 32, v{vYr}
        v_add_u32 v{vTw}, 65536, v{vTr}
        v_and_b32 v{TZ}, s{sTm}, v{tq}
        v_alignbit_b32 v{TZ+1}, v{tq}, v{tq}, 1
        v_alignbit_b32 v{TZ+2}, v{tq}, v{tq}, 2
        v_alignbit_b32 v{TZ+3}, v{tq}, v{tq}, 3
        v_and_b32 v{TZ+1}, s{sTm}, v{TZ+1}
        v_and_b32 v{TZ+2}, s{sTm}, v{TZ+2}
        v_and_b32 v{TZ+3}, s{sTm}, v{TZ+3}
        v_mov_b32 v192, s{sT}
        v_mov_b32 v193, s{sT+1}
        v_mov_b32 v194, s{sT+2}
        v_mov_b32 v195, v2""".split('\n')
        stages = {'a': [(0,),(1,)], 'n': [(0,1)]}[self.opt('stages', 'a')]
        wr_id = {}; cq = []; sq = []; sdone = {}; nsd = 0; stage = 0; done_w = 0; waited = 0
        zst = {}
        def stage_ops(sg, final):
            out = []
            regs = {(k_, j): ([28, SD][j] if not final else 72+16*n_+8*j) for n_, k_ in enumerate(sg) for j in range(2)}
            for k_ in sg:
                for j in range(2):
                    for pw in range(4): out.append(('rd', (k_,j), f'ds_read_b64 {vr(regs[(k_,j)]+2*pw,2)}, v{vYr1 if j else vYr} offset:{8192*pw+4096*k_}'))
            for k_ in sg:
                for j in range(2):
                    y = regs[(k_,j)]; i = (k_,j)
                    out.append(('wait', i, None))
                    if final:
                        out += [('v', i, f'v_pk_add_f32 {vr(y+4*ch,2)}, {vr(y+4*ch,2)}, {vr(y+4*ch+2,2)}') for ch in range(2)]
                    else:
                        out += [('v', i, f'v_add_f32 v{y+4*ch+r}, v{y+4*ch+r}, v{y+4*ch+2+r}') for r in range(2) for ch in range(2)]
                    out += [('v', i, f'v_cvt_pk_bf16_f32 v{ZG+2*j+r}, v{y+r}, v{y+4+r}') for r in range(2)]
                    out += [('v', i, f'v_bfi_b32 v{ZG+2*j+r}, s{sTm}, v{TZ+2*j+r}, v{ZG+2*j+r}') for r in range(2)]
                x = f'buffer_store_dwordx4 {vr(ZG,4)}, v1, {SRD}, s{sZs+k_} offen sc1'
                if k_ == 0: x += f'\ns_mov_b64 exec, 1\nbuffer_store_dwordx4 v[192:195], v1, {SRD}, s{sZs+2} offen sc1\ns_mov_b64 exec, -1'
                out.append(('st', k_, x))
            return out
        y_id = {}; ride = [0]; pub = []
        def popstage():
            nonlocal waited
            kd, i, x = sq.pop(0)
            if kd == 'wait':
                e(f's_waitcnt {self.wlg(y_id[i])}'); waited = max(waited, y_id[i])
            else:
                r_ = e(x)
                if kd == 'rd': y_id[i] = self.nlg
                if kd == 'st':
                    zst[i] = r_
                    if not sq:
                        ride[0] = self.opt('ride', 0)
                        pub.append(1)
                        if F1N == 199 + len(pub): f1_publish()
        seen = set(); hold = 0; accpos = {}; wj = []
        for n, (kd, dst, oa, ob) in enumerate(ops):
            if n in (1, 27, 54, 81): self.stamp(f'_c{n}')
            for o in (oa, ob):
                while o in reads and o not in rid: popread()
                if o[0] in ('s2', 's3'):
                    while any(tg == o for _, tg, _ in cq): e(cq.pop(0)[2])
            need = max(rid.get(oa, 0), rid.get(ob, 0))
            if need > waited:
                e(f's_waitcnt {self.wlg(need)}'); waited = max(need, self.nlg - 14)
            if kd == 'S':
                d = SD + 4*(nsd % 4); nsd += 1
                while any(f'v{d},' in x or x.endswith(f'v{d+3}') for _, _, x in cq): e(cq.pop(0)[2])
                while any(k_ != 'st' for k_, _, _ in sq): popstage()
                e(f'v_mfma_f32_16x16x32_bf16 {vr(d,4)}, {vr(opreg(oa),4)}, {vr(opreg(ob),4)}, 0')
                nm, be_ = dst
                tg = ('s2', be_) if nm != 'c' else ('s3', be_ >> 1)
                o_ = opreg(tg) + (2*'ab'.index(nm) if nm != 'c' else 2*(be_ & 1))
                cq += [(len(p.text), tg, f'v_cvt_pk_bf16_f32 v{o_+j}, v{d+2*j}, v{d+2*j+1}') for j in range(2)]
            else:
                c_ = ar(ACC+4*dst,4) if dst in seen else '0'; seen.add(dst)
                e(f'v_mfma_f32_16x16x32_bf16 {ar(ACC+4*dst,4)}, {vr(opreg(oa),4)}, {(ar if ob[0][0] == "t" else vr)(opreg(ob),4)}, {c_}')
                if accdone[dst] == n: accpos[dst] = len(p.text)
            budget = 2
            if wjs and n >= self.opt('wsn', 4) + (4-len(wjs))*self.opt('wss', 3):
                assert n < 30; wst[0] = e(wjs.pop(0)); budget = 1
            elif n == F1N: f1_publish(); budget = 0
            elif n == -F1P and F1P < 0: id_f1 = e(f1_load); budget = 1
            elif n % self.opt('wd_pace', 6) == 1 and self.opt('wd_first', 0) <= n <= self.opt('wd_last', 100) and wd_can(): wd_issue(1); budget = 1
            elif ride[0] > 0 and n % 2 == 0 and wd_can(): wd_issue(1); budget = 1; ride[0] -= 1
            if n == WJN: e(f's_waitcnt {self.wvm(idw[0])}'); wj = wjob_ops()
            if stage < len(stages)-1 and done_w > 4*stages[stage][-1]+3 and n >= wr_n + 3 and not sq:
                while fill: e(fill.pop(0))
                while cq: e(cq.pop(0)[2])
                e(f's_waitcnt {self.wlg(wr_id[done_w-1])}\ns_barrier'); waited = max(waited, wr_id[done_w-1])
                sq = stage_ops(stages[stage], False); stage += 1; budget = 0
            while budget > 0:
                budget -= 1
                if rq and rq[0][0] <= n and firstuse[rq[0][1]] <= n + self.opt('cla', 20): popread()
                elif cq and len(p.text) - cq[0][0] >= 8: e(cq.pop(0)[2])
                elif done_w in accpos and len(p.text) - accpos[done_w] >= 8:
                    e(f'ds_write_b128 v{vYw}, {ar(ACC+4*done_w,4)} offset:{1024*done_w}'); wr_id[done_w] = self.nlg; wr_n = n; done_w += 1
                elif sq and not (sq[0][0] == 'wait' and hold > n):
                    if sq[0][0] == 'rd': hold = n + 4
                    popstage()
                elif fill: e(fill.pop(0))
                elif wj: wst[0] = e(wj.pop(0))
                elif rq and rq[0][0] <= n: popread()
                elif self.opt('trconv', 0) and tr_ready(8): tr_pop()
        assert not rq and not cq and not wj and stage == len(stages)-1
        while sq: popstage()
        for x in fill: e(x)
        self.stamp('conv')
        while done_w < 8:
            e(f'ds_write_b128 v{vYw}, {ar(ACC+4*done_w,4)} offset:{1024*done_w}'); done_w += 1
        e('s_waitcnt lgkmcnt(0)\ns_barrier')
        sq = stage_ops(stages[-1], True)
        while sq: popstage()
        id_z = self.nvm
        if F1N == 107: f1_publish()
        self.stamp('z_stored')
        if F1P >= 0: roles()
        if F1P == 0: id_f1 = e(f1_load)
        dq = [x for i in range(5) for x in self.dma_tile(i,i)]
        f1ok = [False]; maxt = [2]
        def bg_issue(n):
            for _ in range(n):
                if wd_can() and wdq[0][0] <= 2: wd_one()
                elif f1ok[0] and dq[0][0] <= 2: tile_one(dq)
                else: wd_issue(1)
        def bg(name, nT, nL):
            v = self.opt(name, None)
            if v is not None: nT, nL = v // 100, v % 100
            done = 0
            for i in range(nT):
                k_ = (nL*(i+1) + nT-1)//nT - done; bg_issue(k_); done += k_
                tr_do(1)
            bg_issue(nL - done)
        if F1P < 0: self.check(f1_load, [vPolled], id_f1); f1ok[0] = True
        bg('b_zack', 4, 9)
        self.c("---- x2 = x + z, LN2 and modulation of this workgroup's 8 rows -> h2 fragments; weights stream into LDS / AGPRs in the waits")
        XF = 36
        for r in range(2):
            for i in range(4):
                for x in self.unpack(XF+8*r+2*i, XR+4*r+i): e(x)
        TH = 66; TX = 14; vZ = 28; vH2 = 29; ZI = 72; vMsk = 30
        vP2 = 24; vXa = 25; vA2 = 26; vA4 = 27; vP3 = 23; vX2 = 22; vAc1 = 21
        c1 = -2*1.4426950408889634*0.7978845608028654; c2 = c1*0.044715
        gs = (-c2)**(1/3); sGk, sGs = 30, 31
        e(f'''
        v_and_b32 v{t}, 0xfc, v0
        v_and_b32 v{t+2}, 0x30, v1
        s_movk_i32 s{sT}, {HBLK}
        v_mad_u32_u24 v{vZ}, v{t}, s{sT}, v{t+2}
        s_lshr_b32 s{sT}, s{sL}, 1
        s_lshl_b32 s{sT}, s{sT}, 6
        s_add_u32 s{sT}, s{sT}, {ZY}
        s_add_u32 s{sT+1}, s{sT}, {HBLK}
        s_add_u32 s{sT+2}, s{sT}, {2*HBLK}
        s_add_u32 s{sT+3}, s{sT}, {3*HBLK}
        s_lshl_b32 s{sT+8}, s{sW}, 10
        s_add_u32 s{sT+8}, s{sT+8}, {MX}
        s_bitcmp1_b32 s{sL}, 0
        s_cselect_b32 s{sLo}, 0x04040000, 0
        s_add_u32 s{sHi}, s{sLo}, 0x03020c0c
        s_add_u32 s{sLo}, s{sLo}, 0x01000c0c
        s_mov_b32 s{sM}, {fbits(2.0**64)}
        v_lshrrev_b32 v{t}, 3, v0
        v_and_b32 v{t+1}, 0x70, v1
        v_lshl_add_u32 v{vH2}, v{t}, 10, v{t+1}
        s_lshr_b32 s{sT+4}, s{sL}, 2
        s_lshl_b32 s{sT+4}, s{sT+4}, 7
        s_and_b32 s{sT+5}, s{sL}, 3
        s_add_u32 s{sT+4}, s{sT+4}, s{sT+5}
        s_lshl_b32 s{sT+4}, s{sT+4}, 8
        s_add_u32 s{sT+4}, s{sT+4}, {H2}
        s_mov_b32 s{sT+5}, {X2}
        v_mov_b32 v{vMsk}, s{sMask}
        s_lshl2_add_u32 s0, s{sMt}, s{sW}
        s_lshl_b32 s{sXg}, s0, 15
        s_add_u32 s{sXg}, s{sXg}, {H2}
        s_lshl4_add_u32 s0, s0, s{sNt}
        s_mul_i32 s0, s0, {7*1024}
        s_add_u32 s{sActS}, s0, {ACT}
        s_add_u32 s{sActS+1}, s0, {ACT+4096}
        s_sub_u32 s{sF3o}, s{sF1o}, {F1-F3}
        s_lshl3_add_u32 s0, s{sTb}, s{sW}
        s_mul_i32 s0, s0, {28*1024}
        s_add_u32 s{sActG}, s0, {ACT}
        s_waitcnt {self.wvm(id_z)}''')
        self.stamp('_zack')
        if F1N == 108: f1_publish()
        z_loads = '\n'.join(f'buffer_load_dwordx4 {vr(ZI+4*i,4)}, v{vZ}, {SRD}, s{sT+i} offen sc1' for i in range(4))
        XG = 32
        z_loads += f'\nbuffer_load_dwordx4 {vr(XG,4)}, v1, {SRD}, s{sT+8} offen sc1'
        id_zl = e(z_loads)
        if F1P == 0:
            self.check(f1_load, [vPolled], id_f1); f1ok[0] = True
        elif F1P == 1: id_f1 = e(f1_load)
        bg('b_zld', 4, 0)
        bg('b_zld2', 0, 6)
        e(f'''
        v_lshrrev_b32 v{TH}, 3, v{t+1}
        v_alignbit_b32 v{TH}, v2, v2, v{TH}
        v_alignbit_b32 v{TH+1}, v{TH}, v{TH}, 1
        v_and_b32 v{TH}, s{sTm}, v{TH}
        v_and_b32 v{TH+1}, s{sTm}, v{TH+1}
        v_bfe_u32 v{t}, v0, 2, 3
        v_bfe_u32 v{t+3}, v0, 5, 1
        v_lshl_add_u32 v{t+2}, v{t+3}, 6, v{t+2}
        v_lshl_add_u32 v{vXa}, v{t}, 7, v{t+2}
        v_lshrrev_b32 v{TX}, 3, v{t+2}
        v_alignbit_b32 v{TX}, v2, v2, v{TX}
        v_alignbit_b32 v{TX+1}, v{TX}, v{TX}, 1
        v_and_b32 v{TX}, s{sTm}, v{TX}
        v_and_b32 v{TX+1}, s{sTm}, v{TX+1}
        v_add_u32 v{vA2}, 65536, v1
        v_add_u32 v{vA4}, 131072, v1
        v_add_u32 v{vAc1}, {112*1024}, v1
        v_mov_b32 v{vInv+1}, {fbits(1e-5/gs**2)}
        s_mov_b32 s{sGk}, {fbits(c1/gs)}
        s_mov_b32 s{sGs}, {fbits(gs*gs*2.0**64)}
        s_mov_b32 s{sM+1}, {fbits(gs)}
        v_bfe_u32 v{t}, v0, 3, 2
        v_lshl_add_u32 v{t}, v{t}, 1, v{t+3}
        v_lshl_add_u32 v{t}, v{t}, 10, v{t+1}
        s_lshl3_add_u32 s0, s{sTb}, s{sW}
        s_lshl_b32 s0, s0, 6
        s_add_u32 s0, s0, s{sDt}
        s_lshl_b32 s0, s0, 7
        v_add_u32 v{vX2}, s0, v{t}''')
        self.stamp('_zchk')
        ZC = 144
        e(f's_waitcnt {self.wvm(id_zl)}\nL_zchk:')
        for i in range(16): e(f'v_xor_b32 v{ZC+i}, v{ZI+i}, v{TZ+(i&3)}')
        e(f'v_cmp_ne_u32 {sp(sBad)}, v{XG+3}, v2')
        for i in range(5): e(f'v_or3_b32 v{160+i}, v{ZC+3*i}, v{ZC+3*i+1}, v{ZC+3*i+2}')
        e(f"""
        v_or3_b32 v160, v160, v161, v162
        v_or3_b32 v163, v163, v164, v{ZC+15}
        v_bitop3_b32 v160, v160, v163, s{sTm} bitop3:0xa8
        v_cmp_ne_u32 vcc, 0, v160
        s_or_b64 {sp(sBad)}, {sp(sBad)}, vcc
        s_cbranch_scc1 L_zretry""")
        self.tail.append(f"""L_zretry:
        s_sub_u32 s{sCnt}, s{sCnt}, 1
        s_cbranch_scc1 L_end
        s_wqm_b64 exec, {sp(sBad)}
        {z_loads}
        s_mov_b64 exec, -1
        s_waitcnt vmcnt(0)
        s_branch L_zchk""")
        self.stamp('z_ok')
        if F1P == 1: self.check(f1_load, [vPolled], id_f1); f1ok[0] = True
        elif F1P == 2: id_f1 = e(f1_load)
        nl2 = [self.opt('b_ln2', 10)]
        def ln2bg(n=1):
            for _ in range(n):
                if nl2[0] > 0: bg_issue(1); nl2[0] -= 1
        ZF = 88
        for i in range(4):
            ln2bg()
            for r in range(2):
                z = ZF+8*r+2*i
                e(f'v_perm_b32 v{z}, v{ZC+4*i+2+r}, v{ZC+4*i+r}, s{sLo}\nv_perm_b32 v{z+1}, v{ZC+4*i+2+r}, v{ZC+4*i+r}, s{sHi}')
            for r in range(2):
                z = ZF+8*r+2*i; x = XF+8*r+2*i
                e(f'v_pk_fma_f32 {vr(x,2)}, {vr(z,2)}, {sp(sM)}, {vr(x,2)} op_sel_hi:[1,0,1]')
            for r in range(2):
                x = XF+8*r+2*i
                e(f'v_cvt_pk_bf16_f32 v{XR+4*r+i}, v{x}, v{x+1}')
        unp = [x for r in range(2) for i in range(4) for x in self.unpack(XF+8*r+2*i, XR+4*r+i)]
        self.stats_partial(XR, t, vSBw, unp)
        unp = self.rest
        ln2bg(2)
        for x in unp: e(x)
        e('s_waitcnt lgkmcnt(0)\ns_barrier')
        wopen[0] = 3
        self.stamp('_ln2bar')
        ST = 128
        self.stats_read(ST, vSBr)
        GBV = 12
        for i in range(4):
            ln2bg()
            for kind in range(2):
                d = ZF+8*kind+2*i
                qp = f'quad_perm:[{i},{i},{i},{i}] row_mask:0xf bank_mask:0xf'
                e(f'v_cvt_f32_bf16_dpp v{d}, v{XG+kind} {qp}\nv_and_b32_dpp v{d+1}, v{XG+kind}, v{vMsk} {qp}')
        for i in range(4): e(f'v_pk_mul_f32 {vr(ZF+8+2*i,2)}, {vr(ZF+8+2*i,2)}, {sp(sM)} op_sel:[0,1] op_sel_hi:[1,1]')
        e('s_waitcnt lgkmcnt(0)')
        self.stats_finish(ST, vInv, pre=1/gs**2)
        HO = 104
        for r in range(2):
            for i in range(4):
                x = XF+8*r+2*i
                e(f'v_pk_fma_f32 {vr(x,2)}, {vr(x,2)}, {vr(ST+2*r,2)}, {vr(ST+2*r,2)} op_sel:[0,0,1] op_sel_hi:[1,0,1]')
            for i in range(4):
                x = XF+8*r+2*i
                e(f'v_pk_fma_f32 {vr(x,2)}, {vr(x,2)}, {vr(ZF+2*i,2)}, {vr(ZF+8+2*i,2)}')
            for i in range(4):
                x = XF+8*r+2*i
                e(f'v_cvt_pk_bf16_f32 v{HO+4*r+i}, v{x}, v{x+1}')
            for m in range(2): e(f'v_bfi_b32 v{HO+4*r+m}, s{sTm}, v{TH+m}, v{HO+4*r+m}')
            id_h = e(f'buffer_store_dwordx4 {vr(HO+4*r,4)}, v{vH2}, {SRD}, s{sT+4} offen offset:{128*r} sc1')
        self.stamp('h2_stored')
        e(f'v_mov_b32 v{GBV}, v{XG+2}')
        if F1P == 2: self.check(f1_load, [vPolled], id_f1); f1ok[0] = True
        SMP = self.opt('smp', 0)
        bg('b_hack', 0, 6 if SMP else 16)
        if not SMP:
            while dq[0][0] < 3: tile_one(dq)
        e(f's_waitcnt {self.wvm(id_h)}')
        self.stamp('_h2_ack')
        self.c('---- GEMM1: 128 rows x (112 gate + 112 up) columns, tanh-GELU gate under the MFMAs, act fragments handed over tile by tile')
        X = 128
        AC = [28, 44, 60, 76]
        WE = self.opt('we', 4); LA = self.opt('la', 6); NB = 7; WF = 92; assert LA < NB
        TA, TA1 = 20, 23; GT = 120; GO = 16; X2R = 4; vP4 = 24; vPo = 25; vPo4 = 3
        P1 = self.opt('p1', 25)
        if P1 == 25:
            seq = []
            for s in range(32):
                seq += [(0, s), (1, s)]
                if s & 1: seq.append((2, s >> 1))
            seq += [(2, s) for s in range(16, 32)]
        else:
            seq = [(tl, s) for s in range(32) for tl in range(P1)] + [(tl, s) for tl in range(P1,3) for s in range(32)]
        seq += [(tl, s) for tl in range(3,7) for s in range(32)]
        slot = {0:0,1:1,2:2,3:3,4:4,5:0,6:1}
        acc = {tl: AC[tl % 4] for tl in range(7)}
        w_id = {}
        def wread(n):
            tl, s = seq[n]; sl = slot[tl]
            va = {0:1,1:1,2:vA2,3:vA2,4:vA4}[sl]
            e(f'ds_read_b128 {vr(WF+4*(n%NB),4)}, v{va} offset:{(sl&1 if sl<4 else 0)*32768 + 1024*kperm(s)}'); w_id[n] = self.nlg
        kperm = lambda s: 8*(s & 3) + (s >> 2)
        sXb = sM
        for j in range(8): e(f's_add_u32 s{sXb+j}, s{sXg}, {4096*j}')
        sAb = [76, 77, 78, 79, 80, 81, 32, 33]
        x_id = []
        def xtext(s): return f'buffer_load_dwordx4 {vr(X+4*s,4)}, v{vXa}, {SRD}, s{sXb+(kperm(s)>>2)} offen offset:{1024*(kperm(s)&3)} sc1'
        def xload(): x_id.append(e(xtext(len(x_id))))
        def xcheck(s):
            Lc = p.label('xc'); Lr = p.label('xr'); Ld = p.label('xd'); r0 = X+4*s
            body = [f'v_xor_b32 v{r0+4*j+m}, v{r0+4*j+m}, v{TX+m}' for j in range(2) for m in range(2)]
            body += [f'v_or3_b32 v13, v{r0}, v{r0+1}, v{r0+4}', f'v_bitop3_b32 v13, v13, v{r0+5}, s{sTm} bitop3:0xa8', 'v_cmp_ne_u32 vcc, 0, v13']
            def branch():
                rest = '\n'.join(xtext(j) for j in range(s+2, len(x_id)))
                self.tail.append(f'{Lr}:\ns_sub_u32 s{sCnt}, s{sCnt}, 1\ns_cbranch_scc1 L_end\n{xtext(s)}\n{xtext(s+1)}\ns_waitcnt vmcnt(0)\n' + '\n'.join(body) +
                                 f'\ns_cmp_lg_u64 vcc, 0\ns_cbranch_scc1 {Lr}\n{rest}\ns_branch {Ld}')
                e(f's_cbranch_vccnz {Lr}\n{Ld}:')
                if self.nvm != x_id[-1]: self.tail[-1] = self.tail[-1].replace(f's_branch {Ld}', f's_waitcnt vmcnt(0)\ns_branch {Ld}')
            return body, branch
        XLA = self.opt('xla', 12 if SMP else 10)
        if SMP:
            for s in range(4): xload()
            bg('b_smp', 0, 10)
            while dq[0][0] < 3: tile_one(dq)
            for s in (0, 2):
                xb, xbr = xcheck(s)
                e(f's_waitcnt {self.wvm(x_id[s+1])}\n' + '\n'.join(xb)); xbr()
        while len(x_id) < XLA: xload()
        bg('b_x', 0, 0)
        for j in range(8): e(f's_add_u32 s{sAb[j]}, s{sActG}, {(7*(j>>1) + 4*(j&1))*1024}')
        if self.o.get('verbose'): print('tr reads left', len(trq), 'wd left', len(wdq), 'dq left', len(dq))
        e(f"""
        v_mov_b32 v124, v{vWdA}
        v_mov_b32 v{TA}, v{TH}
        v_mov_b32 v{TA1}, v{TH+1}
        v_and_b32 v{vP4}, 7, v0
        s_lshr_b32 s0, s{sDt}, 1
        s_lshl_b32 s1, s{sTb}, 5
        s_add_u32 s0, s0, s1
        s_lshl_b32 s0, s0, 7
        s_add_u32 s0, s0, {F3}
        v_lshl_add_u32 v{vP4}, v{vP4}, 9, s0
        s_waitcnt {self.wvm(dma_id[2])} lgkmcnt(0)
        s_barrier""")
        vW[0] = 124
        for n in range(LA): wread(n)
        if not SMP:
            xb, xbr = xcheck(0)
            e(f's_waitcnt {self.wvm(x_id[1])}\n' + '\n'.join(xb)); xbr()
        self.stamp('f2_ok')
        xq = []; xnext = 2
        f4_load = f'buffer_load_dword v{vPo4}, v{vP4}, {SRD}, 0 offen sc1'
        def gelu(tl):
            a = acc[tl]; out = []
            for hf in range(2):
                E = [a+4*hf+j for j in range(4)]
                out += [f'v_fma_f32 v{GT+j}, -v{E[j]}, v{E[j]}, s{sGk}' for j in range(4)]
                out += [f'v_mul_f32 v{GT+j}, v{GT+j}, v{E[j]}' for j in range(4)]
                for j in range(4): out += [f'v_exp_f32 v{GT+j}, v{GT+j}', f'v_mul_f32 v{E[j]+8}, v{E[j]+8}, v{E[j]}']
                for j in range(4): out += [f'v_fma_f32 v{GT+j}, v{GT+j}, s{sGs}, s{sGs}']
                for j in range(4): out += [f'v_rcp_f32 v{GT+j}, v{GT+j}']
                for j in range(4): out += [f'v_mul_f32 v{E[j]+8}, v{E[j]+8}, v{GT+j}']
                out += [f'v_cvt_pk_bf16_f32 v{GO+2*hf+j}, v{E[2*j]+8}, v{E[2*j+1]+8}' for j in range(2)]
                if hf == 0 and tl >= NF: out += [f'v_bfi_b32 v{GO+j}, s{sTm}, v{(TA,TA1)[j]}, v{GO+j}' for j in range(2)]
            out.append(f'buffer_store_dwordx4 {vr(GO,4)}, v1, {SRD}, s{sActS+(tl>>2)} offen offset:{1024*(tl&3)} sc1')
            return [(x, tl) for x in out]
        last = {tl: max(n for n, (a_, _) in enumerate(seq) if a_ == tl) for tl in range(7)}
        first = {tl: min(n for n, (a_, _) in enumerate(seq) if a_ == tl) for tl in range(7)}
        gq = []; vq = dq; st_id = {}; st_n = {}
        a_id = []; xfree = [0]; consumed = set()
        k0 = 28 - 4*len(groups[-1])
        lorder = [(kk, tt) for kk in range(k0) for tt in range(2)] + [(kk, tt) for tt in range(2) for kk in range(k0, 28)]
        NAG = 0
        def areg(kk): return ar(224+4*kk, 4) if kk < NAG else vr(X+4*((kk-NAG) % 32), 4)
        def acan():
            kk = len(a_id)
            if not checked or kk >= gend[checked-1]: return False
            return kk < NAG or (kk-NAG < xfree[0] if kk-NAG < 32 else kk-32 in consumed)
        def atext(kk):
            T, tt = korder[lorder[kk][0]], lorder[kk][1]; pp, i = divmod(T, 7)
            return f'buffer_load_dwordx4 {areg(kk)}, v{vAc1 if tt else 1}, {SRD}, s{sAb[2*pp+(i>>2)]} offen offset:{1024*(i&3)} sc1'
        def aload(): a_id.append(e(atext(len(a_id))))
        CG = self.opt('cg', 2)
        def acheck(kk):
            Lr = p.label('ar'); Ld = p.label('ad'); rs = [X+4*((kk+j-NAG) % 32)+m for j in range(CG) for m in range(2)]
            body = [f'v_xor_b32 v{r}, v{r}, v{(TA,TA1)[j&1]}' for j, r in enumerate(rs)]
            body.append(f'v_or3_b32 v{vPo}, v{rs[0]}, v{rs[1]}, v{rs[2]}')
            body += [f'v_or3_b32 v{vPo}, v{vPo}, v{rs[j]}, v{rs[j+1]}' for j in range(3, 2*CG-1, 2)]
            body += [f'v_bitop3_b32 v{vPo}, v{vPo}, v{rs[-1]}, s{sTm} bitop3:0xa8', f'v_cmp_ne_u32 vcc, 0, v{vPo}']
            def branch():
                self.tail.append(f'{Lr}:\ns_sub_u32 s{sCnt}, s{sCnt}, 1\ns_cbranch_scc1 L_end\n' + '\n'.join(atext(kk+j) for j in range(CG)) + '\ns_waitcnt vmcnt(0)\n' + '\n'.join(body) +
                                 f'\ns_cmp_lg_u64 vcc, 0\ns_cbranch_scc1 {Lr}\ns_branch {Ld}')
                e(f's_cbranch_vccnz {Lr}\n{Ld}:' if not self.opt('skipa', 0) else f'{Ld}:')
            return body, branch
        SK = self.opt('skipa', 0) - 1
        if SK > 0:
            a_id += [1]*SK; NAG = SK
            areg = lambda kk: vr(X+4*((kk-NAG) % 32), 4)
        AD = self.opt('ad', 30); VISD = self.opt('visd', 26); POLD = self.opt('pold', 14)
        checked = 0; fl = {}
        gend = [sum(len(g) for g in groups[:i+1])*8 for i in range(len(groups))]
        def progress(n, force=None):
            nonlocal checked
            fo = -1 if force is None else force
            if checked == 0 and NF:
                if 'flag' in fl and 'poll' not in fl and (n >= fl['flag'] + VISD or fo >= 0):
                    fl['id'] = e(f4_load); fl['poll'] = n; return True
                if 'poll' in fl and (n >= fl['poll'] + POLD or fo >= 0):
                    self.check(f4_load, [vPo4], fl['id']); checked = 1; return True
            elif checked < len(groups) and groups[checked][-1] in st_id and (n >= st_n[groups[checked][-1]] + AD or fo >= checked):
                if fo >= checked: e(f's_waitcnt {self.wvm(st_id[groups[checked][-1]])}')
                checked += 1
            return False
        def emit_g(x, b_, n):
            i_ = e(x)
            if x.startswith('buffer_'):
                r = b_ - self.opt('x2t', 1); assert self.opt('x2t', 1) + 1 < NF or not NF
                if r in (0, 1): i_ = e(f'buffer_store_dwordx4 {vr(XR+4*r,4)}, v{vXO}, {SRD}, s{sT+5} offen offset:{1024*r} sc1')
                if r == 3 and not NF: e(f's_waitcnt {self.wvm(st_id[b_-2])}\n' + self.flag_text(vF, sF3o))
                if b_ == NF and NF: e(f's_waitcnt {self.wvm(st_id[NF-1])}\n' + self.flag_text(vF, sF3o)); fl['flag'] = n
                st_id[b_] = i_; st_n[b_] = n
        PACE = self.opt('pace', 20); nextv = [0]
        def pump(n):
            if 10*n < nextv[0]: return False
            if wd_can() and wdq[0][0] == 3: wd_one()
            elif vq and vq[0][0] == 3 and trq and trq[0][0] <= 3 and first[3] - n > 26:
                if any(x[0] == 4 for x in vq):
                    j = min(j for j, x in enumerate(vq) if x[0] == 4); tile_one([vq.pop(j)])
                else: return False
            elif wd_can() and vq and first[vq[0][0]] - n > self.opt('urg', 48): wd_one()
            elif vq: tile_one(vq)
            elif wd_can(): wd_one()
            elif acan(): aload()
            else: return False
            nextv[0] = max(nextv[0], 10*n - 10) + (PACE if not (192 <= n < 224) else self.opt('pace6', PACE))
            return True
        grate = self.opt('grate', 33); wwait = 0; aq0 = []
        for n, (tl, s) in enumerate(seq):
            if n in (1, 48, 96, 128, 160, 192): self.stamp(f'_g{n}')
            for a_ in range(6):
                if n == last[a_] + 4: gq += gelu(a_)
            if n == last[1] + 1 and n > first[3] - LA:
                e('s_barrier'); vq += [x for i in (5,6) for x in self.dma_tile(i, i-5)]
            for a_ in range(3, 7):
                if n == first[a_] - LA:
                    while any(x[0] == a_ for x in vq): tile_one(vq)
                    e(f's_waitcnt {self.wvm(dma_id[a_])}\ns_barrier')
                    if a_ == 4: wopen[0] = 4
                    if a_ == 5: wopen[0] = 6
                    if a_ == 3 and n > last[1]: vq += [x for i in (5,6) for x in self.dma_tile(i, i-5)]
            w_ = ''
            if w_id[n] > wwait:
                tgt = w_id[min(n+WE-1, len(seq)-1)]; w_ = self.wlg(tgt); wwait = tgt
            if tl == 0 and s % 2 == 0:
                while len(xq) > 1: e(xq.pop(0))
                if xq: xq.pop(0)()
            if w_: e(f's_waitcnt {w_}')
            if s == 0: assert not any(b_ == tl-4 for _, b_ in gq), (n, len(gq))
            c_ = '0' if s == 0 else vr(acc[tl],16)
            e(f'v_mfma_f32_32x32x16_bf16 {vr(acc[tl],16)}, {vr(WF+4*(n%NB),4)}, {vr(X+4*s,4)}, {c_}')
            if tl == 6: xfree[0] = s
            if n + LA < len(seq): wread(n+LA)
            budget = (grate*(n+1))//10 - (grate*n)//10
            if tl == 1 and s % 2 == 0 and s+2 < 32 and not (SMP and s == 0):
                xb, xbr = xcheck(s+2)
                e(f's_waitcnt {self.wvm(x_id[s+3])}'); xq = xb + [xbr]
            for _ in range(3):
                if len(xq) > 1: e(xq.pop(0))
            if progress(n): budget -= 2
            elif len(x_id) < 32:
                if tl == 0: xload()
                elif P1 == 3 and tl == 1 and s % 4 == 0: pump(n)
            else: pump(n)
            while gq and budget > 0:
                x, b_ = gq.pop(0); budget -= 1
                emit_g(x, b_, n)
            for _ in range(max(1, min(budget, 2))):
                if tr_ready(self.opt('trlag1', 9)): tr_pop()
            if not NF and n == len(seq) - self.opt('c6', 5) and len(a_id) >= CG:
                e(f's_waitcnt {self.wvm(a_id[CG-1])}'); b_, br_ = acheck(0); aq0 = b_ + [br_]
            for _ in range(3):
                if len(aq0) > 1: e(aq0.pop(0))
        assert not vq
        self.stamp('g1_mfma')
        n = len(seq); xfree[0] = 32
        while wdq: wd_one()
        e(f"""
        v_lshlrev_b32 v{WF}, 2, v0
        v_add_u32 v{WF}, {L_GB}, v{WF}
        ds_write_b32 v{WF}, v{GBV}""")
        while any(b_ <= 4 for _, b_ in gq):
            x, b_ = gq.pop(0); emit_g(x, b_, n)
        self.c('---- GEMM2: 64 x 64 output tile, K split over the 4 waves, reduction through LDS, out = x2 + gb*ff')
        g6pos = len(p.text); g6 = gelu(6)
        A2 = [ar(224,16), ar(240,16), vr(AC[0],16), vr(AC[3],16)]
        a2q = lambda q_, i: ar(224+16*q_+4*i, 4) if q_ < 2 else vr(AC[3*(q_-2)]+4*i, 4)
        vRw = 12; vRr = 13; vG = 14
        fill = f"""v_bfe_u32 v{WF}, v0, 5, 1
        v_and_b32 v{WF+1}, 0x1f0, v1
        s_mul_i32 s{sT}, s{sW}, {4*RQ}
        s_add_u32 s{sT}, s{sT}, {L_RED}
        v_mul_u32_u24 v{WF}, {RQ}, v{WF}
        v_add3_u32 v{vRw}, v{WF}, v{WF+1}, s{sT}
        v_and_b32 v{WF}, 7, v0
        v_lshrrev_b32 v{WF+1}, 3, v0
        v_mul_u32_u24 v{WF+2}, {RSA}, v{WF}
        v_lshl_add_u32 v{vRr}, v{WF+1}, 4, v{WF+2}
        v_add_u32 v{vRr}, {L_RED}, v{vRr}
        s_lshl_b32 s{sT}, s{sDt}, 7
        s_add_u32 s{sT}, s{sT}, {L_GB}
        v_lshl_add_u32 v{vG}, v{WF}, 4, s{sT}
        s_add_u32 s{sT+2}, s{pOut}, 32768
        s_addc_u32 s{sT+3}, s{pOut+1}, 0""".split('\n')
        fill[-2:] = ['\n'.join(fill[-2:])]
        XF2 = 96
        fill2 = [x for tt in range(2) for j in range(4) for x in self.unpack(XF2+8*tt+2*j, X2R+4*tt+j)]
        TAILK = self.opt('tailk', 6)
        o2 = [(kk, tt, c) for kk in range(28-TAILK) for tt in range(2) for c in range(2)]
        o2 += [(kk, tt, c) for tt in range(2) for c in range(2) for kk in range(28-TAILK, 28)]
        PACE = self.opt('pace2', 18)
        wq = []; twait = 0; await_ = 0; X2M = self.opt('x2m', 44); used = {}
        GF = 112; vRr2 = 15; OO = [16, 4]
        def redw(q_): return [f'ds_write_b128 v{vRw}, {a2q(q_, i)} offset:{2*RQ*(q_>>1)+(4*(q_&1)+i)*RSA}' for i in range(4)]
        RDS = [AC[1], 128]
        r_id = {}
        def redr(tt):
            for hs in range(2):
                for w in range(4):
                    e(f'ds_read_b128 {vr(RDS[tt]+16*hs+4*w,4)}, v{vRr if w<2 else vRr2} offset:{(4*(w&1)+2*tt+hs)*RQ}')
                r_id[(tt, hs)] = self.nlg
        def redm(tt):
            out = []
            for hs in range(2):
                r = RDS[tt]+16*hs
                out.append(('w', (tt, hs)))
                for hh in range(2):
                    out += [f'v_pk_add_f32 {vr(r+2*hh,2)}, {vr(r+2*hh,2)}, {vr(r+4+2*hh,2)}', f'v_pk_add_f32 {vr(r+8+2*hh,2)}, {vr(r+8+2*hh,2)}, {vr(r+12+2*hh,2)}']
                out += [f'v_pk_add_f32 {vr(r+2*hh,2)}, {vr(r+2*hh,2)}, {vr(r+8+2*hh,2)}' for hh in range(2)]
                out += [f'v_pk_fma_f32 {vr(r+2*hh,2)}, {vr(r+2*hh,2)}, {vr(GF+4*hs+2*hh,2)}, {vr(XF2+8*tt+4*hs+2*hh,2)}' for hh in range(2)]
                out += [f'v_cvt_pk_bf16_f32 v{OO[tt]+2*hs+hh}, v{r+2*hh}, v{r+2*hh+1}' for hh in range(2)]
            out.append(f'global_store_dwordx4 v{vX2}, {vr(OO[tt],4)}, {sp(pOut) if tt==0 else sp(sT+2)} {self.opt("outflag","sc1").replace("_"," ").replace("none","")}')
            return out
        def emit_m(x):
            if isinstance(x, tuple): e(f's_waitcnt {self.wlg(r_id[x[1]])}')
            else: e(x)
        fill.append(f'v_add_u32 v{vRr2}, {8*RQ}, v{vRr}')
        fill2.append(f's_mov_b32 s{sGk}, {fbits(2.0**64*(1+self.opt("perturb", 0)/1000))}')
        gun = [x for j in range(4) for x in self.unpack(GF+2*j, GF+8+j)] + [f'v_mul_f32 v{GF+j}, s{sGk}, v{GF+j}' for j in range(8)]
        states = lambda pos: sum(hazard.I(l).states() for l in p.text[pos:])
        wdone = 0; barA = False; aq = aq0; achk = 8*NF; anext = achk + (CG if aq0 else 0)
        firstm = {}
        for m_, (kk, tt, c) in enumerate(o2): firstm.setdefault(lorder.index((kk, tt)), m_)
        for m_, (kk, tt, c) in enumerate(o2):
            f = lorder.index((kk, tt)); T = korder[kk]; q_ = 2*tt + c
            if m_ in (0, 28, 56, 84): self.stamp(f'_h{m_//2}')
            if m_ == X2M - 20 and not NF: id_f4 = e(f4_load)
            if m_ == X2M:
                assert checked
                if not NF:
                    while len(aq) > 1: e(aq.pop(0))
                    if aq: aq.pop(0)(); achk = anext
                    self.check(f4_load, [vPo4], id_f4)
                id_x2l = e(f's_mov_b32 s0, {X2}\nbuffer_load_dwordx4 {vr(X2R,4)}, v{vX2}, {SRD}, s0 offen sc1\ns_mov_b32 s0, {X2+32768}\nbuffer_load_dwordx4 {vr(X2R+4,4)}, v{vX2}, {SRD}, s0 offen sc1')
            if m_ == self.opt('x2u', 70):
                e(f's_waitcnt {self.wvm(id_x2l)} {self.wlg(g_id)}'); fill += fill2 + gun
            while len(a_id) <= f:
                g = min(i for i in range(len(groups)) if gend[i] > len(a_id))
                while groups[g][-1] not in st_id:
                    if not gq: gq += g6; g6 = []
                    x, b_ = gq.pop(0); emit_g(x, b_, n)
                while checked <= g: progress(n, force=g)
                assert acan()
                aload()
            ahead = max(lorder.index((k2, t2)) for k2, t2, _ in o2[m_:m_+2*self.opt('amin', 12)])
            for _ in range(8 if len(a_id) <= f+2 else 2):
                if acan() and len(a_id) <= ahead: aload(); nextv[0] = 10*n + PACE
            while any(T_ == T for _, T_, _ in trq): tr_pop()
            if m_ == 64:
                while trq: tr_pop()
                e(f's_waitcnt lgkmcnt(0)\ns_barrier\nds_read_b128 {vr(GF+8,4)}, v{vG}'); twait = self.nlg-1; g_id = self.nlg; assert not fill and not gq and not g6
            while achk < f + 1:
                if not aq:
                    while len(a_id) < anext + CG: aload()
                    e(f's_waitcnt {self.wvm(a_id[anext+CG-1])}'); b_, br_ = acheck(anext); aq = b_ + [br_]; anext += CG
                while len(aq) > 1: e(aq.pop(0))
                aq.pop(0)(); achk = anext
            w_ = ''
            if f < 8*NF and a_id[f] > await_:
                f2_ = min(f | 1, len(a_id)-1); w_ = self.wvm(a_id[f2_]); await_ = a_id[f2_]
            if t_id.get(T, 0) > twait: w_ += ' ' + self.wlg(t_id[T]); twait = t_id[T]
            if w_: e(f's_waitcnt {w_}')
            e(f'v_mfma_f32_32x32x16_bf16 {A2[q_]}, {ar(8*T+4*c,4)}, {areg(f)}, {"0" if kk==0 else A2[q_]}')
            n += 1
            used[f] = used.get(f, 0) + 1
            if kk == 27 and q_ < 3: wq.append((len(p.text), redw(q_)))
            if not progress(n): pump(n)
            if used[f] == 2: consumed.add(f)
            if len(aq) == 1: aq.pop(0)(); achk = anext
            elif not aq and anext < 56 and len(a_id) >= anext + CG and firstm[anext] <= m_ + self.opt('clead', 6):
                e(f's_waitcnt {self.wvm(a_id[anext+CG-1])}'); b_, br_ = acheck(anext); aq = b_ + [br_]; anext += CG
            for _ in range(self.opt('crate', 3)):
                if len(aq) > 1: e(aq.pop(0))
            if g6 and states(g6pos) >= 12: gq += g6; g6 = []
            if gq:
                for _ in range(self.opt('grate2', 5)):
                    if gq:
                        x, b_ = gq.pop(0); emit_g(x, b_, n)
                if tr_ready(8): tr_pop()
                continue
            if wq:
                if states(wq[0][0]) < 12: e(f's_nop {min(4, 11-states(wq[0][0]))}')
                if states(wq[0][0]) >= 12:
                    e(wq[0][1].pop(0))
                    if not wq[0][1]: wq.pop(0); wdone += 1; wlast = self.nlg
                continue
            if wdone >= 2 and not barA and self.opt('tsplit', 1):
                e(f's_waitcnt {self.wlg(wlast)}\ns_barrier'); barA = True
                redr(0); continue
            for _ in range(self.opt('trate', 2) - c):
                if tr_ready(8): tr_pop()
            for _ in range(2 if m_ < 80 else 3):
                if fill: e(fill.pop(0))
        assert not fill and not trq and not gq and not g6
        self.stamp('g2_mfma')
        lastpos = len(p.text)
        for _, ws_ in wq:
            for x in ws_: e(x)
        if not barA and self.opt('tsplit', 1):
            e(f's_waitcnt lgkmcnt(0)\ns_barrier'); barA = True
            redr(0)
        if barA:
            m0_ = redm(0)
            while states(lastpos) < 12: emit_m(m0_.pop(0))
            for x in redw(3): e(x)
            for x in m0_: emit_m(x)
            e(f's_waitcnt lgkmcnt(0)\ns_barrier')
            redr(1)
            for x in redm(1): emit_m(x)
        else:
            for x in redw(3): e(x)
            e(f's_waitcnt lgkmcnt(0)\ns_barrier')
            redr(0); redr(1)
            for x in redm(0) + redm(1): emit_m(x)
        self.stamp('end')
        e(f'''
        s_or_b32 s0, s{sL}, s{sW}
        s_cbranch_scc1 L_noep''')
        e(self.flag_text(vF, 0))
        e('L_noep:')
        if self.stamps:
            e(f'''
            s_lshl2_add_u32 s{sT}, s{sL}, s{sW}
            s_lshl_b32 s{sT}, s{sT}, 7
            s_add_u32 s{sT}, s{sT}, {STMP}
            v_mov_b32 v4, 0
            s_mov_b64 exec, 1''')
            for i in range(self.ns):
                e(f'v_mov_b32 v5, s{sStamp+i}\nbuffer_store_dword v5, v4, {SRD}, s{sT} offen offset:{4*i}')
            e(f'v_mov_b32 v5, s{sCnt}\nbuffer_store_dword v5, v4, {SRD}, s{sT} offen offset:124')
        if self.o.get('probe') is not None:
            kk = self.stamp_names.index(self.o['probe'])
            e(f'''
            s_add_u32 s{sT}, s{sStamp+kk}, 5000
            L_spin:
            s_sleep 1
            s_memrealtime s[22:23]
            s_waitcnt lgkmcnt(0)
            s_sub_u32 s{sT+1}, s22, s{sT}
            s_cmp_lt_i32 s{sT+1}, 0
            s_cbranch_scc1 L_spin''')
        e('s_endpgm')
        self.c('---- bounded retries: a hand-off that has not arrived yet is loaded again')
        for x in self.tail: e(x)
        e('L_end:\ns_endpgm')
        p.end(k, vgpr=256, agpr=256, sgpr=102)
        nt = str(self.opt('nt', '-'))
        def hint(l):
            for ch, bases in (('x', [pX]), ('m', [pWm]), ('a', [pAre,pAim,pBre,pBim,pCre,pCim]), ('g', [pWu])):
                if ch in nt and l.strip().startswith('global_load') and any(f', {sp(b)}' in l for b in bases): return l + ' nt'
            if 'e' in nt and 'buffer_load_dwordx2' in l: return l + ' nt'
            return l
        p.text = [hint(l) for l in p.text]
        p.text, added = hazard.fix(p.text, verbose=self.o.get('verbose'))
        hazard.check_global_addresses(p.text, sp(sM+4))
        if self.opt('align', 6):
            p.text, nw, nn = align.fix(p.text, self.opt('align', 6))
            if self.o.get('verbose'): print('align: widened', nw, 'nops', nn)
        p.text += ['; ---- per-thread LDS addresses and masks (functions of the thread id only)', '.p2align 8', 'L_tab:'] + ['.long ' + ', '.join(hex(v) for v in self.table[i:i+16]) for i in range(0, len(self.table), 16)]
        return added

if __name__ == '__main__':
    ap = argparse.ArgumentParser()
    ap.add_argument('out'); ap.add_argument('--stamps', action='store_true'); ap.add_argument('-v', action='store_true')
    ap.add_argument('--probe', default=None); ap.add_argument('-o', action='append', default=[])
    a = ap.parse_args()
    opts = dict(verbose=a.v, probe=a.probe)
    for kv in a.o:
        kk, vv = kv.split('='); opts[kk] = int(vv) if vv.lstrip('-').isdigit() else vv
    g = G(a.stamps or a.probe is not None, opts)
    added = g.build()
    g.p.dump(a.out, single=True)
    n = sum(1 for l in g.p.text if l.startswith('  '))
    print(a.out, 'instructions', n, 'nops added', added, 'stamps', g.stamp_names)
    if a.stamps: open(a.out + '.names', 'w').write(' '.join(g.stamp_names))
```

```python
import sys, struct, argparse
from asmlib import Prog, NAME
import hazard, align

def fbits(x): return '0x%08x' % struct.unpack('<I', struct.pack('<f', x))[0]

F1   = 0x0C0000
F2   = 0x020000
F3   = 0x040000
F3S  = 0x020000
MODP = 0x0E0000
MX   = 0x008000
TAGZ = 0x40004000
HBLK = 8448
TAGM = 0x70007000
XH   = 0x160000
ZY   = 0x380000
H2   = 0x5A0000
X2   = 0x7A0000
WGU  = 0x9A0000
ACT  = 0xD20000
STMP = 0x3000000
WS_BYTES = 0x10000000
S4   = 131072
L_U  = S4; USZ = 4608
L_P  = S4 + 2*USZ; PSZ = 4288
L_ZB = L_P + 2*PSZ
L_JK = L_ZB + 1024
L_BD = L_P + 12288
L_SB = L_BD + 1024
L_Y  = 98304
L_MB = 98304
RST  = 544
L_RC = 0; RCSZ = 54*RST
L_RED = 65536; RSA = 576; RQ = 8*RSA
L_GB = L_RED + 16*RQ
LDS_BYTES = 163840
pX,pAre,pAim,pBre,pBim,pCre,pCim,pLdt = 4,6,8,10,12,14,16,18
pD,pWg,pWu,pWd,pC,pWm,pOut,pWs = 20,24,26,28,30,32,34,38
SRD='s[40:43]'
sL,sW,sTag,sMask,sCnt = 44,45,46,47,48
sLo,sHi = 49,50
sOnes = 51
sMt,sNt,sTb,sDt = 52,53,54,55
sBad = 56
sT = 58
sM = 68
sDsk = 80
sStamp = 82
sDmaL, sDmaG, sDmaT = 36, 5, 6
sActG, sActT = 9, 10
sActS = 12
sF3o, sF3p = 14, 15
sXg = 16
sCh, sHb = 17, 18
sE1 = 4
sZs = 10
sTm = 25
sWs, sF1o = 14, 24
def sp(i): return f's[{i}:{i+1}]'
def vr(i, n): return f'v[{i}:{i+n-1}]'
def ar(i, n): return f'a[{i}:{i+n-1}]'

class G:
    def __init__(self, stamps=False, opts=None):
        self.p = Prog(); self.stamps = stamps; self.ns = 0; self.o = opts or {}
        self.stamp_names = []; self.nvm = 0; self.nlg = 0; self.tail = []; self.maybe = False; self.m0 = None
    def opt(self, k, d): return self.o.get(k, d)
    def c(self, txt):
        for l in txt.split('\n'): self.p.text.append('; ' + l.strip())
    def e(self, s):
        for line in s.split('\n'):
            l = line.strip()
            if not l: continue
            if l.startswith(('buffer_', 'global_')) and not self.maybe: self.nvm += 1
            if l.startswith('ds_') and not self.maybe: self.nlg += 1
            self.p.e(l)
        return self.nvm
    def wvm(self, i): return f'vmcnt({min(62, self.nvm - i)})'
    def wlg(self, i): return f'lgkmcnt({min(14, self.nlg - i)})'
    def stamp(self, name):
        if self.opt('jitter', 0) and name in ('x_arrived','_wm','kgen2','u_ready','_c54','conv','z_ok','_ln2bar','f2_ok','_g96','_g160','g1_mfma','_h14','_h42'):
            L = self.p.label('jit'); self.jn = getattr(self, 'jn', 0) + 1
            self.e(f'''s_lshl2_add_u32 s22, s2, s{sW}
            s_add_u32 s22, s22, {self.jn*977 + self.opt('jitter', 0)*131}
            s_mul_i32 s22, s22, 0x9E3779B1
            s_lshr_b32 s23, s22, 15
            s_xor_b32 s22, s22, s23
            s_mul_i32 s22, s22, 0x85EBCA6B
            s_lshr_b32 s22, s22, 27
            s_cmp_lg_u32 s22, 0
            s_cbranch_scc1 {L}
            s_sleep 100
            {L}:''')
        if not self.stamps: return
        if self.o.get('probe') is not None and name != self.o['probe']: return
        if self.o.get('only') and not (name == 'start' or name.startswith(tuple(self.o['only'].split(',')))): return
        if not self.o.get('only') and self.o.get('probe') is None and name.startswith('_'): return
        assert self.ns < 20
        self.e(f'{"s_memtime" if self.opt("cyc", 0) else "s_memrealtime"} s[22:23]\ns_waitcnt lgkmcnt(0)\ns_mov_b32 s{sStamp+self.ns}, s22')
        self.ns += 1; self.stamp_names.append(name)

    def check_text(self, loads, tags, last):
        Lc = self.p.label('chk'); Lr = self.p.label('retry')
        s = f's_waitcnt {self.wvm(last)}\n{Lc}:\n'
        if len(tags) == 1:
            s += f'v_cmp_ne_u32 vcc, v{tags[0]}, v2\ns_cmp_lg_u64 vcc, 0\ns_cbranch_scc1 {Lr}'
            self.tail.append(f'''{Lr}:
            s_sub_u32 s{sCnt}, s{sCnt}, 1
            s_cbranch_scc1 L_end
            {loads}
            s_waitcnt vmcnt(0)
            s_branch {Lc}''')
        else:
            s += f'v_cmp_ne_u32 {sp(sBad)}, v{tags[0]}, v2\n'
            for t in tags[1:]: s += f'v_cmp_ne_u32 vcc, v{t}, v2\ns_or_b64 {sp(sBad)}, {sp(sBad)}, vcc\n'
            s += f's_cbranch_scc1 {Lr}'
            self.tail.append(f'''{Lr}:
            s_sub_u32 s{sCnt}, s{sCnt}, 1
            s_cbranch_scc1 L_end
            s_mov_b64 exec, {sp(sBad)}
            {loads}
            s_mov_b64 exec, -1
            s_waitcnt vmcnt(0)
            s_branch {Lc}''')
        return s
    def check(self, loads, tags, last): self.e(self.check_text(loads, tags, last))

    def flag_text(self, vaddr, soff):
        return f's_mov_b32 exec_hi, 0\nbuffer_store_dword v2, v{vaddr}, {SRD}, s{soff} offen sc1\ns_mov_b32 exec_hi, -1'

    def stats_partial(self, src, t, vSBw, fill=()):
        a,b,c,d = t,t+1,t+2,t+3
        for m in range(4):
            acc = lambda r: '0' if m == 0 else f'v{r}'
            self.e(f'''v_dot2_f32_bf16 v{a}, v{src+m}, s{sOnes}, {acc(a)}
            v_dot2_f32_bf16 v{b}, v{src+4+m}, s{sOnes}, {acc(b)}
            v_dot2_f32_bf16 v{c}, v{src+m}, v{src+m}, {acc(c)}
            v_dot2_f32_bf16 v{d}, v{src+4+m}, v{src+4+m}, {acc(d)}''')
        self.reduce4(a,b,c,d, fill)
        self.e(f'ds_write_b32 v{vSBw}, v{a}')
    def reduce4(self, a,b,c,d, fill=()):
        fill = list(fill)
        def f(n):
            for _ in range(n):
                if fill: self.e(fill.pop(0))
        f(2); self.e(f'v_permlane32_swap_b32 v{a}, v{b}\nv_permlane32_swap_b32 v{c}, v{d}\nv_add_f32 v{a}, v{a}, v{b}\nv_add_f32 v{c}, v{c}, v{d}')
        f(2); self.e(f'v_permlane16_swap_b32 v{a}, v{c}\nv_add_f32 v{a}, v{a}, v{c}')
        f(2); self.e(f'v_add_f32_dpp v{a}, v{a}, v{a} row_ror:4 row_mask:0xf bank_mask:0xf')
        f(2); self.e(f'v_add_f32_dpp v{a}, v{a}, v{a} row_ror:8 row_mask:0xf bank_mask:0xf')
        self.rest = fill
    def stats_read(self, t, vSBr):
        for w in range(4): self.e(f'ds_read_b128 {vr(t+4*w,4)}, v{vSBr} offset:{16*w}')
        return self.nlg
    def stats_finish(self, t, vInv, scale=None, pre=None):
        self.e(f'''
        v_pk_add_f32 {vr(t,2)}, {vr(t,2)}, {vr(t+4,2)}
        v_pk_add_f32 {vr(t+2,2)}, {vr(t+2,2)}, {vr(t+6,2)}
        v_pk_add_f32 {vr(t+8,2)}, {vr(t+8,2)}, {vr(t+12,2)}
        v_pk_add_f32 {vr(t+10,2)}, {vr(t+10,2)}, {vr(t+14,2)}
        v_pk_add_f32 {vr(t,2)}, {vr(t,2)}, {vr(t+8,2)}
        v_pk_add_f32 {vr(t+2,2)}, {vr(t+2,2)}, {vr(t+10,2)}
        v_pk_mul_f32 {vr(t+4,2)}, {vr(t,2)}, {vr(vInv,2)} op_sel_hi:[1,0]
        v_pk_mul_f32 {vr(t+6,2)}, {vr(t+2,2)}, {vr(vInv,2)} op_sel_hi:[1,0]
        v_fma_f32 v{t+5}, -v{t+4}, v{t+4}, v{t+5}
        v_fma_f32 v{t+7}, -v{t+6}, v{t+6}, v{t+7}
        v_max_f32 v{t+5}, 0, v{t+5}
        v_max_f32 v{t+7}, 0, v{t+7}
        {f'v_fmamk_f32 v{t+5}, v{t+5}, {fbits(pre)}, v{vInv+1}' if pre else f'v_add_f32 v{t+5}, v{vInv+1}, v{t+5}'}
        {f'v_fmamk_f32 v{t+7}, v{t+7}, {fbits(pre)}, v{vInv+1}' if pre else f'v_add_f32 v{t+7}, v{vInv+1}, v{t+7}'}
        v_rsq_f32 v{t}, v{t+5}
        v_rsq_f32 v{t+2}, v{t+7}''')
        if scale: self.e(f'v_mul_f32 v{t}, {fbits(scale)}, v{t}\nv_mul_f32 v{t+2}, {fbits(scale)}, v{t+2}')
        self.e(f'''
        v_mul_f32 v{t+1}, -v{t+4}, v{t}
        v_mul_f32 v{t+3}, -v{t+6}, v{t+2}''')
    def cmul(self, d, a, b):
        return [f'v_pk_mul_f32 {vr(d,2)}, {vr(a,2)}, {vr(b,2)} op_sel_hi:[1,0]',
                f'v_pk_fma_f32 {vr(d,2)}, {vr(a,2)}, {vr(b,2)}, {vr(d,2)} op_sel:[1,1,0] op_sel_hi:[0,1,1] neg_lo:[1,0,0]']
    def unpack(self, d, s): return [f'v_lshlrev_b32 v{d}, 16, v{s}', f'v_and_b32 v{d+1}, s{sMask}, v{s}']

    def dma_tile(self, i, slot):
        return [(i, slot, slot*32768 + hf*4096, i*32768 + hf*4096,
                 f'buffer_load_dwordx4 v1, {SRD}, s{sDmaT} offen offset:{e_*1024} sc1 lds') for hf in range(2) for e_ in range(4)]
    def set_m0(self, off):
        if self.m0 != off: self.e(f's_add_u32 m0, s{sDmaL}, {off}'); self.m0 = off

    def build(self):
        p = self.p; e = self.e
        k = NAME + '_kernel'
        p.header = '''One persistent launch, 256 workgroups (one per CU) x 4 waves. Each workgroup owns 8 rows (LN1, LN2), 2 channels (S4 conv),
one 128x112 GEMM1 tile and one 64x64 GEMM2 tile. Hand-offs go through d_ws with write-through stores and cache-bypassing loads,
so they hold under any placement. Each launch derives a tag from the epoch word at d_ws[0] (rewritten at the end); handed-over
words carry that tag in exponent bits freed by an exact power-of-two scaling (or in a flag word), which tells them from older data.'''.split('\n')
        p.add_launch(k, 256, 256, LDS_BYTES)
        p.begin(k)
        XR = 4; WM = 12; AB = 28; WG = 36
        vXO = 3; t = 68
        vTg = 252; vWgL = 35; vTab = 97; vPf = 255; vInv = 52; vDt = 34; vS = 54; vPolled = 123; vMBw = 79
        vSBw, vSBr, vMBr, vEM = 112, 113, 114, 115
        vRW, vKa, vKb0, vKb1 = 116, 117, 118, 119
        vWgS, vTw, vTr, vF = 124, 125, 126, 127
        vEX, vWdA, vBv, vOne = 64, 65, 66, 67
        vKw0, vKw1, vBd, vBd2 = 120, 121, 122, 123
        vPA, vPX, vQ, vUS = 56, 57, 58, 59
        vYw, vYr, vUB, vUw = 60, 61, 62, 63
        TP = 160; TB = 98304
        def consts(tid):
            w, l = tid >> 6, tid & 63; ch, hb = w >> 1, w & 1; c, q_, rp = l & 15, l >> 4, l & 3
            P = L_P + ch*PSZ; U = L_U + ch*USZ; RC = L_RC + ch*RCSZ
            lo, wd = [(3,3),(6,5),(5,7),(4,9)][w]
            x = l - 16 - lo
            band = (0x3f80 if 0 <= x < wd else 0) | (0x3f800000 if 0 <= x-1 < wd else 0)
            if c < 8: kw1 = P + 4*(608 + 16*[1,5,2,6,10,11,12,13][c] + 8*hb + 2*q_)
            elif 120 <= (tid & 127) < 125: kw1 = P + 4*((520 if c < 11 else 568) + c) - 932
            else: kw1 = L_JK
            sw = (((l >> 1) & 3) ^ q_) * 16
            full = [(tid >> 2)*HBLK + rp*16, (448*w + 16*((l>>4)&1) + 4*((l>>2)&3))*1024 + (l>>5)*64 + (l&3)*16, band, 0x3f800000 if q_ == 2 else 0]
            half = {vSBw: L_SB + rp*64 + w*16 + q_*4, vSBr: L_SB + rp*64,
              vMBr: L_MB + 4*(192*((l>>1)&1) + 2*(8*w + ((l>>2)&7)) + (l&1)), vMBw: L_MB + 32*tid,
              vRW: RC + 4*(tid & 127), vKa: RC + (16*hb + c)*RST + 16*q_,
              vKb0: RC + [0,1,2,3,4,5,6,7,8,8,9,10,10,10,11,12][c]*RST + 16*q_, vKb1: RC + [1,2,3,4,5,6,7,8,0,0,0,4,4,0,0,0][c]*RST + 16*q_,
              vF: 4*l, vTr: w*8192 + (l>>5)*256 + ((l>>2)&3)*64 + ((l>>4)&1)*32 + (l&3)*8,
              vEM: (l >> 2)*2048 + rp*16, vWgS: q_*512 + c*16,
              vKw0: P + 64 + 512*hb + 4*((c&7) + 256*(c>>3) + 32*q_), vKw1: kw1,
              vBd: L_BD + 4*(26 + c - 8*q_), vBd2: L_BD + 4*(26 + c - 8*q_) + 256*hb,
              vPA: P + 512*hb + 4*(26 + c - 8*q_), vPX: (P + 2048 if hb == 0 else L_ZB) + 4*(26 + c - 8*q_),
              vQ: P + 4*(608 + 12 + c - 4*q_) + 928*hb, vUS: U + 32*c + 16*q_ + 480 - 16*hb,
              vYw: L_Y + w*8192 + c*64 + sw, vYr: L_Y + (tid >> 2)*64 + (((rp >> 1) ^ ((tid >> 3) & 3))*16) + (rp & 1)*8, vUB: U + 32*c + 16*q_ + 288 - 256*hb, vUw: L_U + 512 + 4*tid}
            return full, half
        hlate = [vPA, vPX, vQ, vUS, vYw, vYr, vUB, vTr]
        hregs = [r for r in consts(0)[1] if r not in hlate] + hlate; assert len(hregs) == 24
        hbase = {r: (TB if consts(0)[1][r] >= TB else 0) for r in hregs}
        def trow(tid):
            full, half = consts(tid)
            h = [half[r] - hbase[r] for r in hregs]; assert all(0 <= v < 65536 for v in h)
            return [h[2*i] | h[2*i+1] << 16 for i in range(12)] + full
        self.table = [v for qd in range(4) for tid in range(256) for v in trow(tid)[4*qd:4*qd+4]]
        def tunpack():
            out = []
            for i, r in enumerate(hregs):
                b_ = f's{sT+9}' if hbase[r] else '0'
                out.append(f'v_add_u32_sdwa v{r}, {b_}, v{TP+(i>>1) if i < 16 else 144+(i>>1)} dst_sel:DWORD dst_unused:UNUSED_PAD src0_sel:DWORD src1_sel:WORD_{i&1}')
            return out
        MAP2 = self.opt('map2', 84)
        NF = 0
        groups = ([tuple(range(NF))] if NF else []) + [(i,) for i in range(NF, 7)]
        korder = [7*pp + i for g in groups for pp in range(4) for i in g]
        wslot = [int(c) for c in str(self.opt('wslot', 'x0123232'))[1:]]
        wdq = [(Gl, jh, c) for Gl in range(7) for jh in range(2) for c in range(4)]
        trq = [(Gl, 4*Gl+c, f'ds_read_b64_tr_b16 {ar(8*(4*Gl+c)+4*cc+2*jh,2)}, v{vTw if wslot[Gl] >= 2 else vTr} offset:{(wslot[Gl]&1)*32768 + jh*4096 + c*1024 + cc*512}')
               for Gl in range(7) for c in range(4) for cc in range(2) for jh in range(2)]
        wd_id = {}; t_id = {}; g_last = {}; wopen = [-1]; trw = [0]; vW = [vWdA]; freed = set()
        def tr_ready(lag): return trq and trq[0][0] in wd_id and wd_id[trq[0][0]] <= self.nvm - lag
        def tr_pop():
            Gl, T, x = trq.pop(0)
            while Gl not in wd_id: wd_one()
            if wd_id[Gl] > trw[0]: trw[0] = wd_id[Gl]; e(f's_waitcnt {self.wvm(trw[0])}')
            e(x); t_id[T] = g_last[Gl] = self.nlg
        def free_slot(sl, upto):
            for Gl in range(upto):
                if wslot[Gl] == sl and Gl not in freed:
                    while trq and trq[0][0] <= Gl: tr_pop()
                    e(f's_waitcnt {self.wlg(g_last[Gl])}'); freed.add(Gl)
        def wd_can():
            if not wdq or wdq[0][0] > wopen[0]: return False
            Gl = wdq[0][0]
            return all(G2 in freed or (G2 in g_last and (not trq or trq[0][0] > G2)) for G2 in range(Gl) if wslot[G2] == wslot[Gl])
        def wd_one():
            Gl, jh, c = wdq.pop(0); assert Gl <= wopen[0], Gl
            free_slot(wslot[Gl], Gl)
            self.set_m0(wslot[Gl]*32768 + jh*4096)
            if c == 0 and (Gl or jh): e(f'v_add_u32 v{vW[0]}, 32768, v{vW[0]}')
            i_ = e(f'global_load_lds_dwordx4 v{vW[0]}, {sp(pWd)} offset:{1024*c}')
            if c == 3 and jh == 1: wd_id[Gl] = i_
        def wd_issue(n):
            for _ in range(n):
                if wd_can(): wd_one()
        dma_id = {}; gcur = [None]
        def tile_one(q_):
            i, sl, off, go, x = q_.pop(0)
            free_slot(sl, 4 if i <= 4 else 0)
            self.set_m0(off)
            if gcur[0] != go: e(f's_add_u32 s{sDmaT}, s{sDmaG}, {go}'); gcur[0] = go
            dma_id[i] = e(x)
        def tr_do(n):
            for _ in range(4*n):
                if tr_ready(self.opt('trlag', 6)): tr_pop()
        self.c('---- prologue: ids, kernel code / constant table towards L2, first loads (x rows, S4 parameters, w_mod slice), address set-up, silu(c)')
        if self.stamps and self.o.get('probe') is None:
            e(f'{"s_memtime" if self.opt("cyc", 0) else "s_memrealtime"} s[{sStamp}:{sStamp+1}]'); self.ns += 1; self.stamp_names.append('start')
        XF1 = self.opt('xfirst', 0)
        if XF1:
            e(f"""
            s_load_dwordx2 {sp(sBad)}, s[0:1], 0
            s_cmp_ge_u32 s2, 256
            s_cbranch_scc1 L_end
            s_lshr_b32 s3, s2, 3
            s_and_b32 s{sT+1}, s2, 7
            s_lshl_b32 s{sL}, s{sT+1}, 5
            s_or_b32 s{sL}, s{sL}, s3
            v_and_b32 v{t+2}, 3, v0
            v_and_b32 v{t+3}, 0xfc, v0
            s_lshl_b32 s{sT+3}, s{sL}, 13
            v_lshl_add_u32 v{t+3}, v{t+3}, 2, s{sT+3}
            v_lshl_add_u32 v{vXO}, v{t+2}, 11, v{t+3}
            s_waitcnt lgkmcnt(0)
            global_load_dwordx4 {vr(XR,4)}, v{vXO}, {sp(sBad)}""")
            id_x = e(f'global_load_dwordx4 {vr(XR+4,4)}, v{vXO}, {sp(sBad)} offset:1024')
        e(f"""
        s_load_dwordx16 s[4:19], s[0:1], 0
        s_load_dwordx16 s[20:35], s[0:1], 64
        s_load_dwordx4 s[36:39], s[0:1], 128
        s_cmp_ge_u32 s2, 256
        s_cbranch_scc1 L_end
        v_lshrrev_b32 v{t}, 6, v0
        v_and_b32 v{t+1}, 63, v0
        v_readfirstlane_b32 s{sW}, v{t}
        s_lshr_b32 s3, s2, 3
        s_getpc_b64 {sp(sM)}
        L_pc:
        s_lshl2_add_u32 s{sT}, s3, s{sW}
        s_lshl_b32 s{sM+2}, s{sT}, 8
        s_min_u32 s{sM+2}, s{sM+2}, L_end-L_pc-256
        v_lshl_add_u32 v{t+7}, v{t+1}, 2, s{sM+2}
        global_load_dword v123, v{t+7}, {sp(sM)}
        s_add_u32 s{sM+4}, s{sM}, L_tab-L_pc+4096
        s_addc_u32 s{sM+5}, s{sM+1}, 0
        v_lshlrev_b32 v{vTab}, 4, v0""")
        id_tab = e(f"""
        global_load_dwordx4 {vr(TP,4)}, v{vTab}, {sp(sM+4)} offset:-4096
        global_load_dwordx4 {vr(TP+4,4)}, v{vTab}, {sp(sM+4)}
        v_add_u32 v{vTab}, 8192, v{vTab}
        global_load_dwordx4 {vr(152,4)}, v{vTab}, {sp(sM+4)} offset:-4096
        global_load_dwordx4 {vr(vEX,4)}, v{vTab}, {sp(sM+4)}""")
        e(f"""
        s_and_b32 s{sT+1}, s2, 7
        s_lshl_b32 s{sL}, s{sT+1}, 5
        s_or_b32 s{sL}, s{sL}, s3
        v_lshlrev_b32 v1, 4, v{t+1}
        v_and_b32 v{t+2}, 3, v0
        v_and_b32 v{t+3}, 0xfc, v0
        s_lshl_b32 s{sT+3}, s{sL}, 13
        v_lshl_add_u32 v{t+3}, v{t+3}, 2, s{sT+3}
        v_lshl_add_u32 v{vXO}, v{t+2}, 11, v{t+3}
        v_lshrrev_b32 v{t+4}, 3, v{t+1}
        v_min_u32 v{t+4}, 5, v{t+4}
        v_and_b32 v{t+5}, 0x70, v1
        v_lshl_add_u32 v{t+4}, v{t+4}, 10, v{t+5}
        s_lshl_b32 s{sT+2}, s{sT}, 3
        s_mul_i32 s{sT}, s{sT}, {4*6144}
        s_lshl_b32 s{sT+1}, s{sT+1}, 7
        s_add_u32 s{sT}, s{sT}, s{sT+1}
        s_add_u32 s{sT}, s{sT}, 3072
        v_add_u32 v{t+4}, s{sT}, v{t+4}
        v_add_u32 v{t+5}, 12288, v{t+4}
        s_lshl_b32 s{sT}, s{sL}, 9
        v_lshl_add_u32 v{t+6}, v0, 1, s{sT}
        s_lshl_b32 s{sT+3}, s{sL}, 2
        """)
        for i in range(6): e(f'v_mov_b32 v{AB+i}, 0')
        e('s_waitcnt lgkmcnt(0)')
        self.stamp('karg')
        e(f"""
        s_load_dwordx2 {sp(sT+4)}, {sp(pC)}, s{sT+2}""")
        if not XF1: id_x = e(f'global_load_dwordx4 {vr(XR,4)}, v{vXO}, {sp(pX)}\nglobal_load_dwordx4 {vr(XR+4,4)}, v{vXO}, {sp(pX)} offset:1024')
        id_ep = e(f"""
        s_load_dword s{sT+6}, {sp(pLdt)}, s{sT+3}
        s_load_dword s{sDsk+1}, {sp(pD)}, s{sT+3}
        global_load_dword v2, v{AB}, {sp(pWs)} sc1""")
        for i, ptr in enumerate([pAre,pAim,pBre,pBim,pCre,pCim]):
            id_ab = e(f'global_load_short_d16_hi v{AB+i}, v{t+6}, {sp(ptr)}')
        idm = [0]
        def wm_issue(k_):
            if self.opt('wmat', 1) == k_: idm[0] = e(f"""
            global_load_dwordx4 {vr(WM,4)}, v{t+4}, {sp(pWm)} offset:-3072
            global_load_dwordx4 {vr(WM+4,4)}, v{t+4}, {sp(pWm)} offset:3072
            global_load_dwordx4 {vr(WM+8,4)}, v{t+5}, {sp(pWm)} offset:-3072
            global_load_dwordx4 {vr(WM+12,4)}, v{t+5}, {sp(pWm)} offset:3072""")
        wm_issue(0)
        GR = 144
        u = 92
        e(f"""
        s_mov_b32 s{sMask}, 0xffff0000
        s_mov_b32 s{sLo}, 0x05040100
        s_mov_b32 s{sHi}, 0x07060302
        s_mov_b32 s{sOnes}, 0x3f803f80
        v_mov_b32 v{t+12}, {fbits(-1.4426950408889634)}
        s_add_u32 s{sT+7}, s{sT+3}, s{sW}
        s_min_u32 s{sT}, s{sT+7}, 895
        v_and_b32 v{t+8}, 15, v{t+1}
        s_lshl_b32 s37, s{sT}, 11
        s_mov_b64 s[0:1], {sp(pWd)}
        s_bitcmp1_b32 s{sT}, 0
        s_cselect_b32 s{pWu}, s{pWu}, s{pWg}
        s_cselect_b32 s{pWu+1}, s{pWu+1}, s{pWg+1}
        s_cselect_b32 s{sWs}, 256, 0
        s_bfe_u32 s{sT+1}, s{sT}, 0x40001
        s_lshr_b32 s{sT+2}, s{sT}, 5
        s_mul_i32 s{sT+8}, s{sT+1}, {32*3584}
        s_lshl_b32 s{sT+3}, s{sT+2}, 7
        s_add_u32 s{sT+8}, s{sT+8}, s{sT+3}
        v_lshrrev_b32 v{t+7}, 4, v{t+1}
        v_mul_u32_u24 v{t+7}, {8*3584}, v{t+7}
        v_lshl_add_u32 v{t+10}, v{t+8}, 3, s{sT+8}
        v_add_u32 v{vWgL}, v{t+10}, v{t+7}
        s_lshl_b32 s{sF1o}, s{sT+7}, 7
        s_add_u32 s{sF1o}, s{sF1o}, {F1}
        v_mov_b32 v{u}, 0
        v_mov_b32 v{u+1}, 0
        v_mov_b32 v{u+2}, 0
        v_mov_b32 v{u+3}, 0
        v_lshlrev_b32 v{u+4}, 4, v0
        v_add_u32 v{u+4}, {L_P}, v{u+4}
        s_lshr_b32 s{sCh}, s{sW}, 1
        s_mul_i32 s{sT}, s{sCh}, {USZ-512}
        s_add_u32 s{sT}, s{sT}, {L_U}
        v_lshl_add_u32 v{t+9}, v0, 2, s{sT}
        s_mov_b32 s{sT+9}, {TB}
        """)
        wm_issue(1)
        e(f"""
        ds_write_b128 v{u+4}, {vr(u,4)}
        ds_write_b128 v{u+4}, {vr(u,4)} offset:4096
        ds_write_b128 v{u+4}, {vr(u,4)} offset:8192
        ds_write_b32 v{t+9}, v{u}
        """)
        e(f"""
        s_mov_b32 s40, s{pWs}
        s_mov_b32 s41, s{pWs+1}
        s_mov_b32 s42, {WS_BYTES}
        s_mov_b32 s43, 0x20000
        s_mov_b32 s{sCnt}, {self.opt('cnt', 40000 if self.stamps else 400000)}
        v_mov_b32 v{vInv}, {fbits(1/512)}
        v_mov_b32 v{vInv+1}, {fbits(1e-5)}
        s_mul_i32 s{sT}, s{sL}, {HBLK}
        s_lshl_b32 s{sT+1}, s{sW}, 11
        s_add_u32 s{sT+1}, s{sT}, s{sT+1}
        s_add_u32 s{sT+1}, s{sT+1}, {XH}
        s_lshl_b32 s{sT+2}, s{sT+7}, 9
        s_add_u32 s{sT+2}, s{sT+2}, {MODP}
        s_mov_b32 s{sTag}, 1664525
        s_lshl_b32 s{sT+3}, s{sW}, 10
        s_add_u32 s{sT}, s{sT}, s{sT+3}
        s_add_u32 s{sZs}, s{sT}, {ZY}
        s_add_u32 s{sZs+1}, s{sT}, {ZY+4096}
        s_lshl_b32 s{sZs+3}, s{sL}, 4
        s_add_u32 s{sZs+3}, s{sZs+3}, {MX}
        s_cmp_eq_u32 s{sW}, 0
        s_cselect_b32 s{sZs+2}, s{sZs+3}, {WS_BYTES}
        s_mov_b32 s{sTm}, {TAGM}
        v_lshlrev_b32 v{vTg}, 2, v{t+2}
        v_add_u32 v{vTg+1}, 2, v{vTg}""")
        lateE = [x for x in f"""
        s_lshr_b32 s{sT}, s{sL}, 6
        s_bfe_u32 s{sT+3}, s{sL}, 0x10001
        s_lshl1_add_u32 s{sT}, s{sT}, s{sT+3}
        s_bfe_u32 s{sT+3}, s{sL}, 0x40002
        s_lshl4_add_u32 s{sT}, s{sT}, s{sT+3}
        s_and_b32 s{sT+3}, s{sL}, 1
        s_lshl3_add_u32 s{sT}, s{sT}, s{sT+3}
        s_lshl_b32 s{sT}, s{sT}, 3
        s_add_u32 s{sE1}, s{sT}, {XH}
        s_add_u32 s{sE1+1}, s{sT}, {XH+64*HBLK}
        s_add_u32 s{sE1+2}, s{sT}, {XH+128*HBLK}
        s_add_u32 s{sE1+3}, s{sT}, {XH+192*HBLK}
        s_and_b32 s{sT}, s2, 7
        s_lshl_b32 s{sT}, s{sT}, 10
        s_add_u32 s{sT}, s{sT}, s3
        s_lshl_b32 s{sT}, s{sT}, 6
        s_add_u32 s{sE1+4}, s{sT}, {MODP}
        s_add_u32 s{sE1+5}, s{sT}, {MODP+32768}
        """.split('\n') if x.strip()]
        DF = self.opt('defer', 1)
        if not DF:
            while lateE: e(lateE.pop(0))
        wgq = []; idw = [0]
        for jj in range(8):
            wgq.append(f'global_load_dwordx2 {vr(WG+2*jj,2)}, v{vWgL}, {sp(pWu)} offset:{3584*(jj&1)}' + (f'\nv_add_u32 v{vWgL}, 7168, v{vWgL}' if jj & 1 and jj < 7 else ''))
        def wg_issue(n):
            for _ in range(n):
                if wgq: idw[0] = e(wgq.pop(0))
        WGA = self.opt('wgat', 7)
        wm_issue(2); id_wm = idm[0]
        PFA = self.opt('pfat', 1)
        def wd_pf(r=vPf): e(f'v_and_b32 v{r}, 15, v0\nv_lshl_add_u32 v{r}, v{r}, 7, s37\nglobal_load_dword a223, v{r}, s[0:1]')
        if PFA == 0: wd_pf()
        PF2 = self.opt('pf2', 3); vPf2 = 94; assert PF2 in (-1, 2, 3, 4) and WGA in (0, 1, 5, 6, 7, 8)
        lateK = [x for x in f"""
        s_and_b32 s{sT}, s{sT+7}, 127
        s_mul_i32 s{sT}, s{sT}, 28
        s_bfe_u32 s{sT+3}, s2, {0x10001 if MAP2 == 84 else 0x10000 if MAP2 == 45 else 0}
        s_add_u32 s{sT}, s{sT}, s{sT+3}
        s_lshl_b32 s{sT}, s{sT}, 9
        s_add_u32 s15, s{sT}, 384
        s_lshr_b32 s{sT}, s{sT+7}, 5
        s_lshl_b32 s{sT}, s{sT}, 6
        s_bfe_u32 s{sT+3}, s{sT+7}, 0x40001
        s_add_u32 s{sT}, s{sT}, s{sT+3}
        s_lshl_b32 s{sT}, s{sT}, 11
        s_add_u32 s{sWs}, s{sWs}, s{sT}
        s_add_u32 s{sWs}, s{sWs}, {WGU}
        s_cmp_ge_u32 s{sL}, 224|s_cselect_b32 s{sWs}, {WS_BYTES}, s{sWs}
        s_bfe_u32 s{sT}, s{sL}, {0x10006 if MAP2 == 84 else 0x10005 if MAP2 == 45 else 0x10002}
        s_and_b32 s{sDt}, s{sL}, 3
        s_lshl2_add_u32 s{sDt}, s{sT}, s{sDt}
        s_lshl_b32 s{sT}, s{sDt}, 7
        s_add_u32 s{pWd}, s{pWd}, s{sT}|s_addc_u32 s{pWd+1}, s{pWd+1}, 0
        s_lshl_b32 s{sDmaL}, s{sW}, 13""".split('\n') if x.strip()]
        lateK = [x.replace('|', '\n') for x in lateK]
        assert not DF or (not self.opt('wde', 0) and self.opt('wjn', -1) >= -1)
        def wd_pf2(k_):
            if PF2 == k_: e(f'v_min_u32 v{vPf2}, {13*16}, v1\nv_lshl_add_u32 v{vPf2}, v{vPf2}, 6, s15\nglobal_load_dword a222, v{vPf2}, s[0:1]')
        wd_pf2(0)
        TCH = self.opt('tch', 1); NZ = self.opt('tchz', 8); vTc = 158
        if TCH >= 0:
            e(f"""
            v_and_b32 v{vTc-1}, 7, v0
            v_lshl_add_u32 v{vTc-2}, v{vTc-1}, 7, s{sZs+1}
            s_sub_u32 s{sT}, s{sF1o}, {F1-F3}
            v_cmp_gt_u32 vcc, 2, v{vTc-1}
            v_lshl_add_u32 v{vTc-1}, v{vTc-1}, 19, s{sT}
            v_mov_b32 v{vTc}, s{sZs+3}
            v_cndmask_b32 v{vTc}, v{vTc}, v{vTc-1}, vcc""")
            if self.opt('tchs', 0): e(f"""
            s_lshr_b32 s{sT}, s{sL}, 2
            s_lshl2_add_u32 s{sT}, s{sT}, s{sW}
            s_lshl_b32 s{sT}, s{sT}, 5
            s_and_b32 s{sT+3}, s{sL}, 3
            s_add_u32 s{sT}, s{sT}, s{sT+3}
            s_lshl_b32 s{sT}, s{sT}, 8
            s_add_u32 s{sT}, s{sT}, {H2}
            v_and_b32 v{vTc-1}, 6, v0
            v_cmp_eq_u32 vcc, 2, v{vTc-1}
            v_and_b32 v{vTc-1}, 1, v0
            v_lshl_add_u32 v{vTc-1}, v{vTc-1}, 7, s{sT}
            v_cndmask_b32 v{vTc}, v{vTc}, v{vTc-1}, vcc""")
            e(f"""
            v_cmp_gt_u32 vcc, {NZ*16}, v1
            s_nop 1
            v_cndmask_b32 v{vTc}, v{vTc}, v{vTc-2}, vcc""")
        if self.opt('tchh', -1) >= 0:
            e(f"""
            s_lshr_b32 s{sT}, s{sL}, 2
            s_lshl2_add_u32 s{sT}, s{sT}, s{sW}
            s_lshl_b32 s{sT}, s{sT}, 5
            s_and_b32 s{sT+3}, s{sL}, 3
            s_add_u32 s{sT}, s{sT}, s{sT+3}
            s_lshl_b32 s{sT}, s{sT}, 8
            s_add_u32 s{sT}, s{sT}, {H2}
            v_bfe_u32 v154, v0, 1, 3
            v_lshl_add_u32 v154, v154, 10, s{sT}
            v_and_b32 v153, 1, v0
            v_lshl_add_u32 v154, v153, 7, v154""")
        def touch(k_):
            if self.opt('tchh', -1) == k_: e(f'global_load_dword a220, v154, {sp(pWs)}')
            if TCH == k_: e(f'global_load_dword a221, v{vTc}, {sp(pWs)}')
        touch(0)
        if WGA == 0: wg_issue(8)
        self.stamp('_pretab')
        e(f's_waitcnt {self.wvm(id_tab)}')
        self.stamp('_tab')
        tu = tunpack()
        for x in tu[:16]: e(x)
        lateK += tu[16:]
        if not DF:
            while lateK: e(lateK.pop(0))
        wm_issue(3); id_wm = idm[0]
        sc = sM + 6
        e(f"""
        s_waitcnt lgkmcnt(0)
        s_lshl_b32 s{sc}, s{sT+4}, 16
        s_and_b32 s{sc+1}, s{sT+4}, s{sMask}
        s_lshl_b32 s{sc+2}, s{sT+5}, 16
        s_and_b32 s{sc+3}, s{sT+5}, s{sMask}""")
        self.stamp('_smem')
        for i in range(4): e(f'v_mul_f32 v{t+13+i}, s{sc+i}, v{t+12}')
        e(f"""
        s_lshl_b32 s{sT+4}, s{sCh}, 4
        s_lshr_b32 s{sT+5}, s{sT+6}, s{sT+4}
        s_lshl_b32 s{sT+5}, s{sT+5}, 16""")
        for i in range(4): e(f'v_exp_f32 v{t+13+i}, v{t+13+i}')
        e(f'v_mul_f32 v{vDt}, s{sT+5}, -v{t+12}')
        for i in range(4): e(f'v_add_f32 v{t+13+i}, 1.0, v{t+13+i}')
        e(f'v_exp_f32 v{vDt}, v{vDt}')
        for i in range(4): e(f'v_rcp_f32 v{t+13+i}, v{t+13+i}')
        e(f'v_cvt_pk_bf16_f32 v{vDt}, v{vDt}, v{vDt}')
        for i in range(4): e(f'v_mul_f32 v{t+13+i}, s{sc+i}, v{t+13+i}')
        e(f"""v_lshlrev_b32 v{vDt}, 16, v{vDt}
        v_cvt_pk_bf16_f32 v{vS}, v{t+13}, v{t+14}
        v_cvt_pk_bf16_f32 v{vS+1}, v{t+15}, v{t+16}
        s_lshr_b32 s{sDsk}, s{sDsk+1}, s{sT+4}
        s_lshl_b32 s{sDsk}, s{sDsk}, 16""")
        self.c("---- LN1 of this workgroup's 8 rows -> xhat handed to the channel owners; partial sums of silu(c) @ w_mod")
        self.stamp('_pre_x')
        e(f's_waitcnt {self.wvm(id_x)}')
        self.stamp('x_arrived')
        if PFA == 5: wd_pf()
        if WGA == 5: wg_issue(8)
        XF = 128
        unp = [x for r in range(2) for i in range(4) for x in self.unpack(XF+8*r+2*i, XR+4*r+i)]
        self.stats_partial(XR, t, vSBw, unp)
        unp = self.rest
        MA = 160; MP = 168; MR = 176; MPOS = self.opt('modpos', 1)
        def mod_partial():
            e(f's_waitcnt {self.wvm(id_wm)}')
            self.stamp('_wm')
            for h in range(2):
                for m in range(4):
                    e(f"""v_perm_b32 v{MP+2*m}, v{WM+8*h+4+m}, v{WM+8*h+m}, s{sLo}
                    v_perm_b32 v{MP+1+2*m}, v{WM+8*h+4+m}, v{WM+8*h+m}, s{sHi}""")
                for m in range(8):
                    e(f'v_dot2_f32_bf16 v{MA+m}, v{MP+m}, v{vS+h}, {"0" if h==0 else "v%d"%(MA+m)}')
            e(f'ds_write_b128 v{vMBw}, {vr(MA,4)}')
            if unp: e(unp.pop(0)); e(unp.pop(0))
            e(f'ds_write_b128 v{vMBw}, {vr(MA+4,4)} offset:16')
        def mod_read():
            if MPOS == 1: e('s_waitcnt lgkmcnt(0)\ns_barrier')
            for w in range(0, 4, 2):
                for i in range(3):
                    e(f'ds_read2st64_b32 {vr(MR+3*w+2*i,2)}, v{vMBr} offset0:{8*w+i} offset1:{8*w+8+i}')
            return self.nlg
        def mod_store(i_):
            e(f"""
            s_waitcnt {self.wlg(i_)}
            v_pk_add_f32 {vr(MR,2)}, {vr(MR,2)}, {vr(MR+6,2)}
            v_pk_add_f32 {vr(MR+2,2)}, {vr(MR+2,2)}, {vr(MR+8,2)}
            v_pk_add_f32 {vr(MR+4,2)}, {vr(MR+4,2)}, {vr(MR+10,2)}
            v_mov_b32 v{MR+15}, v2
            v_add_f32 v{MR+12}, v{MR}, v{MR+1}
            v_add_f32 v{MR+13}, v{MR+2}, v{MR+3}
            v_add_f32 v{MR+14}, v{MR+4}, v{MR+5}
            s_mov_b32 exec_hi, 0
            buffer_store_dwordx4 {vr(MR+12,4)}, v1, {SRD}, s{sT+2} offen sc1
            s_mov_b32 exec_hi, -1""")
            self.stamp('_modst')
            if PFA == 1: wd_pf()
            wd_pf2(1)
            touch(1)
            if self.opt('wde', 0):
                assert wslot[0] == 2 and self.opt('modfast', 1); wopen[0] = 0; wd_issue(self.opt('wde', 0))
            if WGA == 1: wg_issue(8)
        if MPOS == 0: mod_partial()
        e(f'v_add_u32 v{t+1}, {L_BD-L_U-512}, v{vUw}\nds_write_b32 v{t+1}, v{vBv}')
        if WGA == 7: wg_issue(8)
        e(f's_waitcnt {self.wvm(id_ep)} lgkmcnt(1)\ns_barrier')
        self.stamp('_bar0')
        ST = 84
        id_st = self.stats_read(ST, vSBr)
        if MPOS == 0: id_mr = mod_read()
        if WGA == 8: wg_issue(8)
        while unp: e(unp.pop(0))
        e(f'v_mul_lo_u32 v{t}, v2, s{sTag}\ns_mov_b32 s{sTag}, 0x15554000\nv_add_u32 v{t}, 1013904223, v{t}\nv_bitop3_b32 v2, v{t}, v2, s{sTag} bitop3:0x72')
        vTP = 26
        e(f"""v_alignbit_b32 v{vTg}, v2, v2, v{vTg}
        v_alignbit_b32 v{vTg+1}, v2, v2, v{vTg+1}
        v_and_b32 v{vTg}, s{sTm}, v{vTg}
        v_and_b32 v{vTg+1}, s{sTm}, v{vTg+1}""")
        e(f's_waitcnt {self.wlg(id_st)}')
        self.stats_finish(ST, vInv, 2.0**-100)
        for i in range(4):
            for r in range(2):
                x = XF+8*r+2*i
                e(f'v_pk_fma_f32 {vr(x,2)}, {vr(x,2)}, {vr(ST+2*r,2)}, {vr(ST+2*r,2)} op_sel:[0,0,1] op_sel_hi:[1,0,1]')
            for r in range(2):
                x = XF+8*r+2*i
                e(f'v_cvt_pk_bf16_f32 v{GR+2*i+r}, v{x}, v{x+1}')
            for r in range(2):
                e(f'v_bfi_b32 v{GR+2*i+r}, s{sTm}, v{vTg+r}, v{GR+2*i+r}')
            if i & 1: e(f'buffer_store_dwordx4 {vr(GR+2*i-2,4)}, v1, {SRD}, s{sT+1} offen offset:{512*(i-1)} sc1')
        self.stamp('e1_stored')
        if WGA == 6: wg_issue(8)
        if MPOS == 1: mod_partial()
        if MPOS == 0: mod_store(id_mr)
        e(f's_waitcnt {self.wvm(id_ab)}\nv_mul_f32 v68, v{vDt}, v{AB}\nv_mov_b32 v{vTP}, v{vTg}\nv_mov_b32 v{vTP+1}, v{vTg+1}')
        wst = [0]
        def wjob_ops(OB=20, nb=2):
            out = []
            for c in range(4):
                O = OB + 4*(c % nb)
                out += [f'v_perm_b32 v{O+m}, v{WG+2*(2*m+1)+(c>>1)}, v{WG+2*(2*m)+(c>>1)}, s{sHi if c&1 else sLo}' for m in range(4)]
                out += [f'v_add_u32 v{O+m}, 0x20002000, v{O+m}' for m in range(2)]
                out.append(f'buffer_store_dwordx4 {vr(O,4)}, v{vWgS}, {SRD}, s{sWs} offen sc1' + (f'\ns_add_u32 s{sWs}, s{sWs}, 32768' if c < 3 else ''))
            return out
        WJN = self.opt('wjn', -1)
        self.c("---- S4 kernel of this workgroup's 2 channels: z = exp(dt*A) per state, powers z^(8r) and C*dB*z^e by complex products,\nK[8r+e] = Re(sum over states) on the matrix unit; lags are the reference's bf16-rounded lags; Dskip enters as the lag-0 tap")
        al, be = 68, 69
        Z1, Z8, Z256, Wc = 70, 72, 74, 76
        q = 78
        e(f"""
        v_mul_f32 v{be}, v{vDt}, v{AB+1}
        v_mul_f32 v{AB+2}, v{vDt}, v{AB+2}
        v_mul_f32 v{AB+3}, v{vDt}, v{AB+3}
        v_mul_f32 v{q}, {fbits(1.4426950408889634)}, v{al}
        v_mul_f32 v{q+1}, 0.15915494, v{be}
        v_mul_f32 v{Wc}, v{AB+4}, v{AB+2}
        v_mul_f32 v{Wc+1}, v{AB+4}, v{AB+3}
        v_mul_f32 v{q+3}, {fbits(8.0)}, v{q}
        v_mul_f32 v{q+4}, {fbits(8.0)}, v{q+1}
        v_mul_f32 v{q+6}, {fbits(256.0)}, v{q}
        v_mul_f32 v{q+7}, {fbits(256.0)}, v{q+1}
        v_fma_f32 v{Wc}, -v{AB+5}, v{AB+3}, v{Wc}
        v_fma_f32 v{Wc+1}, -v{AB+5}, v{AB+2}, -v{Wc+1}
        """)
        MF = self.opt('modfast', 1)
        if MPOS == 1 and MF: id_mr = mod_read()
        for n_ in range(3): e(f'v_exp_f32 v{q+3*n_}, v{q+3*n_}\nv_fract_f32 v{q+3*n_+1}, v{q+3*n_+1}')
        for n_ in range(3): e(f'v_sin_f32 v{q+3*n_+2}, v{q+3*n_+1}\nv_cos_f32 v{q+3*n_+1}, v{q+3*n_+1}')
        if MPOS == 1 and MF: mod_store(id_mr)
        e(f'v_and_b32 v87, 127, v0\nv_cmp_eq_u32 vcc, 0, v87')
        for n_, (Z, conj) in enumerate([(Z1,True),(Z8,False),(Z256,True)]):
            e(f'v_mul_f32 v{Z}, v{q+3*n_}, v{q+3*n_+1}\nv_mul_f32 v{Z+1}, {"-" if conj else ""}v{q+3*n_}, v{q+3*n_+2}')
        e(f'v_readfirstlane_b32 s{sT}, v{vRW}')
        if MPOS == 1 and not MF: id_mr = mod_read()
        e(f's_mov_b32 m0, s{sT}'); self.m0 = None
        def put(src, row, pk):
            return [f'v_cvt_pk_bf16_f32 v{pk}, v{src}, v{src+1}', f'ds_write_addtid_b32 v{pk} offset:{row*RST}' if self.opt('addtid', 1) else f'ds_write_b32 v{vRW}, v{pk} offset:{row*RST}']
        Z16 = 78
        R0 = [[f'v_mov_b32 v88, 0x3f80', f'ds_write_b32 v{vRW}, v88'], self.cmul(Z16, Z8, Z8) + put(Z16, 2, 88)]
        R1 = [put(Z8, 1, 84), []]
        cur = [Z16, Z8]; bufs = [[80, 82], [90, 92]]
        for rho in range(3, 32):
            par = rho & 1
            d = bufs[par][(rho >> 1) & 1]
            (R1 if par else R0).append(self.cmul(d, cur[par], Z16) + put(d, rho, 84 if par else 88)); cur[par] = d
        Cq = [put(Wc, 32, 89)]
        cr = {0: Wc}
        reg = {1:110, 2:94, 3:110, 4:96, 5:110, 6:98, 7:110, 8:100}
        for ee in range(1, 9):
            Cq.append(self.cmul(reg[ee], cr[ee-1], Z1) + (put(reg[ee], 32+ee, 89) if ee < 8 else [])); cr[ee] = reg[ee]
        chain = [(264,8,44,102),(520,264,46,104),(776,520,48,102),(1032,776,49,104),(1288,1032,50,102),(1544,1288,51,104),(1800,1544,52,102)]
        for ee, src, row, d in chain:
            Cq.append(self.cmul(d, cr[src], Z256) + put(d, row, 89)); cr[ee] = d
        side = [(260,4,42,106),(516,260,45,108),(772,516,47,106)]
        for ee, src, row, d in side:
            R0.append(self.cmul(d, cr[src], Z256) + put(d, row, 88)); cr[ee] = d
        R1.append(self.cmul(90, cr[0], Z256) + put(90, 40, 84))
        R1.append(self.cmul(92, cr[2], Z256) + put(92, 41, 84))
        Cq.append(self.cmul(110, cr[6], Z256) + put(110, 43, 89))
        KD = 12
        Cq.append([f'v_mov_b32 v{KD+1}, s{sDsk}', f'v_mov_b32 v{KD+2}, 0', f'v_cndmask_b32 v{KD}, 0, v{KD+1}, vcc', f'v_mov_b32 v{KD+1}, 0'])
        Cq.append([f'v_mov_b32 v{KD+3}, 0', f'v_mul_f32 v{vBv}, {fbits(2.0**36)}, v{vOne}', f'v_max_f32 v{vBv}, {fbits(2.0**-64)}, v{vBv}'])
        EX = 28; EG = 68
        e1m = '\n'.join(f'buffer_load_dwordx4 {vr(EG+16+4*i,4)}, v{vEM}, {SRD}, s{sE1+4+i} offen sc1' for i in range(2))
        e1x = '\n'.join(f'buffer_load_dwordx2 {vr(EX+2*i,2)}, v{vEX}, {SRD}, s{sE1+i} offen sc1' for i in range(4))
        e1_loads = e1x + '\n' + e1m
        E1AT = self.opt('e1at', 1); E1M = self.opt('e1m', 1); ide = [0]
        def e1_issue(k_):
            if E1AT == k_: ide[0] = e(e1x)
            if max(E1M, E1AT, 0) == k_: ide[0] = e(e1m)
        for n_ in range(max(len(R0), len(R1), len(Cq))):
            if E1AT == -n_ and n_:
                while lateE: e(lateE.pop(0))
                e1_issue(-n_)
            st = [a_[n_] if n_ < len(a_) else [] for a_ in (R0, R1, Cq)]
            for j in range(4):
                for a_ in st:
                    if j < len(a_): e(a_[j])
            if n_ == 1 and MPOS == 1 and not MF: mod_store(id_mr)
            if WJN <= -2 and n_ == -WJN-1:
                e(f's_waitcnt {self.wvm(idw[0])}')
                for x in wjob_ops(128): wst[0] = e(x)
        self.stamp('kgen1')
        e('s_waitcnt lgkmcnt(0)')
        if max(E1AT, 0) == 0:
            while lateE: e(lateE.pop(0))
        e1_issue(0)
        e('s_barrier')
        self.stamp('_kbar1')
        KF = 160
        kf_id = []
        KL = self.opt('kl', 4)
        def kread(kk, j):
            e(f'ds_read_b128 {vr(KF+12*kk+4*j,4)}, v{(vKa,vKb0,vKb1)[j]} offset:{(0,32*RST,44*RST)[j]+64*kk}')
            if j == 2: kf_id.append(self.nlg)
        for kk in range(KL):
            for j in range(3):
                kread(kk, j)
                for _ in range(2):
                    if lateE: e(lateE.pop(0))
        while lateE: e(lateE.pop(0))
        e1_issue(1)
        for kk in range(8):
            e(f's_waitcnt {self.wlg(kf_id[kk])}')
            for cb in range(2):
                e(f'v_mfma_f32_16x16x32_bf16 {vr(KD+4*cb,4)}, {vr(KF+12*kk,4)}, {vr(KF+12*kk+4+4*cb,4)}, {"0" if kk==0 and cb==1 else vr(KD+4*cb,4)}')
                if kk + KL < 8:
                    for j in ((0,1),(2,))[cb]: kread(kk+KL, j)
                for _ in range(2):
                    if lateK: e(lateK.pop(0))
        while lateK: e(lateK.pop(0))
        e1_issue(2)
        if PFA == 2: wd_pf(94)
        wd_pf2(2)
        touch(2)
        if self.opt('wde2', 0):
            assert wslot[0] == 2; wopen[0] = 0; wd_issue(self.opt('wde2', 0))
        if WGA == 2: wg_issue(8)
        AN = 128; AX = 160; T2 = 192; T3 = 204; BND = 196; SF2 = 208; SF3 = 232; SD = 240; US = 72
        e(f"""
        ds_read2_b32 {vr(BND,2)}, v{vBd} offset0:6 offset1:4
        ds_read2_b32 {vr(BND+2,2)}, v{vBd} offset0:2 offset1:0
        ds_read2_b32 {vr(BND+4,2)}, v{vBd} offset0:70 offset1:68
        ds_read2_b32 {vr(BND+6,2)}, v{vBd} offset0:66 offset1:64
        ds_read2_b32 {vr(BND+8,2)}, v{vBd2} offset0:134 offset1:132
        ds_read2_b32 {vr(BND+10,2)}, v{vBd2} offset0:130 offset1:128""")
        for cb in range(2):
            for j in range(2):
                e(f'v_cvt_pk_bf16_f32 v{KD+8+2*cb+j}, v{KD+4*cb+2*j}, v{KD+4*cb+2*j+1}')
        def scat(cb, j):
            va = (vKw0, vKw1)[cb]; off = 32*j if cb == 0 else (j&1)*928 + (j>>1)*4
            op = 'ds_write_b16_d16_hi' if j & 1 else 'ds_write_b16'
            e(f'{op} v{va}, v{KD+8+2*cb+(j>>1)} offset:{off}\n{op} v{va}, v{KD+8+2*cb+(j>>1)} offset:{off+6}')
        for j in range(4): scat(0, j)
        scat(1, 3)
        e('s_mov_b32 exec_lo, 0x00ff00ff\ns_mov_b32 exec_hi, 0x00ff00ff')
        for j in range(3): scat(1, j)
        e('s_mov_b64 exec, -1')
        e1_issue(3); id_e1 = ide[0]
        self.stamp('kgen2')
        self.c('---- Toeplitz operands of K, gate/up re-layout (k-contiguous fragments), arrival of xhat / modulation, u = ga*(xhat*(1+ca)+sa)')
        def rd2(d, va, o): return [f'ds_read2_b32 {vr(d,2)}, v{va} offset0:{o+6} offset1:{o+4}', f'ds_read2_b32 {vr(d+2,2)}, v{va} offset0:{o+2} offset1:{o}']
        def rq2(d, o0, o1): return [f'ds_read2_b32 {ar(d,2)}, v{vQ} offset0:{o0} offset1:{o0-2}', f'ds_read2_b32 {ar(d+2,2)}, v{vQ} offset0:{o1} offset1:{o1-2}']
        vPA1 = 55
        reads = {}
        for be_ in range(6): reads[('u', be_)] = (US+4*be_, [f'ds_read_b128 {vr(US+4*be_,4)}, v{vUS} offset:{512*be_}'])
        for jq in range(4):
            for J in range(2): reads[('a', jq, J)] = (AN+8*jq+4*J, rd2(AN+8*jq+4*J, vPA1 if J else vPA, 32*jq))
        reads[('x', 16)] = (AX, rd2(AX, vPX, 0)); reads[('x', 32)] = (AX+4, rd2(AX+4, vPX, 48))
        for d_ in (2,3,4): reads[('t2', d_)] = (T2+4*(d_-2), rq2(T2+4*(d_-2), 16*d_-28, 64+16*d_-28))
        for d_ in (4,5,6,7): reads[('t3', d_)] = (T3+4*(d_-4), rq2(T3+4*(d_-4), 128+16*d_-44, 128+16*d_-60))
        pre = set(); wjs = []; kq = []
        e(f'v_add_u32 v{vPA1}, 1024, v{vPA}')
        if self.opt('kpre', 1):
            e('s_waitcnt lgkmcnt(0)\ns_barrier')
            for o in reads:
                if o[0] != 'u':
                    kq.extend(reads[o][1]); pre.add(o)
            for _ in range(self.opt('kq0', 8)): e(kq.pop(0))
        kqn = [0]
        if WJN == -1 and self.opt('wjpre', 4):
            e(f's_waitcnt {self.wvm(idw[0])}')
            for x in wjob_ops(168 if self.opt('wjpre', 4) < 4 else 216, 4):
                if x.startswith('buffer_') and self.opt('wjpre', 4) != 3: wjs.append(x)
                else:
                    wst[0] = e(x); kqn[0] += 1
                    if kq and kqn[0] % self.opt('kqp', 1) == 0: e(kq.pop(0))
        XC = EG+8
        self.stamp('_prechk')
        e(f's_waitcnt {self.wvm(id_e1)}\nL_e1chk:')
        for i in range(8): e(f'v_xor_b32 v{XC+i}, v{EX+i}, v{vTP+(i&1)}')
        e(f"""
        v_cmp_ne_u32 {sp(sBad)}, v{EG+19}, v2
        v_or3_b32 v92, v{XC}, v{XC+1}, v{XC+2}
        v_or3_b32 v93, v{XC+3}, v{XC+4}, v{XC+5}
        v_cmp_ne_u32 vcc, v{EG+23}, v2
        v_or3_b32 v92, v92, v{XC+6}, v{XC+7}
        s_or_b64 {sp(sBad)}, {sp(sBad)}, vcc
        v_bitop3_b32 v92, v92, v93, s{sTm} bitop3:0xa8
        v_cmp_ne_u32 vcc, 0, v92
        s_or_b64 {sp(sBad)}, {sp(sBad)}, vcc
        s_cbranch_scc1 L_e1retry""")
        self.tail.append(f"""L_e1retry:
        s_sub_u32 s{sCnt}, s{sCnt}, 1
        s_cbranch_scc1 L_end
        s_wqm_b64 exec, {sp(sBad)}
        {e1_loads}
        s_mov_b64 exec, -1
        s_waitcnt vmcnt(0)
        s_branch L_e1chk""")
        self.stamp('e1_ok')
        if PFA == 3: wd_pf(94)
        wd_pf2(3)
        touch(3)
        if self.opt('wjpre', 4) == 2:
            while wjs: wst[0] = e(wjs.pop(0))
        if WGA == 3: wg_issue(8)
        g0 = 28; HF = 96
        e(f"""
        v_add_f32 v{g0}, v{EG+16}, v{EG+20}
        v_add_f32 v{g0+1}, v{EG+17}, v{EG+21}
        v_add_f32 v{g0+2}, v{EG+18}, v{EG+22}
        v_mov_b32 v{g0+3}, 0""")
        unp = []
        for i in range(4):
            unp += [f'v_lshlrev_b32 v{HF+4*i}, 16, v{XC+2*i}', f'v_lshlrev_b32 v{HF+4*i+1}, 16, v{XC+2*i+1}',
                    f'v_and_b32 v{HF+4*i+2}, s{sMask}, v{XC+2*i}', f'v_and_b32 v{HF+4*i+3}, s{sMask}, v{XC+2*i+1}']
        mix = []
        for x in unp:
            if kq: x += '\n' + kq.pop(0)
            mix.append(x)
        self.reduce4(g0, g0+1, g0+2, g0+3, mix)
        unp = self.rest + kq
        e(f"""
        v_cvt_pk_bf16_f32 v{g0}, v{g0}, v{g0}
        v_and_b32 v{g0}, s{sMask}, v{g0}
        v_add_f32 v{g0+1}, v{g0}, v{vOne}
        v_readlane_b32 s{sM+4}, v{g0}, 16
        v_readlane_b32 s{sM+5}, v{g0}, 17
        v_cvt_pk_bf16_f32 v{g0}, v{g0+1}, v{g0+1}
        v_and_b32 v{g0}, s{sMask}, v{g0}
        v_mul_f32 v{g0+3}, v{vBv}, v{g0}
        v_mul_f32 v{g0+1}, s{sM+4}, v{g0+3}
        v_mul_f32 v{g0+2}, s{sM+5}, v{g0+3}
        v_readlane_b32 s{sM}, v{g0+1}, 32
        v_readlane_b32 s{sM+1}, v{g0+1}, 0
        v_readlane_b32 s{sM+2}, v{g0+2}, 33
        v_readlane_b32 s{sM+3}, v{g0+2}, 1""")
        for x in unp: e(x)
        for i in range(4):
            for ch in range(2):
                h = HF+4*i+2*ch
                e(f'v_pk_fma_f32 {vr(h,2)}, {vr(h,2)}, {sp(sM+2*ch)}, {sp(sM+2*ch)} op_sel:[0,0,1] op_sel_hi:[1,0,1]')
            for ch in range(2):
                h = HF+4*i+2*ch
                e(f'v_cvt_pk_bf16_f32 v{g0+2+ch}, v{h}, v{h+1}\nds_write_b32 v{vUw}, v{g0+2+ch} offset:{ch*USZ+1024*i}')
        while wjs and self.opt('wjpre', 4) < 4: wst[0] = e(wjs.pop(0))
        if WJN == -1 and not self.opt('wjpre', 4):
            e(f's_waitcnt {self.wvm(idw[0])}')
            for x in wjob_ops(): wst[0] = e(x)
        e('s_waitcnt lgkmcnt(0)\ns_barrier')
        self.stamp('u_ready')
        wopen[0] = 2
        if PFA == 4: wd_pf(94)
        wd_pf2(4)
        self.c('---- causal convolution: lags 0..514 at full resolution, the piecewise-constant lags beyond on window sums of u; z = ga*y to the row owners')
        F1P = self.opt('f1p', 0); vP1 = 54; vPolled = 55; rt = 70
        f1_load = f'buffer_load_dword v{vPolled}, v{vP1}, {SRD}, 0 offen sc1'
        def roles():
            e(f"""
            s_bfe_u32 s1, s{sL}, 0x30002
            s_lshr_b32 s0, s{sL}, 7
            s_lshl3_add_u32 s{sMt}, s0, s1
            s_bfe_u32 s0, s{sL}, {0x10005 if MAP2 == 84 else 0x20005}
            s_and_b32 s1, s{sMt}, {15 if MAP2 == 84 else 14}
            s_lshl1_add_u32 s{sTb}, s1, s0
            s_bfe_u32 s0, s{sL}, 0x20005
            s_and_b32 s1, s{sL}, 3
            s_lshl2_add_u32 s{sNt}, s0, s1
            """)
            if MAP2 in (44, 45): e(f"""
            s_lshr_b32 s0, s{sL}, 6
            s_bfe_u32 s1, s{sL}, 0x20003
            s_lshl2_add_u32 s{sMt}, s0, s1
            s_bfe_u32 s0, s{sL}, 0x10005
            s_and_b32 s1, s{sL}, 7
            s_lshl3_add_u32 s{sNt}, s0, s1
            s_bfe_u32 s0, s{sL}, {0x10005 if MAP2 == 44 else 0x10002}
            s_lshl1_add_u32 s{sTb}, s{sMt}, s0""")
            e(f"""
            s_mul_i32 s0, s{sNt}, 7
            s_lshr_b32 s0, s0, 2
            v_bfe_u32 v{rt}, v0, 3, 3
            v_min_u32 v{rt}, 2, v{rt}
            v_add_u32 v{rt}, s0, v{rt}
            v_min_u32 v{rt}, 27, v{rt}
            v_and_b32 v{rt+1}, 7, v0
            v_lshl_add_u32 v{rt}, v{rt}, 5, v{rt+1}
            s_lshl_b32 s0, s{sW}, 10
            s_add_u32 s0, s0, {F1}
            v_lshl_add_u32 v{vP1}, v{rt}, 7, s0""")
            e(f"""
            s_mul_i32 s{sDmaG}, s{sNt}, {7*32768}
            s_add_u32 s{sDmaG}, s{sDmaG}, s{sDmaL}
            s_add_u32 s{sDmaG}, s{sDmaG}, {WGU}""")
        assert pre
        ACC = 224; ZG = 12
        BR = [96,100,104,108,116,120,168,172,176,180,184,188]
        F1N = self.opt('f1n', 200)
        def f1_publish(): e(f's_waitcnt {self.wvm(wst[0])}\n' + self.flag_text(vF, sF1o))
        for m in range(8):
            for jq in range(4):
                r_ = BR[(4*m+jq) % len(BR)]
                reads[('b', m, jq)] = (r_, [f'ds_read_b128 {vr(r_,4)}, v{vUB} offset:{512*m+192-64*jq}'])
        ops = []
        S = lambda nm, be_: ops.append(('S', (nm, be_), ('u', be_), ('bnd', nm)))
        def near(m, Js):
            for jq in range(4):
                for J in Js: ops.append(('M', m+J, ('a', jq, J), ('b', m, jq)))
        def far(cb):
            ops.append(('M', cb, ('x', 16), ('u', cb-2)))
            if cb >= 4: ops.append(('M', cb, ('x', 32), ('u', cb-4)))
            for d_ in (4,3,2):
                if cb-d_ >= 0: ops.append(('M', cb, ('s2', cb-d_), ('t2', d_)))
            if cb >= 4: ops.append(('M', cb, ('s3', 0), ('t3', cb)))
            if cb >= 6: ops.append(('M', cb, ('s3', 1), ('t3', cb-2)))
        S('a',0); S('b',0); S('a',1); S('b',1)
        near(0,(0,1)); near(1,(0,1)); far(2); S('c',0); S('c',1); near(2,(0,1)); S('a',2); S('b',2); far(3); near(3,(0,))
        S('a',3); S('b',3); near(3,(1,)); far(4); near(4,(0,1)); far(5); near(5,(0,))
        S('a',4); S('b',4); S('c',2); S('c',3); near(5,(1,)); S('a',5); S('b',5); near(6,(0,1)); far(6); near(7,(0,)); far(7)
        assert len(ops) == 107
        def opreg(o):
            if o[0] == 'bnd': return BND + 4*'abc'.index(o[1])
            if o[0] == 's2': return SF2 + 4*o[1]
            if o[0] == 's3': return SF3 + 4*o[1]
            return reads[o][0]
        firstuse = {}; lastuse = {}; accdone = {}
        for n, (kd, dst, oa, ob) in enumerate(ops):
            for o in (oa, ob): firstuse.setdefault(o, n); lastuse[o] = n
            if kd == 'M': accdone[dst] = n
        rq = []
        for o in sorted(reads, key=lambda o: firstuse[o]):
            early = -1
            if o[0] == 'b' and 4*o[1]+o[2] >= len(BR):
                idx = 4*o[1]+o[2]-len(BR); early = lastuse[('b', idx//4, idx%4)] + 1
            if o not in pre:
                for x in reads[o][1]: rq.append((early, o, x))
        rid = {o: 0 for o in pre}
        def popread():
            _, o, x = rq.pop(0); e(x)
            if not any(o2 == o for _, o2, _ in rq): rid[o] = self.nlg
        for _ in range(self.opt('cpre', 8 if pre else 14)): popread()
        if F1P < 0: roles()
        tq = 69
        fill = [f's_bitcmp1_b32 s{sL}, 1\ns_cselect_b32 s{sT}, 1.0, {fbits(2.0**-64)}', f'v_mul_f32 v{g0+1}, s{sT}, v{g0}']
        fill += [f'v_readlane_b32 s{sM+6+n_}, v{g0+(n_<4)}, {ln}' for n_, ln in list(enumerate([34,35,2,3,18,19]))[::-1]]
        TZ = 16; XE = 52; vYr1 = 64
        fill += f"""v_and_b32 v{tq}, 3, v0
        s_pack_hh_b32_b16 s{sT}, s{sM+6}, s{sM+7}
        s_pack_hh_b32_b16 s{sT+1}, s{sM+8}, s{sM+9}
        s_pack_hh_b32_b16 s{sT+2}, s{sM+10}, s{sM+11}
        v_lshlrev_b32 v{tq}, 2, v{tq}
        s_mov_b32 s{sTm}, {TAGZ}
        v_alignbit_b32 v{tq}, v2, v2, v{tq}
        v_xor_b32 v{vYr1}, 32, v{vYr}
        v_add_u32 v{vTw}, 65536, v{vTr}
        v_and_b32 v{TZ}, s{sTm}, v{tq}
        v_alignbit_b32 v{TZ+1}, v{tq}, v{tq}, 1
        v_alignbit_b32 v{TZ+2}, v{tq}, v{tq}, 2
        v_alignbit_b32 v{TZ+3}, v{tq}, v{tq}, 3
        v_and_b32 v{TZ+1}, s{sTm}, v{TZ+1}
        v_and_b32 v{TZ+2}, s{sTm}, v{TZ+2}
        v_and_b32 v{TZ+3}, s{sTm}, v{TZ+3}
        v_mov_b32 v192, s{sT}
        v_mov_b32 v193, s{sT+1}
        v_mov_b32 v194, s{sT+2}
        v_mov_b32 v195, v2""".split('\n')
        stages = {'a': [(0,),(1,)], 'n': [(0,1)]}[self.opt('stages', 'a')]
        wr_id = {}; cq = []; sq = []; sdone = {}; nsd = 0; stage = 0; done_w = 0; waited = 0
        zst = {}
        def stage_ops(sg, final):
            out = []
            regs = {(k_, j): ([28, SD][j] if not final else 72+16*n_+8*j) for n_, k_ in enumerate(sg) for j in range(2)}
            for k_ in sg:
                for j in range(2):
                    for pw in range(4): out.append(('rd', (k_,j), f'ds_read_b64 {vr(regs[(k_,j)]+2*pw,2)}, v{vYr1 if j else vYr} offset:{8192*pw+4096*k_}'))
            for k_ in sg:
                for j in range(2):
                    y = regs[(k_,j)]; i = (k_,j)
                    out.append(('wait', i, None))
                    if final:
                        out += [('v', i, f'v_pk_add_f32 {vr(y+4*ch,2)}, {vr(y+4*ch,2)}, {vr(y+4*ch+2,2)}') for ch in range(2)]
                    else:
                        out += [('v', i, f'v_add_f32 v{y+4*ch+r}, v{y+4*ch+r}, v{y+4*ch+2+r}') for r in range(2) for ch in range(2)]
                    out += [('v', i, f'v_cvt_pk_bf16_f32 v{ZG+2*j+r}, v{y+r}, v{y+4+r}') for r in range(2)]
                    out += [('v', i, f'v_bfi_b32 v{ZG+2*j+r}, s{sTm}, v{TZ+2*j+r}, v{ZG+2*j+r}') for r in range(2)]
                x = f'buffer_store_dwordx4 {vr(ZG,4)}, v1, {SRD}, s{sZs+k_} offen sc1'
                if k_ == 0: x += f'\ns_mov_b64 exec, 1\nbuffer_store_dwordx4 v[192:195], v1, {SRD}, s{sZs+2} offen sc1\ns_mov_b64 exec, -1'
                out.append(('st', k_, x))
            return out
        y_id = {}; ride = [0]; pub = []
        def popstage():
            nonlocal waited
            kd, i, x = sq.pop(0)
            if kd == 'wait':
                e(f's_waitcnt {self.wlg(y_id[i])}'); waited = max(waited, y_id[i])
            else:
                r_ = e(x)
                if kd == 'rd': y_id[i] = self.nlg
                if kd == 'st':
                    zst[i] = r_
                    if not sq:
                        ride[0] = self.opt('ride', 0)
                        pub.append(1)
                        if F1N == 199 + len(pub): f1_publish()
        seen = set(); hold = 0; accpos = {}; wj = []
        for n, (kd, dst, oa, ob) in enumerate(ops):
            if n in (1, 27, 54, 81): self.stamp(f'_c{n}')
            for o in (oa, ob):
                while o in reads and o not in rid: popread()
                if o[0] in ('s2', 's3'):
                    while any(tg == o for _, tg, _ in cq): e(cq.pop(0)[2])
            need = max(rid.get(oa, 0), rid.get(ob, 0))
            if need > waited:
                e(f's_waitcnt {self.wlg(need)}'); waited = max(need, self.nlg - 14)
            if kd == 'S':
                d = SD + 4*(nsd % 4); nsd += 1
                while any(f'v{d},' in x or x.endswith(f'v{d+3}') for _, _, x in cq): e(cq.pop(0)[2])
                while any(k_ != 'st' for k_, _, _ in sq): popstage()
                e(f'v_mfma_f32_16x16x32_bf16 {vr(d,4)}, {vr(opreg(oa),4)}, {vr(opreg(ob),4)}, 0')
                nm, be_ = dst
                tg = ('s2', be_) if nm != 'c' else ('s3', be_ >> 1)
                o_ = opreg(tg) + (2*'ab'.index(nm) if nm != 'c' else 2*(be_ & 1))
                cq += [(len(p.text), tg, f'v_cvt_pk_bf16_f32 v{o_+j}, v{d+2*j}, v{d+2*j+1}') for j in range(2)]
            else:
                c_ = ar(ACC+4*dst,4) if dst in seen else '0'; seen.add(dst)
                e(f'v_mfma_f32_16x16x32_bf16 {ar(ACC+4*dst,4)}, {vr(opreg(oa),4)}, {(ar if ob[0][0] == "t" else vr)(opreg(ob),4)}, {c_}')
                if accdone[dst] == n: accpos[dst] = len(p.text)
            budget = 2
            if wjs and n >= self.opt('wsn', 4) + (4-len(wjs))*self.opt('wss', 3):
                assert n < 30; wst[0] = e(wjs.pop(0)); budget = 1
            elif n == F1N: f1_publish(); budget = 0
            elif n == -F1P and F1P < 0: id_f1 = e(f1_load); budget = 1
            elif n % self.opt('wd_pace', 6) == 1 and self.opt('wd_first', 0) <= n <= self.opt('wd_last', 100) and wd_can(): wd_issue(1); budget = 1
            elif ride[0] > 0 and n % 2 == 0 and wd_can(): wd_issue(1); budget = 1; ride[0] -= 1
            if n == WJN: e(f's_waitcnt {self.wvm(idw[0])}'); wj = wjob_ops()
            if stage < len(stages)-1 and done_w > 4*stages[stage][-1]+3 and n >= wr_n + 3 and not sq:
                while fill: e(fill.pop(0))
                while cq: e(cq.pop(0)[2])
                e(f's_waitcnt {self.wlg(wr_id[done_w-1])}\ns_barrier'); waited = max(waited, wr_id[done_w-1])
                sq = stage_ops(stages[stage], False); stage += 1; budget = 0
            while budget > 0:
                budget -= 1
                if rq and rq[0][0] <= n and firstuse[rq[0][1]] <= n + self.opt('cla', 20): popread()
                elif cq and len(p.text) - cq[0][0] >= 8: e(cq.pop(0)[2])
                elif done_w in accpos and len(p.text) - accpos[done_w] >= 8:
                    e(f'ds_write_b128 v{vYw}, {ar(ACC+4*done_w,4)} offset:{1024*done_w}'); wr_id[done_w] = self.nlg; wr_n = n; done_w += 1
                elif sq and not (sq[0][0] == 'wait' and hold > n):
                    if sq[0][0] == 'rd': hold = n + 4
                    popstage()
                elif fill: e(fill.pop(0))
                elif wj: wst[0] = e(wj.pop(0))
                elif rq and rq[0][0] <= n: popread()
                elif self.opt('trconv', 0) and tr_ready(8): tr_pop()
        assert not rq and not cq and not wj and stage == len(stages)-1
        while sq: popstage()
        for x in fill: e(x)
        self.stamp('conv')
        while done_w < 8:
            e(f'ds_write_b128 v{vYw}, {ar(ACC+4*done_w,4)} offset:{1024*done_w}'); done_w += 1
        e('s_waitcnt lgkmcnt(0)\ns_barrier')
        sq = stage_ops(stages[-1], True)
        while sq: popstage()
        id_z = self.nvm
        if F1N == 107: f1_publish()
        self.stamp('z_stored')
        if F1P >= 0: roles()
        if F1P == 0: id_f1 = e(f1_load)
        dq = [x for i in range(5) for x in self.dma_tile(i,i)]
        f1ok = [False]; maxt = [2]
        def bg_issue(n):
            for _ in range(n):
                if wd_can() and wdq[0][0] <= 2: wd_one()
                elif f1ok[0] and dq[0][0] <= 2: tile_one(dq)
                else: wd_issue(1)
        def bg(name, nT, nL):
            v = self.opt(name, None)
            if v is not None: nT, nL = v // 100, v % 100
            done = 0
            for i in range(nT):
                k_ = (nL*(i+1) + nT-1)//nT - done; bg_issue(k_); done += k_
                tr_do(1)
            bg_issue(nL - done)
        if F1P < 0: self.check(f1_load, [vPolled], id_f1); f1ok[0] = True
        bg('b_zack', 4, 9)
        self.c("---- x2 = x + z, LN2 and modulation of this workgroup's 8 rows -> h2 fragments; weights stream into LDS / AGPRs in the waits")
        XF = 36
        for r in range(2):
            for i in range(4):
                for x in self.unpack(XF+8*r+2*i, XR+4*r+i): e(x)
        TH = 66; TX = 14; vZ = 28; vH2 = 29; ZI = 72; vMsk = 30
        vP2 = 24; vXa = 25; vA2 = 26; vA4 = 27; vP3 = 23; vX2 = 22; vAc1 = 21
        c1 = -2*1.4426950408889634*0.7978845608028654; c2 = c1*0.044715
        gs = (-c2)**(1/3); sGk, sGs = 30, 31
        e(f'''
        v_and_b32 v{t}, 0xfc, v0
        v_and_b32 v{t+2}, 0x30, v1
        s_movk_i32 s{sT}, {HBLK}
        v_mad_u32_u24 v{vZ}, v{t}, s{sT}, v{t+2}
        s_lshr_b32 s{sT}, s{sL}, 1
        s_lshl_b32 s{sT}, s{sT}, 6
        s_add_u32 s{sT}, s{sT}, {ZY}
        s_add_u32 s{sT+1}, s{sT}, {HBLK}
        s_add_u32 s{sT+2}, s{sT}, {2*HBLK}
        s_add_u32 s{sT+3}, s{sT}, {3*HBLK}
        s_lshl_b32 s{sT+8}, s{sW}, 10
        s_add_u32 s{sT+8}, s{sT+8}, {MX}
        s_bitcmp1_b32 s{sL}, 0
        s_cselect_b32 s{sLo}, 0x04040000, 0
        s_add_u32 s{sHi}, s{sLo}, 0x03020c0c
        s_add_u32 s{sLo}, s{sLo}, 0x01000c0c
        s_mov_b32 s{sM}, {fbits(2.0**64)}
        v_lshrrev_b32 v{t}, 3, v0
        v_and_b32 v{t+1}, 0x70, v1
        v_lshl_add_u32 v{vH2}, v{t}, 10, v{t+1}
        s_lshr_b32 s{sT+4}, s{sL}, 2
        s_lshl_b32 s{sT+4}, s{sT+4}, 7
        s_and_b32 s{sT+5}, s{sL}, 3
        s_add_u32 s{sT+4}, s{sT+4}, s{sT+5}
        s_lshl_b32 s{sT+4}, s{sT+4}, 8
        s_add_u32 s{sT+4}, s{sT+4}, {H2}
        s_mov_b32 s{sT+5}, {X2}
        v_mov_b32 v{vMsk}, s{sMask}
        s_lshl2_add_u32 s0, s{sMt}, s{sW}
        s_lshl_b32 s{sXg}, s0, 15
        s_add_u32 s{sXg}, s{sXg}, {H2}
        s_lshl4_add_u32 s0, s0, s{sNt}
        s_mul_i32 s0, s0, {7*1024}
        s_add_u32 s{sActS}, s0, {ACT}
        s_add_u32 s{sActS+1}, s0, {ACT+4096}
        s_sub_u32 s{sF3o}, s{sF1o}, {F1-F3}
        s_lshl3_add_u32 s0, s{sTb}, s{sW}
        s_mul_i32 s0, s0, {28*1024}
        s_add_u32 s{sActG}, s0, {ACT}
        s_waitcnt {self.wvm(id_z)}''')
        self.stamp('_zack')
        if F1N == 108: f1_publish()
        z_loads = '\n'.join(f'buffer_load_dwordx4 {vr(ZI+4*i,4)}, v{vZ}, {SRD}, s{sT+i} offen sc1' for i in range(4))
        XG = 32
        z_loads += f'\nbuffer_load_dwordx4 {vr(XG,4)}, v1, {SRD}, s{sT+8} offen sc1'
        id_zl = e(z_loads)
        if F1P == 0:
            self.check(f1_load, [vPolled], id_f1); f1ok[0] = True
        elif F1P == 1: id_f1 = e(f1_load)
        bg('b_zld', 4, 0)
        bg('b_zld2', 0, 6)
        e(f'''
        v_lshrrev_b32 v{TH}, 3, v{t+1}
        v_alignbit_b32 v{TH}, v2, v2, v{TH}
        v_alignbit_b32 v{TH+1}, v{TH}, v{TH}, 1
        v_and_b32 v{TH}, s{sTm}, v{TH}
        v_and_b32 v{TH+1}, s{sTm}, v{TH+1}
        v_bfe_u32 v{t}, v0, 2, 3
        v_bfe_u32 v{t+3}, v0, 5, 1
        v_lshl_add_u32 v{t+2}, v{t+3}, 6, v{t+2}
        v_lshl_add_u32 v{vXa}, v{t}, 7, v{t+2}
        v_lshrrev_b32 v{TX}, 3, v{t+2}
        v_alignbit_b32 v{TX}, v2, v2, v{TX}
        v_alignbit_b32 v{TX+1}, v{TX}, v{TX}, 1
        v_and_b32 v{TX}, s{sTm}, v{TX}
        v_and_b32 v{TX+1}, s{sTm}, v{TX+1}
        v_add_u32 v{vA2}, 65536, v1
        v_add_u32 v{vA4}, 131072, v1
        v_add_u32 v{vAc1}, {112*1024}, v1
        v_mov_b32 v{vInv+1}, {fbits(1e-5/gs**2)}
        s_mov_b32 s{sGk}, {fbits(c1/gs)}
        s_mov_b32 s{sGs}, {fbits(gs*gs*2.0**64)}
        s_mov_b32 s{sM+1}, {fbits(gs)}
        v_bfe_u32 v{t}, v0, 3, 2
        v_lshl_add_u32 v{t}, v{t}, 1, v{t+3}
        v_lshl_add_u32 v{t}, v{t}, 10, v{t+1}
        s_lshl3_add_u32 s0, s{sTb}, s{sW}
        s_lshl_b32 s0, s0, 6
        s_add_u32 s0, s0, s{sDt}
        s_lshl_b32 s0, s0, 7
        v_add_u32 v{vX2}, s0, v{t}''')
        self.stamp('_zchk')
        ZC = 144
        e(f's_waitcnt {self.wvm(id_zl)}\nL_zchk:')
        for i in range(16): e(f'v_xor_b32 v{ZC+i}, v{ZI+i}, v{TZ+(i&3)}')
        e(f'v_cmp_ne_u32 {sp(sBad)}, v{XG+3}, v2')
        for i in range(5): e(f'v_or3_b32 v{160+i}, v{ZC+3*i}, v{ZC+3*i+1}, v{ZC+3*i+2}')
        e(f"""
        v_or3_b32 v160, v160, v161, v162
        v_or3_b32 v163, v163, v164, v{ZC+15}
        v_bitop3_b32 v160, v160, v163, s{sTm} bitop3:0xa8
        v_cmp_ne_u32 vcc, 0, v160
        s_or_b64 {sp(sBad)}, {sp(sBad)}, vcc
        s_cbranch_scc1 L_zretry""")
        self.tail.append(f"""L_zretry:
        s_sub_u32 s{sCnt}, s{sCnt}, 1
        s_cbranch_scc1 L_end
        s_wqm_b64 exec, {sp(sBad)}
        {z_loads}
        s_mov_b64 exec, -1
        s_waitcnt vmcnt(0)
        s_branch L_zchk""")
        self.stamp('z_ok')
        if F1P == 1: self.check(f1_load, [vPolled], id_f1); f1ok[0] = True
        elif F1P == 2: id_f1 = e(f1_load)
        nl2 = [self.opt('b_ln2', 10)]
        def ln2bg(n=1):
            for _ in range(n):
                if nl2[0] > 0: bg_issue(1); nl2[0] -= 1
        ZF = 88
        for i in range(4):
            ln2bg()
            for r in range(2):
                z = ZF+8*r+2*i
                e(f'v_perm_b32 v{z}, v{ZC+4*i+2+r}, v{ZC+4*i+r}, s{sLo}\nv_perm_b32 v{z+1}, v{ZC+4*i+2+r}, v{ZC+4*i+r}, s{sHi}')
            for r in range(2):
                z = ZF+8*r+2*i; x = XF+8*r+2*i
                e(f'v_pk_fma_f32 {vr(x,2)}, {vr(z,2)}, {sp(sM)}, {vr(x,2)} op_sel_hi:[1,0,1]')
            for r in range(2):
                x = XF+8*r+2*i
                e(f'v_cvt_pk_bf16_f32 v{XR+4*r+i}, v{x}, v{x+1}')
        unp = [x for r in range(2) for i in range(4) for x in self.unpack(XF+8*r+2*i, XR+4*r+i)]
        self.stats_partial(XR, t, vSBw, unp)
        unp = self.rest
        ln2bg(2)
        for x in unp: e(x)
        e('s_waitcnt lgkmcnt(0)\ns_barrier')
        wopen[0] = 3
        self.stamp('_ln2bar')
        ST = 128
        self.stats_read(ST, vSBr)
        GBV = 12
        for i in range(4):
            ln2bg()
            for kind in range(2):
                d = ZF+8*kind+2*i
                qp = f'quad_perm:[{i},{i},{i},{i}] row_mask:0xf bank_mask:0xf'
                e(f'v_cvt_f32_bf16_dpp v{d}, v{XG+kind} {qp}\nv_and_b32_dpp v{d+1}, v{XG+kind}, v{vMsk} {qp}')
        for i in range(4): e(f'v_pk_mul_f32 {vr(ZF+8+2*i,2)}, {vr(ZF+8+2*i,2)}, {sp(sM)} op_sel:[0,1] op_sel_hi:[1,1]')
        e('s_waitcnt lgkmcnt(0)')
        self.stats_finish(ST, vInv, pre=1/gs**2)
        HO = 104
        for r in range(2):
            for i in range(4):
                x = XF+8*r+2*i
                e(f'v_pk_fma_f32 {vr(x,2)}, {vr(x,2)}, {vr(ST+2*r,2)}, {vr(ST+2*r,2)} op_sel:[0,0,1] op_sel_hi:[1,0,1]')
            for i in range(4):
                x = XF+8*r+2*i
                e(f'v_pk_fma_f32 {vr(x,2)}, {vr(x,2)}, {vr(ZF+2*i,2)}, {vr(ZF+8+2*i,2)}')
            for i in range(4):
                x = XF+8*r+2*i
                e(f'v_cvt_pk_bf16_f32 v{HO+4*r+i}, v{x}, v{x+1}')
            for m in range(2): e(f'v_bfi_b32 v{HO+4*r+m}, s{sTm}, v{TH+m}, v{HO+4*r+m}')
            id_h = e(f'buffer_store_dwordx4 {vr(HO+4*r,4)}, v{vH2}, {SRD}, s{sT+4} offen offset:{128*r} sc1')
        self.stamp('h2_stored')
        e(f'v_mov_b32 v{GBV}, v{XG+2}')
        if F1P == 2: self.check(f1_load, [vPolled], id_f1); f1ok[0] = True
        SMP = self.opt('smp', 0)
        bg('b_hack', 0, 6 if SMP else 16)
        if not SMP:
            while dq[0][0] < 3: tile_one(dq)
        e(f's_waitcnt {self.wvm(id_h)}')
        self.stamp('_h2_ack')
        self.c('---- GEMM1: 128 rows x (112 gate + 112 up) columns, tanh-GELU gate under the MFMAs, act fragments handed over tile by tile')
        X = 128
        AC = [28, 44, 60, 76]
        WE = self.opt('we', 4); LA = self.opt('la', 6); NB = 7; WF = 92; assert LA < NB
        TA, TA1 = 20, 23; GT = 120; GO = 16; X2R = 4; vP4 = 24; vPo = 25; vPo4 = 3
        P1 = self.opt('p1', 25)
        if P1 == 25:
            seq = []
            for s in range(32):
                seq += [(0, s), (1, s)]
                if s & 1: seq.append((2, s >> 1))
            seq += [(2, s) for s in range(16, 32)]
        else:
            seq = [(tl, s) for s in range(32) for tl in range(P1)] + [(tl, s) for tl in range(P1,3) for s in range(32)]
        seq += [(tl, s) for tl in range(3,7) for s in range(32)]
        slot = {0:0,1:1,2:2,3:3,4:4,5:0,6:1}
        acc = {tl: AC[tl % 4] for tl in range(7)}
        w_id = {}
        def wread(n):
            tl, s = seq[n]; sl = slot[tl]
            va = {0:1,1:1,2:vA2,3:vA2,4:vA4}[sl]
            e(f'ds_read_b128 {vr(WF+4*(n%NB),4)}, v{va} offset:{(sl&1 if sl<4 else 0)*32768 + 1024*kperm(s)}'); w_id[n] = self.nlg
        kperm = lambda s: 8*(s & 3) + (s >> 2)
        sXb = sM
        for j in range(8): e(f's_add_u32 s{sXb+j}, s{sXg}, {4096*j}')
        sAb = [76, 77, 78, 79, 80, 81, 32, 33]
        x_id = []
        def xtext(s): return f'buffer_load_dwordx4 {vr(X+4*s,4)}, v{vXa}, {SRD}, s{sXb+(kperm(s)>>2)} offen offset:{1024*(kperm(s)&3)} sc1'
        def xload(): x_id.append(e(xtext(len(x_id))))
        def xcheck(s):
            Lc = p.label('xc'); Lr = p.label('xr'); Ld = p.label('xd'); r0 = X+4*s
            body = [f'v_xor_b32 v{r0+4*j+m}, v{r0+4*j+m}, v{TX+m}' for j in range(2) for m in range(2)]
            body += [f'v_or3_b32 v13, v{r0}, v{r0+1}, v{r0+4}', f'v_bitop3_b32 v13, v13, v{r0+5}, s{sTm} bitop3:0xa8', 'v_cmp_ne_u32 vcc, 0, v13']
            def branch():
                rest = '\n'.join(xtext(j) for j in range(s+2, len(x_id)))
                self.tail.append(f'{Lr}:\ns_sub_u32 s{sCnt}, s{sCnt}, 1\ns_cbranch_scc1 L_end\n{xtext(s)}\n{xtext(s+1)}\ns_waitcnt vmcnt(0)\n' + '\n'.join(body) +
                                 f'\ns_cmp_lg_u64 vcc, 0\ns_cbranch_scc1 {Lr}\n{rest}\ns_branch {Ld}')
                e(f's_cbranch_vccnz {Lr}\n{Ld}:')
                if self.nvm != x_id[-1]: self.tail[-1] = self.tail[-1].replace(f's_branch {Ld}', f's_waitcnt vmcnt(0)\ns_branch {Ld}')
            return body, branch
        XLA = self.opt('xla', 12 if SMP else 10)
        if SMP:
            for s in range(4): xload()
            bg('b_smp', 0, 10)
            while dq[0][0] < 3: tile_one(dq)
            for s in (0, 2):
                xb, xbr = xcheck(s)
                e(f's_waitcnt {self.wvm(x_id[s+1])}\n' + '\n'.join(xb)); xbr()
        while len(x_id) < XLA: xload()
        bg('b_x', 0, 0)
        for j in range(8): e(f's_add_u32 s{sAb[j]}, s{sActG}, {(7*(j>>1) + 4*(j&1))*1024}')
        if self.o.get('verbose'): print('tr reads left', len(trq), 'wd left', len(wdq), 'dq left', len(dq))
        e(f"""
        v_mov_b32 v124, v{vWdA}
        v_mov_b32 v{TA}, v{TH}
        v_mov_b32 v{TA1}, v{TH+1}
        v_and_b32 v{vP4}, 7, v0
        s_lshr_b32 s0, s{sDt}, 1
        s_lshl_b32 s1, s{sTb}, 5
        s_add_u32 s0, s0, s1
        s_lshl_b32 s0, s0, 7
        s_add_u32 s0, s0, {F3}
        v_lshl_add_u32 v{vP4}, v{vP4}, 9, s0
        s_waitcnt {self.wvm(dma_id[2])} lgkmcnt(0)
        s_barrier""")
        vW[0] = 124
        for n in range(LA): wread(n)
        if not SMP:
            xb, xbr = xcheck(0)
            e(f's_waitcnt {self.wvm(x_id[1])}\n' + '\n'.join(xb)); xbr()
        self.stamp('f2_ok')
        xq = []; xnext = 2
        f4_load = f'buffer_load_dword v{vPo4}, v{vP4}, {SRD}, 0 offen sc1'
        def gelu(tl):
            a = acc[tl]; out = []
            for hf in range(2):
                E = [a+4*hf+j for j in range(4)]
                out += [f'v_fma_f32 v{GT+j}, -v{E[j]}, v{E[j]}, s{sGk}' for j in range(4)]
                out += [f'v_mul_f32 v{GT+j}, v{GT+j}, v{E[j]}' for j in range(4)]
                for j in range(4): out += [f'v_exp_f32 v{GT+j}, v{GT+j}', f'v_mul_f32 v{E[j]+8}, v{E[j]+8}, v{E[j]}']
                for j in range(4): out += [f'v_fma_f32 v{GT+j}, v{GT+j}, s{sGs}, s{sGs}']
                for j in range(4): out += [f'v_rcp_f32 v{GT+j}, v{GT+j}']
                for j in range(4): out += [f'v_mul_f32 v{E[j]+8}, v{E[j]+8}, v{GT+j}']
                out += [f'v_cvt_pk_bf16_f32 v{GO+2*hf+j}, v{E[2*j]+8}, v{E[2*j+1]+8}' for j in range(2)]
                if hf == 0 and tl >= NF: out += [f'v_bfi_b32 v{GO+j}, s{sTm}, v{(TA,TA1)[j]}, v{GO+j}' for j in range(2)]
            out.append(f'buffer_store_dwordx4 {vr(GO,4)}, v1, {SRD}, s{sActS+(tl>>2)} offen offset:{1024*(tl&3)} sc1')
            return [(x, tl) for x in out]
        last = {tl: max(n for n, (a_, _) in enumerate(seq) if a_ == tl) for tl in range(7)}
        first = {tl: min(n for n, (a_, _) in enumerate(seq) if a_ == tl) for tl in range(7)}
        gq = []; vq = dq; st_id = {}; st_n = {}
        a_id = []; xfree = [0]; consumed = set()
        k0 = 28 - 4*len(groups[-1])
        lorder = [(kk, tt) for kk in range(k0) for tt in range(2)] + [(kk, tt) for tt in range(2) for kk in range(k0, 28)]
        NAG = 0
        def areg(kk): return ar(224+4*kk, 4) if kk < NAG else vr(X+4*((kk-NAG) % 32), 4)
        def acan():
            kk = len(a_id)
            if not checked or kk >= gend[checked-1]: return False
            return kk < NAG or (kk-NAG < xfree[0] if kk-NAG < 32 else kk-32 in consumed)
        def atext(kk):
            T, tt = korder[lorder[kk][0]], lorder[kk][1]; pp, i = divmod(T, 7)
            return f'buffer_load_dwordx4 {areg(kk)}, v{vAc1 if tt else 1}, {SRD}, s{sAb[2*pp+(i>>2)]} offen offset:{1024*(i&3)} sc1'
        def aload(): a_id.append(e(atext(len(a_id))))
        CG = self.opt('cg', 2)
        def acheck(kk):
            Lr = p.label('ar'); Ld = p.label('ad'); rs = [X+4*((kk+j-NAG) % 32)+m for j in range(CG) for m in range(2)]
            body = [f'v_xor_b32 v{r}, v{r}, v{(TA,TA1)[j&1]}' for j, r in enumerate(rs)]
            body.append(f'v_or3_b32 v{vPo}, v{rs[0]}, v{rs[1]}, v{rs[2]}')
            body += [f'v_or3_b32 v{vPo}, v{vPo}, v{rs[j]}, v{rs[j+1]}' for j in range(3, 2*CG-1, 2)]
            body += [f'v_bitop3_b32 v{vPo}, v{vPo}, v{rs[-1]}, s{sTm} bitop3:0xa8', f'v_cmp_ne_u32 vcc, 0, v{vPo}']
            def branch():
                self.tail.append(f'{Lr}:\ns_sub_u32 s{sCnt}, s{sCnt}, 1\ns_cbranch_scc1 L_end\n' + '\n'.join(atext(kk+j) for j in range(CG)) + '\ns_waitcnt vmcnt(0)\n' + '\n'.join(body) +
                                 f'\ns_cmp_lg_u64 vcc, 0\ns_cbranch_scc1 {Lr}\ns_branch {Ld}')
                e(f's_cbranch_vccnz {Lr}\n{Ld}:' if not self.opt('skipa', 0) else f'{Ld}:')
            return body, branch
        SK = self.opt('skipa', 0) - 1
        if SK > 0:
            a_id += [1]*SK; NAG = SK
            areg = lambda kk: vr(X+4*((kk-NAG) % 32), 4)
        AD = self.opt('ad', 30); VISD = self.opt('visd', 26); POLD = self.opt('pold', 14)
        checked = 0; fl = {}
        gend = [sum(len(g) for g in groups[:i+1])*8 for i in range(len(groups))]
        def progress(n, force=None):
            nonlocal checked
            fo = -1 if force is None else force
            if checked == 0 and NF:
                if 'flag' in fl and 'poll' not in fl and (n >= fl['flag'] + VISD or fo >= 0):
                    fl['id'] = e(f4_load); fl['poll'] = n; return True
                if 'poll' in fl and (n >= fl['poll'] + POLD or fo >= 0):
                    self.check(f4_load, [vPo4], fl['id']); checked = 1; return True
            elif checked < len(groups) and groups[checked][-1] in st_id and (n >= st_n[groups[checked][-1]] + AD or fo >= checked):
                if fo >= checked: e(f's_waitcnt {self.wvm(st_id[groups[checked][-1]])}')
                checked += 1
            return False
        def emit_g(x, b_, n):
            i_ = e(x)
            if x.startswith('buffer_'):
                r = b_ - self.opt('x2t', 1); assert self.opt('x2t', 1) + 1 < NF or not NF
                if r in (0, 1): i_ = e(f'buffer_store_dwordx4 {vr(XR+4*r,4)}, v{vXO}, {SRD}, s{sT+5} offen offset:{1024*r} sc1')
                if r == 3 and not NF: e(f's_waitcnt {self.wvm(st_id[b_-2])}\n' + self.flag_text(vF, sF3o))
                if b_ == NF and NF: e(f's_waitcnt {self.wvm(st_id[NF-1])}\n' + self.flag_text(vF, sF3o)); fl['flag'] = n
                st_id[b_] = i_; st_n[b_] = n
        PACE = self.opt('pace', 20); nextv = [0]
        def pump(n):
            if 10*n < nextv[0]: return False
            if wd_can() and wdq[0][0] == 3: wd_one()
            elif vq and vq[0][0] == 3 and trq and trq[0][0] <= 3 and first[3] - n > 26:
                if any(x[0] == 4 for x in vq):
                    j = min(j for j, x in enumerate(vq) if x[0] == 4); tile_one([vq.pop(j)])
                else: return False
            elif wd_can() and vq and first[vq[0][0]] - n > self.opt('urg', 48): wd_one()
            elif vq: tile_one(vq)
            elif wd_can(): wd_one()
            elif acan(): aload()
            else: return False
            nextv[0] = max(nextv[0], 10*n - 10) + (PACE if not (192 <= n < 224) else self.opt('pace6', PACE))
            return True
        grate = self.opt('grate', 33); wwait = 0; aq0 = []
        for n, (tl, s) in enumerate(seq):
            if n in (1, 48, 96, 128, 160, 192): self.stamp(f'_g{n}')
            for a_ in range(6):
                if n == last[a_] + 4: gq += gelu(a_)
            if n == last[1] + 1 and n > first[3] - LA:
                e('s_barrier'); vq += [x for i in (5,6) for x in self.dma_tile(i, i-5)]
            for a_ in range(3, 7):
                if n == first[a_] - LA:
                    while any(x[0] == a_ for x in vq): tile_one(vq)
                    e(f's_waitcnt {self.wvm(dma_id[a_])}\ns_barrier')
                    if a_ == 4: wopen[0] = 4
                    if a_ == 5: wopen[0] = 6
                    if a_ == 3 and n > last[1]: vq += [x for i in (5,6) for x in self.dma_tile(i, i-5)]
            w_ = ''
            if w_id[n] > wwait:
                tgt = w_id[min(n+WE-1, len(seq)-1)]; w_ = self.wlg(tgt); wwait = tgt
            if tl == 0 and s % 2 == 0:
                while len(xq) > 1: e(xq.pop(0))
                if xq: xq.pop(0)()
            if w_: e(f's_waitcnt {w_}')
            if s == 0: assert not any(b_ == tl-4 for _, b_ in gq), (n, len(gq))
            c_ = '0' if s == 0 else vr(acc[tl],16)
            e(f'v_mfma_f32_32x32x16_bf16 {vr(acc[tl],16)}, {vr(WF+4*(n%NB),4)}, {vr(X+4*s,4)}, {c_}')
            if tl == 6: xfree[0] = s
            if n + LA < len(seq): wread(n+LA)
            budget = (grate*(n+1))//10 - (grate*n)//10
            if tl == 1 and s % 2 == 0 and s+2 < 32 and not (SMP and s == 0):
                xb, xbr = xcheck(s+2)
                e(f's_waitcnt {self.wvm(x_id[s+3])}'); xq = xb + [xbr]
            for _ in range(3):
                if len(xq) > 1: e(xq.pop(0))
            if progress(n): budget -= 2
            elif len(x_id) < 32:
                if tl == 0: xload()
                elif P1 == 3 and tl == 1 and s % 4 == 0: pump(n)
            else: pump(n)
            while gq and budget > 0:
                x, b_ = gq.pop(0); budget -= 1
                emit_g(x, b_, n)
            for _ in range(max(1, min(budget, 2))):
                if tr_ready(self.opt('trlag1', 9)): tr_pop()
            if not NF and n == len(seq) - self.opt('c6', 5) and len(a_id) >= CG:
                e(f's_waitcnt {self.wvm(a_id[CG-1])}'); b_, br_ = acheck(0); aq0 = b_ + [br_]
            for _ in range(3):
                if len(aq0) > 1: e(aq0.pop(0))
        assert not vq
        self.stamp('g1_mfma')
        n = len(seq); xfree[0] = 32
        while wdq: wd_one()
        e(f"""
        v_lshlrev_b32 v{WF}, 2, v0
        v_add_u32 v{WF}, {L_GB}, v{WF}
        ds_write_b32 v{WF}, v{GBV}""")
        while any(b_ <= 4 for _, b_ in gq):
            x, b_ = gq.pop(0); emit_g(x, b_, n)
        self.c('---- GEMM2: 64 x 64 output tile, K split over the 4 waves, reduction through LDS, out = x2 + gb*ff')
        g6pos = len(p.text); g6 = gelu(6)
        A2 = [ar(224,16), ar(240,16), vr(AC[0],16), vr(AC[3],16)]
        a2q = lambda q_, i: ar(224+16*q_+4*i, 4) if q_ < 2 else vr(AC[3*(q_-2)]+4*i, 4)
        vRw = 12; vRr = 13; vG = 14
        fill = f"""v_bfe_u32 v{WF}, v0, 5, 1
        v_and_b32 v{WF+1}, 0x1f0, v1
        s_mul_i32 s{sT}, s{sW}, {4*RQ}
        s_add_u32 s{sT}, s{sT}, {L_RED}
        v_mul_u32_u24 v{WF}, {RQ}, v{WF}
        v_add3_u32 v{vRw}, v{WF}, v{WF+1}, s{sT}
        v_and_b32 v{WF}, 7, v0
        v_lshrrev_b32 v{WF+1}, 3, v0
        v_mul_u32_u24 v{WF+2}, {RSA}, v{WF}
        v_lshl_add_u32 v{vRr}, v{WF+1}, 4, v{WF+2}
        v_add_u32 v{vRr}, {L_RED}, v{vRr}
        s_lshl_b32 s{sT}, s{sDt}, 7
        s_add_u32 s{sT}, s{sT}, {L_GB}
        v_lshl_add_u32 v{vG}, v{WF}, 4, s{sT}
        s_add_u32 s{sT+2}, s{pOut}, 32768
        s_addc_u32 s{sT+3}, s{pOut+1}, 0""".split('\n')
        fill[-2:] = ['\n'.join(fill[-2:])]
        XF2 = 96
        fill2 = [x for tt in range(2) for j in range(4) for x in self.unpack(XF2+8*tt+2*j, X2R+4*tt+j)]
        TAILK = self.opt('tailk', 6)
        o2 = [(kk, tt, c) for kk in range(28-TAILK) for tt in range(2) for c in range(2)]
        o2 += [(kk, tt, c) for tt in range(2) for c in range(2) for kk in range(28-TAILK, 28)]
        PACE = self.opt('pace2', 18)
        wq = []; twait = 0; await_ = 0; X2M = self.opt('x2m', 44); used = {}
        GF = 112; vRr2 = 15; OO = [16, 4]
        def redw(q_): return [f'ds_write_b128 v{vRw}, {a2q(q_, i)} offset:{2*RQ*(q_>>1)+(4*(q_&1)+i)*RSA}' for i in range(4)]
        RDS = [AC[1], 128]
        r_id = {}
        def redr(tt):
            for hs in range(2):
                for w in range(4):
                    e(f'ds_read_b128 {vr(RDS[tt]+16*hs+4*w,4)}, v{vRr if w<2 else vRr2} offset:{(4*(w&1)+2*tt+hs)*RQ}')
                r_id[(tt, hs)] = self.nlg
        def redm(tt):
            out = []
            for hs in range(2):
                r = RDS[tt]+16*hs
                out.append(('w', (tt, hs)))
                for hh in range(2):
                    out += [f'v_pk_add_f32 {vr(r+2*hh,2)}, {vr(r+2*hh,2)}, {vr(r+4+2*hh,2)}', f'v_pk_add_f32 {vr(r+8+2*hh,2)}, {vr(r+8+2*hh,2)}, {vr(r+12+2*hh,2)}']
                out += [f'v_pk_add_f32 {vr(r+2*hh,2)}, {vr(r+2*hh,2)}, {vr(r+8+2*hh,2)}' for hh in range(2)]
                out += [f'v_pk_fma_f32 {vr(r+2*hh,2)}, {vr(r+2*hh,2)}, {vr(GF+4*hs+2*hh,2)}, {vr(XF2+8*tt+4*hs+2*hh,2)}' for hh in range(2)]
                out += [f'v_cvt_pk_bf16_f32 v{OO[tt]+2*hs+hh}, v{r+2*hh}, v{r+2*hh+1}' for hh in range(2)]
            out.append(f'global_store_dwordx4 v{vX2}, {vr(OO[tt],4)}, {sp(pOut) if tt==0 else sp(sT+2)} {self.opt("outflag","sc1").replace("_"," ").replace("none","")}')
            return out
        def emit_m(x):
            if isinstance(x, tuple): e(f's_waitcnt {self.wlg(r_id[x[1]])}')
            else: e(x)
        fill.append(f'v_add_u32 v{vRr2}, {8*RQ}, v{vRr}')
        fill2.append(f's_mov_b32 s{sGk}, {fbits(2.0**64*(1+self.opt("perturb", 0)/1000))}')
        gun = [x for j in range(4) for x in self.unpack(GF+2*j, GF+8+j)] + [f'v_mul_f32 v{GF+j}, s{sGk}, v{GF+j}' for j in range(8)]
        states = lambda pos: sum(hazard.I(l).states() for l in p.text[pos:])
        wdone = 0; barA = False; aq = aq0; achk = 8*NF; anext = achk + (CG if aq0 else 0)
        firstm = {}
        for m_, (kk, tt, c) in enumerate(o2): firstm.setdefault(lorder.index((kk, tt)), m_)
        for m_, (kk, tt, c) in enumerate(o2):
            f = lorder.index((kk, tt)); T = korder[kk]; q_ = 2*tt + c
            if m_ in (0, 28, 56, 84): self.stamp(f'_h{m_//2}')
            if m_ == X2M - 20 and not NF: id_f4 = e(f4_load)
            if m_ == X2M:
                assert checked
                if not NF:
                    while len(aq) > 1: e(aq.pop(0))
                    if aq: aq.pop(0)(); achk = anext
                    self.check(f4_load, [vPo4], id_f4)
                id_x2l = e(f's_mov_b32 s0, {X2}\nbuffer_load_dwordx4 {vr(X2R,4)}, v{vX2}, {SRD}, s0 offen sc1\ns_mov_b32 s0, {X2+32768}\nbuffer_load_dwordx4 {vr(X2R+4,4)}, v{vX2}, {SRD}, s0 offen sc1')
            if m_ == self.opt('x2u', 70):
                e(f's_waitcnt {self.wvm(id_x2l)} {self.wlg(g_id)}'); fill += fill2 + gun
            while len(a_id) <= f:
                g = min(i for i in range(len(groups)) if gend[i] > len(a_id))
                while groups[g][-1] not in st_id:
                    if not gq: gq += g6; g6 = []
                    x, b_ = gq.pop(0); emit_g(x, b_, n)
                while checked <= g: progress(n, force=g)
                assert acan()
                aload()
            ahead = max(lorder.index((k2, t2)) for k2, t2, _ in o2[m_:m_+2*self.opt('amin', 12)])
            for _ in range(8 if len(a_id) <= f+2 else 2):
                if acan() and len(a_id) <= ahead: aload(); nextv[0] = 10*n + PACE
            while any(T_ == T for _, T_, _ in trq): tr_pop()
            if m_ == 64:
                while trq: tr_pop()
                e(f's_waitcnt lgkmcnt(0)\ns_barrier\nds_read_b128 {vr(GF+8,4)}, v{vG}'); twait = self.nlg-1; g_id = self.nlg; assert not fill and not gq and not g6
            while achk < f + 1:
                if not aq:
                    while len(a_id) < anext + CG: aload()
                    e(f's_waitcnt {self.wvm(a_id[anext+CG-1])}'); b_, br_ = acheck(anext); aq = b_ + [br_]; anext += CG
                while len(aq) > 1: e(aq.pop(0))
                aq.pop(0)(); achk = anext
            w_ = ''
            if f < 8*NF and a_id[f] > await_:
                f2_ = min(f | 1, len(a_id)-1); w_ = self.wvm(a_id[f2_]); await_ = a_id[f2_]
            if t_id.get(T, 0) > twait: w_ += ' ' + self.wlg(t_id[T]); twait = t_id[T]
            if w_: e(f's_waitcnt {w_}')
            e(f'v_mfma_f32_32x32x16_bf16 {A2[q_]}, {ar(8*T+4*c,4)}, {areg(f)}, {"0" if kk==0 else A2[q_]}')
            n += 1
            used[f] = used.get(f, 0) + 1
            if kk == 27 and q_ < 3: wq.append((len(p.text), redw(q_)))
            if not progress(n): pump(n)
            if used[f] == 2: consumed.add(f)
            if len(aq) == 1: aq.pop(0)(); achk = anext
            elif not aq and anext < 56 and len(a_id) >= anext + CG and firstm[anext] <= m_ + self.opt('clead', 6):
                e(f's_waitcnt {self.wvm(a_id[anext+CG-1])}'); b_, br_ = acheck(anext); aq = b_ + [br_]; anext += CG
            for _ in range(self.opt('crate', 3)):
                if len(aq) > 1: e(aq.pop(0))
            if g6 and states(g6pos) >= 12: gq += g6; g6 = []
            if gq:
                for _ in range(self.opt('grate2', 5)):
                    if gq:
                        x, b_ = gq.pop(0); emit_g(x, b_, n)
                if tr_ready(8): tr_pop()
                continue
            if wq:
                if states(wq[0][0]) < 12: e(f's_nop {min(4, 11-states(wq[0][0]))}')
                if states(wq[0][0]) >= 12:
                    e(wq[0][1].pop(0))
                    if not wq[0][1]: wq.pop(0); wdone += 1; wlast = self.nlg
                continue
            if wdone >= 2 and not barA and self.opt('tsplit', 1):
                e(f's_waitcnt {self.wlg(wlast)}\ns_barrier'); barA = True
                redr(0); continue
            for _ in range(self.opt('trate', 2) - c):
                if tr_ready(8): tr_pop()
            for _ in range(2 if m_ < 80 else 3):
                if fill: e(fill.pop(0))
        assert not fill and not trq and not gq and not g6
        self.stamp('g2_mfma')
        lastpos = len(p.text)
        for _, ws_ in wq:
            for x in ws_: e(x)
        if not barA and self.opt('tsplit', 1):
            e(f's_waitcnt lgkmcnt(0)\ns_barrier'); barA = True
            redr(0)
        if barA:
            m0_ = redm(0)
            while states(lastpos) < 12: emit_m(m0_.pop(0))
            for x in redw(3): e(x)
            for x in m0_: emit_m(x)
            e(f's_waitcnt lgkmcnt(0)\ns_barrier')
            redr(1)
            for x in redm(1): emit_m(x)
        else:
            for x in redw(3): e(x)
            e(f's_waitcnt lgkmcnt(0)\ns_barrier')
            redr(0); redr(1)
            for x in redm(0) + redm(1): emit_m(x)
        self.stamp('end')
        e(f'''
        s_or_b32 s0, s{sL}, s{sW}
        s_cbranch_scc1 L_noep''')
        e(self.flag_text(vF, 0))
        e('L_noep:')
        if self.stamps:
            e(f'''
            s_lshl2_add_u32 s{sT}, s{sL}, s{sW}
            s_lshl_b32 s{sT}, s{sT}, 7
            s_add_u32 s{sT}, s{sT}, {STMP}
            v_mov_b32 v4, 0
            s_mov_b64 exec, 1''')
            for i in range(self.ns):
                e(f'v_mov_b32 v5, s{sStamp+i}\nbuffer_store_dword v5, v4, {SRD}, s{sT} offen offset:{4*i}')
            e(f'v_mov_b32 v5, s{sCnt}\nbuffer_store_dword v5, v4, {SRD}, s{sT} offen offset:124')
        if self.o.get('probe') is not None:
            kk = self.stamp_names.index(self.o['probe'])
            e(f'''
            s_add_u32 s{sT}, s{sStamp+kk}, 5000
            L_spin:
            s_sleep 1
            s_memrealtime s[22:23]
            s_waitcnt lgkmcnt(0)
            s_sub_u32 s{sT+1}, s22, s{sT}
            s_cmp_lt_i32 s{sT+1}, 0
            s_cbranch_scc1 L_spin''')
        e('s_endpgm')
        self.c('---- bounded retries: a hand-off that has not arrived yet is loaded again')
        for x in self.tail: e(x)
        e('L_end:\ns_endpgm')
        p.end(k, vgpr=256, agpr=256, sgpr=102)
        nt = str(self.opt('nt', '-'))
        def hint(l):
            for ch, bases in (('x', [pX]), ('m', [pWm]), ('a', [pAre,pAim,pBre,pBim,pCre,pCim]), ('g', [pWu])):
                if ch in nt and l.strip().startswith('global_load') and any(f', {sp(b)}' in l for b in bases): return l + ' nt'
            if 'e' in nt and 'buffer_load_dwordx2' in l: return l + ' nt'
            return l
        p.text = [hint(l) for l in p.text]
        p.text, added = hazard.fix(p.text, verbose=self.o.get('verbose'))
        hazard.check_global_addresses(p.text, sp(sM+4))
        if self.opt('align', 6):
            p.text, nw, nn = align.fix(p.text, self.opt('align', 6))
            if self.o.get('verbose'): print('align: widened', nw, 'nops', nn)
        p.text += ['; ---- per-thread LDS addresses and masks (functions of the thread id only)', '.p2align 8', 'L_tab:'] + ['.long ' + ', '.join(hex(v) for v in self.table[i:i+16]) for i in range(0, len(self.table), 16)]
        return added

if __name__ == '__main__':
    ap = argparse.ArgumentParser()
    ap.add_argument('out'); ap.add_argument('--stamps', action='store_true'); ap.add_argument('-v', action='store_true')
    ap.add_argument('--probe', default=None); ap.add_argument('-o', action='append', default=[])
    a = ap.parse_args()
    opts = dict(verbose=a.v, probe=a.probe)
    for kv in a.o:
        kk, vv = kv.split('='); opts[kk] = int(vv) if vv.lstrip('-').isdigit() else vv
    g = G(a.stamps or a.probe is not None, opts)
    added = g.build()
    g.p.dump(a.out, single=True)
    n = sum(1 for l in g.p.text if l.startswith('  '))
    print(a.out, 'instructions', n, 'nops added', added, 'stamps', g.stamp_names)
    if a.stamps: open(a.out + '.names', 'w').write(' '.join(g.stamp_names))
```

```python
import sys, struct, argparse
from asmlib import Prog, NAME
import hazard, align

def fbits(x): return '0x%08x' % struct.unpack('<I', struct.pack('<f', x))[0]

F1   = 0x0C0000
F2   = 0x020000
F3   = 0x040000
F3S  = 0x020000
MODP = 0x0E0000
MX   = 0x008000
TAGZ = 0x40004000
HBLK = 8448
TAGM = 0x70007000
XH   = 0x160000
ZY   = 0x380000
H2   = 0x5A0000
X2   = 0x7A0000
WGU  = 0x9A0000
ACT  = 0xD20000
STMP = 0x3000000
WS_BYTES = 0x10000000
S4   = 131072
L_U  = S4; USZ = 4608
L_P  = S4 + 2*USZ; PSZ = 4288
L_ZB = L_P + 2*PSZ
L_JK = L_ZB + 1024
L_BD = L_P + 12288
L_SB = L_BD + 1024
L_Y  = 98304
L_MB = 98304
RST  = 544
L_RC = 0; RCSZ = 54*RST
L_RED = 65536; RSA = 576; RQ = 8*RSA
L_GB = L_RED + 16*RQ
LDS_BYTES = 163840
pX,pAre,pAim,pBre,pBim,pCre,pCim,pLdt = 4,6,8,10,12,14,16,18
pD,pWg,pWu,pWd,pC,pWm,pOut,pWs = 20,24,26,28,30,32,34,38
SRD='s[40:43]'
sL,sW,sTag,sMask,sCnt = 44,45,46,47,48
sLo,sHi = 49,50
sOnes = 51
sMt,sNt,sTb,sDt = 52,53,54,55
sBad = 56
sT = 58
sM = 68
sDsk = 80
sStamp = 82
sDmaL, sDmaG, sDmaT = 36, 5, 6
sActG, sActT = 9, 10
sActS = 12
sF3o, sF3p = 14, 15
sXg = 16
sCh, sHb = 17, 18
sE1 = 4
sZs = 10
sTm = 25
sWs, sF1o = 14, 24
def sp(i): return f's[{i}:{i+1}]'
def vr(i, n): return f'v[{i}:{i+n-1}]'
def ar(i, n): return f'a[{i}:{i+n-1}]'

class G:
    def __init__(self, stamps=False, opts=None):
        self.p = Prog(); self.stamps = stamps; self.ns = 0; self.o = opts or {}
        self.stamp_names = []; self.nvm = 0; self.nlg = 0; self.tail = []; self.maybe = False; self.m0 = None
    def opt(self, k, d): return self.o.get(k, d)
    def c(self, txt):
        for l in txt.split('\n'): self.p.text.append('; ' + l.strip())
    def e(self, s):
        for line in s.split('\n'):
            l = line.strip()
            if not l: continue
            if l.startswith(('buffer_', 'global_')) and not self.maybe: self.nvm += 1
            if l.startswith('ds_') and not self.maybe: self.nlg += 1
            self.p.e(l)
        return self.nvm
    def wvm(self, i): return f'vmcnt({min(62, self.nvm - i)})'
    def wlg(self, i): return f'lgkmcnt({min(14, self.nlg - i)})'
    def stamp(self, name):
        if self.opt('jitter', 0) and name in ('x_arrived','_wm','kgen2','u_ready','_c54','conv','z_ok','_ln2bar','f2_ok','_g96','_g160','g1_mfma','_h14','_h42'):
            L = self.p.label('jit'); self.jn = getattr(self, 'jn', 0) + 1
            self.e(f'''s_lshl2_add_u32 s22, s2, s{sW}
            s_add_u32 s22, s22, {self.jn*977 + self.opt('jitter', 0)*131}
            s_mul_i32 s22, s22, 0x9E3779B1
            s_lshr_b32 s23, s22, 15
            s_xor_b32 s22, s22, s23
            s_mul_i32 s22, s22, 0x85EBCA6B
            s_lshr_b32 s22, s22, 27
            s_cmp_lg_u32 s22, 0
            s_cbranch_scc1 {L}
            s_sleep 100
            {L}:''')
        if not self.stamps: return
        if self.o.get('probe') is not None and name != self.o['probe']: return
        if self.o.get('only') and not (name == 'start' or name.startswith(tuple(self.o['only'].split(',')))): return
        if not self.o.get('only') and self.o.get('probe') is None and name.startswith('_'): return
        assert self.ns < 20
        self.e(f'{"s_memtime" if self.opt("cyc", 0) else "s_memrealtime"} s[22:23]\ns_waitcnt lgkmcnt(0)\ns_mov_b32 s{sStamp+self.ns}, s22')
        self.ns += 1; self.stamp_names.append(name)

    def check_text(self, loads, tags, last):
        Lc = self.p.label('chk'); Lr = self.p.label('retry')
        s = f's_waitcnt {self.wvm(last)}\n{Lc}:\n'
        if len(tags) == 1:
            s += f'v_cmp_ne_u32 vcc, v{tags[0]}, v2\ns_cmp_lg_u64 vcc, 0\ns_cbranch_scc1 {Lr}'
            self.tail.append(f'''{Lr}:
            s_sub_u32 s{sCnt}, s{sCnt}, 1
            s_cbranch_scc1 L_end
            {loads}
            s_waitcnt vmcnt(0)
            s_branch {Lc}''')
        else:
            s += f'v_cmp_ne_u32 {sp(sBad)}, v{tags[0]}, v2\n'
            for t in tags[1:]: s += f'v_cmp_ne_u32 vcc, v{t}, v2\ns_or_b64 {sp(sBad)}, {sp(sBad)}, vcc\n'
            s += f's_cbranch_scc1 {Lr}'
            self.tail.append(f'''{Lr}:
            s_sub_u32 s{sCnt}, s{sCnt}, 1
            s_cbranch_scc1 L_end
            s_mov_b64 exec, {sp(sBad)}
            {loads}
            s_mov_b64 exec, -1
            s_waitcnt vmcnt(0)
            s_branch {Lc}''')
        return s
    def check(self, loads, tags, last): self.e(self.check_text(loads, tags, last))

    def flag_text(self, vaddr, soff):
        return f's_mov_b32 exec_hi, 0\nbuffer_store_dword v2, v{vaddr}, {SRD}, s{soff} offen sc1\ns_mov_b32 exec_hi, -1'

    def stats_partial(self, src, t, vSBw, fill=()):
        a,b,c,d = t,t+1,t+2,t+3
        for m in range(4):
            acc = lambda r: '0' if m == 0 else f'v{r}'
            self.e(f'''v_dot2_f32_bf16 v{a}, v{src+m}, s{sOnes}, {acc(a)}
            v_dot2_f32_bf16 v{b}, v{src+4+m}, s{sOnes}, {acc(b)}
            v_dot2_f32_bf16 v{c}, v{src+m}, v{src+m}, {acc(c)}
            v_dot2_f32_bf16 v{d}, v{src+4+m}, v{src+4+m}, {acc(d)}''')
        self.reduce4(a,b,c,d, fill)
        self.e(f'ds_write_b32 v{vSBw}, v{a}')
    def reduce4(self, a,b,c,d, fill=()):
        fill = list(fill)
        def f(n):
            for _ in range(n):
                if fill: self.e(fill.pop(0))
        f(2); self.e(f'v_permlane32_swap_b32 v{a}, v{b}\nv_permlane32_swap_b32 v{c}, v{d}\nv_add_f32 v{a}, v{a}, v{b}\nv_add_f32 v{c}, v{c}, v{d}')
        f(2); self.e(f'v_permlane16_swap_b32 v{a}, v{c}\nv_add_f32 v{a}, v{a}, v{c}')
        f(2); self.e(f'v_add_f32_dpp v{a}, v{a}, v{a} row_ror:4 row_mask:0xf bank_mask:0xf')
        f(2); self.e(f'v_add_f32_dpp v{a}, v{a}, v{a} row_ror:8 row_mask:0xf bank_mask:0xf')
        self.rest = fill
    def stats_read(self, t, vSBr):
        for w in range(4): self.e(f'ds_read_b128 {vr(t+4*w,4)}, v{vSBr} offset:{16*w}')
        return self.nlg
    def stats_finish(self, t, vInv, scale=None, pre=None):
        self.e(f'''
        v_pk_add_f32 {vr(t,2)}, {vr(t,2)}, {vr(t+4,2)}
        v_pk_add_f32 {vr(t+2,2)}, {vr(t+2,2)}, {vr(t+6,2)}
        v_pk_add_f32 {vr(t+8,2)}, {vr(t+8,2)}, {vr(t+12,2)}
        v_pk_add_f32 {vr(t+10,2)}, {vr(t+10,2)}, {vr(t+14,2)}
        v_pk_add_f32 {vr(t,2)}, {vr(t,2)}, {vr(t+8,2)}
        v_pk_add_f32 {vr(t+2,2)}, {vr(t+2,2)}, {vr(t+10,2)}
        v_pk_mul_f32 {vr(t+4,2)}, {vr(t,2)}, {vr(vInv,2)} op_sel_hi:[1,0]
        v_pk_mul_f32 {vr(t+6,2)}, {vr(t+2,2)}, {vr(vInv,2)} op_sel_hi:[1,0]
        v_fma_f32 v{t+5}, -v{t+4}, v{t+4}, v{t+5}
        v_fma_f32 v{t+7}, -v{t+6}, v{t+6}, v{t+7}
        v_max_f32 v{t+5}, 0, v{t+5}
        v_max_f32 v{t+7}, 0, v{t+7}
        {f'v_fmamk_f32 v{t+5}, v{t+5}, {fbits(pre)}, v{vInv+1}' if pre else f'v_add_f32 v{t+5}, v{vInv+1}, v{t+5}'}
        {f'v_fmamk_f32 v{t+7}, v{t+7}, {fbits(pre)}, v{vInv+1}' if pre else f'v_add_f32 v{t+7}, v{vInv+1}, v{t+7}'}
        v_rsq_f32 v{t}, v{t+5}
        v_rsq_f32 v{t+2}, v{t+7}''')
        if scale: self.e(f'v_mul_f32 v{t}, {fbits(scale)}, v{t}\nv_mul_f32 v{t+2}, {fbits(scale)}, v{t+2}')
        self.e(f'''
        v_mul_f32 v{t+1}, -v{t+4}, v{t}
        v_mul_f32 v{t+3}, -v{t+6}, v{t+2}''')
    def cmul(self, d, a, b):
        return [f'v_pk_mul_f32 {vr(d,2)}, {vr(a,2)}, {vr(b,2)} op_sel_hi:[1,0]',
                f'v_pk_fma_f32 {vr(d,2)}, {vr(a,2)}, {vr(b,2)}, {vr(d,2)} op_sel:[1,1,0] op_sel_hi:[0,1,1] neg_lo:[1,0,0]']
    def unpack(self, d, s): return [f'v_lshlrev_b32 v{d}, 16, v{s}', f'v_and_b32 v{d+1}, s{sMask}, v{s}']

    def dma_tile(self, i, slot):
        return [(i, slot, slot*32768 + hf*4096, i*32768 + hf*4096,
                 f'buffer_load_dwordx4 v1, {SRD}, s{sDmaT} offen offset:{e_*1024} sc1 lds') for hf in range(2) for e_ in range(4)]
    def set_m0(self, off):
        if self.m0 != off: self.e(f's_add_u32 m0, s{sDmaL}, {off}'); self.m0 = off

    def build(self):
        p = self.p; e = self.e
        k = NAME + '_kernel'
        p.header = '''One persistent launch, 256 workgroups (one per CU) x 4 waves. Each workgroup owns 8 rows (LN1, LN2), 2 channels (S4 conv),
one 128x112 GEMM1 tile and one 64x64 GEMM2 tile. Hand-offs go through d_ws with write-through stores and cache-bypassing loads,
so they hold under any placement. Each launch derives a tag from the epoch word at d_ws[0] (rewritten at the end); handed-over
words carry that tag in exponent bits freed by an exact power-of-two scaling (or in a flag word), which tells them from older data.'''.split('\n')
        p.add_launch(k, 256, 256, LDS_BYTES)
        p.begin(k)
        XR = 4; WM = 12; AB = 28; WG = 36
        vXO = 3; t = 68
        vTg = 252; vWgL = 35; vTab = 97; vPf = 255; vInv = 52; vDt = 34; vS = 54; vPolled = 123; vMBw = 79
        vSBw, vSBr, vMBr, vEM = 112, 113, 114, 115
        vRW, vKa, vKb0, vKb1 = 116, 117, 118, 119
        vWgS, vTw, vTr, vF = 124, 125, 126, 127
        vEX, vWdA, vBv, vOne = 64, 65, 66, 67
        vKw0, vKw1, vBd, vBd2 = 120, 121, 122, 123
        vPA, vPX, vQ, vUS = 56, 57, 58, 59
        vYw, vYr, vUB, vUw = 60, 61, 62, 63
        TP = 160; TB = 98304
        def consts(tid):
            w, l = tid >> 6, tid & 63; ch, hb = w >> 1, w & 1; c, q_, rp = l & 15, l >> 4, l & 3
            P = L_P + ch*PSZ; U = L_U + ch*USZ; RC = L_RC + ch*RCSZ
            lo, wd = [(3,3),(6,5),(5,7),(4,9)][w]
            x = l - 16 - lo
            band = (0x3f80 if 0 <= x < wd else 0) | (0x3f800000 if 0 <= x-1 < wd else 0)
            if c < 8: kw1 = P + 4*(608 + 16*[1,5,2,6,10,11,12,13][c] + 8*hb + 2*q_)
            elif 120 <= (tid & 127) < 125: kw1 = P + 4*((520 if c < 11 else 568) + c) - 932
            else: kw1 = L_JK
            sw = (((l >> 1) & 3) ^ q_) * 16
            full = [(tid >> 2)*HBLK + rp*16, (448*w + 16*((l>>4)&1) + 4*((l>>2)&3))*1024 + (l>>5)*64 + (l&3)*16, band, 0x3f800000 if q_ == 2 else 0]
            half = {vSBw: L_SB + rp*64 + w*16 + q_*4, vSBr: L_SB + rp*64,
              vMBr: L_MB + 4*(192*((l>>1)&1) + 2*(8*w + ((l>>2)&7)) + (l&1)), vMBw: L_MB + 32*tid,
              vRW: RC + 4*(tid & 127), vKa: RC + (16*hb + c)*RST + 16*q_,
              vKb0: RC + [0,1,2,3,4,5,6,7,8,8,9,10,10,10,11,12][c]*RST + 16*q_, vKb1: RC + [1,2,3,4,5,6,7,8,0,0,0,4,4,0,0,0][c]*RST + 16*q_,
              vF: 4*l, vTr: w*8192 + (l>>5)*256 + ((l>>2)&3)*64 + ((l>>4)&1)*32 + (l&3)*8,
              vEM: (l >> 2)*2048 + rp*16, vWgS: q_*512 + c*16,
              vKw0: P + 64 + 512*hb + 4*((c&7) + 256*(c>>3) + 32*q_), vKw1: kw1,
              vBd: L_BD + 4*(26 + c - 8*q_), vBd2: L_BD + 4*(26 + c - 8*q_) + 256*hb,
              vPA: P + 512*hb + 4*(26 + c - 8*q_), vPX: (P + 2048 if hb == 0 else L_ZB) + 4*(26 + c - 8*q_),
              vQ: P + 4*(608 + 12 + c - 4*q_) + 928*hb, vUS: U + 32*c + 16*q_ + 480 - 16*hb,
              vYw: L_Y + w*8192 + c*64 + sw, vYr: L_Y + (tid >> 2)*64 + (((rp >> 1) ^ ((tid >> 3) & 3))*16) + (rp & 1)*8, vUB: U + 32*c + 16*q_ + 288 - 256*hb, vUw: L_U + 512 + 4*tid}
            return full, half
        hlate = [vPA, vPX, vQ, vUS, vYw, vYr, vUB, vTr]
        hregs = [r for r in consts(0)[1] if r not in hlate] + hlate; assert len(hregs) == 24
        hbase = {r: (TB if consts(0)[1][r] >= TB else 0) for r in hregs}
        def trow(tid):
            full, half = consts(tid)
            h = [half[r] - hbase[r] for r in hregs]; assert all(0 <= v < 65536 for v in h)
            return [h[2*i] | h[2*i+1] << 16 for i in range(12)] + full
        self.table = [v for qd in range(4) for tid in range(256) for v in trow(tid)[4*qd:4*qd+4]]
        def tunpack():
            out = []
            for i, r in enumerate(hregs):
                b_ = f's{sT+9}' if hbase[r] else '0'
                out.append(f'v_add_u32_sdwa v{r}, {b_}, v{TP+(i>>1) if i < 16 else 144+(i>>1)} dst_sel:DWORD dst_unused:UNUSED_PAD src0_sel:DWORD src1_sel:WORD_{i&1}')
            return out
        MAP2 = self.opt('map2', 84)
        NF = 0
        groups = ([tuple(range(NF))] if NF else []) + [(i,) for i in range(NF, 7)]
        korder = [7*pp + i for g in groups for pp in range(4) for i in g]
        wslot = [int(c) for c in str(self.opt('wslot', 'x0123232'))[1:]]
        wdq = [(Gl, jh, c) for Gl in range(7) for jh in range(2) for c in range(4)]
        trq = [(Gl, 4*Gl+c, f'ds_read_b64_tr_b16 {ar(8*(4*Gl+c)+4*cc+2*jh,2)}, v{vTw if wslot[Gl] >= 2 else vTr} offset:{(wslot[Gl]&1)*32768 + jh*4096 + c*1024 + cc*512}')
               for Gl in range(7) for c in range(4) for cc in range(2) for jh in range(2)]
        wd_id = {}; t_id = {}; g_last = {}; wopen = [-1]; trw = [0]; vW = [vWdA]; freed = set()
        def tr_ready(lag): return trq and trq[0][0] in wd_id and wd_id[trq[0][0]] <= self.nvm - lag
        def tr_pop():
            Gl, T, x = trq.pop(0)
            while Gl not in wd_id: wd_one()
            if wd_id[Gl] > trw[0]: trw[0] = wd_id[Gl]; e(f's_waitcnt {self.wvm(trw[0])}')
            e(x); t_id[T] = g_last[Gl] = self.nlg
        def free_slot(sl, upto):
            for Gl in range(upto):
                if wslot[Gl] == sl and Gl not in freed:
                    while trq and trq[0][0] <= Gl: tr_pop()
                    e(f's_waitcnt {self.wlg(g_last[Gl])}'); freed.add(Gl)
        def wd_can():
            if not wdq or wdq[0][0] > wopen[0]: return False
            Gl = wdq[0][0]
            return all(G2 in freed or (G2 in g_last and (not trq or trq[0][0] > G2)) for G2 in range(Gl) if wslot[G2] == wslot[Gl])
        def wd_one():
            Gl, jh, c = wdq.pop(0); assert Gl <= wopen[0], Gl
            free_slot(wslot[Gl], Gl)
            self.set_m0(wslot[Gl]*32768 + jh*4096)
            if c == 0 and (Gl or jh): e(f'v_add_u32 v{vW[0]}, 32768, v{vW[0]}')
            i_ = e(f'global_load_lds_dwordx4 v{vW[0]}, {sp(pWd)} offset:{1024*c}')
            if c == 3 and jh == 1: wd_id[Gl] = i_
        def wd_issue(n):
            for _ in range(n):
                if wd_can(): wd_one()
        dma_id = {}; gcur = [None]
        def tile_one(q_):
            i, sl, off, go, x = q_.pop(0)
            free_slot(sl, 4 if i <= 4 else 0)
            self.set_m0(off)
            if gcur[0] != go: e(f's_add_u32 s{sDmaT}, s{sDmaG}, {go}'); gcur[0] = go
            dma_id[i] = e(x)
        def tr_do(n):
            for _ in range(4*n):
                if tr_ready(self.opt('trlag', 6)): tr_pop()
        self.c('---- prologue: ids, kernel code / constant table towards L2, first loads (x rows, S4 parameters, w_mod slice), address set-up, silu(c)')
        if self.stamps and self.o.get('probe') is None:
            e(f'{"s_memtime" if self.opt("cyc", 0) else "s_memrealtime"} s[{sStamp}:{sStamp+1}]'); self.ns += 1; self.stamp_names.append('start')
        if self.o.get('probe') is not None: e('s_memrealtime s[100:101]')
        XF1 = self.opt('xfirst', 0)
        if XF1:
            e(f"""
            s_load_dwordx2 {sp(sBad)}, s[0:1], 0
            s_cmp_ge_u32 s2, 256
            s_cbranch_scc1 L_end
            s_lshr_b32 s3, s2, 3
            s_and_b32 s{sT+1}, s2, 7
            s_lshl_b32 s{sL}, s{sT+1}, 5
            s_or_b32 s{sL}, s{sL}, s3
            v_and_b32 v{t+2}, 3, v0
            v_and_b32 v{t+3}, 0xfc, v0
            s_lshl_b32 s{sT+3}, s{sL}, 13
            v_lshl_add_u32 v{t+3}, v{t+3}, 2, s{sT+3}
            v_lshl_add_u32 v{vXO}, v{t+2}, 11, v{t+3}
            s_waitcnt lgkmcnt(0)
            global_load_dwordx4 {vr(XR,4)}, v{vXO}, {sp(sBad)}""")
            id_x = e(f'global_load_dwordx4 {vr(XR+4,4)}, v{vXO}, {sp(sBad)} offset:1024')
        e(f"""
        s_load_dwordx16 s[4:19], s[0:1], 0
        s_load_dwordx16 s[20:35], s[0:1], 64
        s_load_dwordx4 s[36:39], s[0:1], 128
        s_cmp_ge_u32 s2, 256
        s_cbranch_scc1 L_end
        v_lshrrev_b32 v{t}, 6, v0
        v_and_b32 v{t+1}, 63, v0
        v_readfirstlane_b32 s{sW}, v{t}
        s_lshr_b32 s3, s2, 3
        s_getpc_b64 {sp(sM)}
        L_pc:
        s_lshl2_add_u32 s{sT}, s3, s{sW}
        s_lshl_b32 s{sM+2}, s{sT}, 8
        s_min_u32 s{sM+2}, s{sM+2}, L_end-L_pc-256
        v_lshl_add_u32 v{t+7}, v{t+1}, 2, s{sM+2}
        global_load_dword v123, v{t+7}, {sp(sM)}
        s_add_u32 s{sM+4}, s{sM}, L_tab-L_pc+4096
        s_addc_u32 s{sM+5}, s{sM+1}, 0
        v_lshlrev_b32 v{vTab}, 4, v0""")
        id_tab = e(f"""
        global_load_dwordx4 {vr(TP,4)}, v{vTab}, {sp(sM+4)} offset:-4096
        global_load_dwordx4 {vr(TP+4,4)}, v{vTab}, {sp(sM+4)}
        v_add_u32 v{vTab}, 8192, v{vTab}
        global_load_dwordx4 {vr(152,4)}, v{vTab}, {sp(sM+4)} offset:-4096
        global_load_dwordx4 {vr(vEX,4)}, v{vTab}, {sp(sM+4)}""")
        e(f"""
        s_and_b32 s{sT+1}, s2, 7
        s_lshl_b32 s{sL}, s{sT+1}, 5
        s_or_b32 s{sL}, s{sL}, s3
        v_lshlrev_b32 v1, 4, v{t+1}
        v_and_b32 v{t+2}, 3, v0
        v_and_b32 v{t+3}, 0xfc, v0
        s_lshl_b32 s{sT+3}, s{sL}, 13
        v_lshl_add_u32 v{t+3}, v{t+3}, 2, s{sT+3}
        v_lshl_add_u32 v{vXO}, v{t+2}, 11, v{t+3}
        v_lshrrev_b32 v{t+4}, 3, v{t+1}
        v_min_u32 v{t+4}, 5, v{t+4}
        v_and_b32 v{t+5}, 0x70, v1
        v_lshl_add_u32 v{t+4}, v{t+4}, 10, v{t+5}
        s_lshl_b32 s{sT+2}, s{sT}, 3
        s_mul_i32 s{sT}, s{sT}, {4*6144}
        s_lshl_b32 s{sT+1}, s{sT+1}, 7
        s_add_u32 s{sT}, s{sT}, s{sT+1}
        s_add_u32 s{sT}, s{sT}, 3072
        v_add_u32 v{t+4}, s{sT}, v{t+4}
        v_add_u32 v{t+5}, 12288, v{t+4}
        s_lshl_b32 s{sT}, s{sL}, 9
        v_lshl_add_u32 v{t+6}, v0, 1, s{sT}
        s_lshl_b32 s{sT+3}, s{sL}, 2
        """)
        for i in range(6): e(f'v_mov_b32 v{AB+i}, 0')
        e('s_waitcnt lgkmcnt(0)')
        self.stamp('karg')
        e(f"""
        s_load_dwordx2 {sp(sT+4)}, {sp(pC)}, s{sT+2}""")
        if not XF1: id_x = e(f'global_load_dwordx4 {vr(XR,4)}, v{vXO}, {sp(pX)}\nglobal_load_dwordx4 {vr(XR+4,4)}, v{vXO}, {sp(pX)} offset:1024')
        id_ep = e(f"""
        s_load_dword s{sT+6}, {sp(pLdt)}, s{sT+3}
        s_load_dword s{sDsk+1}, {sp(pD)}, s{sT+3}
        global_load_dword v2, v{AB}, {sp(pWs)} sc1""")
        for i, ptr in enumerate([pAre,pAim,pBre,pBim,pCre,pCim]):
            id_ab = e(f'global_load_short_d16_hi v{AB+i}, v{t+6}, {sp(ptr)}')
        idm = [0]
        def wm_issue(k_):
            if self.opt('wmat', 2) == k_: idm[0] = e(f"""
            global_load_dwordx4 {vr(WM,4)}, v{t+4}, {sp(pWm)} offset:-3072
            global_load_dwordx4 {vr(WM+4,4)}, v{t+4}, {sp(pWm)} offset:3072
            global_load_dwordx4 {vr(WM+8,4)}, v{t+5}, {sp(pWm)} offset:-3072
            global_load_dwordx4 {vr(WM+12,4)}, v{t+5}, {sp(pWm)} offset:3072""")
        wm_issue(0)
        GR = 144
        u = 92
        e(f"""
        s_mov_b32 s{sMask}, 0xffff0000
        s_mov_b32 s{sLo}, 0x05040100
        s_mov_b32 s{sHi}, 0x07060302
        s_mov_b32 s{sOnes}, 0x3f803f80
        v_mov_b32 v{t+12}, {fbits(-1.4426950408889634)}
        s_add_u32 s{sT+7}, s{sT+3}, s{sW}
        s_min_u32 s{sT}, s{sT+7}, 895
        v_and_b32 v{t+8}, 15, v{t+1}
        s_lshl_b32 s37, s{sT}, 11
        s_mov_b64 s[0:1], {sp(pWd)}
        s_bitcmp1_b32 s{sT}, 0
        s_cselect_b32 s{pWu}, s{pWu}, s{pWg}
        s_cselect_b32 s{pWu+1}, s{pWu+1}, s{pWg+1}
        s_cselect_b32 s{sWs}, 256, 0
        s_bfe_u32 s{sT+1}, s{sT}, 0x40001
        s_lshr_b32 s{sT+2}, s{sT}, 5
        s_mul_i32 s{sT+8}, s{sT+1}, {32*3584}
        s_lshl_b32 s{sT+3}, s{sT+2}, 7
        s_add_u32 s{sT+8}, s{sT+8}, s{sT+3}
        v_lshrrev_b32 v{t+7}, 4, v{t+1}
        v_mul_u32_u24 v{t+7}, {8*3584}, v{t+7}
        v_lshl_add_u32 v{t+10}, v{t+8}, 3, s{sT+8}
        v_add_u32 v{vWgL}, v{t+10}, v{t+7}
        s_lshl_b32 s{sF1o}, s{sT+7}, 7
        s_add_u32 s{sF1o}, s{sF1o}, {F1}
        v_mov_b32 v{u}, 0
        v_mov_b32 v{u+1}, 0
        v_mov_b32 v{u+2}, 0
        v_mov_b32 v{u+3}, 0
        v_lshlrev_b32 v{u+4}, 4, v0
        v_add_u32 v{u+4}, {L_P}, v{u+4}
        s_lshr_b32 s{sCh}, s{sW}, 1
        s_mul_i32 s{sT}, s{sCh}, {USZ-512}
        s_add_u32 s{sT}, s{sT}, {L_U}
        v_lshl_add_u32 v{t+9}, v0, 2, s{sT}
        s_mov_b32 s{sT+9}, {TB}
        """)
        wm_issue(1)
        e(f"""
        ds_write_b128 v{u+4}, {vr(u,4)}
        ds_write_b128 v{u+4}, {vr(u,4)} offset:4096
        ds_write_b128 v{u+4}, {vr(u,4)} offset:8192
        ds_write_b32 v{t+9}, v{u}
        """)
        e(f"""
        s_mov_b32 s40, s{pWs}
        s_mov_b32 s41, s{pWs+1}
        s_mov_b32 s42, {WS_BYTES}
        s_mov_b32 s43, 0x20000
        s_mov_b32 s{sCnt}, {self.opt('cnt', 40000 if self.stamps else 400000)}
        v_mov_b32 v{vInv}, {fbits(1/512)}
        v_mov_b32 v{vInv+1}, {fbits(1e-5)}
        s_mul_i32 s{sT}, s{sL}, {HBLK}
        s_lshl_b32 s{sT+1}, s{sW}, 11
        s_add_u32 s{sT+1}, s{sT}, s{sT+1}
        s_add_u32 s{sT+1}, s{sT+1}, {XH}
        s_lshl_b32 s{sT+2}, s{sT+7}, 9
        s_add_u32 s{sT+2}, s{sT+2}, {MODP}
        s_mov_b32 s{sTag}, 1664525
        s_lshl_b32 s{sT+3}, s{sW}, 10
        s_add_u32 s{sT}, s{sT}, s{sT+3}
        s_add_u32 s{sZs}, s{sT}, {ZY}
        s_add_u32 s{sZs+1}, s{sT}, {ZY+4096}
        s_lshl_b32 s{sZs+3}, s{sL}, 4
        s_add_u32 s{sZs+3}, s{sZs+3}, {MX}
        s_cmp_eq_u32 s{sW}, 0
        s_cselect_b32 s{sZs+2}, s{sZs+3}, {WS_BYTES}
        s_mov_b32 s{sTm}, {TAGM}
        v_lshlrev_b32 v{vTg}, 2, v{t+2}
        v_add_u32 v{vTg+1}, 2, v{vTg}""")
        lateE = [x for x in f"""
        s_lshr_b32 s{sT}, s{sL}, 6
        s_bfe_u32 s{sT+3}, s{sL}, 0x10001
        s_lshl1_add_u32 s{sT}, s{sT}, s{sT+3}
        s_bfe_u32 s{sT+3}, s{sL}, 0x40002
        s_lshl4_add_u32 s{sT}, s{sT}, s{sT+3}
        s_and_b32 s{sT+3}, s{sL}, 1
        s_lshl3_add_u32 s{sT}, s{sT}, s{sT+3}
        s_lshl_b32 s{sT}, s{sT}, 3
        s_add_u32 s{sE1}, s{sT}, {XH}
        s_add_u32 s{sE1+1}, s{sT}, {XH+64*HBLK}
        s_add_u32 s{sE1+2}, s{sT}, {XH+128*HBLK}
        s_add_u32 s{sE1+3}, s{sT}, {XH+192*HBLK}
        s_and_b32 s{sT}, s2, 7
        s_lshl_b32 s{sT}, s{sT}, 10
        s_add_u32 s{sT}, s{sT}, s3
        s_lshl_b32 s{sT}, s{sT}, 6
        s_add_u32 s{sE1+4}, s{sT}, {MODP}
        s_add_u32 s{sE1+5}, s{sT}, {MODP+32768}
        """.split('\n') if x.strip()]
        DF = self.opt('defer', 1)
        if not DF:
            while lateE: e(lateE.pop(0))
        wgq = []; idw = [0]
        for jj in range(8):
            wgq.append(f'global_load_dwordx2 {vr(WG+2*jj,2)}, v{vWgL}, {sp(pWu)} offset:{3584*(jj&1)}' + (f'\nv_add_u32 v{vWgL}, 7168, v{vWgL}' if jj & 1 and jj < 7 else ''))
        def wg_issue(n):
            for _ in range(n):
                if wgq: idw[0] = e(wgq.pop(0))
        WGA = self.opt('wgat', 7)
        wm_issue(2); id_wm = idm[0]
        PFA = self.opt('pfat', 1)
        def wd_pf(r=vPf): e(f'v_and_b32 v{r}, 15, v0\nv_lshl_add_u32 v{r}, v{r}, 7, s37\nglobal_load_dword a223, v{r}, s[0:1]')
        if PFA == 0: wd_pf()
        PF2 = self.opt('pf2', 3); vPf2 = 94; assert PF2 in (-1, 2, 3, 4) and WGA in (0, 1, 5, 6, 7, 8)
        lateK = [x for x in f"""
        s_and_b32 s{sT}, s{sT+7}, 127
        s_mul_i32 s{sT}, s{sT}, 28
        s_bfe_u32 s{sT+3}, s2, {0x10001 if MAP2 == 84 else 0x10000 if MAP2 == 45 else 0}
        s_add_u32 s{sT}, s{sT}, s{sT+3}
        s_lshl_b32 s{sT}, s{sT}, 9
        s_add_u32 s15, s{sT}, 384
        s_lshr_b32 s{sT}, s{sT+7}, 5
        s_lshl_b32 s{sT}, s{sT}, 6
        s_bfe_u32 s{sT+3}, s{sT+7}, 0x40001
        s_add_u32 s{sT}, s{sT}, s{sT+3}
        s_lshl_b32 s{sT}, s{sT}, 11
        s_add_u32 s{sWs}, s{sWs}, s{sT}
        s_add_u32 s{sWs}, s{sWs}, {WGU}
        s_cmp_ge_u32 s{sL}, 224|s_cselect_b32 s{sWs}, {WS_BYTES}, s{sWs}
        s_bfe_u32 s{sT}, s{sL}, {0x10006 if MAP2 == 84 else 0x10005 if MAP2 == 45 else 0x10002}
        s_and_b32 s{sDt}, s{sL}, 3
        s_lshl2_add_u32 s{sDt}, s{sT}, s{sDt}
        s_lshl_b32 s{sT}, s{sDt}, 7
        s_add_u32 s{pWd}, s{pWd}, s{sT}|s_addc_u32 s{pWd+1}, s{pWd+1}, 0
        s_lshl_b32 s{sDmaL}, s{sW}, 13""".split('\n') if x.strip()]
        lateK = [x.replace('|', '\n') for x in lateK]
        assert not DF or (not self.opt('wde', 0) and self.opt('wjn', -1) >= -1)
        def wd_pf2(k_):
            if PF2 == k_: e(f'v_min_u32 v{vPf2}, {13*16}, v1\nv_lshl_add_u32 v{vPf2}, v{vPf2}, 6, s15\nglobal_load_dword a222, v{vPf2}, s[0:1]')
        wd_pf2(0)
        TCH = self.opt('tch', 1); NZ = self.opt('tchz', 8); vTc = 158
        if TCH >= 0:
            e(f"""
            v_and_b32 v{vTc-1}, 7, v0
            v_lshl_add_u32 v{vTc-2}, v{vTc-1}, 7, s{sZs+1}
            s_sub_u32 s{sT}, s{sF1o}, {F1-F3}
            v_cmp_gt_u32 vcc, 2, v{vTc-1}
            v_lshl_add_u32 v{vTc-1}, v{vTc-1}, 19, s{sT}
            v_mov_b32 v{vTc}, s{sZs+3}
            v_cndmask_b32 v{vTc}, v{vTc}, v{vTc-1}, vcc""")
            if self.opt('tchs', 0): e(f"""
            s_lshr_b32 s{sT}, s{sL}, 2
            s_lshl2_add_u32 s{sT}, s{sT}, s{sW}
            s_lshl_b32 s{sT}, s{sT}, 5
            s_and_b32 s{sT+3}, s{sL}, 3
            s_add_u32 s{sT}, s{sT}, s{sT+3}
            s_lshl_b32 s{sT}, s{sT}, 8
            s_add_u32 s{sT}, s{sT}, {H2}
            v_and_b32 v{vTc-1}, 6, v0
            v_cmp_eq_u32 vcc, 2, v{vTc-1}
            v_and_b32 v{vTc-1}, 1, v0
            v_lshl_add_u32 v{vTc-1}, v{vTc-1}, 7, s{sT}
            v_cndmask_b32 v{vTc}, v{vTc}, v{vTc-1}, vcc""")
            e(f"""
            v_cmp_gt_u32 vcc, {NZ*16}, v1
            s_nop 1
            v_cndmask_b32 v{vTc}, v{vTc}, v{vTc-2}, vcc""")
        if self.opt('tchh', -1) >= 0:
            e(f"""
            s_lshr_b32 s{sT}, s{sL}, 2
            s_lshl2_add_u32 s{sT}, s{sT}, s{sW}
            s_lshl_b32 s{sT}, s{sT}, 5
            s_and_b32 s{sT+3}, s{sL}, 3
            s_add_u32 s{sT}, s{sT}, s{sT+3}
            s_lshl_b32 s{sT}, s{sT}, 8
            s_add_u32 s{sT}, s{sT}, {H2}
            v_bfe_u32 v154, v0, 1, 3
            v_lshl_add_u32 v154, v154, 10, s{sT}
            v_and_b32 v153, 1, v0
            v_lshl_add_u32 v154, v153, 7, v154""")
        def touch(k_):
            if self.opt('tchh', -1) == k_: e(f'global_load_dword a220, v154, {sp(pWs)}')
            if TCH == k_: e(f'global_load_dword a221, v{vTc}, {sp(pWs)}')
        touch(0)
        if WGA == 0: wg_issue(8)
        self.stamp('_pretab')
        e(f's_waitcnt {self.wvm(id_tab)}')
        self.stamp('_tab')
        tu = tunpack()
        for x in tu[:16]: e(x)
        lateK += tu[16:]
        if not DF:
            while lateK: e(lateK.pop(0))
        wm_issue(3); id_wm = idm[0]
        sc = sM + 6
        e(f"""
        s_waitcnt lgkmcnt(0)
        s_lshl_b32 s{sc}, s{sT+4}, 16
        s_and_b32 s{sc+1}, s{sT+4}, s{sMask}
        s_lshl_b32 s{sc+2}, s{sT+5}, 16
        s_and_b32 s{sc+3}, s{sT+5}, s{sMask}""")
        self.stamp('_smem')
        for i in range(4): e(f'v_mul_f32 v{t+13+i}, s{sc+i}, v{t+12}')
        e(f"""
        s_lshl_b32 s{sT+4}, s{sCh}, 4
        s_lshr_b32 s{sT+5}, s{sT+6}, s{sT+4}
        s_lshl_b32 s{sT+5}, s{sT+5}, 16""")
        for i in range(4): e(f'v_exp_f32 v{t+13+i}, v{t+13+i}')
        e(f'v_mul_f32 v{vDt}, s{sT+5}, -v{t+12}')
        for i in range(4): e(f'v_add_f32 v{t+13+i}, 1.0, v{t+13+i}')
        e(f'v_exp_f32 v{vDt}, v{vDt}')
        for i in range(4): e(f'v_rcp_f32 v{t+13+i}, v{t+13+i}')
        e(f'v_cvt_pk_bf16_f32 v{vDt}, v{vDt}, v{vDt}')
        for i in range(4): e(f'v_mul_f32 v{t+13+i}, s{sc+i}, v{t+13+i}')
        e(f"""v_lshlrev_b32 v{vDt}, 16, v{vDt}
        v_cvt_pk_bf16_f32 v{vS}, v{t+13}, v{t+14}
        v_cvt_pk_bf16_f32 v{vS+1}, v{t+15}, v{t+16}
        s_lshr_b32 s{sDsk}, s{sDsk+1}, s{sT+4}
        s_lshl_b32 s{sDsk}, s{sDsk}, 16""")
        self.c("---- LN1 of this workgroup's 8 rows -> xhat handed to the channel owners; partial sums of silu(c) @ w_mod")
        self.stamp('_pre_x')
        e(f's_waitcnt {self.wvm(id_x)}')
        self.stamp('x_arrived')
        if PFA == 5: wd_pf()
        if WGA == 5: wg_issue(8)
        XF = 128
        unp = [x for r in range(2) for i in range(4) for x in self.unpack(XF+8*r+2*i, XR+4*r+i)]
        self.stats_partial(XR, t, vSBw, unp)
        unp = self.rest
        MA = 160; MP = 168; MR = 176; MPOS = self.opt('modpos', 1)
        def mod_partial():
            e(f's_waitcnt {self.wvm(id_wm)}')
            self.stamp('_wm')
            for h in range(2):
                for m in range(4):
                    e(f"""v_perm_b32 v{MP+2*m}, v{WM+8*h+4+m}, v{WM+8*h+m}, s{sLo}
                    v_perm_b32 v{MP+1+2*m}, v{WM+8*h+4+m}, v{WM+8*h+m}, s{sHi}""")
                for m in range(8):
                    e(f'v_dot2_f32_bf16 v{MA+m}, v{MP+m}, v{vS+h}, {"0" if h==0 else "v%d"%(MA+m)}')
            e(f'ds_write_b128 v{vMBw}, {vr(MA,4)}')
            if unp: e(unp.pop(0)); e(unp.pop(0))
            e(f'ds_write_b128 v{vMBw}, {vr(MA+4,4)} offset:16')
        def mod_read():
            if MPOS == 1: e('s_waitcnt lgkmcnt(0)\ns_barrier')
            for w in range(0, 4, 2):
                for i in range(3):
                    e(f'ds_read2st64_b32 {vr(MR+3*w+2*i,2)}, v{vMBr} offset0:{8*w+i} offset1:{8*w+8+i}')
            return self.nlg
        def mod_store(i_):
            e(f"""
            s_waitcnt {self.wlg(i_)}
            v_pk_add_f32 {vr(MR,2)}, {vr(MR,2)}, {vr(MR+6,2)}
            v_pk_add_f32 {vr(MR+2,2)}, {vr(MR+2,2)}, {vr(MR+8,2)}
            v_pk_add_f32 {vr(MR+4,2)}, {vr(MR+4,2)}, {vr(MR+10,2)}
            v_mov_b32 v{MR+15}, v2
            v_add_f32 v{MR+12}, v{MR}, v{MR+1}
            v_add_f32 v{MR+13}, v{MR+2}, v{MR+3}
            v_add_f32 v{MR+14}, v{MR+4}, v{MR+5}
            s_mov_b32 exec_hi, 0
            buffer_store_dwordx4 {vr(MR+12,4)}, v1, {SRD}, s{sT+2} offen sc1
            s_mov_b32 exec_hi, -1""")
            self.stamp('_modst')
            if PFA == 1: wd_pf()
            wd_pf2(1)
            touch(1)
            if self.opt('wde', 0):
                assert wslot[0] == 2 and self.opt('modfast', 1); wopen[0] = 0; wd_issue(self.opt('wde', 0))
            if WGA == 1: wg_issue(8)
        if MPOS == 0: mod_partial()
        e(f'v_add_u32 v{t+1}, {L_BD-L_U-512}, v{vUw}\nds_write_b32 v{t+1}, v{vBv}')
        if WGA == 7: wg_issue(8)
        e(f's_waitcnt {self.wvm(id_ep)} lgkmcnt(1)\ns_barrier')
        self.stamp('_bar0')
        ST = 84
        id_st = self.stats_read(ST, vSBr)
        if MPOS == 0: id_mr = mod_read()
        if WGA == 8: wg_issue(8)
        while unp: e(unp.pop(0))
        e(f'v_mul_lo_u32 v{t}, v2, s{sTag}\ns_mov_b32 s{sTag}, 0x15554000\nv_add_u32 v{t}, 1013904223, v{t}\nv_bitop3_b32 v2, v{t}, v2, s{sTag} bitop3:0x72')
        vTP = 26
        e(f"""v_alignbit_b32 v{vTg}, v2, v2, v{vTg}
        v_alignbit_b32 v{vTg+1}, v2, v2, v{vTg+1}
        v_and_b32 v{vTg}, s{sTm}, v{vTg}
        v_and_b32 v{vTg+1}, s{sTm}, v{vTg+1}""")
        e(f's_waitcnt {self.wlg(id_st)}')
        self.stats_finish(ST, vInv, 2.0**-100)
        for i in range(4):
            for r in range(2):
                x = XF+8*r+2*i
                e(f'v_pk_fma_f32 {vr(x,2)}, {vr(x,2)}, {vr(ST+2*r,2)}, {vr(ST+2*r,2)} op_sel:[0,0,1] op_sel_hi:[1,0,1]')
            for r in range(2):
                x = XF+8*r+2*i
                e(f'v_cvt_pk_bf16_f32 v{GR+2*i+r}, v{x}, v{x+1}')
            for r in range(2):
                e(f'v_bfi_b32 v{GR+2*i+r}, s{sTm}, v{vTg+r}, v{GR+2*i+r}')
            if i & 1: e(f'buffer_store_dwordx4 {vr(GR+2*i-2,4)}, v1, {SRD}, s{sT+1} offen offset:{512*(i-1)} sc1')
        self.stamp('e1_stored')
        if WGA == 6: wg_issue(8)
        if MPOS == 1: mod_partial()
        if MPOS == 0: mod_store(id_mr)
        e(f's_waitcnt {self.wvm(id_ab)}\nv_mul_f32 v68, v{vDt}, v{AB}\nv_mov_b32 v{vTP}, v{vTg}\nv_mov_b32 v{vTP+1}, v{vTg+1}')
        wst = [0]
        def wjob_ops(OB=20, nb=2):
            out = []
            for c in range(4):
                O = OB + 4*(c % nb)
                out += [f'v_perm_b32 v{O+m}, v{WG+2*(2*m+1)+(c>>1)}, v{WG+2*(2*m)+(c>>1)}, s{sHi if c&1 else sLo}' for m in range(4)]
                out += [f'v_add_u32 v{O+m}, 0x20002000, v{O+m}' for m in range(2)]
                out.append(f'buffer_store_dwordx4 {vr(O,4)}, v{vWgS}, {SRD}, s{sWs} offen sc1' + (f'\ns_add_u32 s{sWs}, s{sWs}, 32768' if c < 3 else ''))
            return out
        WJN = self.opt('wjn', -1)
        self.c("---- S4 kernel of this workgroup's 2 channels: z = exp(dt*A) per state, powers z^(8r) and C*dB*z^e by complex products,\nK[8r+e] = Re(sum over states) on the matrix unit; lags are the reference's bf16-rounded lags; Dskip enters as the lag-0 tap")
        al, be = 68, 69
        Z1, Z8, Z256, Wc = 70, 72, 74, 76
        q = 78
        e(f"""
        v_mul_f32 v{be}, v{vDt}, v{AB+1}
        v_mul_f32 v{AB+2}, v{vDt}, v{AB+2}
        v_mul_f32 v{AB+3}, v{vDt}, v{AB+3}
        v_mul_f32 v{q}, {fbits(1.4426950408889634)}, v{al}
        v_mul_f32 v{q+1}, 0.15915494, v{be}
        v_mul_f32 v{Wc}, v{AB+4}, v{AB+2}
        v_mul_f32 v{Wc+1}, v{AB+4}, v{AB+3}
        v_mul_f32 v{q+3}, {fbits(8.0)}, v{q}
        v_mul_f32 v{q+4}, {fbits(8.0)}, v{q+1}
        v_mul_f32 v{q+6}, {fbits(256.0)}, v{q}
        v_mul_f32 v{q+7}, {fbits(256.0)}, v{q+1}
        v_fma_f32 v{Wc}, -v{AB+5}, v{AB+3}, v{Wc}
        v_fma_f32 v{Wc+1}, -v{AB+5}, v{AB+2}, -v{Wc+1}
        """)
        MF = self.opt('modfast', 1)
        if MPOS == 1 and MF: id_mr = mod_read()
        for n_ in range(3): e(f'v_exp_f32 v{q+3*n_}, v{q+3*n_}\nv_fract_f32 v{q+3*n_+1}, v{q+3*n_+1}')
        for n_ in range(3): e(f'v_sin_f32 v{q+3*n_+2}, v{q+3*n_+1}\nv_cos_f32 v{q+3*n_+1}, v{q+3*n_+1}')
        if MPOS == 1 and MF: mod_store(id_mr)
        e(f'v_and_b32 v87, 127, v0\nv_cmp_eq_u32 vcc, 0, v87')
        for n_, (Z, conj) in enumerate([(Z1,True),(Z8,False),(Z256,True)]):
            e(f'v_mul_f32 v{Z}, v{q+3*n_}, v{q+3*n_+1}\nv_mul_f32 v{Z+1}, {"-" if conj else ""}v{q+3*n_}, v{q+3*n_+2}')
        e(f'v_readfirstlane_b32 s{sT}, v{vRW}')
        if MPOS == 1 and not MF: id_mr = mod_read()
        e(f's_mov_b32 m0, s{sT}'); self.m0 = None
        def put(src, row, pk):
            return [f'v_cvt_pk_bf16_f32 v{pk}, v{src}, v{src+1}', f'ds_write_addtid_b32 v{pk} offset:{row*RST}' if self.opt('addtid', 1) else f'ds_write_b32 v{vRW}, v{pk} offset:{row*RST}']
        Z16 = 78
        R0 = [[f'v_mov_b32 v88, 0x3f80', f'ds_write_b32 v{vRW}, v88'], self.cmul(Z16, Z8, Z8) + put(Z16, 2, 88)]
        R1 = [put(Z8, 1, 84), []]
        cur = [Z16, Z8]; bufs = [[80, 82], [90, 92]]
        for rho in range(3, 32):
            par = rho & 1
            d = bufs[par][(rho >> 1) & 1]
            (R1 if par else R0).append(self.cmul(d, cur[par], Z16) + put(d, rho, 84 if par else 88)); cur[par] = d
        Cq = [put(Wc, 32, 89)]
        cr = {0: Wc}
        reg = {1:110, 2:94, 3:110, 4:96, 5:110, 6:98, 7:110, 8:100}
        for ee in range(1, 9):
            Cq.append(self.cmul(reg[ee], cr[ee-1], Z1) + (put(reg[ee], 32+ee, 89) if ee < 8 else [])); cr[ee] = reg[ee]
        chain = [(264,8,44,102),(520,264,46,104),(776,520,48,102),(1032,776,49,104),(1288,1032,50,102),(1544,1288,51,104),(1800,1544,52,102)]
        for ee, src, row, d in chain:
            Cq.append(self.cmul(d, cr[src], Z256) + put(d, row, 89)); cr[ee] = d
        side = [(260,4,42,106),(516,260,45,108),(772,516,47,106)]
        for ee, src, row, d in side:
            R0.append(self.cmul(d, cr[src], Z256) + put(d, row, 88)); cr[ee] = d
        R1.append(self.cmul(90, cr[0], Z256) + put(90, 40, 84))
        R1.append(self.cmul(92, cr[2], Z256) + put(92, 41, 84))
        Cq.append(self.cmul(110, cr[6], Z256) + put(110, 43, 89))
        KD = 12
        Cq.append([f'v_mov_b32 v{KD+1}, s{sDsk}', f'v_mov_b32 v{KD+2}, 0', f'v_cndmask_b32 v{KD}, 0, v{KD+1}, vcc', f'v_mov_b32 v{KD+1}, 0'])
        Cq.append([f'v_mov_b32 v{KD+3}, 0', f'v_mul_f32 v{vBv}, {fbits(2.0**36)}, v{vOne}', f'v_max_f32 v{vBv}, {fbits(2.0**-64)}, v{vBv}'])
        EX = 28; EG = 68
        e1m = '\n'.join(f'buffer_load_dwordx4 {vr(EG+16+4*i,4)}, v{vEM}, {SRD}, s{sE1+4+i} offen sc1' for i in range(2))
        e1x = '\n'.join(f'buffer_load_dwordx2 {vr(EX+2*i,2)}, v{vEX}, {SRD}, s{sE1+i} offen sc1' for i in range(4))
        e1_loads = e1x + '\n' + e1m
        E1AT = self.opt('e1at', 1); E1M = self.opt('e1m', 1); ide = [0]
        def e1_issue(k_):
            if E1AT == k_: ide[0] = e(e1x)
            if max(E1M, E1AT, 0) == k_: ide[0] = e(e1m)
        for n_ in range(max(len(R0), len(R1), len(Cq))):
            if E1AT == -n_ and n_:
                while lateE: e(lateE.pop(0))
                e1_issue(-n_)
            st = [a_[n_] if n_ < len(a_) else [] for a_ in (R0, R1, Cq)]
            for j in range(4):
                for a_ in st:
                    if j < len(a_): e(a_[j])
            if n_ == 1 and MPOS == 1 and not MF: mod_store(id_mr)
            if WJN <= -2 and n_ == -WJN-1:
                e(f's_waitcnt {self.wvm(idw[0])}')
                for x in wjob_ops(128): wst[0] = e(x)
        self.stamp('kgen1')
        e('s_waitcnt lgkmcnt(0)')
        if max(E1AT, 0) == 0:
            while lateE: e(lateE.pop(0))
        e1_issue(0)
        e('s_barrier')
        self.stamp('_kbar1')
        KF = 160
        kf_id = []
        KL = self.opt('kl', 4)
        def kread(kk, j):
            e(f'ds_read_b128 {vr(KF+12*kk+4*j,4)}, v{(vKa,vKb0,vKb1)[j]} offset:{(0,32*RST,44*RST)[j]+64*kk}')
            if j == 2: kf_id.append(self.nlg)
        for kk in range(KL):
            for j in range(3):
                kread(kk, j)
                for _ in range(2):
                    if lateE: e(lateE.pop(0))
        while lateE: e(lateE.pop(0))
        e1_issue(1)
        for kk in range(8):
            e(f's_waitcnt {self.wlg(kf_id[kk])}')
            for cb in range(2):
                e(f'v_mfma_f32_16x16x32_bf16 {vr(KD+4*cb,4)}, {vr(KF+12*kk,4)}, {vr(KF+12*kk+4+4*cb,4)}, {"0" if kk==0 and cb==1 else vr(KD+4*cb,4)}')
                if kk + KL < 8:
                    for j in ((0,1),(2,))[cb]: kread(kk+KL, j)
                for _ in range(2):
                    if lateK: e(lateK.pop(0))
        while lateK: e(lateK.pop(0))
        e1_issue(2)
        if PFA == 2: wd_pf(94)
        wd_pf2(2)
        touch(2)
        if self.opt('wde2', 0):
            assert wslot[0] == 2; wopen[0] = 0; wd_issue(self.opt('wde2', 0))
        if WGA == 2: wg_issue(8)
        AN = 128; AX = 160; T2 = 192; T3 = 204; BND = 196; SF2 = 208; SF3 = 232; SD = 240; US = 72
        e(f"""
        ds_read2_b32 {vr(BND,2)}, v{vBd} offset0:6 offset1:4
        ds_read2_b32 {vr(BND+2,2)}, v{vBd} offset0:2 offset1:0
        ds_read2_b32 {vr(BND+4,2)}, v{vBd} offset0:70 offset1:68
        ds_read2_b32 {vr(BND+6,2)}, v{vBd} offset0:66 offset1:64
        ds_read2_b32 {vr(BND+8,2)}, v{vBd2} offset0:134 offset1:132
        ds_read2_b32 {vr(BND+10,2)}, v{vBd2} offset0:130 offset1:128""")
        for cb in range(2):
            for j in range(2):
                e(f'v_cvt_pk_bf16_f32 v{KD+8+2*cb+j}, v{KD+4*cb+2*j}, v{KD+4*cb+2*j+1}')
        def scat(cb, j):
            va = (vKw0, vKw1)[cb]; off = 32*j if cb == 0 else (j&1)*928 + (j>>1)*4
            op = 'ds_write_b16_d16_hi' if j & 1 else 'ds_write_b16'
            e(f'{op} v{va}, v{KD+8+2*cb+(j>>1)} offset:{off}\n{op} v{va}, v{KD+8+2*cb+(j>>1)} offset:{off+6}')
        for j in range(4): scat(0, j)
        scat(1, 3)
        e('s_mov_b32 exec_lo, 0x00ff00ff\ns_mov_b32 exec_hi, 0x00ff00ff')
        for j in range(3): scat(1, j)
        e('s_mov_b64 exec, -1')
        e1_issue(3); id_e1 = ide[0]
        self.stamp('kgen2')
        self.c('---- Toeplitz operands of K, gate/up re-layout (k-contiguous fragments), arrival of xhat / modulation, u = ga*(xhat*(1+ca)+sa)')
        def rd2(d, va, o): return [f'ds_read2_b32 {vr(d,2)}, v{va} offset0:{o+6} offset1:{o+4}', f'ds_read2_b32 {vr(d+2,2)}, v{va} offset0:{o+2} offset1:{o}']
        def rq2(d, o0, o1): return [f'ds_read2_b32 {ar(d,2)}, v{vQ} offset0:{o0} offset1:{o0-2}', f'ds_read2_b32 {ar(d+2,2)}, v{vQ} offset0:{o1} offset1:{o1-2}']
        vPA1 = 55
        reads = {}
        for be_ in range(6): reads[('u', be_)] = (US+4*be_, [f'ds_read_b128 {vr(US+4*be_,4)}, v{vUS} offset:{512*be_}'])
        for jq in range(4):
            for J in range(2): reads[('a', jq, J)] = (AN+8*jq+4*J, rd2(AN+8*jq+4*J, vPA1 if J else vPA, 32*jq))
        reads[('x', 16)] = (AX, rd2(AX, vPX, 0)); reads[('x', 32)] = (AX+4, rd2(AX+4, vPX, 48))
        for d_ in (2,3,4): reads[('t2', d_)] = (T2+4*(d_-2), rq2(T2+4*(d_-2), 16*d_-28, 64+16*d_-28))
        for d_ in (4,5,6,7): reads[('t3', d_)] = (T3+4*(d_-4), rq2(T3+4*(d_-4), 128+16*d_-44, 128+16*d_-60))
        pre = set(); wjs = []; kq = []
        e(f'v_add_u32 v{vPA1}, 1024, v{vPA}')
        if self.opt('kpre', 1):
            e('s_waitcnt lgkmcnt(0)\ns_barrier')
            for o in reads:
                if o[0] != 'u':
                    kq.extend(reads[o][1]); pre.add(o)
            for _ in range(self.opt('kq0', 8)): e(kq.pop(0))
        kqn = [0]
        if WJN == -1 and self.opt('wjpre', 4):
            e(f's_waitcnt {self.wvm(idw[0])}')
            for x in wjob_ops(168 if self.opt('wjpre', 4) < 4 else 216, 4):
                if x.startswith('buffer_') and self.opt('wjpre', 4) != 3: wjs.append(x)
                else:
                    wst[0] = e(x); kqn[0] += 1
                    if kq and kqn[0] % self.opt('kqp', 1) == 0: e(kq.pop(0))
        XC = EG+8
        self.stamp('_prechk')
        e(f's_waitcnt {self.wvm(id_e1)}\nL_e1chk:')
        for i in range(8): e(f'v_xor_b32 v{XC+i}, v{EX+i}, v{vTP+(i&1)}')
        e(f"""
        v_cmp_ne_u32 {sp(sBad)}, v{EG+19}, v2
        v_or3_b32 v92, v{XC}, v{XC+1}, v{XC+2}
        v_or3_b32 v93, v{XC+3}, v{XC+4}, v{XC+5}
        v_cmp_ne_u32 vcc, v{EG+23}, v2
        v_or3_b32 v92, v92, v{XC+6}, v{XC+7}
        s_or_b64 {sp(sBad)}, {sp(sBad)}, vcc
        v_bitop3_b32 v92, v92, v93, s{sTm} bitop3:0xa8
        v_cmp_ne_u32 vcc, 0, v92
        s_or_b64 {sp(sBad)}, {sp(sBad)}, vcc
        s_cbranch_scc1 L_e1retry""")
        self.tail.append(f"""L_e1retry:
        s_sub_u32 s{sCnt}, s{sCnt}, 1
        s_cbranch_scc1 L_end
        s_wqm_b64 exec, {sp(sBad)}
        {e1_loads}
        s_mov_b64 exec, -1
        s_waitcnt vmcnt(0)
        s_branch L_e1chk""")
        self.stamp('e1_ok')
        if PFA == 3: wd_pf(94)
        wd_pf2(3)
        touch(3)
        if self.opt('wjpre', 4) == 2:
            while wjs: wst[0] = e(wjs.pop(0))
        if WGA == 3: wg_issue(8)
        g0 = 28; HF = 96
        e(f"""
        v_add_f32 v{g0}, v{EG+16}, v{EG+20}
        v_add_f32 v{g0+1}, v{EG+17}, v{EG+21}
        v_add_f32 v{g0+2}, v{EG+18}, v{EG+22}
        v_mov_b32 v{g0+3}, 0""")
        unp = []
        for i in range(4):
            unp += [f'v_lshlrev_b32 v{HF+4*i}, 16, v{XC+2*i}', f'v_lshlrev_b32 v{HF+4*i+1}, 16, v{XC+2*i+1}',
                    f'v_and_b32 v{HF+4*i+2}, s{sMask}, v{XC+2*i}', f'v_and_b32 v{HF+4*i+3}, s{sMask}, v{XC+2*i+1}']
        mix = []
        for x in unp:
            if kq: x += '\n' + kq.pop(0)
            mix.append(x)
        self.reduce4(g0, g0+1, g0+2, g0+3, mix)
        unp = self.rest + kq
        e(f"""
        v_cvt_pk_bf16_f32 v{g0}, v{g0}, v{g0}
        v_and_b32 v{g0}, s{sMask}, v{g0}
        v_add_f32 v{g0+1}, v{g0}, v{vOne}
        v_readlane_b32 s{sM+4}, v{g0}, 16
        v_readlane_b32 s{sM+5}, v{g0}, 17
        v_cvt_pk_bf16_f32 v{g0}, v{g0+1}, v{g0+1}
        v_and_b32 v{g0}, s{sMask}, v{g0}
        v_mul_f32 v{g0+3}, v{vBv}, v{g0}
        v_mul_f32 v{g0+1}, s{sM+4}, v{g0+3}
        v_mul_f32 v{g0+2}, s{sM+5}, v{g0+3}
        v_readlane_b32 s{sM}, v{g0+1}, 32
        v_readlane_b32 s{sM+1}, v{g0+1}, 0
        v_readlane_b32 s{sM+2}, v{g0+2}, 33
        v_readlane_b32 s{sM+3}, v{g0+2}, 1""")
        for x in unp: e(x)
        for i in range(4):
            for ch in range(2):
                h = HF+4*i+2*ch
                e(f'v_pk_fma_f32 {vr(h,2)}, {vr(h,2)}, {sp(sM+2*ch)}, {sp(sM+2*ch)} op_sel:[0,0,1] op_sel_hi:[1,0,1]')
            for ch in range(2):
                h = HF+4*i+2*ch
                e(f'v_cvt_pk_bf16_f32 v{g0+2+ch}, v{h}, v{h+1}\nds_write_b32 v{vUw}, v{g0+2+ch} offset:{ch*USZ+1024*i}')
        while wjs and self.opt('wjpre', 4) < 4: wst[0] = e(wjs.pop(0))
        if WJN == -1 and not self.opt('wjpre', 4):
            e(f's_waitcnt {self.wvm(idw[0])}')
            for x in wjob_ops(): wst[0] = e(x)
        e('s_waitcnt lgkmcnt(0)\ns_barrier')
        self.stamp('u_ready')
        wopen[0] = 2
        if PFA == 4: wd_pf(94)
        wd_pf2(4)
        self.c('---- causal convolution: lags 0..514 at full resolution, the piecewise-constant lags beyond on window sums of u; z = ga*y to the row owners')
        F1P = self.opt('f1p', 0); vP1 = 54; vPolled = 55; rt = 70
        f1_load = f'buffer_load_dword v{vPolled}, v{vP1}, {SRD}, 0 offen sc1'
        def roles():
            e(f"""
            s_bfe_u32 s1, s{sL}, 0x30002
            s_lshr_b32 s0, s{sL}, 7
            s_lshl3_add_u32 s{sMt}, s0, s1
            s_bfe_u32 s0, s{sL}, {0x10005 if MAP2 == 84 else 0x20005}
            s_and_b32 s1, s{sMt}, {15 if MAP2 == 84 else 14}
            s_lshl1_add_u32 s{sTb}, s1, s0
            s_bfe_u32 s0, s{sL}, 0x20005
            s_and_b32 s1, s{sL}, 3
            s_lshl2_add_u32 s{sNt}, s0, s1
            """)
            if MAP2 in (44, 45): e(f"""
            s_lshr_b32 s0, s{sL}, 6
            s_bfe_u32 s1, s{sL}, 0x20003
            s_lshl2_add_u32 s{sMt}, s0, s1
            s_bfe_u32 s0, s{sL}, 0x10005
            s_and_b32 s1, s{sL}, 7
            s_lshl3_add_u32 s{sNt}, s0, s1
            s_bfe_u32 s0, s{sL}, {0x10005 if MAP2 == 44 else 0x10002}
            s_lshl1_add_u32 s{sTb}, s{sMt}, s0""")
            e(f"""
            s_mul_i32 s0, s{sNt}, 7
            s_lshr_b32 s0, s0, 2
            v_bfe_u32 v{rt}, v0, 3, 3
            v_min_u32 v{rt}, 2, v{rt}
            v_add_u32 v{rt}, s0, v{rt}
            v_min_u32 v{rt}, 27, v{rt}
            v_and_b32 v{rt+1}, 7, v0
            v_lshl_add_u32 v{rt}, v{rt}, 5, v{rt+1}
            s_lshl_b32 s0, s{sW}, 10
            s_add_u32 s0, s0, {F1}
            v_lshl_add_u32 v{vP1}, v{rt}, 7, s0""")
            e(f"""
            s_mul_i32 s{sDmaG}, s{sNt}, {7*32768}
            s_add_u32 s{sDmaG}, s{sDmaG}, s{sDmaL}
            s_add_u32 s{sDmaG}, s{sDmaG}, {WGU}""")
        assert pre
        ACC = 224; ZG = 12
        BR = [96,100,104,108,116,120,168,172,176,180,184,188]
        F1N = self.opt('f1n', 200)
        def f1_publish(): e(f's_waitcnt {self.wvm(wst[0])}\n' + self.flag_text(vF, sF1o))
        for m in range(8):
            for jq in range(4):
                r_ = BR[(4*m+jq) % len(BR)]
                reads[('b', m, jq)] = (r_, [f'ds_read_b128 {vr(r_,4)}, v{vUB} offset:{512*m+192-64*jq}'])
        ops = []
        S = lambda nm, be_: ops.append(('S', (nm, be_), ('u', be_), ('bnd', nm)))
        def near(m, Js):
            for jq in range(4):
                for J in Js: ops.append(('M', m+J, ('a', jq, J), ('b', m, jq)))
        def far(cb):
            ops.append(('M', cb, ('x', 16), ('u', cb-2)))
            if cb >= 4: ops.append(('M', cb, ('x', 32), ('u', cb-4)))
            for d_ in (4,3,2):
                if cb-d_ >= 0: ops.append(('M', cb, ('s2', cb-d_), ('t2', d_)))
            if cb >= 4: ops.append(('M', cb, ('s3', 0), ('t3', cb)))
            if cb >= 6: ops.append(('M', cb, ('s3', 1), ('t3', cb-2)))
        S('a',0); S('b',0); S('a',1); S('b',1)
        near(0,(0,1)); near(1,(0,1)); far(2); S('c',0); S('c',1); near(2,(0,1)); S('a',2); S('b',2); far(3); near(3,(0,))
        S('a',3); S('b',3); near(3,(1,)); far(4); near(4,(0,1)); far(5); near(5,(0,))
        S('a',4); S('b',4); S('c',2); S('c',3); near(5,(1,)); S('a',5); S('b',5); near(6,(0,1)); far(6); near(7,(0,)); far(7)
        assert len(ops) == 107
        def opreg(o):
            if o[0] == 'bnd': return BND + 4*'abc'.index(o[1])
            if o[0] == 's2': return SF2 + 4*o[1]
            if o[0] == 's3': return SF3 + 4*o[1]
            return reads[o][0]
        firstuse = {}; lastuse = {}; accdone = {}
        for n, (kd, dst, oa, ob) in enumerate(ops):
            for o in (oa, ob): firstuse.setdefault(o, n); lastuse[o] = n
            if kd == 'M': accdone[dst] = n
        rq = []
        for o in sorted(reads, key=lambda o: firstuse[o]):
            early = -1
            if o[0] == 'b' and 4*o[1]+o[2] >= len(BR):
                idx = 4*o[1]+o[2]-len(BR); early = lastuse[('b', idx//4, idx%4)] + 1
            if o not in pre:
                for x in reads[o][1]: rq.append((early, o, x))
        rid = {o: 0 for o in pre}
        def popread():
            _, o, x = rq.pop(0); e(x)
            if not any(o2 == o for _, o2, _ in rq): rid[o] = self.nlg
        for _ in range(self.opt('cpre', 8 if pre else 14)): popread()
        if F1P < 0: roles()
        tq = 69
        fill = [f's_bitcmp1_b32 s{sL}, 1\ns_cselect_b32 s{sT}, 1.0, {fbits(2.0**-64)}', f'v_mul_f32 v{g0+1}, s{sT}, v{g0}']
        fill += [f'v_readlane_b32 s{sM+6+n_}, v{g0+(n_<4)}, {ln}' for n_, ln in list(enumerate([34,35,2,3,18,19]))[::-1]]
        TZ = 16; XE = 52; vYr1 = 64
        fill += f"""v_and_b32 v{tq}, 3, v0
        s_pack_hh_b32_b16 s{sT}, s{sM+6}, s{sM+7}
        s_pack_hh_b32_b16 s{sT+1}, s{sM+8}, s{sM+9}
        s_pack_hh_b32_b16 s{sT+2}, s{sM+10}, s{sM+11}
        v_lshlrev_b32 v{tq}, 2, v{tq}
        s_mov_b32 s{sTm}, {TAGZ}
        v_alignbit_b32 v{tq}, v2, v2, v{tq}
        v_xor_b32 v{vYr1}, 32, v{vYr}
        v_add_u32 v{vTw}, 65536, v{vTr}
        v_and_b32 v{TZ}, s{sTm}, v{tq}
        v_alignbit_b32 v{TZ+1}, v{tq}, v{tq}, 1
        v_alignbit_b32 v{TZ+2}, v{tq}, v{tq}, 2
        v_alignbit_b32 v{TZ+3}, v{tq}, v{tq}, 3
        v_and_b32 v{TZ+1}, s{sTm}, v{TZ+1}
        v_and_b32 v{TZ+2}, s{sTm}, v{TZ+2}
        v_and_b32 v{TZ+3}, s{sTm}, v{TZ+3}
        v_mov_b32 v192, s{sT}
        v_mov_b32 v193, s{sT+1}
        v_mov_b32 v194, s{sT+2}
        v_mov_b32 v195, v2""".split('\n')
        stages = {'a': [(0,),(1,)], 'n': [(0,1)]}[self.opt('stages', 'a')]
        wr_id = {}; cq = []; sq = []; sdone = {}; nsd = 0; stage = 0; done_w = 0; waited = 0
        zst = {}
        def stage_ops(sg, final):
            out = []
            regs = {(k_, j): ([28, SD][j] if not final else 72+16*n_+8*j) for n_, k_ in enumerate(sg) for j in range(2)}
            for k_ in sg:
                for j in range(2):
                    for pw in range(4): out.append(('rd', (k_,j), f'ds_read_b64 {vr(regs[(k_,j)]+2*pw,2)}, v{vYr1 if j else vYr} offset:{8192*pw+4096*k_}'))
            for k_ in sg:
                for j in range(2):
                    y = regs[(k_,j)]; i = (k_,j)
                    out.append(('wait', i, None))
                    if final:
                        out += [('v', i, f'v_pk_add_f32 {vr(y+4*ch,2)}, {vr(y+4*ch,2)}, {vr(y+4*ch+2,2)}') for ch in range(2)]
                    else:
                        out += [('v', i, f'v_add_f32 v{y+4*ch+r}, v{y+4*ch+r}, v{y+4*ch+2+r}') for r in range(2) for ch in range(2)]
                    out += [('v', i, f'v_cvt_pk_bf16_f32 v{ZG+2*j+r}, v{y+r}, v{y+4+r}') for r in range(2)]
                    out += [('v', i, f'v_bfi_b32 v{ZG+2*j+r}, s{sTm}, v{TZ+2*j+r}, v{ZG+2*j+r}') for r in range(2)]
                x = f'buffer_store_dwordx4 {vr(ZG,4)}, v1, {SRD}, s{sZs+k_} offen sc1'
                if k_ == 0: x += f'\ns_mov_b64 exec, 1\nbuffer_store_dwordx4 v[192:195], v1, {SRD}, s{sZs+2} offen sc1\ns_mov_b64 exec, -1'
                out.append(('st', k_, x))
            return out
        y_id = {}; ride = [0]; pub = []
        def popstage():
            nonlocal waited
            kd, i, x = sq.pop(0)
            if kd == 'wait':
                e(f's_waitcnt {self.wlg(y_id[i])}'); waited = max(waited, y_id[i])
            else:
                r_ = e(x)
                if kd == 'rd': y_id[i] = self.nlg
                if kd == 'st':
                    zst[i] = r_
                    if not sq:
                        ride[0] = self.opt('ride', 0)
                        pub.append(1)
                        if F1N == 199 + len(pub): f1_publish()
        seen = set(); hold = 0; accpos = {}; wj = []
        for n, (kd, dst, oa, ob) in enumerate(ops):
            if n in (1, 27, 54, 81): self.stamp(f'_c{n}')
            for o in (oa, ob):
                while o in reads and o not in rid: popread()
                if o[0] in ('s2', 's3'):
                    while any(tg == o for _, tg, _ in cq): e(cq.pop(0)[2])
            need = max(rid.get(oa, 0), rid.get(ob, 0))
            if need > waited:
                e(f's_waitcnt {self.wlg(need)}'); waited = max(need, self.nlg - 14)
            if kd == 'S':
                d = SD + 4*(nsd % 4); nsd += 1
                while any(f'v{d},' in x or x.endswith(f'v{d+3}') for _, _, x in cq): e(cq.pop(0)[2])
                while any(k_ != 'st' for k_, _, _ in sq): popstage()
                e(f'v_mfma_f32_16x16x32_bf16 {vr(d,4)}, {vr(opreg(oa),4)}, {vr(opreg(ob),4)}, 0')
                nm, be_ = dst
                tg = ('s2', be_) if nm != 'c' else ('s3', be_ >> 1)
                o_ = opreg(tg) + (2*'ab'.index(nm) if nm != 'c' else 2*(be_ & 1))
                cq += [(len(p.text), tg, f'v_cvt_pk_bf16_f32 v{o_+j}, v{d+2*j}, v{d+2*j+1}') for j in range(2)]
            else:
                c_ = ar(ACC+4*dst,4) if dst in seen else '0'; seen.add(dst)
                e(f'v_mfma_f32_16x16x32_bf16 {ar(ACC+4*dst,4)}, {vr(opreg(oa),4)}, {(ar if ob[0][0] == "t" else vr)(opreg(ob),4)}, {c_}')
                if accdone[dst] == n: accpos[dst] = len(p.text)
            budget = 2
            if wjs and n >= self.opt('wsn', 4) + (4-len(wjs))*self.opt('wss', 3):
                assert n < 30; wst[0] = e(wjs.pop(0)); budget = 1
            elif n == F1N: f1_publish(); budget = 0
            elif n == -F1P and F1P < 0: id_f1 = e(f1_load); budget = 1
            elif n % self.opt('wd_pace', 6) == 1 and self.opt('wd_first', 0) <= n <= self.opt('wd_last', 100) and wd_can(): wd_issue(1); budget = 1
            elif ride[0] > 0 and n % 2 == 0 and wd_can(): wd_issue(1); budget = 1; ride[0] -= 1
            if n == WJN: e(f's_waitcnt {self.wvm(idw[0])}'); wj = wjob_ops()
            if stage < len(stages)-1 and done_w > 4*stages[stage][-1]+3 and n >= wr_n + 3 and not sq:
                while fill: e(fill.pop(0))
                while cq: e(cq.pop(0)[2])
                e(f's_waitcnt {self.wlg(wr_id[done_w-1])}\ns_barrier'); waited = max(waited, wr_id[done_w-1])
                sq = stage_ops(stages[stage], False); stage += 1; budget = 0
            while budget > 0:
                budget -= 1
                if rq and rq[0][0] <= n and firstuse[rq[0][1]] <= n + self.opt('cla', 20): popread()
                elif cq and len(p.text) - cq[0][0] >= 8: e(cq.pop(0)[2])
                elif done_w in accpos and len(p.text) - accpos[done_w] >= 8:
                    e(f'ds_write_b128 v{vYw}, {ar(ACC+4*done_w,4)} offset:{1024*done_w}'); wr_id[done_w] = self.nlg; wr_n = n; done_w += 1
                elif sq and not (sq[0][0] == 'wait' and hold > n):
                    if sq[0][0] == 'rd': hold = n + 4
                    popstage()
                elif fill: e(fill.pop(0))
                elif wj: wst[0] = e(wj.pop(0))
                elif rq and rq[0][0] <= n: popread()
                elif self.opt('trconv', 0) and tr_ready(8): tr_pop()
        assert not rq and not cq and not wj and stage == len(stages)-1
        while sq: popstage()
        for x in fill: e(x)
        self.stamp('conv')
        while done_w < 8:
            e(f'ds_write_b128 v{vYw}, {ar(ACC+4*done_w,4)} offset:{1024*done_w}'); done_w += 1
        e('s_waitcnt lgkmcnt(0)\ns_barrier')
        sq = stage_ops(stages[-1], True)
        while sq: popstage()
        id_z = self.nvm
        if F1N == 107: f1_publish()
        self.stamp('z_stored')
        if F1P >= 0: roles()
        if F1P == 0: id_f1 = e(f1_load)
        dq = [x for i in range(5) for x in self.dma_tile(i,i)]
        f1ok = [False]; maxt = [2]
        def bg_issue(n):
            for _ in range(n):
                if wd_can() and wdq[0][0] <= 2: wd_one()
                elif f1ok[0] and dq[0][0] <= 2: tile_one(dq)
                else: wd_issue(1)
        def bg(name, nT, nL):
            v = self.opt(name, None)
            if v is not None: nT, nL = v // 100, v % 100
            done = 0
            for i in range(nT):
                k_ = (nL*(i+1) + nT-1)//nT - done; bg_issue(k_); done += k_
                tr_do(1)
            bg_issue(nL - done)
        if F1P < 0: self.check(f1_load, [vPolled], id_f1); f1ok[0] = True
        bg('b_zack', 4, 9)
        self.c("---- x2 = x + z, LN2 and modulation of this workgroup's 8 rows -> h2 fragments; weights stream into LDS / AGPRs in the waits")
        XF = 36
        for r in range(2):
            for i in range(4):
                for x in self.unpack(XF+8*r+2*i, XR+4*r+i): e(x)
        TH = 66; TX = 14; vZ = 28; vH2 = 29; ZI = 72; vMsk = 30
        vP2 = 24; vXa = 25; vA2 = 26; vA4 = 27; vP3 = 23; vX2 = 22; vAc1 = 21
        c1 = -2*1.4426950408889634*0.7978845608028654; c2 = c1*0.044715
        gs = (-c2)**(1/3); sGk, sGs = 30, 31
        e(f'''
        v_and_b32 v{t}, 0xfc, v0
        v_and_b32 v{t+2}, 0x30, v1
        s_movk_i32 s{sT}, {HBLK}
        v_mad_u32_u24 v{vZ}, v{t}, s{sT}, v{t+2}
        s_lshr_b32 s{sT}, s{sL}, 1
        s_lshl_b32 s{sT}, s{sT}, 6
        s_add_u32 s{sT}, s{sT}, {ZY}
        s_add_u32 s{sT+1}, s{sT}, {HBLK}
        s_add_u32 s{sT+2}, s{sT}, {2*HBLK}
        s_add_u32 s{sT+3}, s{sT}, {3*HBLK}
        s_lshl_b32 s{sT+8}, s{sW}, 10
        s_add_u32 s{sT+8}, s{sT+8}, {MX}
        s_bitcmp1_b32 s{sL}, 0
        s_cselect_b32 s{sLo}, 0x04040000, 0
        s_add_u32 s{sHi}, s{sLo}, 0x03020c0c
        s_add_u32 s{sLo}, s{sLo}, 0x01000c0c
        s_mov_b32 s{sM}, {fbits(2.0**64)}
        v_lshrrev_b32 v{t}, 3, v0
        v_and_b32 v{t+1}, 0x70, v1
        v_lshl_add_u32 v{vH2}, v{t}, 10, v{t+1}
        s_lshr_b32 s{sT+4}, s{sL}, 2
        s_lshl_b32 s{sT+4}, s{sT+4}, 7
        s_and_b32 s{sT+5}, s{sL}, 3
        s_add_u32 s{sT+4}, s{sT+4}, s{sT+5}
        s_lshl_b32 s{sT+4}, s{sT+4}, 8
        s_add_u32 s{sT+4}, s{sT+4}, {H2}
        s_mov_b32 s{sT+5}, {X2}
        v_mov_b32 v{vMsk}, s{sMask}
        s_lshl2_add_u32 s0, s{sMt}, s{sW}
        s_lshl_b32 s{sXg}, s0, 15
        s_add_u32 s{sXg}, s{sXg}, {H2}
        s_lshl4_add_u32 s0, s0, s{sNt}
        s_mul_i32 s0, s0, {7*1024}
        s_add_u32 s{sActS}, s0, {ACT}
        s_add_u32 s{sActS+1}, s0, {ACT+4096}
        s_sub_u32 s{sF3o}, s{sF1o}, {F1-F3}
        s_lshl3_add_u32 s0, s{sTb}, s{sW}
        s_mul_i32 s0, s0, {28*1024}
        s_add_u32 s{sActG}, s0, {ACT}
        s_waitcnt {self.wvm(id_z)}''')
        self.stamp('_zack')
        if F1N == 108: f1_publish()
        z_loads = '\n'.join(f'buffer_load_dwordx4 {vr(ZI+4*i,4)}, v{vZ}, {SRD}, s{sT+i} offen sc1' for i in range(4))
        XG = 32
        z_loads += f'\nbuffer_load_dwordx4 {vr(XG,4)}, v1, {SRD}, s{sT+8} offen sc1'
        id_zl = e(z_loads)
        if F1P == 0:
            self.check(f1_load, [vPolled], id_f1); f1ok[0] = True
        elif F1P == 1: id_f1 = e(f1_load)
        bg('b_zld', 4, 0)
        bg('b_zld2', 0, 6)
        e(f'''
        v_lshrrev_b32 v{TH}, 3, v{t+1}
        v_alignbit_b32 v{TH}, v2, v2, v{TH}
        v_alignbit_b32 v{TH+1}, v{TH}, v{TH}, 1
        v_and_b32 v{TH}, s{sTm}, v{TH}
        v_and_b32 v{TH+1}, s{sTm}, v{TH+1}
        v_bfe_u32 v{t}, v0, 2, 3
        v_bfe_u32 v{t+3}, v0, 5, 1
        v_lshl_add_u32 v{t+2}, v{t+3}, 6, v{t+2}
        v_lshl_add_u32 v{vXa}, v{t}, 7, v{t+2}
        v_lshrrev_b32 v{TX}, 3, v{t+2}
        v_alignbit_b32 v{TX}, v2, v2, v{TX}
        v_alignbit_b32 v{TX+1}, v{TX}, v{TX}, 1
        v_and_b32 v{TX}, s{sTm}, v{TX}
        v_and_b32 v{TX+1}, s{sTm}, v{TX+1}
        v_add_u32 v{vA2}, 65536, v1
        v_add_u32 v{vA4}, 131072, v1
        v_add_u32 v{vAc1}, {112*1024}, v1
        v_mov_b32 v{vInv+1}, {fbits(1e-5/gs**2)}
        s_mov_b32 s{sGk}, {fbits(c1/gs)}
        s_mov_b32 s{sGs}, {fbits(gs*gs*2.0**64)}
        s_mov_b32 s{sM+1}, {fbits(gs)}
        v_bfe_u32 v{t}, v0, 3, 2
        v_lshl_add_u32 v{t}, v{t}, 1, v{t+3}
        v_lshl_add_u32 v{t}, v{t}, 10, v{t+1}
        s_lshl3_add_u32 s0, s{sTb}, s{sW}
        s_lshl_b32 s0, s0, 6
        s_add_u32 s0, s0, s{sDt}
        s_lshl_b32 s0, s0, 7
        v_add_u32 v{vX2}, s0, v{t}''')
        self.stamp('_zchk')
        ZC = 144
        e(f's_waitcnt {self.wvm(id_zl)}\nL_zchk:')
        for i in range(16): e(f'v_xor_b32 v{ZC+i}, v{ZI+i}, v{TZ+(i&3)}')
        e(f'v_cmp_ne_u32 {sp(sBad)}, v{XG+3}, v2')
        for i in range(5): e(f'v_or3_b32 v{160+i}, v{ZC+3*i}, v{ZC+3*i+1}, v{ZC+3*i+2}')
        e(f"""
        v_or3_b32 v160, v160, v161, v162
        v_or3_b32 v163, v163, v164, v{ZC+15}
        v_bitop3_b32 v160, v160, v163, s{sTm} bitop3:0xa8
        v_cmp_ne_u32 vcc, 0, v160
        s_or_b64 {sp(sBad)}, {sp(sBad)}, vcc
        s_cbranch_scc1 L_zretry""")
        self.tail.append(f"""L_zretry:
        s_sub_u32 s{sCnt}, s{sCnt}, 1
        s_cbranch_scc1 L_end
        s_wqm_b64 exec, {sp(sBad)}
        {z_loads}
        s_mov_b64 exec, -1
        s_waitcnt vmcnt(0)
        s_branch L_zchk""")
        self.stamp('z_ok')
        if F1P == 1: self.check(f1_load, [vPolled], id_f1); f1ok[0] = True
        elif F1P == 2: id_f1 = e(f1_load)
        nl2 = [self.opt('b_ln2', 10)]
        def ln2bg(n=1):
            for _ in range(n):
                if nl2[0] > 0: bg_issue(1); nl2[0] -= 1
        ZF = 88
        for i in range(4):
            ln2bg()
            for r in range(2):
                z = ZF+8*r+2*i
                e(f'v_perm_b32 v{z}, v{ZC+4*i+2+r}, v{ZC+4*i+r}, s{sLo}\nv_perm_b32 v{z+1}, v{ZC+4*i+2+r}, v{ZC+4*i+r}, s{sHi}')
            for r in range(2):
                z = ZF+8*r+2*i; x = XF+8*r+2*i
                e(f'v_pk_fma_f32 {vr(x,2)}, {vr(z,2)}, {sp(sM)}, {vr(x,2)} op_sel_hi:[1,0,1]')
            for r in range(2):
                x = XF+8*r+2*i
                e(f'v_cvt_pk_bf16_f32 v{XR+4*r+i}, v{x}, v{x+1}')
        unp = [x for r in range(2) for i in range(4) for x in self.unpack(XF+8*r+2*i, XR+4*r+i)]
        self.stats_partial(XR, t, vSBw, unp)
        unp = self.rest
        ln2bg(2)
        for x in unp: e(x)
        e('s_waitcnt lgkmcnt(0)\ns_barrier')
        wopen[0] = 3
        self.stamp('_ln2bar')
        ST = 128
        self.stats_read(ST, vSBr)
        GBV = 12
        for i in range(4):
            ln2bg()
            for kind in range(2):
                d = ZF+8*kind+2*i
                qp = f'quad_perm:[{i},{i},{i},{i}] row_mask:0xf bank_mask:0xf'
                e(f'v_cvt_f32_bf16_dpp v{d}, v{XG+kind} {qp}\nv_and_b32_dpp v{d+1}, v{XG+kind}, v{vMsk} {qp}')
        for i in range(4): e(f'v_pk_mul_f32 {vr(ZF+8+2*i,2)}, {vr(ZF+8+2*i,2)}, {sp(sM)} op_sel:[0,1] op_sel_hi:[1,1]')
        e('s_waitcnt lgkmcnt(0)')
        self.stats_finish(ST, vInv, pre=1/gs**2)
        HO = 104
        for r in range(2):
            for i in range(4):
                x = XF+8*r+2*i
                e(f'v_pk_fma_f32 {vr(x,2)}, {vr(x,2)}, {vr(ST+2*r,2)}, {vr(ST+2*r,2)} op_sel:[0,0,1] op_sel_hi:[1,0,1]')
            for i in range(4):
                x = XF+8*r+2*i
                e(f'v_pk_fma_f32 {vr(x,2)}, {vr(x,2)}, {vr(ZF+2*i,2)}, {vr(ZF+8+2*i,2)}')
            for i in range(4):
                x = XF+8*r+2*i
                e(f'v_cvt_pk_bf16_f32 v{HO+4*r+i}, v{x}, v{x+1}')
            for m in range(2): e(f'v_bfi_b32 v{HO+4*r+m}, s{sTm}, v{TH+m}, v{HO+4*r+m}')
            id_h = e(f'buffer_store_dwordx4 {vr(HO+4*r,4)}, v{vH2}, {SRD}, s{sT+4} offen offset:{128*r} sc1')
        self.stamp('h2_stored')
        e(f'v_mov_b32 v{GBV}, v{XG+2}')
        if F1P == 2: self.check(f1_load, [vPolled], id_f1); f1ok[0] = True
        SMP = self.opt('smp', 0)
        bg('b_hack', 0, 6 if SMP else 16)
        if not SMP:
            while dq[0][0] < 3: tile_one(dq)
        e(f's_waitcnt {self.wvm(id_h)}')
        self.stamp('_h2_ack')
        self.c('---- GEMM1: 128 rows x (112 gate + 112 up) columns, tanh-GELU gate under the MFMAs, act fragments handed over tile by tile')
        X = 128
        AC = [28, 44, 60, 76]
        WE = self.opt('we', 4); LA = self.opt('la', 6); NB = 7; WF = 92; assert LA < NB
        TA, TA1 = 20, 23; GT = 120; GO = 16; X2R = 4; vP4 = 24; vPo = 25; vPo4 = 3
        P1 = self.opt('p1', 25)
        if P1 == 25:
            seq = []
            for s in range(32):
                seq += [(0, s), (1, s)]
                if s & 1: seq.append((2, s >> 1))
            seq += [(2, s) for s in range(16, 32)]
        else:
            seq = [(tl, s) for s in range(32) for tl in range(P1)] + [(tl, s) for tl in range(P1,3) for s in range(32)]
        seq += [(tl, s) for tl in range(3,7) for s in range(32)]
        slot = {0:0,1:1,2:2,3:3,4:4,5:0,6:1}
        acc = {tl: AC[tl % 4] for tl in range(7)}
        w_id = {}
        def wread(n):
            tl, s = seq[n]; sl = slot[tl]
            va = {0:1,1:1,2:vA2,3:vA2,4:vA4}[sl]
            e(f'ds_read_b128 {vr(WF+4*(n%NB),4)}, v{va} offset:{(sl&1 if sl<4 else 0)*32768 + 1024*kperm(s)}'); w_id[n] = self.nlg
        kperm = lambda s: 8*(s & 3) + (s >> 2)
        sXb = sM
        for j in range(8): e(f's_add_u32 s{sXb+j}, s{sXg}, {4096*j}')
        sAb = [76, 77, 78, 79, 80, 81, 32, 33]
        x_id = []
        def xtext(s): return f'buffer_load_dwordx4 {vr(X+4*s,4)}, v{vXa}, {SRD}, s{sXb+(kperm(s)>>2)} offen offset:{1024*(kperm(s)&3)} sc1'
        def xload(): x_id.append(e(xtext(len(x_id))))
        def xcheck(s):
            Lc = p.label('xc'); Lr = p.label('xr'); Ld = p.label('xd'); r0 = X+4*s
            body = [f'v_xor_b32 v{r0+4*j+m}, v{r0+4*j+m}, v{TX+m}' for j in range(2) for m in range(2)]
            body += [f'v_or3_b32 v13, v{r0}, v{r0+1}, v{r0+4}', f'v_bitop3_b32 v13, v13, v{r0+5}, s{sTm} bitop3:0xa8', 'v_cmp_ne_u32 vcc, 0, v13']
            def branch():
                rest = '\n'.join(xtext(j) for j in range(s+2, len(x_id)))
                self.tail.append(f'{Lr}:\ns_sub_u32 s{sCnt}, s{sCnt}, 1\ns_cbranch_scc1 L_end\n{xtext(s)}\n{xtext(s+1)}\ns_waitcnt vmcnt(0)\n' + '\n'.join(body) +
                                 f'\ns_cmp_lg_u64 vcc, 0\ns_cbranch_scc1 {Lr}\n{rest}\ns_branch {Ld}')
                e(f's_cbranch_vccnz {Lr}\n{Ld}:')
                if self.nvm != x_id[-1]: self.tail[-1] = self.tail[-1].replace(f's_branch {Ld}', f's_waitcnt vmcnt(0)\ns_branch {Ld}')
            return body, branch
        XLA = self.opt('xla', 12 if SMP else 10)
        if SMP:
            for s in range(4): xload()
            bg('b_smp', 0, 10)
            while dq[0][0] < 3: tile_one(dq)
            for s in (0, 2):
                xb, xbr = xcheck(s)
                e(f's_waitcnt {self.wvm(x_id[s+1])}\n' + '\n'.join(xb)); xbr()
        while len(x_id) < XLA: xload()
        bg('b_x', 0, 0)
        for j in range(8): e(f's_add_u32 s{sAb[j]}, s{sActG}, {(7*(j>>1) + 4*(j&1))*1024}')
        if self.o.get('verbose'): print('tr reads left', len(trq), 'wd left', len(wdq), 'dq left', len(dq))
        e(f"""
        v_mov_b32 v124, v{vWdA}
        v_mov_b32 v{TA}, v{TH}
        v_mov_b32 v{TA1}, v{TH+1}
        v_and_b32 v{vP4}, 7, v0
        s_lshr_b32 s0, s{sDt}, 1
        s_lshl_b32 s1, s{sTb}, 5
        s_add_u32 s0, s0, s1
        s_lshl_b32 s0, s0, 7
        s_add_u32 s0, s0, {F3}
        v_lshl_add_u32 v{vP4}, v{vP4}, 9, s0
        s_waitcnt {self.wvm(dma_id[2])} lgkmcnt(0)
        s_barrier""")
        vW[0] = 124
        for n in range(LA): wread(n)
        if not SMP:
            xb, xbr = xcheck(0)
            e(f's_waitcnt {self.wvm(x_id[1])}\n' + '\n'.join(xb)); xbr()
        self.stamp('f2_ok')
        xq = []; xnext = 2
        f4_load = f'buffer_load_dword v{vPo4}, v{vP4}, {SRD}, 0 offen sc1'
        def gelu(tl):
            a = acc[tl]; out = []
            for hf in range(2):
                E = [a+4*hf+j for j in range(4)]
                out += [f'v_fma_f32 v{GT+j}, -v{E[j]}, v{E[j]}, s{sGk}' for j in range(4)]
                out += [f'v_mul_f32 v{GT+j}, v{GT+j}, v{E[j]}' for j in range(4)]
                for j in range(4): out += [f'v_exp_f32 v{GT+j}, v{GT+j}', f'v_mul_f32 v{E[j]+8}, v{E[j]+8}, v{E[j]}']
                for j in range(4): out += [f'v_fma_f32 v{GT+j}, v{GT+j}, s{sGs}, s{sGs}']
                for j in range(4): out += [f'v_rcp_f32 v{GT+j}, v{GT+j}']
                for j in range(4): out += [f'v_mul_f32 v{E[j]+8}, v{E[j]+8}, v{GT+j}']
                out += [f'v_cvt_pk_bf16_f32 v{GO+2*hf+j}, v{E[2*j]+8}, v{E[2*j+1]+8}' for j in range(2)]
                if hf == 0 and tl >= NF: out += [f'v_bfi_b32 v{GO+j}, s{sTm}, v{(TA,TA1)[j]}, v{GO+j}' for j in range(2)]
            out.append(f'buffer_store_dwordx4 {vr(GO,4)}, v1, {SRD}, s{sActS+(tl>>2)} offen offset:{1024*(tl&3)} sc1')
            return [(x, tl) for x in out]
        last = {tl: max(n for n, (a_, _) in enumerate(seq) if a_ == tl) for tl in range(7)}
        first = {tl: min(n for n, (a_, _) in enumerate(seq) if a_ == tl) for tl in range(7)}
        gq = []; vq = dq; st_id = {}; st_n = {}
        a_id = []; xfree = [0]; consumed = set()
        k0 = 28 - 4*len(groups[-1])
        lorder = [(kk, tt) for kk in range(k0) for tt in range(2)] + [(kk, tt) for tt in range(2) for kk in range(k0, 28)]
        NAG = 0
        def areg(kk): return ar(224+4*kk, 4) if kk < NAG else vr(X+4*((kk-NAG) % 32), 4)
        def acan():
            kk = len(a_id)
            if not checked or kk >= gend[checked-1]: return False
            return kk < NAG or (kk-NAG < xfree[0] if kk-NAG < 32 else kk-32 in consumed)
        def atext(kk):
            T, tt = korder[lorder[kk][0]], lorder[kk][1]; pp, i = divmod(T, 7)
            return f'buffer_load_dwordx4 {areg(kk)}, v{vAc1 if tt else 1}, {SRD}, s{sAb[2*pp+(i>>2)]} offen offset:{1024*(i&3)} sc1'
        def aload(): a_id.append(e(atext(len(a_id))))
        CG = self.opt('cg', 2)
        def acheck(kk):
            Lr = p.label('ar'); Ld = p.label('ad'); rs = [X+4*((kk+j-NAG) % 32)+m for j in range(CG) for m in range(2)]
            body = [f'v_xor_b32 v{r}, v{r}, v{(TA,TA1)[j&1]}' for j, r in enumerate(rs)]
            body.append(f'v_or3_b32 v{vPo}, v{rs[0]}, v{rs[1]}, v{rs[2]}')
            body += [f'v_or3_b32 v{vPo}, v{vPo}, v{rs[j]}, v{rs[j+1]}' for j in range(3, 2*CG-1, 2)]
            body += [f'v_bitop3_b32 v{vPo}, v{vPo}, v{rs[-1]}, s{sTm} bitop3:0xa8', f'v_cmp_ne_u32 vcc, 0, v{vPo}']
            def branch():
                self.tail.append(f'{Lr}:\ns_sub_u32 s{sCnt}, s{sCnt}, 1\ns_cbranch_scc1 L_end\n' + '\n'.join(atext(kk+j) for j in range(CG)) + '\ns_waitcnt vmcnt(0)\n' + '\n'.join(body) +
                                 f'\ns_cmp_lg_u64 vcc, 0\ns_cbranch_scc1 {Lr}\ns_branch {Ld}')
                e(f's_cbranch_vccnz {Lr}\n{Ld}:' if not self.opt('skipa', 0) else f'{Ld}:')
            return body, branch
        SK = self.opt('skipa', 0) - 1
        if SK > 0:
            a_id += [1]*SK; NAG = SK
            areg = lambda kk: vr(X+4*((kk-NAG) % 32), 4)
        AD = self.opt('ad', 30); VISD = self.opt('visd', 26); POLD = self.opt('pold', 14)
        checked = 0; fl = {}
        gend = [sum(len(g) for g in groups[:i+1])*8 for i in range(len(groups))]
        def progress(n, force=None):
            nonlocal checked
            fo = -1 if force is None else force
            if checked == 0 and NF:
                if 'flag' in fl and 'poll' not in fl and (n >= fl['flag'] + VISD or fo >= 0):
                    fl['id'] = e(f4_load); fl['poll'] = n; return True
                if 'poll' in fl and (n >= fl['poll'] + POLD or fo >= 0):
                    self.check(f4_load, [vPo4], fl['id']); checked = 1; return True
            elif checked < len(groups) and groups[checked][-1] in st_id and (n >= st_n[groups[checked][-1]] + AD or fo >= checked):
                if fo >= checked: e(f's_waitcnt {self.wvm(st_id[groups[checked][-1]])}')
                checked += 1
            return False
        def emit_g(x, b_, n):
            i_ = e(x)
            if x.startswith('buffer_'):
                r = b_ - self.opt('x2t', 1); assert self.opt('x2t', 1) + 1 < NF or not NF
                if r in (0, 1): i_ = e(f'buffer_store_dwordx4 {vr(XR+4*r,4)}, v{vXO}, {SRD}, s{sT+5} offen offset:{1024*r} sc1')
                if r == 3 and not NF: e(f's_waitcnt {self.wvm(st_id[b_-2])}\n' + self.flag_text(vF, sF3o))
                if b_ == NF and NF: e(f's_waitcnt {self.wvm(st_id[NF-1])}\n' + self.flag_text(vF, sF3o)); fl['flag'] = n
                st_id[b_] = i_; st_n[b_] = n
        PACE = self.opt('pace', 20); nextv = [0]
        def pump(n):
            if 10*n < nextv[0]: return False
            if wd_can() and wdq[0][0] == 3: wd_one()
            elif vq and vq[0][0] == 3 and trq and trq[0][0] <= 3 and first[3] - n > 26:
                if any(x[0] == 4 for x in vq):
                    j = min(j for j, x in enumerate(vq) if x[0] == 4); tile_one([vq.pop(j)])
                else: return False
            elif wd_can() and vq and first[vq[0][0]] - n > self.opt('urg', 48): wd_one()
            elif vq: tile_one(vq)
            elif wd_can(): wd_one()
            elif acan(): aload()
            else: return False
            nextv[0] = max(nextv[0], 10*n - 10) + (PACE if not (192 <= n < 224) else self.opt('pace6', PACE))
            return True
        grate = self.opt('grate', 33); wwait = 0; aq0 = []
        for n, (tl, s) in enumerate(seq):
            if n in (1, 48, 96, 128, 160, 192): self.stamp(f'_g{n}')
            for a_ in range(6):
                if n == last[a_] + 4: gq += gelu(a_)
            if n == last[1] + 1 and n > first[3] - LA:
                e('s_barrier'); vq += [x for i in (5,6) for x in self.dma_tile(i, i-5)]
            for a_ in range(3, 7):
                if n == first[a_] - LA:
                    while any(x[0] == a_ for x in vq): tile_one(vq)
                    e(f's_waitcnt {self.wvm(dma_id[a_])}\ns_barrier')
                    if a_ == 4: wopen[0] = 4
                    if a_ == 5: wopen[0] = 6
                    if a_ == 3 and n > last[1]: vq += [x for i in (5,6) for x in self.dma_tile(i, i-5)]
            w_ = ''
            if w_id[n] > wwait:
                tgt = w_id[min(n+WE-1, len(seq)-1)]; w_ = self.wlg(tgt); wwait = tgt
            if tl == 0 and s % 2 == 0:
                while len(xq) > 1: e(xq.pop(0))
                if xq: xq.pop(0)()
            if w_: e(f's_waitcnt {w_}')
            if s == 0: assert not any(b_ == tl-4 for _, b_ in gq), (n, len(gq))
            c_ = '0' if s == 0 else vr(acc[tl],16)
            e(f'v_mfma_f32_32x32x16_bf16 {vr(acc[tl],16)}, {vr(WF+4*(n%NB),4)}, {vr(X+4*s,4)}, {c_}')
            if tl == 6: xfree[0] = s
            if n + LA < len(seq): wread(n+LA)
            budget = (grate*(n+1))//10 - (grate*n)//10
            if tl == 1 and s % 2 == 0 and s+2 < 32 and not (SMP and s == 0):
                xb, xbr = xcheck(s+2)
                e(f's_waitcnt {self.wvm(x_id[s+3])}'); xq = xb + [xbr]
            for _ in range(3):
                if len(xq) > 1: e(xq.pop(0))
            if progress(n): budget -= 2
            elif len(x_id) < 32:
                if tl == 0: xload()
                elif P1 == 3 and tl == 1 and s % 4 == 0: pump(n)
            else: pump(n)
            while gq and budget > 0:
                x, b_ = gq.pop(0); budget -= 1
                emit_g(x, b_, n)
            for _ in range(max(1, min(budget, 2))):
                if tr_ready(self.opt('trlag1', 9)): tr_pop()
            if not NF and n == len(seq) - self.opt('c6', 5) and len(a_id) >= CG:
                e(f's_waitcnt {self.wvm(a_id[CG-1])}'); b_, br_ = acheck(0); aq0 = b_ + [br_]
            for _ in range(3):
                if len(aq0) > 1: e(aq0.pop(0))
        assert not vq
        self.stamp('g1_mfma')
        n = len(seq); xfree[0] = 32
        while wdq: wd_one()
        e(f"""
        v_lshlrev_b32 v{WF}, 2, v0
        v_add_u32 v{WF}, {L_GB}, v{WF}
        ds_write_b32 v{WF}, v{GBV}""")
        while any(b_ <= 4 for _, b_ in gq):
            x, b_ = gq.pop(0); emit_g(x, b_, n)
        self.c('---- GEMM2: 64 x 64 output tile, K split over the 4 waves, reduction through LDS, out = x2 + gb*ff')
        g6pos = len(p.text); g6 = gelu(6)
        A2 = [ar(224,16), ar(240,16), vr(AC[0],16), vr(AC[3],16)]
        a2q = lambda q_, i: ar(224+16*q_+4*i, 4) if q_ < 2 else vr(AC[3*(q_-2)]+4*i, 4)
        vRw = 12; vRr = 13; vG = 14
        fill = f"""v_bfe_u32 v{WF}, v0, 5, 1
        v_and_b32 v{WF+1}, 0x1f0, v1
        s_mul_i32 s{sT}, s{sW}, {4*RQ}
        s_add_u32 s{sT}, s{sT}, {L_RED}
        v_mul_u32_u24 v{WF}, {RQ}, v{WF}
        v_add3_u32 v{vRw}, v{WF}, v{WF+1}, s{sT}
        v_and_b32 v{WF}, 7, v0
        v_lshrrev_b32 v{WF+1}, 3, v0
        v_mul_u32_u24 v{WF+2}, {RSA}, v{WF}
        v_lshl_add_u32 v{vRr}, v{WF+1}, 4, v{WF+2}
        v_add_u32 v{vRr}, {L_RED}, v{vRr}
        s_lshl_b32 s{sT}, s{sDt}, 7
        s_add_u32 s{sT}, s{sT}, {L_GB}
        v_lshl_add_u32 v{vG}, v{WF}, 4, s{sT}
        s_add_u32 s{sT+2}, s{pOut}, 32768
        s_addc_u32 s{sT+3}, s{pOut+1}, 0""".split('\n')
        fill[-2:] = ['\n'.join(fill[-2:])]
        XF2 = 96
        fill2 = [x for tt in range(2) for j in range(4) for x in self.unpack(XF2+8*tt+2*j, X2R+4*tt+j)]
        TAILK = self.opt('tailk', 6)
        o2 = [(kk, tt, c) for kk in range(28-TAILK) for tt in range(2) for c in range(2)]
        o2 += [(kk, tt, c) for tt in range(2) for c in range(2) for kk in range(28-TAILK, 28)]
        PACE = self.opt('pace2', 18)
        wq = []; twait = 0; await_ = 0; X2M = self.opt('x2m', 44); used = {}
        GF = 112; vRr2 = 15; OO = [16, 4]
        def redw(q_): return [f'ds_write_b128 v{vRw}, {a2q(q_, i)} offset:{2*RQ*(q_>>1)+(4*(q_&1)+i)*RSA}' for i in range(4)]
        RDS = [AC[1], 128]
        r_id = {}
        def redr(tt):
            for hs in range(2):
                for w in range(4):
                    e(f'ds_read_b128 {vr(RDS[tt]+16*hs+4*w,4)}, v{vRr if w<2 else vRr2} offset:{(4*(w&1)+2*tt+hs)*RQ}')
                r_id[(tt, hs)] = self.nlg
        def redm(tt):
            out = []
            for hs in range(2):
                r = RDS[tt]+16*hs
                out.append(('w', (tt, hs)))
                for hh in range(2):
                    out += [f'v_pk_add_f32 {vr(r+2*hh,2)}, {vr(r+2*hh,2)}, {vr(r+4+2*hh,2)}', f'v_pk_add_f32 {vr(r+8+2*hh,2)}, {vr(r+8+2*hh,2)}, {vr(r+12+2*hh,2)}']
                out += [f'v_pk_add_f32 {vr(r+2*hh,2)}, {vr(r+2*hh,2)}, {vr(r+8+2*hh,2)}' for hh in range(2)]
                out += [f'v_pk_fma_f32 {vr(r+2*hh,2)}, {vr(r+2*hh,2)}, {vr(GF+4*hs+2*hh,2)}, {vr(XF2+8*tt+4*hs+2*hh,2)}' for hh in range(2)]
                out += [f'v_cvt_pk_bf16_f32 v{OO[tt]+2*hs+hh}, v{r+2*hh}, v{r+2*hh+1}' for hh in range(2)]
            out.append(f'global_store_dwordx4 v{vX2}, {vr(OO[tt],4)}, {sp(pOut) if tt==0 else sp(sT+2)} {self.opt("outflag","sc1").replace("_"," ").replace("none","")}')
            return out
        def emit_m(x):
            if isinstance(x, tuple): e(f's_waitcnt {self.wlg(r_id[x[1]])}')
            else: e(x)
        fill.append(f'v_add_u32 v{vRr2}, {8*RQ}, v{vRr}')
        fill2.append(f's_mov_b32 s{sGk}, {fbits(2.0**64*(1+self.opt("perturb", 0)/1000))}')
        gun = [x for j in range(4) for x in self.unpack(GF+2*j, GF+8+j)] + [f'v_mul_f32 v{GF+j}, s{sGk}, v{GF+j}' for j in range(8)]
        states = lambda pos: sum(hazard.I(l).states() for l in p.text[pos:])
        wdone = 0; barA = False; aq = aq0; achk = 8*NF; anext = achk + (CG if aq0 else 0)
        firstm = {}
        for m_, (kk, tt, c) in enumerate(o2): firstm.setdefault(lorder.index((kk, tt)), m_)
        for m_, (kk, tt, c) in enumerate(o2):
            f = lorder.index((kk, tt)); T = korder[kk]; q_ = 2*tt + c
            if m_ in (0, 28, 56, 84): self.stamp(f'_h{m_//2}')
            if m_ == X2M - 20 and not NF: id_f4 = e(f4_load)
            if m_ == X2M:
                assert checked
                if not NF:
                    while len(aq) > 1: e(aq.pop(0))
                    if aq: aq.pop(0)(); achk = anext
                    self.check(f4_load, [vPo4], id_f4)
                id_x2l = e(f's_mov_b32 s0, {X2}\nbuffer_load_dwordx4 {vr(X2R,4)}, v{vX2}, {SRD}, s0 offen sc1\ns_mov_b32 s0, {X2+32768}\nbuffer_load_dwordx4 {vr(X2R+4,4)}, v{vX2}, {SRD}, s0 offen sc1')
            if m_ == self.opt('x2u', 70):
                e(f's_waitcnt {self.wvm(id_x2l)} {self.wlg(g_id)}'); fill += fill2 + gun
            while len(a_id) <= f:
                g = min(i for i in range(len(groups)) if gend[i] > len(a_id))
                while groups[g][-1] not in st_id:
                    if not gq: gq += g6; g6 = []
                    x, b_ = gq.pop(0); emit_g(x, b_, n)
                while checked <= g: progress(n, force=g)
                assert acan()
                aload()
            ahead = max(lorder.index((k2, t2)) for k2, t2, _ in o2[m_:m_+2*self.opt('amin', 12)])
            for _ in range(8 if len(a_id) <= f+2 else 2):
                if acan() and len(a_id) <= ahead: aload(); nextv[0] = 10*n + PACE
            while any(T_ == T for _, T_, _ in trq): tr_pop()
            if m_ == 64:
                while trq: tr_pop()
                e(f's_waitcnt lgkmcnt(0)\ns_barrier\nds_read_b128 {vr(GF+8,4)}, v{vG}'); twait = self.nlg-1; g_id = self.nlg; assert not fill and not gq and not g6
            while achk < f + 1:
                if not aq:
                    while len(a_id) < anext + CG: aload()
                    e(f's_waitcnt {self.wvm(a_id[anext+CG-1])}'); b_, br_ = acheck(anext); aq = b_ + [br_]; anext += CG
                while len(aq) > 1: e(aq.pop(0))
                aq.pop(0)(); achk = anext
            w_ = ''
            if f < 8*NF and a_id[f] > await_:
                f2_ = min(f | 1, len(a_id)-1); w_ = self.wvm(a_id[f2_]); await_ = a_id[f2_]
            if t_id.get(T, 0) > twait: w_ += ' ' + self.wlg(t_id[T]); twait = t_id[T]
            if w_: e(f's_waitcnt {w_}')
            e(f'v_mfma_f32_32x32x16_bf16 {A2[q_]}, {ar(8*T+4*c,4)}, {areg(f)}, {"0" if kk==0 else A2[q_]}')
            n += 1
            used[f] = used.get(f, 0) + 1
            if kk == 27 and q_ < 3: wq.append((len(p.text), redw(q_)))
            if not progress(n): pump(n)
            if used[f] == 2: consumed.add(f)
            if len(aq) == 1: aq.pop(0)(); achk = anext
            elif not aq and anext < 56 and len(a_id) >= anext + CG and firstm[anext] <= m_ + self.opt('clead', 6):
                e(f's_waitcnt {self.wvm(a_id[anext+CG-1])}'); b_, br_ = acheck(anext); aq = b_ + [br_]; anext += CG
            for _ in range(self.opt('crate', 3)):
                if len(aq) > 1: e(aq.pop(0))
            if g6 and states(g6pos) >= 12: gq += g6; g6 = []
            if gq:
                for _ in range(self.opt('grate2', 5)):
                    if gq:
                        x, b_ = gq.pop(0); emit_g(x, b_, n)
                if tr_ready(8): tr_pop()
                continue
            if wq:
                if states(wq[0][0]) < 12: e(f's_nop {min(4, 11-states(wq[0][0]))}')
                if states(wq[0][0]) >= 12:
                    e(wq[0][1].pop(0))
                    if not wq[0][1]: wq.pop(0); wdone += 1; wlast = self.nlg
                continue
            if wdone >= 2 and not barA and self.opt('tsplit', 1):
                e(f's_waitcnt {self.wlg(wlast)}\ns_barrier'); barA = True
                redr(0); continue
            for _ in range(self.opt('trate', 2) - c):
                if tr_ready(8): tr_pop()
            for _ in range(2 if m_ < 80 else 3):
                if fill: e(fill.pop(0))
        assert not fill and not trq and not gq and not g6
        self.stamp('g2_mfma')
        lastpos = len(p.text)
        for _, ws_ in wq:
            for x in ws_: e(x)
        if not barA and self.opt('tsplit', 1):
            e(f's_waitcnt lgkmcnt(0)\ns_barrier'); barA = True
            redr(0)
        if barA:
            m0_ = redm(0)
            while states(lastpos) < 12: emit_m(m0_.pop(0))
            for x in redw(3): e(x)
            for x in m0_: emit_m(x)
            e(f's_waitcnt lgkmcnt(0)\ns_barrier')
            redr(1)
            for x in redm(1): emit_m(x)
        else:
            for x in redw(3): e(x)
            e(f's_waitcnt lgkmcnt(0)\ns_barrier')
            redr(0); redr(1)
            for x in redm(0) + redm(1): emit_m(x)
        self.stamp('end')
        e(f'''
        s_or_b32 s0, s{sL}, s{sW}
        s_cbranch_scc1 L_noep''')
        e(self.flag_text(vF, 0))
        e('L_noep:')
        if self.stamps:
            e(f'''
            s_lshl2_add_u32 s{sT}, s{sL}, s{sW}
            s_lshl_b32 s{sT}, s{sT}, 7
            s_add_u32 s{sT}, s{sT}, {STMP}
            v_mov_b32 v4, 0
            s_mov_b64 exec, 1''')
            for i in range(self.ns):
                e(f'v_mov_b32 v5, s{sStamp+i}\nbuffer_store_dword v5, v4, {SRD}, s{sT} offen offset:{4*i}')
            e(f'v_mov_b32 v5, s{sCnt}\nbuffer_store_dword v5, v4, {SRD}, s{sT} offen offset:124')
        if self.o.get('probe') is not None:
            kk = self.stamp_names.index(self.o['probe'])
            e(f'''
            s_sub_u32 s{sT}, s{sStamp+kk}, s100
            s_mul_i32 s{sT}, s{sT}, {self.opt('amp', 10)}
            s_add_u32 s{sT}, s{sT}, s100
            s_add_u32 s{sT}, s{sT}, 3000
            L_spin:
            s_sleep 1
            s_memrealtime s[22:23]
            s_waitcnt lgkmcnt(0)
            s_sub_u32 s{sT+1}, s22, s{sT}
            s_cmp_lt_i32 s{sT+1}, 0
            s_cbranch_scc1 L_spin''')
        e('s_endpgm')
        self.c('---- bounded retries: a hand-off that has not arrived yet is loaded again')
        for x in self.tail: e(x)
        e('L_end:\ns_endpgm')
        p.end(k, vgpr=256, agpr=256, sgpr=102)
        nt = str(self.opt('nt', '-'))
        def hint(l):
            for ch, bases in (('x', [pX]), ('m', [pWm]), ('a', [pAre,pAim,pBre,pBim,pCre,pCim]), ('g', [pWu])):
                if ch in nt and l.strip().startswith('global_load') and any(f', {sp(b)}' in l for b in bases): return l + ' nt'
            if 'e' in nt and 'buffer_load_dwordx2' in l: return l + ' nt'
            return l
        p.text = [hint(l) for l in p.text]
        p.text, added = hazard.fix(p.text, verbose=self.o.get('verbose'))
        hazard.check_global_addresses(p.text, sp(sM+4))
        if self.opt('align', 6):
            p.text, nw, nn = align.fix(p.text, self.opt('align', 6))
            if self.o.get('verbose'): print('align: widened', nw, 'nops', nn)
        p.text += ['; ---- per-thread LDS addresses and masks (functions of the thread id only)', '.p2align 8', 'L_tab:'] + ['.long ' + ', '.join(hex(v) for v in self.table[i:i+16]) for i in range(0, len(self.table), 16)]
        return added

if __name__ == '__main__':
    ap = argparse.ArgumentParser()
    ap.add_argument('out'); ap.add_argument('--stamps', action='store_true'); ap.add_argument('-v', action='store_true')
    ap.add_argument('--probe', default=None); ap.add_argument('-o', action='append', default=[])
    a = ap.parse_args()
    opts = dict(verbose=a.v, probe=a.probe)
    for kv in a.o:
        kk, vv = kv.split('='); opts[kk] = int(vv) if vv.lstrip('-').isdigit() else vv
    g = G(a.stamps or a.probe is not None, opts)
    added = g.build()
    g.p.dump(a.out, single=True)
    n = sum(1 for l in g.p.text if l.startswith('  '))
    print(a.out, 'instructions', n, 'nops added', added, 'stamps', g.stamp_names)
    if a.stamps: open(a.out + '.names', 'w').write(' '.join(g.stamp_names))
```

```python
import sys, struct, argparse
from asmlib import Prog, NAME
import hazard, align

def fbits(x): return '0x%08x' % struct.unpack('<I', struct.pack('<f', x))[0]

F1   = 0x0C0000
F2   = 0x020000
F3   = 0x040000
F3S  = 0x020000
MODP = 0x0E0000
MX   = 0x008000
TAGZ = 0x40004000
HBLK = 8448
TAGM = 0x70007000
XH   = 0x160000
ZY   = 0x380000
H2   = 0x5A0000
X2   = 0x7A0000
WGU  = 0x9A0000
ACT  = 0xD20000
STMP = 0x3000000
WS_BYTES = 0x10000000
S4   = 131072
L_U  = S4; USZ = 4608
L_P  = S4 + 2*USZ; PSZ = 4288
L_ZB = L_P + 2*PSZ
L_JK = L_ZB + 1024
L_BD = L_P + 12288
L_SB = L_BD + 1024
L_Y  = 98304
L_MB = 98304
RST  = 544
L_RC = 0; RCSZ = 54*RST
L_RED = 65536; RSA = 576; RQ = 8*RSA
L_GB = L_RED + 16*RQ
LDS_BYTES = 163840
pX,pAre,pAim,pBre,pBim,pCre,pCim,pLdt = 4,6,8,10,12,14,16,18
pD,pWg,pWu,pWd,pC,pWm,pOut,pWs = 20,24,26,28,30,32,34,38
SRD='s[40:43]'
sL,sW,sTag,sMask,sCnt = 44,45,46,47,48
sLo,sHi = 49,50
sOnes = 51
sMt,sNt,sTb,sDt = 52,53,54,55
sBad = 56
sT = 58
sM = 68
sDsk = 80
sStamp = 82
sDmaL, sDmaG, sDmaT = 36, 5, 6
sActG, sActT = 9, 10
sActS = 12
sF3o, sF3p = 14, 15
sXg = 16
sCh, sHb = 17, 18
sE1 = 4
sZs = 10
sTm = 25
sWs, sF1o = 14, 24
def sp(i): return f's[{i}:{i+1}]'
def vr(i, n): return f'v[{i}:{i+n-1}]'
def ar(i, n): return f'a[{i}:{i+n-1}]'

class G:
    def __init__(self, stamps=False, opts=None):
        self.p = Prog(); self.stamps = stamps; self.ns = 0; self.o = opts or {}
        self.stamp_names = []; self.nvm = 0; self.nlg = 0; self.tail = []; self.maybe = False; self.m0 = None
    def opt(self, k, d): return self.o.get(k, d)
    def c(self, txt):
        for l in txt.split('\n'): self.p.text.append('; ' + l.strip())
    def e(self, s):
        for line in s.split('\n'):
            l = line.strip()
            if not l: continue
            if l.startswith(('buffer_', 'global_')) and not self.maybe: self.nvm += 1
            if l.startswith('ds_') and not self.maybe: self.nlg += 1
            self.p.e(l)
        return self.nvm
    def wvm(self, i): return f'vmcnt({min(62, self.nvm - i)})'
    def wlg(self, i): return f'lgkmcnt({min(14, self.nlg - i)})'
    def stamp(self, name):
        if self.opt('jitter', 0) and name in ('x_arrived','_wm','kgen2','u_ready','_c54','conv','z_ok','_ln2bar','f2_ok','_g96','_g160','g1_mfma','_h14','_h42'):
            L = self.p.label('jit'); self.jn = getattr(self, 'jn', 0) + 1
            self.e(f'''s_lshl2_add_u32 s22, s2, s{sW}
            s_add_u32 s22, s22, {self.jn*977 + self.opt('jitter', 0)*131}
            s_mul_i32 s22, s22, 0x9E3779B1
            s_lshr_b32 s23, s22, 15
            s_xor_b32 s22, s22, s23
            s_mul_i32 s22, s22, 0x85EBCA6B
            s_lshr_b32 s22, s22, 27
            s_cmp_lg_u32 s22, 0
            s_cbranch_scc1 {L}
            s_sleep 100
            {L}:''')
        if not self.stamps: return
        if self.o.get('probe') is not None and name != self.o['probe']: return
        if self.o.get('only') and not (name == 'start' or name.startswith(tuple(self.o['only'].split(',')))): return
        if not self.o.get('only') and self.o.get('probe') is None and name.startswith('_'): return
        assert self.ns < 20
        self.e(f'{"s_memtime" if self.opt("cyc", 0) else "s_memrealtime"} s[22:23]\ns_waitcnt lgkmcnt(0)\ns_mov_b32 s{sStamp+self.ns}, s22')
        self.ns += 1; self.stamp_names.append(name)

    def check_text(self, loads, tags, last):
        Lc = self.p.label('chk'); Lr = self.p.label('retry')
        s = f's_waitcnt {self.wvm(last)}\n{Lc}:\n'
        if len(tags) == 1:
            s += f'v_cmp_ne_u32 vcc, v{tags[0]}, v2\ns_cmp_lg_u64 vcc, 0\ns_cbranch_scc1 {Lr}'
            self.tail.append(f'''{Lr}:
            s_sub_u32 s{sCnt}, s{sCnt}, 1
            s_cbranch_scc1 L_end
            {loads}
            s_waitcnt vmcnt(0)
            s_branch {Lc}''')
        else:
            s += f'v_cmp_ne_u32 {sp(sBad)}, v{tags[0]}, v2\n'
            for t in tags[1:]: s += f'v_cmp_ne_u32 vcc, v{t}, v2\ns_or_b64 {sp(sBad)}, {sp(sBad)}, vcc\n'
            s += f's_cbranch_scc1 {Lr}'
            self.tail.append(f'''{Lr}:
            s_sub_u32 s{sCnt}, s{sCnt}, 1
            s_cbranch_scc1 L_end
            s_mov_b64 exec, {sp(sBad)}
            {loads}
            s_mov_b64 exec, -1
            s_waitcnt vmcnt(0)
            s_branch {Lc}''')
        return s
    def check(self, loads, tags, last): self.e(self.check_text(loads, tags, last))

    def flag_text(self, vaddr, soff):
        return f's_mov_b32 exec_hi, 0\nbuffer_store_dword v2, v{vaddr}, {SRD}, s{soff} offen sc1\ns_mov_b32 exec_hi, -1'

    def stats_partial(self, src, t, vSBw, fill=()):
        a,b,c,d = t,t+1,t+2,t+3
        for m in range(4):
            acc = lambda r: '0' if m == 0 else f'v{r}'
            self.e(f'''v_dot2_f32_bf16 v{a}, v{src+m}, s{sOnes}, {acc(a)}
            v_dot2_f32_bf16 v{b}, v{src+4+m}, s{sOnes}, {acc(b)}
            v_dot2_f32_bf16 v{c}, v{src+m}, v{src+m}, {acc(c)}
            v_dot2_f32_bf16 v{d}, v{src+4+m}, v{src+4+m}, {acc(d)}''')
        self.reduce4(a,b,c,d, fill)
        self.e(f'ds_write_b32 v{vSBw}, v{a}')
    def reduce4(self, a,b,c,d, fill=()):
        fill = list(fill)
        def f(n):
            for _ in range(n):
                if fill: self.e(fill.pop(0))
        f(2); self.e(f'v_permlane32_swap_b32 v{a}, v{b}\nv_permlane32_swap_b32 v{c}, v{d}\nv_add_f32 v{a}, v{a}, v{b}\nv_add_f32 v{c}, v{c}, v{d}')
        f(2); self.e(f'v_permlane16_swap_b32 v{a}, v{c}\nv_add_f32 v{a}, v{a}, v{c}')
        f(2); self.e(f'v_add_f32_dpp v{a}, v{a}, v{a} row_ror:4 row_mask:0xf bank_mask:0xf')
        f(2); self.e(f'v_add_f32_dpp v{a}, v{a}, v{a} row_ror:8 row_mask:0xf bank_mask:0xf')
        self.rest = fill
    def stats_read(self, t, vSBr):
        for w in range(4): self.e(f'ds_read_b128 {vr(t+4*w,4)}, v{vSBr} offset:{16*w}')
        return self.nlg
    def stats_finish(self, t, vInv, scale=None, pre=None):
        self.e(f'''
        v_pk_add_f32 {vr(t,2)}, {vr(t,2)}, {vr(t+4,2)}
        v_pk_add_f32 {vr(t+2,2)}, {vr(t+2,2)}, {vr(t+6,2)}
        v_pk_add_f32 {vr(t+8,2)}, {vr(t+8,2)}, {vr(t+12,2)}
        v_pk_add_f32 {vr(t+10,2)}, {vr(t+10,2)}, {vr(t+14,2)}
        v_pk_add_f32 {vr(t,2)}, {vr(t,2)}, {vr(t+8,2)}
        v_pk_add_f32 {vr(t+2,2)}, {vr(t+2,2)}, {vr(t+10,2)}
        v_pk_mul_f32 {vr(t+4,2)}, {vr(t,2)}, {vr(vInv,2)} op_sel_hi:[1,0]
        v_pk_mul_f32 {vr(t+6,2)}, {vr(t+2,2)}, {vr(vInv,2)} op_sel_hi:[1,0]
        v_fma_f32 v{t+5}, -v{t+4}, v{t+4}, v{t+5}
        v_fma_f32 v{t+7}, -v{t+6}, v{t+6}, v{t+7}
        v_max_f32 v{t+5}, 0, v{t+5}
        v_max_f32 v{t+7}, 0, v{t+7}
        {f'v_fmamk_f32 v{t+5}, v{t+5}, {fbits(pre)}, v{vInv+1}' if pre else f'v_add_f32 v{t+5}, v{vInv+1}, v{t+5}'}
        {f'v_fmamk_f32 v{t+7}, v{t+7}, {fbits(pre)}, v{vInv+1}' if pre else f'v_add_f32 v{t+7}, v{vInv+1}, v{t+7}'}
        v_rsq_f32 v{t}, v{t+5}
        v_rsq_f32 v{t+2}, v{t+7}''')
        if scale: self.e(f'v_mul_f32 v{t}, {fbits(scale)}, v{t}\nv_mul_f32 v{t+2}, {fbits(scale)}, v{t+2}')
        self.e(f'''
        v_mul_f32 v{t+1}, -v{t+4}, v{t}
        v_mul_f32 v{t+3}, -v{t+6}, v{t+2}''')
    def cmul(self, d, a, b):
        return [f'v_pk_mul_f32 {vr(d,2)}, {vr(a,2)}, {vr(b,2)} op_sel_hi:[1,0]',
                f'v_pk_fma_f32 {vr(d,2)}, {vr(a,2)}, {vr(b,2)}, {vr(d,2)} op_sel:[1,1,0] op_sel_hi:[0,1,1] neg_lo:[1,0,0]']
    def unpack(self, d, s): return [f'v_lshlrev_b32 v{d}, 16, v{s}', f'v_and_b32 v{d+1}, s{sMask}, v{s}']

    def dma_tile(self, i, slot):
        return [(i, slot, slot*32768 + hf*4096, i*32768 + hf*4096,
                 f'buffer_load_dwordx4 v1, {SRD}, s{sDmaT} offen offset:{e_*1024} sc1 lds') for hf in range(2) for e_ in range(4)]
    def set_m0(self, off):
        if self.m0 != off: self.e(f's_add_u32 m0, s{sDmaL}, {off}'); self.m0 = off

    def build(self):
        p = self.p; e = self.e
        k = NAME + '_kernel'
        p.header = '''One persistent launch, 256 workgroups (one per CU) x 4 waves. Each workgroup owns 8 rows (LN1, LN2), 2 channels (S4 conv),
one 128x112 GEMM1 tile and one 64x64 GEMM2 tile. Hand-offs go through d_ws with write-through stores and cache-bypassing loads,
so they hold under any placement. Each launch derives a tag from the epoch word at d_ws[0] (rewritten at the end); handed-over
words carry that tag in exponent bits freed by an exact power-of-two scaling (or in a flag word), which tells them from older data.'''.split('\n')
        p.add_launch(k, 256, 256, LDS_BYTES)
        p.begin(k)
        XR = 4; WM = 12; AB = 28; WG = 36
        vXO = 3; t = 68
        vTg = 252; vWgL = 35; vTab = 97; vPf = 255; vInv = 52; vDt = 34; vS = 54; vPolled = 123; vMBw = 159
        vSBw, vSBr, vMBr, vEM = 112, 113, 114, 115
        vRW, vKa, vKb0, vKb1 = 116, 117, 118, 119
        vWgS, vTw, vTr, vF = 124, 125, 126, 127
        vEX, vWdA, vBv, vOne = 64, 65, 66, 67
        vKw0, vKw1, vBd, vBd2 = 120, 121, 122, 123
        vPA, vPX, vQ, vUS = 56, 57, 58, 59
        vYw, vYr, vUB, vUw = 60, 61, 62, 63
        TP = 160; TB = 98304
        def consts(tid):
            w, l = tid >> 6, tid & 63; ch, hb = w >> 1, w & 1; c, q_, rp = l & 15, l >> 4, l & 3
            P = L_P + ch*PSZ; U = L_U + ch*USZ; RC = L_RC + ch*RCSZ
            lo, wd = [(3,3),(6,5),(5,7),(4,9)][w]
            x = l - 16 - lo
            band = (0x3f80 if 0 <= x < wd else 0) | (0x3f800000 if 0 <= x-1 < wd else 0)
            if c < 8: kw1 = P + 4*(608 + 16*[1,5,2,6,10,11,12,13][c] + 8*hb + 2*q_)
            elif 120 <= (tid & 127) < 125: kw1 = P + 4*((520 if c < 11 else 568) + c) - 932
            else: kw1 = L_JK
            sw = (((l >> 1) & 3) ^ q_) * 16
            full = [(tid >> 2)*HBLK + rp*16, (448*w + 16*((l>>4)&1) + 4*((l>>2)&3))*1024 + (l>>5)*64 + (l&3)*16, band, 0x3f800000 if q_ == 2 else 0]
            half = {vSBw: L_SB + rp*64 + w*16 + q_*4, vSBr: L_SB + rp*64,
              vMBr: L_MB + 4*(192*((l>>1)&1) + 2*(8*w + ((l>>2)&7)) + (l&1)), vMBw: L_MB + 32*tid,
              vRW: RC + 4*(tid & 127), vKa: RC + (16*hb + c)*RST + 16*q_,
              vKb0: RC + [0,1,2,3,4,5,6,7,8,8,9,10,10,10,11,12][c]*RST + 16*q_, vKb1: RC + [1,2,3,4,5,6,7,8,0,0,0,4,4,0,0,0][c]*RST + 16*q_,
              vF: 4*l, vTr: w*8192 + (l>>5)*256 + ((l>>2)&3)*64 + ((l>>4)&1)*32 + (l&3)*8,
              vEM: (l >> 2)*2048 + rp*16, vWgS: q_*512 + c*16,
              vKw0: P + 64 + 512*hb + 4*((c&7) + 256*(c>>3) + 32*q_), vKw1: kw1,
              vBd: L_BD + 4*(26 + c - 8*q_), vBd2: L_BD + 4*(26 + c - 8*q_) + 256*hb,
              vPA: P + 512*hb + 4*(26 + c - 8*q_), vPX: (P + 2048 if hb == 0 else L_ZB) + 4*(26 + c - 8*q_),
              vQ: P + 4*(608 + 12 + c - 4*q_) + 928*hb, vUS: U + 32*c + 16*q_ + 480 - 16*hb,
              vYw: L_Y + w*8192 + c*64 + sw, vYr: L_Y + (tid >> 2)*64 + (((rp >> 1) ^ ((tid >> 3) & 3))*16) + (rp & 1)*8, vUB: U + 32*c + 16*q_ + 288 - 256*hb, vUw: L_U + 512 + 4*tid}
            return full, half
        hlate = [vPA, vPX, vQ, vUS, vYw, vYr, vUB, vTr]
        hregs = [r for r in consts(0)[1] if r not in hlate] + hlate; assert len(hregs) == 24
        hbase = {r: (TB if consts(0)[1][r] >= TB else 0) for r in hregs}
        def trow(tid):
            full, half = consts(tid)
            h = [half[r] - hbase[r] for r in hregs]; assert all(0 <= v < 65536 for v in h)
            return [h[2*i] | h[2*i+1] << 16 for i in range(12)] + full
        self.table = [v for qd in range(4) for tid in range(256) for v in trow(tid)[4*qd:4*qd+4]]
        def tunpack():
            out = []
            for i, r in enumerate(hregs):
                b_ = f's{sT+9}' if hbase[r] else '0'
                out.append(f'v_add_u32_sdwa v{r}, {b_}, v{TP+(i>>1) if i < 16 else 144+(i>>1)} dst_sel:DWORD dst_unused:UNUSED_PAD src0_sel:DWORD src1_sel:WORD_{i&1}')
            return out
        MAP2 = self.opt('map2', 84)
        NF = 0
        groups = ([tuple(range(NF))] if NF else []) + [(i,) for i in range(NF, 7)]
        korder = [7*pp + i for g in groups for pp in range(4) for i in g]
        wslot = [int(c) for c in str(self.opt('wslot', 'x0123232'))[1:]]
        wdq = [(Gl, jh, c) for Gl in range(7) for jh in range(2) for c in range(4)]
        trq = [(Gl, 4*Gl+c, f'ds_read_b64_tr_b16 {ar(8*(4*Gl+c)+4*cc+2*jh,2)}, v{vTw if wslot[Gl] >= 2 else vTr} offset:{(wslot[Gl]&1)*32768 + jh*4096 + c*1024 + cc*512}')
               for Gl in range(7) for c in range(4) for cc in range(2) for jh in range(2)]
        wd_id = {}; t_id = {}; g_last = {}; wopen = [-1]; trw = [0]; vW = [vWdA]; freed = set()
        def tr_ready(lag): return trq and trq[0][0] in wd_id and wd_id[trq[0][0]] <= self.nvm - lag
        def tr_pop():
            Gl, T, x = trq.pop(0)
            while Gl not in wd_id: wd_one()
            if wd_id[Gl] > trw[0]: trw[0] = wd_id[Gl]; e(f's_waitcnt {self.wvm(trw[0])}')
            e(x); t_id[T] = g_last[Gl] = self.nlg
        def free_slot(sl, upto):
            for Gl in range(upto):
                if wslot[Gl] == sl and Gl not in freed:
                    while trq and trq[0][0] <= Gl: tr_pop()
                    e(f's_waitcnt {self.wlg(g_last[Gl])}'); freed.add(Gl)
        def wd_can():
            if not wdq or wdq[0][0] > wopen[0]: return False
            Gl = wdq[0][0]
            return all(G2 in freed or (G2 in g_last and (not trq or trq[0][0] > G2)) for G2 in range(Gl) if wslot[G2] == wslot[Gl])
        def wd_one():
            Gl, jh, c = wdq.pop(0); assert Gl <= wopen[0], Gl
            free_slot(wslot[Gl], Gl)
            self.set_m0(wslot[Gl]*32768 + jh*4096)
            if c == 0 and (Gl or jh): e(f'v_add_u32 v{vW[0]}, 32768, v{vW[0]}')
            i_ = e(f'global_load_lds_dwordx4 v{vW[0]}, {sp(pWd)} offset:{1024*c}')
            if c == 3 and jh == 1: wd_id[Gl] = i_
        def wd_issue(n):
            for _ in range(n):
                if wd_can(): wd_one()
        dma_id = {}; gcur = [None]
        def tile_one(q_):
            i, sl, off, go, x = q_.pop(0)
            free_slot(sl, 4 if i <= 4 else 0)
            self.set_m0(off)
            if gcur[0] != go: e(f's_add_u32 s{sDmaT}, s{sDmaG}, {go}'); gcur[0] = go
            dma_id[i] = e(x)
        def tr_do(n):
            for _ in range(4*n):
                if tr_ready(self.opt('trlag', 6)): tr_pop()
        self.c('---- prologue: ids, kernel code / constant table towards L2, first loads (x rows, S4 parameters, w_mod slice), address set-up, silu(c)')
        if self.stamps and self.o.get('probe') is None:
            e(f'{"s_memtime" if self.opt("cyc", 0) else "s_memrealtime"} s[{sStamp}:{sStamp+1}]'); self.ns += 1; self.stamp_names.append('start')
        if self.o.get('probe') is not None: e('s_memrealtime s[100:101]')
        XF1 = self.opt('xfirst', 0)
        if XF1:
            e(f"""
            s_load_dwordx2 {sp(sBad)}, s[0:1], 0
            s_cmp_ge_u32 s2, 256
            s_cbranch_scc1 L_end
            s_lshr_b32 s3, s2, 3
            s_and_b32 s{sT+1}, s2, 7
            s_lshl_b32 s{sL}, s{sT+1}, 5
            s_or_b32 s{sL}, s{sL}, s3
            v_and_b32 v{t+2}, 3, v0
            v_and_b32 v{t+3}, 0xfc, v0
            s_lshl_b32 s{sT+3}, s{sL}, 13
            v_lshl_add_u32 v{t+3}, v{t+3}, 2, s{sT+3}
            v_lshl_add_u32 v{vXO}, v{t+2}, 11, v{t+3}
            s_waitcnt lgkmcnt(0)
            global_load_dwordx4 {vr(XR,4)}, v{vXO}, {sp(sBad)}""")
            id_x = e(f'global_load_dwordx4 {vr(XR+4,4)}, v{vXO}, {sp(sBad)} offset:1024')
        e(f"""
        s_load_dwordx16 s[4:19], s[0:1], 0
        s_load_dwordx16 s[20:35], s[0:1], 64
        s_load_dwordx4 s[36:39], s[0:1], 128
        s_cmp_ge_u32 s2, 256
        s_cbranch_scc1 L_end
        v_lshrrev_b32 v{t}, 6, v0
        v_and_b32 v{t+1}, 63, v0
        v_readfirstlane_b32 s{sW}, v{t}
        s_lshr_b32 s3, s2, 3
        s_getpc_b64 {sp(sM)}
        L_pc:
        s_lshl2_add_u32 s{sT}, s3, s{sW}
        s_lshl_b32 s{sM+2}, s{sT}, 8
        s_min_u32 s{sM+2}, s{sM+2}, L_end-L_pc-256
        v_lshl_add_u32 v{t+7}, v{t+1}, 2, s{sM+2}
        global_load_dword v123, v{t+7}, {sp(sM)}
        s_add_u32 s{sM+4}, s{sM}, L_tab-L_pc+4096
        s_addc_u32 s{sM+5}, s{sM+1}, 0
        v_lshlrev_b32 v{vTab}, 4, v0""")
        id_tab = e(f"""
        global_load_dwordx4 {vr(TP,4)}, v{vTab}, {sp(sM+4)} offset:-4096
        global_load_dwordx4 {vr(TP+4,4)}, v{vTab}, {sp(sM+4)}
        v_add_u32 v{vTab}, 8192, v{vTab}
        global_load_dwordx4 {vr(152,4)}, v{vTab}, {sp(sM+4)} offset:-4096
        global_load_dwordx4 {vr(vEX,4)}, v{vTab}, {sp(sM+4)}""")
        e(f"""
        s_and_b32 s{sT+1}, s2, 7
        s_lshl_b32 s{sL}, s{sT+1}, 5
        s_or_b32 s{sL}, s{sL}, s3
        v_lshlrev_b32 v1, 4, v{t+1}
        v_and_b32 v{t+2}, 3, v0
        v_and_b32 v{t+3}, 0xfc, v0
        s_lshl_b32 s{sT+3}, s{sL}, 13
        v_lshl_add_u32 v{t+3}, v{t+3}, 2, s{sT+3}
        v_lshl_add_u32 v{vXO}, v{t+2}, 11, v{t+3}
        v_lshrrev_b32 v{t+4}, 3, v{t+1}
        v_min_u32 v{t+4}, 5, v{t+4}
        v_and_b32 v{t+5}, 0x70, v1
        v_lshl_add_u32 v{t+4}, v{t+4}, 10, v{t+5}
        s_lshl_b32 s{sT+2}, s{sT}, 3
        s_mul_i32 s{sT}, s{sT}, {4*6144}
        s_lshl_b32 s{sT+1}, s{sT+1}, 7
        s_add_u32 s{sT}, s{sT}, s{sT+1}
        s_add_u32 s{sT}, s{sT}, 3072
        v_add_u32 v{t+4}, s{sT}, v{t+4}
        v_add_u32 v{t+5}, 12288, v{t+4}
        s_lshl_b32 s{sT}, s{sL}, 9
        v_lshl_add_u32 v{t+6}, v0, 1, s{sT}
        s_lshl_b32 s{sT+3}, s{sL}, 2
        """)
        for i in range(6): e(f'v_mov_b32 v{AB+i}, 0')
        e('v_mov_b32 v2, 0')
        e('s_waitcnt lgkmcnt(0)')
        self.stamp('karg')
        e(f"""
        s_load_dwordx2 {sp(sT+4)}, {sp(pC)}, s{sT+2}""")
        LN = self.opt('lnn', -1)
        e(f's_load_dword s{sT+6}, {sp(pLdt)}, s{sT+3}')
        def abl():
            for i, ptr in enumerate([pAre,pAim,pBre,pBim,pCre,pCim]):
                i_ = e(f'global_load_short_d16_hi v{AB+i}, v{t+6}, {sp(ptr)}')
            return i_
        if LN >= 0: id_ab = abl()
        if not XF1: id_x = e(f'global_load_dwordx4 {vr(XR,4)}, v{vXO}, {sp(pX)}\nglobal_load_dwordx4 {vr(XR+4,4)}, v{vXO}, {sp(pX)} offset:1024')
        id_ep = e(f"""
        s_load_dword s{sDsk+1}, {sp(pD)}, s{sT+3}
        global_load_dword v2, v2, {sp(pWs)} sc1""")
        if LN < 0: id_ab = abl()
        idm = [0]
        def wm_issue(k_):
            if self.opt('wmat', 2) == k_: idm[0] = e(f"""
            global_load_dwordx4 {vr(WM,4)}, v{t+4}, {sp(pWm)} offset:-3072
            global_load_dwordx4 {vr(WM+4,4)}, v{t+4}, {sp(pWm)} offset:3072
            global_load_dwordx4 {vr(WM+8,4)}, v{t+5}, {sp(pWm)} offset:-3072
            global_load_dwordx4 {vr(WM+12,4)}, v{t+5}, {sp(pWm)} offset:3072""")
        wm_issue(0)
        GR = 144
        u = 92
        e(f"""
        s_mov_b32 s{sMask}, 0xffff0000
        s_mov_b32 s{sLo}, 0x05040100
        s_mov_b32 s{sHi}, 0x07060302
        s_mov_b32 s{sOnes}, 0x3f803f80
        v_mov_b32 v{t+12}, {fbits(-1.4426950408889634)}
        s_add_u32 s{sT+7}, s{sT+3}, s{sW}
        s_min_u32 s{sT}, s{sT+7}, 895
        v_and_b32 v{t+8}, 15, v{t+1}
        s_lshl_b32 s37, s{sT}, 11
        s_mov_b64 s[0:1], {sp(pWd)}
        s_bitcmp1_b32 s{sT}, 0
        s_cselect_b32 s{pWu}, s{pWu}, s{pWg}
        s_cselect_b32 s{pWu+1}, s{pWu+1}, s{pWg+1}
        s_cselect_b32 s{sWs}, 256, 0
        s_bfe_u32 s{sT+1}, s{sT}, 0x40001
        s_lshr_b32 s{sT+2}, s{sT}, 5
        s_mul_i32 s{sT+8}, s{sT+1}, {32*3584}
        s_lshl_b32 s{sT+3}, s{sT+2}, 7
        s_add_u32 s{sT+8}, s{sT+8}, s{sT+3}
        v_lshrrev_b32 v{t+7}, 4, v{t+1}
        v_mul_u32_u24 v{t+7}, {8*3584}, v{t+7}
        v_lshl_add_u32 v{t+10}, v{t+8}, 3, s{sT+8}
        v_add_u32 v{vWgL}, v{t+10}, v{t+7}
        s_lshl_b32 s{sF1o}, s{sT+7}, 7
        s_add_u32 s{sF1o}, s{sF1o}, {F1}
        v_mov_b32 v{u}, 0
        v_mov_b32 v{u+1}, 0
        v_mov_b32 v{u+2}, 0
        v_mov_b32 v{u+3}, 0
        v_lshlrev_b32 v{u+4}, 4, v0
        v_add_u32 v{u+4}, {L_P}, v{u+4}
        s_lshr_b32 s{sCh}, s{sW}, 1
        s_mul_i32 s{sT}, s{sCh}, {USZ-512}
        s_add_u32 s{sT}, s{sT}, {L_U}
        v_lshl_add_u32 v{t+9}, v0, 2, s{sT}
        s_mov_b32 s{sT+9}, {TB}
        """)
        wm_issue(1)
        e(f"""
        ds_write_b128 v{u+4}, {vr(u,4)}
        ds_write_b128 v{u+4}, {vr(u,4)} offset:4096
        ds_write_b128 v{u+4}, {vr(u,4)} offset:8192
        ds_write_b32 v{t+9}, v{u}
        """)
        e(f"""
        s_mov_b32 s40, s{pWs}
        s_mov_b32 s41, s{pWs+1}
        s_mov_b32 s42, {WS_BYTES}
        s_mov_b32 s43, 0x20000
        s_mov_b32 s{sCnt}, {self.opt('cnt', 40000 if self.stamps else 400000)}
        v_mov_b32 v{vInv}, {fbits(1/512)}
        v_mov_b32 v{vInv+1}, {fbits(1e-5)}
        s_mul_i32 s{sT}, s{sL}, {HBLK}
        s_lshl_b32 s{sT+1}, s{sW}, 11
        s_add_u32 s{sT+1}, s{sT}, s{sT+1}
        s_add_u32 s{sT+1}, s{sT+1}, {XH}
        s_lshl_b32 s{sT+2}, s{sT+7}, 9
        s_add_u32 s{sT+2}, s{sT+2}, {MODP}
        s_mov_b32 s{sTag}, 1664525
        s_lshl_b32 s{sT+3}, s{sW}, 10
        s_add_u32 s{sT}, s{sT}, s{sT+3}
        s_add_u32 s{sZs}, s{sT}, {ZY}
        s_add_u32 s{sZs+1}, s{sT}, {ZY+4096}
        s_lshl_b32 s{sZs+3}, s{sL}, 4
        s_add_u32 s{sZs+3}, s{sZs+3}, {MX}
        s_cmp_eq_u32 s{sW}, 0
        s_cselect_b32 s{sZs+2}, s{sZs+3}, {WS_BYTES}
        s_mov_b32 s{sTm}, {TAGM}
        v_lshlrev_b32 v{vTg}, 2, v{t+2}
        v_add_u32 v{vTg+1}, 2, v{vTg}""")
        lateE = [x for x in f"""
        s_lshr_b32 s{sT}, s{sL}, 6
        s_bfe_u32 s{sT+3}, s{sL}, 0x10001
        s_lshl1_add_u32 s{sT}, s{sT}, s{sT+3}
        s_bfe_u32 s{sT+3}, s{sL}, 0x40002
        s_lshl4_add_u32 s{sT}, s{sT}, s{sT+3}
        s_and_b32 s{sT+3}, s{sL}, 1
        s_lshl3_add_u32 s{sT}, s{sT}, s{sT+3}
        s_lshl_b32 s{sT}, s{sT}, 3
        s_add_u32 s{sE1}, s{sT}, {XH}
        s_add_u32 s{sE1+1}, s{sT}, {XH+64*HBLK}
        s_add_u32 s{sE1+2}, s{sT}, {XH+128*HBLK}
        s_add_u32 s{sE1+3}, s{sT}, {XH+192*HBLK}
        s_and_b32 s{sT}, s2, 7
        s_lshl_b32 s{sT}, s{sT}, 10
        s_add_u32 s{sT}, s{sT}, s3
        s_lshl_b32 s{sT}, s{sT}, 6
        s_add_u32 s{sE1+4}, s{sT}, {MODP}
        s_add_u32 s{sE1+5}, s{sT}, {MODP+32768}
        """.split('\n') if x.strip()]
        DF = self.opt('defer', 1)
        if not DF:
            while lateE: e(lateE.pop(0))
        wgq = []; idw = [0]
        for jj in range(8):
            wgq.append(f'global_load_dwordx2 {vr(WG+2*jj,2)}, v{vWgL}, {sp(pWu)} offset:{3584*(jj&1)}' + (f'\nv_add_u32 v{vWgL}, 7168, v{vWgL}' if jj & 1 and jj < 7 else ''))
        def wg_issue(n):
            for _ in range(n):
                if wgq: idw[0] = e(wgq.pop(0))
        WGA = self.opt('wgat', 5)
        wm_issue(2); id_wm = idm[0]
        PFA = self.opt('pfat', 13)
        def wd_pf(r=vPf): e(f'v_and_b32 v{r}, 15, v0\nv_lshl_add_u32 v{r}, v{r}, 7, s37\nglobal_load_dword a223, v{r}, s[0:1]')
        if PFA == 0: wd_pf()
        PF2 = self.opt('pf2', 4); vPf2 = 94; assert PF2 in (-1, 2, 3, 4) and WGA in (0, 1, 5, 6, 7, 8)
        lateK = [x for x in f"""
        s_and_b32 s{sT}, s{sT+7}, 127
        s_mul_i32 s{sT}, s{sT}, 28
        s_bfe_u32 s{sT+3}, s2, {0x10001 if MAP2 == 84 else 0x10000 if MAP2 == 45 else 0}
        s_add_u32 s{sT}, s{sT}, s{sT+3}
        s_lshl_b32 s{sT}, s{sT}, 9
        s_add_u32 s15, s{sT}, 384
        s_lshr_b32 s{sT}, s{sT+7}, 5
        s_lshl_b32 s{sT}, s{sT}, 6
        s_bfe_u32 s{sT+3}, s{sT+7}, 0x40001
        s_add_u32 s{sT}, s{sT}, s{sT+3}
        s_lshl_b32 s{sT}, s{sT}, 11
        s_add_u32 s{sWs}, s{sWs}, s{sT}
        s_add_u32 s{sWs}, s{sWs}, {WGU}
        s_cmp_ge_u32 s{sL}, 224|s_cselect_b32 s{sWs}, {WS_BYTES}, s{sWs}
        s_bfe_u32 s{sT}, s{sL}, {0x10006 if MAP2 == 84 else 0x10005 if MAP2 == 45 else 0x10002}
        s_and_b32 s{sDt}, s{sL}, 3
        s_lshl2_add_u32 s{sDt}, s{sT}, s{sDt}
        s_lshl_b32 s{sT}, s{sDt}, 7
        s_add_u32 s{pWd}, s{pWd}, s{sT}|s_addc_u32 s{pWd+1}, s{pWd+1}, 0
        s_lshl_b32 s{sDmaL}, s{sW}, 13""".split('\n') if x.strip()]
        lateK = [x.replace('|', '\n') for x in lateK]
        assert not DF or (not self.opt('wde', 0) and self.opt('wjn', -1) >= -1)
        def wd_pf2(k_):
            if PF2 == k_: e(f'v_min_u32 v{vPf2}, {13*16}, v1\nv_lshl_add_u32 v{vPf2}, v{vPf2}, 6, s15\nglobal_load_dword a222, v{vPf2}, s[0:1]')
        wd_pf2(0)
        TCH = self.opt('tch', 13); NZ = self.opt('tchz', 8); vTc = 158
        if TCH >= 0:
            e(f"""
            v_and_b32 v{vTc-1}, 7, v0
            v_lshl_add_u32 v{vTc-2}, v{vTc-1}, 7, s{sZs+1}
            s_sub_u32 s{sT}, s{sF1o}, {F1-F3}
            v_cmp_gt_u32 vcc, 2, v{vTc-1}
            v_lshl_add_u32 v{vTc-1}, v{vTc-1}, 19, s{sT}
            v_mov_b32 v{vTc}, s{sZs+3}
            v_cndmask_b32 v{vTc}, v{vTc}, v{vTc-1}, vcc""")
            if self.opt('tchs', 0): e(f"""
            s_lshr_b32 s{sT}, s{sL}, 2
            s_lshl2_add_u32 s{sT}, s{sT}, s{sW}
            s_lshl_b32 s{sT}, s{sT}, 5
            s_and_b32 s{sT+3}, s{sL}, 3
            s_add_u32 s{sT}, s{sT}, s{sT+3}
            s_lshl_b32 s{sT}, s{sT}, 8
            s_add_u32 s{sT}, s{sT}, {H2}
            v_and_b32 v{vTc-1}, 6, v0
            v_cmp_eq_u32 vcc, 2, v{vTc-1}
            v_and_b32 v{vTc-1}, 1, v0
            v_lshl_add_u32 v{vTc-1}, v{vTc-1}, 7, s{sT}
            v_cndmask_b32 v{vTc}, v{vTc}, v{vTc-1}, vcc""")
            e(f"""
            v_cmp_gt_u32 vcc, {NZ*16}, v1
            s_nop 1
            v_cndmask_b32 v{vTc}, v{vTc}, v{vTc-2}, vcc""")
        if self.opt('tchh', -1) >= 0:
            e(f"""
            s_lshr_b32 s{sT}, s{sL}, 2
            s_lshl2_add_u32 s{sT}, s{sT}, s{sW}
            s_lshl_b32 s{sT}, s{sT}, 5
            s_and_b32 s{sT+3}, s{sL}, 3
            s_add_u32 s{sT}, s{sT}, s{sT+3}
            s_lshl_b32 s{sT}, s{sT}, 8
            s_add_u32 s{sT}, s{sT}, {H2}
            v_bfe_u32 v154, v0, 1, 3
            v_lshl_add_u32 v154, v154, 10, s{sT}
            v_and_b32 v153, 1, v0
            v_lshl_add_u32 v154, v153, 7, v154""")
        def touch(k_):
            if self.opt('tchh', -1) == k_: e(f'global_load_dword a220, v154, {sp(pWs)}')
            if TCH == k_: e(f'global_load_dword a221, v{vTc}, {sp(pWs)}')
        touch(0)
        if WGA == 0: wg_issue(8)
        self.stamp('_pretab')
        e(f's_waitcnt {self.wvm(id_tab)}')
        self.stamp('_tab')
        tu = tunpack()
        for x in tu[:16]: e(x)
        lateK += tu[16:]
        if not DF:
            while lateK: e(lateK.pop(0))
        wm_issue(3); id_wm = idm[0]
        sc = sM + 6
        e(f"""
        s_waitcnt lgkmcnt(0)
        s_lshl_b32 s{sc}, s{sT+4}, 16
        s_and_b32 s{sc+1}, s{sT+4}, s{sMask}
        s_lshl_b32 s{sc+2}, s{sT+5}, 16
        s_and_b32 s{sc+3}, s{sT+5}, s{sMask}""")
        self.stamp('_smem')
        for i in range(4): e(f'v_mul_f32 v{t+13+i}, s{sc+i}, v{t+12}')
        e(f"""
        s_lshl_b32 s{sT+4}, s{sCh}, 4
        s_lshr_b32 s{sT+5}, s{sT+6}, s{sT+4}
        s_lshl_b32 s{sT+5}, s{sT+5}, 16""")
        for i in range(4): e(f'v_exp_f32 v{t+13+i}, v{t+13+i}')
        e(f'v_mul_f32 v{vDt}, s{sT+5}, -v{t+12}')
        for i in range(4): e(f'v_add_f32 v{t+13+i}, 1.0, v{t+13+i}')
        e(f'v_exp_f32 v{vDt}, v{vDt}')
        for i in range(4): e(f'v_rcp_f32 v{t+13+i}, v{t+13+i}')
        e(f'v_cvt_pk_bf16_f32 v{vDt}, v{vDt}, v{vDt}')
        for i in range(4): e(f'v_mul_f32 v{t+13+i}, s{sc+i}, v{t+13+i}')
        e(f"""v_lshlrev_b32 v{vDt}, 16, v{vDt}
        v_cvt_pk_bf16_f32 v{vS}, v{t+13}, v{t+14}
        v_cvt_pk_bf16_f32 v{vS+1}, v{t+15}, v{t+16}
        s_lshr_b32 s{sDsk}, s{sDsk+1}, s{sT+4}
        s_lshl_b32 s{sDsk}, s{sDsk}, 16""")
        unp = []; vTP = 26; tl1 = 192
        MA = 160; MP = 168; MR = 176; MPOS = self.opt('modpos', 1)
        def mod_partial():
            e(f's_waitcnt {self.wvm(id_wm)}')
            self.stamp('_wm')
            for h in range(2):
                for m in range(4):
                    e(f"""v_perm_b32 v{MP+2*m}, v{WM+8*h+4+m}, v{WM+8*h+m}, s{sLo}
                    v_perm_b32 v{MP+1+2*m}, v{WM+8*h+4+m}, v{WM+8*h+m}, s{sHi}""")
                for m in range(8):
                    e(f'v_dot2_f32_bf16 v{MA+m}, v{MP+m}, v{vS+h}, {"0" if h==0 else "v%d"%(MA+m)}')
            e(f'ds_write_b128 v{vMBw}, {vr(MA,4)}')
            if unp: e(unp.pop(0)); e(unp.pop(0))
            e(f'ds_write_b128 v{vMBw}, {vr(MA+4,4)} offset:16')
        def mod_read():
            if MPOS == 1: e('s_waitcnt lgkmcnt(0)\ns_barrier')
            for w in range(0, 4, 2):
                for i in range(3):
                    e(f'ds_read2st64_b32 {vr(MR+3*w+2*i,2)}, v{vMBr} offset0:{8*w+i} offset1:{8*w+8+i}')
            return self.nlg
        def mod_store(i_):
            e(f"""
            s_waitcnt {self.wlg(i_)}
            v_pk_add_f32 {vr(MR,2)}, {vr(MR,2)}, {vr(MR+6,2)}
            v_pk_add_f32 {vr(MR+2,2)}, {vr(MR+2,2)}, {vr(MR+8,2)}
            v_pk_add_f32 {vr(MR+4,2)}, {vr(MR+4,2)}, {vr(MR+10,2)}
            v_mov_b32 v{MR+15}, v2
            v_add_f32 v{MR+12}, v{MR}, v{MR+1}
            v_add_f32 v{MR+13}, v{MR+2}, v{MR+3}
            v_add_f32 v{MR+14}, v{MR+4}, v{MR+5}
            s_mov_b32 exec_hi, 0
            buffer_store_dwordx4 {vr(MR+12,4)}, v1, {SRD}, s{sT+2} offen sc1
            s_mov_b32 exec_hi, -1""")
            self.stamp('_modst')
            if PFA == 1: wd_pf()
            wd_pf2(1)
            touch(1)
            if self.opt('wde', 0):
                assert wslot[0] == 2 and self.opt('modfast', 1); wopen[0] = 0; wd_issue(self.opt('wde', 0))
            if WGA == 1: wg_issue(8)
        assert MPOS == 1
        def ln1():
            self.c("---- LN1 of this workgroup's 8 rows -> xhat handed to the channel owners; partial sums of silu(c) @ w_mod")
            self.stamp('_pre_x')
            e(f's_waitcnt {self.wvm(id_x)}')
            self.stamp('x_arrived')
            if PFA == 5: wd_pf()
            if WGA == 5: wg_issue(8)
            XF = 128
            unp = [x for r in range(2) for i in range(4) for x in self.unpack(XF+8*r+2*i, XR+4*r+i)]
            self.stats_partial(XR, tl1, vSBw, unp)
            unp = self.rest
            e(f'v_add_u32 v{tl1+1}, {L_BD-L_U-512}, v{vUw}\nds_write_b32 v{tl1+1}, v{vBv}')
            if WGA == 7: wg_issue(8)
            e(f's_waitcnt {self.wvm(id_ep)} lgkmcnt(1)\ns_barrier')
            self.stamp('_bar0')
            ST = 196
            id_st = self.stats_read(ST, vSBr)
            if WGA == 8: wg_issue(8)
            while unp: e(unp.pop(0))
            e(f'v_mul_lo_u32 v{tl1}, v2, s{sTag}\ns_mov_b32 s{sTag}, 0x15554000\nv_add_u32 v{tl1}, 1013904223, v{tl1}\nv_bitop3_b32 v2, v{tl1}, v2, s{sTag} bitop3:0x72')
            e(f"""v_alignbit_b32 v{vTg}, v2, v2, v{vTg}
            v_alignbit_b32 v{vTg+1}, v2, v2, v{vTg+1}
            v_and_b32 v{vTg}, s{sTm}, v{vTg}
            v_and_b32 v{vTg+1}, s{sTm}, v{vTg+1}""")
            e(f's_waitcnt {self.wlg(id_st)}')
            self.stats_finish(ST, vInv, 2.0**-100)
            for i in range(4):
                for r in range(2):
                    x = XF+8*r+2*i
                    e(f'v_pk_fma_f32 {vr(x,2)}, {vr(x,2)}, {vr(ST+2*r,2)}, {vr(ST+2*r,2)} op_sel:[0,0,1] op_sel_hi:[1,0,1]')
                for r in range(2):
                    x = XF+8*r+2*i
                    e(f'v_cvt_pk_bf16_f32 v{GR+2*i+r}, v{x}, v{x+1}')
                for r in range(2):
                    e(f'v_bfi_b32 v{GR+2*i+r}, s{sTm}, v{vTg+r}, v{GR+2*i+r}')
                if i & 1: e(f'buffer_store_dwordx4 {vr(GR+2*i-2,4)}, v1, {SRD}, s{sT+1} offen offset:{512*(i-1)} sc1')
            self.stamp('e1_stored')
            if WGA == 6: wg_issue(8)
        if LN < 0: ln1()
        MN = self.opt('modn', 7)
        if MPOS == 1 and MN < 0: mod_partial()
        assert LN < 0 or MN >= LN
        e(f's_waitcnt {self.wvm(id_ab)}\nv_mul_f32 v68, v{vDt}, v{AB}')
        wst = [0]
        def wjob_ops(OB=20, nb=2):
            out = []
            for c in range(4):
                O = OB + 4*(c % nb)
                out += [f'v_perm_b32 v{O+m}, v{WG+2*(2*m+1)+(c>>1)}, v{WG+2*(2*m)+(c>>1)}, s{sHi if c&1 else sLo}' for m in range(4)]
                out += [f'v_add_u32 v{O+m}, 0x20002000, v{O+m}' for m in range(2)]
                out.append(f'buffer_store_dwordx4 {vr(O,4)}, v{vWgS}, {SRD}, s{sWs} offen sc1' + (f'\ns_add_u32 s{sWs}, s{sWs}, 32768' if c < 3 else ''))
            return out
        WJN = self.opt('wjn', -1)
        self.c("---- S4 kernel of this workgroup's 2 channels: z = exp(dt*A) per state, powers z^(8r) and C*dB*z^e by complex products,\nK[8r+e] = Re(sum over states) on the matrix unit; lags are the reference's bf16-rounded lags; Dskip enters as the lag-0 tap")
        al, be = 68, 69
        Z1, Z8, Z256, Wc = 70, 72, 74, 76
        q = 78
        e(f"""
        v_mul_f32 v{be}, v{vDt}, v{AB+1}
        v_mul_f32 v{AB+2}, v{vDt}, v{AB+2}
        v_mul_f32 v{AB+3}, v{vDt}, v{AB+3}
        v_mul_f32 v{q}, {fbits(1.4426950408889634)}, v{al}
        v_mul_f32 v{q+1}, 0.15915494, v{be}
        v_mul_f32 v{Wc}, v{AB+4}, v{AB+2}
        v_mul_f32 v{Wc+1}, v{AB+4}, v{AB+3}
        v_mul_f32 v{q+3}, {fbits(8.0)}, v{q}
        v_mul_f32 v{q+4}, {fbits(8.0)}, v{q+1}
        v_mul_f32 v{q+6}, {fbits(256.0)}, v{q}
        v_mul_f32 v{q+7}, {fbits(256.0)}, v{q+1}
        v_fma_f32 v{Wc}, -v{AB+5}, v{AB+3}, v{Wc}
        v_fma_f32 v{Wc+1}, -v{AB+5}, v{AB+2}, -v{Wc+1}
        """)
        MF = self.opt('modfast', 1) and MN < 0
        if MPOS == 1 and MF: id_mr = mod_read()
        for n_ in range(3): e(f'v_exp_f32 v{q+3*n_}, v{q+3*n_}\nv_fract_f32 v{q+3*n_+1}, v{q+3*n_+1}')
        for n_ in range(3): e(f'v_sin_f32 v{q+3*n_+2}, v{q+3*n_+1}\nv_cos_f32 v{q+3*n_+1}, v{q+3*n_+1}')
        if MPOS == 1 and MF: mod_store(id_mr)
        e(f'v_and_b32 v87, 127, v0\nv_cmp_eq_u32 vcc, 0, v87')
        for n_, (Z, conj) in enumerate([(Z1,True),(Z8,False),(Z256,True)]):
            e(f'v_mul_f32 v{Z}, v{q+3*n_}, v{q+3*n_+1}\nv_mul_f32 v{Z+1}, {"-" if conj else ""}v{q+3*n_}, v{q+3*n_+2}')
        e(f'v_readfirstlane_b32 s{sT}, v{vRW}')
        if MPOS == 1 and not MF and MN < 0: id_mr = mod_read()
        e(f's_mov_b32 m0, s{sT}'); self.m0 = None
        def put(src, row, pk):
            return [f'v_cvt_pk_bf16_f32 v{pk}, v{src}, v{src+1}', f'ds_write_addtid_b32 v{pk} offset:{row*RST}' if self.opt('addtid', 1) else f'ds_write_b32 v{vRW}, v{pk} offset:{row*RST}']
        Z16 = 78
        R0 = [[f'v_mov_b32 v88, 0x3f80', f'ds_write_b32 v{vRW}, v88'], self.cmul(Z16, Z8, Z8) + put(Z16, 2, 88)]
        R1 = [put(Z8, 1, 84), []]
        cur = [Z16, Z8]; bufs = [[80, 82], [90, 92]]
        for rho in range(3, 32):
            par = rho & 1
            d = bufs[par][(rho >> 1) & 1]
            (R1 if par else R0).append(self.cmul(d, cur[par], Z16) + put(d, rho, 84 if par else 88)); cur[par] = d
        Cq = [put(Wc, 32, 89)]
        cr = {0: Wc}
        reg = {1:110, 2:94, 3:110, 4:96, 5:110, 6:98, 7:110, 8:100}
        for ee in range(1, 9):
            Cq.append(self.cmul(reg[ee], cr[ee-1], Z1) + (put(reg[ee], 32+ee, 89) if ee < 8 else [])); cr[ee] = reg[ee]
        chain = [(264,8,44,102),(520,264,46,104),(776,520,48,102),(1032,776,49,104),(1288,1032,50,102),(1544,1288,51,104),(1800,1544,52,102)]
        for ee, src, row, d in chain:
            Cq.append(self.cmul(d, cr[src], Z256) + put(d, row, 89)); cr[ee] = d
        side = [(260,4,42,106),(516,260,45,108),(772,516,47,106)]
        for ee, src, row, d in side:
            R0.append(self.cmul(d, cr[src], Z256) + put(d, row, 88)); cr[ee] = d
        R1.append(self.cmul(90, cr[0], Z256) + put(90, 40, 84))
        R1.append(self.cmul(92, cr[2], Z256) + put(92, 41, 84))
        Cq.append(self.cmul(110, cr[6], Z256) + put(110, 43, 89))
        KD = 12
        Cq.append([f'v_mov_b32 v{KD+1}, s{sDsk}', f'v_mov_b32 v{KD+2}, 0', f'v_cndmask_b32 v{KD}, 0, v{KD+1}, vcc', f'v_mov_b32 v{KD+1}, 0'])
        Cq.append([f'v_mov_b32 v{KD+3}, 0', f'v_mul_f32 v{vBv}, {fbits(2.0**36)}, v{vOne}', f'v_max_f32 v{vBv}, {fbits(2.0**-64)}, v{vBv}'])
        EX = 28; EG = 68
        e1m = '\n'.join(f'buffer_load_dwordx4 {vr(EG+16+4*i,4)}, v{vEM}, {SRD}, s{sE1+4+i} offen sc1' for i in range(2))
        e1x = '\n'.join(f'buffer_load_dwordx2 {vr(EX+2*i,2)}, v{vEX}, {SRD}, s{sE1+i} offen sc1' for i in range(4))
        e1_loads = e1x + '\n' + e1m
        E1AT = self.opt('e1at', 1); E1M = self.opt('e1m', 2); ide = [0]
        def e1_issue(k_):
            if E1AT == k_: ide[0] = e(e1x)
            if max(E1M, E1AT, 0) == k_: ide[0] = e(e1m)
        for n_ in range(max(len(R0), len(R1), len(Cq))):
            if E1AT == -n_ and n_:
                while lateE: e(lateE.pop(0))
                e1_issue(-n_)
            if n_ == LN: ln1()
            if PFA == 10 + n_: wd_pf()
            touch(10 + n_)
            if n_ == MN: mod_partial()
            st = [a_[n_] if n_ < len(a_) else [] for a_ in (R0, R1, Cq)]
            for j in range(4):
                for a_ in st:
                    if j < len(a_): e(a_[j])
            if n_ == 1 and MPOS == 1 and not MF and MN < 0: mod_store(id_mr)
            if MN >= 0 and n_ == MN: id_mr = mod_read()
            if MN >= 0 and n_ == MN+1: mod_store(id_mr)
            if WJN <= -2 and n_ == -WJN-1:
                e(f's_waitcnt {self.wvm(idw[0])}')
                for x in wjob_ops(128): wst[0] = e(x)
        e(f'v_mov_b32 v{vTP}, v{vTg}\nv_mov_b32 v{vTP+1}, v{vTg+1}')
        self.stamp('kgen1')
        e('s_waitcnt lgkmcnt(0)')
        if max(E1AT, 0) == 0:
            while lateE: e(lateE.pop(0))
        e1_issue(0)
        e('s_barrier')
        self.stamp('_kbar1')
        KF = 160
        kf_id = []
        KL = self.opt('kl', 4)
        def kread(kk, j):
            e(f'ds_read_b128 {vr(KF+12*kk+4*j,4)}, v{(vKa,vKb0,vKb1)[j]} offset:{(0,32*RST,44*RST)[j]+64*kk}')
            if j == 2: kf_id.append(self.nlg)
        for kk in range(KL):
            for j in range(3):
                kread(kk, j)
                for _ in range(2):
                    if lateE: e(lateE.pop(0))
        while lateE: e(lateE.pop(0))
        e1_issue(1)
        for kk in range(8):
            e(f's_waitcnt {self.wlg(kf_id[kk])}')
            for cb in range(2):
                e(f'v_mfma_f32_16x16x32_bf16 {vr(KD+4*cb,4)}, {vr(KF+12*kk,4)}, {vr(KF+12*kk+4+4*cb,4)}, {"0" if kk==0 and cb==1 else vr(KD+4*cb,4)}')
                if kk + KL < 8:
                    for j in ((0,1),(2,))[cb]: kread(kk+KL, j)
                for _ in range(2):
                    if lateK: e(lateK.pop(0))
        while lateK: e(lateK.pop(0))
        e1_issue(2)
        if PFA == 2: wd_pf(94)
        wd_pf2(2)
        touch(2)
        if self.opt('wde2', 0):
            assert wslot[0] == 2; wopen[0] = 0; wd_issue(self.opt('wde2', 0))
        if WGA == 2: wg_issue(8)
        AN = 128; AX = 160; T2 = 192; T3 = 204; BND = 196; SF2 = 208; SF3 = 232; SD = 240; US = 72
        e(f"""
        ds_read2_b32 {vr(BND,2)}, v{vBd} offset0:6 offset1:4
        ds_read2_b32 {vr(BND+2,2)}, v{vBd} offset0:2 offset1:0
        ds_read2_b32 {vr(BND+4,2)}, v{vBd} offset0:70 offset1:68
        ds_read2_b32 {vr(BND+6,2)}, v{vBd} offset0:66 offset1:64
        ds_read2_b32 {vr(BND+8,2)}, v{vBd2} offset0:134 offset1:132
        ds_read2_b32 {vr(BND+10,2)}, v{vBd2} offset0:130 offset1:128""")
        for cb in range(2):
            for j in range(2):
                e(f'v_cvt_pk_bf16_f32 v{KD+8+2*cb+j}, v{KD+4*cb+2*j}, v{KD+4*cb+2*j+1}')
        def scat(cb, j):
            va = (vKw0, vKw1)[cb]; off = 32*j if cb == 0 else (j&1)*928 + (j>>1)*4
            op = 'ds_write_b16_d16_hi' if j & 1 else 'ds_write_b16'
            e(f'{op} v{va}, v{KD+8+2*cb+(j>>1)} offset:{off}\n{op} v{va}, v{KD+8+2*cb+(j>>1)} offset:{off+6}')
        for j in range(4): scat(0, j)
        scat(1, 3)
        e('s_mov_b32 exec_lo, 0x00ff00ff\ns_mov_b32 exec_hi, 0x00ff00ff')
        for j in range(3): scat(1, j)
        e('s_mov_b64 exec, -1')
        e1_issue(3); id_e1 = ide[0]
        self.stamp('kgen2')
        self.c('---- Toeplitz operands of K, gate/up re-layout (k-contiguous fragments), arrival of xhat / modulation, u = ga*(xhat*(1+ca)+sa)')
        def rd2(d, va, o): return [f'ds_read2_b32 {vr(d,2)}, v{va} offset0:{o+6} offset1:{o+4}', f'ds_read2_b32 {vr(d+2,2)}, v{va} offset0:{o+2} offset1:{o}']
        def rq2(d, o0, o1): return [f'ds_read2_b32 {ar(d,2)}, v{vQ} offset0:{o0} offset1:{o0-2}', f'ds_read2_b32 {ar(d+2,2)}, v{vQ} offset0:{o1} offset1:{o1-2}']
        vPA1 = 55
        reads = {}
        for be_ in range(6): reads[('u', be_)] = (US+4*be_, [f'ds_read_b128 {vr(US+4*be_,4)}, v{vUS} offset:{512*be_}'])
        for jq in range(4):
            for J in range(2): reads[('a', jq, J)] = (AN+8*jq+4*J, rd2(AN+8*jq+4*J, vPA1 if J else vPA, 32*jq))
        reads[('x', 16)] = (AX, rd2(AX, vPX, 0)); reads[('x', 32)] = (AX+4, rd2(AX+4, vPX, 48))
        for d_ in (2,3,4): reads[('t2', d_)] = (T2+4*(d_-2), rq2(T2+4*(d_-2), 16*d_-28, 64+16*d_-28))
        for d_ in (4,5,6,7): reads[('t3', d_)] = (T3+4*(d_-4), rq2(T3+4*(d_-4), 128+16*d_-44, 128+16*d_-60))
        pre = set(); wjs = []; kq = []
        e(f'v_add_u32 v{vPA1}, 1024, v{vPA}')
        if self.opt('kpre', 1):
            e('s_waitcnt lgkmcnt(0)\ns_barrier')
            for o in reads:
                if o[0] != 'u':
                    kq.extend(reads[o][1]); pre.add(o)
            for _ in range(self.opt('kq0', 8)): e(kq.pop(0))
        kqn = [0]
        if WJN == -1 and self.opt('wjpre', 4):
            e(f's_waitcnt {self.wvm(idw[0])}')
            for x in wjob_ops(168 if self.opt('wjpre', 4) < 4 else 216, 4):
                if x.startswith('buffer_') and self.opt('wjpre', 4) != 3: wjs.append(x)
                else:
                    wst[0] = e(x); kqn[0] += 1
                    if kq and kqn[0] % self.opt('kqp', 1) == 0: e(kq.pop(0))
        XC = EG+8
        self.stamp('_prechk')
        e(f's_waitcnt {self.wvm(id_e1)}\nL_e1chk:')
        for i in range(8): e(f'v_xor_b32 v{XC+i}, v{EX+i}, v{vTP+(i&1)}')
        e(f"""
        v_cmp_ne_u32 {sp(sBad)}, v{EG+19}, v2
        v_or3_b32 v92, v{XC}, v{XC+1}, v{XC+2}
        v_or3_b32 v93, v{XC+3}, v{XC+4}, v{XC+5}
        v_cmp_ne_u32 vcc, v{EG+23}, v2
        v_or3_b32 v92, v92, v{XC+6}, v{XC+7}
        s_or_b64 {sp(sBad)}, {sp(sBad)}, vcc
        v_bitop3_b32 v92, v92, v93, s{sTm} bitop3:0xa8
        v_cmp_ne_u32 vcc, 0, v92
        s_or_b64 {sp(sBad)}, {sp(sBad)}, vcc
        s_cbranch_scc1 L_e1retry""")
        self.tail.append(f"""L_e1retry:
        s_sub_u32 s{sCnt}, s{sCnt}, 1
        s_cbranch_scc1 L_end
        s_wqm_b64 exec, {sp(sBad)}
        {e1_loads}
        s_mov_b64 exec, -1
        s_waitcnt vmcnt(0)
        s_branch L_e1chk""")
        self.stamp('e1_ok')
        if PFA == 3: wd_pf(94)
        wd_pf2(3)
        touch(3)
        if self.opt('wjpre', 4) == 2:
            while wjs: wst[0] = e(wjs.pop(0))
        if WGA == 3: wg_issue(8)
        g0 = 28; HF = 96
        e(f"""
        v_add_f32 v{g0}, v{EG+16}, v{EG+20}
        v_add_f32 v{g0+1}, v{EG+17}, v{EG+21}
        v_add_f32 v{g0+2}, v{EG+18}, v{EG+22}
        v_mov_b32 v{g0+3}, 0""")
        unp = []
        for i in range(4):
            unp += [f'v_lshlrev_b32 v{HF+4*i}, 16, v{XC+2*i}', f'v_lshlrev_b32 v{HF+4*i+1}, 16, v{XC+2*i+1}',
                    f'v_and_b32 v{HF+4*i+2}, s{sMask}, v{XC+2*i}', f'v_and_b32 v{HF+4*i+3}, s{sMask}, v{XC+2*i+1}']
        mix = []
        for x in unp:
            if kq: x += '\n' + kq.pop(0)
            mix.append(x)
        self.reduce4(g0, g0+1, g0+2, g0+3, mix)
        unp = self.rest + kq
        e(f"""
        v_cvt_pk_bf16_f32 v{g0}, v{g0}, v{g0}
        v_and_b32 v{g0}, s{sMask}, v{g0}
        v_add_f32 v{g0+1}, v{g0}, v{vOne}
        v_readlane_b32 s{sM+4}, v{g0}, 16
        v_readlane_b32 s{sM+5}, v{g0}, 17
        v_cvt_pk_bf16_f32 v{g0}, v{g0+1}, v{g0+1}
        v_and_b32 v{g0}, s{sMask}, v{g0}
        v_mul_f32 v{g0+3}, v{vBv}, v{g0}
        v_mul_f32 v{g0+1}, s{sM+4}, v{g0+3}
        v_mul_f32 v{g0+2}, s{sM+5}, v{g0+3}
        v_readlane_b32 s{sM}, v{g0+1}, 32
        v_readlane_b32 s{sM+1}, v{g0+1}, 0
        v_readlane_b32 s{sM+2}, v{g0+2}, 33
        v_readlane_b32 s{sM+3}, v{g0+2}, 1""")
        for x in unp: e(x)
        for i in range(4):
            for ch in range(2):
                h = HF+4*i+2*ch
                e(f'v_pk_fma_f32 {vr(h,2)}, {vr(h,2)}, {sp(sM+2*ch)}, {sp(sM+2*ch)} op_sel:[0,0,1] op_sel_hi:[1,0,1]')
            for ch in range(2):
                h = HF+4*i+2*ch
                e(f'v_cvt_pk_bf16_f32 v{g0+2+ch}, v{h}, v{h+1}\nds_write_b32 v{vUw}, v{g0+2+ch} offset:{ch*USZ+1024*i}')
        while wjs and self.opt('wjpre', 4) < 4: wst[0] = e(wjs.pop(0))
        if WJN == -1 and not self.opt('wjpre', 4):
            e(f's_waitcnt {self.wvm(idw[0])}')
            for x in wjob_ops(): wst[0] = e(x)
        e('s_waitcnt lgkmcnt(0)\ns_barrier')
        self.stamp('u_ready')
        wopen[0] = 2
        if PFA == 4: wd_pf(94)
        wd_pf2(4)
        self.c('---- causal convolution: lags 0..514 at full resolution, the piecewise-constant lags beyond on window sums of u; z = ga*y to the row owners')
        F1P = self.opt('f1p', 0); vP1 = 54; vPolled = 55; rt = 70
        f1_load = f'buffer_load_dword v{vPolled}, v{vP1}, {SRD}, 0 offen sc1'
        def roles():
            e(f"""
            s_bfe_u32 s1, s{sL}, 0x30002
            s_lshr_b32 s0, s{sL}, 7
            s_lshl3_add_u32 s{sMt}, s0, s1
            s_bfe_u32 s0, s{sL}, {0x10005 if MAP2 == 84 else 0x20005}
            s_and_b32 s1, s{sMt}, {15 if MAP2 == 84 else 14}
            s_lshl1_add_u32 s{sTb}, s1, s0
            s_bfe_u32 s0, s{sL}, 0x20005
            s_and_b32 s1, s{sL}, 3
            s_lshl2_add_u32 s{sNt}, s0, s1
            """)
            if MAP2 in (44, 45): e(f"""
            s_lshr_b32 s0, s{sL}, 6
            s_bfe_u32 s1, s{sL}, 0x20003
            s_lshl2_add_u32 s{sMt}, s0, s1
            s_bfe_u32 s0, s{sL}, 0x10005
            s_and_b32 s1, s{sL}, 7
            s_lshl3_add_u32 s{sNt}, s0, s1
            s_bfe_u32 s0, s{sL}, {0x10005 if MAP2 == 44 else 0x10002}
            s_lshl1_add_u32 s{sTb}, s{sMt}, s0""")
            e(f"""
            s_mul_i32 s0, s{sNt}, 7
            s_lshr_b32 s0, s0, 2
            v_bfe_u32 v{rt}, v0, 3, 3
            v_min_u32 v{rt}, 2, v{rt}
            v_add_u32 v{rt}, s0, v{rt}
            v_min_u32 v{rt}, 27, v{rt}
            v_and_b32 v{rt+1}, 7, v0
            v_lshl_add_u32 v{rt}, v{rt}, 5, v{rt+1}
            s_lshl_b32 s0, s{sW}, 10
            s_add_u32 s0, s0, {F1}
            v_lshl_add_u32 v{vP1}, v{rt}, 7, s0""")
            e(f"""
            s_mul_i32 s{sDmaG}, s{sNt}, {7*32768}
            s_add_u32 s{sDmaG}, s{sDmaG}, s{sDmaL}
            s_add_u32 s{sDmaG}, s{sDmaG}, {WGU}""")
        assert pre
        ACC = 224; ZG = 12
        BR = [96,100,104,108,116,120,168,172,176,180,184,188]
        F1N = self.opt('f1n', 200)
        def f1_publish(): e(f's_waitcnt {self.wvm(wst[0])}\n' + self.flag_text(vF, sF1o))
        for m in range(8):
            for jq in range(4):
                r_ = BR[(4*m+jq) % len(BR)]
                reads[('b', m, jq)] = (r_, [f'ds_read_b128 {vr(r_,4)}, v{vUB} offset:{512*m+192-64*jq}'])
        ops = []
        S = lambda nm, be_: ops.append(('S', (nm, be_), ('u', be_), ('bnd', nm)))
        def near(m, Js):
            for jq in range(4):
                for J in Js: ops.append(('M', m+J, ('a', jq, J), ('b', m, jq)))
        def far(cb):
            ops.append(('M', cb, ('x', 16), ('u', cb-2)))
            if cb >= 4: ops.append(('M', cb, ('x', 32), ('u', cb-4)))
            for d_ in (4,3,2):
                if cb-d_ >= 0: ops.append(('M', cb, ('s2', cb-d_), ('t2', d_)))
            if cb >= 4: ops.append(('M', cb, ('s3', 0), ('t3', cb)))
            if cb >= 6: ops.append(('M', cb, ('s3', 1), ('t3', cb-2)))
        S('a',0); S('b',0); S('a',1); S('b',1)
        near(0,(0,1)); near(1,(0,1)); far(2); S('c',0); S('c',1); near(2,(0,1)); S('a',2); S('b',2); far(3); near(3,(0,))
        S('a',3); S('b',3); near(3,(1,)); far(4); near(4,(0,1)); far(5); near(5,(0,))
        S('a',4); S('b',4); S('c',2); S('c',3); near(5,(1,)); S('a',5); S('b',5); near(6,(0,1)); far(6); near(7,(0,)); far(7)
        assert len(ops) == 107
        def opreg(o):
            if o[0] == 'bnd': return BND + 4*'abc'.index(o[1])
            if o[0] == 's2': return SF2 + 4*o[1]
            if o[0] == 's3': return SF3 + 4*o[1]
            return reads[o][0]
        firstuse = {}; lastuse = {}; accdone = {}
        for n, (kd, dst, oa, ob) in enumerate(ops):
            for o in (oa, ob): firstuse.setdefault(o, n); lastuse[o] = n
            if kd == 'M': accdone[dst] = n
        rq = []
        for o in sorted(reads, key=lambda o: firstuse[o]):
            early = -1
            if o[0] == 'b' and 4*o[1]+o[2] >= len(BR):
                idx = 4*o[1]+o[2]-len(BR); early = lastuse[('b', idx//4, idx%4)] + 1
            if o not in pre:
                for x in reads[o][1]: rq.append((early, o, x))
        rid = {o: 0 for o in pre}
        def popread():
            _, o, x = rq.pop(0); e(x)
            if not any(o2 == o for _, o2, _ in rq): rid[o] = self.nlg
        for _ in range(self.opt('cpre', 8 if pre else 14)): popread()
        if F1P < 0: roles()
        tq = 69
        fill = [f's_bitcmp1_b32 s{sL}, 1\ns_cselect_b32 s{sT}, 1.0, {fbits(2.0**-64)}', f'v_mul_f32 v{g0+1}, s{sT}, v{g0}']
        fill += [f'v_readlane_b32 s{sM+6+n_}, v{g0+(n_<4)}, {ln}' for n_, ln in list(enumerate([34,35,2,3,18,19]))[::-1]]
        TZ = 16; XE = 52; vYr1 = 64
        fill += f"""v_and_b32 v{tq}, 3, v0
        s_pack_hh_b32_b16 s{sT}, s{sM+6}, s{sM+7}
        s_pack_hh_b32_b16 s{sT+1}, s{sM+8}, s{sM+9}
        s_pack_hh_b32_b16 s{sT+2}, s{sM+10}, s{sM+11}
        v_lshlrev_b32 v{tq}, 2, v{tq}
        s_mov_b32 s{sTm}, {TAGZ}
        v_alignbit_b32 v{tq}, v2, v2, v{tq}
        v_xor_b32 v{vYr1}, 32, v{vYr}
        v_add_u32 v{vTw}, 65536, v{vTr}
        v_and_b32 v{TZ}, s{sTm}, v{tq}
        v_alignbit_b32 v{TZ+1}, v{tq}, v{tq}, 1
        v_alignbit_b32 v{TZ+2}, v{tq}, v{tq}, 2
        v_alignbit_b32 v{TZ+3}, v{tq}, v{tq}, 3
        v_and_b32 v{TZ+1}, s{sTm}, v{TZ+1}
        v_and_b32 v{TZ+2}, s{sTm}, v{TZ+2}
        v_and_b32 v{TZ+3}, s{sTm}, v{TZ+3}
        v_mov_b32 v192, s{sT}
        v_mov_b32 v193, s{sT+1}
        v_mov_b32 v194, s{sT+2}
        v_mov_b32 v195, v2""".split('\n')
        stages = {'a': [(0,),(1,)], 'n': [(0,1)]}[self.opt('stages', 'a')]
        wr_id = {}; cq = []; sq = []; sdone = {}; nsd = 0; stage = 0; done_w = 0; waited = 0
        zst = {}
        def stage_ops(sg, final):
            out = []
            regs = {(k_, j): ([28, SD][j] if not final else 72+16*n_+8*j) for n_, k_ in enumerate(sg) for j in range(2)}
            for k_ in sg:
                for j in range(2):
                    for pw in range(4): out.append(('rd', (k_,j), f'ds_read_b64 {vr(regs[(k_,j)]+2*pw,2)}, v{vYr1 if j else vYr} offset:{8192*pw+4096*k_}'))
            for k_ in sg:
                for j in range(2):
                    y = regs[(k_,j)]; i = (k_,j)
                    out.append(('wait', i, None))
                    if final:
                        out += [('v', i, f'v_pk_add_f32 {vr(y+4*ch,2)}, {vr(y+4*ch,2)}, {vr(y+4*ch+2,2)}') for ch in range(2)]
                    else:
                        out += [('v', i, f'v_add_f32 v{y+4*ch+r}, v{y+4*ch+r}, v{y+4*ch+2+r}') for r in range(2) for ch in range(2)]
                    out += [('v', i, f'v_cvt_pk_bf16_f32 v{ZG+2*j+r}, v{y+r}, v{y+4+r}') for r in range(2)]
                    out += [('v', i, f'v_bfi_b32 v{ZG+2*j+r}, s{sTm}, v{TZ+2*j+r}, v{ZG+2*j+r}') for r in range(2)]
                x = f'buffer_store_dwordx4 {vr(ZG,4)}, v1, {SRD}, s{sZs+k_} offen sc1'
                if k_ == 0: x += f'\ns_mov_b64 exec, 1\nbuffer_store_dwordx4 v[192:195], v1, {SRD}, s{sZs+2} offen sc1\ns_mov_b64 exec, -1'
                out.append(('st', k_, x))
            return out
        y_id = {}; ride = [0]; pub = []
        def popstage():
            nonlocal waited
            kd, i, x = sq.pop(0)
            if kd == 'wait':
                e(f's_waitcnt {self.wlg(y_id[i])}'); waited = max(waited, y_id[i])
            else:
                r_ = e(x)
                if kd == 'rd': y_id[i] = self.nlg
                if kd == 'st':
                    zst[i] = r_
                    if not sq:
                        ride[0] = self.opt('ride', 0)
                        pub.append(1)
                        if F1N == 199 + len(pub): f1_publish()
        seen = set(); hold = 0; accpos = {}; wj = []
        for n, (kd, dst, oa, ob) in enumerate(ops):
            if n in (1, 27, 54, 81): self.stamp(f'_c{n}')
            for o in (oa, ob):
                while o in reads and o not in rid: popread()
                if o[0] in ('s2', 's3'):
                    while any(tg == o for _, tg, _ in cq): e(cq.pop(0)[2])
            need = max(rid.get(oa, 0), rid.get(ob, 0))
            if need > waited:
                e(f's_waitcnt {self.wlg(need)}'); waited = max(need, self.nlg - 14)
            if kd == 'S':
                d = SD + 4*(nsd % 4); nsd += 1
                while any(f'v{d},' in x or x.endswith(f'v{d+3}') for _, _, x in cq): e(cq.pop(0)[2])
                while any(k_ != 'st' for k_, _, _ in sq): popstage()
                e(f'v_mfma_f32_16x16x32_bf16 {vr(d,4)}, {vr(opreg(oa),4)}, {vr(opreg(ob),4)}, 0')
                nm, be_ = dst
                tg = ('s2', be_) if nm != 'c' else ('s3', be_ >> 1)
                o_ = opreg(tg) + (2*'ab'.index(nm) if nm != 'c' else 2*(be_ & 1))
                cq += [(len(p.text), tg, f'v_cvt_pk_bf16_f32 v{o_+j}, v{d+2*j}, v{d+2*j+1}') for j in range(2)]
            else:
                c_ = ar(ACC+4*dst,4) if dst in seen else '0'; seen.add(dst)
                e(f'v_mfma_f32_16x16x32_bf16 {ar(ACC+4*dst,4)}, {vr(opreg(oa),4)}, {(ar if ob[0][0] == "t" else vr)(opreg(ob),4)}, {c_}')
                if accdone[dst] == n: accpos[dst] = len(p.text)
            budget = 2
            if wjs and n >= self.opt('wsn', 4) + (4-len(wjs))*self.opt('wss', 3):
                assert n < 30; wst[0] = e(wjs.pop(0)); budget = 1
            elif n == F1N: f1_publish(); budget = 0
            elif n == -F1P and F1P < 0: id_f1 = e(f1_load); budget = 1
            elif n % self.opt('wd_pace', 6) == 1 and self.opt('wd_first', 0) <= n <= self.opt('wd_last', 100) and wd_can(): wd_issue(1); budget = 1
            elif ride[0] > 0 and n % 2 == 0 and wd_can(): wd_issue(1); budget = 1; ride[0] -= 1
            if n == WJN: e(f's_waitcnt {self.wvm(idw[0])}'); wj = wjob_ops()
            if stage < len(stages)-1 and done_w > 4*stages[stage][-1]+3 and n >= wr_n + 3 and not sq:
                while fill: e(fill.pop(0))
                while cq: e(cq.pop(0)[2])
                e(f's_waitcnt {self.wlg(wr_id[done_w-1])}\ns_barrier'); waited = max(waited, wr_id[done_w-1])
                sq = stage_ops(stages[stage], False); stage += 1; budget = 0
            while budget > 0:
                budget -= 1
                if rq and rq[0][0] <= n and firstuse[rq[0][1]] <= n + self.opt('cla', 20): popread()
                elif cq and len(p.text) - cq[0][0] >= 8: e(cq.pop(0)[2])
                elif done_w in accpos and len(p.text) - accpos[done_w] >= 8:
                    e(f'ds_write_b128 v{vYw}, {ar(ACC+4*done_w,4)} offset:{1024*done_w}'); wr_id[done_w] = self.nlg; wr_n = n; done_w += 1
                elif sq and not (sq[0][0] == 'wait' and hold > n):
                    if sq[0][0] == 'rd': hold = n + 4
                    popstage()
                elif fill: e(fill.pop(0))
                elif wj: wst[0] = e(wj.pop(0))
                elif rq and rq[0][0] <= n: popread()
                elif self.opt('trconv', 0) and tr_ready(8): tr_pop()
        assert not rq and not cq and not wj and stage == len(stages)-1
        while sq: popstage()
        for x in fill: e(x)
        self.stamp('conv')
        while done_w < 8:
            e(f'ds_write_b128 v{vYw}, {ar(ACC+4*done_w,4)} offset:{1024*done_w}'); done_w += 1
        e('s_waitcnt lgkmcnt(0)\ns_barrier')
        sq = stage_ops(stages[-1], True)
        while sq: popstage()
        id_z = self.nvm
        if F1N == 107: f1_publish()
        self.stamp('z_stored')
        if F1P >= 0: roles()
        if self.opt('ybar', 0): e('s_barrier'); wopen[0] = 3
        if F1P == 0: id_f1 = e(f1_load)
        dq = [x for i in range(5) for x in self.dma_tile(i,i)]
        f1ok = [False]; maxt = [2]
        def bg_issue(n):
            for _ in range(n):
                if wd_can() and wdq[0][0] <= 2: wd_one()
                elif f1ok[0] and dq[0][0] <= 2: tile_one(dq)
                else: wd_issue(1)
        def bg(name, nT, nL):
            v = self.opt(name, None)
            if v is not None: nT, nL = v // 100, v % 100
            done = 0
            for i in range(nT):
                k_ = (nL*(i+1) + nT-1)//nT - done; bg_issue(k_); done += k_
                tr_do(1)
            bg_issue(nL - done)
        if F1P < 0: self.check(f1_load, [vPolled], id_f1); f1ok[0] = True
        bg('b_zack', 4, 9)
        self.c("---- x2 = x + z, LN2 and modulation of this workgroup's 8 rows -> h2 fragments; weights stream into LDS / AGPRs in the waits")
        XF = 36
        for r in range(2):
            for i in range(4):
                for x in self.unpack(XF+8*r+2*i, XR+4*r+i): e(x)
        TH = 66; TX = 14; vZ = 28; vH2 = 29; ZI = 72; vMsk = 30
        vP2 = 24; vXa = 25; vA2 = 26; vA4 = 27; vP3 = 23; vX2 = 22; vAc1 = 21
        c1 = -2*1.4426950408889634*0.7978845608028654; c2 = c1*0.044715
        gs = (-c2)**(1/3); sGk, sGs = 30, 31
        e(f'''
        v_and_b32 v{t}, 0xfc, v0
        v_and_b32 v{t+2}, 0x30, v1
        s_movk_i32 s{sT}, {HBLK}
        v_mad_u32_u24 v{vZ}, v{t}, s{sT}, v{t+2}
        s_lshr_b32 s{sT}, s{sL}, 1
        s_lshl_b32 s{sT}, s{sT}, 6
        s_add_u32 s{sT}, s{sT}, {ZY}
        s_add_u32 s{sT+1}, s{sT}, {HBLK}
        s_add_u32 s{sT+2}, s{sT}, {2*HBLK}
        s_add_u32 s{sT+3}, s{sT}, {3*HBLK}
        s_lshl_b32 s{sT+8}, s{sW}, 10
        s_add_u32 s{sT+8}, s{sT+8}, {MX}
        s_bitcmp1_b32 s{sL}, 0
        s_cselect_b32 s{sLo}, 0x04040000, 0
        s_add_u32 s{sHi}, s{sLo}, 0x03020c0c
        s_add_u32 s{sLo}, s{sLo}, 0x01000c0c
        s_mov_b32 s{sM}, {fbits(2.0**64)}
        v_lshrrev_b32 v{t}, 3, v0
        v_and_b32 v{t+1}, 0x70, v1
        v_lshl_add_u32 v{vH2}, v{t}, 10, v{t+1}
        s_lshr_b32 s{sT+4}, s{sL}, 2
        s_lshl_b32 s{sT+4}, s{sT+4}, 7
        s_and_b32 s{sT+5}, s{sL}, 3
        s_add_u32 s{sT+4}, s{sT+4}, s{sT+5}
        s_lshl_b32 s{sT+4}, s{sT+4}, 8
        s_add_u32 s{sT+4}, s{sT+4}, {H2}
        s_mov_b32 s{sT+5}, {X2}
        v_mov_b32 v{vMsk}, s{sMask}
        s_lshl2_add_u32 s0, s{sMt}, s{sW}
        s_lshl_b32 s{sXg}, s0, 15
        s_add_u32 s{sXg}, s{sXg}, {H2}
        s_lshl4_add_u32 s0, s0, s{sNt}
        s_mul_i32 s0, s0, {7*1024}
        s_add_u32 s{sActS}, s0, {ACT}
        s_add_u32 s{sActS+1}, s0, {ACT+4096}
        s_sub_u32 s{sF3o}, s{sF1o}, {F1-F3}
        s_lshl3_add_u32 s0, s{sTb}, s{sW}
        s_mul_i32 s0, s0, {28*1024}
        s_add_u32 s{sActG}, s0, {ACT}
        s_waitcnt {self.wvm(id_z)}''')
        self.stamp('_zack')
        if F1N == 108: f1_publish()
        z_loads = '\n'.join(f'buffer_load_dwordx4 {vr(ZI+4*i,4)}, v{vZ}, {SRD}, s{sT+i} offen sc1' for i in range(4))
        XG = 32
        z_loads += f'\nbuffer_load_dwordx4 {vr(XG,4)}, v1, {SRD}, s{sT+8} offen sc1'
        id_zl = e(z_loads)
        if F1P == 0:
            self.check(f1_load, [vPolled], id_f1); f1ok[0] = True
        elif F1P == 1: id_f1 = e(f1_load)
        bg('b_zld', 4, 0)
        bg('b_zld2', 0, 5)
        e(f'''
        v_lshrrev_b32 v{TH}, 3, v{t+1}
        v_alignbit_b32 v{TH}, v2, v2, v{TH}
        v_alignbit_b32 v{TH+1}, v{TH}, v{TH}, 1
        v_and_b32 v{TH}, s{sTm}, v{TH}
        v_and_b32 v{TH+1}, s{sTm}, v{TH+1}
        v_bfe_u32 v{t}, v0, 2, 3
        v_bfe_u32 v{t+3}, v0, 5, 1
        v_lshl_add_u32 v{t+2}, v{t+3}, 6, v{t+2}
        v_lshl_add_u32 v{vXa}, v{t}, 7, v{t+2}
        v_lshrrev_b32 v{TX}, 3, v{t+2}
        v_alignbit_b32 v{TX}, v2, v2, v{TX}
        v_alignbit_b32 v{TX+1}, v{TX}, v{TX}, 1
        v_and_b32 v{TX}, s{sTm}, v{TX}
        v_and_b32 v{TX+1}, s{sTm}, v{TX+1}
        v_add_u32 v{vA2}, 65536, v1
        v_add_u32 v{vA4}, 131072, v1
        v_add_u32 v{vAc1}, {112*1024}, v1
        v_mov_b32 v{vInv+1}, {fbits(1e-5/gs**2)}
        s_mov_b32 s{sGk}, {fbits(c1/gs)}
        s_mov_b32 s{sGs}, {fbits(gs*gs*2.0**64)}
        s_mov_b32 s{sM+1}, {fbits(gs)}
        v_bfe_u32 v{t}, v0, 3, 2
        v_lshl_add_u32 v{t}, v{t}, 1, v{t+3}
        v_lshl_add_u32 v{t}, v{t}, 10, v{t+1}
        s_lshl3_add_u32 s0, s{sTb}, s{sW}
        s_lshl_b32 s0, s0, 6
        s_add_u32 s0, s0, s{sDt}
        s_lshl_b32 s0, s0, 7
        v_add_u32 v{vX2}, s0, v{t}''')
        bg('b_zld3', 4, 0)
        self.stamp('_zchk')
        ZC = 144
        e(f's_waitcnt {self.wvm(id_zl)}\nL_zchk:')
        for i in range(16): e(f'v_xor_b32 v{ZC+i}, v{ZI+i}, v{TZ+(i&3)}')
        e(f'v_cmp_ne_u32 {sp(sBad)}, v{XG+3}, v2')
        for i in range(5): e(f'v_or3_b32 v{160+i}, v{ZC+3*i}, v{ZC+3*i+1}, v{ZC+3*i+2}')
        e(f"""
        v_or3_b32 v160, v160, v161, v162
        v_or3_b32 v163, v163, v164, v{ZC+15}
        v_bitop3_b32 v160, v160, v163, s{sTm} bitop3:0xa8
        v_cmp_ne_u32 vcc, 0, v160
        s_or_b64 {sp(sBad)}, {sp(sBad)}, vcc
        s_cbranch_scc1 L_zretry""")
        self.tail.append(f"""L_zretry:
        s_sub_u32 s{sCnt}, s{sCnt}, 1
        s_cbranch_scc1 L_end
        s_wqm_b64 exec, {sp(sBad)}
        {z_loads}
        s_mov_b64 exec, -1
        s_waitcnt vmcnt(0)
        s_branch L_zchk""")
        self.stamp('z_ok')
        if F1P == 1: self.check(f1_load, [vPolled], id_f1); f1ok[0] = True
        elif F1P == 2: id_f1 = e(f1_load)
        nl2 = [self.opt('b_ln2', 10)]
        def ln2bg(n=1):
            for _ in range(n):
                if nl2[0] > 0: bg_issue(1); nl2[0] -= 1
        ZF = 88
        for i in range(4):
            ln2bg()
            for r in range(2):
                z = ZF+8*r+2*i
                e(f'v_perm_b32 v{z}, v{ZC+4*i+2+r}, v{ZC+4*i+r}, s{sLo}\nv_perm_b32 v{z+1}, v{ZC+4*i+2+r}, v{ZC+4*i+r}, s{sHi}')
            for r in range(2):
                z = ZF+8*r+2*i; x = XF+8*r+2*i
                e(f'v_pk_fma_f32 {vr(x,2)}, {vr(z,2)}, {sp(sM)}, {vr(x,2)} op_sel_hi:[1,0,1]')
            for r in range(2):
                x = XF+8*r+2*i
                e(f'v_cvt_pk_bf16_f32 v{XR+4*r+i}, v{x}, v{x+1}')
        unp = [x for r in range(2) for i in range(4) for x in self.unpack(XF+8*r+2*i, XR+4*r+i)]
        self.stats_partial(XR, t, vSBw, unp)
        unp = self.rest
        ln2bg(2)
        for x in unp: e(x)
        e('s_waitcnt lgkmcnt(0)\ns_barrier')
        wopen[0] = 3
        self.stamp('_ln2bar')
        ST = 128
        self.stats_read(ST, vSBr)
        GBV = 12
        for i in range(4):
            ln2bg()
            for kind in range(2):
                d = ZF+8*kind+2*i
                qp = f'quad_perm:[{i},{i},{i},{i}] row_mask:0xf bank_mask:0xf'
                e(f'v_cvt_f32_bf16_dpp v{d}, v{XG+kind} {qp}\nv_and_b32_dpp v{d+1}, v{XG+kind}, v{vMsk} {qp}')
        for i in range(4): e(f'v_pk_mul_f32 {vr(ZF+8+2*i,2)}, {vr(ZF+8+2*i,2)}, {sp(sM)} op_sel:[0,1] op_sel_hi:[1,1]')
        e('s_waitcnt lgkmcnt(0)')
        self.stats_finish(ST, vInv, pre=1/gs**2)
        HO = 104
        for r in range(2):
            for i in range(4):
                x = XF+8*r+2*i
                e(f'v_pk_fma_f32 {vr(x,2)}, {vr(x,2)}, {vr(ST+2*r,2)}, {vr(ST+2*r,2)} op_sel:[0,0,1] op_sel_hi:[1,0,1]')
            for i in range(4):
                x = XF+8*r+2*i
                e(f'v_pk_fma_f32 {vr(x,2)}, {vr(x,2)}, {vr(ZF+2*i,2)}, {vr(ZF+8+2*i,2)}')
            for i in range(4):
                x = XF+8*r+2*i
                e(f'v_cvt_pk_bf16_f32 v{HO+4*r+i}, v{x}, v{x+1}')
            for m in range(2): e(f'v_bfi_b32 v{HO+4*r+m}, s{sTm}, v{TH+m}, v{HO+4*r+m}')
            id_h = e(f'buffer_store_dwordx4 {vr(HO+4*r,4)}, v{vH2}, {SRD}, s{sT+4} offen offset:{128*r} sc1')
        self.stamp('h2_stored')
        e(f'v_mov_b32 v{GBV}, v{XG+2}')
        if F1P == 2: self.check(f1_load, [vPolled], id_f1); f1ok[0] = True
        SMP = self.opt('smp', 0)
        bg('b_hack', 0, 6 if SMP else 17)
        if not SMP:
            while dq[0][0] < 3: tile_one(dq)
        e(f's_waitcnt {self.wvm(id_h)}')
        self.stamp('_h2_ack')
        self.c('---- GEMM1: 128 rows x (112 gate + 112 up) columns, tanh-GELU gate under the MFMAs, act fragments handed over tile by tile')
        X = 128
        AC = [28, 44, 60, 76]
        WE = self.opt('we', 4); LA = self.opt('la', 6); NB = 7; WF = 92; assert LA < NB
        TA, TA1 = 20, 23; GT = 120; GO = 16; X2R = 4; vP4 = 24; vPo = 25; vPo4 = 3
        P1 = self.opt('p1', 25)
        if P1 == 25:
            seq = []
            for s in range(32):
                seq += [(0, s), (1, s)]
                if s & 1: seq.append((2, s >> 1))
            seq += [(2, s) for s in range(16, 32)]
        else:
            seq = [(tl, s) for s in range(32) for tl in range(P1)] + [(tl, s) for tl in range(P1,3) for s in range(32)]
        seq += [(tl, s) for tl in range(3,7) for s in range(32)]
        slot = {0:0,1:1,2:2,3:3,4:4,5:0,6:1}
        acc = {tl: AC[tl % 4] for tl in range(7)}
        w_id = {}
        def wread(n):
            tl, s = seq[n]; sl = slot[tl]
            va = {0:1,1:1,2:vA2,3:vA2,4:vA4}[sl]
            e(f'ds_read_b128 {vr(WF+4*(n%NB),4)}, v{va} offset:{(sl&1 if sl<4 else 0)*32768 + 1024*kperm(s)}'); w_id[n] = self.nlg
        kperm = lambda s: 8*(s & 3) + (s >> 2)
        sXb = sM
        for j in range(8): e(f's_add_u32 s{sXb+j}, s{sXg}, {4096*j}')
        sAb = [76, 77, 78, 79, 80, 81, 32, 33]
        x_id = []
        def xtext(s): return f'buffer_load_dwordx4 {vr(X+4*s,4)}, v{vXa}, {SRD}, s{sXb+(kperm(s)>>2)} offen offset:{1024*(kperm(s)&3)} sc1'
        def xload(): x_id.append(e(xtext(len(x_id))))
        def xcheck(s):
            Lc = p.label('xc'); Lr = p.label('xr'); Ld = p.label('xd'); r0 = X+4*s
            body = [f'v_xor_b32 v{r0+4*j+m}, v{r0+4*j+m}, v{TX+m}' for j in range(2) for m in range(2)]
            body += [f'v_or3_b32 v13, v{r0}, v{r0+1}, v{r0+4}', f'v_bitop3_b32 v13, v13, v{r0+5}, s{sTm} bitop3:0xa8', 'v_cmp_ne_u32 vcc, 0, v13']
            def branch():
                rest = '\n'.join(xtext(j) for j in range(s+2, len(x_id)))
                self.tail.append(f'{Lr}:\ns_sub_u32 s{sCnt}, s{sCnt}, 1\ns_cbranch_scc1 L_end\n{xtext(s)}\n{xtext(s+1)}\ns_waitcnt vmcnt(0)\n' + '\n'.join(body) +
                                 f'\ns_cmp_lg_u64 vcc, 0\ns_cbranch_scc1 {Lr}\n{rest}\ns_branch {Ld}')
                e(f's_cbranch_vccnz {Lr}\n{Ld}:')
                if self.nvm != x_id[-1]: self.tail[-1] = self.tail[-1].replace(f's_branch {Ld}', f's_waitcnt vmcnt(0)\ns_branch {Ld}')
            return body, branch
        XLA = self.opt('xla', 11)
        if SMP:
            for s in range(4): xload()
            bg('b_smp', 0, 10)
            while dq[0][0] < 3: tile_one(dq)
            for s in (0, 2):
                xb, xbr = xcheck(s)
                e(f's_waitcnt {self.wvm(x_id[s+1])}\n' + '\n'.join(xb)); xbr()
        while len(x_id) < XLA: xload()
        bg('b_x', 0, 0)
        for j in range(8): e(f's_add_u32 s{sAb[j]}, s{sActG}, {(7*(j>>1) + 4*(j&1))*1024}')
        if self.o.get('verbose'): print('tr reads left', len(trq), 'wd left', len(wdq), 'dq left', len(dq))
        e(f"""
        v_mov_b32 v124, v{vWdA}
        v_mov_b32 v{TA}, v{TH}
        v_mov_b32 v{TA1}, v{TH+1}
        v_and_b32 v{vP4}, 7, v0
        s_lshr_b32 s0, s{sDt}, 1
        s_lshl_b32 s1, s{sTb}, 5
        s_add_u32 s0, s0, s1
        s_lshl_b32 s0, s0, 7
        s_add_u32 s0, s0, {F3}
        v_lshl_add_u32 v{vP4}, v{vP4}, 9, s0
        s_waitcnt {self.wvm(dma_id[2])} lgkmcnt(0)
        s_barrier""")
        vW[0] = 124
        for n in range(LA): wread(n)
        if not SMP:
            xb, xbr = xcheck(0)
            e(f's_waitcnt {self.wvm(x_id[1])}\n' + '\n'.join(xb)); xbr()
        self.stamp('f2_ok')
        xq = []; xnext = 2
        f4_load = f'buffer_load_dword v{vPo4}, v{vP4}, {SRD}, 0 offen sc1'
        def gelu(tl):
            a = acc[tl]; out = []
            for hf in range(2):
                E = [a+4*hf+j for j in range(4)]
                out += [f'v_fma_f32 v{GT+j}, -v{E[j]}, v{E[j]}, s{sGk}' for j in range(4)]
                out += [f'v_mul_f32 v{GT+j}, v{GT+j}, v{E[j]}' for j in range(4)]
                for j in range(4): out += [f'v_exp_f32 v{GT+j}, v{GT+j}', f'v_mul_f32 v{E[j]+8}, v{E[j]+8}, v{E[j]}']
                for j in range(4): out += [f'v_fma_f32 v{GT+j}, v{GT+j}, s{sGs}, s{sGs}']
                for j in range(4): out += [f'v_rcp_f32 v{GT+j}, v{GT+j}']
                for j in range(4): out += [f'v_mul_f32 v{E[j]+8}, v{E[j]+8}, v{GT+j}']
                out += [f'v_cvt_pk_bf16_f32 v{GO+2*hf+j}, v{E[2*j]+8}, v{E[2*j+1]+8}' for j in range(2)]
                if hf == 0 and tl >= NF: out += [f'v_bfi_b32 v{GO+j}, s{sTm}, v{(TA,TA1)[j]}, v{GO+j}' for j in range(2)]
            out.append(f'buffer_store_dwordx4 {vr(GO,4)}, v1, {SRD}, s{sActS+(tl>>2)} offen offset:{1024*(tl&3)} sc1')
            return [(x, tl) for x in out]
        last = {tl: max(n for n, (a_, _) in enumerate(seq) if a_ == tl) for tl in range(7)}
        first = {tl: min(n for n, (a_, _) in enumerate(seq) if a_ == tl) for tl in range(7)}
        gq = []; vq = dq; st_id = {}; st_n = {}
        a_id = []; xfree = [0]; consumed = set()
        k0 = 28 - 4*len(groups[-1])
        lorder = [(kk, tt) for kk in range(k0) for tt in range(2)] + [(kk, tt) for tt in range(2) for kk in range(k0, 28)]
        NAG = 0
        def areg(kk): return ar(224+4*kk, 4) if kk < NAG else vr(X+4*((kk-NAG) % 32), 4)
        def acan():
            kk = len(a_id)
            if not checked or kk >= gend[checked-1]: return False
            return kk < NAG or (kk-NAG < xfree[0] if kk-NAG < 32 else kk-32 in consumed)
        def atext(kk):
            T, tt = korder[lorder[kk][0]], lorder[kk][1]; pp, i = divmod(T, 7)
            return f'buffer_load_dwordx4 {areg(kk)}, v{vAc1 if tt else 1}, {SRD}, s{sAb[2*pp+(i>>2)]} offen offset:{1024*(i&3)} sc1'
        def aload(): a_id.append(e(atext(len(a_id))))
        CG = self.opt('cg', 2)
        def acheck(kk):
            Lr = p.label('ar'); Ld = p.label('ad'); rs = [X+4*((kk+j-NAG) % 32)+m for j in range(CG) for m in range(2)]
            body = [f'v_xor_b32 v{r}, v{r}, v{(TA,TA1)[j&1]}' for j, r in enumerate(rs)]
            body.append(f'v_or3_b32 v{vPo}, v{rs[0]}, v{rs[1]}, v{rs[2]}')
            body += [f'v_or3_b32 v{vPo}, v{vPo}, v{rs[j]}, v{rs[j+1]}' for j in range(3, 2*CG-1, 2)]
            body += [f'v_bitop3_b32 v{vPo}, v{vPo}, v{rs[-1]}, s{sTm} bitop3:0xa8', f'v_cmp_ne_u32 vcc, 0, v{vPo}']
            def branch():
                self.tail.append(f'{Lr}:\ns_sub_u32 s{sCnt}, s{sCnt}, 1\ns_cbranch_scc1 L_end\n' + '\n'.join(atext(kk+j) for j in range(CG)) + '\ns_waitcnt vmcnt(0)\n' + '\n'.join(body) +
                                 f'\ns_cmp_lg_u64 vcc, 0\ns_cbranch_scc1 {Lr}\ns_branch {Ld}')
                e(f's_cbranch_vccnz {Lr}\n{Ld}:' if not self.opt('skipa', 0) else f'{Ld}:')
            return body, branch
        SK = self.opt('skipa', 0) - 1
        if SK > 0:
            a_id += [1]*SK; NAG = SK
            areg = lambda kk: vr(X+4*((kk-NAG) % 32), 4)
        AD = self.opt('ad', 36); VISD = self.opt('visd', 26); POLD = self.opt('pold', 14)
        checked = 0; fl = {}
        gend = [sum(len(g) for g in groups[:i+1])*8 for i in range(len(groups))]
        def progress(n, force=None):
            nonlocal checked
            fo = -1 if force is None else force
            if checked == 0 and NF:
                if 'flag' in fl and 'poll' not in fl and (n >= fl['flag'] + VISD or fo >= 0):
                    fl['id'] = e(f4_load); fl['poll'] = n; return True
                if 'poll' in fl and (n >= fl['poll'] + POLD or fo >= 0):
                    self.check(f4_load, [vPo4], fl['id']); checked = 1; return True
            elif checked < len(groups) and groups[checked][-1] in st_id and (n >= st_n[groups[checked][-1]] + AD or fo >= checked):
                if fo >= checked: e(f's_waitcnt {self.wvm(st_id[groups[checked][-1]])}')
                checked += 1
            return False
        def emit_g(x, b_, n):
            i_ = e(x)
            if x.startswith('buffer_'):
                r = b_ - self.opt('x2t', 1); assert self.opt('x2t', 1) + 1 < NF or not NF
                if r in (0, 1): i_ = e(f'buffer_store_dwordx4 {vr(XR+4*r,4)}, v{vXO}, {SRD}, s{sT+5} offen offset:{1024*r} sc1')
                if r == 3 and not NF: e(f's_waitcnt {self.wvm(st_id[b_-2])}\n' + self.flag_text(vF, sF3o))
                if b_ == NF and NF: e(f's_waitcnt {self.wvm(st_id[NF-1])}\n' + self.flag_text(vF, sF3o)); fl['flag'] = n
                st_id[b_] = i_; st_n[b_] = n
        PACE = self.opt('pace', 22); nextv = [0]
        def pump(n):
            if 10*n < nextv[0]: return False
            if wd_can() and wdq[0][0] == 3: wd_one()
            elif vq and vq[0][0] == 3 and trq and trq[0][0] <= 3 and first[3] - n > 26:
                if any(x[0] == 4 for x in vq):
                    j = min(j for j, x in enumerate(vq) if x[0] == 4); tile_one([vq.pop(j)])
                else: return False
            elif wd_can() and vq and first[vq[0][0]] - n > self.opt('urg', 48): wd_one()
            elif vq: tile_one(vq)
            elif wd_can(): wd_one()
            elif acan(): aload()
            else: return False
            nextv[0] = max(nextv[0], 10*n - 10) + (PACE if not (192 <= n < 224) else self.opt('pace6', PACE))
            return True
        grate = self.opt('grate', 33); wwait = 0; aq0 = []
        for n, (tl, s) in enumerate(seq):
            if n in (1, 48, 96, 128, 160, 192): self.stamp(f'_g{n}')
            for a_ in range(6):
                if n == last[a_] + 4: gq += gelu(a_)
            if n == last[1] + 1 and n > first[3] - LA:
                e('s_barrier'); vq += [x for i in (5,6) for x in self.dma_tile(i, i-5)]
            for a_ in range(3, 7):
                if n == first[a_] - LA:
                    while any(x[0] == a_ for x in vq): tile_one(vq)
                    e(f's_waitcnt {self.wvm(dma_id[a_])}\ns_barrier')
                    if a_ == 4: wopen[0] = 4
                    if a_ == 5: wopen[0] = 6
                    if a_ == 3 and n > last[1]: vq += [x for i in (5,6) for x in self.dma_tile(i, i-5)]
            w_ = ''
            if w_id[n] > wwait:
                tgt = w_id[min(n+WE-1, len(seq)-1)]; w_ = self.wlg(tgt); wwait = tgt
            if tl == 0 and s % 2 == 0:
                while len(xq) > 1: e(xq.pop(0))
                if xq: xq.pop(0)()
            if w_: e(f's_waitcnt {w_}')
            if s == 0: assert not any(b_ == tl-4 for _, b_ in gq), (n, len(gq))
            c_ = '0' if s == 0 else vr(acc[tl],16)
            e(f'v_mfma_f32_32x32x16_bf16 {vr(acc[tl],16)}, {vr(WF+4*(n%NB),4)}, {vr(X+4*s,4)}, {c_}')
            if tl == 6: xfree[0] = s
            if n + LA < len(seq): wread(n+LA)
            budget = (grate*(n+1))//10 - (grate*n)//10
            if tl == 1 and s % 2 == 0 and s+2 < 32 and not (SMP and s == 0):
                xb, xbr = xcheck(s+2)
                e(f's_waitcnt {self.wvm(x_id[s+3])}'); xq = xb + [xbr]
            for _ in range(3):
                if len(xq) > 1: e(xq.pop(0))
            if progress(n): budget -= 2
            elif len(x_id) < 32:
                if tl == 0: xload()
                elif P1 == 3 and tl == 1 and s % 4 == 0: pump(n)
            else: pump(n)
            while gq and budget > 0:
                x, b_ = gq.pop(0); budget -= 1
                emit_g(x, b_, n)
            for _ in range(max(1, min(budget, 2))):
                if tr_ready(self.opt('trlag1', 9)): tr_pop()
            if not NF and n == len(seq) - self.opt('c6', 5) and len(a_id) >= CG:
                e(f's_waitcnt {self.wvm(a_id[CG-1])}'); b_, br_ = acheck(0); aq0 = b_ + [br_]
            for _ in range(3):
                if len(aq0) > 1: e(aq0.pop(0))
        assert not vq
        self.stamp('g1_mfma')
        n = len(seq); xfree[0] = 32
        while wdq: wd_one()
        e(f"""
        v_lshlrev_b32 v{WF}, 2, v0
        v_add_u32 v{WF}, {L_GB}, v{WF}
        ds_write_b32 v{WF}, v{GBV}""")
        while any(b_ <= 4 for _, b_ in gq):
            x, b_ = gq.pop(0); emit_g(x, b_, n)
        self.c('---- GEMM2: 64 x 64 output tile, K split over the 4 waves, reduction through LDS, out = x2 + gb*ff')
        g6pos = len(p.text); g6 = gelu(6)
        A2 = [ar(224,16), ar(240,16), vr(AC[0],16), vr(AC[3],16)]
        a2q = lambda q_, i: ar(224+16*q_+4*i, 4) if q_ < 2 else vr(AC[3*(q_-2)]+4*i, 4)
        vRw = 12; vRr = 13; vG = 14
        fill = f"""v_bfe_u32 v{WF}, v0, 5, 1
        v_and_b32 v{WF+1}, 0x1f0, v1
        s_mul_i32 s{sT}, s{sW}, {4*RQ}
        s_add_u32 s{sT}, s{sT}, {L_RED}
        v_mul_u32_u24 v{WF}, {RQ}, v{WF}
        v_add3_u32 v{vRw}, v{WF}, v{WF+1}, s{sT}
        v_and_b32 v{WF}, 7, v0
        v_lshrrev_b32 v{WF+1}, 3, v0
        v_mul_u32_u24 v{WF+2}, {RSA}, v{WF}
        v_lshl_add_u32 v{vRr}, v{WF+1}, 4, v{WF+2}
        v_add_u32 v{vRr}, {L_RED}, v{vRr}
        s_lshl_b32 s{sT}, s{sDt}, 7
        s_add_u32 s{sT}, s{sT}, {L_GB}
        v_lshl_add_u32 v{vG}, v{WF}, 4, s{sT}
        s_add_u32 s{sT+2}, s{pOut}, 32768
        s_addc_u32 s{sT+3}, s{pOut+1}, 0""".split('\n')
        fill[-2:] = ['\n'.join(fill[-2:])]
        XF2 = 96
        fill2 = [x for tt in range(2) for j in range(4) for x in self.unpack(XF2+8*tt+2*j, X2R+4*tt+j)]
        TAILK = self.opt('tailk', 6)
        o2 = [(kk, tt, c) for kk in range(28-TAILK) for tt in range(2) for c in range(2)]
        o2 += [(kk, tt, c) for tt in range(2) for c in range(2) for kk in range(28-TAILK, 28)]
        PACE = self.opt('pace2', 18)
        wq = []; twait = 0; await_ = 0; X2M = self.opt('x2m', 44); used = {}
        GF = 112; vRr2 = 15; OO = [16, 4]
        def redw(q_): return [f'ds_write_b128 v{vRw}, {a2q(q_, i)} offset:{2*RQ*(q_>>1)+(4*(q_&1)+i)*RSA}' for i in range(4)]
        RDS = [AC[1], 128]
        r_id = {}
        def redr(tt):
            for hs in range(2):
                for w in range(4):
                    e(f'ds_read_b128 {vr(RDS[tt]+16*hs+4*w,4)}, v{vRr if w<2 else vRr2} offset:{(4*(w&1)+2*tt+hs)*RQ}')
                r_id[(tt, hs)] = self.nlg
        def redm(tt):
            out = []
            for hs in range(2):
                r = RDS[tt]+16*hs
                out.append(('w', (tt, hs)))
                for hh in range(2):
                    out += [f'v_pk_add_f32 {vr(r+2*hh,2)}, {vr(r+2*hh,2)}, {vr(r+4+2*hh,2)}', f'v_pk_add_f32 {vr(r+8+2*hh,2)}, {vr(r+8+2*hh,2)}, {vr(r+12+2*hh,2)}']
                out += [f'v_pk_add_f32 {vr(r+2*hh,2)}, {vr(r+2*hh,2)}, {vr(r+8+2*hh,2)}' for hh in range(2)]
                out += [f'v_pk_fma_f32 {vr(r+2*hh,2)}, {vr(r+2*hh,2)}, {vr(GF+4*hs+2*hh,2)}, {vr(XF2+8*tt+4*hs+2*hh,2)}' for hh in range(2)]
                out += [f'v_cvt_pk_bf16_f32 v{OO[tt]+2*hs+hh}, v{r+2*hh}, v{r+2*hh+1}' for hh in range(2)]
            out.append(f'global_store_dwordx4 v{vX2}, {vr(OO[tt],4)}, {sp(pOut) if tt==0 else sp(sT+2)} {self.opt("outflag","sc1").replace("_"," ").replace("none","")}')
            return out
        def emit_m(x):
            if isinstance(x, tuple): e(f's_waitcnt {self.wlg(r_id[x[1]])}')
            else: e(x)
        fill.append(f'v_add_u32 v{vRr2}, {8*RQ}, v{vRr}')
        fill2.append(f's_mov_b32 s{sGk}, {fbits(2.0**64*(1+self.opt("perturb", 0)/1000))}')
        gun = [x for j in range(4) for x in self.unpack(GF+2*j, GF+8+j)] + [f'v_mul_f32 v{GF+j}, s{sGk}, v{GF+j}' for j in range(8)]
        states = lambda pos: sum(hazard.I(l).states() for l in p.text[pos:])
        wdone = 0; barA = False; aq = aq0; achk = 8*NF; anext = achk + (CG if aq0 else 0)
        firstm = {}
        for m_, (kk, tt, c) in enumerate(o2): firstm.setdefault(lorder.index((kk, tt)), m_)
        for m_, (kk, tt, c) in enumerate(o2):
            f = lorder.index((kk, tt)); T = korder[kk]; q_ = 2*tt + c
            if m_ in (0, 28, 56, 84): self.stamp(f'_h{m_//2}')
            if m_ == X2M - 20 and not NF: id_f4 = e(f4_load)
            if m_ == X2M:
                assert checked
                if not NF:
                    while len(aq) > 1: e(aq.pop(0))
                    if aq: aq.pop(0)(); achk = anext
                    self.check(f4_load, [vPo4], id_f4)
                id_x2l = e(f's_mov_b32 s0, {X2}\nbuffer_load_dwordx4 {vr(X2R,4)}, v{vX2}, {SRD}, s0 offen sc1\ns_mov_b32 s0, {X2+32768}\nbuffer_load_dwordx4 {vr(X2R+4,4)}, v{vX2}, {SRD}, s0 offen sc1')
            if m_ == self.opt('x2u', 70):
                e(f's_waitcnt {self.wvm(id_x2l)} {self.wlg(g_id)}'); fill += fill2 + gun
            while len(a_id) <= f:
                g = min(i for i in range(len(groups)) if gend[i] > len(a_id))
                while groups[g][-1] not in st_id:
                    if not gq: gq += g6; g6 = []
                    x, b_ = gq.pop(0); emit_g(x, b_, n)
                while checked <= g: progress(n, force=g)
                assert acan()
                aload()
            ahead = max(lorder.index((k2, t2)) for k2, t2, _ in o2[m_:m_+2*self.opt('amin', 12)])
            for _ in range(8 if len(a_id) <= f+2 else 2):
                if acan() and len(a_id) <= ahead: aload(); nextv[0] = 10*n + PACE
            while any(T_ == T for _, T_, _ in trq): tr_pop()
            if m_ == 64:
                while trq: tr_pop()
                e(f's_waitcnt lgkmcnt(0)\ns_barrier\nds_read_b128 {vr(GF+8,4)}, v{vG}'); twait = self.nlg-1; g_id = self.nlg; assert not fill and not gq and not g6
            while achk < f + 1:
                if not aq:
                    while len(a_id) < anext + CG: aload()
                    e(f's_waitcnt {self.wvm(a_id[anext+CG-1])}'); b_, br_ = acheck(anext); aq = b_ + [br_]; anext += CG
                while len(aq) > 1: e(aq.pop(0))
                aq.pop(0)(); achk = anext
            w_ = ''
            if f < 8*NF and a_id[f] > await_:
                f2_ = min(f | 1, len(a_id)-1); w_ = self.wvm(a_id[f2_]); await_ = a_id[f2_]
            if t_id.get(T, 0) > twait: w_ += ' ' + self.wlg(t_id[T]); twait = t_id[T]
            if w_: e(f's_waitcnt {w_}')
            e(f'v_mfma_f32_32x32x16_bf16 {A2[q_]}, {ar(8*T+4*c,4)}, {areg(f)}, {"0" if kk==0 else A2[q_]}')
            n += 1
            used[f] = used.get(f, 0) + 1
            if kk == 27 and q_ < 3: wq.append((len(p.text), redw(q_)))
            if not progress(n): pump(n)
            if used[f] == 2: consumed.add(f)
            if len(aq) == 1: aq.pop(0)(); achk = anext
            elif not aq and anext < 56 and len(a_id) >= anext + CG and firstm[anext] <= m_ + self.opt('clead', 6):
                e(f's_waitcnt {self.wvm(a_id[anext+CG-1])}'); b_, br_ = acheck(anext); aq = b_ + [br_]; anext += CG
            for _ in range(self.opt('crate', 3)):
                if len(aq) > 1: e(aq.pop(0))
            if g6 and states(g6pos) >= 12: gq += g6; g6 = []
            if gq:
                for _ in range(self.opt('grate2', 5)):
                    if gq:
                        x, b_ = gq.pop(0); emit_g(x, b_, n)
                if tr_ready(8): tr_pop()
                continue
            if wq:
                if states(wq[0][0]) < 12: e(f's_nop {min(4, 11-states(wq[0][0]))}')
                if states(wq[0][0]) >= 12:
                    e(wq[0][1].pop(0))
                    if not wq[0][1]: wq.pop(0); wdone += 1; wlast = self.nlg
                continue
            if wdone >= 2 and not barA and self.opt('tsplit', 1):
                e(f's_waitcnt {self.wlg(wlast)}\ns_barrier'); barA = True
                redr(0); continue
            for _ in range(self.opt('trate', 2) - c):
                if tr_ready(8): tr_pop()
            for _ in range(2 if m_ < 80 else 3):
                if fill: e(fill.pop(0))
        assert not fill and not trq and not gq and not g6
        self.stamp('g2_mfma')
        lastpos = len(p.text)
        for _, ws_ in wq:
            for x in ws_: e(x)
        if not barA and self.opt('tsplit', 1):
            e(f's_waitcnt lgkmcnt(0)\ns_barrier'); barA = True
            redr(0)
        if barA:
            m0_ = redm(0)
            while states(lastpos) < 12: emit_m(m0_.pop(0))
            for x in redw(3): e(x)
            for x in m0_: emit_m(x)
            e(f's_waitcnt lgkmcnt(0)\ns_barrier')
            redr(1)
            for x in redm(1): emit_m(x)
        else:
            for x in redw(3): e(x)
            e(f's_waitcnt lgkmcnt(0)\ns_barrier')
            redr(0); redr(1)
            for x in redm(0) + redm(1): emit_m(x)
        self.stamp('end')
        e(f'''
        s_or_b32 s0, s{sL}, s{sW}
        s_cbranch_scc1 L_noep''')
        e(self.flag_text(vF, 0))
        e('L_noep:')
        if self.stamps:
            e(f'''
            s_lshl2_add_u32 s{sT}, s{sL}, s{sW}
            s_lshl_b32 s{sT}, s{sT}, 7
            s_add_u32 s{sT}, s{sT}, {STMP}
            v_mov_b32 v4, 0
            s_mov_b64 exec, 1''')
            for i in range(self.ns):
                e(f'v_mov_b32 v5, s{sStamp+i}\nbuffer_store_dword v5, v4, {SRD}, s{sT} offen offset:{4*i}')
            e(f'v_mov_b32 v5, s{sCnt}\nbuffer_store_dword v5, v4, {SRD}, s{sT} offen offset:124')
        if self.o.get('probe') is not None:
            kk = self.stamp_names.index(self.o['probe'])
            e(f'''
            s_sub_u32 s{sT}, s{sStamp+kk}, s100
            s_mul_i32 s{sT}, s{sT}, {self.opt('amp', 10)}
            s_add_u32 s{sT}, s{sT}, s100
            s_add_u32 s{sT}, s{sT}, 3000
            L_spin:
            s_sleep 1
            s_memrealtime s[22:23]
            s_waitcnt lgkmcnt(0)
            s_sub_u32 s{sT+1}, s22, s{sT}
            s_cmp_lt_i32 s{sT+1}, 0
            s_cbranch_scc1 L_spin''')
        e('s_endpgm')
        self.c('---- bounded retries: a hand-off that has not arrived yet is loaded again')
        for x in self.tail: e(x)
        e('L_end:\ns_endpgm')
        p.end(k, vgpr=256, agpr=256, sgpr=102)
        nt = str(self.opt('nt', '-'))
        def hint(l):
            for ch, bases in (('x', [pX]), ('m', [pWm]), ('a', [pAre,pAim,pBre,pBim,pCre,pCim]), ('g', [pWu])):
                if ch in nt and l.strip().startswith('global_load') and any(f', {sp(b)}' in l for b in bases): return l + ' nt'
            if 'e' in nt and 'buffer_load_dwordx2' in l: return l + ' nt'
            return l
        p.text = [hint(l) for l in p.text]
        p.text, added = hazard.fix(p.text, verbose=self.o.get('verbose'))
        hazard.check_global_addresses(p.text, sp(sM+4))
        if self.opt('align', 6):
            p.text, nw, nn = align.fix(p.text, self.opt('align', 6))
            if self.o.get('verbose'): print('align: widened', nw, 'nops', nn)
        p.text += ['; ---- per-thread LDS addresses and masks (functions of the thread id only)', '.p2align 8', 'L_tab:'] + ['.long ' + ', '.join(hex(v) for v in self.table[i:i+16]) for i in range(0, len(self.table), 16)]
        return added

if __name__ == '__main__':
    ap = argparse.ArgumentParser()
    ap.add_argument('out'); ap.add_argument('--stamps', action='store_true'); ap.add_argument('-v', action='store_true')
    ap.add_argument('--probe', default=None); ap.add_argument('-o', action='append', default=[])
    a = ap.parse_args()
    opts = dict(verbose=a.v, probe=a.probe)
    for kv in a.o:
        kk, vv = kv.split('='); opts[kk] = int(vv) if vv.lstrip('-').isdigit() else vv
    g = G(a.stamps or a.probe is not None, opts)
    added = g.build()
    g.p.dump(a.out, single=True)
    n = sum(1 for l in g.p.text if l.startswith('  '))
    print(a.out, 'instructions', n, 'nops added', added, 'stamps', g.stamp_names)
    if a.stamps: open(a.out + '.names', 'w').write(' '.join(g.stamp_names))
```
